```python
import torch

def _softmax(x, axis=-1):
    return torch.softmax(x, dim=axis)

def _gelu(x):
    return torch.nn.functional.gelu(x, approximate='tanh')

def _silu(x):
    return torch.nn.functional.silu(x)

def _sigmoid(x):
    return torch.sigmoid(x)

def _layernorm(x, axis=-1, eps=1e-05):
    m = x.mean(dim=axis, keepdim=True)
    v = x.var(dim=axis, keepdim=True, unbiased=False)
    return (x - m) / torch.sqrt(v + eps)

def _scatter_add(tgt, idx, src, axis=0):
    return tgt.clone().index_add_(axis, idx, src)

def _segment_sum(src, seg, n):
    out = torch.zeros((n,) + src.shape[1:], dtype=src.dtype)
    return out.index_add_(0, seg, src)

def _pad(x, pw):
    flat = tuple((v for pair in reversed(pw) for v in pair))
    return torch.nn.functional.pad(x, flat)
kernel_name = 'gated_mix__grouped_kv_mqa__mixer_gmlp__prompt'

def setup_inputs():

    _w = lambda a: (lambda t: t.to(torch.bfloat16) if t.is_floating_point() else t)(torch.as_tensor(a))

    def _A_setup():
        B, S, D, H = (1, 2048, 640, 32)
        Dh = D // H
        return {'x': _w((lambda *s: torch.randn(*s, dtype=torch.bfloat16) * 0.05)(B, S, D)), 'wq': _w((lambda *s: torch.randn(*s, dtype=torch.bfloat16) * 1.6)(D, H * Dh)), 'wk': _w((lambda *s: torch.randn(*s, dtype=torch.bfloat16) * 1.6)(D, Dh)), 'wv': _w((lambda *s: torch.randn(*s, dtype=torch.bfloat16) * 0.2)(D, Dh)), 'wo': _w((lambda *s: torch.randn(*s, dtype=torch.bfloat16) * 0.2)(H * Dh, D))}
    _A_in = _A_setup()

    def _B_setup():
        B, S, D, F = (1, 2048, 640, 1536)
        Fh = F // 2
        return {'x': _w((lambda *s: torch.randn(*s, dtype=torch.bfloat16) * 0.05)(B, S, D)), 'w_in': _w((lambda *s: torch.randn(*s, dtype=torch.bfloat16) * 0.8)(D, 2 * Fh)), 'w_sp': _w(0.01 * (lambda *s: torch.randn(*s, dtype=torch.bfloat16) * 0.8)(S, S)), 'b_sp': _w(1.0 + 0.01 * (lambda *s: torch.randn(*s, dtype=torch.bfloat16) * 0.05)(S)), 'w_out': _w((lambda *s: torch.randn(*s, dtype=torch.bfloat16) * 0.05)(Fh, D))}
    _B_in = _B_setup()
    return {'A_x': _A_in['x'], 'A_wq': _A_in['wq'], 'A_wk': _A_in['wk'], 'A_wv': _A_in['wv'], 'A_wo': _A_in['wo'], 'B_x': _B_in['x'], 'B_w_in': _B_in['w_in'], 'B_w_sp': _B_in['w_sp'], 'B_b_sp': _B_in['b_sp'], 'B_w_out': _B_in['w_out'], 'gate_w': _w((lambda *s: torch.randn(*s, dtype=torch.bfloat16) * 0.05)(640) * 16.0)}

def reference(A_x, A_wq, A_wk, A_wv, A_wo, B_x, B_w_in, B_w_sp, B_b_sp, B_w_out, gate_w):

    def _A_ref(x, wq, wk, wv, wo):
        B, S, D = x.shape
        H = 32
        Dh = D // H
        q = (lambda x, *d: x.permute(*d))((x @ wq).reshape(B, S, H, Dh), 0, 2, 1, 3)
        k = x @ wk
        v = x @ wv
        scores = torch.einsum('bhqd,bkd->bhqk', q, k) * Dh ** (-0.5)
        p = _softmax(scores, axis=-1)
        o = torch.einsum('bhqk,bkd->bhqd', p, v)
        return (lambda x, *d: x.permute(*d))(o, 0, 2, 1, 3).reshape(B, S, H * Dh) @ wo

    def _B_ref(x, w_in, w_sp, b_sp, w_out):
        B, S, D = x.shape
        F = w_in.shape[-1]
        Fh = F // 2
        z = _gelu(torch.einsum('bsd,df->bsf', x, w_in))
        z1 = z[..., :Fh].clone()
        z2 = _layernorm(z[..., Fh:], axis=-1)
        g = torch.einsum('ts,bsf->btf', w_sp, z2) + b_sp[None, :, None]
        return torch.einsum('bsf,fd->bsd', z1 * g, w_out)
    x = A_x
    g = _sigmoid((x * gate_w).sum(-1, keepdims=True))
    a = _A_ref(x, A_wq, A_wk, A_wv, A_wo)
    b = _B_ref(x, B_w_in, B_w_sp, B_b_sp, B_w_out)
    return g * a + (1 - g) * b
```

```python
import re, sys

class Asm:
    def __init__(self):
        self.lines = []
    def __call__(self, s):
        for l in s.strip("\n").split("\n"):
            l = l.strip()
            if not l: continue
            self.lines.append(l if l.endswith(":") or l.startswith(".") else "    " + l)
    def label(self, l): self.lines.append(l + ":")
    def text(self): return "\n".join(self.lines) + "\n"

def v(b, n=1): return f"v{b}" if n == 1 else f"v[{b}:{b+n-1}]"
def s(b, n=1): return f"s{b}" if n == 1 else f"s[{b}:{b+n-1}]"

class Regs:
    def __init__(self, start, limit):
        self.n = start; self.limit = limit; self.hi = start
    def __call__(self, cnt=1, align=None):
        if align is None: align = 1 if cnt == 1 else (2 if cnt < 4 else 4) if self.limit > 110 else (1 if cnt == 1 else (2 if cnt == 2 else 4))
        b = (self.n + align - 1) // align * align
        self.n = b + cnt
        assert self.n <= self.limit, f"out of registers {self.n} > {self.limit}"
        self.hi = max(self.hi, self.n)
        return b

RE_REG = re.compile(r"^(-|\|)?\|?([vas])(\d+|\[(\d+):(\d+)\])\|?$")
def regs_of(op):
    op = op.strip()
    if op in ("vcc",): return {("s", 106), ("s", 107)}
    if op == "vcc_lo": return {("s", 106)}
    if op == "vcc_hi": return {("s", 107)}
    if op == "exec": return {("s", 126), ("s", 127)}
    if op == "exec_lo": return {("s", 126)}
    if op == "exec_hi": return {("s", 127)}
    if op == "m0": return {("s", 124)}
    m = RE_REG.match(op)
    if not m: return set()
    k = m.group(2)
    if m.group(4) is not None: return {(k, i) for i in range(int(m.group(4)), int(m.group(5)) + 1)}
    return {(k, int(m.group(3)))}

TRANS = ("v_exp_f32", "v_log_f32", "v_rcp_f32", "v_rsq_f32", "v_sqrt_f32", "v_sin_f32", "v_cos_f32")
VCC = {("s", 106), ("s", 107)}
class I:
    pass
def parse(line, idx):
    t = line.split(";")[0].split("//")[0].strip()
    i = I(); i.idx = idx; i.text = t; i.label = None; i.op = None
    i.dst = set(); i.src = set(); i.cls = None; i.ws = 1
    if not t or t.startswith("."): i.cls = "none"; i.ws = 0; return i
    if t.endswith(":"): i.label = t[:-1]; i.cls = "none"; i.ws = 0; return i
    p = t.split(None, 1); op = p[0]; i.op = op
    rest = p[1] if len(p) > 1 else ""
    ops = [x.strip() for x in re.split(r",(?![^\[]*\])", rest)] if rest else []
    mods = []
    if ops:
        last = ops[-1].split()
        ops[-1] = last[0] if last else ""
        mods = last[1:]
    i.ops = ops; i.mods = mods
    R = [regs_of(o) for o in ops]
    U = lambda l: set().union(*l) if l else set()
    base = re.sub(r"_(e32|e64|dpp|sdwa)$", "", op)
    if op.startswith("v_smfmac"):
        i.cls = "mfma"; i.dst = R[0]; i.A = R[1]; i.B = R[2] | R[3]; i.C = R[0]; i.src = R[0] | R[1] | R[2] | R[3]; i.passes = 8
    elif op.startswith("v_mfma"):
        i.cls = "mfma"; i.dst = R[0]; i.A = R[1]; i.B = R[2]; i.C = R[3]; i.src = R[1] | R[2] | R[3]
        i.passes = 8 if "32x32" in op else 4
    elif op.startswith("v_"):
        i.cls = "valu"
        i.trans = base in TRANS
        i.dpp = any(m.startswith(("row_", "quad_perm", "wave_", "row_bcast")) for m in mods)
        i.dot = base.startswith("v_dot")
        i.perm = base.startswith("v_permlane")
        i.rl = base in ("v_readlane_b32", "v_readfirstlane_b32")
        i.opsel = any(m.startswith("dst_sel") for m in mods) or (any(m.startswith("op_sel:") for m in mods) and not base.startswith("v_pk_"))
        if base == "v_nop": pass
        elif base.startswith("v_cmpx"): raise Exception("no v_cmpx please")
        elif i.perm or base == "v_swap_b32": i.dst = R[0] | R[1]; i.src = R[0] | R[1]
        elif base in ("v_add_co_u32", "v_sub_co_u32", "v_subrev_co_u32"): i.dst = R[0] | R[1]; i.src = U(R[2:])
        elif base in ("v_addc_co_u32", "v_subb_co_u32", "v_subbrev_co_u32", "v_mad_u64_u32", "v_mad_i64_i32"): i.dst = R[0] | R[1]; i.src = U(R[2:])
        else:
            i.dst = R[0]; i.src = U(R[1:])
            if base in ("v_fmac_f32", "v_dot2c_f32_bf16", "v_writelane_b32", "v_pk_fmac_f16", "v_mac_f32") or i.dpp or i.opsel: i.src |= R[0]
            if base == "v_cndmask_b32" and len(ops) == 3: i.src |= VCC
    elif op.startswith("ds_"):
        i.cls = "ds"
        if op.startswith(("ds_read", "ds_bpermute", "ds_permute", "ds_swizzle")) or "_rtn" in op: i.dst = R[0]; i.src = U(R[1:])
        else: i.src = U(R)
    elif op.startswith("buffer_") or op.startswith("global_"):
        i.cls = "vmem"; i.lds = "lds" in mods or "_lds_" in op
        i.wide = False
        if op in ("buffer_inv", "buffer_wbl2"): pass
        elif i.lds: i.src = U(R) | {("s", 124)}
        elif "_load" in op: i.dst = R[0]; i.src = U(R[1:])
        elif "_store" in op:
            i.src = U(R); i.data = R[0] if op.startswith("buffer_") else R[1]
            i.wide = op.endswith(("x3", "x4"))
        elif "_atomic" in op:
            i.src = U(R)
            if "sc0" in mods: i.dst = R[0]
        else: raise Exception("vmem? " + t)
    elif op.startswith(("s_load", "s_buffer_load", "s_memtime", "s_memrealtime")):
        i.cls = "smem"; i.dst = R[0]; i.src = U(R[1:])
    elif op == "s_waitcnt":
        i.cls = "wait"; i.vm = None; i.lgkm = None
        for m in re.finditer(r"(vmcnt|lgkmcnt)\((\d+)\)", rest):
            if m.group(1) == "vmcnt": i.vm = int(m.group(2))
            else: i.lgkm = int(m.group(2))
    elif op == "s_nop": i.cls = "nop"; i.ws = int(ops[0]) + 1
    elif op.startswith("s_cbranch") or op == "s_branch": i.cls = "br"; i.target = ops[0]
    elif op == "s_endpgm": i.cls = "end"
    elif op in ("s_barrier", "s_setprio", "s_sleep", "s_sethalt"): i.cls = "misc"
    elif op.startswith(("s_cmp", "s_bitcmp")): i.cls = "salu"; i.src = U(R)
    elif op.startswith("s_"):
        i.cls = "salu"; i.dst = R[0]; i.src = U(R[1:])
        if "saveexec" in op: i.dst = i.dst | regs_of("exec")
        if op in ("s_addk_i32", "s_mulk_i32", "s_cmov_b32", "s_cmovk_i32", "s_bitset1_b32", "s_bitset0_b32"): i.src |= R[0]
    else: raise Exception("unknown op " + t)
    return i

def isv(rs): return {r for r in rs if r[0] in "va"}
def iss(rs): return {r for r in rs if r[0] == "s"}

def need(p, c):
    n = 0
    if p.cls == "valu":
        pv = isv(p.dst); ps = iss(p.dst)
        if c.cls == "mfma" and pv & c.src: n = max(n, 3 if p.dot else 2)
        if c.cls == "valu":
            if p.trans and not c.trans and pv & c.src: n = max(n, 1)
            if (c.dpp or c.perm) and pv & c.src: n = max(n, 2)
            if c.rl and pv & c.src: n = max(n, 1)
            if p.opsel and pv & (c.src | c.dst): n = max(n, 1)
            if ps & c.src: n = max(n, 4 if c.op.startswith(("v_readlane", "v_writelane")) else 2)
            if p.dot and pv & (c.src | c.dst):
                if c.op == p.op:
                    ab = regs_of(c.ops[1]) | regs_of(c.ops[2])
                    if pv & ab: n = max(n, 3)
                else: n = max(n, 3)
        if c.cls in ("vmem", "ds") and p.dot and pv & c.src: n = max(n, 3)
        if c.cls in ("vmem", "ds") and p.trans and pv & c.src: n = max(n, 1)
        if c.cls == "vmem" and ps & c.src: n = max(n, 5)
    if p.cls == "salu" and ("s", 124) in p.dst and c.cls == "vmem" and c.lds: n = max(n, 1)
    if p.cls == "mfma":
        big = p.passes == 8
        if c.cls == "mfma":
            if p.dst & (c.A | c.B): n = max(n, 12 if big else 8)
            if p.dst & c.C and not (p.dst == c.C and p.passes == c.passes): n = max(n, 10 if big else 6)
        elif c.cls in ("valu", "vmem", "ds"):
            if p.dst & (c.src | c.dst): n = max(n, 12 if big else 8)
            if c.cls == "valu" and p.C & c.dst: n = max(n, 7 if big else 3)
    if p.cls == "vmem" and getattr(p, "wide", False):
        if p.data & c.dst: n = max(n, 2 if c.cls in ("valu", "mfma") else 1)
    return n

def lint(lines, name=""):
    ins = [parse(l, k) for k, l in enumerate(lines)]
    lab = {i.label: i.idx for i in ins if i.label}
    N = len(ins)
    succ = [[] for _ in ins]
    for i in ins:
        if i.cls == "end": continue
        if i.cls == "br":
            succ[i.idx].append(lab[i.target])
            if i.op == "s_branch": continue
        if i.idx + 1 < N: succ[i.idx].append(i.idx + 1)
    errs = []
    for p in ins:
        if p.cls not in ("valu", "salu", "mfma", "vmem"): continue
        seen = set(); st = [(x, 0) for x in succ[p.idx]]
        while st:
            k, d = st.pop()
            if (k, d) in seen or d >= 12: continue
            seen.add((k, d)); c = ins[k]
            if c.cls not in ("none",):
                n = need(p, c)
                if n > d: errs.append(f"HAZARD need {n} have {d}: [{p.idx}] {p.text}  ->  [{c.idx}] {c.text}")
            for x in succ[k]: st.append((x, d + c.ws))
    for p in ins:
        if not p.dst or p.cls not in ("vmem", "ds", "smem"): continue
        seen = set(); st = [(x, 0, False) for x in succ[p.idx]]; bad = False
        while st and not bad:
            k, n, sm = st.pop()
            if (k, n, sm) in seen: continue
            seen.add((k, n, sm)); c = ins[k]
            if c.cls == "wait":
                if p.cls == "vmem" and c.vm is not None and c.vm <= n: continue
                if p.cls == "ds" and c.lgkm is not None and (c.lgkm == 0 or (c.lgkm <= n and not sm)): continue
                if p.cls == "smem" and c.lgkm == 0: continue
            if c.cls != "none" and p.dst & (c.src | c.dst):
                if c.cls == p.cls and p.cls != "smem" and not (p.dst & c.src):
                    continue
                errs.append(f"WAITCNT: [{p.idx}] {p.text}  used by [{c.idx}] {c.text} (younger={n})"); bad = True; continue
            if p.cls == "vmem" and c.cls == "vmem": n = min(n + 1, 64)
            if p.cls == "ds" and c.cls == "ds": n = min(n + 1, 16)
            if p.cls == "ds" and c.cls == "smem": sm = True
            for x in succ[k]: st.append((x, n, sm))
    for e in errs[:40]: print(name, e)
    return len(errs)
```

```python
from asmlib import *
import math, struct
def f2u(x): return struct.unpack("<I", struct.pack("<f", x))[0]
def hx(x): return f"0x{x & 0xffffffff:x}"
def fl(x): return hx(f2u(x))
QF_HEAD = 2560
WS_QF  = 0
WS_KV  = WS_QF + 32*32*QF_HEAD
WS_Z2R = WS_KV + 16*12288
WS_Z1  = WS_Z2R + 256*12288
WS_ST  = WS_Z1 + 256*12288
WS_Z2N = WS_ST + 2048*64
WS_ACT = WS_Z2N + 8*128*3072
WS_GATE= WS_ACT + 128*44*1024
WS_FLAG= WS_GATE + 8192
WS_END = WS_FLAG + 65536
LOG2E = 1.4426950408889634
QSCALE = LOG2E / math.sqrt(20.0)
GK1 = 2.0 * LOG2E * math.sqrt(2.0 / math.pi)
GK2 = GK1 * 0.044715
P_X,P_WQ,P_WK,P_WV,P_WO,P_BX,P_WIN,P_WSP,P_BSP,P_WOUT,P_GW,P_OUT,P_DBG,P_WS = range(4,32,2)
S_TG, S_J, S_W = 32, 33, 34
def header(a, name, JB):
    a(f"""
.globl {name}
.p2align 8
.type {name},@function
{name}:
    s_cmp_ge_u32 s2, 0x100
    s_cbranch_scc1 {name}_end
    s_load_dwordx16 s[4:19], s[0:1], 0
    s_load_dwordx8 s[20:27], s[0:1], 64
    s_load_dwordx4 s[28:31], s[0:1], 96
    v_lshrrev_b32 v1, 6, v0
    v_and_b32 v0, 63, v0
    s_lshr_b32 s3, s2, 3
    v_readfirstlane_b32 s{S_W}, v1
    s_and_b32 s{S_J}, s3, {(1<<JB)-1}
    s_lshr_b32 s{S_TG}, s3, {JB}
""")
    if JB < 3:
        a(f"""
    s_and_b32 s3, s2, {(8>>JB)-1}
    s_lshl_b32 s3, s3, {JB}
    s_or_b32 s{S_J}, s{S_J}, s3
""")
    if JB > 0:
        a(f"""
    s_bfe_u32 s3, s2, {hx((JB<<16)|(3-JB))}
    s_lshl_b32 s3, s3, {5-JB}
    s_or_b32 s{S_TG}, s{S_TG}, s3
""")
def srd(a, d, p, nbytes):
    a(f"""
    s_mov_b32 s{d}, s{p}
    s_mov_b32 s{d+1}, s{p+1}
    s_mov_b32 s{d+2}, {hx(nbytes)}
    s_mov_b32 s{d+3}, 0x20000
""")
def footer(a, name):
    a(f"{name}_end:\n s_endpgm")
def descriptor(name, nv):
    nv = (nv + 7) // 8 * 8
    return f""".p2align 6
.amdhsa_kernel {name}
  .amdhsa_next_free_vgpr {nv}
  .amdhsa_next_free_sgpr 102
  .amdhsa_accum_offset {nv}
  .amdhsa_group_segment_fixed_size 0
  .amdhsa_kernarg_size 112
  .amdhsa_user_sgpr_count 2
  .amdhsa_user_sgpr_kernarg_segment_ptr 1
  .amdhsa_system_sgpr_workgroup_id_x 1
.end_amdhsa_kernel
"""
def gelu16(a, x, t0, sK, sum2=None, sq2=None):
    P = range(0, 16, 2)
    for i in P: a(f"v_pk_mul_f32 {v(t0+i,2)}, {v(x+i,2)}, {v(x+i,2)}")
    for i in P: a(f"v_pk_fma_f32 {v(t0+i,2)}, {v(t0+i,2)}, {s(sK,2)}, {v(sK_v(a),2)}")
    for i in P: a(f"v_pk_mul_f32 {v(t0+i,2)}, {v(t0+i,2)}, {v(x+i,2)}")
    for i in range(16): a(f"v_exp_f32 {v(t0+i)}, {v(t0+i)}")
    for i in P: a(f"v_pk_add_f32 {v(t0+i,2)}, {v(t0+i,2)}, 1.0 op_sel_hi:[1,0]")
    for i in range(16): a(f"v_rcp_f32 {v(t0+i)}, {v(t0+i)}")
    for i in P: a(f"v_pk_mul_f32 {v(x+i,2)}, {v(x+i,2)}, {v(t0+i,2)}")
    if sum2 is not None:
        for i in P:
            a(f"v_pk_add_f32 {v(sum2,2)}, {v(sum2,2)}, {v(x+i,2)}")
            a(f"v_pk_fma_f32 {v(sq2,2)}, {v(x+i,2)}, {v(x+i,2)}, {v(sq2,2)}")
def sK_v(a): return a.vK1
```

```python
from common import *
def k1(name, JB=2, NST=3, stagger=True):
    a = Asm(); header(a, name, JB)
    STG = 45056; RX = 0; RW = 8192
    S = Regs(36, 100); V = Regs(1, 168)
    sWS = S(4); sX = S(4); sC = S(); sStage = S(); sN = S(); sT = S(); sT2 = S(); sM = S(); sK = S(2); sO = S(); sE = S(2); sGW = S(4)
    a("s_waitcnt lgkmcnt(0)")
    srd(a, sWS, P_WS, WS_END)
    a(f"""
    s_cmp_ge_u32 s{S_W}, 4
    s_cbranch_scc1 {name}_loader
    """)
    acc = V(80); fw = [V(4) for n in range(5)]; fx = [V(4) for k in range(2)]
    vWb = V(); vXb = V(); vW = V(); vX = [V() for i in range(4)]; t = V(16); vh = V(); vtok = V(); va = V(); vb = V()
    sm = V(2); sq = V(2); a.vK1 = V(2)
    sG = S(); sTH = S()
    a(f"""
    s_lshr_b32 s{sG}, s{S_W}, 1
    s_and_b32 s{sTH}, s{S_W}, 1
    v_lshrrev_b32 v{vh}, 5, v0
    v_and_b32 v{vtok}, 31, v0
    v_bfe_u32 v{va}, v0, 2, 2
    v_lshl_add_u32 v{va}, v{vh}, 3, v{va}
    v_mul_u32_u24 v{vWb}, 192, v{va}
    v_bfe_u32 v{va}, v0, 4, 1
    v_lshl_add_u32 v{vWb}, v{va}, 5, v{vWb}
    v_and_b32 v{va}, 3, v0
    v_lshl_add_u32 v{vWb}, v{va}, 3, v{vWb}
    v_bfe_u32 v{va}, v0, 1, 3
    v_xor_b32 v{va}, v{va}, v{vh}
    v_lshlrev_b32 v{va}, 4, v{va}
    v_lshl_add_u32 v{vXb}, v{vtok}, 7, v{va}
    s_lshl_b32 s{sT}, s{sTH}, 12
    v_add_u32 v{vXb}, s{sT}, v{vXb}
    v_mov_b32 v{vW}, v{vWb}
    v_mov_b32 v{vX[0]}, v{vXb}
    v_xor_b32 v{vX[1]}, 32, v{vXb}
    v_xor_b32 v{vX[2]}, 64, v{vXb}
    v_xor_b32 v{vX[3]}, 0x60, v{vXb}
    s_mov_b32 s{sStage}, 0
    s_mov_b32 s{sN}, 10
    """)
    for i in range(0, 80, 2): a(f"v_mov_b64 {v(acc+i,2)}, 0")
    a(f"""
    s_cmp_eq_u32 s{sG}, 1
    s_barrier
    s_cbranch_scc1 {name}_c1
    """)
    for g in range(2):
        tiles = [(0, RW), (1, RW+64)] if g == 0 else [(0, RW+128)]
        tiles += [(2+n, RW+12288*(1+g)+64*n) for n in range(3)]
        NT = len(tiles)
        def rdW(n, st):
            for p in range(2): a(f"ds_read_b64_tr_b16 {v(fw[n]+2*p,2)}, v{vW} offset:{st*3072+p*768+tiles[n][1]}")
        def rdX(st): a(f"ds_read_b128 {v(fx[st&1],4)}, v{vX[st]}")
        def mf(n, st): a(f"v_mfma_f32_32x32x16_bf16 {v(acc+16*tiles[n][0],16)}, {v(fw[n],4)}, {v(fx[st&1],4)}, {v(acc+16*tiles[n][0],16)}")
        a(f"{name}_c{g}:")
        rdX(0)
        for n in range(NT): rdW(n, 0)
        a(f"{name}_cloop{g}:")
        for st in range(3):
            for n in range(NT):
                a(f"s_waitcnt lgkmcnt({2*NT-2 if n == 0 else 2*NT-1})")
                mf(n, st)
                if n == 0: rdX(st+1)
                rdW(n, st+1)
        a(f"s_waitcnt lgkmcnt({2*NT-2})"); mf(0, 3)
        a(f"""
        s_add_u32 s{sStage}, s{sStage}, {STG}
        s_cmp_eq_u32 s{sStage}, {NST*STG}
        s_cselect_b32 s{sStage}, 0, s{sStage}
        v_add_u32 v{vW}, s{sStage}, v{vWb}
        v_add_u32 v{vX[0]}, s{sStage}, v{vXb}
        s_waitcnt lgkmcnt({2*NT-4})
        """)
        mf(1, 3)
        a(f"""
        s_sub_u32 s{sN}, s{sN}, 1
        s_waitcnt lgkmcnt(0)
        s_barrier
        """)
        rdX(0); rdW(0, 0); rdW(1, 0)
        for n in range(2, NT):
            mf(n, 3); rdW(n, 0)
            if n == 2:
                for i in range(1, 4): a(f"v_xor_b32 v{vX[i]}, {hx(32*i)}, v{vX[0]}")
        a(f"""
        s_cmp_lg_u32 s{sN}, 0
        s_cbranch_scc1 {name}_cloop{g}
        """)
        if g == 0: a(f"s_branch {name}_epi")
    a(f"{name}_epi:")
    a(f"""
    s_mov_b32 s{sK}, {fl(QSCALE)}
    s_mov_b32 s{sK+1}, {fl(QSCALE)}
    s_lshl_b32 s{sT}, s{S_TG}, 5
    s_lshl_b32 s{sT2}, s{S_J}, 2
    s_add_u32 s{sT}, s{sT}, s{sT2}
    s_mul_i32 s{sO}, s{sT}, {QF_HEAD}
    v_lshlrev_b32 v{vb}, 4, v{vtok}
    s_lshl_b32 s{sT}, s{sTH}, 10
    s_lshl_b32 s{sT2}, s{sTH}, 3
    v_add_u32 v{vX[0]}, s{sT}, v{vb}
    v_add_u32 v{vX[1]}, s{sT2}, v{vb}
    v_cmp_ne_u32 vcc, 0, v{vh}
    s_waitcnt lgkmcnt(0)
    s_cmp_eq_u32 s{sG}, 1
    s_cbranch_scc1 {name}_g1
    """)
    def qoff(Qd):
        hd, qd = divmod(Qd, 5)
        return (hd*QF_HEAD + (2048 if qd == 4 else (qd & 1)*512 + (qd >> 1)*8), qd == 4)
    def qstore(r, Qd0, tt):
        (c0, e0), (c1, e1) = qoff(Qd0), qoff(Qd0+1)
        a(f"""
        v_pk_mul_f32 {v(r,2)}, {v(r,2)}, {s(sK,2)}
        v_pk_mul_f32 {v(r+2,2)}, {v(r+2,2)}, {s(sK,2)}
        v_add_u32 v{tt}, {hx(c0)}, v{vX[1] if e0 else vX[0]}
        v_add_u32 v{tt+1}, {hx(c1)}, v{vX[1] if e1 else vX[0]}
        v_cvt_pk_bf16_f32 v{r}, v{r}, v{r+1}
        v_cvt_pk_bf16_f32 v{r+1}, v{r+2}, v{r+3}
        v_cndmask_b32 v{tt}, v{tt}, v{tt+1}, vcc
        buffer_store_dwordx2 {v(r,2)}, v{tt}, {s(sWS,4)}, s{sO} offen
        """)
    for i in range(8): qstore(acc+4*i, 2*i, t+2*i)
    a(f"""
    s_branch {name}_z
    {name}_g1:
    """)
    for i in range(2): qstore(acc+4*i, 16+2*i, t+2*i)
    kv = acc+8
    a(f"""
    v_cvt_pk_bf16_f32 v{kv}, v{kv}, v{kv+1}
    v_cvt_pk_bf16_f32 v{kv+1}, v{kv+2}, v{kv+3}
    v_cvt_pk_bf16_f32 v{kv+2}, v{kv+4}, v{kv+5}
    v_cvt_pk_bf16_f32 v{kv+3}, v{kv+6}, v{kv+7}
    s_lshr_b32 s{sT}, s{S_TG}, 1
    s_mul_i32 s{sO}, s{sT}, 12288
    s_add_u32 s{sO}, s{sO}, {hx(WS_KV)}
    s_and_b32 s{sT}, s{S_TG}, 1
    s_lshl_b32 s{sM}, s{sT}, 1
    s_add_u32 s{sM}, s{sM}, s{sTH}
    s_cmp_ge_u32 s{S_J}, 4
    s_cbranch_scc1 {name}_z
    s_cmp_ge_u32 s{S_J}, 2
    s_cbranch_scc1 {name}_v
    s_cmp_eq_u32 s{S_J}, 1
    s_cbranch_scc1 {name}_k8
    s_lshl_b32 s{sM}, s{sM}, 10
    s_add_u32 s{sO}, s{sO}, s{sM}
    v_lshlrev_b32 v{va}, 4, v0
    buffer_store_dwordx4 {v(kv,4)}, v{va}, {s(sWS,4)}, s{sO} offen
    s_branch {name}_z
    {name}_k8:
    s_lshl_b32 s{sT}, s{sT}, 9
    s_add_u32 s{sO}, s{sO}, s{sT}
    s_add_u32 s{sO}, s{sO}, 4096
    v_mov_b32 v{va}, -4.0
    v_cndmask_b32 v{va}, v{va}, v{vX[1]}, vcc
    buffer_store_dwordx2 {v(kv+2,2)}, v{va}, {s(sWS,4)}, s{sO} offen
    s_branch {name}_z
    {name}_v:
    s_lshl_b32 s{sT}, s{sTH}, 10
    s_add_u32 s{sT}, s{sT}, {(8 % NST)*STG}
    v_lshlrev_b32 v{va}, 5, v{vtok}
    v_lshl_add_u32 v{va}, v{vh}, 3, v{va}
    v_add_u32 v{va}, s{sT}, v{va}
    ds_write_b64 v{va}, {v(kv,2)}
    ds_write_b64 v{va}, {v(kv+2,2)} offset:16
    v_bfe_u32 v{t}, v0, 4, 1
    v_bfe_u32 v{t+1}, v0, 2, 2
    v_lshl_add_u32 v{t+1}, v{t}, 2, v{t+1}
    v_lshl_add_u32 v{t+1}, v{vh}, 4, v{t+1}
    v_and_b32 v{t+2}, 3, v0
    v_lshlrev_b32 v{t+2}, 3, v{t+2}
    v_lshl_add_u32 v{t+1}, v{t+1}, 5, v{t+2}
    v_add_u32 v{t+1}, s{sT}, v{t+1}
    s_waitcnt lgkmcnt(0)
    ds_read_b64_tr_b16 {v(kv,2)}, v{t+1}
    ds_read_b64_tr_b16 {v(kv+2,2)}, v{t+1} offset:256
    s_mul_i32 s{sM}, s{sM}, 1536
    s_add_u32 s{sO}, s{sO}, s{sM}
    s_add_u32 s{sO}, s{sO}, 5120
    v_mul_u32_u24 v{t}, 0x180, v{t}
    v_mul_u32_u24 v{t+1}, 0x300, v{vh}
    v_and_b32 v{t+2}, 15, v0
    v_add_u32 v{t}, v{t}, v{t+1}
    v_lshl_add_u32 v{va}, v{t+2}, 4, v{t}
    s_cmp_eq_u32 s{S_J}, 2
    s_waitcnt lgkmcnt(0)
    s_cbranch_scc1 {name}_v2
    v_cmp_eq_u32 {s(sE,2)}, 0, v{t+2}
    v_mov_b32 v{t+3}, 0x3f803f80
    v_cmp_gt_u32 vcc, 4, v{t+2}
    v_cndmask_b32 v{t+3}, 0, v{t+3}, {s(sE,2)}
    v_add_u32 v{t+4}, 0x140, v{va}
    v_add_u32 v{va}, 64, v{va}
    v_cmp_gt_u32 {s(sE,2)}, 12, v{t+2}
    v_cndmask_b32 v{kv}, v{kv}, v{t+3}, vcc
    v_cndmask_b32 v{kv+1}, v{kv+1}, v{t+3}, vcc
    v_cndmask_b32 v{va}, v{va}, -4.0, {s(sE,2)}
    v_cndmask_b32 v{kv+2}, v{kv+2}, v{t+3}, vcc
    v_cndmask_b32 v{kv+3}, v{kv+3}, v{t+3}, vcc
    v_cndmask_b32 v{va}, v{va}, v{t+4}, vcc
    {name}_v2:
    buffer_store_dwordx4 {v(kv,4)}, v{va}, {s(sWS,4)}, s{sO} offen
    {name}_z:
    s_lshl_b32 s{sT}, s{S_TG}, 3
    s_add_u32 s{sT}, s{sT}, s{S_J}
    s_lshl_b32 s{sT}, s{sT}, 1
    s_add_u32 s{sT}, s{sT}, s{sTH}
    s_mul_i32 s{sO}, s{sT}, 6144
    s_mul_i32 s{sT}, s{sG}, {hx(WS_Z1-WS_Z2R)}
    s_add_u32 s{sO}, s{sO}, {hx(WS_Z1)}
    s_sub_u32 s{sO}, s{sO}, s{sT}
    s_mov_b32 s{sN}, 3
    s_mov_b32 s{sK}, {fl(-GK2)}
    s_mov_b32 s{sK+1}, {fl(-GK2)}
    v_mov_b32 v{a.vK1}, {fl(-GK1)}
    v_mov_b32 v{a.vK1+1}, {fl(-GK1)}
    v_mov_b64 {v(sm,2)}, 0
    v_mov_b64 {v(sq,2)}, 0
    v_lshlrev_b32 v{va}, 4, v0
    {name}_zloop:
    """)
    z = acc+32
    gelu16(a, z, t, sK, sm, sq)
    for i in range(8): a(f"v_cvt_pk_bf16_f32 v{t+4*((i>>1)&1)+2*(i>>2)+(i&1)}, v{z+2*i}, v{z+2*i+1}")
    a(f"""
    buffer_store_dwordx4 {v(t,4)}, v{va}, {s(sWS,4)}, s{sO} offen
    buffer_store_dwordx4 {v(t+4,4)}, v{va}, {s(sWS,4)}, s{sO} offen offset:3072
    s_sub_u32 s{sN}, s{sN}, 1
    s_add_u32 s{sO}, s{sO}, 1024
    s_cmp_lg_u32 s{sN}, 0
    """)
    for i in range(0, 32, 2): a(f"v_mov_b64 {v(z+i,2)}, {v(z+16+i,2)}")
    a(f"""
    s_cbranch_scc1 {name}_zloop
    s_cmp_eq_u32 s{sG}, 0
    s_cbranch_scc1 {name}_end
    v_add_f32 v{sm}, v{sm}, v{sm+1}
    v_add_f32 v{sq}, v{sq}, v{sq+1}
    s_lshl_b32 s{sT}, s{S_TG}, 1
    s_add_u32 s{sT}, s{sT}, s{sTH}
    s_lshl_b32 s{sO}, s{sT}, 11
    v_permlane32_swap_b32 v{sm}, v{sq}
    s_lshl_b32 s{sT}, s{S_J}, 3
    s_add_u32 s{sO}, s{sO}, s{sT}
    s_add_u32 s{sO}, s{sO}, {hx(WS_ST)}
    v_lshlrev_b32 v{va}, 6, v{vtok}
    v_lshl_add_u32 v{va}, v{vh}, 2, v{va}
    v_add_f32 v{sm}, v{sm}, v{sq}
    buffer_store_dword v{sm}, v{va}, {s(sWS,4)}, s{sO} offen
    s_endpgm
    """)
    nv_c = V.hi
    V = Regs(1, 128)
    vx = [V() for i in range(2)]; base = [V(2) for i in range(3)]; step = [V() for i in range(3)]; ad = [V(2) for i in range(3)]; vz = [V() for i in range(3)]
    p = V(); row = V(); c = V(); u = V(); u2 = V(); kq = V(2); kv2 = V(2)
    sL = S(); sXo = S(); sZo = S(); sZo2 = S(); sJz = S(); sWI = S(4)
    a(f"{name}_loader:")
    srd(a, sX, P_X, 2048*1280)
    srd(a, sWI, P_WIN, 640*3072)
    a(f"""
    s_sub_u32 s{sL}, s{S_W}, 4
    v_lshrrev_b32 v{row}, 3, v0
    s_lshl_b32 s{sM}, s{sL}, 4
    v_add_u32 v{row}, s{sM}, v{row}
    v_and_b32 v{c}, 7, v0
    v_bfe_u32 v{u}, v{row}, 1, 3
    v_xor_b32 v{u}, v{u}, v{c}
    v_xor_b32 v{u2}, 4, v{u}
    s_lshl_b32 s{sT}, s{S_TG}, 6
    v_add_u32 v{row}, s{sT}, v{row}
    v_mul_u32_u24 v{row}, 0x500, v{row}
    v_lshl_add_u32 v{vx[0]}, v{u}, 4, v{row}
    v_lshl_add_u32 v{vx[1]}, v{u2}, 4, v{row}
    v_add_u32 v{vx[1]}, {8*1280-1024}, v{vx[1]}
    s_mul_i32 s{sJz}, s{S_J}, 192
    s_mul_i32 s{sT}, s{S_J}, 160
    s_add_u32 s{P_WQ}, s{P_WQ}, s{sT}
    s_addc_u32 s{P_WQ+1}, s{P_WQ+1}, 0
    s_bitcmp1_b32 s{S_J}, 1
    s_cselect_b32 s{P_WK}, s{P_WV}, s{P_WK}
    s_cselect_b32 s{P_WK+1}, s{P_WV+1}, s{P_WK+1}
    s_and_b32 s{sT}, s{S_J}, 1
    s_lshl_b32 s{sT}, s{sT}, 3
    s_sub_u32 s{sT}, 160, s{sT}
    s_sub_u32 s{P_WK}, s{P_WK}, s{sT}
    s_subb_u32 s{P_WK+1}, s{P_WK+1}, 0
    v_mov_b64 {v(kq,2)}, {s(P_WQ,2)}
    v_mov_b64 {v(kv2,2)}, {s(P_WK,2)}
    v_mov_b32 v{u2}, 0x500
    """)
    for i in range(3):
        a(f"""
        v_add_u32 v{p}, {64*i}, v0
        v_mul_u32_u24 v{row}, 5462, v{p}
        v_lshrrev_b32 v{row}, 16, v{row}
        v_mul_u32_u24 v{c}, 12, v{row}
        v_sub_u32 v{c}, v{p}, v{c}
        v_cmp_gt_u32 vcc, 10, v{c}
        v_add_u32 v{row}, s{sM}, v{row}
        v_lshlrev_b32 v{c}, 4, v{c}
        v_cndmask_b32 v{step[i]}, 40, v{u2}, vcc
        v_cndmask_b32 v{base[i]}, v{kv2}, v{kq}, vcc
        v_cndmask_b32 v{base[i]+1}, v{kv2+1}, v{kq+1}, vcc
        v_subrev_u32 v{c}, {1024*i}, v{c}
        v_mad_i32_i24 v{u}, v{row}, v{step[i]}, v{c}
        v_mul_u32_u24 v{row}, 0xc00, v{row}
        v_lshlrev_b32 v{step[i]}, 6, v{step[i]}
        v_mad_i64_i32 {v(base[i],2)}, vcc, v{u}, 1, {v(base[i],2)}
        v_add_u32 v{vz[i]}, v{row}, v{c}
        """)
    if stagger:
        a(f"""
        s_mul_i32 s{sT}, s{S_TG}, 26
        s_lshr_b32 s{sT}, s{sT}, 8
        s_mul_i32 s{sT}, s{sT}, 10
        s_sub_u32 s{sC}, s{S_TG}, s{sT}
        """)
    else: a(f"s_mov_b32 s{sC}, 0")
    a(f"""
    s_lshl_b32 s{sT}, s{sL}, 11
    s_mul_i32 s{sT2}, s{sL}, 3072
    s_add_u32 s{sT2}, s{sT2}, {RW}
    s_mov_b32 s{sStage}, 0
    s_mov_b32 s{sN}, 0
    {name}_lloop:
    s_add_u32 m0, s{sStage}, s{sT}
    s_lshl_b32 s{sXo}, s{sC}, 7
    buffer_load_dwordx4 v{vx[0]}, {s(sX,4)}, s{sXo} offen lds
    buffer_load_dwordx4 v{vx[1]}, {s(sX,4)}, s{sXo} offen offset:1024 lds
    s_add_u32 m0, s{sStage}, s{sT2}
    s_mul_i32 s{sZo}, s{sC}, {64*3072}
    """)
    for k in range(3): a(f"v_mad_u64_u32 {v(ad[k],2)}, vcc, v{step[k]}, s{sC}, {v(base[k],2)}")
    a(f"s_add_u32 s{sZo}, s{sZo}, s{sJz}")
    for i in range(3): a(f"global_load_lds_dwordx4 {v(ad[i],2)}, off offset:{1024*i}")
    a(f"""
    s_add_u32 m0, m0, 12288
    s_add_u32 s{sZo2}, s{sZo}, 1536
    """)
    for i in range(3): a(f"buffer_load_dwordx4 v{vz[i]}, {s(sWI,4)}, s{sZo} offen offset:{1024*i} lds")
    a(f"""
    s_add_u32 m0, m0, 12288
    s_add_u32 s{sC}, s{sC}, 1
    """)
    for i in range(3): a(f"buffer_load_dwordx4 v{vz[i]}, {s(sWI,4)}, s{sZo2} offen offset:{1024*i} lds")
    a(f"""
    s_cmp_eq_u32 s{sC}, 10
    s_cselect_b32 s{sC}, 0, s{sC}
    s_add_u32 s{sStage}, s{sStage}, {STG}
    s_cmp_eq_u32 s{sStage}, {NST*STG}
    s_cselect_b32 s{sStage}, 0, s{sStage}
    s_add_u32 s{sN}, s{sN}, 1
    s_cmp_lt_u32 s{sN}, {NST}
    s_cbranch_scc1 {name}_lloop
    s_cmp_gt_u32 s{sN}, {NST}
    s_cbranch_scc1 {name}_lsteady
    s_waitcnt vmcnt({11*(NST-1)})
    s_barrier
    {name}_lsteady:
    s_waitcnt vmcnt({11*(NST-2)})
    s_barrier
    s_cmp_lt_u32 s{sN}, 10
    s_cbranch_scc1 {name}_lloop
    """)
    for m in range(12-NST, 10): a(f"s_waitcnt vmcnt({11*(9-m)})\n s_barrier")
    gx = V(10); gw = V(10)
    srd(a, sGW, P_GW, 1280)
    a(f"""
    s_lshl_b32 s{sT}, s{S_TG}, 3
    s_add_u32 s{sT}, s{sT}, s{S_J}
    s_lshl_b32 s{sT}, s{sT}, 2
    s_add_u32 s{sT}, s{sT}, s{sL}
    s_lshl_b32 s{sT}, s{sT}, 1
    v_lshrrev_b32 v{row}, 5, v0
    v_add_u32 v{row}, s{sT}, v{row}
    v_and_b32 v{c}, 31, v0
    v_lshlrev_b32 v{p}, 3, v{c}
    v_mul_u32_u24 v{u}, 0x500, v{row}
    v_add_u32 v{u}, v{u}, v{p}
    """)
    for i in range(5):
        a(f"buffer_load_dwordx2 {v(gx+2*i,2)}, v{u}, {s(sX,4)}, 0 offen offset:{256*i}")
        a(f"buffer_load_dwordx2 {v(gw+2*i,2)}, v{p}, {s(sGW,4)}, 0 offen offset:{256*i}")
    a(f"""
    s_barrier
    v_mov_b32 v{u2}, 0
    v_cmp_eq_u32 vcc, 31, v{c}
    v_lshlrev_b32 v{row}, 2, v{row}
    s_mov_b32 s{sO}, {hx(WS_GATE)}
    v_cndmask_b32 v{row}, -4.0, v{row}, vcc
    s_waitcnt vmcnt(0)
    """)
    for i in range(10): a(f"v_dot2_f32_bf16 v{u2}, v{gx+i}, v{gw+i}, v{u2}")
    a("s_nop 2")
    for sh in (1, 2, 4, 8): a(f"v_add_f32_dpp v{u2}, v{u2}, v{u2} row_shr:{sh} row_mask:0xf bank_mask:0xf bound_ctrl:0\n s_nop 1")
    a(f"""
    v_add_f32_dpp v{u2}, v{u2}, v{u2} row_bcast:15 row_mask:0xa bank_mask:0xf
    v_mul_f32 v{u2}, {fl(-LOG2E)}, v{u2}
    v_exp_f32 v{u2}, v{u2}
    s_nop 0
    v_add_f32 v{u2}, 1.0, v{u2}
    v_rcp_f32 v{u2}, v{u2}
    s_nop 0
    buffer_store_dword v{u2}, v{row}, {s(sWS,4)}, s{sO} offen
    s_lshl_b32 s{sT}, s{S_J}, 5
    s_add_u32 s{sT}, s{sT}, s{S_TG}
    s_lshl_b32 s{sT}, s{sT}, 2
    s_add_u32 s{sT}, s{sT}, s{sL}
    s_lshl_b32 s{sT}, s{sT}, 2
    v_cmp_eq_u32 vcc, 0, v0
    s_add_u32 s{sT}, s{sT}, {hx(WS_FLAG)}
    v_mov_b32 v{u}, 0
    v_cndmask_b32 v{row}, -4.0, v0, vcc
    buffer_store_dword v{u}, v{row}, {s(sWS,4)}, s{sT} offen sc1
    """)
    footer(a, name)
    return a, max(nv_c, V.hi), NST*STG, 512
```

```python
from common import *
KVS = 12288; NKV = 3
AREA = 19456; A0 = NKV*KVS
def attn_period(a, i, S, O, Q16, Q8, K16, K8, V0, V1, hooks):
    b = i & 1; c = S[b]; n = S[b^1]
    kt_next = ((i+1) >> 1) & 3
    seq = "e e C e e P c e e c Q e e c e q e c e e p c e e c e e c".split()
    ne = 0; nc = 0
    for k, op in enumerate(seq):
        for l in hooks.get("pre"+op, []): a(l)
        if op == "e": a(f"v_exp_f32 v{c+ne}, v{c+ne}"); ne += 1
        elif op == "c": a(f"v_cvt_pk_bf16_f32 v{c+nc}, v{c+2*nc}, v{c+2*nc+1}"); nc += 1
        elif op == "C": a(f"v_cvt_pk_bf16_f32 v{n+7}, v{n+14}, v{n+15}")
        elif op == "P": a(f"v_mfma_f32_32x32x16_bf16 {v(O[b^1],16)}, {v(V1,4)}, {v(n+4,4)}, {v(O[b^1],16)}")
        elif op == "Q": a(f"v_mfma_f32_32x32x16_bf16 {v(n,16)}, {v(K16,4)}, {v(Q16[b^1],4)}, 0")
        elif op == "q": a(f"v_mfma_f32_32x32x8bf16_1k {v(n,16)}, {v(K8+2*(kt_next&1),2)}, {v(Q8+2*(b^1),2)}, {v(n,16)}")
        elif op == "p": a(f"v_mfma_f32_32x32x16_bf16 {v(O[b],16)}, {v(V0,4)}, {v(c,4)}, {v(O[b],16)}")
        if op in "PQqp":
            for l in hooks.get(op, []): a(l)

def k2(name, JB=2, cfg={}):
    a = Asm(); header(a, name, JB)
    S_ = Regs(36, 100)
    sWS = S_(4); sT = S_(); sT2 = S_(); sO = S_(); sN = S_(); sSlot = S_(); sE = S_(2)
    a("s_waitcnt lgkmcnt(0)")
    srd(a, sWS, P_WS, WS_END)
    a(f"""
    s_cmp_ge_u32 s{S_W}, 4
    s_cbranch_scc1 {name}_A
    """)
    V = Regs(1, 256)
    S = [V(16), V(16)]; O = [V(16), V(16)]; Q16 = [V(4), V(4)]; Q8 = V(4); K16 = V(4); K8 = V(4); V0 = V(4); V1 = V(4)
    bK = V(); bK8 = V(); bV = V(); aK = V(); aK8 = V(); aV = V(); vh = V(); vt = V(); t = V(8); so = [V() for i in range(3)]; mx = V(2)
    sHd = S_(); sQ = S_()
    a(f"""
    s_lshl_b32 s{sHd}, s{S_J}, 2
    s_add_u32 s{sHd}, s{sHd}, s{S_W}
    s_lshl_b32 s{sT}, s{S_TG}, 5
    s_add_u32 s{sT}, s{sT}, s{sHd}
    s_mul_i32 s{sQ}, s{sT}, {QF_HEAD}
    v_lshlrev_b32 v{bK}, 4, v0
    v_cmp_gt_u32 vcc, 32, v0
    buffer_load_dwordx4 {v(Q16[0],4)}, v{bK}, {s(sWS,4)}, s{sQ} offen
    buffer_load_dwordx4 {v(Q16[1],4)}, v{bK}, {s(sWS,4)}, s{sQ} offen offset:1024
    v_cndmask_b32 v{t}, -4.0, v{bK}, vcc
    buffer_load_dwordx4 {v(Q8,4)}, v{t}, {s(sWS,4)}, s{sQ} offen offset:2048
    v_lshrrev_b32 v{vh}, 5, v0
    v_and_b32 v{vt}, 31, v0
    v_lshlrev_b32 v{bK8}, 4, v{vt}
    v_min_u32 v{bV}, 23, v{vt}
    v_lshlrev_b32 v{bV}, 4, v{bV}
    v_mul_u32_u24 v{t}, 0x180, v{vh}
    v_add_u32 v{bV}, v{bV}, v{t}
    v_mov_b32 v{aK}, v{bK}
    v_mov_b32 v{aK8}, v{bK8}
    v_mov_b32 v{aV}, v{bV}
    """)
    for r in [O[0]+i for i in range(0, 32, 2)] + [S[1]+i for i in range(0, 16, 2)] + [V1, V1+2]: a(f"v_mov_b64 {v(r,2)}, 0")
    a(f"""
    s_mul_i32 s{sT}, s{sHd}, 5
    v_lshrrev_b32 v{t+2}, 4, v{vt}
    v_mul_u32_u24 v{t+2}, {44*1024}, v{t+2}
    v_and_b32 v{t+3}, 15, v{vt}
    v_lshl_add_u32 v{t+2}, v{t+3}, 4, v{t+2}
    """)
    for k in range(3):
        if k < 2: a(f"v_add_u32 v{t}, s{sT}, v{vh}\n s_add_u32 s{sT}, s{sT}, 2")
        else: a(f"v_mov_b32 v{t}, s{sT}\n v_mul_u32_u24 v{t+3}, {88*1024}, v{vh}\n v_add_u32 v{t+2}, v{t+2}, v{t+3}")
        a(f"""
        v_lshrrev_b32 v{t+1}, 3, v{t}
        v_lshl_add_u32 v{so[k]}, v{t+1}, 10, v{t+2}
        v_and_b32 v{t+1}, 3, v{t}
        v_lshl_add_u32 v{so[k]}, v{t+1}, 8, v{so[k]}
        v_bfe_u32 v{t+1}, v{t}, 2, 1
        v_lshl_add_u32 v{so[k]}, v{t+1}, 3, v{so[k]}
        """)
    rK = lambda tt: f"ds_read_b128 {v(K16,4)}, v{aK} offset:{tt*1024}"
    rK8 = lambda pp: f"ds_read_b128 {v(K8,4)}, v{aK8} offset:{4096+pp*512}"
    rV = lambda tt, f: f"ds_read_b128 {v(V1 if f else V0,4)}, v{aV} offset:{5120+(2*tt+f)*768}"
    a(f"""
    s_mov_b32 s{sSlot}, 0
    s_mov_b32 s{sN}, 16
    s_barrier
    {rK(0)}
    {rK8(0)}
    {rV(0,0)}
    s_waitcnt vmcnt(0) lgkmcnt(0)
    v_mfma_f32_32x32x16_bf16 {v(S[0],16)}, {v(K16,4)}, {v(Q16[0],4)}, 0
    v_mfma_f32_32x32x8bf16_1k {v(S[0],16)}, {v(K8,2)}, {v(Q8,2)}, {v(S[0],16)}
    s_nop 11
    .p2align 6
    {name}_bloop:
    """)
    for i in range(8):
        tt = i >> 1; h = {}
        if i & 1 == 0:
            h["P"] = [rV(tt, 1)]
            h["Q"] = [rK((tt+1) & 3)]
            if tt & 1: h["q"] = [rK8(((tt+1) >> 1) & 1)]
            h["prep"] = [f"s_waitcnt lgkmcnt({3 if tt & 1 else 2})"]
            if i == 4: h["q"] = [f"s_add_u32 s{sSlot}, s{sSlot}, {KVS}"]; h["p"] = [f"s_cmp_eq_u32 s{sSlot}, {NKV*KVS}"]
            if i == 6: h["preQ"] = ["s_barrier"]; h["p"] = [f"v_add_u32 v{aV}, s{sSlot}, v{bV}"]
        else:
            h["preP"] = ["s_waitcnt lgkmcnt(0)"]
            h["p"] = [rV((tt+1) & 3, 0)]
            if i == 5:
                h["P"] = [f"s_cselect_b32 s{sSlot}, 0, s{sSlot}"]
                h["Q"] = [f"v_add_u32 v{aK}, s{sSlot}, v{bK}"]; h["q"] = [f"v_add_u32 v{aK8}, s{sSlot}, v{bK8}"]
            if i == 7: h["P"] = [f"s_sub_u32 s{sN}, s{sN}, 1"]; h["Q"] = [f"s_cmp_lg_u32 s{sN}, 0"]
        attn_period(a, i, S, O, Q16, Q8, K16, K8, V0, V1, h)
    a(f"""
    s_cbranch_scc1 {name}_bloop
    v_cvt_pk_bf16_f32 v{S[1]+7}, v{S[1]+14}, v{S[1]+15}
    s_mul_i32 s{sO}, s{S_TG}, {4*44*1024}
    s_add_u32 s{sO}, s{sO}, {hx(WS_ACT)}
    v_mfma_f32_32x32x16_bf16 {v(O[1],16)}, {v(V1,4)}, {v(S[1]+4,4)}, {v(O[1],16)}
    s_add_u32 s{sT2}, s{sO}, {88*1024}
    s_mov_b32 s{sN}, 0
    s_waitcnt lgkmcnt(0)
    s_nop 8
    {name}_bfin:
    """)
    for i in range(4): a(f"v_permlane32_swap_b32 v{O[0]+8+i}, v{O[1]+8+i}")
    L = O[1]+8
    a(f"""
    v_rcp_f32 v{t}, v{L}
    v_cmp_ngt_f32 vcc, 0x5f800000, v{L}
    s_mov_b32 s{sT}, 0x1f800000
    v_cmp_nlt_f32 {s(sE,2)}, s{sT}, v{L}
    v_mov_b32 v{t+2}, v{t}
    v_mov_b32 v{t+4}, v{t}
    s_or_b64 {s(sE,2)}, {s(sE,2)}, vcc
    v_pk_mul_f32 {v(O[0]+8,2)}, {v(O[0]+8,2)}, {v(t,2)} op_sel_hi:[1,0]
    v_permlane32_swap_b32 v{t+2}, v{t+4}
    v_pk_mul_f32 {v(O[0]+10,2)}, {v(O[0]+10,2)}, {v(t,2)} op_sel_hi:[1,0]
    """)
    for th in range(2):
        for i in range(0, 8, 2): a(f"v_pk_mul_f32 {v(O[th]+i,2)}, {v(O[th]+i,2)}, {v(t+2+2*th,2)} op_sel_hi:[1,0]")
    a(f"v_pk_mul_f32 {v(t+6,2)}, {v(O[0]+8,2)}, 0 op_sel_hi:[1,0]")
    for r in [O[0]+10] + [O[th]+i for th in range(2) for i in range(0, 8, 2)]: a(f"v_pk_fma_f32 {v(t+6,2)}, {v(r,2)}, 0, {v(t+6,2)} op_sel_hi:[1,0,1]")
    a(f"""
    v_cmp_u_f32 vcc, v{t+6}, v{t+7}
    s_or_b64 vcc, {s(sE,2)}, vcc
    s_cmp_lg_u32 s{sN}, 0
    s_cbranch_scc1 {name}_bstore
    s_cbranch_vccnz {name}_slow
    {name}_bstore:
    """)
    for r, ad, so_ in [(O[0], so[0], sO), (O[0]+4, so[1], sO), (O[1], so[0], sT2), (O[1]+4, so[1], sT2), (O[0]+8, so[2], sO)]:
        a(f"""
        v_cvt_pk_bf16_f32 v{r}, v{r}, v{r+1}
        v_cvt_pk_bf16_f32 v{r+1}, v{r+2}, v{r+3}
        buffer_store_dwordx2 {v(r,2)}, v{ad}, {s(sWS,4)}, s{so_} offen
        """)
    a("s_endpgm")
    sP = S_(); sKo = S_(); sK8o = S_(); sVo = S_()
    a(f"""
    {name}_slow:
    v_mov_b32 v{mx}, 0xff800000
    v_mov_b32 v{mx+1}, 0xff800000
    s_mov_b32 s{sP}, 0
    {name}_spass:
    s_mov_b32 s{sN}, 0
    """)
    for r in range(0, 32, 2): a(f"v_mov_b64 {v(O[0]+r,2)}, 0")
    a(f"""
    {name}_sloop:
    s_lshr_b32 s{sT}, s{sN}, 2
    s_mul_i32 s{sT}, s{sT}, {KVS}
    s_add_u32 s{sT}, s{sT}, {hx(WS_KV)}
    s_and_b32 s{sVo}, s{sN}, 3
    s_lshl_b32 s{sKo}, s{sVo}, 10
    s_add_u32 s{sKo}, s{sKo}, s{sT}
    s_mul_i32 s{sVo}, s{sVo}, 1536
    s_add_u32 s{sVo}, s{sVo}, s{sT}
    s_add_u32 s{sVo}, s{sVo}, 5120
    s_bfe_u32 s{sK8o}, s{sN}, 0x10001
    s_lshl_b32 s{sK8o}, s{sK8o}, 9
    s_add_u32 s{sT}, s{sT}, s{sK8o}
    s_and_b32 s{sK8o}, s{sN}, 1
    s_lshl_b32 s{sK8o}, s{sK8o}, 3
    s_add_u32 s{sK8o}, s{sK8o}, s{sT}
    s_add_u32 s{sK8o}, s{sK8o}, 4096
    buffer_load_dwordx4 {v(K16,4)}, v{bK}, {s(sWS,4)}, s{sKo} offen
    buffer_load_dwordx2 {v(K8,2)}, v{bK8}, {s(sWS,4)}, s{sK8o} offen
    buffer_load_dwordx4 {v(V0,4)}, v{bV}, {s(sWS,4)}, s{sVo} offen
    buffer_load_dwordx4 {v(V1,4)}, v{bV}, {s(sWS,4)}, s{sVo} offen offset:768
    s_waitcnt vmcnt(0)
    """)
    for th in range(2):
        a(f"v_mfma_f32_32x32x16_bf16 {v(S[th],16)}, {v(K16,4)}, {v(Q16[th],4)}, 0")
        a(f"v_mfma_f32_32x32x8bf16_1k {v(S[th],16)}, {v(K8,2)}, {v(Q8+2*th,2)}, {v(S[th],16)}")
    a(f"""
    s_cmp_lg_u32 s{sP}, 0
    s_nop 10
    s_cbranch_scc1 {name}_s2
    """)
    for th in range(2):
        for r in range(0, 16, 2): a(f"v_max3_f32 v{mx+th}, v{S[th]+r}, v{S[th]+r+1}, v{mx+th}")
    a(f"s_branch {name}_snext\n {name}_s2:")
    for th in range(2):
        for r in range(16): a(f"v_sub_f32 v{S[th]+r}, v{S[th]+r}, v{mx+th}")
        for r in range(16): a(f"v_exp_f32 v{S[th]+r}, v{S[th]+r}")
        for r in range(8): a(f"v_cvt_pk_bf16_f32 v{S[th]+r}, v{S[th]+2*r}, v{S[th]+2*r+1}")
        a(f"""
        s_nop 1
        v_mfma_f32_32x32x16_bf16 {v(O[th],16)}, {v(V0,4)}, {v(S[th],4)}, {v(O[th],16)}
        v_mfma_f32_32x32x16_bf16 {v(O[th],16)}, {v(V1,4)}, {v(S[th]+4,4)}, {v(O[th],16)}
        """)
    a(f"""
    {name}_snext:
    s_add_u32 s{sN}, s{sN}, 1
    s_cmp_lt_u32 s{sN}, 64
    s_cbranch_scc1 {name}_sloop
    s_cmp_lg_u32 s{sP}, 0
    s_nop 8
    s_cbranch_scc1 {name}_bfin
    s_mov_b32 s{sP}, 1
    v_mov_b64 {v(t,2)}, {v(mx,2)}
    s_nop 1
    v_permlane32_swap_b32 v{mx}, v{t}
    v_permlane32_swap_b32 v{mx+1}, v{t+1}
    v_max_f32 v{mx}, v{mx}, v{t}
    v_max_f32 v{mx+1}, v{mx+1}, v{t+1}
    s_branch {name}_spass
    """)
    nvB = V.hi
    V = Regs(1, 256)
    acc = V(96); Z = [[V(4) for n in range(3)] for k in range(4)]; W = [[V(4) for th in range(2)] for k in range(2)]
    z1 = V(12); vo = [V() for b in range(8)]; aW = [V() for i in range(4)]; vl = V(); vz = V(); vh = V(); vt = V(); bs = V(); t = V(8); vu = V()
    zr = Z[0][0]; st = Z[1][0]; tp = Z[2][0]
    sA = S_(); sTH = S_(); sQq = S_(); sSP = S_(4); sBS = S_(4); sKVo = S_(); sKVm = S_(); sKVb = S_(); sAr = S_(); sBlk = S_(); sWo = S_(); sZo = S_(); sZb = S_(); sZn = S_(); sC = S_(2)
    def kv_issue():
        a(f"""
        s_add_u32 m0, s{sKVm}, s{sKVb}
        s_add_u32 s{sT}, s{sKVo}, {hx(WS_KV)}
        buffer_load_dwordx4 v{vz}, {s(sWS,4)}, s{sT} offen lds
        buffer_load_dwordx4 v{vz}, {s(sWS,4)}, s{sT} offen offset:1024 lds
        buffer_load_dwordx4 v{vz}, {s(sWS,4)}, s{sT} offen offset:2048 lds
        s_add_u32 s{sKVo}, s{sKVo}, {KVS}
        s_cmp_eq_u32 s{sKVo}, {16*KVS}
        s_cselect_b32 s{sKVo}, 0, s{sKVo}
        s_add_u32 s{sKVm}, s{sKVm}, {KVS}
        s_cmp_eq_u32 s{sKVm}, {NKV*KVS}
        s_cselect_b32 s{sKVm}, 0, s{sKVm}
        """)
    def wsp_lines(slot):
        L = [f"s_add_u32 m0, s{sAr}, {slot*8192}\n s_add_u32 s{sWo}, s{sBlk}, s{sA}\n s_lshl_b32 s{sWo}, s{sWo}, 7"]
        for b in range(8):
            pre = f"s_add_u32 m0, s{sAr}, {slot*8192+4096}\n s_add_u32 s{sBlk}, s{sBlk}, 1\n s_and_b32 s{sBlk}, s{sBlk}, 7\n" if b == 4 else ""
            L.append(pre + f"buffer_load_dwordx4 v{vo[b]}, {s(sSP,4)}, s{sWo} offen offset:{(b&3)*1024} lds")
        return L
    a(f"""
    {name}_A:
    s_sub_u32 s{sA}, s{S_W}, 4
    s_mul_i32 s{sKVb}, s{sA}, 3072
    v_lshlrev_b32 v{vl}, 4, v0
    v_add_u32 v{vz}, s{sKVb}, v{vl}
    s_lshr_b32 s{sKVo}, s{S_TG}, 1
    s_mul_i32 s{sKVo}, s{sKVo}, {KVS}
    s_mov_b32 s{sKVm}, 0
    """)
    kv_issue()
    a(f"""
    s_lshr_b32 s{sTH}, s{sA}, 1
    s_and_b32 s{sQq}, s{sA}, 1
    v_lshrrev_b32 v{vh}, 5, v0
    v_and_b32 v{vt}, 31, v0
    s_lshl_b32 s{sT}, s{S_TG}, 1
    s_add_u32 s{sT2}, s{sT}, s{sTH}
    s_lshl_b32 s{sT}, s{sT2}, 11
    s_add_u32 s{sT}, s{sT}, {hx(WS_ST)}
    v_lshlrev_b32 v{t}, 6, v{vt}
    v_lshl_add_u32 v{t}, v{vh}, 5, v{t}
    buffer_load_dwordx4 {v(st,4)}, v{t}, {s(sWS,4)}, s{sT} offen
    buffer_load_dwordx4 {v(st+4,4)}, v{t}, {s(sWS,4)}, s{sT} offen offset:16
    s_lshl_b32 s{sT}, s{S_TG}, 3
    s_add_u32 s{sT}, s{sT}, s{S_J}
    s_lshl_b32 s{sT}, s{sT}, 2
    s_add_u32 s{sT}, s{sT}, s{sA}
    s_mul_i32 s{sO}, s{sT}, 3072
    s_add_u32 s{sT}, s{sO}, {hx(WS_Z2R)}
    """)
    for n in range(3): a(f"buffer_load_dwordx4 {v(zr+4*n,4)}, v{vl}, {s(sWS,4)}, s{sT} offen offset:{1024*n}")
    kv_issue()
    srd(a, sSP, P_WSP, 2048*4096); srd(a, sBS, P_BSP, 4096)
    a(f"""
    s_add_u32 s{sT}, s{sO}, {hx(WS_Z1)}
    s_lshl_b32 s{sT2}, s{sT2}, 6
    v_lshlrev_b32 v{t}, 1, v{vt}
    """)
    for n in range(3): a(f"buffer_load_dwordx4 {v(z1+4*n,4)}, v{vl}, {s(sWS,4)}, s{sT} offen offset:{1024*n}")
    a(f"""
    buffer_load_ushort v{bs}, v{t}, {s(sBS,4)}, s{sT2} offen
    s_mul_i32 s{sAr}, s{sA}, {AREA}
    s_add_u32 s{sAr}, s{sAr}, {A0}
    s_and_b32 s{sBlk}, s{S_TG}, 7
    s_mul_i32 s{sZb}, s{S_J}, {128*3072}
    s_add_u32 s{sZb}, s{sZb}, {hx(WS_Z2N)}
    s_lshl_b32 s{sA}, s{sA}, 3
    v_lshrrev_b32 v{t}, 3, v0
    s_lshl_b32 s{sT}, s{S_TG}, 6
    v_add_u32 v{t}, s{sT}, v{t}
    v_lshlrev_b32 v{t}, 12, v{t}
    v_lshrrev_b32 v{t+1}, 4, v0
    v_and_b32 v{t+2}, 7, v0
    v_xor_b32 v{t+1}, v{t+1}, v{t+2}
    v_lshl_add_u32 v{vo[0]}, v{t+1}, 4, v{t}
    v_xor_b32 v{t+1}, 64, v{vo[0]}
    """)
    for b in range(1, 8): a(f"v_add_u32 v{vo[b]}, {hx(b*32768-(b&3)*1024)}, v{t+1 if b & 1 else vo[0]}")
    a(f"s_mov_b32 s{sZn}, s{sBlk}")
    for slot in range(2):
        for l in wsp_lines(slot): a(l)
    a(f"""
    v_bfe_u32 v{t}, v0, 1, 3
    v_xor_b32 v{t}, v{t}, v{vh}
    v_lshlrev_b32 v{t}, 4, v{t}
    v_lshl_add_u32 v{t}, v{vt}, 7, v{t}
    s_lshl_b32 s{sT}, s{sTH}, 12
    s_add_u32 s{sT}, s{sT}, s{sAr}
    """)
    for i in range(4): a(f"v_xor_b32 v{aW[i]}, {hx(32*i)}, v{t}\n v_add_u32 v{aW[i]}, s{sT}, v{aW[i]}")
    a(f"""
    s_waitcnt vmcnt(28)
    s_barrier
    """)
    for i in range(0, 96, 2): a(f"v_mov_b64 {v(acc+i,2)}, 0")
    a(f"""
    s_mov_b32 s{sC}, {fl(1/768)}
    s_waitcnt vmcnt(26)
    v_pk_add_f32 {v(st,2)}, {v(st,2)}, {v(st+2,2)}
    v_pk_add_f32 {v(st+4,2)}, {v(st+4,2)}, {v(st+6,2)}
    v_lshlrev_b32 v{t}, 5, v{vt}
    v_pk_add_f32 {v(st,2)}, {v(st,2)}, {v(st+4,2)}
    v_lshl_add_u32 v{t}, v{vh}, 3, v{t}
    v_mov_b64 {v(st+2,2)}, {v(st,2)}
    s_add_u32 s{sT}, s{sAr}, 16384
    v_add_u32 v{t}, s{sT}, v{t}
    v_permlane32_swap_b32 v{st}, v{st+2}
    v_permlane32_swap_b32 v{st+1}, v{st+3}
    v_pk_add_f32 {v(st,2)}, {v(st,2)}, {v(st+2,2)}
    v_pk_mul_f32 {v(st,2)}, {v(st,2)}, {s(sC,2)} op_sel_hi:[1,0]
    v_fma_f32 v{st+1}, -v{st}, v{st}, v{st+1}
    v_max_f32 v{st+1}, 0, v{st+1}
    v_add_f32 v{st+1}, {fl(1e-5)}, v{st+1}
    v_rsq_f32 v{st+2}, v{st+1}
    v_lshrrev_b32 v{t+1}, 4, v0
    v_mul_f32 v{st+4}, v{st}, v{st+2}
    v_bfe_u32 v{t+2}, v0, 2, 2
    v_lshl_add_u32 v{t+2}, v{t+1}, 3, v{t+2}
    v_and_b32 v{t+3}, 3, v0
    v_lshlrev_b32 v{t+3}, 3, v{t+3}
    v_lshl_add_u32 v{t+2}, v{t+2}, 5, v{t+3}
    v_add_u32 v{t+2}, s{sT}, v{t+2}
    s_waitcnt vmcnt(23)
    """)
    for i in range(12):
        a(f"""
        v_lshlrev_b32 v{tp+2*(i&1)}, 16, v{zr+i}
        v_and_b32 v{tp+2*(i&1)+1}, 0xffff0000, v{zr+i}
        v_pk_fma_f32 {v(tp+2*(i&1),2)}, {v(tp+2*(i&1),2)}, {v(st+2,2)}, {v(st+4,2)} op_sel_hi:[1,0,0] neg_lo:[0,0,1] neg_hi:[0,0,1]
        v_cvt_pk_bf16_f32 v{zr+i}, v{tp+2*(i&1)}, v{tp+2*(i&1)+1}
        """)
        if i & 1: a(f"ds_write_b64 v{t}, {v(zr+i-1,2)} offset:{(i>>2)*1024+((i>>1)&1)*16}")
    a(f"""
    v_mul_u32_u24 v{t+4}, 3072, v{vh}
    v_and_b32 v{t+5}, 1, v{t+1}
    v_lshl_add_u32 v{t+4}, v{t+5}, 9, v{t+4}
    v_and_b32 v{t+5}, 7, v0
    v_lshl_add_u32 v{t+4}, v{t+5}, 4, v{t+4}
    v_bfe_u32 v{t+5}, v0, 3, 1
    v_lshl_add_u32 v{t+4}, v{t+5}, 8, v{t+4}
    s_lshl_b32 s{sT}, s{S_TG}, 1
    s_add_u32 s{sT}, s{sT}, s{sTH}
    s_mul_i32 s{sT}, s{sT}, 6144
    s_add_u32 s{sT}, s{sT}, s{sZb}
    s_lshl_b32 s{sT2}, s{sQq}, 7
    s_add_u32 s{sT}, s{sT}, s{sT2}
    s_waitcnt lgkmcnt(0)
    """)
    for n in range(3):
        for p in range(2): a(f"ds_read_b64_tr_b16 {v(zr+4*n+2*p,2)}, v{t+2} offset:{n*1024+p*128}")
    for n in range(3):
        a(f"s_waitcnt lgkmcnt({4-2*n})\n buffer_store_dwordx4 {v(zr+4*n,4)}, v{t+4}, {s(sWS,4)}, s{sT} offen offset:{1024*n} sc1")
    a(f"""
    v_xor_b32 v{vl}, s{sT2}, v{vl}
    s_lshl_b32 s{sT}, s{S_J}, 5
    s_add_u32 s{sT2}, s{sT}, s{S_TG}
    s_lshl_b32 s{sT2}, s{sT2}, 4
    s_lshr_b32 s{sO}, s{sA}, 1
    s_add_u32 s{sT2}, s{sT2}, s{sO}
    s_add_u32 s{sT2}, s{sT2}, {hx(WS_FLAG)}
    v_cmp_eq_u32 vcc, 0, v0
    s_add_u32 s{sT}, s{sT}, s{sA}
    s_lshl_b32 s{sT}, s{sT}, 4
    s_add_u32 s{sO}, s{sT}, {hx(WS_FLAG)}
    v_cndmask_b32 v{t}, -4.0, v0, vcc
    v_mov_b32 v{t+1}, 1
    v_lshlrev_b32 v{t+2}, 2, v{vt}
    s_waitcnt vmcnt(0)
    buffer_store_dword v{t+1}, v{t}, {s(sWS,4)}, s{sT2} offen sc1
    s_barrier
    """)
    kv_issue()
    a("s_waitcnt vmcnt(0)\n s_barrier")
    kv_issue()
    a(f"""
    s_mov_b32 s{sN}, 0x40000
    {name}_poll:
    buffer_load_dword v{t+3}, v{t+2}, {s(sWS,4)}, s{sO} offen sc1
    s_sub_u32 s{sN}, s{sN}, 1
    s_waitcnt vmcnt(0)
    v_cmp_ne_u32 vcc, 1, v{t+3}
    s_cbranch_scc1 {name}_pdone
    s_cbranch_vccnz {name}_poll
    {name}_pdone:
    """)
    def znext():
        return f"""s_add_u32 s{sZo}, s{sZn}, s{sA}
        s_mul_i32 s{sZo}, s{sZo}, 12288
        s_add_u32 s{sZo}, s{sZo}, s{sZb}
        s_add_u32 s{sZn}, s{sZn}, 1
        s_and_b32 s{sZn}, s{sZn}, 7"""
    zld = lambda k, n: f"buffer_load_dwordx4 {v(Z[k][n],4)}, v{vl}, {s(sWS,4)}, s{sZo} offen offset:{1024*n} sc1"
    a(znext())
    for k in range(4):
        for n in range(3): a(zld(k, n))
        a(f"s_add_u32 s{sZo}, s{sZo}, 3072")
    vW2 = [t+4+i for i in range(4)]
    a(f"s_lshl_b32 s{sT}, s{sTH}, 13\n s_sub_u32 s{sT}, 4096, s{sT}")
    for i in range(4): a(f"v_add_u32 v{vW2[i]}, s{sT}, v{aW[i]}")
    rW = lambda slot, k: [f"ds_read_b128 {v(W[k&1][0],4)}, v{aW[k]} offset:{slot*8192}", f"ds_read_b128 {v(W[k&1][1],4)}, v{vW2[k]} offset:{slot*8192}"]
    for l in rW(0, 0): a(l)
    a(f"""
    s_mov_b32 s{sN}, 4
    s_waitcnt vmcnt(0)
    s_barrier
    """)
    kv_issue()
    items = []
    def T(x): items.append(("t", x, None))
    def M(x, tag): items.append(("m", x, tag))
    def WT(tag): items.append(("w", None, tag))
    cnt = 0
    for slot in range(2):
        for k in range(4):
            if k == 0: T(znext())
            dma = wsp_lines(slot) if k == 3 else []
            T("s_waitcnt lgkmcnt(0)")
            if k == 3: WT(f"wsp{slot^1}")
            nx = rW(slot, k+1) if k < 3 else rW(slot^1, 0)
            for n in range(3):
                WT(f"z{k}{n}")
                for th in range(2):
                    ac = acc + 48*th + 16*n
                    T(f"v_mfma_f32_32x32x16_bf16 {v(ac,16)}, {v(Z[k][n],4)}, {v(W[k&1][th],4)}, {v(ac,16)}")
                    if n == 0: T(nx[th])
                    if dma and (n, th) == (0, 1): T(dma[0])
                    if dma and n > 0:
                        for l in dma[1+2*(2*(n-1)+th):3+2*(2*(n-1)+th)]: M(l, f"wsp{slot}")
                    if th == 1: M(zld(k, n), f"z{k}{n}")
                    cnt += 1
                    if cnt % 16 == 0:
                        WT("kv"); T("s_barrier"); items.append(("kv", None, "kv"))
            T(f"s_add_u32 s{sZo}, s{sZo}, 3072")
    a(f"{name}_gloop:")
    a(f"s_cmp_eq_u32 s{sN}, 1\n s_cselect_b32 s{sSP+2}, 0, s{sSP+2}")
    NI = len(items)
    for i, (kind, x, tag) in enumerate(items):
        if kind in ("t", "m"): a(x)
        elif kind == "kv": kv_issue()
        else:
            n = 0; k = i - 1
            while not (items[k % NI][0] in ("m", "kv") and items[k % NI][2] == tag):
                n += {"m": 1, "kv": 3}.get(items[k % NI][0], 0); k -= 1
            a(f"s_waitcnt vmcnt({n})")
    a(f"""
    s_sub_u32 s{sN}, s{sN}, 1
    s_cmp_lg_u32 s{sN}, 0
    s_cbranch_scc1 {name}_gloop
    v_lshlrev_b32 v{t}, 4, v0
    v_add_u32 v{t+1}, s{sAr}, v{t}
    s_lshr_b32 s{sA}, s{sA}, 3
    s_waitcnt vmcnt(0) lgkmcnt(0)
    """)
    def quads(d, n): return [acc + 48*(d >> 1) + 16*n + 4*(d & 1), acc + 48*(d >> 1) + 16*n + 4*(d & 1) + 8]
    for d in range(1, 4):
        for n in range(3):
            for e, r in enumerate(quads(d, n)): a(f"ds_write_b128 v{t+1}, {v(r,4)} offset:{((d-1)*6+2*n+e)*1024}")
        a(f"""
        s_xor_b32 s{sT}, s{sA}, {d}
        s_mul_i32 s{sT}, s{sT}, {AREA}
        s_add_u32 s{sT}, s{sT}, {A0}
        v_add_u32 v{t+1+d}, s{sT}, v{t}
        """)
    a(f"""
    v_lshlrev_b32 v{bs}, 16, v{bs}
    v_lshrrev_b32 v{t}, 4, v{vt}
    v_mul_u32_u24 v{vu}, {44*1024}, v{t}
    v_and_b32 v{t}, 15, v{vt}
    v_lshl_add_u32 v{vu}, v{t}, 4, v{vu}
    v_lshl_add_u32 v{vu}, v{vh}, 8, v{vu}
    s_lshl_b32 s{sT}, s{S_TG}, 1
    s_add_u32 s{sT}, s{sT}, s{sTH}
    s_mul_i32 s{sO}, s{sT}, {88*1024}
    s_mul_i32 s{sT}, s{S_J}, 3072
    s_add_u32 s{sO}, s{sO}, s{sT}
    s_lshl_b32 s{sT}, s{sQq}, 9
    s_add_u32 s{sO}, s{sO}, s{sT}
    s_add_u32 s{sO}, s{sO}, {hx(WS_ACT+20*1024)}
    s_waitcnt lgkmcnt(0)
    s_barrier
    """)
    for n in range(3):
        for d in range(1, 4):
            for e, r in enumerate(quads(d, n)): a(f"ds_read_b128 {v(r,4)}, v{t+1+d} offset:{((d-1)*6+2*n+e)*1024}")
        if n == 1: a("s_waitcnt lgkmcnt(6)")
    for n in range(3):
        if n > 0: a(f"s_waitcnt lgkmcnt({6 if n == 1 else 0})")
        for e in range(2):
            own = quads(0, n)[e]
            for h2 in (0, 2):
                r = own + h2; zi = z1 + 4*n + 2*e + h2//2
                a(f"""
                v_pk_add_f32 {v(r,2)}, {v(r,2)}, {v(quads(1,n)[e]+h2,2)}
                v_pk_add_f32 {v(quads(2,n)[e]+h2,2)}, {v(quads(2,n)[e]+h2,2)}, {v(quads(3,n)[e]+h2,2)}
                v_add_f32 v{r}, v{r}, v{bs}
                v_add_f32 v{r+1}, v{r+1}, v{bs}
                v_lshlrev_b32 v{t+6}, 16, v{zi}
                v_pk_add_f32 {v(r,2)}, {v(r,2)}, {v(quads(2,n)[e]+h2,2)}
                v_and_b32 v{t+7}, 0xffff0000, v{zi}
                v_pk_mul_f32 {v(r,2)}, {v(r,2)}, {v(t+6,2)}
                v_cvt_pk_bf16_f32 v{zi}, v{r}, v{r+1}
                """)
        a(f"buffer_store_dwordx4 {v(z1+4*n,4)}, v{vu}, {s(sWS,4)}, s{sO} offen offset:{1024*n}")
    footer(a, name)
    return a, max(nvB, V.hi), A0 + 4*AREA, 512
```

```python
from common import *
def k3(name, JB=2, cfg={}):
    a = Asm(); header(a, name, JB)
    NR = cfg.get("nr3", 4); STG = 40960
    S_ = Regs(36, 100); V = Regs(1, 256)
    sWS = S_(4); sW = S_(4); sOut = S_(4); sP = S_(); sTt = S_(); sT = S_(); sT2 = S_(); sWo = S_(); sAo = S_(); sM = S_()
    act = V(96); acc = V(20); W = [V(20), V(20)]; vo = [V() for i in range(5)]; vl = V(); vr = V(); vr2 = V(); g = V(2); t = V(4); vs = V(); vx = V()
    a(f"""
    s_lshr_b32 s{sP}, s{S_W}, 2
    s_and_b32 s{sTt}, s{S_W}, 3
    v_lshlrev_b32 v{vl}, 4, v0
    """)
    for i in range(5):
        a(f"""
        v_add_u32 v{t}, {64*i}, v0
        v_mul_u32_u24 v{t+1}, 6554, v{t}
        v_lshrrev_b32 v{t+1}, 16, v{t+1}
        v_mul_u32_u24 v{t+1}, {1280-160}, v{t+1}
        v_lshl_add_u32 v{vo[i]}, v{t if i == 4 else 0}, 4, v{t+1}
        """)
    a(f"""
    s_mul_i32 s{sWo}, s{sTt}, {32*1280}
    s_mul_i32 s{sT}, s{S_J}, 160
    s_add_u32 s{sWo}, s{sWo}, s{sT}
    s_lshl_b32 s{sT}, s{S_TG}, 2
    s_add_u32 s{sT2}, s{sT}, s{sTt}
    s_mul_i32 s{sAo}, s{sT2}, {44*1024}
    s_mul_i32 s{sM}, s{sP}, 20480
    s_add_u32 s{sAo}, s{sAo}, s{sM}
    s_add_u32 s{sAo}, s{sAo}, {hx(WS_ACT)}
    s_mul_i32 s{sT}, s{sTt}, 5120
    s_cmp_eq_u32 s{sP}, 0
    s_waitcnt lgkmcnt(0)
    s_cselect_b32 s{sW}, s{P_WO}, s{P_WOUT}
    s_cselect_b32 s{sW+1}, s{P_WO+1}, s{P_WOUT+1}
    s_movk_i32 s{sW+2}, 768
    s_cselect_b32 s{sW+2}, 640, s{sW+2}
    s_mul_i32 s{sW+2}, s{sW+2}, 1280
    s_mov_b32 s{sW+3}, 0x20000
    """)
    srd(a, sWS, P_WS, WS_END)
    a(f"s_add_u32 s{sT}, s{sT}, s{sM}")
    def issue(st):
        a(f"s_add_u32 m0, s{sT}, {(st % NR)*STG}\n s_nop 0")
        for i in range(5):
            if i == 4: a(f"s_add_u32 m0, s{sT}, {(st % NR)*STG+4096}\n s_nop 0")
            a(f"buffer_load_dwordx4 v{vo[i]}, {s(sW,4)}, s{sWo} offen offset:{1024*(i&3)} lds")
        for k in range(4): a(f"buffer_load_dwordx4 {v(act+16*st+4*k,4)}, v{vl}, {s(sWS,4)}, s{sAo} offen offset:{1024*k}")
        a(f"s_add_u32 s{sWo}, s{sWo}, {128*1280}\n s_add_u32 s{sAo}, s{sAo}, 4096")
    for st in range(NR): issue(st)
    srd(a, sOut, P_OUT, 2048*1280)
    a(f"""
    v_and_b32 v{t}, 15, v0
    v_lshlrev_b32 v{t+1}, 2, v{t}
    s_lshl_b32 s{sT2}, s{sT2}, 6
    s_add_u32 s{sT2}, s{sT2}, {hx(WS_GATE)}
    buffer_load_dword v{g}, v{t+1}, {s(sWS,4)}, s{sT2} offen
    v_lshrrev_b32 v{t+1}, 2, v0
    v_mul_u32_u24 v{vr}, 160, v{t+1}
    v_and_b32 v{t+1}, 3, v0
    v_lshl_add_u32 v{vr}, v{t+1}, 3, v{vr}
    v_add_u32 v{vr}, s{sM}, v{vr}
    v_add_u32 v{vr2}, {2*STG}, v{vr}
    v_mul_u32_u24 v{vs}, 0x500, v{t}
    v_lshrrev_b32 v{t+1}, 4, v0
    v_lshl_add_u32 v{vs}, v{t+1}, 3, v{vs}
    s_mul_i32 s{sT2}, s{sTt}, 5120
    v_add_u32 v{vx}, s{sT2}, v{vl}
    """)
    for i in range(0, 20, 2): a(f"v_mov_b64 {v(acc+i,2)}, 0")
    def rd(st, k, c):
        sl = st % NR
        for p in range(2): a(f"ds_read_b64_tr_b16 {v(W[k&1]+4*c+2*p,2)}, v{vr2 if sl >= 2 else vr} offset:{(sl&1)*STG+k*5120+p*2560+c*32}")
    pend = [9]*NR; extra_at = NR-1
    issued = NR
    for st in range(6):
        n = 9*(issued-1-st) + (1 if st <= extra_at else 0)
        a(f"s_waitcnt vmcnt({n})")
        a("s_barrier")
        if st == 5: a(f"s_cmp_eq_u32 s{sP}, 0\n s_cbranch_scc1 {name}_epi")
        for c in range(5): rd(st, 0, c)
        if st >= 1 and issued < 6:
            if issued == 5: a(f"s_mul_i32 s{sW+2}, s{sW+2}, s{sP}\n s_mul_i32 s{sWS+2}, s{sWS+2}, s{sP}")
            issue(issued)
            issued += 1
        for k in range(4):
            for c in range(5):
                a(f"s_waitcnt lgkmcnt({8 if k < 3 else 8-2*c})")
                a(f"v_mfma_f32_16x16x32_bf16 {v(acc+4*c,4)}, {v(W[k&1]+4*c,4)}, {v(act+16*st+4*k,4)}, {v(acc+4*c,4)}")
                if k < 3: rd(st, k+1, c)
    XO = 2*STG
    a("s_nop 7")
    a(f"v_add_u32 v{vx}, {XO}, v{vx}")
    for c in range(5): a(f"ds_write_b128 v{vx}, {v(acc+4*c,4)} offset:{1024*c}")
    a(f"""
    s_waitcnt lgkmcnt(0)
    s_barrier
    s_endpgm
    {name}_epi:
    v_add_u32 v{vx}, {XO}, v{vx}
    s_lshl_b32 s{sT}, s{S_TG}, 2
    s_add_u32 s{sT}, s{sT}, s{sTt}
    s_mul_i32 s{sT}, s{sT}, {16*1280}
    s_mul_i32 s{sT2}, s{S_J}, 160
    s_add_u32 s{sT}, s{sT}, s{sT2}
    s_barrier
    """)
    b = W[0]
    for c in range(5): a(f"ds_read_b128 {v(b+4*c,4)}, v{vx} offset:{1024*c}")
    for c in range(5):
        r = acc+4*c; q = b+4*c
        a(f"""
        s_waitcnt lgkmcnt({4-c})
        v_pk_add_f32 {v(r,2)}, {v(r,2)}, {v(q,2)} neg_lo:[0,1] neg_hi:[0,1]
        v_pk_add_f32 {v(r+2,2)}, {v(r+2,2)}, {v(q+2,2)} neg_lo:[0,1] neg_hi:[0,1]
        v_pk_fma_f32 {v(r,2)}, {v(r,2)}, {v(g,2)}, {v(q,2)} op_sel_hi:[1,0,1]
        v_pk_fma_f32 {v(r+2,2)}, {v(r+2,2)}, {v(g,2)}, {v(q+2,2)} op_sel_hi:[1,0,1]
        v_cvt_pk_bf16_f32 v{r}, v{r}, v{r+1}
        v_cvt_pk_bf16_f32 v{r+1}, v{r+2}, v{r+3}
        buffer_store_dwordx2 {v(r,2)}, v{vs}, {s(sOut,4)}, s{sT} offen offset:{32*c}
        """)
    footer(a, name)
    return a, V.hi, NR*STG, 512
```

```python
import sys, os
sys.path.insert(0, os.path.dirname(__file__))
from common import *
NAME = "gated_mix__grouped_kv_mqa__mixer_gmlp__prompt"
def build(kernels):
    ref = open(f"cdna_kernels/{NAME}.s.ref").read().split("\n")
    head = [l for l in ref if l.startswith(";") and "@launch" not in l and "Override" not in l and "grid=ceil" not in l]
    out = head[:]
    for n, (a, nv, lds, blk) in kernels:
        out.append(f"; @launch kernel={n} grid=(256,1,1) block=({blk},1,1) lds={lds}")
    out.append('.amdgcn_target "amdgcn-amd-amdhsa--gfx950"\n.text')
    bad = 0
    for n, (a, nv, lds, blk) in kernels:
        bad += lint(a.lines, n)
        out.append(a.text())
        print(f"{n}: {sum(1 for l in a.lines if l.startswith('    '))} instrs, {nv} vgprs, lds {lds}", file=sys.stderr)
    out.append('.section .rodata,"a"')
    for n, (a, nv, lds, blk) in kernels: out.append(descriptor(n, nv))
    if bad: print(f"LINT: {bad} problems", file=sys.stderr)
    return "\n".join(out)
if __name__ == "__main__":
    import importlib
    cfg = dict(x.split("=") for x in sys.argv[2:])
    cfg = {k: int(x) for k, x in cfg.items()}
    from k1 import k1
    ks = [("k1_kernel", k1("k1_kernel", JB=cfg.get("jb1", 2), NST=cfg.get("nst", 3), stagger=cfg.get("stag", 1)))]
    upto = cfg.get("upto", 3)
    if upto >= 2:
        from k2 import k2
        ks.append(("k2_kernel", k2("k2_kernel", JB=cfg.get("jb2", 2), cfg=cfg)))
    if upto >= 3:
        from k3 import k3
        ks.append((NAME + "_kernel", k3(NAME + "_kernel", JB=cfg.get("jb3", 2), cfg=cfg)))
    open(sys.argv[1], "w").write(build(ks))
```

```python
from asmlib import *
import math, struct
def f2u(x): return struct.unpack("<I", struct.pack("<f", x))[0]
def hx(x): return f"0x{x & 0xffffffff:x}"
def fl(x): return hx(f2u(x))
QF_HEAD = 2560
WS_QF  = 0
WS_KV  = WS_QF + 32*32*QF_HEAD
WS_Z2R = WS_KV + 16*12288
WS_Z1  = WS_Z2R + 256*12288
WS_ST  = WS_Z1 + 256*12288
WS_Z2N = WS_ST + 2048*64
WS_ACT = WS_Z2N + 8*128*3072
WS_GATE= WS_ACT + 128*44*1024
WS_FLAG= WS_GATE + 8192
WS_END = WS_FLAG + 65536
WS_TS = WS_END
WS_ALL = WS_TS + 3*256*8*256
LOG2E = 1.4426950408889634
QSCALE = LOG2E / math.sqrt(20.0)
GK1 = 2.0 * LOG2E * math.sqrt(2.0 / math.pi)
GK2 = GK1 * 0.044715
P_X,P_WQ,P_WK,P_WV,P_WO,P_BX,P_WIN,P_WSP,P_BSP,P_WOUT,P_GW,P_OUT,P_DBG,P_WS = range(4,32,2)
S_TG, S_J, S_W = 32, 33, 34
def header(a, name, JB):
    a(f"""
.globl {name}
.p2align 8
.type {name},@function
{name}:
    s_cmp_ge_u32 s2, 0x100
    s_cbranch_scc1 {name}_exit
""")
    stamp_init(a)
    a(f"""
    s_load_dwordx16 s[4:19], s[0:1], 0
    s_load_dwordx8 s[20:27], s[0:1], 64
    s_load_dwordx4 s[28:31], s[0:1], 96
    v_lshrrev_b32 v1, 6, v0
    v_and_b32 v0, 63, v0
    s_lshr_b32 s3, s2, 3
    v_readfirstlane_b32 s{S_W}, v1
    s_and_b32 s{S_J}, s3, {(1<<JB)-1}
    s_lshr_b32 s{S_TG}, s3, {JB}
""")
    if JB < 3:
        a(f"""
    s_and_b32 s3, s2, {(8>>JB)-1}
    s_lshl_b32 s3, s3, {JB}
    s_or_b32 s{S_J}, s{S_J}, s3
""")
    if JB > 0:
        a(f"""
    s_bfe_u32 s3, s2, {hx((JB<<16)|(3-JB))}
    s_lshl_b32 s3, s3, {5-JB}
    s_or_b32 s{S_TG}, s{S_TG}, s3
""")
def srd(a, d, p, nbytes):
    a(f"""
    s_mov_b32 s{d}, s{p}
    s_mov_b32 s{d+1}, s{p+1}
    s_mov_b32 s{d+2}, {hx(nbytes)}
    s_mov_b32 s{d+3}, 0x20000
""")
def footer(a, name, kern=0):
    a(f"{name}_end:")
    stamp_flush(a, kern)
    pad_wait(a, kern, name)
    a(f"{name}_exit:\n s_endpgm")
def wend(a, name):
    a(f"s_branch {name}_end" if TS[0] else "s_endpgm")
def descriptor(name, nv):
    nv = 256 if TS[0] else (nv + 7) // 8 * 8
    return f""".p2align 6
.amdhsa_kernel {name}
  .amdhsa_next_free_vgpr {nv}
  .amdhsa_next_free_sgpr 102
  .amdhsa_accum_offset {nv}
  .amdhsa_group_segment_fixed_size 0
  .amdhsa_kernarg_size 112
  .amdhsa_user_sgpr_count 2
  .amdhsa_user_sgpr_kernarg_segment_ptr 1
  .amdhsa_system_sgpr_workgroup_id_x 1
.end_amdhsa_kernel
"""
def gelu16(a, x, t0, sK, sum2=None, sq2=None):
    P = range(0, 16, 2)
    for i in P: a(f"v_pk_mul_f32 {v(t0+i,2)}, {v(x+i,2)}, {v(x+i,2)}")
    for i in P: a(f"v_pk_fma_f32 {v(t0+i,2)}, {v(t0+i,2)}, {s(sK,2)}, {v(sK_v(a),2)}")
    for i in P: a(f"v_pk_mul_f32 {v(t0+i,2)}, {v(t0+i,2)}, {v(x+i,2)}")
    for i in range(16): a(f"v_exp_f32 {v(t0+i)}, {v(t0+i)}")
    for i in P: a(f"v_pk_add_f32 {v(t0+i,2)}, {v(t0+i,2)}, 1.0 op_sel_hi:[1,0]")
    for i in range(16): a(f"v_rcp_f32 {v(t0+i)}, {v(t0+i)}")
    for i in P: a(f"v_pk_mul_f32 {v(x+i,2)}, {v(x+i,2)}, {v(t0+i,2)}")
    if sum2 is not None:
        for i in P:
            a(f"v_pk_add_f32 {v(sum2,2)}, {v(sum2,2)}, {v(x+i,2)}")
            a(f"v_pk_fma_f32 {v(sq2,2)}, {v(x+i,2)}, {v(x+i,2)}, {v(sq2,2)}")
def sK_v(a): return a.vK1

TS = [0]
def stamp(a, k):
    if not TS[0]: return
    a(f"""s_waitcnt lgkmcnt(0)
    s_memrealtime s[96:97]
    s_memtime s[98:99]
    s_waitcnt lgkmcnt(0)
    v_writelane_b32 v255, s96, {k}
    v_writelane_b32 v255, s98, {32+k}""")
def stamp_m(a, sreg):
    if not TS[0]: return
    a(f"""s_waitcnt lgkmcnt(0)
    s_memrealtime s[96:97]
    s_memtime s[98:99]
    s_mov_b32 s95, m0
    s_mov_b32 m0, s{sreg}
    s_waitcnt lgkmcnt(0)
    v_writelane_b32 v255, s96, m0
    s_bitset1_b32 m0, 5
    v_writelane_b32 v255, s98, m0
    s_mov_b32 m0, s95""")
def stamp_init(a):
    if not TS[0]: return
    a("v_mov_b32 v255, 0")
    stamp(a, 0)
def stamp_flush(a, kern):
    if not TS[0]: return
    a("s_waitcnt vmcnt(0)")
    stamp(a, 31)
    a(f"""
    s_mov_b32 s88, s{P_WS}
    s_mov_b32 s89, s{P_WS+1}
    s_mov_b32 s90, {hx(WS_ALL)}
    s_mov_b32 s91, 0x20000
    s_lshl_b32 s92, s2, 3
    s_add_u32 s92, s92, s{S_W}
    s_lshl_b32 s92, s92, 8
    s_add_u32 s92, s92, {hx(WS_TS + kern*256*8*256)}
    v_mbcnt_lo_u32_b32 v2, -1, 0
    v_mbcnt_hi_u32_b32 v2, -1, v2
    v_lshlrev_b32 v2, 2, v2
    buffer_store_dword v255, v2, s[88:91], s92 offen
    """)
PAD = [None]
def pad_wait(a, kern, name):
    if not TS[0] or PAD[0] is None or PAD[0][0] != kern: return
    _, k, w, sl = PAD[0]
    a(f"""
    s_cmp_lg_u32 s2, 0
    s_cbranch_scc1 {name}_exit
    s_cmp_lg_u32 s{S_W}, {w}
    s_cbranch_scc1 {name}_exit
    s_waitcnt vmcnt(0)
    v_mov_b32 v2, 0
    s_mov_b32 s92, {hx(WS_TS + k*256*8*256 + w*256 + sl*4)}
    buffer_load_dword v3, v2, s[88:91], s92 offen sc1
    s_waitcnt vmcnt(0)
    v_readfirstlane_b32 s93, v3
    s_mov_b32 s94, 0x20000
    {name}_padl:
    s_memrealtime s[96:97]
    s_sub_u32 s94, s94, 1
    s_cbranch_scc1 {name}_exit
    s_waitcnt lgkmcnt(0)
    s_sub_u32 s96, s96, s93
    s_cmp_lt_u32 s96, 10000
    s_cbranch_scc1 {name}_padl
    """)
```

```python
from common import *
def k1(name, JB=2, NST=3, stagger=True):
    a = Asm(); header(a, name, JB)
    STG = 45056; RX = 0; RW = 8192
    S = Regs(36, 88); V = Regs(1, 168)
    sWS = S(4); sX = S(4); sC = S(); sStage = S(); sN = S(); sT = S(); sT2 = S(); sM = S(); sK = S(2); sO = S(); sE = S(2); sGW = S(4)
    a("s_waitcnt lgkmcnt(0)")
    srd(a, sWS, P_WS, WS_END)
    a(f"""
    s_cmp_ge_u32 s{S_W}, 4
    s_cbranch_scc1 {name}_loader
    """)
    acc = V(80); fw = [V(4) for n in range(5)]; fx = [V(4) for k in range(2)]
    vWb = V(); vXb = V(); vW = V(); vX = [V() for i in range(4)]; t = V(16); vh = V(); vtok = V(); va = V(); vb = V()
    sm = V(2); sq = V(2); a.vK1 = V(2)
    sG = S(); sTH = S()
    a(f"""
    s_lshr_b32 s{sG}, s{S_W}, 1
    s_and_b32 s{sTH}, s{S_W}, 1
    v_lshrrev_b32 v{vh}, 5, v0
    v_and_b32 v{vtok}, 31, v0
    v_bfe_u32 v{va}, v0, 2, 2
    v_lshl_add_u32 v{va}, v{vh}, 3, v{va}
    v_mul_u32_u24 v{vWb}, 192, v{va}
    v_bfe_u32 v{va}, v0, 4, 1
    v_lshl_add_u32 v{vWb}, v{va}, 5, v{vWb}
    v_and_b32 v{va}, 3, v0
    v_lshl_add_u32 v{vWb}, v{va}, 3, v{vWb}
    v_bfe_u32 v{va}, v0, 1, 3
    v_xor_b32 v{va}, v{va}, v{vh}
    v_lshlrev_b32 v{va}, 4, v{va}
    v_lshl_add_u32 v{vXb}, v{vtok}, 7, v{va}
    s_lshl_b32 s{sT}, s{sTH}, 12
    v_add_u32 v{vXb}, s{sT}, v{vXb}
    v_mov_b32 v{vW}, v{vWb}
    v_mov_b32 v{vX[0]}, v{vXb}
    v_xor_b32 v{vX[1]}, 32, v{vXb}
    v_xor_b32 v{vX[2]}, 64, v{vXb}
    v_xor_b32 v{vX[3]}, 0x60, v{vXb}
    s_mov_b32 s{sStage}, 0
    s_mov_b32 s{sN}, 10
    """)
    a(f"""
    s_lshl_b32 s{sT}, s{S_TG}, 2
    s_add_u32 s{sT}, s{sT}, s{S_W}
    s_mul_i32 s{sT}, s{sT}, {44*1024}
    s_mul_i32 s{sT2}, s{S_J}, 5632
    s_add_u32 s{sT}, s{sT}, s{sT2}
    s_add_u32 s{sT}, s{sT}, {hx(WS_ACT)}
    s_add_u32 s{sT2}, s{sT}, 4096
    v_lshlrev_b32 v{va}, 4, v0
    v_cmp_gt_u32 vcc, 32, v0
    v_mov_b64 {v(t,2)}, -1
    v_mov_b64 {v(t+2,2)}, -1
    v_cndmask_b32 v{vb}, -4.0, v{va}, vcc
    """)
    for i in range(6): a(f"buffer_store_dwordx4 {v(t,4)}, v{vb if i == 5 else va}, {s(sWS,4)}, s{sT2 if i >= 4 else sT} offen offset:{1024*(i&3)} sc1")
    for i in range(0, 80, 2): a(f"v_mov_b64 {v(acc+i,2)}, 0")
    stamp(a, 1)
    a("s_barrier")
    stamp(a, 2)
    a(f"""
    s_cmp_eq_u32 s{sG}, 1
    s_cbranch_scc1 {name}_c1
    """)
    for g in range(2):
        tiles = [(0, RW), (1, RW+64)] if g == 0 else [(0, RW+128)]
        tiles += [(2+n, RW+12288*(1+g)+64*n) for n in range(3)]
        NT = len(tiles)
        def rdW(n, st):
            for p in range(2): a(f"ds_read_b64_tr_b16 {v(fw[n]+2*p,2)}, v{vW} offset:{st*3072+p*768+tiles[n][1]}")
        def rdX(st): a(f"ds_read_b128 {v(fx[st&1],4)}, v{vX[st]}")
        def mf(n, st): a(f"v_mfma_f32_32x32x16_bf16 {v(acc+16*tiles[n][0],16)}, {v(fw[n],4)}, {v(fx[st&1],4)}, {v(acc+16*tiles[n][0],16)}")
        a(f"{name}_c{g}:")
        rdX(0)
        for n in range(NT): rdW(n, 0)
        a(f"{name}_cloop{g}:")
        for st in range(3):
            for n in range(NT):
                a(f"s_waitcnt lgkmcnt({2*NT-2 if n == 0 else 2*NT-1})")
                mf(n, st)
                if n == 0: rdX(st+1)
                rdW(n, st+1)
        a(f"s_waitcnt lgkmcnt({2*NT-2})"); mf(0, 3)
        a(f"""
        s_add_u32 s{sStage}, s{sStage}, {STG}
        s_cmp_eq_u32 s{sStage}, {NST*STG}
        s_cselect_b32 s{sStage}, 0, s{sStage}
        v_add_u32 v{vW}, s{sStage}, v{vWb}
        v_add_u32 v{vX[0]}, s{sStage}, v{vXb}
        s_waitcnt lgkmcnt({2*NT-4})
        """)
        mf(1, 3)
        a(f"""
        s_sub_u32 s{sN}, s{sN}, 1
        s_waitcnt lgkmcnt(0)
        s_barrier
        """)
        rdX(0); rdW(0, 0); rdW(1, 0)
        for n in range(2, NT):
            mf(n, 3); rdW(n, 0)
            if n == 2:
                for i in range(1, 4): a(f"v_xor_b32 v{vX[i]}, {hx(32*i)}, v{vX[0]}")
        a(f"""
        s_cmp_lg_u32 s{sN}, 0
        s_cbranch_scc1 {name}_cloop{g}
        """)
        if g == 0: a(f"s_branch {name}_epi")
    a(f"{name}_epi:")
    stamp(a, 3)
    a(f"""
    s_mov_b32 s{sK}, {fl(QSCALE)}
    s_mov_b32 s{sK+1}, {fl(QSCALE)}
    s_lshl_b32 s{sT}, s{S_TG}, 5
    s_lshl_b32 s{sT2}, s{S_J}, 2
    s_add_u32 s{sT}, s{sT}, s{sT2}
    s_mul_i32 s{sO}, s{sT}, {QF_HEAD}
    v_lshlrev_b32 v{vb}, 4, v{vtok}
    s_lshl_b32 s{sT}, s{sTH}, 10
    s_lshl_b32 s{sT2}, s{sTH}, 3
    v_add_u32 v{vX[0]}, s{sT}, v{vb}
    v_add_u32 v{vX[1]}, s{sT2}, v{vb}
    v_cmp_ne_u32 vcc, 0, v{vh}
    s_waitcnt lgkmcnt(0)
    s_cmp_eq_u32 s{sG}, 1
    s_cbranch_scc1 {name}_g1
    """)
    def qoff(Qd):
        hd, qd = divmod(Qd, 5)
        return (hd*QF_HEAD + (2048 if qd == 4 else (qd & 1)*512 + (qd >> 1)*8), qd == 4)
    def qstore(r, Qd0, tt):
        (c0, e0), (c1, e1) = qoff(Qd0), qoff(Qd0+1)
        a(f"""
        v_pk_mul_f32 {v(r,2)}, {v(r,2)}, {s(sK,2)}
        v_pk_mul_f32 {v(r+2,2)}, {v(r+2,2)}, {s(sK,2)}
        v_add_u32 v{tt}, {hx(c0)}, v{vX[1] if e0 else vX[0]}
        v_add_u32 v{tt+1}, {hx(c1)}, v{vX[1] if e1 else vX[0]}
        v_cvt_pk_bf16_f32 v{r}, v{r}, v{r+1}
        v_cvt_pk_bf16_f32 v{r+1}, v{r+2}, v{r+3}
        v_cndmask_b32 v{tt}, v{tt}, v{tt+1}, vcc
        buffer_store_dwordx2 {v(r,2)}, v{tt}, {s(sWS,4)}, s{sO} offen
        """)
    for i in range(8): qstore(acc+4*i, 2*i, t+2*i)
    a(f"""
    s_branch {name}_z
    {name}_g1:
    """)
    for i in range(2): qstore(acc+4*i, 16+2*i, t+2*i)
    kv = acc+8
    a(f"""
    v_cvt_pk_bf16_f32 v{kv}, v{kv}, v{kv+1}
    v_cvt_pk_bf16_f32 v{kv+1}, v{kv+2}, v{kv+3}
    v_cvt_pk_bf16_f32 v{kv+2}, v{kv+4}, v{kv+5}
    v_cvt_pk_bf16_f32 v{kv+3}, v{kv+6}, v{kv+7}
    s_lshr_b32 s{sT}, s{S_TG}, 1
    s_mul_i32 s{sO}, s{sT}, 12288
    s_add_u32 s{sO}, s{sO}, {hx(WS_KV)}
    s_and_b32 s{sT}, s{S_TG}, 1
    s_lshl_b32 s{sM}, s{sT}, 1
    s_add_u32 s{sM}, s{sM}, s{sTH}
    s_cmp_ge_u32 s{S_J}, 4
    s_cbranch_scc1 {name}_z
    s_cmp_ge_u32 s{S_J}, 2
    s_cbranch_scc1 {name}_v
    s_cmp_eq_u32 s{S_J}, 1
    s_cbranch_scc1 {name}_k8
    s_lshl_b32 s{sM}, s{sM}, 10
    s_add_u32 s{sO}, s{sO}, s{sM}
    v_lshlrev_b32 v{va}, 4, v0
    buffer_store_dwordx4 {v(kv,4)}, v{va}, {s(sWS,4)}, s{sO} offen
    s_branch {name}_z
    {name}_k8:
    s_lshl_b32 s{sT}, s{sT}, 9
    s_add_u32 s{sO}, s{sO}, s{sT}
    s_add_u32 s{sO}, s{sO}, 4096
    v_mov_b32 v{va}, -4.0
    v_cndmask_b32 v{va}, v{va}, v{vX[1]}, vcc
    buffer_store_dwordx2 {v(kv+2,2)}, v{va}, {s(sWS,4)}, s{sO} offen
    s_branch {name}_z
    {name}_v:
    s_lshl_b32 s{sT}, s{sTH}, 10
    s_add_u32 s{sT}, s{sT}, {(8 % NST)*STG}
    v_lshlrev_b32 v{va}, 5, v{vtok}
    v_lshl_add_u32 v{va}, v{vh}, 3, v{va}
    v_add_u32 v{va}, s{sT}, v{va}
    ds_write_b64 v{va}, {v(kv,2)}
    ds_write_b64 v{va}, {v(kv+2,2)} offset:16
    v_bfe_u32 v{t}, v0, 4, 1
    v_bfe_u32 v{t+1}, v0, 2, 2
    v_lshl_add_u32 v{t+1}, v{t}, 2, v{t+1}
    v_lshl_add_u32 v{t+1}, v{vh}, 4, v{t+1}
    v_and_b32 v{t+2}, 3, v0
    v_lshlrev_b32 v{t+2}, 3, v{t+2}
    v_lshl_add_u32 v{t+1}, v{t+1}, 5, v{t+2}
    v_add_u32 v{t+1}, s{sT}, v{t+1}
    s_waitcnt lgkmcnt(0)
    ds_read_b64_tr_b16 {v(kv,2)}, v{t+1}
    ds_read_b64_tr_b16 {v(kv+2,2)}, v{t+1} offset:256
    s_mul_i32 s{sM}, s{sM}, 1536
    s_add_u32 s{sO}, s{sO}, s{sM}
    s_add_u32 s{sO}, s{sO}, 5120
    v_mul_u32_u24 v{t}, 0x180, v{t}
    v_mul_u32_u24 v{t+1}, 0x300, v{vh}
    v_and_b32 v{t+2}, 15, v0
    v_add_u32 v{t}, v{t}, v{t+1}
    v_lshl_add_u32 v{va}, v{t+2}, 4, v{t}
    s_cmp_eq_u32 s{S_J}, 2
    s_waitcnt lgkmcnt(0)
    s_cbranch_scc1 {name}_v2
    v_cmp_eq_u32 {s(sE,2)}, 0, v{t+2}
    v_mov_b32 v{t+3}, 0x3f803f80
    v_cmp_gt_u32 vcc, 4, v{t+2}
    v_cndmask_b32 v{t+3}, 0, v{t+3}, {s(sE,2)}
    v_add_u32 v{t+4}, 0x140, v{va}
    v_add_u32 v{va}, 64, v{va}
    v_cmp_gt_u32 {s(sE,2)}, 12, v{t+2}
    v_cndmask_b32 v{kv}, v{kv}, v{t+3}, vcc
    v_cndmask_b32 v{kv+1}, v{kv+1}, v{t+3}, vcc
    v_cndmask_b32 v{va}, v{va}, -4.0, {s(sE,2)}
    v_cndmask_b32 v{kv+2}, v{kv+2}, v{t+3}, vcc
    v_cndmask_b32 v{kv+3}, v{kv+3}, v{t+3}, vcc
    v_cndmask_b32 v{va}, v{va}, v{t+4}, vcc
    {name}_v2:
    buffer_store_dwordx4 {v(kv,4)}, v{va}, {s(sWS,4)}, s{sO} offen
    {name}_z:
    s_lshl_b32 s{sT}, s{S_TG}, 3
    s_add_u32 s{sT}, s{sT}, s{S_J}
    s_lshl_b32 s{sT}, s{sT}, 1
    s_add_u32 s{sT}, s{sT}, s{sTH}
    s_mul_i32 s{sO}, s{sT}, 6144
    s_mul_i32 s{sT}, s{sG}, {hx(WS_Z1-WS_Z2R)}
    s_add_u32 s{sO}, s{sO}, {hx(WS_Z1)}
    s_sub_u32 s{sO}, s{sO}, s{sT}
    s_mov_b32 s{sN}, 3
    s_mov_b32 s{sK}, {fl(-GK2)}
    s_mov_b32 s{sK+1}, {fl(-GK2)}
    v_mov_b32 v{a.vK1}, {fl(-GK1)}
    v_mov_b32 v{a.vK1+1}, {fl(-GK1)}
    v_mov_b64 {v(sm,2)}, 0
    v_mov_b64 {v(sq,2)}, 0
    v_lshlrev_b32 v{va}, 4, v0
    """)
    stamp(a, 4)
    a(f"{name}_zloop:")
    z = acc+32
    gelu16(a, z, t, sK, sm, sq)
    for i in range(8): a(f"v_cvt_pk_bf16_f32 v{t+4*((i>>1)&1)+2*(i>>2)+(i&1)}, v{z+2*i}, v{z+2*i+1}")
    a(f"""
    buffer_store_dwordx4 {v(t,4)}, v{va}, {s(sWS,4)}, s{sO} offen
    buffer_store_dwordx4 {v(t+4,4)}, v{va}, {s(sWS,4)}, s{sO} offen offset:3072
    s_sub_u32 s{sN}, s{sN}, 1
    s_add_u32 s{sO}, s{sO}, 1024
    s_cmp_lg_u32 s{sN}, 0
    """)
    for i in range(0, 32, 2): a(f"v_mov_b64 {v(z+i,2)}, {v(z+16+i,2)}")
    a(f"""
    s_cbranch_scc1 {name}_zloop
    s_cmp_eq_u32 s{sG}, 0
    s_cbranch_scc1 {name}_end
    v_add_f32 v{sm}, v{sm}, v{sm+1}
    v_add_f32 v{sq}, v{sq}, v{sq+1}
    s_lshl_b32 s{sT}, s{S_TG}, 1
    s_add_u32 s{sT}, s{sT}, s{sTH}
    s_lshl_b32 s{sO}, s{sT}, 11
    v_permlane32_swap_b32 v{sm}, v{sq}
    s_lshl_b32 s{sT}, s{S_J}, 3
    s_add_u32 s{sO}, s{sO}, s{sT}
    s_add_u32 s{sO}, s{sO}, {hx(WS_ST)}
    v_lshlrev_b32 v{va}, 6, v{vtok}
    v_lshl_add_u32 v{va}, v{vh}, 2, v{va}
    v_add_f32 v{sm}, v{sm}, v{sq}
    buffer_store_dword v{sm}, v{va}, {s(sWS,4)}, s{sO} offen
    """)
    wend(a, name)
    nv_c = V.hi
    V = Regs(1, 128)
    vx = [V() for i in range(2)]; base = [V(2) for i in range(3)]; step = [V() for i in range(3)]; ad = [V(2) for i in range(3)]; vz = [V() for i in range(3)]
    p = V(); row = V(); c = V(); u = V(); u2 = V(); kq = V(2); kv2 = V(2)
    sL = S(); sXo = S(); sZo = S(); sZo2 = S(); sJz = S(); sWI = S(4)
    a(f"{name}_loader:")
    srd(a, sX, P_X, 2048*1280)
    srd(a, sWI, P_WIN, 640*3072)
    a(f"""
    s_sub_u32 s{sL}, s{S_W}, 4
    v_lshrrev_b32 v{row}, 3, v0
    s_lshl_b32 s{sM}, s{sL}, 4
    v_add_u32 v{row}, s{sM}, v{row}
    v_and_b32 v{c}, 7, v0
    v_bfe_u32 v{u}, v{row}, 1, 3
    v_xor_b32 v{u}, v{u}, v{c}
    v_xor_b32 v{u2}, 4, v{u}
    s_lshl_b32 s{sT}, s{S_TG}, 6
    v_add_u32 v{row}, s{sT}, v{row}
    v_mul_u32_u24 v{row}, 0x500, v{row}
    v_lshl_add_u32 v{vx[0]}, v{u}, 4, v{row}
    v_lshl_add_u32 v{vx[1]}, v{u2}, 4, v{row}
    v_add_u32 v{vx[1]}, {8*1280-1024}, v{vx[1]}
    s_mul_i32 s{sJz}, s{S_J}, 192
    s_mul_i32 s{sT}, s{S_J}, 160
    s_add_u32 s{P_WQ}, s{P_WQ}, s{sT}
    s_addc_u32 s{P_WQ+1}, s{P_WQ+1}, 0
    s_bitcmp1_b32 s{S_J}, 1
    s_cselect_b32 s{P_WK}, s{P_WV}, s{P_WK}
    s_cselect_b32 s{P_WK+1}, s{P_WV+1}, s{P_WK+1}
    s_and_b32 s{sT}, s{S_J}, 1
    s_lshl_b32 s{sT}, s{sT}, 3
    s_sub_u32 s{sT}, 160, s{sT}
    s_sub_u32 s{P_WK}, s{P_WK}, s{sT}
    s_subb_u32 s{P_WK+1}, s{P_WK+1}, 0
    v_mov_b64 {v(kq,2)}, {s(P_WQ,2)}
    v_mov_b64 {v(kv2,2)}, {s(P_WK,2)}
    v_mov_b32 v{u2}, 0x500
    """)
    for i in range(3):
        a(f"""
        v_add_u32 v{p}, {64*i}, v0
        v_mul_u32_u24 v{row}, 5462, v{p}
        v_lshrrev_b32 v{row}, 16, v{row}
        v_mul_u32_u24 v{c}, 12, v{row}
        v_sub_u32 v{c}, v{p}, v{c}
        v_cmp_gt_u32 vcc, 10, v{c}
        v_add_u32 v{row}, s{sM}, v{row}
        v_lshlrev_b32 v{c}, 4, v{c}
        v_cndmask_b32 v{step[i]}, 40, v{u2}, vcc
        v_cndmask_b32 v{base[i]}, v{kv2}, v{kq}, vcc
        v_cndmask_b32 v{base[i]+1}, v{kv2+1}, v{kq+1}, vcc
        v_subrev_u32 v{c}, {1024*i}, v{c}
        v_mad_i32_i24 v{u}, v{row}, v{step[i]}, v{c}
        v_mul_u32_u24 v{row}, 0xc00, v{row}
        v_lshlrev_b32 v{step[i]}, 6, v{step[i]}
        v_mad_i64_i32 {v(base[i],2)}, vcc, v{u}, 1, {v(base[i],2)}
        v_add_u32 v{vz[i]}, v{row}, v{c}
        """)
    if stagger:
        a(f"""
        s_mul_i32 s{sT}, s{S_TG}, 26
        s_lshr_b32 s{sT}, s{sT}, 8
        s_mul_i32 s{sT}, s{sT}, 10
        s_sub_u32 s{sC}, s{S_TG}, s{sT}
        """)
    else: a(f"s_mov_b32 s{sC}, 0")
    a(f"""
    s_lshl_b32 s{sT}, s{sL}, 11
    s_mul_i32 s{sT2}, s{sL}, 3072
    s_add_u32 s{sT2}, s{sT2}, {RW}
    s_mov_b32 s{sStage}, 0
    s_mov_b32 s{sN}, 0
    """)
    stamp(a, 1)
    a(f"""
    {name}_lloop:
    s_add_u32 m0, s{sStage}, s{sT}
    s_lshl_b32 s{sXo}, s{sC}, 7
    buffer_load_dwordx4 v{vx[0]}, {s(sX,4)}, s{sXo} offen lds
    buffer_load_dwordx4 v{vx[1]}, {s(sX,4)}, s{sXo} offen offset:1024 lds
    s_add_u32 m0, s{sStage}, s{sT2}
    s_mul_i32 s{sZo}, s{sC}, {64*3072}
    """)
    for k in range(3): a(f"v_mad_u64_u32 {v(ad[k],2)}, vcc, v{step[k]}, s{sC}, {v(base[k],2)}")
    a(f"s_add_u32 s{sZo}, s{sZo}, s{sJz}")
    for i in range(3): a(f"global_load_lds_dwordx4 {v(ad[i],2)}, off offset:{1024*i}")
    a(f"""
    s_add_u32 m0, m0, 12288
    s_add_u32 s{sZo2}, s{sZo}, 1536
    """)
    for i in range(3): a(f"buffer_load_dwordx4 v{vz[i]}, {s(sWI,4)}, s{sZo} offen offset:{1024*i} lds")
    a(f"""
    s_add_u32 m0, m0, 12288
    s_add_u32 s{sC}, s{sC}, 1
    """)
    for i in range(3): a(f"buffer_load_dwordx4 v{vz[i]}, {s(sWI,4)}, s{sZo2} offen offset:{1024*i} lds")
    a(f"""
    s_cmp_eq_u32 s{sC}, 10
    s_cselect_b32 s{sC}, 0, s{sC}
    s_add_u32 s{sStage}, s{sStage}, {STG}
    s_cmp_eq_u32 s{sStage}, {NST*STG}
    s_cselect_b32 s{sStage}, 0, s{sStage}
    s_add_u32 s{sN}, s{sN}, 1
    s_cmp_lt_u32 s{sN}, {NST}
    s_cbranch_scc1 {name}_lloop
    s_cmp_gt_u32 s{sN}, {NST}
    s_cbranch_scc1 {name}_lsteady
    s_waitcnt vmcnt({11*(NST-1)})
    s_barrier
    {name}_lsteady:
    s_waitcnt vmcnt({11*(NST-2)})
    s_barrier
    s_cmp_lt_u32 s{sN}, 10
    s_cbranch_scc1 {name}_lloop
    """)
    for m in range(12-NST, 10): a(f"s_waitcnt vmcnt({11*(9-m)})\n s_barrier")
    stamp(a, 3)
    gx = V(10); gw = V(10)
    srd(a, sGW, P_GW, 1280)
    a(f"""
    s_lshl_b32 s{sT}, s{S_TG}, 3
    s_add_u32 s{sT}, s{sT}, s{S_J}
    s_lshl_b32 s{sT}, s{sT}, 2
    s_add_u32 s{sT}, s{sT}, s{sL}
    s_lshl_b32 s{sT}, s{sT}, 1
    v_lshrrev_b32 v{row}, 5, v0
    v_add_u32 v{row}, s{sT}, v{row}
    v_and_b32 v{c}, 31, v0
    v_lshlrev_b32 v{p}, 3, v{c}
    v_mul_u32_u24 v{u}, 0x500, v{row}
    v_add_u32 v{u}, v{u}, v{p}
    """)
    for i in range(5):
        a(f"buffer_load_dwordx2 {v(gx+2*i,2)}, v{u}, {s(sX,4)}, 0 offen offset:{256*i}")
        a(f"buffer_load_dwordx2 {v(gw+2*i,2)}, v{p}, {s(sGW,4)}, 0 offen offset:{256*i}")
    a(f"""
    s_barrier
    v_mov_b32 v{u2}, 0
    v_cmp_eq_u32 vcc, 31, v{c}
    v_lshlrev_b32 v{row}, 2, v{row}
    s_mov_b32 s{sO}, {hx(WS_GATE)}
    v_cndmask_b32 v{row}, -4.0, v{row}, vcc
    s_waitcnt vmcnt(0)
    """)
    for i in range(10): a(f"v_dot2_f32_bf16 v{u2}, v{gx+i}, v{gw+i}, v{u2}")
    a("s_nop 2")
    for sh in (1, 2, 4, 8): a(f"v_add_f32_dpp v{u2}, v{u2}, v{u2} row_shr:{sh} row_mask:0xf bank_mask:0xf bound_ctrl:0\n s_nop 1")
    a(f"""
    v_add_f32_dpp v{u2}, v{u2}, v{u2} row_bcast:15 row_mask:0xa bank_mask:0xf
    v_mul_f32 v{u2}, {fl(-LOG2E)}, v{u2}
    v_exp_f32 v{u2}, v{u2}
    s_nop 0
    v_add_f32 v{u2}, 1.0, v{u2}
    v_rcp_f32 v{u2}, v{u2}
    s_nop 0
    buffer_store_dword v{u2}, v{row}, {s(sWS,4)}, s{sO} offen
    s_lshl_b32 s{sT}, s{S_J}, 5
    s_add_u32 s{sT}, s{sT}, s{S_TG}
    s_lshl_b32 s{sT}, s{sT}, 2
    s_add_u32 s{sT}, s{sT}, s{sL}
    s_lshl_b32 s{sT}, s{sT}, 2
    v_cmp_eq_u32 vcc, 0, v0
    s_add_u32 s{sT}, s{sT}, {hx(WS_FLAG)}
    v_mov_b32 v{u}, 0
    v_cndmask_b32 v{row}, -4.0, v0, vcc
    buffer_store_dword v{u}, v{row}, {s(sWS,4)}, s{sT} offen sc1
    """)
    footer(a, name, 0)
    return a, max(nv_c, V.hi), NST*STG, 512
```

```python
from common import *
KVS = 12288; NKV = 3
AREA = 19456; A0 = NKV*KVS
def attn_period(a, i, S, O, Q16, Q8, K16, K8, V0, V1, hooks):
    b = i & 1; c = S[b]; n = S[b^1]
    kt_next = ((i+1) >> 1) & 3
    seq = "e e C e e P c e e c Q e e c e q e c e e p c e e c e e c".split()
    ne = 0; nc = 0
    for k, op in enumerate(seq):
        for l in hooks.get("pre"+op, []): a(l)
        if op == "e": a(f"v_exp_f32 v{c+ne}, v{c+ne}"); ne += 1
        elif op == "c": a(f"v_cvt_pk_bf16_f32 v{c+nc}, v{c+2*nc}, v{c+2*nc+1}"); nc += 1
        elif op == "C": a(f"v_cvt_pk_bf16_f32 v{n+7}, v{n+14}, v{n+15}")
        elif op == "P": a(f"v_mfma_f32_32x32x16_bf16 {v(O[b^1],16)}, {v(V1,4)}, {v(n+4,4)}, {v(O[b^1],16)}")
        elif op == "Q": a(f"v_mfma_f32_32x32x16_bf16 {v(n,16)}, {v(K16,4)}, {v(Q16[b^1],4)}, 0")
        elif op == "q": a(f"v_mfma_f32_32x32x8bf16_1k {v(n,16)}, {v(K8+2*(kt_next&1),2)}, {v(Q8+2*(b^1),2)}, {v(n,16)}")
        elif op == "p": a(f"v_mfma_f32_32x32x16_bf16 {v(O[b],16)}, {v(V0,4)}, {v(c,4)}, {v(O[b],16)}")
        if op in "PQqp":
            for l in hooks.get(op, []): a(l)

def k2(name, JB=2, cfg={}):
    a = Asm(); header(a, name, JB)
    S_ = Regs(36, 88)
    sWS = S_(4); sT = S_(); sT2 = S_(); sO = S_(); sN = S_(); sSlot = S_(); sE = S_(2)
    a("s_waitcnt lgkmcnt(0)")
    srd(a, sWS, P_WS, WS_END)
    a(f"""
    s_cmp_ge_u32 s{S_W}, 4
    s_cbranch_scc1 {name}_A
    """)
    V = Regs(1, 256)
    S = [V(16), V(16)]; O = [V(16), V(16)]; Q16 = [V(4), V(4)]; Q8 = V(4); K16 = V(4); K8 = V(4); V0 = V(4); V1 = V(4)
    bK = V(); bK8 = V(); bV = V(); aK = V(); aK8 = V(); aV = V(); vh = V(); vt = V(); t = V(8); so = [V() for i in range(3)]; mx = V(2)
    sHd = S_(); sQ = S_()
    a(f"""
    s_lshl_b32 s{sHd}, s{S_J}, 2
    s_add_u32 s{sHd}, s{sHd}, s{S_W}
    s_lshl_b32 s{sT}, s{S_TG}, 5
    s_add_u32 s{sT}, s{sT}, s{sHd}
    s_mul_i32 s{sQ}, s{sT}, {QF_HEAD}
    v_lshlrev_b32 v{bK}, 4, v0
    v_cmp_gt_u32 vcc, 32, v0
    buffer_load_dwordx4 {v(Q16[0],4)}, v{bK}, {s(sWS,4)}, s{sQ} offen
    buffer_load_dwordx4 {v(Q16[1],4)}, v{bK}, {s(sWS,4)}, s{sQ} offen offset:1024
    v_cndmask_b32 v{t}, -4.0, v{bK}, vcc
    buffer_load_dwordx4 {v(Q8,4)}, v{t}, {s(sWS,4)}, s{sQ} offen offset:2048
    v_lshrrev_b32 v{vh}, 5, v0
    v_and_b32 v{vt}, 31, v0
    v_lshlrev_b32 v{bK8}, 4, v{vt}
    v_min_u32 v{bV}, 23, v{vt}
    v_lshlrev_b32 v{bV}, 4, v{bV}
    v_mul_u32_u24 v{t}, 0x180, v{vh}
    v_add_u32 v{bV}, v{bV}, v{t}
    v_mov_b32 v{aK}, v{bK}
    v_mov_b32 v{aK8}, v{bK8}
    v_mov_b32 v{aV}, v{bV}
    """)
    for r in [O[0]+i for i in range(0, 32, 2)] + [S[1]+i for i in range(0, 16, 2)] + [V1, V1+2]: a(f"v_mov_b64 {v(r,2)}, 0")
    a(f"""
    s_mul_i32 s{sT}, s{sHd}, 5
    v_lshrrev_b32 v{t+2}, 4, v{vt}
    v_mul_u32_u24 v{t+2}, {44*1024}, v{t+2}
    v_and_b32 v{t+3}, 15, v{vt}
    v_lshl_add_u32 v{t+2}, v{t+3}, 4, v{t+2}
    """)
    for k in range(3):
        if k < 2: a(f"v_add_u32 v{t}, s{sT}, v{vh}\n s_add_u32 s{sT}, s{sT}, 2")
        else: a(f"v_mov_b32 v{t}, s{sT}\n v_mul_u32_u24 v{t+3}, {88*1024}, v{vh}\n v_add_u32 v{t+2}, v{t+2}, v{t+3}")
        a(f"""
        v_lshrrev_b32 v{t+1}, 3, v{t}
        v_lshl_add_u32 v{so[k]}, v{t+1}, 10, v{t+2}
        v_and_b32 v{t+1}, 3, v{t}
        v_lshl_add_u32 v{so[k]}, v{t+1}, 8, v{so[k]}
        v_bfe_u32 v{t+1}, v{t}, 2, 1
        v_lshl_add_u32 v{so[k]}, v{t+1}, 3, v{so[k]}
        """)
    rK = lambda tt: f"ds_read_b128 {v(K16,4)}, v{aK} offset:{tt*1024}"
    rK8 = lambda pp: f"ds_read_b128 {v(K8,4)}, v{aK8} offset:{4096+pp*512}"
    rV = lambda tt, f: f"ds_read_b128 {v(V1 if f else V0,4)}, v{aV} offset:{5120+(2*tt+f)*768}"
    a(f"""
    s_mov_b32 s{sSlot}, 0
    s_mov_b32 s{sN}, 16
    """)
    stamp(a, 1); a("s_barrier"); stamp(a, 2)
    a(f"""
    {rK(0)}
    {rK8(0)}
    {rV(0,0)}
    s_waitcnt vmcnt(0) lgkmcnt(0)
    v_mfma_f32_32x32x16_bf16 {v(S[0],16)}, {v(K16,4)}, {v(Q16[0],4)}, 0
    v_mfma_f32_32x32x8bf16_1k {v(S[0],16)}, {v(K8,2)}, {v(Q8,2)}, {v(S[0],16)}
    s_nop 11
    """)
    stamp(a, 3)
    a(f"""
    .p2align 6
    {name}_bloop:
    """)
    for i in range(8):
        tt = i >> 1; h = {}
        if i & 1 == 0:
            h["P"] = [rV(tt, 1)]
            h["Q"] = [rK((tt+1) & 3)]
            if tt & 1: h["q"] = [rK8(((tt+1) >> 1) & 1)]
            h["prep"] = [f"s_waitcnt lgkmcnt({3 if tt & 1 else 2})"]
            if i == 4: h["q"] = [f"s_add_u32 s{sSlot}, s{sSlot}, {KVS}"]; h["p"] = [f"s_cmp_eq_u32 s{sSlot}, {NKV*KVS}"]
            if i == 6: h["preQ"] = ["s_barrier"]; h["p"] = [f"v_add_u32 v{aV}, s{sSlot}, v{bV}"]
        else:
            h["preP"] = ["s_waitcnt lgkmcnt(0)"]
            h["p"] = [rV((tt+1) & 3, 0)]
            if i == 5:
                h["P"] = [f"s_cselect_b32 s{sSlot}, 0, s{sSlot}"]
                h["Q"] = [f"v_add_u32 v{aK}, s{sSlot}, v{bK}"]; h["q"] = [f"v_add_u32 v{aK8}, s{sSlot}, v{bK8}"]
            if i == 7: h["P"] = [f"s_sub_u32 s{sN}, s{sN}, 1"]; h["Q"] = [f"s_cmp_lg_u32 s{sN}, 0"]
        if cfg.get("noatt", 0):
            for k_ in ("preP", "P", "preQ", "Q", "q", "p"):
                for l in h.get(k_, []):
                    if l.startswith("s_"): a(l)
            continue
        attn_period(a, i, S, O, Q16, Q8, K16, K8, V0, V1, h)
    if cfg.get("tsb", 0):
        a(f"s_sub_u32 s94, 28, s{sN}"); stamp_m(a, 94); a(f"s_cmp_lg_u32 s{sN}, 0")
    a(f"""
    s_cbranch_scc1 {name}_bloop
    v_cvt_pk_bf16_f32 v{S[1]+7}, v{S[1]+14}, v{S[1]+15}
    s_mul_i32 s{sO}, s{S_TG}, {4*44*1024}
    s_add_u32 s{sO}, s{sO}, {hx(WS_ACT)}
    v_mfma_f32_32x32x16_bf16 {v(O[1],16)}, {v(V1,4)}, {v(S[1]+4,4)}, {v(O[1],16)}
    s_add_u32 s{sT2}, s{sO}, {88*1024}
    s_mov_b32 s{sN}, 0
    s_waitcnt lgkmcnt(0)
    s_nop 8
    """)
    stamp(a, 4)
    a(f"{name}_bfin:")
    for i in range(4): a(f"v_permlane32_swap_b32 v{O[0]+8+i}, v{O[1]+8+i}")
    L = O[1]+8
    a(f"""
    v_rcp_f32 v{t}, v{L}
    v_cmp_ngt_f32 vcc, 0x5f800000, v{L}
    s_mov_b32 s{sT}, 0x1f800000
    v_cmp_nlt_f32 {s(sE,2)}, s{sT}, v{L}
    v_mov_b32 v{t+2}, v{t}
    v_mov_b32 v{t+4}, v{t}
    s_or_b64 {s(sE,2)}, {s(sE,2)}, vcc
    v_pk_mul_f32 {v(O[0]+8,2)}, {v(O[0]+8,2)}, {v(t,2)} op_sel_hi:[1,0]
    v_permlane32_swap_b32 v{t+2}, v{t+4}
    v_pk_mul_f32 {v(O[0]+10,2)}, {v(O[0]+10,2)}, {v(t,2)} op_sel_hi:[1,0]
    """)
    for th in range(2):
        for i in range(0, 8, 2): a(f"v_pk_mul_f32 {v(O[th]+i,2)}, {v(O[th]+i,2)}, {v(t+2+2*th,2)} op_sel_hi:[1,0]")
    a(f"v_pk_mul_f32 {v(t+6,2)}, {v(O[0]+8,2)}, 0 op_sel_hi:[1,0]")
    for r in [O[0]+10] + [O[th]+i for th in range(2) for i in range(0, 8, 2)]: a(f"v_pk_fma_f32 {v(t+6,2)}, {v(r,2)}, 0, {v(t+6,2)} op_sel_hi:[1,0,1]")
    a(f"""
    v_cmp_u_f32 vcc, v{t+6}, v{t+7}
    s_or_b64 vcc, {s(sE,2)}, vcc
    s_cmp_lg_u32 s{sN}, 0
    s_cbranch_scc1 {name}_bstore
    {"" if cfg.get("noatt", 0) else f"s_cbranch_vccnz {name}_slow"}
    {name}_bstore:
    """)
    for r, ad, so_ in [(O[0], so[0], sO), (O[0]+4, so[1], sO), (O[1], so[0], sT2), (O[1]+4, so[1], sT2), (O[0]+8, so[2], sO)]:
        a(f"""
        v_cvt_pk_bf16_f32 v{r}, v{r}, v{r+1}
        v_cvt_pk_bf16_f32 v{r+1}, v{r+2}, v{r+3}
        buffer_store_dwordx2 {v(r,2)}, v{ad}, {s(sWS,4)}, s{so_} offen
        """)
    wend(a, name)
    nsB = S_.n
    sP = S_(); sKo = S_(); sK8o = S_(); sVo = S_()
    a(f"""
    {name}_slow:
    v_mov_b32 v{mx}, 0xff800000
    v_mov_b32 v{mx+1}, 0xff800000
    s_mov_b32 s{sP}, 0
    {name}_spass:
    s_mov_b32 s{sN}, 0
    """)
    for r in range(0, 32, 2): a(f"v_mov_b64 {v(O[0]+r,2)}, 0")
    a(f"""
    {name}_sloop:
    s_lshr_b32 s{sT}, s{sN}, 2
    s_mul_i32 s{sT}, s{sT}, {KVS}
    s_add_u32 s{sT}, s{sT}, {hx(WS_KV)}
    s_and_b32 s{sVo}, s{sN}, 3
    s_lshl_b32 s{sKo}, s{sVo}, 10
    s_add_u32 s{sKo}, s{sKo}, s{sT}
    s_mul_i32 s{sVo}, s{sVo}, 1536
    s_add_u32 s{sVo}, s{sVo}, s{sT}
    s_add_u32 s{sVo}, s{sVo}, 5120
    s_bfe_u32 s{sK8o}, s{sN}, 0x10001
    s_lshl_b32 s{sK8o}, s{sK8o}, 9
    s_add_u32 s{sT}, s{sT}, s{sK8o}
    s_and_b32 s{sK8o}, s{sN}, 1
    s_lshl_b32 s{sK8o}, s{sK8o}, 3
    s_add_u32 s{sK8o}, s{sK8o}, s{sT}
    s_add_u32 s{sK8o}, s{sK8o}, 4096
    buffer_load_dwordx4 {v(K16,4)}, v{bK}, {s(sWS,4)}, s{sKo} offen
    buffer_load_dwordx2 {v(K8,2)}, v{bK8}, {s(sWS,4)}, s{sK8o} offen
    buffer_load_dwordx4 {v(V0,4)}, v{bV}, {s(sWS,4)}, s{sVo} offen
    buffer_load_dwordx4 {v(V1,4)}, v{bV}, {s(sWS,4)}, s{sVo} offen offset:768
    s_waitcnt vmcnt(0)
    """)
    for th in range(2):
        a(f"v_mfma_f32_32x32x16_bf16 {v(S[th],16)}, {v(K16,4)}, {v(Q16[th],4)}, 0")
        a(f"v_mfma_f32_32x32x8bf16_1k {v(S[th],16)}, {v(K8,2)}, {v(Q8+2*th,2)}, {v(S[th],16)}")
    a(f"""
    s_cmp_lg_u32 s{sP}, 0
    s_nop 10
    s_cbranch_scc1 {name}_s2
    """)
    for th in range(2):
        for r in range(0, 16, 2): a(f"v_max3_f32 v{mx+th}, v{S[th]+r}, v{S[th]+r+1}, v{mx+th}")
    a(f"s_branch {name}_snext\n {name}_s2:")
    for th in range(2):
        for r in range(16): a(f"v_sub_f32 v{S[th]+r}, v{S[th]+r}, v{mx+th}")
        for r in range(16): a(f"v_exp_f32 v{S[th]+r}, v{S[th]+r}")
        for r in range(8): a(f"v_cvt_pk_bf16_f32 v{S[th]+r}, v{S[th]+2*r}, v{S[th]+2*r+1}")
        a(f"""
        s_nop 1
        v_mfma_f32_32x32x16_bf16 {v(O[th],16)}, {v(V0,4)}, {v(S[th],4)}, {v(O[th],16)}
        v_mfma_f32_32x32x16_bf16 {v(O[th],16)}, {v(V1,4)}, {v(S[th]+4,4)}, {v(O[th],16)}
        """)
    a(f"""
    {name}_snext:
    s_add_u32 s{sN}, s{sN}, 1
    s_cmp_lt_u32 s{sN}, 64
    s_cbranch_scc1 {name}_sloop
    s_cmp_lg_u32 s{sP}, 0
    s_nop 8
    s_cbranch_scc1 {name}_bfin
    s_mov_b32 s{sP}, 1
    v_mov_b64 {v(t,2)}, {v(mx,2)}
    s_nop 1
    v_permlane32_swap_b32 v{mx}, v{t}
    v_permlane32_swap_b32 v{mx+1}, v{t+1}
    v_max_f32 v{mx}, v{mx}, v{t}
    v_max_f32 v{mx+1}, v{mx+1}, v{t+1}
    s_branch {name}_spass
    """)
    nvB = V.hi
    V = Regs(1, 256); S_.n = nsB - 2
    acc = V(96); Z = [[V(4) for n in range(3)] for k in range(4)]; W = [[V(4) for th in range(2)] for k in range(2)]
    z1 = V(12); vo = [V() for b in range(8)]; aW = [V() for i in range(4)]; vl = V(); vz = V(); vh = V(); vt = V(); bs = V(); t = V(8); vu = V()
    zr = Z[0][0]; st = Z[1][0]; tp = Z[2][0]
    sA = S_(); sTH = S_(); sQq = S_(); sSP = S_(4); sBS = S_(4); sKVo = S_(); sKVm = S_(); sKVb = S_(); sAr = S_(); sBlk = S_(); sWo = S_(); sZo = S_(); sZb = S_(); sZn = S_(); sC = S_(2)
    def kv_issue():
        a(f"""
        s_add_u32 m0, s{sKVm}, s{sKVb}
        s_add_u32 s{sT}, s{sKVo}, {hx(WS_KV)}
        buffer_load_dwordx4 v{vz}, {s(sWS,4)}, s{sT} offen lds
        buffer_load_dwordx4 v{vz}, {s(sWS,4)}, s{sT} offen offset:1024 lds
        buffer_load_dwordx4 v{vz}, {s(sWS,4)}, s{sT} offen offset:2048 lds
        s_add_u32 s{sKVo}, s{sKVo}, {KVS}
        s_cmp_eq_u32 s{sKVo}, {16*KVS}
        s_cselect_b32 s{sKVo}, 0, s{sKVo}
        s_add_u32 s{sKVm}, s{sKVm}, {KVS}
        s_cmp_eq_u32 s{sKVm}, {NKV*KVS}
        s_cselect_b32 s{sKVm}, 0, s{sKVm}
        """)
    def wsp_lines(slot):
        L = [f"s_add_u32 m0, s{sAr}, {slot*8192}\n s_add_u32 s{sWo}, s{sBlk}, s{sA}\n s_lshl_b32 s{sWo}, s{sWo}, 7"]
        for b in range(8):
            pre = f"s_add_u32 m0, s{sAr}, {slot*8192+4096}\n s_add_u32 s{sBlk}, s{sBlk}, 1\n s_and_b32 s{sBlk}, s{sBlk}, 7\n" if b == 4 else ""
            L.append(pre + f"buffer_load_dwordx4 v{vo[b]}, {s(sSP,4)}, s{sWo} offen offset:{(b&3)*1024} lds")
        return L
    a(f"""
    {name}_A:
    s_sub_u32 s{sA}, s{S_W}, 4
    s_mul_i32 s{sKVb}, s{sA}, 3072
    v_lshlrev_b32 v{vl}, 4, v0
    v_add_u32 v{vz}, s{sKVb}, v{vl}
    s_lshr_b32 s{sKVo}, s{S_TG}, 1
    s_mul_i32 s{sKVo}, s{sKVo}, {KVS}
    s_mov_b32 s{sKVm}, 0
    """)
    kv_issue()
    a(f"""
    s_lshr_b32 s{sTH}, s{sA}, 1
    s_and_b32 s{sQq}, s{sA}, 1
    v_lshrrev_b32 v{vh}, 5, v0
    v_and_b32 v{vt}, 31, v0
    s_lshl_b32 s{sT}, s{S_TG}, 1
    s_add_u32 s{sT2}, s{sT}, s{sTH}
    s_lshl_b32 s{sT}, s{sT2}, 11
    s_add_u32 s{sT}, s{sT}, {hx(WS_ST)}
    v_lshlrev_b32 v{t}, 6, v{vt}
    v_lshl_add_u32 v{t}, v{vh}, 5, v{t}
    buffer_load_dwordx4 {v(st,4)}, v{t}, {s(sWS,4)}, s{sT} offen
    buffer_load_dwordx4 {v(st+4,4)}, v{t}, {s(sWS,4)}, s{sT} offen offset:16
    s_lshl_b32 s{sT}, s{S_TG}, 3
    s_add_u32 s{sT}, s{sT}, s{S_J}
    s_lshl_b32 s{sT}, s{sT}, 2
    s_add_u32 s{sT}, s{sT}, s{sA}
    s_mul_i32 s{sO}, s{sT}, 3072
    s_add_u32 s{sT}, s{sO}, {hx(WS_Z2R)}
    """)
    for n in range(3): a(f"buffer_load_dwordx4 {v(zr+4*n,4)}, v{vl}, {s(sWS,4)}, s{sT} offen offset:{1024*n}")
    kv_issue()
    srd(a, sSP, P_WSP, 2048*4096); srd(a, sBS, P_BSP, 4096)
    a(f"""
    s_add_u32 s{sT}, s{sO}, {hx(WS_Z1)}
    s_lshl_b32 s{sT2}, s{sT2}, 6
    v_lshlrev_b32 v{t}, 1, v{vt}
    """)
    for n in range(3): a(f"buffer_load_dwordx4 {v(z1+4*n,4)}, v{vl}, {s(sWS,4)}, s{sT} offen offset:{1024*n}")
    a(f"""
    buffer_load_ushort v{bs}, v{t}, {s(sBS,4)}, s{sT2} offen
    s_mul_i32 s{sAr}, s{sA}, {AREA}
    s_add_u32 s{sAr}, s{sAr}, {A0}
    s_and_b32 s{sBlk}, s{S_TG}, 7
    s_mul_i32 s{sZb}, s{S_J}, {128*3072}
    s_add_u32 s{sZb}, s{sZb}, {hx(WS_Z2N)}
    s_lshl_b32 s{sA}, s{sA}, 3
    v_lshrrev_b32 v{t}, 3, v0
    s_lshl_b32 s{sT}, s{S_TG}, 6
    v_add_u32 v{t}, s{sT}, v{t}
    v_lshlrev_b32 v{t}, 12, v{t}
    v_lshrrev_b32 v{t+1}, 4, v0
    v_and_b32 v{t+2}, 7, v0
    v_xor_b32 v{t+1}, v{t+1}, v{t+2}
    v_lshl_add_u32 v{vo[0]}, v{t+1}, 4, v{t}
    v_xor_b32 v{t+1}, 64, v{vo[0]}
    """)
    for b in range(1, 8): a(f"v_add_u32 v{vo[b]}, {hx(b*32768-(b&3)*1024)}, v{t+1 if b & 1 else vo[0]}")
    a(f"s_mov_b32 s{sZn}, s{sBlk}")
    for slot in range(2):
        for l in wsp_lines(slot): a(l)
    a(f"""
    v_bfe_u32 v{t}, v0, 1, 3
    v_xor_b32 v{t}, v{t}, v{vh}
    v_lshlrev_b32 v{t}, 4, v{t}
    v_lshl_add_u32 v{t}, v{vt}, 7, v{t}
    s_lshl_b32 s{sT}, s{sTH}, 12
    s_add_u32 s{sT}, s{sT}, s{sAr}
    """)
    for i in range(4): a(f"v_xor_b32 v{aW[i]}, {hx(32*i)}, v{t}\n v_add_u32 v{aW[i]}, s{sT}, v{aW[i]}")
    stamp(a, 1)
    a(f"""
    s_waitcnt vmcnt(28)
    s_barrier
    """)
    stamp(a, 2)
    for i in range(0, 96, 2): a(f"v_mov_b64 {v(acc+i,2)}, 0")
    a(f"""
    s_mov_b32 s{sC}, {fl(1/768)}
    s_waitcnt vmcnt(26)
    v_pk_add_f32 {v(st,2)}, {v(st,2)}, {v(st+2,2)}
    v_pk_add_f32 {v(st+4,2)}, {v(st+4,2)}, {v(st+6,2)}
    v_lshlrev_b32 v{t}, 5, v{vt}
    v_pk_add_f32 {v(st,2)}, {v(st,2)}, {v(st+4,2)}
    v_lshl_add_u32 v{t}, v{vh}, 3, v{t}
    v_mov_b64 {v(st+2,2)}, {v(st,2)}
    s_add_u32 s{sT}, s{sAr}, 16384
    v_add_u32 v{t}, s{sT}, v{t}
    v_permlane32_swap_b32 v{st}, v{st+2}
    v_permlane32_swap_b32 v{st+1}, v{st+3}
    v_pk_add_f32 {v(st,2)}, {v(st,2)}, {v(st+2,2)}
    v_pk_mul_f32 {v(st,2)}, {v(st,2)}, {s(sC,2)} op_sel_hi:[1,0]
    v_fma_f32 v{st+1}, -v{st}, v{st}, v{st+1}
    v_max_f32 v{st+1}, 0, v{st+1}
    v_add_f32 v{st+1}, {fl(1e-5)}, v{st+1}
    v_rsq_f32 v{st+2}, v{st+1}
    v_lshrrev_b32 v{t+1}, 4, v0
    v_mul_f32 v{st+4}, v{st}, v{st+2}
    v_bfe_u32 v{t+2}, v0, 2, 2
    v_lshl_add_u32 v{t+2}, v{t+1}, 3, v{t+2}
    v_and_b32 v{t+3}, 3, v0
    v_lshlrev_b32 v{t+3}, 3, v{t+3}
    v_lshl_add_u32 v{t+2}, v{t+2}, 5, v{t+3}
    v_add_u32 v{t+2}, s{sT}, v{t+2}
    s_waitcnt vmcnt(23)
    """)
    for i in range(12):
        a(f"""
        v_lshlrev_b32 v{tp+2*(i&1)}, 16, v{zr+i}
        v_and_b32 v{tp+2*(i&1)+1}, 0xffff0000, v{zr+i}
        v_pk_fma_f32 {v(tp+2*(i&1),2)}, {v(tp+2*(i&1),2)}, {v(st+2,2)}, {v(st+4,2)} op_sel_hi:[1,0,0] neg_lo:[0,0,1] neg_hi:[0,0,1]
        v_cvt_pk_bf16_f32 v{zr+i}, v{tp+2*(i&1)}, v{tp+2*(i&1)+1}
        """)
        if i & 1: a(f"ds_write_b64 v{t}, {v(zr+i-1,2)} offset:{(i>>2)*1024+((i>>1)&1)*16}")
    a(f"""
    v_mul_u32_u24 v{t+4}, 3072, v{vh}
    v_and_b32 v{t+5}, 1, v{t+1}
    v_lshl_add_u32 v{t+4}, v{t+5}, 9, v{t+4}
    v_and_b32 v{t+5}, 7, v0
    v_lshl_add_u32 v{t+4}, v{t+5}, 4, v{t+4}
    v_bfe_u32 v{t+5}, v0, 3, 1
    v_lshl_add_u32 v{t+4}, v{t+5}, 8, v{t+4}
    s_lshl_b32 s{sT}, s{S_TG}, 1
    s_add_u32 s{sT}, s{sT}, s{sTH}
    s_mul_i32 s{sT}, s{sT}, 6144
    s_add_u32 s{sT}, s{sT}, s{sZb}
    s_lshl_b32 s{sT2}, s{sQq}, 7
    s_add_u32 s{sT}, s{sT}, s{sT2}
    s_waitcnt lgkmcnt(0)
    """)
    for n in range(3):
        for p in range(2): a(f"ds_read_b64_tr_b16 {v(zr+4*n+2*p,2)}, v{t+2} offset:{n*1024+p*128}")
    for n in range(3):
        a(f"s_waitcnt lgkmcnt({4-2*n})\n buffer_store_dwordx4 {v(zr+4*n,4)}, v{t+4}, {s(sWS,4)}, s{sT} offen offset:{1024*n} sc1")
    a(f"""
    v_xor_b32 v{vl}, s{sT2}, v{vl}
    s_lshl_b32 s{sT}, s{S_J}, 5
    s_add_u32 s{sT2}, s{sT}, s{S_TG}
    s_lshl_b32 s{sT2}, s{sT2}, 4
    s_lshr_b32 s{sO}, s{sA}, 1
    s_add_u32 s{sT2}, s{sT2}, s{sO}
    s_add_u32 s{sT2}, s{sT2}, {hx(WS_FLAG)}
    v_cmp_eq_u32 vcc, 0, v0
    s_add_u32 s{sT}, s{sT}, s{sA}
    s_lshl_b32 s{sT}, s{sT}, 4
    s_add_u32 s{sO}, s{sT}, {hx(WS_FLAG)}
    v_cndmask_b32 v{t}, -4.0, v0, vcc
    v_mov_b32 v{t+1}, 1
    v_lshlrev_b32 v{t+2}, 2, v{vt}
    s_waitcnt vmcnt(0)
    buffer_store_dword v{t+1}, v{t}, {s(sWS,4)}, s{sT2} offen sc1
    """)
    stamp(a, 3); a("s_barrier"); stamp(a, 4)
    kv_issue()
    a("s_waitcnt vmcnt(0)\n s_barrier")
    stamp(a, 5)
    kv_issue()
    a(f"""
    s_mov_b32 s{sN}, 0x40000
    {name}_poll:
    buffer_load_dword v{t+3}, v{t+2}, {s(sWS,4)}, s{sO} offen sc1
    s_sub_u32 s{sN}, s{sN}, 1
    s_waitcnt vmcnt(0)
    v_cmp_ne_u32 vcc, 1, v{t+3}
    s_cbranch_scc1 {name}_pdone
    s_cbranch_vccnz {name}_poll
    {name}_pdone:
    """)
    stamp(a, 6)
    def znext():
        return f"""s_add_u32 s{sZo}, s{sZn}, s{sA}
        s_mul_i32 s{sZo}, s{sZo}, 12288
        s_add_u32 s{sZo}, s{sZo}, s{sZb}
        s_add_u32 s{sZn}, s{sZn}, 1
        s_and_b32 s{sZn}, s{sZn}, 7"""
    zld = lambda k, n: f"buffer_load_dwordx4 {v(Z[k][n],4)}, v{vl}, {s(sWS,4)}, s{sZo} offen offset:{1024*n} sc1"
    a(znext())
    for k in range(4):
        for n in range(3): a(zld(k, n))
        a(f"s_add_u32 s{sZo}, s{sZo}, 3072")
    vW2 = [t+4+i for i in range(4)]
    a(f"s_lshl_b32 s{sT}, s{sTH}, 13\n s_sub_u32 s{sT}, 4096, s{sT}")
    for i in range(4): a(f"v_add_u32 v{vW2[i]}, s{sT}, v{aW[i]}")
    rW = lambda slot, k: [f"ds_read_b128 {v(W[k&1][0],4)}, v{aW[k]} offset:{slot*8192}", f"ds_read_b128 {v(W[k&1][1],4)}, v{vW2[k]} offset:{slot*8192}"]
    for l in rW(0, 0): a(l)
    a(f"""
    s_mov_b32 s{sN}, 4
    s_waitcnt vmcnt(0)
    """)
    stamp(a, 7); a("s_barrier"); stamp(a, 8)
    kv_issue()
    items = []
    def T(x): items.append(("t", x, None))
    def M(x, tag): items.append(("m", x, tag))
    def WT(tag): items.append(("w", None, tag))
    cnt = 0
    for slot in range(2):
        for k in range(4):
            if k == 0: T(znext())
            dma = wsp_lines(slot) if k == 3 else []
            T("s_waitcnt lgkmcnt(0)")
            if k == 3: WT(f"wsp{slot^1}")
            nx = rW(slot, k+1) if k < 3 else rW(slot^1, 0)
            for n in range(3):
                WT(f"z{k}{n}")
                for th in range(2):
                    ac = acc + 48*th + 16*n
                    T(f"v_mfma_f32_32x32x16_bf16 {v(ac,16)}, {v(Z[k][n],4)}, {v(W[k&1][th],4)}, {v(ac,16)}")
                    if n == 0: T(nx[th])
                    if dma and (n, th) == (0, 1): T(dma[0])
                    if dma and n > 0:
                        for l in dma[1+2*(2*(n-1)+th):3+2*(2*(n-1)+th)]: M(l, f"wsp{slot}")
                    if th == 1: M(zld(k, n), f"z{k}{n}")
                    cnt += 1
                    if cnt % 16 == 0:
                        WT("kv"); T("s_barrier"); items.append(("kv", None, "kv"))
            T(f"s_add_u32 s{sZo}, s{sZo}, 3072")
    a(f"{name}_gloop:")
    a(f"s_cmp_eq_u32 s{sN}, 1\n s_cselect_b32 s{sSP+2}, 0, s{sSP+2}")
    ng = cfg.get("nog", 0)
    if ng == 1: items = [it for it in items if it[2] == "kv" or it[1] == "s_barrier"]
    if ng == 2: items = [it for it in items if not (it[1] or "").startswith("v_mfma")]
    if ng == 3: items = [it for it in items if it[2] == "kv" or it[1] == "s_barrier" or (it[1] or "").startswith("v_mfma")]
    NI = len(items)
    for i, (kind, x, tag) in enumerate(items):
        if kind in ("t", "m"): a(x)
        elif kind == "kv": kv_issue()
        else:
            n = 0; k = i - 1
            while not (items[k % NI][0] in ("m", "kv") and items[k % NI][2] == tag):
                n += {"m": 1, "kv": 3}.get(items[k % NI][0], 0); k -= 1
            a(f"s_waitcnt vmcnt({n})")
    a(f"""
    s_sub_u32 s{sN}, s{sN}, 1
    s_cmp_lg_u32 s{sN}, 0
    s_cbranch_scc1 {name}_gloop
    v_lshlrev_b32 v{t}, 4, v0
    v_add_u32 v{t+1}, s{sAr}, v{t}
    s_lshr_b32 s{sA}, s{sA}, 3
    s_waitcnt vmcnt(0) lgkmcnt(0)
    """)
    stamp(a, 9)
    def quads(d, n): return [acc + 48*(d >> 1) + 16*n + 4*(d & 1), acc + 48*(d >> 1) + 16*n + 4*(d & 1) + 8]
    for d in range(1, 4):
        for n in range(3):
            for e, r in enumerate(quads(d, n)): a(f"ds_write_b128 v{t+1}, {v(r,4)} offset:{((d-1)*6+2*n+e)*1024}")
        a(f"""
        s_xor_b32 s{sT}, s{sA}, {d}
        s_mul_i32 s{sT}, s{sT}, {AREA}
        s_add_u32 s{sT}, s{sT}, {A0}
        v_add_u32 v{t+1+d}, s{sT}, v{t}
        """)
    a(f"""
    v_lshlrev_b32 v{bs}, 16, v{bs}
    v_lshrrev_b32 v{t}, 4, v{vt}
    v_mul_u32_u24 v{vu}, {44*1024}, v{t}
    v_and_b32 v{t}, 15, v{vt}
    v_lshl_add_u32 v{vu}, v{t}, 4, v{vu}
    v_lshl_add_u32 v{vu}, v{vh}, 8, v{vu}
    s_lshl_b32 s{sT}, s{S_TG}, 1
    s_add_u32 s{sT}, s{sT}, s{sTH}
    s_mul_i32 s{sO}, s{sT}, {88*1024}
    s_mul_i32 s{sT}, s{S_J}, 3072
    s_add_u32 s{sO}, s{sO}, s{sT}
    s_lshl_b32 s{sT}, s{sQq}, 9
    s_add_u32 s{sO}, s{sO}, s{sT}
    s_add_u32 s{sO}, s{sO}, {hx(WS_ACT+20*1024)}
    s_waitcnt lgkmcnt(0)
    """)
    stamp(a, 10); a("s_barrier"); stamp(a, 11)
    for n in range(3):
        for d in range(1, 4):
            for e, r in enumerate(quads(d, n)): a(f"ds_read_b128 {v(r,4)}, v{t+1+d} offset:{((d-1)*6+2*n+e)*1024}")
        if n == 1: a("s_waitcnt lgkmcnt(6)")
    for n in range(3):
        if n > 0: a(f"s_waitcnt lgkmcnt({6 if n == 1 else 0})")
        for e in range(2):
            own = quads(0, n)[e]
            for h2 in (0, 2):
                r = own + h2; zi = z1 + 4*n + 2*e + h2//2
                a(f"""
                v_pk_add_f32 {v(r,2)}, {v(r,2)}, {v(quads(1,n)[e]+h2,2)}
                v_pk_add_f32 {v(quads(2,n)[e]+h2,2)}, {v(quads(2,n)[e]+h2,2)}, {v(quads(3,n)[e]+h2,2)}
                v_add_f32 v{r}, v{r}, v{bs}
                v_add_f32 v{r+1}, v{r+1}, v{bs}
                v_lshlrev_b32 v{t+6}, 16, v{zi}
                v_pk_add_f32 {v(r,2)}, {v(r,2)}, {v(quads(2,n)[e]+h2,2)}
                v_and_b32 v{t+7}, 0xffff0000, v{zi}
                v_pk_mul_f32 {v(r,2)}, {v(r,2)}, {v(t+6,2)}
                v_cvt_pk_bf16_f32 v{zi}, v{r}, v{r+1}
                """)
        a(f"buffer_store_dwordx4 {v(z1+4*n,4)}, v{vu}, {s(sWS,4)}, s{sO} offen offset:{1024*n}")
    footer(a, name, 1)
    return a, max(nvB, V.hi), A0 + 4*AREA, 512
```

```python
from common import *
def k3(name, JB=2, cfg={}):
    a = Asm(); header(a, name, JB)
    NR = cfg.get("nr3", 4); STG = 40960
    S_ = Regs(36, 88); V = Regs(1, 256)
    sWS = S_(4); sW = S_(4); sOut = S_(4); sP = S_(); sTt = S_(); sT = S_(); sT2 = S_(); sWo = S_(); sAo = S_(); sM = S_()
    act = V(96); acc = V(20); W = [V(20), V(20)]; vo = [V() for i in range(5)]; vl = V(); vr = V(); vr2 = V(); g = V(2); t = V(4); vs = V(); vx = V()
    a(f"""
    s_lshr_b32 s{sP}, s{S_W}, 2
    s_and_b32 s{sTt}, s{S_W}, 3
    v_lshlrev_b32 v{vl}, 4, v0
    """)
    for i in range(5):
        a(f"""
        v_add_u32 v{t}, {64*i}, v0
        v_mul_u32_u24 v{t+1}, 6554, v{t}
        v_lshrrev_b32 v{t+1}, 16, v{t+1}
        v_mul_u32_u24 v{t+1}, {1280-160}, v{t+1}
        v_lshl_add_u32 v{vo[i]}, v{t if i == 4 else 0}, 4, v{t+1}
        """)
    a(f"""
    s_mul_i32 s{sWo}, s{sTt}, {32*1280}
    s_mul_i32 s{sT}, s{S_J}, 160
    s_add_u32 s{sWo}, s{sWo}, s{sT}
    s_lshl_b32 s{sT}, s{S_TG}, 2
    s_add_u32 s{sT2}, s{sT}, s{sTt}
    s_mul_i32 s{sAo}, s{sT2}, {44*1024}
    s_mul_i32 s{sM}, s{sP}, 20480
    s_add_u32 s{sAo}, s{sAo}, s{sM}
    s_add_u32 s{sAo}, s{sAo}, {hx(WS_ACT)}
    s_mul_i32 s{sT}, s{sTt}, 5120
    s_cmp_eq_u32 s{sP}, 0
    s_waitcnt lgkmcnt(0)
    s_cselect_b32 s{sW}, s{P_WO}, s{P_WOUT}
    s_cselect_b32 s{sW+1}, s{P_WO+1}, s{P_WOUT+1}
    s_movk_i32 s{sW+2}, 768
    s_cselect_b32 s{sW+2}, 640, s{sW+2}
    s_mul_i32 s{sW+2}, s{sW+2}, 1280
    s_mov_b32 s{sW+3}, 0x20000
    """)
    srd(a, sWS, P_WS, WS_END)
    a(f"s_add_u32 s{sT}, s{sT}, s{sM}")
    def issue(st):
        a(f"s_add_u32 m0, s{sT}, {(st % NR)*STG}\n s_nop 0")
        for i in range(5):
            if i == 4: a(f"s_add_u32 m0, s{sT}, {(st % NR)*STG+4096}\n s_nop 0")
            a(f"buffer_load_dwordx4 v{vo[i]}, {s(sW,4)}, s{sWo} offen offset:{1024*(i&3)} lds")
        for k in range(4): a(f"buffer_load_dwordx4 {v(act+16*st+4*k,4)}, v{vl}, {s(sWS,4)}, s{sAo} offen offset:{1024*k}")
        a(f"s_add_u32 s{sWo}, s{sWo}, {128*1280}\n s_add_u32 s{sAo}, s{sAo}, 4096")
    stamp(a, 1)
    for st in range(NR): issue(st)
    srd(a, sOut, P_OUT, 2048*1280)
    a(f"""
    v_and_b32 v{t}, 15, v0
    v_lshlrev_b32 v{t+1}, 2, v{t}
    s_lshl_b32 s{sT2}, s{sT2}, 6
    s_add_u32 s{sT2}, s{sT2}, {hx(WS_GATE)}
    buffer_load_dword v{g}, v{t+1}, {s(sWS,4)}, s{sT2} offen
    v_lshrrev_b32 v{t+1}, 2, v0
    v_mul_u32_u24 v{vr}, 160, v{t+1}
    v_and_b32 v{t+1}, 3, v0
    v_lshl_add_u32 v{vr}, v{t+1}, 3, v{vr}
    v_add_u32 v{vr}, s{sM}, v{vr}
    v_add_u32 v{vr2}, {2*STG}, v{vr}
    v_mul_u32_u24 v{vs}, 0x500, v{t}
    v_lshrrev_b32 v{t+1}, 4, v0
    v_lshl_add_u32 v{vs}, v{t+1}, 3, v{vs}
    s_mul_i32 s{sT2}, s{sTt}, 5120
    v_add_u32 v{vx}, s{sT2}, v{vl}
    """)
    for i in range(0, 20, 2): a(f"v_mov_b64 {v(acc+i,2)}, 0")
    def rd(st, k, c):
        sl = st % NR
        for p in range(2): a(f"ds_read_b64_tr_b16 {v(W[k&1]+4*c+2*p,2)}, v{vr2 if sl >= 2 else vr} offset:{(sl&1)*STG+k*5120+p*2560+c*32}")
    pend = [9]*NR; extra_at = NR-1
    issued = NR
    for st in range(6):
        n = 9*(issued-1-st) + (1 if st <= extra_at else 0)
        a(f"s_waitcnt vmcnt({n})")
        a("s_barrier")
        stamp(a, 2+st)
        if st == 5: a(f"s_cmp_eq_u32 s{sP}, 0\n s_cbranch_scc1 {name}_epi")
        for c in range(5): rd(st, 0, c)
        if st >= 1 and issued < 6:
            if issued == 5: a(f"s_mul_i32 s{sW+2}, s{sW+2}, s{sP}\n s_mul_i32 s{sWS+2}, s{sWS+2}, s{sP}")
            issue(issued)
            issued += 1
        for k in range(4):
            for c in range(5):
                a(f"s_waitcnt lgkmcnt({8 if k < 3 else 8-2*c})")
                a(f"v_mfma_f32_16x16x32_bf16 {v(acc+4*c,4)}, {v(W[k&1]+4*c,4)}, {v(act+16*st+4*k,4)}, {v(acc+4*c,4)}")
                if k < 3: rd(st, k+1, c)
    XO = 2*STG
    a("s_nop 7")
    a(f"v_add_u32 v{vx}, {XO}, v{vx}")
    for c in range(5): a(f"ds_write_b128 v{vx}, {v(acc+4*c,4)} offset:{1024*c}")
    a(f"""
    s_waitcnt lgkmcnt(0)
    s_barrier
    """)
    wend(a, name)
    a(f"""
    {name}_epi:
    v_add_u32 v{vx}, {XO}, v{vx}
    s_lshl_b32 s{sT}, s{S_TG}, 2
    s_add_u32 s{sT}, s{sT}, s{sTt}
    s_mul_i32 s{sT}, s{sT}, {16*1280}
    s_mul_i32 s{sT2}, s{S_J}, 160
    s_add_u32 s{sT}, s{sT}, s{sT2}
    s_barrier
    """)
    stamp(a, 8)
    b = W[0]
    for c in range(5): a(f"ds_read_b128 {v(b+4*c,4)}, v{vx} offset:{1024*c}")
    for c in range(5):
        r = acc+4*c; q = b+4*c
        a(f"""
        s_waitcnt lgkmcnt({4-c})
        v_pk_add_f32 {v(r,2)}, {v(r,2)}, {v(q,2)} neg_lo:[0,1] neg_hi:[0,1]
        v_pk_add_f32 {v(r+2,2)}, {v(r+2,2)}, {v(q+2,2)} neg_lo:[0,1] neg_hi:[0,1]
        v_pk_fma_f32 {v(r,2)}, {v(r,2)}, {v(g,2)}, {v(q,2)} op_sel_hi:[1,0,1]
        v_pk_fma_f32 {v(r+2,2)}, {v(r+2,2)}, {v(g,2)}, {v(q+2,2)} op_sel_hi:[1,0,1]
        v_cvt_pk_bf16_f32 v{r}, v{r}, v{r+1}
        v_cvt_pk_bf16_f32 v{r+1}, v{r+2}, v{r+3}
        buffer_store_dwordx2 {v(r,2)}, v{vs}, {s(sOut,4)}, s{sT} offen offset:{32*c}
        """)
    footer(a, name, 2)
    return a, V.hi, NR*STG, 512
```

```python
from common import *
from stream import *
KVS = 12288; AA = 18432; KV0 = 73728; SG0 = 110592; SG = 12800; PB0 = KV0 + 2*KVS
slot = lambda c: ((c + 2) % 3) * KVS
SEQ = {0: "e e C e e P c e e c Q e e c e q e c e e p c e e c e e c",
       1: "e e C e e P c e e c Q e e c e q e c e e p c e e g c e e c",
       2: "e g e C e e P c e e c Q e e c e q e c e e p c e e c g e e c",
       3: "e g e C e e P c e g e c Q e e c e q e c e e p c e e c g e e c",
       4: "e g e C e e P c e g e c Q e e c e q e c g e e p c e e c g e e c",
       5: "g e e g C e e P c e g e c Q e e c e q e c g e e p c e e c g e e c",
       6: "g e e g C e e P c e g e c Q e e g c e q e c g e e p c e e c g e e c"}
MF32 = "v_mfma_f32_32x32x16_bf16"; MF8 = "v_mfma_f32_32x32x8bf16_1k"; MF16 = "v_mfma_f32_16x16x32_bf16"
class R: pass
r = R()
r.aK, r.aK8, r.aV = 1, 2, 3
r.S = [12, 28]; r.O = [44, 60]; r.Q16 = [76, 80]; r.Q8 = 84; r.K16 = 88; r.K8 = 92; r.V0 = 96; r.V1 = 100
BIG = 104
def kv_addr(st, t):
    st(f"""
    v_lshlrev_b32 v{r.aK}, 4, v0
    v_and_b32 v{t}, 31, v0
    v_lshrrev_b32 v{t+1}, 5, v0
    v_lshlrev_b32 v{r.aK8}, 4, v{t}
    v_min_u32 v{r.aV}, 23, v{t}
    v_mul_u32_u24 v{t+1}, 0x180, v{t+1}
    v_lshl_add_u32 v{r.aV}, v{r.aV}, 4, v{t+1}
    v_add_u32 v{r.aK}, {KV0}, v{r.aK}
    v_add_u32 v{r.aK8}, {KV0}, v{r.aK8}
    v_add_u32 v{r.aV}, {KV0}, v{r.aV}
    """)
def attention(role, dens, gop, bar, post, prio):
    sc = Sched()
    rK = lambda c, t: (f"ds_read_b128 {v(r.K16,4)}, v{r.aK} offset:{slot(c)+(2*role+t)*1024}", "K")
    rK8 = lambda c: (f"ds_read_b128 {v(r.K8,4)}, v{r.aK8} offset:{slot(c)+4096+role*512}", "K8")
    rV = lambda c, t, f: (f"ds_read_b128 {v(r.V1 if f else r.V0,4)}, v{r.aV} offset:{slot(c)+5120+(2*(2*role+t)+f)*768}", f"V{f}")
    sc.op([rK(0, 0), rK8(0), rV(0, 0, 0), ("@", "K", "K8", "Q"),
           f"{MF32} {v(r.S[0],16)}, {v(r.K16,4)}, {v(r.Q16[0],4)}, 0", f"{MF8} {v(r.S[0],16)}, {v(r.K8,2)}, {v(r.Q8,2)}, {v(r.S[0],16)}", "s_nop 11"])
    for c in range(16):
        for i in range(4):
            b = i & 1; kt = i >> 1; cur = r.S[b]; nx = r.S[b ^ 1]; ne = nc = 0
            first = (c, i) == (0, 0); last = (c, i) == (15, 3)
            if prio(c, i) is not None: sc.op(f"s_setprio {prio(c, i)}")
            for op in SEQ[dens[c][i]].split():
                if op == "e": sc.op(f"v_exp_f32 v{cur+ne}, v{cur+ne}"); ne += 1
                elif op == "c": sc.op(f"v_cvt_pk_bf16_f32 v{cur+nc}, v{cur+2*nc}, v{cur+2*nc+1}"); nc += 1
                elif op == "C":
                    if not first: sc.op(f"v_cvt_pk_bf16_f32 v{nx+7}, v{nx+14}, v{nx+15}")
                elif op == "P":
                    it = [] if first else [("@", "V1"), f"{MF32} {v(r.O[b^1],16)}, {v(r.V1,4)}, {v(nx+4,4)}, {v(r.O[b^1],16)}"]
                    if not b: it.append(rV(c, kt, 1))
                    sc.op(it)
                elif op == "Q":
                    if last: continue
                    sc.op([("@", "K"), f"{MF32} {v(nx,16)}, {v(r.K16,4)}, {v(r.Q16[b^1],4)}, 0"] + ([rK(c, 1)] if i == 0 else []))
                elif op == "q":
                    if last: continue
                    sc.op([("@", "K8"), f"{MF8} {v(nx,16)}, {v(r.K8+2*(((i+1)>>1)&1),2)}, {v(r.Q8+2*(b^1),2)}, {v(nx,16)}"])
                elif op == "p":
                    it = []
                    if i == 2:
                        sc.op([("@", "V0", "V1") + tuple(bar(c)), "s_barrier"]); sc.next()
                        if c < 15: it += [rK(c+1, 0), rK8(c+1)]
                    it += [("@", "V0"), f"{MF32} {v(r.O[b],16)}, {v(r.V0,4)}, {v(cur,4)}, {'0' if c == 0 and i < 2 else v(r.O[b],16)}"]
                    if i == 1: it.append(rV(c, 1, 0))
                    if i == 3 and c < 15: it.append(rV(c+1, 0, 0))
                    if i == 2: it += post(c)
                    sc.op(it)
                elif op == "g": sc.op(gop())
    sc.op([f"v_cvt_pk_bf16_f32 v{r.S[1]+7}, v{r.S[1]+14}, v{r.S[1]+15}", "s_nop 1", f"{MF32} {v(r.O[1],16)}, {v(r.V1,4)}, {v(r.S[1]+4,4)}, {v(r.O[1],16)}"])
    return sc
def vo160(vo, t):
    L = []
    for i in range(5):
        L.append(f"""v_add_u32 v{t}, {64*i}, v0
        v_mul_u32_u24 v{t+1}, 6554, v{t}
        v_lshrrev_b32 v{t+1}, 16, v{t+1}
        v_mul_u32_u24 v{t+1}, {1280-160}, v{t+1}
        v_lshl_add_u32 v{vo+i}, v{t if i == 4 else 0}, 4, v{t+1}""")
    return L
def dma160(vo, srd_, sO, sM, n, tag, half_last=False):
    L = []
    for i in range(n):
        x = ""
        if i % 5 in (0, 4): x += f"s_add_u32 m0, s{sM}, {1024*i}\n s_nop 0\n"
        if half_last and i == n-1: x += "s_mov_b32 exec_hi, 0\n"
        x += f"buffer_load_dwordx4 v{vo+i%5}, {s(srd_,4)}, s{sO} offen offset:{1024*((i%5)&3)} lds\n"
        if half_last and i == n-1: x += "s_mov_b32 exec_hi, -1\n"
        if i % 5 == 4: x += f"s_add_u32 s{sO}, s{sO}, {32*1280}\n"
        L.append((x, tag))
    return L
def chk_tile(st, name, regs, n, t, sCnt):
    st(f"{name}_chk:")
    st.w(name)
    st(f"v_max3_u32 v{t}, v{regs}, v{regs+1}, v{regs+2}\n v_max3_u32 v{t+1}, v{regs+3}, v{regs+4}, v{regs+5}")
    for i in range(6, n, 2): st(f"v_max3_u32 v{t+(i>>1&1)}, v{regs+i}, v{regs+i+1}, v{t+(i>>1&1)}")
    st(f"""v_max_u32 v{t}, v{t}, v{t+1}
    v_cmp_eq_u32 vcc, -1, v{t}
    s_cbranch_vccnz {name}_retry
    {name}_ok:""")

def kb(name, JB=2, cfg={}):
    a = Asm(); header(a, name, JB)
    S_ = Regs(36, 88)
    sWS = S_(4); sW = S_(4); sT = S_(); sT2 = S_(); sO = S_(); sN = S_(); sK = S_(); sTH = S_(); sHP = S_(); sE = S_(2); sAct = [S_() for i in range(4)]
    gS = cfg.get("gs", 2); cR = cfg.get("cr", 14)
    st = St(a)
    T = 208
    st(f"""
    s_and_b32 s{sK}, s{S_W}, 3
    s_and_b32 s{sTH}, s{S_W}, 1
    s_bfe_u32 s{sHP}, s{S_W}, 0x10001
    s_lshl_b32 s{sT}, s{S_TG}, 3
    s_add_u32 s{sT}, s{sT}, s{S_J}
    s_lshl_b32 s{sT}, s{sT}, 2
    s_add_u32 s{sT}, s{sT}, s{sHP}
    s_mul_i32 s{sO}, s{sT}, {QF_HEAD}
    s_lshl_b32 s{sT}, s{sTH}, 10
    s_lshl_b32 s{sT2}, s{sTH}, 3
    v_lshlrev_b32 v{T}, 4, v0
    v_cmp_gt_u32 vcc, 32, v0
    v_add_u32 v{T+1}, s{sT}, v{T}
    v_add_u32 v{T+2}, s{sT2}, v{T}
    s_add_u32 s{sN}, s{sO}, {2*QF_HEAD}
    v_cndmask_b32 v{T+2}, -4.0, v{T+2}, vcc
    s_waitcnt lgkmcnt(0)
    """)
    srd(a, sWS, P_WS, WS_END)
    for i in range(4):
        st(f"""s_xor_b32 s{sT}, s{sK}, {(i+1)&3}
        s_lshl_b32 s{sT2}, s{S_TG}, 2
        s_add_u32 s{sT}, s{sT}, s{sT2}
        s_mul_i32 s{sAct[i]}, s{sT}, {44*1024}""")
    qld = f"""buffer_load_dwordx4 {v(r.Q16[0],4)}, v{T+1}, {s(sWS,4)}, s{sO} offen
    buffer_load_dwordx2 {v(r.Q8,2)}, v{T+2}, {s(sWS,4)}, s{sO} offen offset:2048
    buffer_load_dwordx4 {v(r.Q16[1],4)}, v{T+1}, {s(sWS,4)}, s{sN} offen
    buffer_load_dwordx2 {v(r.Q8+2,2)}, v{T+2}, {s(sWS,4)}, s{sN} offen offset:2048"""
    st(f"""
    s_cmp_ge_u32 s{S_W}, 4
    s_cbranch_scc1 {name}_B
    """)
    nsC = S_.n
    from kbA import waveA
    from kbB import waveB
    env = dict(locals())
    waveA(env, st.fork())
    S_.n = nsC
    waveB(env, st.fork())
    footer(a, name, 1)
    return a, 256, 163840, 512
```

```python
from kb import *
def waveA(E, st):
    a = E["a"]; name = E["name"]; cfg = E["cfg"]; S_ = E["S_"]; gS = E["gS"]; cR = E["cR"]; T = E["T"]
    sWS, sW, sT, sT2, sO, sN, sK, sTH, sHP, sE, sAct = [E[k] for k in "sWS sW sT sT2 sO sN sK sTH sHP sE sAct".split()]
    sSP = S_(4); sBS = S_(4); sAr = S_(); sWb = [S_(), S_()]; sB = S_(); sWo = S_(); sZb = S_(); sZn = S_(); sZo = S_(); sFl = S_(); sCnt = S_(); sU = S_(); sOa = S_(); sOx = S_()
    aW = [4, 5, 6, 7]; vl = 8; vo = [9, 10, 11, 252]; acc = BIG; W = [200, 204]; NZ = 11; Z = [208+4*z for z in range(NZ)]; t0, t1 = 253, 254
    st(E["qld"], "Q")
    kv_addr(st, T+4)
    srd(a, sSP, P_WSP, 2048*4096)
    st(f"""
    s_mul_i32 s{sAr}, s{sK}, {AA}
    s_lshl_b32 s{sT}, s{S_TG}, 1
    s_add_u32 s{sT}, s{sT}, s{sTH}
    s_lshl_b32 s{sT2}, s{sK}, 10
    s_lshl_b32 s{sWb[0]}, s{sT}, 17
    s_add_u32 s{sWb[0]}, s{sWb[0]}, s{sT2}
    s_xor_b32 s{sWb[1]}, s{sWb[0]}, 0x20000
    s_and_b32 s{sB}, s{S_TG}, 7
    s_lshl_b32 s{sB}, s{sB}, 7
    s_mov_b32 s{sZn}, s{sB}
    s_mul_i32 s{sU}, s{sT}, {88*1024}
    s_add_u32 s{sU}, s{sU}, {hx(WS_ACT)}
    s_lshl_b32 s{sT}, s{S_J}, 2
    s_add_u32 s{sT}, s{sT}, s{sK}
    s_mul_i32 s{sZb}, s{sT}, {8*12288}
    s_add_u32 s{sZb}, s{sZb}, {hx(WS_Z2N)}
    s_lshl_b32 s{sFl}, s{sT}, 7
    s_add_u32 s{sFl}, s{sFl}, {hx(WS_FLAG)}
    v_lshrrev_b32 v{T+4}, 3, v0
    v_lshlrev_b32 v{T+4}, 12, v{T+4}
    v_lshrrev_b32 v{T+5}, 4, v0
    v_and_b32 v{T+6}, 7, v0
    v_xor_b32 v{T+5}, v{T+5}, v{T+6}
    v_lshl_add_u32 v{vo[0]}, v{T+5}, 4, v{T+4}
    v_xor_b32 v{T+5}, 64, v{vo[0]}
    v_add_u32 v{vo[1]}, {32768-1024}, v{T+5}
    v_add_u32 v{vo[2]}, {2*(32768-1024)}, v{vo[0]}
    v_add_u32 v{vo[3]}, {3*(32768-1024)}, v{T+5}
    v_lshrrev_b32 v{T+4}, 5, v0
    v_bfe_u32 v{T+5}, v0, 1, 3
    v_xor_b32 v{T+5}, v{T+5}, v{T+4}
    v_lshlrev_b32 v{T+5}, 4, v{T+5}
    v_and_b32 v{T+6}, 31, v0
    v_lshl_add_u32 v{T+5}, v{T+6}, 7, v{T+5}
    v_lshlrev_b32 v{t0}, 2, v{T+6}
    s_lshl_b32 s{sT}, s{sHP}, 7
    v_xor_b32 v{vl}, s{sT}, v{T}
    s_mov_b32 s{sCnt}, 0x8000
    """)
    for i in range(4): st(f"v_xor_b32 v{aW[i]}, {hx(32*i)}, v{T+5}\n v_add_u32 v{aW[i]}, s{sAr}, v{aW[i]}")
    st(f"""
    s_lshr_b32 s{sT}, s{S_J}, 1
    s_mul_i32 s{sT}, s{sT}, 5120
    s_add_u32 s{sOa}, s{sU}, s{sT}
    s_and_b32 s{sT}, s{S_J}, 1
    s_lshl_b32 s{sT2}, s{sT}, 3
    s_add_u32 s{sOx}, s{sOa}, s{sT2}
    s_lshl_b32 s{sT2}, s{sHP}, 8
    s_add_u32 s{sOx}, s{sOx}, s{sT2}
    s_add_u32 s{sOx}, s{sOx}, 4096
    s_lshl_b32 s{sT}, s{sT}, 1
    s_add_u32 s{sT}, s{sT}, s{sHP}
    s_lshl_b32 s{sT}, s{sT}, 10
    s_add_u32 s{sOa}, s{sOa}, s{sT}
    s_mul_i32 s{sT}, s{S_J}, 3072
    s_add_u32 s{sU}, s{sU}, s{sT}
    s_lshl_b32 s{sT}, s{sHP}, 9
    s_add_u32 s{sU}, s{sU}, s{sT}
    s_add_u32 s{sU}, s{sU}, {20*1024}
    s_mul_i32 s{sT}, s{sK}, 5120
    s_add_u32 s{sT}, s{sT}, {hx(WS_ACT)}
    """)
    for i in range(4): st(f"s_add_u32 s{sAct[i]}, s{sAct[i]}, s{sT}")
    srd(a, sBS, P_BSP, 4096); srd(a, sW, P_WO, 640*1280)
    stamp(a, 1); st("s_barrier"); stamp(a, 2)
    def wsp(blk):
        L = []
        for b in range(8):
            x = ""
            if b & 3 == 0: x = f"s_add_u32 m0, s{sAr}, {(blk&1)*8192+b*1024}\n s_add_u32 s{sWo}, s{sWb[b>>2]}, s{sB}\n"
            x += f"buffer_load_dwordx4 v{vo[b&3]}, {s(sSP,4)}, s{sWo} offen offset:{(b&3)*1024} lds\n"
            if b == 7: x += f"s_add_u32 s{sB}, s{sB}, 128\n s_and_b32 s{sB}, s{sB}, 0x3ff"
            L.append((x, f"wsp{blk}"))
        return L
    def zld(f):
        ks, n = divmod(f, 3); x = ""
        if f % 12 == 0: x = f"s_mul_i32 s{sZo}, s{sZn}, 96\n s_add_u32 s{sZn}, s{sZn}, 128\n s_add_u32 s{sZo}, s{sZo}, s{sZb}\n s_and_b32 s{sZn}, s{sZn}, 0x3ff\n"
        elif n == 0: x = f"s_add_u32 s{sZo}, s{sZo}, 3072\n"
        return (x + f"buffer_load_dwordx4 {v(Z[f%NZ],4)}, v{vl}, {s(sWS,4)}, s{sZo} offen offset:{1024*n} sc1", f"z{f}")
    rW = lambda ks, th: [("@", f"wsp{ks>>2}"), (f"ds_read_b128 {v(W[th],4)}, v{aW[ks&3]} offset:{((ks>>2)&1)*8192+th*4096}", f"W{th}")]
    G = dict(m=0, q=[])
    DPG = cfg.get("dpg", 1)
    def gop():
        m = G["m"]; G["m"] += 1
        ks, th, n = m//6, (m % 6)//3, m % 3; f = 3*ks+n; ac = acc+48*th+16*n
        it = [("@", f"z{f}", f"W{th}"), f"{MF32} {v(ac,16)}, {v(Z[f%NZ],4)}, {v(W[th],4)}, {'0' if ks == 0 else v(ac,16)}"]
        if n == 2 and ks < 31: it += rW(ks+1, th)
        if th == 1 and f+NZ < 96: it.append(zld(f+NZ))
        if m % 24 == 21 and m//24 + 2 < 8: G["q"] = wsp(m//24 + 2)
        it += G["q"][:DPG]; G["q"] = G["q"][DPG:]
        if m == 191: it.append("; end of G")
        return it
    np_ = (cR-gS)*4
    dens = [[0]*4 for c in range(16)]
    for p in range(np_): dens[gS+p//4][p % 4] = 192*(p+1)//np_ - 192*p//np_
    pa = cfg.get("pa", 1)
    sc = attention(0, dens, gop, lambda c: ["rsw"], lambda c: [(lambda st_, c=c: stamp(a, 8+c))], lambda c, i: pa if (c, i) == (0, 0) and pa else None)
    sc.place(wsp(0) + wsp(1), 0, 0.05, 0.6)
    fl = f"buffer_load_dword v{t1}, v{t0}, {s(sWS,4)}, s{sFl} offen sc1"
    def poll(st_):
        st_(f"{name}_poll:"); st_.w("F")
        st_(f"v_cmp_ne_u32 vcc, 1, v{t1}\n s_cbranch_vccnz {name}_pretry\n {name}_pok:")
        stamp(a, 3)
    sc.place([(fl, "F")], gS-1, cfg.get("f0", 20)/100, cfg.get("f0", 20)/100)
    sc.place([poll] + [zld(f) for f in range(NZ)], gS-1, cfg.get("f1", 60)/100, 1.0)
    sc.place([rW(0, 0), rW(0, 1)], gS, 0.1, 0.2)
    z1 = 208; og = 220; gt = 222; tp = 224; aR = [228, 229, 230, 231]; vu = 232; vw = 234; aF = 240; aX = 241; vt = 242
    quads = lambda d, n: [acc+48*(d & 1)+16*n+4*(d >> 1), acc+48*(d & 1)+16*n+4*(d >> 1)+8]
    wl = sc.win[cR]; e = max(i for i, o in enumerate(wl) if isinstance(o, list) and "; end of G" in o)
    it = [f"""v_lshlrev_b32 v{tp}, 4, v0
    v_add_u32 v{aR[0]}, s{sAr}, v{tp}
    s_lshl_b32 s{sT}, s{S_TG}, 3
    s_add_u32 s{sT}, s{sT}, s{S_J}
    s_lshl_b32 s{sT}, s{sT}, 1
    s_add_u32 s{sT}, s{sT}, s{sTH}
    s_lshl_b32 s{sT}, s{sT}, 1
    s_add_u32 s{sT}, s{sT}, s{sHP}
    s_mul_i32 s{sT}, s{sT}, 3072
    s_add_u32 s{sT}, s{sT}, {hx(WS_Z1)}"""]
    it += [(f"buffer_load_dwordx4 {v(z1+4*n,4)}, v{tp}, {s(sWS,4)}, s{sT} offen offset:{1024*n}", "z1") for n in range(3)]
    it += [(f"""s_lshl_b32 s{sT}, s{S_TG}, 1
    s_add_u32 s{sT}, s{sT}, s{sTH}
    s_lshl_b32 s{sT2}, s{sT}, 6
    s_lshl_b32 s{sT}, s{sT}, 7
    s_add_u32 s{sT}, s{sT}, {hx(WS_GATE)}
    v_lshrrev_b32 v{vt}, 1, v{t0}
    buffer_load_dword v{gt}, v{t0}, {s(sWS,4)}, s{sT} offen
    buffer_load_ushort v{og+1}, v{vt}, {s(sBS,4)}, s{sT2} offen""", "z1")]
    for d in (2, 1, 3):
        for n in range(3):
            for e2, q in enumerate(quads(d, n)): it.append((f"ds_write_b128 v{aR[0]}, {v(q,4)} offset:{((d-1)*6+2*n+e2)*1024}", "rsw"))
        it.append(f"s_xor_b32 s{sT}, s{sK}, {d}\n s_mul_i32 s{sT}, s{sT}, {AA}\n v_add_u32 v{aR[d]}, s{sT}, v{tp}")
    sc.place(it, cR, (e+3)/len(wl), 0.9)
    it = []
    rd = lambda n: [(f"ds_read_b128 {v(q,4)}, v{aR[d]} offset:{((d-1)*6+2*n+e2)*1024}", f"rs{n}{e2}") for e2 in range(2) for d in (1, 2, 3) for q in [quads(d, n)[e2]]]
    it += rd(0)
    it += [[("@", "z1"), f"""v_sub_f32 v{og}, 1.0, v{gt}
    v_lshlrev_b32 v{og+1}, 16, v{og+1}
    v_bfe_u32 v{tp}, v0, 4, 1
    v_mul_f32 v{og+1}, v{og}, v{og+1}"""], f"""v_mul_u32_u24 v{vu}, {44*1024}, v{tp}
    v_and_b32 v{tp}, 15, v0
    v_lshl_add_u32 v{vu}, v{tp}, 4, v{vu}
    v_lshrrev_b32 v{tp}, 5, v0""", f"""v_lshl_add_u32 v{vu+1}, v{tp}, 9, v{vu}
    v_lshl_add_u32 v{vu}, v{tp}, 8, v{vu}"""]
    for n in range(3):
        nr = rd(n+1) if n < 2 else []
        for e2 in range(2):
            for h2 in (0, 2):
                o_, p1, p2, p3 = [quads(d, n)[e2]+h2 for d in range(4)]; zi = z1+4*n+2*e2+h2//2
                it.append([("@", f"rs{n}{e2}"), f"""v_pk_add_f32 {v(o_,2)}, {v(o_,2)}, {v(p1,2)}
                v_pk_add_f32 {v(p2,2)}, {v(p2,2)}, {v(p3,2)}
                v_lshlrev_b32 v{tp}, 16, v{zi}
                v_pk_add_f32 {v(o_,2)}, {v(o_,2)}, {v(p2,2)}"""])
                it.append(f"""v_and_b32 v{tp+1}, 0xffff0000, v{zi}
                v_pk_fma_f32 {v(o_,2)}, {v(o_,2)}, {v(og,2)}, {v(og,2)} op_sel:[0,0,1] op_sel_hi:[1,0,1]
                v_pk_mul_f32 {v(o_,2)}, {v(o_,2)}, {v(tp,2)}
                v_cvt_pk_bf16_f32 v{zi}, v{o_}, v{o_+1}""")
                it += nr[:2]; nr = nr[2:]
        it.append(f"buffer_store_dwordx4 {v(z1+4*n,4)}, v{vu}, {s(sWS,4)}, s{sU} offen offset:{1024*n} sc1")
    it.append(lambda st_: stamp(a, 4))
    it += vo160(vw, tp)
    it.append(f"""v_bfe_u32 v{tp}, v0, 2, 2
    v_lshrrev_b32 v{tp+1}, 5, v0
    v_mad_u32_u24 v{tp}, v{tp+1}, 40, v{tp}
    v_bfe_u32 v{tp+1}, v0, 4, 1""")
    it.append(f"""v_lshl_add_u32 v{aF}, v{tp+1}, 2, v{tp}
    v_mad_u32_u24 v{aX}, v{tp+1}, 20, v{tp}
    v_and_b32 v{tp}, 3, v0
    s_mul_i32 s{sT}, s{sK}, {SG}
    s_add_u32 s{sT}, s{sT}, {SG0}
    v_lshl_add_u32 v{tp}, v{tp}, 3, s{sT}""")
    it.append(f"""v_mul_u32_u24 v{aF}, 160, v{aF}
    v_mul_u32_u24 v{aX}, 160, v{aX}
    v_add_u32 v{aF}, v{aF}, v{tp}
    v_add_u32 v{aX}, v{aX}, v{tp}
    s_mul_i32 s{sWo}, s{sK}, {160*1280}
    s_mul_i32 s{sT2}, s{S_J}, 160
    s_add_u32 s{sWo}, s{sWo}, s{sT2}
    s_add_u32 s{sWo}, s{sWo}, {80*1280}
    s_sub_u32 s{sZo}, s{sAr}, s{sT}""")
    sc.place(it, cR+1, 0.0, 0.95)
    WO = lambda ks, c: BIG+4*(5*ks+c)
    def frags(half, tag):
        L = []
        for ks in (2*half, 2*half+1):
            for c in range(5):
                for p in range(2): L.append((f"ds_read_b64_tr_b16 {v(WO(ks,c)+2*p,2)}, v{aF} offset:{(20*(ks&1)+8*p)*160+32*c}", tag))
        for c in range(5): L.append((f"ds_read_b64_tr_b16 {v(WO(4,c)+2*half,2)}, v{aX} offset:{16*160+32*c}", tag))
        return L
    sc.place(dma160(vw, sW, sWo, sAr, 13, "wol") + frags(0, "woe"), cR+2, 0.0, 0.9)
    if cR+3 <= 16: sc.place([[("@", "wol"), f"v_add_u32 v{aF}, s{sZo}, v{aF}\n v_add_u32 v{aX}, s{sZo}, v{aX}"]] + frags(1, "wof"), cR+3, 0.3 if cR+3 < 16 else 0.0, 0.9)
    sc.emit(st)
    O = r.O; S = r.S; D = 208; t = 244; mx = 226; vA = [4, 5]; aP = [6, 7, 8, 9, 10]; vs = 11
    st(f"""s_mul_i32 s{sT}, s{sK}, 6144
    v_add_u32 v{t}, s{sT}, v{r.aK}
    s_mov_b32 s{sN}, 0""")
    st.w("woe")
    stamp(a, 24); st("s_barrier"); stamp(a, 25)
    for th in range(2):
        for i in range(3): st(f"ds_read_b128 {v(S[th]+4*i,4)}, v{t} offset:{(3*th+i)*1024}", f"po{th}{i}")
    st(f"v_lshlrev_b32 v{vA[0]}, 4, v0\n v_add_u32 v{vA[1]}, 0x1000, v{vA[0]}")
    for i in (2, 0, 1):
        for th in range(2):
            st.w(f"po{th}{i}")
            for h2 in (0, 2): st(f"v_pk_add_f32 {v(O[th]+4*i+h2,2)}, {v(O[th]+4*i+h2,2)}, {v(S[th]+4*i+h2,2)}")
    st(f"{name}_fin:")
    for i in range(4): st(f"v_permlane32_swap_b32 v{O[0]+8+i}, v{O[1]+8+i}")
    L = O[1]+8
    st(f"""
    v_rcp_f32 v{t}, v{L}
    v_cmp_ngt_f32 vcc, 0x5f800000, v{L}
    s_mov_b32 s{sT}, 0x1f800000
    v_mul_f32 v{t}, v{t}, v{gt}
    v_cmp_nlt_f32 {s(sE,2)}, s{sT}, v{L}
    v_mov_b32 v{t+2}, v{t}
    v_mov_b32 v{t+4}, v{t}
    s_or_b64 {s(sE,2)}, {s(sE,2)}, vcc
    v_pk_mul_f32 {v(O[0]+8,2)}, {v(O[0]+8,2)}, {v(t,2)} op_sel_hi:[1,0]
    v_permlane32_swap_b32 v{t+2}, v{t+4}
    v_pk_mul_f32 {v(O[0]+10,2)}, {v(O[0]+10,2)}, {v(t,2)} op_sel_hi:[1,0]
    """)
    for th in range(2):
        for i in range(0, 8, 2): st(f"v_pk_mul_f32 {v(O[th]+i,2)}, {v(O[th]+i,2)}, {v(t+2+2*th,2)} op_sel_hi:[1,0]")
    st(f"v_pk_mul_f32 {v(t+6,2)}, {v(O[0]+8,2)}, 0 op_sel_hi:[1,0]")
    for k_, q in enumerate([O[0]+10] + [O[th]+i for th in range(2) for i in range(0, 8, 2)]):
        st(f"v_pk_fma_f32 {v(t+6,2)}, {v(q,2)}, 0, {v(t+6,2)} op_sel_hi:[1,0,1]")
        if k_ > 0: st(f"v_cvt_pk_bf16_f32 v{D+k_-1}, v{q}, v{q+1}")
    st(f"""
    v_cmp_u_f32 vcc, v{t+6}, v{t+7}
    v_cvt_pk_bf16_f32 v{D+8}, v{O[0]+8}, v{O[0]+9}
    v_cvt_pk_bf16_f32 v{D+9}, v{O[0]+10}, v{O[0]+11}
    s_or_b64 vcc, {s(sE,2)}, vcc
    s_cbranch_vccnz {name}_slow
    {name}_pub:
    buffer_store_dwordx4 {v(D,4)}, v{vu}, {s(sWS,4)}, s{sOa} offen sc1
    buffer_store_dwordx4 {v(D+4,4)}, v{vu}, {s(sWS,4)}, s{sOa} offen offset:512 sc1
    buffer_store_dwordx2 {v(D+8,2)}, v{vu+1}, {s(sWS,4)}, s{sOx} offen sc1
    """)
    stamp(a, 26)
    if cR+3 > 16:
        st.w("wol"); st(f"v_add_u32 v{aF}, s{sZo}, v{aF}\n v_add_u32 v{aX}, s{sZo}, v{aX}")
        st.run(frags(1, "wof"))
    act = [12+20*i for i in range(4)]
    srd(a, sSP, P_OUT, 2048*1280)
    st(f"""
    v_add_u32 v{aP[0]}, s{sAr}, v{vA[0]}
    s_mul_i32 s{sT}, s{sK}, 5120
    s_add_u32 s{sT}, s{sT}, {KV0}
    v_add_u32 v{aP[4]}, s{sT}, v{vA[0]}
    v_and_b32 v{t}, 15, v0
    v_mul_u32_u24 v{vs}, 0x500, v{t}
    v_lshrrev_b32 v{t}, 4, v0
    v_lshl_add_u32 v{vs}, v{t}, 3, v{vs}
    v_mov_b32 v{aP[1]}, v{aR[1]}
    v_mov_b32 v{aP[2]}, v{aR[2]}
    v_mov_b32 v{aP[3]}, v{aR[3]}
    s_lshl_b32 s{sT}, s{S_TG}, 2
    s_add_u32 s{sT}, s{sT}, s{sK}
    s_mul_i32 s{sO}, s{sT}, {16*1280}
    s_mul_i32 s{sT2}, s{S_J}, 160
    s_add_u32 s{sO}, s{sO}, s{sT2}
    """)
    def ald(st_, i0):
        for i in range(i0, 4):
            for ks in range(5): st_(f"buffer_load_dwordx4 {v(act[i]+4*ks,4)}, v{vA[ks>>2]}, {s(sWS,4)}, s{sAct[i]} offen offset:{1024*(ks&3)} sc1", f"{name}_o{i}")
    ald(st, 0)
    st.w("wof")
    ac2 = [208, 228]; tc = 250
    for i in range(4):
        chk_tile(st, f"{name}_o{i}", act[i], 20, tc, sCnt)
        stamp(a, 27 if i == 0 else 28) if i in (0, 3) else None
        if i == cfg.get("t2", 1): st("s_barrier")
        ex = {}
        if i > 0:
            for c in range(5): ex[c] = (f"ds_write_b128 v{aP[0]}, {v(ac2[(i-1)&1]+4*c,4)} offset:{(i-1)*5120+c*1024}", "pw")
        pr = act[:3] + [ac2[0]]
        if i == 3:
            ex[8] = [("@", "pw"), "s_barrier"]
            for c in range(5):
                for d in range(4): ex.setdefault(9+(4*c+d)*3//4, []).append((f"ds_read_b128 {v(pr[d]+4*c,4)}, v{aP[d+1]} offset:{(d*5120 if d < 3 else 0)+c*1024}", f"pr{c}"))
        for ks in range(5):
            for c in range(5):
                q = ac2[i & 1]+4*c
                st(f"{MF16} {v(q,4)}, {v(WO(ks,c),4)}, {v(act[i]+4*ks,4)}, {'0' if ks == 0 else v(q,4)}")
                if 5*ks+c in ex: st.run(ex[5*ks+c])
    for c in range(5):
        st.w(f"pr{c}"); q = ac2[1]+4*c
        for h2 in (0, 2):
            p = [x+4*c+h2 for x in pr]
            st(f"v_pk_add_f32 {v(p[0],2)}, {v(p[0],2)}, {v(p[1],2)}\n v_pk_add_f32 {v(p[2],2)}, {v(p[2],2)}, {v(p[3],2)}")
        for h2 in (0, 2): st(f"v_pk_add_f32 {v(pr[0]+4*c+h2,2)}, {v(pr[0]+4*c+h2,2)}, {v(pr[2]+4*c+h2,2)}")
        for h2 in (0, 2): st(f"v_pk_add_f32 {v(q+h2,2)}, {v(q+h2,2)}, {v(pr[0]+4*c+h2,2)}")
        st(f"""v_cvt_pk_bf16_f32 v{q}, v{q}, v{q+1}
        v_cvt_pk_bf16_f32 v{q+1}, v{q+2}, v{q+3}
        buffer_store_dwordx2 {v(q,2)}, v{vs}, {s(sSP,4)}, s{sO} offen offset:{32*c}""")
    wend(a, name)
    x = St(a)
    x(f"""{name}_pretry:
    s_cmp_eq_u32 s{sCnt}, 0
    s_cbranch_scc1 {name}_pok
    s_sub_u32 s{sCnt}, s{sCnt}, 1
    {fl}
    s_waitcnt vmcnt(0)
    s_branch {name}_poll""")
    for i in range(4):
        x(f"{name}_o{i}_retry:\n s_cmp_eq_u32 s{sCnt}, 0\n s_cbranch_scc1 {name}_o{i}_ok\n s_sub_u32 s{sCnt}, s{sCnt}, 1")
        ald(x, i); x(f"s_branch {name}_o{i}_chk")
    slow_path(a, name, sWS, sT, sN, S_, mx, t)

def slow_path(a, name, sWS, sT, sN, S_, mx, t):
    S = r.S; O = r.O
    sP = S_(); sKo = S_(); sK8o = S_(); sVo = S_()
    a(f"""
    {name}_slow:
    s_cmp_lg_u32 s{sN}, 0
    s_cbranch_scc1 {name}_pub
    v_mov_b32 v{mx}, 0xff800000
    v_mov_b32 v{mx+1}, 0xff800000
    s_mov_b32 s{sP}, 0
    {name}_spass:
    s_mov_b32 s{sN}, 0
    """)
    for q in range(0, 32, 2): a(f"v_mov_b64 {v(O[0]+q,2)}, 0")
    a(f"""
    {name}_sloop:
    s_lshr_b32 s{sT}, s{sN}, 2
    s_mul_i32 s{sT}, s{sT}, {KVS}
    s_add_u32 s{sT}, s{sT}, {hx(WS_KV-KV0)}
    s_and_b32 s{sVo}, s{sN}, 3
    s_lshl_b32 s{sKo}, s{sVo}, 10
    s_add_u32 s{sKo}, s{sKo}, s{sT}
    s_mul_i32 s{sVo}, s{sVo}, 1536
    s_add_u32 s{sVo}, s{sVo}, s{sT}
    s_add_u32 s{sVo}, s{sVo}, 5120
    s_bfe_u32 s{sK8o}, s{sN}, 0x10001
    s_lshl_b32 s{sK8o}, s{sK8o}, 9
    s_add_u32 s{sT}, s{sT}, s{sK8o}
    s_and_b32 s{sK8o}, s{sN}, 1
    s_lshl_b32 s{sK8o}, s{sK8o}, 3
    s_add_u32 s{sK8o}, s{sK8o}, s{sT}
    s_add_u32 s{sK8o}, s{sK8o}, 4096
    buffer_load_dwordx4 {v(r.K16,4)}, v{r.aK}, {s(sWS,4)}, s{sKo} offen sc1
    buffer_load_dwordx2 {v(r.K8,2)}, v{r.aK8}, {s(sWS,4)}, s{sK8o} offen sc1
    buffer_load_dwordx4 {v(r.V0,4)}, v{r.aV}, {s(sWS,4)}, s{sVo} offen sc1
    buffer_load_dwordx4 {v(r.V1,4)}, v{r.aV}, {s(sWS,4)}, s{sVo} offen offset:768 sc1
    s_waitcnt vmcnt(0)
    """)
    for th in range(2):
        a(f"{MF32} {v(S[th],16)}, {v(r.K16,4)}, {v(r.Q16[th],4)}, 0")
        a(f"{MF8} {v(S[th],16)}, {v(r.K8,2)}, {v(r.Q8+2*th,2)}, {v(S[th],16)}")
    a(f"""
    s_cmp_lg_u32 s{sP}, 0
    s_nop 10
    s_cbranch_scc1 {name}_s2
    """)
    for th in range(2):
        for q in range(0, 16, 2): a(f"v_max3_f32 v{mx+th}, v{S[th]+q}, v{S[th]+q+1}, v{mx+th}")
    a(f"s_branch {name}_snext\n {name}_s2:")
    for th in range(2):
        for q in range(16): a(f"v_sub_f32 v{S[th]+q}, v{S[th]+q}, v{mx+th}")
        for q in range(16): a(f"v_exp_f32 v{S[th]+q}, v{S[th]+q}")
        for q in range(8): a(f"v_cvt_pk_bf16_f32 v{S[th]+q}, v{S[th]+2*q}, v{S[th]+2*q+1}")
        a(f"""
        s_nop 1
        {MF32} {v(O[th],16)}, {v(r.V0,4)}, {v(S[th],4)}, {v(O[th],16)}
        {MF32} {v(O[th],16)}, {v(r.V1,4)}, {v(S[th]+4,4)}, {v(O[th],16)}
        """)
    a(f"""
    {name}_snext:
    s_add_u32 s{sN}, s{sN}, 1
    s_cmp_lt_u32 s{sN}, 64
    s_cbranch_scc1 {name}_sloop
    s_cmp_lg_u32 s{sP}, 0
    s_nop 8
    s_cbranch_scc1 {name}_fin
    s_mov_b32 s{sP}, 1
    v_mov_b64 {v(t,2)}, {v(mx,2)}
    s_nop 1
    v_permlane32_swap_b32 v{mx}, v{t}
    v_permlane32_swap_b32 v{mx+1}, v{t+1}
    v_max_f32 v{mx}, v{mx}, v{t}
    v_max_f32 v{mx+1}, v{mx+1}, v{t+1}
    s_branch {name}_spass
    """)
```

```python
from kb import *
def waveB(E, st):
    a = E["a"]; name = E["name"]; cfg = E["cfg"]; S_ = E["S_"]; cR = E["cR"]; T = E["T"]
    sWS, sW, sT, sT2, sO, sN, sK, sTH, sHP, sE, sAct = [E[k] for k in "sWS sW sT sT2 sO sN sK sTH sHP sE sAct".split()]
    sKVo = S_(); sKVb = S_(); sSg = S_(); sWo = S_(); sC = S_(2); sCnt = S_(); sFl = S_()
    vz = 4; aF = 5; vw = 6; vA = [11, 252]; t0, t1 = 253, 254
    st(f"""{name}_B:
    s_mul_i32 s{sT}, s{sK}, 3072
    s_add_u32 s{sKVb}, s{sT}, {KV0}
    v_add_u32 v{vz}, s{sT}, v{T}
    s_lshr_b32 s{sKVo}, s{S_TG}, 1
    s_mul_i32 s{sKVo}, s{sKVo}, {KVS}
    s_add_u32 s{sKVo}, s{sKVo}, {hx(WS_KV)}
    """)
    def kv(c):
        L = [(f"s_add_u32 m0, s{sKVb}, {slot(c)}\n s_nop 0\n" if i == 0 else "") + f"buffer_load_dwordx4 v{vz}, {s(sWS,4)}, s{sKVo} offen offset:{1024*i} lds" for i in range(3)]
        L[2] += f"\n s_add_u32 s{sKVo}, s{sKVo}, {KVS}\n s_cmp_eq_u32 s{sKVo}, {hx(WS_KV+16*KVS)}\n s_cselect_b32 s{sKVo}, {hx(WS_KV)}, s{sKVo}"
        return [(x, f"kv{c}") for x in L]
    st.run(kv(0))
    st(E["qld"], "Q")
    zr = BIG; ss = BIG+12; tp = BIG+20; t = BIG+24; vh = BIG+32; vt = BIG+33
    st(f"""
    v_lshrrev_b32 v{vh}, 5, v0
    v_and_b32 v{vt}, 31, v0
    s_lshl_b32 s{sT}, s{S_TG}, 1
    s_add_u32 s{sT2}, s{sT}, s{sHP}
    s_lshl_b32 s{sT}, s{sT2}, 11
    s_add_u32 s{sT}, s{sT}, {hx(WS_ST)}
    v_lshlrev_b32 v{t}, 6, v{vt}
    v_lshl_add_u32 v{t}, v{vh}, 5, v{t}
    buffer_load_dwordx4 {v(ss,4)}, v{t}, {s(sWS,4)}, s{sT} offen
    buffer_load_dwordx4 {v(ss+4,4)}, v{t}, {s(sWS,4)}, s{sT} offen offset:16""", "ss")
    st(f"""
    s_lshl_b32 s{sT}, s{S_TG}, 3
    s_add_u32 s{sT}, s{sT}, s{S_J}
    s_lshl_b32 s{sT}, s{sT}, 2
    s_add_u32 s{sT}, s{sT}, s{sK}
    s_mul_i32 s{sT}, s{sT}, 3072
    s_add_u32 s{sT}, s{sT}, {hx(WS_Z2R)}
    """)
    for n in range(3): st(f"buffer_load_dwordx4 {v(zr+4*n,4)}, v{T}, {s(sWS,4)}, s{sT} offen offset:{1024*n}", "zr")
    st.run(kv(1))
    kv_addr(st, t)
    st.run(vo160(vw, t))
    srd(a, sW, P_WOUT, 768*1280)
    st(f"""
    s_mul_i32 s{sSg}, s{sK}, {SG}
    s_add_u32 s{sSg}, s{sSg}, {SG0}
    s_mul_i32 s{sWo}, s{sK}, {192*1280}
    s_mul_i32 s{sT}, s{S_J}, 160
    s_add_u32 s{sWo}, s{sWo}, s{sT}
    v_lshrrev_b32 v{t}, 2, v0
    v_mul_u32_u24 v{aF}, 160, v{t}
    v_and_b32 v{t}, 3, v0
    v_lshl_add_u32 v{aF}, v{t}, 3, v{aF}
    v_add_u32 v{aF}, s{sSg}, v{aF}
    v_mov_b32 v{vA[0]}, v{T}
    v_add_u32 v{vA[1]}, 0x1000, v{T}
    s_mul_i32 s{sT}, s{sK}, 6144
    s_add_u32 s{sT}, s{sT}, {hx(WS_ACT+20*1024)}
    s_mov_b32 s{sCnt}, 0x8000
    s_mov_b32 s{sC}, {fl(1/768)}
    """)
    for i in range(4): st(f"s_add_u32 s{sAct[i]}, s{sAct[i]}, s{sT}")
    st(f"""
    s_mul_i32 s{sO}, s{sT2}, 6144
    s_mul_i32 s{sT}, s{S_J}, {128*3072}
    s_add_u32 s{sO}, s{sO}, s{sT}
    s_lshl_b32 s{sT}, s{sTH}, 7
    s_add_u32 s{sO}, s{sO}, s{sT}
    s_add_u32 s{sO}, s{sO}, {hx(WS_Z2N)}
    s_lshl_b32 s{sT}, s{S_J}, 5
    s_add_u32 s{sT}, s{sT}, s{S_TG}
    s_lshl_b32 s{sT}, s{sT}, 2
    s_add_u32 s{sT}, s{sT}, s{sK}
    s_lshl_b32 s{sT}, s{sT}, 2
    s_add_u32 s{sFl}, s{sT}, {hx(WS_FLAG)}
    s_add_u32 s{sT}, s{sKVb}, {slot(2)}
    v_lshlrev_b32 v{t}, 5, v{vt}
    v_lshl_add_u32 v{t}, v{vh}, 3, v{t}
    v_add_u32 v{t}, s{sT}, v{t}
    v_lshrrev_b32 v{t+1}, 4, v0
    v_bfe_u32 v{t+2}, v0, 2, 2
    v_lshl_add_u32 v{t+2}, v{t+1}, 3, v{t+2}
    v_and_b32 v{t+3}, 3, v0
    v_lshlrev_b32 v{t+3}, 3, v{t+3}
    v_lshl_add_u32 v{t+2}, v{t+2}, 5, v{t+3}
    v_add_u32 v{t+2}, s{sT}, v{t+2}
    v_mul_u32_u24 v{t+4}, 3072, v{vh}
    v_and_b32 v{t+5}, 1, v{t+1}
    v_lshl_add_u32 v{t+4}, v{t+5}, 9, v{t+4}
    v_and_b32 v{t+5}, 7, v0
    v_lshl_add_u32 v{t+4}, v{t+5}, 4, v{t+4}
    v_bfe_u32 v{t+5}, v0, 3, 1
    v_lshl_add_u32 v{t+4}, v{t+5}, 8, v{t+4}
    v_cmp_eq_u32 vcc, 0, v0
    v_mov_b32 v{t1}, 1
    s_nop 0
    v_cndmask_b32 v{t0}, -4.0, v0, vcc
    """)
    st.w("kv0")
    stamp(a, 1); st("s_barrier"); stamp(a, 2)
    st.w("ss")
    st(f"""
    v_pk_add_f32 {v(ss,2)}, {v(ss,2)}, {v(ss+2,2)}
    v_pk_add_f32 {v(ss+4,2)}, {v(ss+4,2)}, {v(ss+6,2)}
    v_pk_add_f32 {v(ss,2)}, {v(ss,2)}, {v(ss+4,2)}
    v_mov_b64 {v(ss+2,2)}, {v(ss,2)}
    s_nop 1
    v_permlane32_swap_b32 v{ss}, v{ss+2}
    v_permlane32_swap_b32 v{ss+1}, v{ss+3}
    v_pk_add_f32 {v(ss,2)}, {v(ss,2)}, {v(ss+2,2)}
    v_pk_mul_f32 {v(ss,2)}, {v(ss,2)}, {s(sC,2)} op_sel_hi:[1,0]
    v_fma_f32 v{ss+1}, -v{ss}, v{ss}, v{ss+1}
    v_max_f32 v{ss+1}, 0, v{ss+1}
    v_add_f32 v{ss+1}, {fl(1e-5)}, v{ss+1}
    v_rsq_f32 v{ss+2}, v{ss+1}
    """)
    st.w("zr")
    st(f"v_mul_f32 v{ss+4}, v{ss}, v{ss+2}")
    for i in range(12):
        st(f"""
        v_lshlrev_b32 v{tp+2*(i&1)}, 16, v{zr+i}
        v_and_b32 v{tp+2*(i&1)+1}, 0xffff0000, v{zr+i}
        v_pk_fma_f32 {v(tp+2*(i&1),2)}, {v(tp+2*(i&1),2)}, {v(ss+2,2)}, {v(ss+4,2)} op_sel_hi:[1,0,0] neg_lo:[0,0,1] neg_hi:[0,0,1]
        v_cvt_pk_bf16_f32 v{zr+i}, v{tp+2*(i&1)}, v{tp+2*(i&1)+1}
        """)
        if i & 1: st(f"ds_write_b64 v{t}, {v(zr+i-1,2)} offset:{(i>>2)*1024+((i>>1)&1)*16}")
        if i & 3 == 3:
            for p in range(2): st(f"ds_read_b64_tr_b16 {v(zr+i-3+2*p,2)}, v{t+2} offset:{(i>>2)*1024+p*128}", f"tr{i>>2}")
    for n in range(3):
        st.w(f"tr{n}"); st(f"buffer_store_dwordx4 {v(zr+4*n,4)}, v{t+4}, {s(sWS,4)}, s{sO} offen offset:{1024*n} sc1")
    stamp(a, 3)
    pb = cfg.get("pb", 0)
    sc = attention(1, [[0]*4]*16, None, lambda c: [f"kv{c+1}"] + (["woe"] if c == cR+1 else []), lambda c: [(lambda st_, c=c: stamp(a, 8+c))], lambda c, i: pb if (c, i) == (0, 0) and pb else None)
    f = cfg.get("ff", 60)/100
    sc.place([[f"s_waitcnt vmcnt(0)\n buffer_store_dword v{t1}, v{t0}, {s(sWS,4)}, s{sFl} offen sc1", lambda st_: stamp(a, 4)]] + kv(2), 0, f, min(1.0, f+0.15))
    for c in range(13): sc.place(kv(c+3), c+1, 0.02, 0.15)
    WU = lambda ks, c: BIG+4*(5*ks+c)
    w0 = cfg.get("w0", 1)
    for pc in range(3):
        sc.place([("@", "wur")] + dma160(vw, sW, sWo, sSg, 10, "wud"), w0+3*pc, 0.25, 0.9)
        sc.place([("@", "wud")] + [(f"ds_read_b64_tr_b16 {v(WU(2*pc+k2,c)+2*p,2)}, v{aF} offset:{k2*5120+p*2560+32*c}", "wur") for k2 in range(2) for c in range(5) for p in range(2)], w0+3*pc+2, 0.2, 0.95)
    sc.place([[("@", "wur"), f"""s_mov_b32 s{sW}, s{P_WO}
    s_mov_b32 s{sW+1}, s{P_WO+1}
    s_mov_b32 s{sW+2}, {640*1280}
    s_mul_i32 s{sWo}, s{sK}, {160*1280}
    s_mul_i32 s{sT}, s{S_J}, 160
    s_add_u32 s{sWo}, s{sWo}, s{sT}"""]] + dma160(vw, sW, sWo, sSg, 13, "woe", True), w0+9, 0.25, 0.9)
    act = [224, 12, 36, 60]
    def ald(i): return [(f"buffer_load_dwordx4 {v(act[i]+4*ks,4)}, v{vA[ks>>2]}, {s(sWS,4)}, s{sAct[i]} offen offset:{1024*(ks&3)} sc1", f"{name}_u{i}") for ks in range(6)]
    aP = [5, 6, 7, 8, 9]; aO = 10
    sc.place([f"""s_mul_i32 s{sT}, s{sK}, 6144
    v_add_u32 v{aO}, s{sT}, v{r.aK}
    s_mul_i32 s{sT}, s{sK}, 5120
    v_add_u32 v{aP[4]}, s{sT}, v{r.aK}"""] + [f"""s_xor_b32 s{sT}, s{sK}, {d}
    s_mul_i32 s{sT}, s{sT}, 15360
    s_add_u32 s{sT}, s{sT}, {PB0}
    v_add_u32 v{aP[d]}, s{sT}, v{vA[0]}""" for d in range(4)], 15, 0.3, 0.8)
    sc.place(ald(0), 16, cfg.get("u0", 50)/100, 0.95)
    sc.emit(st)
    for th in range(2):
        if th: st("s_nop 8")
        for i in range(3): st(f"ds_write_b128 v{aO}, {v(r.O[th]+4*i,4)} offset:{(3*th+i)*1024}", "po")
    st.run(ald(1))
    st.w("po")
    stamp(a, 24); st("s_barrier"); stamp(a, 25)
    st.run(ald(2) + ald(3))
    ac = [84, 224, 84, 224]; tc = 250; pr = [12, 36, 84]
    for i in range(4):
        chk_tile(st, f"{name}_u{i}", act[i], 24, tc, sCnt)
        stamp(a, 26+i)
        ex = {}
        if i > 0:
            for c in range(5): ex[c] = (f"ds_write_b128 v{aP[0]}, {v(ac[i-1]+4*c,4)} offset:{(i-1)*5120+c*1024}", "pw")
        if i == 3:
            ex[9] = [("@", "pw"), "s_barrier"]
            for c in range(5):
                for d in range(3): ex[10+3*c+d] = (f"ds_read_b128 {v(pr[d]+4*c,4)}, v{aP[d+1]} offset:{d*5120+c*1024}", f"pr{c}")
        for ks in range(6):
            for c in range(5):
                q = ac[i]+4*c
                st(f"{MF16} {v(q,4)}, {v(WU(ks,c),4)}, {v(act[i]+4*ks,4)}, {'0' if ks == 0 else v(q,4)}")
                if 5*ks+c in ex: st.run(ex[5*ks+c])
    for c in range(5):
        st.w(f"pr{c}"); q = ac[3]+4*c
        for h2 in (0, 2): st(f"v_pk_add_f32 {v(pr[0]+4*c+h2,2)}, {v(pr[0]+4*c+h2,2)}, {v(pr[1]+4*c+h2,2)}")
        for h2 in (0, 2): st(f"v_pk_add_f32 {v(pr[0]+4*c+h2,2)}, {v(pr[0]+4*c+h2,2)}, {v(pr[2]+4*c+h2,2)}")
        for h2 in (0, 2): st(f"v_pk_add_f32 {v(q+h2,2)}, {v(q+h2,2)}, {v(pr[0]+4*c+h2,2)}")
        st(f"ds_write_b128 v{aP[4]}, {v(q,4)} offset:{c*1024}")
    st("s_waitcnt lgkmcnt(0)")
    stamp(a, 30)
    st("s_barrier")
    wend(a, name)
    x = St(a)
    for i in range(4):
        x(f"{name}_u{i}_retry:\n s_cmp_eq_u32 s{sCnt}, 0\n s_cbranch_scc1 {name}_u{i}_ok\n s_sub_u32 s{sCnt}, s{sCnt}, 1")
        for k_ in range(i, 4): x.run(ald(k_))
        x(f"s_branch {name}_u{i}_chk")
```

```python
from asmlib import *
class St:
    def __init__(self, a):
        self.a = a; self.vm = {}; self.lg = {}
    def fork(self):
        o = St(self.a); o.vm = dict(self.vm); o.lg = dict(self.lg); return o
    def __call__(self, text, tag=None):
        for l in text.strip("\n").split("\n"):
            l = l.strip()
            if not l: continue
            self.a(l)
            if l.startswith(("buffer_", "global_")): d = self.vm
            elif l.startswith("ds_"): d = self.lg
            elif l.startswith("s_waitcnt"):
                for m in re.finditer(r"(vmcnt|lgkmcnt)\((\d+)\)", l): self._done(self.vm if m.group(1) == "vmcnt" else self.lg, int(m.group(2)))
                continue
            else:
                assert not l.startswith(("s_load", "s_buffer_load")) or not self.lg, l
                continue
            for k in d: d[k] += 1
            if tag is not None: d[tag] = 0
    def _done(self, d, n):
        for k in [k for k, x in d.items() if x >= n]: del d[k]
    def w(self, *tags):
        nv = min([self.vm[t] for t in tags if t in self.vm], default=None)
        nl = min([self.lg[t] for t in tags if t in self.lg], default=None)
        p = []
        if nv is not None: p.append(f"vmcnt({min(nv, 63)})")
        if nl is not None: p.append(f"lgkmcnt({min(nl, 15)})")
        if p: self("s_waitcnt " + " ".join(p))
    def run(self, it):
        if isinstance(it, str): self(it)
        elif callable(it): it(self)
        elif isinstance(it, list):
            for x in it: self.run(x)
        elif it[0] == "@": self.w(*it[1:])
        else: self(it[0], it[1])
class Sched:
    def __init__(self): self.win = [[]]; self.ex = {}
    def op(self, it): self.win[-1].append(it)
    def next(self): self.win.append([])
    def place(self, items, w, f0=0.0, f1=1.0):
        n = len(self.win[w])
        for i, it in enumerate(items):
            p = int(n * (f0 + (f1 - f0) * (i + 0.5) / len(items)))
            self.ex.setdefault((w, min(p, n - 1)), []).append(it)
    def emit(self, st):
        for w, ops in enumerate(self.win):
            for p, o in enumerate(ops):
                for it in self.ex.get((w, p), []): st.run(it)
                st.run(o)
```

```python
import sys, os
sys.path.insert(0, os.path.dirname(__file__))
from common import *
NAME = "gated_mix__grouped_kv_mqa__mixer_gmlp__prompt"
def build(kernels):
    ref = open(f"cdna_kernels/{NAME}.s.ref").read().split("\n")
    head = [l for l in ref if l.startswith(";") and "@launch" not in l and "Override" not in l and "grid=ceil" not in l]
    out = head[:]
    for n, (a, nv, lds, blk) in kernels:
        out.append(f"; @launch kernel={n} grid=(256,1,1) block=({blk},1,1) lds={lds}")
    out.append('.amdgcn_target "amdgcn-amd-amdhsa--gfx950"\n.text')
    bad = 0
    for n, (a, nv, lds, blk) in kernels:
        bad += lint(a.lines, n)
        out.append(a.text())
        print(f"{n}: {sum(1 for l in a.lines if l.startswith('    '))} instrs, {nv} vgprs, lds {lds}", file=sys.stderr)
    out.append('.section .rodata,"a"')
    for n, (a, nv, lds, blk) in kernels: out.append(descriptor(n, nv))
    if bad: print(f"LINT: {bad} problems", file=sys.stderr)
    return "\n".join(out)
if __name__ == "__main__":
    import importlib
    cfg = dict(x.split("=") for x in sys.argv[2:])
    cfg = {k: int(x) for k, x in cfg.items()}
    TS[0] = cfg.get('ts', 0)
    if 'pad' in cfg: PAD[0] = (1 if cfg.get('kb', 1) else cfg.get('upto', 3)-1, cfg['pad']//10000, cfg['pad']//100 % 100, cfg['pad'] % 100)
    from k1 import k1
    ks = [("k1_kernel", k1("k1_kernel", JB=cfg.get("jb1", 2), NST=cfg.get("nst", 3), stagger=cfg.get("stag", 1)))]
    upto = cfg.get("upto", 3)
    if cfg.get("kb", 1):
        from kb import kb
        ks.append((NAME + "_kernel", kb(NAME + "_kernel", JB=cfg.get("jb2", 2), cfg=cfg)))
        upto = 0
    if upto >= 2:
        from k2 import k2
        ks.append(("k2_kernel", k2("k2_kernel", JB=cfg.get("jb2", 2), cfg=cfg)))
    if upto >= 3:
        from k3 import k3
        ks.append((NAME + "_kernel", k3(NAME + "_kernel", JB=cfg.get("jb3", 2), cfg=cfg)))
    open(sys.argv[1], "w").write(build(ks))
```

```python
from common import *
def k1(name, JB=2, NST=3, stagger=True):
    a = Asm(); header(a, name, JB)
    STG = 45056; RX = 0; RW = 8192
    S = Regs(36, 88); V = Regs(1, 168)
    sWS = S(4); sX = S(4); sC = S(); sStage = S(); sN = S(); sT = S(); sT2 = S(); sM = S(); sK = S(2); sO = S(); sE = S(2); sGW = S(4)
    a("s_waitcnt lgkmcnt(0)")
    srd(a, sWS, P_WS, WS_END)
    a(f"""
    s_cmp_ge_u32 s{S_W}, 4
    s_cbranch_scc1 {name}_loader
    """)
    acc = V(80); fw = [V(4) for n in range(5)]; fx = [V(4) for k in range(2)]
    vWb = V(); vXb = V(); vW = V(); vX = [V() for i in range(4)]; t = V(16); vh = V(); vtok = V(); va = V(); vb = V()
    sm = V(2); sq = V(2); a.vK1 = V(2)
    sG = S(); sTH = S()
    a(f"""
    s_lshr_b32 s{sG}, s{S_W}, 1
    s_and_b32 s{sTH}, s{S_W}, 1
    v_lshrrev_b32 v{vh}, 5, v0
    v_and_b32 v{vtok}, 31, v0
    v_bfe_u32 v{va}, v0, 2, 2
    v_lshl_add_u32 v{va}, v{vh}, 3, v{va}
    v_mul_u32_u24 v{vWb}, 192, v{va}
    v_bfe_u32 v{va}, v0, 4, 1
    v_lshl_add_u32 v{vWb}, v{va}, 5, v{vWb}
    v_and_b32 v{va}, 3, v0
    v_lshl_add_u32 v{vWb}, v{va}, 3, v{vWb}
    v_bfe_u32 v{va}, v0, 1, 3
    v_xor_b32 v{va}, v{va}, v{vh}
    v_lshlrev_b32 v{va}, 4, v{va}
    v_lshl_add_u32 v{vXb}, v{vtok}, 7, v{va}
    s_lshl_b32 s{sT}, s{sTH}, 12
    v_add_u32 v{vXb}, s{sT}, v{vXb}
    v_mov_b32 v{vW}, v{vWb}
    v_mov_b32 v{vX[0]}, v{vXb}
    v_xor_b32 v{vX[1]}, 32, v{vXb}
    v_xor_b32 v{vX[2]}, 64, v{vXb}
    v_xor_b32 v{vX[3]}, 0x60, v{vXb}
    s_mov_b32 s{sStage}, 0
    s_mov_b32 s{sN}, 10
    """)
    for i in range(0, 80, 2): a(f"v_mov_b64 {v(acc+i,2)}, 0")
    stamp(a, 1)
    a("s_barrier")
    stamp(a, 2)
    a(f"""
    s_cmp_eq_u32 s{sG}, 1
    s_cbranch_scc1 {name}_c1
    """)
    for g in range(2):
        tiles = [(0, RW), (1, RW+64)] if g == 0 else [(0, RW+128)]
        tiles += [(2+n, RW+12288*(1+g)+64*n) for n in range(3)]
        NT = len(tiles)
        def rdW(n, st):
            for p in range(2): a(f"ds_read_b64_tr_b16 {v(fw[n]+2*p,2)}, v{vW} offset:{st*3072+p*768+tiles[n][1]}")
        def rdX(st): a(f"ds_read_b128 {v(fx[st&1],4)}, v{vX[st]}")
        def mf(n, st): a(f"v_mfma_f32_32x32x16_bf16 {v(acc+16*tiles[n][0],16)}, {v(fw[n],4)}, {v(fx[st&1],4)}, {v(acc+16*tiles[n][0],16)}")
        a(f"{name}_c{g}:")
        rdX(0)
        for n in range(NT): rdW(n, 0)
        a(f"{name}_cloop{g}:")
        for st in range(3):
            for n in range(NT):
                a(f"s_waitcnt lgkmcnt({2*NT-2 if n == 0 else 2*NT-1})")
                mf(n, st)
                if n == 0: rdX(st+1)
                rdW(n, st+1)
        a(f"s_waitcnt lgkmcnt({2*NT-2})"); mf(0, 3)
        a(f"""
        s_add_u32 s{sStage}, s{sStage}, {STG}
        s_cmp_eq_u32 s{sStage}, {NST*STG}
        s_cselect_b32 s{sStage}, 0, s{sStage}
        v_add_u32 v{vW}, s{sStage}, v{vWb}
        v_add_u32 v{vX[0]}, s{sStage}, v{vXb}
        s_waitcnt lgkmcnt({2*NT-4})
        """)
        mf(1, 3)
        a(f"""
        s_sub_u32 s{sN}, s{sN}, 1
        s_waitcnt lgkmcnt(0)
        s_barrier
        """)
        rdX(0); rdW(0, 0); rdW(1, 0)
        for n in range(2, NT):
            mf(n, 3); rdW(n, 0)
            if n == 2:
                for i in range(1, 4): a(f"v_xor_b32 v{vX[i]}, {hx(32*i)}, v{vX[0]}")
        a(f"""
        s_cmp_lg_u32 s{sN}, 0
        s_cbranch_scc1 {name}_cloop{g}
        """)
        if g == 0: a(f"s_branch {name}_epi")
    a(f"{name}_epi:")
    stamp(a, 3)
    a(f"""
    s_mov_b32 s{sK}, {fl(QSCALE)}
    s_mov_b32 s{sK+1}, {fl(QSCALE)}
    s_lshl_b32 s{sT}, s{S_TG}, 5
    s_lshl_b32 s{sT2}, s{S_J}, 2
    s_add_u32 s{sT}, s{sT}, s{sT2}
    s_mul_i32 s{sO}, s{sT}, {QF_HEAD}
    v_lshlrev_b32 v{vb}, 4, v{vtok}
    s_lshl_b32 s{sT}, s{sTH}, 10
    s_lshl_b32 s{sT2}, s{sTH}, 3
    v_add_u32 v{vX[0]}, s{sT}, v{vb}
    v_add_u32 v{vX[1]}, s{sT2}, v{vb}
    v_cmp_ne_u32 vcc, 0, v{vh}
    s_waitcnt lgkmcnt(0)
    s_cmp_eq_u32 s{sG}, 1
    s_cbranch_scc1 {name}_g1
    """)
    def qoff(Qd):
        hd, qd = divmod(Qd, 5)
        return (hd*QF_HEAD + (2048 if qd == 4 else (qd & 1)*512 + (qd >> 1)*8), qd == 4)
    def qstore(r, Qd0, tt):
        (c0, e0), (c1, e1) = qoff(Qd0), qoff(Qd0+1)
        a(f"""
        v_pk_mul_f32 {v(r,2)}, {v(r,2)}, {s(sK,2)}
        v_pk_mul_f32 {v(r+2,2)}, {v(r+2,2)}, {s(sK,2)}
        v_add_u32 v{tt}, {hx(c0)}, v{vX[1] if e0 else vX[0]}
        v_add_u32 v{tt+1}, {hx(c1)}, v{vX[1] if e1 else vX[0]}
        v_cvt_pk_bf16_f32 v{r}, v{r}, v{r+1}
        v_cvt_pk_bf16_f32 v{r+1}, v{r+2}, v{r+3}
        v_cndmask_b32 v{tt}, v{tt}, v{tt+1}, vcc
        buffer_store_dwordx2 {v(r,2)}, v{tt}, {s(sWS,4)}, s{sO} offen
        """)
    for i in range(8): qstore(acc+4*i, 2*i, t+2*i)
    a(f"""
    s_branch {name}_z
    {name}_g1:
    """)
    for i in range(2): qstore(acc+4*i, 16+2*i, t+2*i)
    kv = acc+8
    a(f"""
    v_cvt_pk_bf16_f32 v{kv}, v{kv}, v{kv+1}
    v_cvt_pk_bf16_f32 v{kv+1}, v{kv+2}, v{kv+3}
    v_cvt_pk_bf16_f32 v{kv+2}, v{kv+4}, v{kv+5}
    v_cvt_pk_bf16_f32 v{kv+3}, v{kv+6}, v{kv+7}
    s_lshr_b32 s{sT}, s{S_TG}, 1
    s_mul_i32 s{sO}, s{sT}, 12288
    s_add_u32 s{sO}, s{sO}, {hx(WS_KV)}
    s_and_b32 s{sT}, s{S_TG}, 1
    s_lshl_b32 s{sM}, s{sT}, 1
    s_add_u32 s{sM}, s{sM}, s{sTH}
    s_cmp_ge_u32 s{S_J}, 4
    s_cbranch_scc1 {name}_z
    s_cmp_ge_u32 s{S_J}, 2
    s_cbranch_scc1 {name}_v
    s_cmp_eq_u32 s{S_J}, 1
    s_cbranch_scc1 {name}_k8
    s_lshl_b32 s{sM}, s{sM}, 10
    s_add_u32 s{sO}, s{sO}, s{sM}
    v_lshlrev_b32 v{va}, 4, v0
    buffer_store_dwordx4 {v(kv,4)}, v{va}, {s(sWS,4)}, s{sO} offen
    s_branch {name}_z
    {name}_k8:
    s_lshl_b32 s{sT}, s{sT}, 9
    s_add_u32 s{sO}, s{sO}, s{sT}
    s_add_u32 s{sO}, s{sO}, 4096
    v_mov_b32 v{va}, -4.0
    v_cndmask_b32 v{va}, v{va}, v{vX[1]}, vcc
    buffer_store_dwordx2 {v(kv+2,2)}, v{va}, {s(sWS,4)}, s{sO} offen
    s_branch {name}_z
    {name}_v:
    s_lshl_b32 s{sT}, s{sTH}, 10
    s_add_u32 s{sT}, s{sT}, {(8 % NST)*STG}
    v_lshlrev_b32 v{va}, 5, v{vtok}
    v_lshl_add_u32 v{va}, v{vh}, 3, v{va}
    v_add_u32 v{va}, s{sT}, v{va}
    ds_write_b64 v{va}, {v(kv,2)}
    ds_write_b64 v{va}, {v(kv+2,2)} offset:16
    v_bfe_u32 v{t}, v0, 4, 1
    v_bfe_u32 v{t+1}, v0, 2, 2
    v_lshl_add_u32 v{t+1}, v{t}, 2, v{t+1}
    v_lshl_add_u32 v{t+1}, v{vh}, 4, v{t+1}
    v_and_b32 v{t+2}, 3, v0
    v_lshlrev_b32 v{t+2}, 3, v{t+2}
    v_lshl_add_u32 v{t+1}, v{t+1}, 5, v{t+2}
    v_add_u32 v{t+1}, s{sT}, v{t+1}
    s_waitcnt lgkmcnt(0)
    ds_read_b64_tr_b16 {v(kv,2)}, v{t+1}
    ds_read_b64_tr_b16 {v(kv+2,2)}, v{t+1} offset:256
    s_mul_i32 s{sM}, s{sM}, 1536
    s_add_u32 s{sO}, s{sO}, s{sM}
    s_add_u32 s{sO}, s{sO}, 5120
    v_mul_u32_u24 v{t}, 0x180, v{t}
    v_mul_u32_u24 v{t+1}, 0x300, v{vh}
    v_and_b32 v{t+2}, 15, v0
    v_add_u32 v{t}, v{t}, v{t+1}
    v_lshl_add_u32 v{va}, v{t+2}, 4, v{t}
    s_cmp_eq_u32 s{S_J}, 2
    s_waitcnt lgkmcnt(0)
    s_cbranch_scc1 {name}_v2
    v_cmp_eq_u32 {s(sE,2)}, 0, v{t+2}
    v_mov_b32 v{t+3}, 0x3f803f80
    v_cmp_gt_u32 vcc, 4, v{t+2}
    v_cndmask_b32 v{t+3}, 0, v{t+3}, {s(sE,2)}
    v_add_u32 v{t+4}, 0x140, v{va}
    v_add_u32 v{va}, 64, v{va}
    v_cmp_gt_u32 {s(sE,2)}, 12, v{t+2}
    v_cndmask_b32 v{kv}, v{kv}, v{t+3}, vcc
    v_cndmask_b32 v{kv+1}, v{kv+1}, v{t+3}, vcc
    v_cndmask_b32 v{va}, v{va}, -4.0, {s(sE,2)}
    v_cndmask_b32 v{kv+2}, v{kv+2}, v{t+3}, vcc
    v_cndmask_b32 v{kv+3}, v{kv+3}, v{t+3}, vcc
    v_cndmask_b32 v{va}, v{va}, v{t+4}, vcc
    {name}_v2:
    buffer_store_dwordx4 {v(kv,4)}, v{va}, {s(sWS,4)}, s{sO} offen
    {name}_z:
    s_lshl_b32 s{sT}, s{S_TG}, 3
    s_add_u32 s{sT}, s{sT}, s{S_J}
    s_lshl_b32 s{sT}, s{sT}, 1
    s_add_u32 s{sT}, s{sT}, s{sTH}
    s_mul_i32 s{sO}, s{sT}, 6144
    s_mul_i32 s{sT}, s{sG}, {hx(WS_Z1-WS_Z2R)}
    s_add_u32 s{sO}, s{sO}, {hx(WS_Z1)}
    s_sub_u32 s{sO}, s{sO}, s{sT}
    s_mov_b32 s{sN}, 3
    s_mov_b32 s{sK}, {fl(-GK2)}
    s_mov_b32 s{sK+1}, {fl(-GK2)}
    v_mov_b32 v{a.vK1}, {fl(-GK1)}
    v_mov_b32 v{a.vK1+1}, {fl(-GK1)}
    v_mov_b64 {v(sm,2)}, 0
    v_mov_b64 {v(sq,2)}, 0
    v_lshlrev_b32 v{va}, 4, v0
    """)
    stamp(a, 4)
    a(f"{name}_zloop:")
    z = acc+32
    gelu16(a, z, t, sK, sm, sq)
    for i in range(8): a(f"v_cvt_pk_bf16_f32 v{t+4*((i>>1)&1)+2*(i>>2)+(i&1)}, v{z+2*i}, v{z+2*i+1}")
    a(f"""
    buffer_store_dwordx4 {v(t,4)}, v{va}, {s(sWS,4)}, s{sO} offen
    buffer_store_dwordx4 {v(t+4,4)}, v{va}, {s(sWS,4)}, s{sO} offen offset:3072
    s_sub_u32 s{sN}, s{sN}, 1
    s_add_u32 s{sO}, s{sO}, 1024
    s_cmp_lg_u32 s{sN}, 0
    """)
    for i in range(0, 32, 2): a(f"v_mov_b64 {v(z+i,2)}, {v(z+16+i,2)}")
    a(f"""
    s_cbranch_scc1 {name}_zloop
    s_cmp_eq_u32 s{sG}, 0
    s_cbranch_scc1 {name}_end
    v_add_f32 v{sm}, v{sm}, v{sm+1}
    v_add_f32 v{sq}, v{sq}, v{sq+1}
    s_lshl_b32 s{sT}, s{S_TG}, 1
    s_add_u32 s{sT}, s{sT}, s{sTH}
    s_lshl_b32 s{sO}, s{sT}, 11
    v_permlane32_swap_b32 v{sm}, v{sq}
    s_lshl_b32 s{sT}, s{S_J}, 3
    s_add_u32 s{sO}, s{sO}, s{sT}
    s_add_u32 s{sO}, s{sO}, {hx(WS_ST)}
    v_lshlrev_b32 v{va}, 6, v{vtok}
    v_lshl_add_u32 v{va}, v{vh}, 2, v{va}
    v_add_f32 v{sm}, v{sm}, v{sq}
    buffer_store_dword v{sm}, v{va}, {s(sWS,4)}, s{sO} offen
    """)
    wend(a, name)
    nv_c = V.hi
    V = Regs(1, 128)
    vx = [V() for i in range(2)]; base = [V(2) for i in range(3)]; step = [V() for i in range(3)]; ad = [V(2) for i in range(3)]; vz = [V() for i in range(3)]
    p = V(); row = V(); c = V(); u = V(); u2 = V(); kq = V(2); kv2 = V(2)
    sL = S(); sXo = S(); sZo = S(); sZo2 = S(); sJz = S(); sWI = S(4)
    a(f"{name}_loader:")
    srd(a, sX, P_X, 2048*1280)
    srd(a, sWI, P_WIN, 640*3072)
    a(f"""
    s_sub_u32 s{sL}, s{S_W}, 4
    v_lshrrev_b32 v{row}, 3, v0
    s_lshl_b32 s{sM}, s{sL}, 4
    v_add_u32 v{row}, s{sM}, v{row}
    v_and_b32 v{c}, 7, v0
    v_bfe_u32 v{u}, v{row}, 1, 3
    v_xor_b32 v{u}, v{u}, v{c}
    v_xor_b32 v{u2}, 4, v{u}
    s_lshl_b32 s{sT}, s{S_TG}, 6
    v_add_u32 v{row}, s{sT}, v{row}
    v_mul_u32_u24 v{row}, 0x500, v{row}
    v_lshl_add_u32 v{vx[0]}, v{u}, 4, v{row}
    v_lshl_add_u32 v{vx[1]}, v{u2}, 4, v{row}
    v_add_u32 v{vx[1]}, {8*1280-1024}, v{vx[1]}
    s_mul_i32 s{sJz}, s{S_J}, 192
    s_mul_i32 s{sT}, s{S_J}, 160
    s_add_u32 s{P_WQ}, s{P_WQ}, s{sT}
    s_addc_u32 s{P_WQ+1}, s{P_WQ+1}, 0
    s_bitcmp1_b32 s{S_J}, 1
    s_cselect_b32 s{P_WK}, s{P_WV}, s{P_WK}
    s_cselect_b32 s{P_WK+1}, s{P_WV+1}, s{P_WK+1}
    s_and_b32 s{sT}, s{S_J}, 1
    s_lshl_b32 s{sT}, s{sT}, 3
    s_sub_u32 s{sT}, 160, s{sT}
    s_sub_u32 s{P_WK}, s{P_WK}, s{sT}
    s_subb_u32 s{P_WK+1}, s{P_WK+1}, 0
    v_mov_b64 {v(kq,2)}, {s(P_WQ,2)}
    v_mov_b64 {v(kv2,2)}, {s(P_WK,2)}
    v_mov_b32 v{u2}, 0x500
    """)
    for i in range(3):
        a(f"""
        v_add_u32 v{p}, {64*i}, v0
        v_mul_u32_u24 v{row}, 5462, v{p}
        v_lshrrev_b32 v{row}, 16, v{row}
        v_mul_u32_u24 v{c}, 12, v{row}
        v_sub_u32 v{c}, v{p}, v{c}
        v_cmp_gt_u32 vcc, 10, v{c}
        v_add_u32 v{row}, s{sM}, v{row}
        v_lshlrev_b32 v{c}, 4, v{c}
        v_cndmask_b32 v{step[i]}, 40, v{u2}, vcc
        v_cndmask_b32 v{base[i]}, v{kv2}, v{kq}, vcc
        v_cndmask_b32 v{base[i]+1}, v{kv2+1}, v{kq+1}, vcc
        v_subrev_u32 v{c}, {1024*i}, v{c}
        v_mad_i32_i24 v{u}, v{row}, v{step[i]}, v{c}
        v_mul_u32_u24 v{row}, 0xc00, v{row}
        v_lshlrev_b32 v{step[i]}, 6, v{step[i]}
        v_mad_i64_i32 {v(base[i],2)}, vcc, v{u}, 1, {v(base[i],2)}
        v_add_u32 v{vz[i]}, v{row}, v{c}
        """)
    if stagger:
        a(f"""
        s_mul_i32 s{sT}, s{S_TG}, 26
        s_lshr_b32 s{sT}, s{sT}, 8
        s_mul_i32 s{sT}, s{sT}, 10
        s_sub_u32 s{sC}, s{S_TG}, s{sT}
        """)
    else: a(f"s_mov_b32 s{sC}, 0")
    a(f"""
    s_lshl_b32 s{sT}, s{sL}, 11
    s_mul_i32 s{sT2}, s{sL}, 3072
    s_add_u32 s{sT2}, s{sT2}, {RW}
    s_mov_b32 s{sStage}, 0
    s_mov_b32 s{sN}, 0
    """)
    stamp(a, 1)
    a(f"""
    {name}_lloop:
    s_add_u32 m0, s{sStage}, s{sT}
    s_lshl_b32 s{sXo}, s{sC}, 7
    buffer_load_dwordx4 v{vx[0]}, {s(sX,4)}, s{sXo} offen lds
    buffer_load_dwordx4 v{vx[1]}, {s(sX,4)}, s{sXo} offen offset:1024 lds
    s_add_u32 m0, s{sStage}, s{sT2}
    s_mul_i32 s{sZo}, s{sC}, {64*3072}
    """)
    for k in range(3): a(f"v_mad_u64_u32 {v(ad[k],2)}, vcc, v{step[k]}, s{sC}, {v(base[k],2)}")
    a(f"s_add_u32 s{sZo}, s{sZo}, s{sJz}")
    for i in range(3): a(f"global_load_lds_dwordx4 {v(ad[i],2)}, off offset:{1024*i}")
    a(f"""
    s_add_u32 m0, m0, 12288
    s_add_u32 s{sZo2}, s{sZo}, 1536
    """)
    for i in range(3): a(f"buffer_load_dwordx4 v{vz[i]}, {s(sWI,4)}, s{sZo} offen offset:{1024*i} lds")
    a(f"""
    s_add_u32 m0, m0, 12288
    s_add_u32 s{sC}, s{sC}, 1
    """)
    for i in range(3): a(f"buffer_load_dwordx4 v{vz[i]}, {s(sWI,4)}, s{sZo2} offen offset:{1024*i} lds")
    a(f"""
    s_cmp_eq_u32 s{sC}, 10
    s_cselect_b32 s{sC}, 0, s{sC}
    s_add_u32 s{sStage}, s{sStage}, {STG}
    s_cmp_eq_u32 s{sStage}, {NST*STG}
    s_cselect_b32 s{sStage}, 0, s{sStage}
    s_add_u32 s{sN}, s{sN}, 1
    s_cmp_lt_u32 s{sN}, {NST}
    s_cbranch_scc1 {name}_lloop
    s_cmp_gt_u32 s{sN}, {NST}
    s_cbranch_scc1 {name}_lsteady
    s_waitcnt vmcnt({11*(NST-1)})
    s_barrier
    {name}_lsteady:
    s_waitcnt vmcnt({11*(NST-2)})
    s_barrier
    s_cmp_lt_u32 s{sN}, 10
    s_cbranch_scc1 {name}_lloop
    """)
    sn = V(4)
    a(f"""
    s_lshl_b32 s{sT}, s{S_TG}, 2
    s_add_u32 s{sT}, s{sT}, s{sL}
    s_mul_i32 s{sT}, s{sT}, {44*1024}
    s_mul_i32 s{sT2}, s{S_J}, 5632
    s_add_u32 s{sT}, s{sT}, s{sT2}
    s_add_u32 s{sT}, s{sT}, {hx(WS_ACT)}
    s_add_u32 s{sT2}, s{sT}, 4096
    v_lshlrev_b32 v{p}, 4, v0
    v_cmp_gt_u32 vcc, 32, v0
    v_mov_b64 {v(sn,2)}, -1
    v_mov_b64 {v(sn+2,2)}, -1
    v_cndmask_b32 v{row}, -4.0, v{p}, vcc
    """)
    for i in range(6): a(f"buffer_store_dwordx4 {v(sn,4)}, v{row if i == 5 else p}, {s(sWS,4)}, s{sT2 if i >= 4 else sT} offen offset:{1024*(i&3)} sc1")
    for m in range(12-NST, 10): a(f"s_waitcnt vmcnt({11*(9-m)+6})\n s_barrier")
    stamp(a, 3)
    gx = V(10); gw = V(10)
    srd(a, sGW, P_GW, 1280)
    a(f"""
    s_lshl_b32 s{sT}, s{S_TG}, 3
    s_add_u32 s{sT}, s{sT}, s{S_J}
    s_lshl_b32 s{sT}, s{sT}, 2
    s_add_u32 s{sT}, s{sT}, s{sL}
    s_lshl_b32 s{sT}, s{sT}, 1
    v_lshrrev_b32 v{row}, 5, v0
    v_add_u32 v{row}, s{sT}, v{row}
    v_and_b32 v{c}, 31, v0
    v_lshlrev_b32 v{p}, 3, v{c}
    v_mul_u32_u24 v{u}, 0x500, v{row}
    v_add_u32 v{u}, v{u}, v{p}
    """)
    for i in range(5):
        a(f"buffer_load_dwordx2 {v(gx+2*i,2)}, v{u}, {s(sX,4)}, 0 offen offset:{256*i}")
        a(f"buffer_load_dwordx2 {v(gw+2*i,2)}, v{p}, {s(sGW,4)}, 0 offen offset:{256*i}")
    a(f"""
    s_barrier
    v_mov_b32 v{u2}, 0
    v_cmp_eq_u32 vcc, 31, v{c}
    v_lshlrev_b32 v{row}, 2, v{row}
    s_mov_b32 s{sO}, {hx(WS_GATE)}
    v_cndmask_b32 v{row}, -4.0, v{row}, vcc
    s_waitcnt vmcnt(0)
    """)
    for i in range(10): a(f"v_dot2_f32_bf16 v{u2}, v{gx+i}, v{gw+i}, v{u2}")
    a("s_nop 2")
    for sh in (1, 2, 4, 8): a(f"v_add_f32_dpp v{u2}, v{u2}, v{u2} row_shr:{sh} row_mask:0xf bank_mask:0xf bound_ctrl:0\n s_nop 1")
    a(f"""
    v_add_f32_dpp v{u2}, v{u2}, v{u2} row_bcast:15 row_mask:0xa bank_mask:0xf
    v_mul_f32 v{u2}, {fl(-LOG2E)}, v{u2}
    v_exp_f32 v{u2}, v{u2}
    s_nop 0
    v_add_f32 v{u2}, 1.0, v{u2}
    v_rcp_f32 v{u2}, v{u2}
    s_nop 0
    buffer_store_dword v{u2}, v{row}, {s(sWS,4)}, s{sO} offen
    s_lshl_b32 s{sT}, s{S_J}, 5
    s_add_u32 s{sT}, s{sT}, s{S_TG}
    s_lshl_b32 s{sT}, s{sT}, 2
    s_add_u32 s{sT}, s{sT}, s{sL}
    s_lshl_b32 s{sT}, s{sT}, 2
    v_cmp_eq_u32 vcc, 0, v0
    s_add_u32 s{sT}, s{sT}, {hx(WS_FLAG)}
    v_mov_b32 v{u}, 0
    v_cndmask_b32 v{row}, -4.0, v0, vcc
    buffer_store_dword v{u}, v{row}, {s(sWS,4)}, s{sT} offen sc1
    """)
    footer(a, name, 0)
    return a, max(nv_c, V.hi), NST*STG, 512
```

```python
from common import *
from stream import *
KVS = 12288; AA = 18432; KV0 = 74240; SG0 = 111104; SG = 12800; PB0 = KV0 + 2*KVS
slot = lambda c: ((c + 2) % 3) * KVS
SEQ = {0: "e e C e e P c e e c Q e e c e q e c e e p c e e c e e c",
       1: "e e C e e P c e e c Q e e c e q e c e e p c e e g c e e c",
       2: "e g e C e e P c e e c Q e e c e q e c e e p c e e c g e e c",
       3: "e g e C e e P c e g e c Q e e c e q e c e e p c e e c g e e c",
       4: "e g e C e e P c e g e c Q e e c e q e c g e e p c e e c g e e c",
       5: "g e e g C e e P c e g e c Q e e c e q e c g e e p c e e c g e e c",
       6: "g e e g C e e P c e g e c Q e e g c e q e c g e e p c e e c g e e c"}
MF32 = "v_mfma_f32_32x32x16_bf16"; MF8 = "v_mfma_f32_32x32x8bf16_1k"; MF16 = "v_mfma_f32_16x16x32_bf16"
class R: pass
r = R()
r.aK, r.aK8, r.aV = 1, 2, 3
r.S = [12, 28]; r.O = [44, 60]; r.Q16 = [76, 80]; r.Q8 = 84; r.K16 = 88; r.K8 = 92; r.V0 = 96; r.V1 = 100
BIG = 104
def kv_addr(st, t):
    st(f"""
    v_lshlrev_b32 v{r.aK}, 4, v0
    v_and_b32 v{t}, 31, v0
    v_lshrrev_b32 v{t+1}, 5, v0
    v_lshlrev_b32 v{r.aK8}, 4, v{t}
    v_min_u32 v{r.aV}, 23, v{t}
    v_mul_u32_u24 v{t+1}, 0x180, v{t+1}
    v_lshl_add_u32 v{r.aV}, v{r.aV}, 4, v{t+1}
    v_add_u32 v{r.aK}, {KV0}, v{r.aK}
    v_add_u32 v{r.aK8}, {KV0}, v{r.aK8}
    v_add_u32 v{r.aV}, {KV0}, v{r.aV}
    """)
def attention(role, dens, gop, bar, post, prio):
    sc = Sched()
    rK = lambda c, t: (f"ds_read_b128 {v(r.K16,4)}, v{r.aK} offset:{slot(c)+(2*role+t)*1024}", "K")
    rK8 = lambda c: (f"ds_read_b128 {v(r.K8,4)}, v{r.aK8} offset:{slot(c)+4096+role*512}", "K8")
    rV = lambda c, t, f: (f"ds_read_b128 {v(r.V1 if f else r.V0,4)}, v{r.aV} offset:{slot(c)+5120+(2*(2*role+t)+f)*768}", f"V{f}")
    sc.op([rK(0, 0), rK8(0), rV(0, 0, 0), ("@", "K", "K8", "Q"),
           f"{MF32} {v(r.S[0],16)}, {v(r.K16,4)}, {v(r.Q16[0],4)}, 0", f"{MF8} {v(r.S[0],16)}, {v(r.K8,2)}, {v(r.Q8,2)}, {v(r.S[0],16)}", "s_nop 11"])
    for c in range(16):
        for i in range(4):
            b = i & 1; kt = i >> 1; cur = r.S[b]; nx = r.S[b ^ 1]; ne = nc = 0
            first = (c, i) == (0, 0); last = (c, i) == (15, 3)
            if prio(c, i) is not None: sc.op(f"s_setprio {prio(c, i)}")
            for op in SEQ[dens[c][i]].split():
                if op == "e": sc.op(f"v_exp_f32 v{cur+ne}, v{cur+ne}"); ne += 1
                elif op == "c": sc.op(f"v_cvt_pk_bf16_f32 v{cur+nc}, v{cur+2*nc}, v{cur+2*nc+1}"); nc += 1
                elif op == "C":
                    if not first: sc.op(f"v_cvt_pk_bf16_f32 v{nx+7}, v{nx+14}, v{nx+15}")
                elif op == "P":
                    it = [] if first else [("@", "V1"), f"{MF32} {v(r.O[b^1],16)}, {v(r.V1,4)}, {v(nx+4,4)}, {v(r.O[b^1],16)}"]
                    if not b: it.append(rV(c, kt, 1))
                    sc.op(it)
                elif op == "Q":
                    if last: continue
                    sc.op([("@", "K"), f"{MF32} {v(nx,16)}, {v(r.K16,4)}, {v(r.Q16[b^1],4)}, 0"] + ([rK(c, 1)] if i == 0 else []))
                elif op == "q":
                    if last: continue
                    sc.op([("@", "K8"), f"{MF8} {v(nx,16)}, {v(r.K8+2*(((i+1)>>1)&1),2)}, {v(r.Q8+2*(b^1),2)}, {v(nx,16)}"])
                elif op == "p":
                    it = []
                    if i == 2:
                        sc.op([("@", "V0", "V1") + tuple(bar(c)), "s_barrier"]); sc.next()
                        if c < 15: it += [rK(c+1, 0), rK8(c+1)]
                    it += [("@", "V0"), f"{MF32} {v(r.O[b],16)}, {v(r.V0,4)}, {v(cur,4)}, {'0' if c == 0 and i < 2 else v(r.O[b],16)}"]
                    if i == 1: it.append(rV(c, 1, 0))
                    if i == 3 and c < 15: it.append(rV(c+1, 0, 0))
                    if i == 2: it += post(c)
                    sc.op(it)
                elif op == "g": sc.op(gop())
    sc.op([f"v_cvt_pk_bf16_f32 v{r.S[1]+7}, v{r.S[1]+14}, v{r.S[1]+15}", "s_nop 1", f"{MF32} {v(r.O[1],16)}, {v(r.V1,4)}, {v(r.S[1]+4,4)}, {v(r.O[1],16)}"])
    return sc
def vo160(vo, t):
    L = []
    for i in range(5):
        L.append(f"""v_add_u32 v{t}, {64*i}, v0
        v_mul_u32_u24 v{t+1}, 6554, v{t}
        v_lshrrev_b32 v{t+1}, 16, v{t+1}
        v_mul_u32_u24 v{t+1}, {1280-160}, v{t+1}
        v_lshl_add_u32 v{vo+i}, v{t if i == 4 else 0}, 4, v{t+1}""")
    return L
def dma160(vo, srd_, sO, sM, n, tag, half_last=False):
    L = []
    for i in range(n):
        x = ""
        if i % 5 in (0, 4): x += f"s_add_u32 m0, s{sM}, {1024*i}\n s_nop 0\n"
        if half_last and i == n-1: x += "s_mov_b32 exec_hi, 0\n"
        x += f"buffer_load_dwordx4 v{vo+i%5}, {s(srd_,4)}, s{sO} offen offset:{1024*((i%5)&3)} lds\n"
        if half_last and i == n-1: x += "s_mov_b32 exec_hi, -1\n"
        if i % 5 == 4: x += f"s_add_u32 s{sO}, s{sO}, {32*1280}\n"
        L.append((x, tag))
    return L
def chk_tile(st, name, regs, n, t, sCnt):
    st(f"{name}_chk:")
    st.w(name)
    st(f"v_max3_u32 v{t}, v{regs}, v{regs+1}, v{regs+2}\n v_max3_u32 v{t+1}, v{regs+3}, v{regs+4}, v{regs+5}")
    for i in range(6, n, 2): st(f"v_max3_u32 v{t+(i>>1&1)}, v{regs+i}, v{regs+i+1}, v{t+(i>>1&1)}")
    st(f"""v_max_u32 v{t}, v{t}, v{t+1}
    v_cmp_eq_u32 vcc, -1, v{t}
    s_cbranch_vccnz {name}_retry
    {name}_ok:""")

def kb(name, JB=2, cfg={}):
    a = Asm(); header(a, name, JB)
    S_ = Regs(36, 88)
    sWS = S_(4); sW = S_(4); sT = S_(); sT2 = S_(); sO = S_(); sN = S_(); sK = S_(); sTH = S_(); sHP = S_(); sE = S_(2); sAct = [S_() for i in range(4)]; sOwn = S_()
    gS = cfg.get("gs", 2); cR = cfg.get("cr", 14)
    st = St(a)
    T = 208
    st(f"""
    s_and_b32 s{sK}, s{S_W}, 3
    s_and_b32 s{sTH}, s{S_W}, 1
    s_bfe_u32 s{sHP}, s{S_W}, 0x10001
    s_lshl_b32 s{sT}, s{S_TG}, 3
    s_add_u32 s{sT}, s{sT}, s{S_J}
    s_lshl_b32 s{sT}, s{sT}, 2
    s_add_u32 s{sT}, s{sT}, s{sHP}
    s_mul_i32 s{sO}, s{sT}, {QF_HEAD}
    s_lshl_b32 s{sT}, s{sTH}, 10
    s_lshl_b32 s{sT2}, s{sTH}, 3
    v_lshlrev_b32 v{T}, 4, v0
    v_cmp_gt_u32 vcc, 32, v0
    v_add_u32 v{T+1}, s{sT}, v{T}
    v_add_u32 v{T+2}, s{sT2}, v{T}
    s_add_u32 s{sN}, s{sO}, {2*QF_HEAD}
    v_cndmask_b32 v{T+2}, -4.0, v{T+2}, vcc
    s_waitcnt lgkmcnt(0)
    """)
    srd(a, sWS, P_WS, WS_END)
    st(f"s_xor_b32 s{sOwn}, s{sK}, s{S_J}\n s_and_b32 s{sOwn}, s{sOwn}, 3" if cfg.get("rot", 1) else f"s_mov_b32 s{sOwn}, s{sK}")
    for i in range(4):
        st(f"""s_xor_b32 s{sT}, s{sOwn}, {(i+1)&3}
        s_lshl_b32 s{sT2}, s{S_TG}, 2
        s_add_u32 s{sT}, s{sT}, s{sT2}
        s_mul_i32 s{sAct[i]}, s{sT}, {44*1024}""")
    qld = f"""buffer_load_dwordx4 {v(r.Q16[0],4)}, v{T+1}, {s(sWS,4)}, s{sO} offen
    buffer_load_dwordx2 {v(r.Q8,2)}, v{T+2}, {s(sWS,4)}, s{sO} offen offset:2048
    buffer_load_dwordx4 {v(r.Q16[1],4)}, v{T+1}, {s(sWS,4)}, s{sN} offen
    buffer_load_dwordx2 {v(r.Q8+2,2)}, v{T+2}, {s(sWS,4)}, s{sN} offen offset:2048"""
    st(f"""
    s_cmp_ge_u32 s{S_W}, 4
    s_cbranch_scc1 {name}_B
    """)
    nsC = S_.n
    from kbA import waveA
    from kbB import waveB
    env = dict(locals())
    waveA(env, st.fork())
    S_.n = nsC
    waveB(env, st.fork())
    footer(a, name, 1)
    return a, 256, 163840, 512
```

```python
from kb import *
def waveA(E, st):
    a = E["a"]; name = E["name"]; cfg = E["cfg"]; S_ = E["S_"]; gS = E["gS"]; cR = E["cR"]; T = E["T"]
    sWS, sW, sT, sT2, sO, sN, sK, sTH, sHP, sE, sAct = [E[k] for k in "sWS sW sT sT2 sO sN sK sTH sHP sE sAct".split()]
    sSP = S_(4); sBS = S_(4); sAr = S_(); sWb = [S_(), S_()]; sB = S_(); sWo = S_(); sZb = S_(); sZn = S_(); sZo = S_(); sFl = S_(); sCnt = S_(); sU = S_(); sOa = S_(); sOx = S_()
    aW = [4, 5, 6, 7]; vl = 8; vo = [9, 10, 11, 252]; acc = BIG; W = [200, 204]; NZ = 11; Z = [208+4*z for z in range(NZ)]; t0, t1 = 253, 254
    st(E["qld"], "Q")
    kv_addr(st, T+4)
    srd(a, sSP, P_WSP, 2048*4096)
    st(f"""
    s_mul_i32 s{sAr}, s{sK}, {AA}
    s_lshl_b32 s{sT}, s{S_TG}, 1
    s_add_u32 s{sT}, s{sT}, s{sTH}
    s_lshl_b32 s{sT2}, s{sK}, 10
    s_lshl_b32 s{sWb[0]}, s{sT}, 17
    s_add_u32 s{sWb[0]}, s{sWb[0]}, s{sT2}
    s_xor_b32 s{sWb[1]}, s{sWb[0]}, 0x20000
    s_and_b32 s{sB}, s{S_TG}, 7
    s_lshl_b32 s{sB}, s{sB}, 7
    s_mov_b32 s{sZn}, s{sB}
    s_mul_i32 s{sU}, s{sT}, {88*1024}
    s_add_u32 s{sU}, s{sU}, {hx(WS_ACT)}
    s_lshl_b32 s{sT}, s{S_J}, 2
    s_add_u32 s{sT}, s{sT}, s{sK}
    s_mul_i32 s{sZb}, s{sT}, {8*12288}
    s_add_u32 s{sZb}, s{sZb}, {hx(WS_Z2N)}
    s_lshl_b32 s{sFl}, s{sT}, 7
    s_add_u32 s{sFl}, s{sFl}, {hx(WS_FLAG)}
    v_lshrrev_b32 v{T+4}, 3, v0
    v_lshlrev_b32 v{T+4}, 12, v{T+4}
    v_lshrrev_b32 v{T+5}, 4, v0
    v_and_b32 v{T+6}, 7, v0
    v_xor_b32 v{T+5}, v{T+5}, v{T+6}
    v_lshl_add_u32 v{vo[0]}, v{T+5}, 4, v{T+4}
    v_xor_b32 v{T+5}, 64, v{vo[0]}
    v_add_u32 v{vo[1]}, {32768-1024}, v{T+5}
    v_add_u32 v{vo[2]}, {2*(32768-1024)}, v{vo[0]}
    v_add_u32 v{vo[3]}, {3*(32768-1024)}, v{T+5}
    v_lshrrev_b32 v{T+4}, 5, v0
    v_bfe_u32 v{T+5}, v0, 1, 3
    v_xor_b32 v{T+5}, v{T+5}, v{T+4}
    v_lshlrev_b32 v{T+5}, 4, v{T+5}
    v_and_b32 v{T+6}, 31, v0
    v_lshl_add_u32 v{T+5}, v{T+6}, 7, v{T+5}
    v_lshlrev_b32 v{t0}, 2, v{T+6}
    s_lshl_b32 s{sT}, s{sHP}, 7
    v_xor_b32 v{vl}, s{sT}, v{T}
    s_mov_b32 s{sCnt}, 0x8000
    """)
    for i in range(4): st(f"v_xor_b32 v{aW[i]}, {hx(32*i)}, v{T+5}\n v_add_u32 v{aW[i]}, s{sAr}, v{aW[i]}")
    st(f"""
    s_lshr_b32 s{sT}, s{S_J}, 1
    s_mul_i32 s{sT}, s{sT}, 5120
    s_add_u32 s{sOa}, s{sU}, s{sT}
    s_and_b32 s{sT}, s{S_J}, 1
    s_lshl_b32 s{sT2}, s{sT}, 3
    s_add_u32 s{sOx}, s{sOa}, s{sT2}
    s_lshl_b32 s{sT2}, s{sHP}, 8
    s_add_u32 s{sOx}, s{sOx}, s{sT2}
    s_add_u32 s{sOx}, s{sOx}, 4096
    s_lshl_b32 s{sT}, s{sT}, 1
    s_add_u32 s{sT}, s{sT}, s{sHP}
    s_lshl_b32 s{sT}, s{sT}, 10
    s_add_u32 s{sOa}, s{sOa}, s{sT}
    s_mul_i32 s{sT}, s{S_J}, 3072
    s_add_u32 s{sU}, s{sU}, s{sT}
    s_lshl_b32 s{sT}, s{sHP}, 9
    s_add_u32 s{sU}, s{sU}, s{sT}
    s_add_u32 s{sU}, s{sU}, {20*1024}
    s_mul_i32 s{sT}, s{sK}, 5120
    s_add_u32 s{sT}, s{sT}, {hx(WS_ACT)}
    """)
    for i in range(4): st(f"s_add_u32 s{sAct[i]}, s{sAct[i]}, s{sT}")
    srd(a, sBS, P_BSP, 4096); srd(a, sW, P_WO, 640*1280)
    stamp(a, 1); st("s_barrier"); stamp(a, 2)
    def wsp(blk):
        L = []
        for b in range(8):
            x = ""
            if b & 3 == 0: x = f"s_add_u32 m0, s{sAr}, {(blk&1)*8192+b*1024}\n s_add_u32 s{sWo}, s{sWb[b>>2]}, s{sB}\n"
            x += f"buffer_load_dwordx4 v{vo[b&3]}, {s(sSP,4)}, s{sWo} offen offset:{(b&3)*1024} lds\n"
            if b == 7: x += f"s_add_u32 s{sB}, s{sB}, 128\n s_and_b32 s{sB}, s{sB}, 0x3ff"
            L.append((x, f"wsp{blk}"))
        return L
    def zld(f):
        ks, n = divmod(f, 3); x = ""
        if f % 12 == 0: x = f"s_mul_i32 s{sZo}, s{sZn}, 96\n s_add_u32 s{sZn}, s{sZn}, 128\n s_add_u32 s{sZo}, s{sZo}, s{sZb}\n s_and_b32 s{sZn}, s{sZn}, 0x3ff\n"
        elif n == 0: x = f"s_add_u32 s{sZo}, s{sZo}, 3072\n"
        return (x + f"buffer_load_dwordx4 {v(Z[f%NZ],4)}, v{vl}, {s(sWS,4)}, s{sZo} offen offset:{1024*n} sc1", f"z{f}")
    rW = lambda ks, th: [("@", f"wsp{ks>>2}"), (f"ds_read_b128 {v(W[th],4)}, v{aW[ks&3]} offset:{((ks>>2)&1)*8192+th*4096}", f"W{th}")]
    G = dict(m=0, q=[])
    DPG = cfg.get("dpg", 1)
    def gop():
        m = G["m"]; G["m"] += 1
        ks, th, n = m//6, (m % 6)//3, m % 3; f = 3*ks+n; ac = acc+48*th+16*n
        it = [("@", f"z{f}", f"W{th}"), f"{MF32} {v(ac,16)}, {v(Z[f%NZ],4)}, {v(W[th],4)}, {'0' if ks == 0 else v(ac,16)}"]
        if n == 2 and ks < 31: it += rW(ks+1, th)
        if th == 1 and f+NZ < 96: it.append(zld(f+NZ))
        if m % 24 == 21 and m//24 + 2 < 8: G["q"] = wsp(m//24 + 2)
        it += G["q"][:DPG]; G["q"] = G["q"][DPG:]
        if m == 191: it.append("; end of G")
        return it
    np_ = (cR-gS)*4
    dens = [[0]*4 for c in range(16)]
    for p in range(np_): dens[gS+p//4][p % 4] = 192*(p+1)//np_ - 192*p//np_
    pa = cfg.get("pa", 1)
    sc = attention(0, dens, gop, lambda c: ["rsw"], lambda c: [(lambda st_, c=c: stamp(a, 8+c))], lambda c, i: pa if (c, i) == (0, 0) and pa else None)
    pf = []
    if cfg.get("pf", 1):
        JB = E["JB"]; NS = 32 >> JB; x = Z[1]; sPF = S_(4)
        pf.append(f"""s_and_b32 s{sT}, s{S_TG}, {NS-1}
        v_lshrrev_b32 v{x}, 1, v0
        v_lshl_add_u32 v{x}, v{x}, {5-JB}, s{sT}
        v_mul_u32_u24 v{x}, 0x500, v{x}
        v_and_b32 v{x+1}, 1, v0
        v_mul_u32_u24 v{x+1}, 156, v{x+1}
        s_mul_i32 s{sT}, s{S_J}, 160
        v_add3_u32 v{x}, v{x}, v{x+1}, s{sT}
        s_mov_b32 s{sPF+3}, 0x20000""")
        for P, rows in ((P_WOUT, 192), (P_WO, 160)):
            pf.append(f"""s_mul_i32 s{sT}, s{sK}, {rows*1280}
            s_add_u32 s{sPF}, s{P}, s{sT}
            s_addc_u32 s{sPF+1}, s{P+1}, 0
            s_mov_b32 s{sPF+2}, {rows*1280}""")
            for i in range((rows//NS+31)//32): pf.append(f"s_mov_b32 s{sT}, {i*32*NS*1280}\n buffer_load_dword v{Z[0]}, v{x}, {s(sPF,4)}, s{sT} offen")
    sc.place(wsp(0) + wsp(1) + pf, 0, 0.05, 0.7)
    fl = f"buffer_load_dword v{t1}, v{t0}, {s(sWS,4)}, s{sFl} offen sc1"
    def poll(st_):
        st_(f"{name}_poll:"); st_.w("F")
        st_(f"v_cmp_ne_u32 vcc, 1, v{t1}\n s_cbranch_vccnz {name}_pretry\n {name}_pok:")
        stamp(a, 3)
    sc.place([(fl, "F")], gS-1, cfg.get("f0", 20)/100, cfg.get("f0", 20)/100)
    sc.place([poll] + [zld(f) for f in range(NZ)], gS-1, cfg.get("f1", 60)/100, 1.0)
    sc.place([rW(0, 0), rW(0, 1)], gS, 0.1, 0.2)
    z1 = 208; og = 220; gt = 222; tp = 224; aR = [228, 229, 230, 231]; vu = 232; vw = 234; aF = 240; aX = 241; vt = 242
    quads = lambda d, n: [acc+48*(d & 1)+16*n+4*(d >> 1), acc+48*(d & 1)+16*n+4*(d >> 1)+8]
    wl = sc.win[cR]; e = max(i for i, o in enumerate(wl) if isinstance(o, list) and "; end of G" in o)
    it = [f"""v_lshlrev_b32 v{tp}, 4, v0
    v_add_u32 v{aR[0]}, s{sAr}, v{tp}
    s_lshl_b32 s{sT}, s{S_TG}, 3
    s_add_u32 s{sT}, s{sT}, s{S_J}
    s_lshl_b32 s{sT}, s{sT}, 1
    s_add_u32 s{sT}, s{sT}, s{sTH}
    s_lshl_b32 s{sT}, s{sT}, 1
    s_add_u32 s{sT}, s{sT}, s{sHP}
    s_mul_i32 s{sT}, s{sT}, 3072
    s_add_u32 s{sT}, s{sT}, {hx(WS_Z1)}"""]
    it += [(f"buffer_load_dwordx4 {v(z1+4*n,4)}, v{tp}, {s(sWS,4)}, s{sT} offen offset:{1024*n}", "z1") for n in range(3)]
    it += [(f"""s_lshl_b32 s{sT}, s{S_TG}, 1
    s_add_u32 s{sT}, s{sT}, s{sTH}
    s_lshl_b32 s{sT2}, s{sT}, 6
    s_lshl_b32 s{sT}, s{sT}, 7
    s_add_u32 s{sT}, s{sT}, {hx(WS_GATE)}
    v_lshrrev_b32 v{vt}, 1, v{t0}
    buffer_load_dword v{gt}, v{t0}, {s(sWS,4)}, s{sT} offen
    buffer_load_ushort v{og+1}, v{vt}, {s(sBS,4)}, s{sT2} offen""", "z1")]
    for d in (2, 1, 3):
        for n in range(3):
            for e2, q in enumerate(quads(d, n)): it.append((f"ds_write_b128 v{aR[0]}, {v(q,4)} offset:{((d-1)*6+2*n+e2)*1024}", "rsw"))
        it.append(f"s_xor_b32 s{sT}, s{sK}, {d}\n s_mul_i32 s{sT}, s{sT}, {AA}\n v_add_u32 v{aR[d]}, s{sT}, v{tp}")
    sc.place(it, cR, (e+3)/len(wl), 0.9)
    it = []
    rd = lambda n: [(f"ds_read_b128 {v(q,4)}, v{aR[d]} offset:{((d-1)*6+2*n+e2)*1024}", f"rs{n}{e2}") for e2 in range(2) for d in (1, 2, 3) for q in [quads(d, n)[e2]]]
    it += rd(0)
    it += [[("@", "z1"), f"""v_sub_f32 v{og}, 1.0, v{gt}
    v_lshlrev_b32 v{og+1}, 16, v{og+1}
    v_bfe_u32 v{tp}, v0, 4, 1
    v_mul_f32 v{og+1}, v{og}, v{og+1}"""], f"""v_mul_u32_u24 v{vu}, {44*1024}, v{tp}
    v_and_b32 v{tp}, 15, v0
    v_lshl_add_u32 v{vu}, v{tp}, 4, v{vu}
    v_lshrrev_b32 v{tp}, 5, v0""", f"""v_lshl_add_u32 v{vu+1}, v{tp}, 9, v{vu}
    v_lshl_add_u32 v{vu}, v{tp}, 8, v{vu}"""]
    for n in range(3):
        nr = rd(n+1) if n < 2 else []
        for e2 in range(2):
            for h2 in (0, 2):
                o_, p1, p2, p3 = [quads(d, n)[e2]+h2 for d in range(4)]; zi = z1+4*n+2*e2+h2//2
                it.append([("@", f"rs{n}{e2}"), f"""v_pk_add_f32 {v(o_,2)}, {v(o_,2)}, {v(p1,2)}
                v_pk_add_f32 {v(p2,2)}, {v(p2,2)}, {v(p3,2)}
                v_lshlrev_b32 v{tp}, 16, v{zi}
                v_pk_add_f32 {v(o_,2)}, {v(o_,2)}, {v(p2,2)}"""])
                it.append(f"""v_and_b32 v{tp+1}, 0xffff0000, v{zi}
                v_pk_fma_f32 {v(o_,2)}, {v(o_,2)}, {v(og,2)}, {v(og,2)} op_sel:[0,0,1] op_sel_hi:[1,0,1]
                v_pk_mul_f32 {v(o_,2)}, {v(o_,2)}, {v(tp,2)}
                v_cvt_pk_bf16_f32 v{zi}, v{o_}, v{o_+1}""")
                it += nr[:2]; nr = nr[2:]
        it.append(f"buffer_store_dwordx4 {v(z1+4*n,4)}, v{vu}, {s(sWS,4)}, s{sU} offen offset:{1024*n} sc1")
    it.append(lambda st_: stamp(a, 4))
    it += vo160(vw, tp)
    it.append(f"""v_bfe_u32 v{tp}, v0, 2, 2
    v_lshrrev_b32 v{tp+1}, 5, v0
    v_mad_u32_u24 v{tp}, v{tp+1}, 40, v{tp}
    v_bfe_u32 v{tp+1}, v0, 4, 1""")
    it.append(f"""v_lshl_add_u32 v{aF}, v{tp+1}, 2, v{tp}
    v_mad_u32_u24 v{aX}, v{tp+1}, 20, v{tp}
    v_and_b32 v{tp}, 3, v0
    s_mul_i32 s{sT}, s{sK}, {SG}
    s_add_u32 s{sT}, s{sT}, {SG0}
    v_lshl_add_u32 v{tp}, v{tp}, 3, s{sT}""")
    it.append(f"""v_mul_u32_u24 v{aF}, 160, v{aF}
    v_mul_u32_u24 v{aX}, 160, v{aX}
    v_add_u32 v{aF}, v{aF}, v{tp}
    v_add_u32 v{aX}, v{aX}, v{tp}
    s_mul_i32 s{sWo}, s{sK}, {160*1280}
    s_mul_i32 s{sT2}, s{S_J}, 160
    s_add_u32 s{sWo}, s{sWo}, s{sT2}
    s_add_u32 s{sWo}, s{sWo}, {80*1280}
    s_sub_u32 s{sZo}, s{sAr}, s{sT}""")
    sc.place(it, cR+1, 0.0, 0.95)
    WO = lambda ks, c: BIG+4*(5*ks+c)
    def frags(half, tag):
        L = []
        for ks in (2*half, 2*half+1):
            for c in range(5):
                for p in range(2): L.append((f"ds_read_b64_tr_b16 {v(WO(ks,c)+2*p,2)}, v{aF} offset:{(20*(ks&1)+8*p)*160+32*c}", tag))
        for c in range(5): L.append((f"ds_read_b64_tr_b16 {v(WO(4,c)+2*half,2)}, v{aX} offset:{16*160+32*c}", tag))
        return L
    sc.place(dma160(vw, sW, sWo, sAr, 13, "wol") + frags(0, "woe"), cR+2, 0.0, 0.9)
    if cR+3 <= 16: sc.place([[("@", "wol"), f"v_add_u32 v{aF}, s{sZo}, v{aF}\n v_add_u32 v{aX}, s{sZo}, v{aX}"]] + frags(1, "wof"), cR+3, 0.3 if cR+3 < 16 else 0.0, 0.9)
    sc.emit(st)
    O = r.O; S = r.S; D = 208; t = 244; mx = 226; vA = [4, 5]; aP = [6, 7, 8, 9, 10]; vs = 11
    st(f"""s_mul_i32 s{sT}, s{sK}, 6144
    v_add_u32 v{t}, s{sT}, v{r.aK}
    s_mov_b32 s{sN}, 0""")
    st.w("woe")
    stamp(a, 24); st("s_barrier"); stamp(a, 25)
    for th in range(2):
        for i in range(3): st(f"ds_read_b128 {v(S[th]+4*i,4)}, v{t} offset:{(3*th+i)*1024}", f"po{th}{i}")
    st(f"v_lshlrev_b32 v{vA[0]}, 4, v0\n v_add_u32 v{vA[1]}, 0x1000, v{vA[0]}")
    for i in (2, 0, 1):
        for th in range(2):
            st.w(f"po{th}{i}")
            for h2 in (0, 2): st(f"v_pk_add_f32 {v(O[th]+4*i+h2,2)}, {v(O[th]+4*i+h2,2)}, {v(S[th]+4*i+h2,2)}")
    st(f"{name}_fin:")
    for i in range(4): st(f"v_permlane32_swap_b32 v{O[0]+8+i}, v{O[1]+8+i}")
    L = O[1]+8
    st(f"""
    v_rcp_f32 v{t}, v{L}
    v_cmp_ngt_f32 vcc, 0x5f800000, v{L}
    s_mov_b32 s{sT}, 0x1f800000
    v_mul_f32 v{t}, v{t}, v{gt}
    v_cmp_nlt_f32 {s(sE,2)}, s{sT}, v{L}
    v_mov_b32 v{t+2}, v{t}
    v_mov_b32 v{t+4}, v{t}
    s_or_b64 {s(sE,2)}, {s(sE,2)}, vcc
    v_pk_mul_f32 {v(O[0]+8,2)}, {v(O[0]+8,2)}, {v(t,2)} op_sel_hi:[1,0]
    v_permlane32_swap_b32 v{t+2}, v{t+4}
    v_pk_mul_f32 {v(O[0]+10,2)}, {v(O[0]+10,2)}, {v(t,2)} op_sel_hi:[1,0]
    """)
    for th in range(2):
        for i in range(0, 8, 2): st(f"v_pk_mul_f32 {v(O[th]+i,2)}, {v(O[th]+i,2)}, {v(t+2+2*th,2)} op_sel_hi:[1,0]")
    st(f"v_pk_mul_f32 {v(t+6,2)}, {v(O[0]+8,2)}, 0 op_sel_hi:[1,0]")
    for k_, q in enumerate([O[0]+10] + [O[th]+i for th in range(2) for i in range(0, 8, 2)]):
        st(f"v_pk_fma_f32 {v(t+6,2)}, {v(q,2)}, 0, {v(t+6,2)} op_sel_hi:[1,0,1]")
        if k_ > 0: st(f"v_cvt_pk_bf16_f32 v{D+k_-1}, v{q}, v{q+1}")
    st(f"""
    v_cmp_u_f32 vcc, v{t+6}, v{t+7}
    v_cvt_pk_bf16_f32 v{D+8}, v{O[0]+8}, v{O[0]+9}
    v_cvt_pk_bf16_f32 v{D+9}, v{O[0]+10}, v{O[0]+11}
    s_or_b64 vcc, {s(sE,2)}, vcc
    s_cbranch_vccnz {name}_slow
    {name}_pub:
    buffer_store_dwordx4 {v(D,4)}, v{vu}, {s(sWS,4)}, s{sOa} offen sc1
    buffer_store_dwordx4 {v(D+4,4)}, v{vu}, {s(sWS,4)}, s{sOa} offen offset:512 sc1
    buffer_store_dwordx2 {v(D+8,2)}, v{vu+1}, {s(sWS,4)}, s{sOx} offen sc1
    """)
    stamp(a, 26)
    if cfg.get("drain", 0): st("s_waitcnt vmcnt(0)"); stamp(a, 29)
    if cR+3 > 16:
        st.w("wol"); st(f"v_add_u32 v{aF}, s{sZo}, v{aF}\n v_add_u32 v{aX}, s{sZo}, v{aX}")
        st.run(frags(1, "wof"))
    act = [12+20*i for i in range(4)]
    srd(a, sSP, P_OUT, 2048*1280)
    st(f"""
    v_add_u32 v{aP[0]}, s{sAr}, v{vA[0]}
    s_mul_i32 s{sT}, s{sK}, 5120
    s_add_u32 s{sT}, s{sT}, {KV0}
    v_add_u32 v{aP[4]}, s{sT}, v{vA[0]}
    v_and_b32 v{t}, 15, v0
    v_mul_u32_u24 v{vs}, 0x500, v{t}
    v_lshrrev_b32 v{t}, 4, v0
    v_lshl_add_u32 v{vs}, v{t}, 3, v{vs}
    v_mov_b32 v{aP[1]}, v{aR[1]}
    v_mov_b32 v{aP[2]}, v{aR[2]}
    v_mov_b32 v{aP[3]}, v{aR[3]}
    s_lshl_b32 s{sT}, s{S_TG}, 2
    s_add_u32 s{sT}, s{sT}, s{E["sOwn"]}
    s_mul_i32 s{sO}, s{sT}, {16*1280}
    s_mul_i32 s{sT2}, s{S_J}, 160
    s_add_u32 s{sO}, s{sO}, s{sT2}
    """)
    def ald(st_, i0):
        for i in range(i0, 4):
            for ks in range(5): st_(f"buffer_load_dwordx4 {v(act[i]+4*ks,4)}, v{vA[ks>>2]}, {s(sWS,4)}, s{sAct[i]} offen offset:{1024*(ks&3)} sc1", f"{name}_o{i}")
    ald(st, 0)
    st.w("wof")
    ac2 = [208, 228]; tc = 250
    for i in range(4):
        chk_tile(st, f"{name}_o{i}", act[i], 20, tc, sCnt)
        stamp(a, 27 if i == 0 else 28) if i in (0, 3) else None
        if i == cfg.get("t2", 1): st("s_barrier")
        ex = {}
        if i > 0:
            for c in range(5): ex[c] = (f"ds_write_b128 v{aP[0]}, {v(ac2[(i-1)&1]+4*c,4)} offset:{(i-1)*5120+c*1024}", "pw")
        pr = act[:3] + [ac2[0]]
        if i == 3:
            ex[8] = [("@", "pw"), "s_barrier"]
            for c in range(5):
                for d in range(4): ex.setdefault(9+(4*c+d)*3//4, []).append((f"ds_read_b128 {v(pr[d]+4*c,4)}, v{aP[d+1]} offset:{(d*5120 if d < 3 else 0)+c*1024}", f"pr{c}"))
        for ks in range(5):
            for c in range(5):
                q = ac2[i & 1]+4*c
                st(f"{MF16} {v(q,4)}, {v(WO(ks,c),4)}, {v(act[i]+4*ks,4)}, {'0' if ks == 0 else v(q,4)}")
                if 5*ks+c in ex: st.run(ex[5*ks+c])
    for c in range(5):
        st.w(f"pr{c}"); q = ac2[1]+4*c
        for h2 in (0, 2):
            p = [x+4*c+h2 for x in pr]
            st(f"v_pk_add_f32 {v(p[0],2)}, {v(p[0],2)}, {v(p[1],2)}\n v_pk_add_f32 {v(p[2],2)}, {v(p[2],2)}, {v(p[3],2)}")
        for h2 in (0, 2): st(f"v_pk_add_f32 {v(pr[0]+4*c+h2,2)}, {v(pr[0]+4*c+h2,2)}, {v(pr[2]+4*c+h2,2)}")
        for h2 in (0, 2): st(f"v_pk_add_f32 {v(q+h2,2)}, {v(q+h2,2)}, {v(pr[0]+4*c+h2,2)}")
        st(f"""v_cvt_pk_bf16_f32 v{q}, v{q}, v{q+1}
        v_cvt_pk_bf16_f32 v{q+1}, v{q+2}, v{q+3}
        buffer_store_dwordx2 {v(q,2)}, v{vs}, {s(sSP,4)}, s{sO} offen offset:{32*c}""")
    if TS[0]: st(f"v_writelane_b32 v255, s{sCnt}, 5")
    wend(a, name)
    x = St(a)
    x(f"""{name}_pretry:
    s_cmp_eq_u32 s{sCnt}, 0
    s_cbranch_scc1 {name}_pok
    s_sub_u32 s{sCnt}, s{sCnt}, 1
    {fl}
    s_waitcnt vmcnt(0)
    s_branch {name}_poll""")
    for i in range(4):
        x(f"{name}_o{i}_retry:\n s_cmp_eq_u32 s{sCnt}, 0\n s_cbranch_scc1 {name}_o{i}_ok\n s_sub_u32 s{sCnt}, s{sCnt}, 1")
        ald(x, i); x(f"s_branch {name}_o{i}_chk")
    slow_path(a, name, sWS, sT, sN, [sWb[0], sWb[1], sB, sZb], mx, t)

def slow_path(a, name, sWS, sT, sN, free, mx, t, ix=0):
    S = r.S; O = r.O
    sP, sKo, sK8o, sVo = free
    a(f"""
    {name}_slow:
    s_cmp_lg_u32 s{sN}, 0
    s_cbranch_scc1 {name}_pub
    v_mov_b32 v{mx}, 0xff800000
    v_mov_b32 v{mx+1}, 0xff800000
    s_mov_b32 s{sP}, 0
    {name}_spass:
    s_mov_b32 s{sN}, 0
    """)
    for q in range(0, 32, 2): a(f"v_mov_b64 {v(O[0]+q,2)}, 0")
    a(f"""
    {name}_sloop:
    s_lshr_b32 s{sT}, s{sN}, 2
    s_mul_i32 s{sT}, s{sT}, {KVS}
    s_add_u32 s{sT}, s{sT}, {hx(WS_KV-KV0)}
    s_and_b32 s{sVo}, s{sN}, 3
    s_lshl_b32 s{sKo}, s{sVo}, 10
    s_add_u32 s{sKo}, s{sKo}, s{sT}
    s_mul_i32 s{sVo}, s{sVo}, 1536
    s_add_u32 s{sVo}, s{sVo}, s{sT}
    s_add_u32 s{sVo}, s{sVo}, 5120
    s_bfe_u32 s{sK8o}, s{sN}, 0x10001
    s_lshl_b32 s{sK8o}, s{sK8o}, 9
    s_add_u32 s{sT}, s{sT}, s{sK8o}
    s_and_b32 s{sK8o}, s{sN}, 1
    s_lshl_b32 s{sK8o}, s{sK8o}, 3
    s_add_u32 s{sK8o}, s{sK8o}, s{sT}
    s_add_u32 s{sK8o}, s{sK8o}, 4096
    buffer_load_dwordx4 {v(r.K16,4)}, v{r.aK}, {s(sWS,4)}, s{sKo} offen sc1
    buffer_load_dwordx2 {v(r.K8,2)}, v{r.aK8}, {s(sWS,4)}, s{sK8o} offen sc1
    buffer_load_dwordx4 {v(r.V0,4)}, v{r.aV}, {s(sWS,4)}, s{sVo} offen sc1
    buffer_load_dwordx4 {v(r.V1,4)}, v{r.aV}, {s(sWS,4)}, s{sVo} offen offset:768 sc1
    s_waitcnt vmcnt(0)
    """)
    for th in range(2):
        a(f"{MF32} {v(S[th],16)}, {v(r.K16,4)}, {v(r.Q16[th],4)}, 0")
        a(f"{MF8} {v(S[th],16)}, {v(r.K8,2)}, {v(r.Q8+2*th,2)}, {v(S[th],16)}")
    a(f"""
    s_cmp_lg_u32 s{sP}, 0
    s_nop 10
    s_cbranch_scc1 {name}_s2
    """)
    for th in range(2):
        for q in range(0, 16, 2): a(f"v_max3_f32 v{mx+th}, v{S[th]+q}, v{S[th]+q+1}, v{mx+th}")
    a(f"s_branch {name}_snext\n {name}_s2:")
    for th in range(2):
        for q in range(16): a(f"v_sub_f32 v{S[th]+q}, v{S[th]+q}, v{mx+th}")
        for q in range(16): a(f"v_exp_f32 v{S[th]+q}, v{S[th]+q}")
        if ix:
            a(f"s_nop 1\n {SMF} {v(O[th],16)}, {v(r.V0,4)}, {v(S[th],8)}, v{ix}\n {SMF} {v(O[th],16)}, {v(r.V1,4)}, {v(S[th]+8,8)}, v{ix}"); continue
        for q in range(8): a(f"v_cvt_pk_bf16_f32 v{S[th]+q}, v{S[th]+2*q}, v{S[th]+2*q+1}")
        a(f"""
        s_nop 1
        {MF32} {v(O[th],16)}, {v(r.V0,4)}, {v(S[th],4)}, {v(O[th],16)}
        {MF32} {v(O[th],16)}, {v(r.V1,4)}, {v(S[th]+4,4)}, {v(O[th],16)}
        """)
    a(f"""
    {name}_snext:
    s_add_u32 s{sN}, s{sN}, 1
    s_cmp_lt_u32 s{sN}, 64
    s_cbranch_scc1 {name}_sloop
    s_cmp_lg_u32 s{sP}, 0
    s_nop 8
    s_cbranch_scc1 {name}_fin
    s_mov_b32 s{sP}, 1
    v_mov_b64 {v(t,2)}, {v(mx,2)}
    s_nop 1
    v_permlane32_swap_b32 v{mx}, v{t}
    v_permlane32_swap_b32 v{mx+1}, v{t+1}
    v_max_f32 v{mx}, v{mx}, v{t}
    v_max_f32 v{mx+1}, v{mx+1}, v{t+1}
    s_branch {name}_spass
    """)
```

```python
from kb import *
def waveB(E, st):
    a = E["a"]; name = E["name"]; cfg = E["cfg"]; S_ = E["S_"]; cR = E["cR"]; T = E["T"]
    sWS, sW, sT, sT2, sO, sN, sK, sTH, sHP, sE, sAct = [E[k] for k in "sWS sW sT sT2 sO sN sK sTH sHP sE sAct".split()]
    sKVo = S_(); sKVb = S_(); sSg = S_(); sWo = S_(); sC = S_(2); sCnt = S_(); sFl = S_()
    vz = 4; aF = 5; vw = 6; vA = [11, 252]; t0, t1 = 253, 254
    st(f"""{name}_B:
    s_mul_i32 s{sT}, s{sK}, 3072
    s_add_u32 s{sKVb}, s{sT}, {KV0}
    v_add_u32 v{vz}, s{sT}, v{T}
    s_lshr_b32 s{sKVo}, s{S_TG}, 1
    s_mul_i32 s{sKVo}, s{sKVo}, {KVS}
    s_add_u32 s{sKVo}, s{sKVo}, {hx(WS_KV)}
    """)
    def kv(c):
        L = [(f"s_add_u32 m0, s{sKVb}, {slot(c)}\n s_nop 0\n" if i == 0 else "") + f"buffer_load_dwordx4 v{vz}, {s(sWS,4)}, s{sKVo} offen offset:{1024*i} lds" for i in range(3)]
        L[2] += f"\n s_add_u32 s{sKVo}, s{sKVo}, {KVS}\n s_cmp_eq_u32 s{sKVo}, {hx(WS_KV+16*KVS)}\n s_cselect_b32 s{sKVo}, {hx(WS_KV)}, s{sKVo}"
        return [(x, f"kv{c}") for x in L]
    st.run(kv(0))
    st(E["qld"], "Q")
    zr = BIG; ss = BIG+12; tp = BIG+20; t = BIG+24; vh = BIG+32; vt = BIG+33
    st(f"""
    v_lshrrev_b32 v{vh}, 5, v0
    v_and_b32 v{vt}, 31, v0
    s_lshl_b32 s{sT}, s{S_TG}, 1
    s_add_u32 s{sT2}, s{sT}, s{sHP}
    s_lshl_b32 s{sT}, s{sT2}, 11
    s_add_u32 s{sT}, s{sT}, {hx(WS_ST)}
    v_lshlrev_b32 v{t}, 6, v{vt}
    v_lshl_add_u32 v{t}, v{vh}, 5, v{t}
    buffer_load_dwordx4 {v(ss,4)}, v{t}, {s(sWS,4)}, s{sT} offen
    buffer_load_dwordx4 {v(ss+4,4)}, v{t}, {s(sWS,4)}, s{sT} offen offset:16""", "ss")
    st(f"""
    s_lshl_b32 s{sT}, s{S_TG}, 3
    s_add_u32 s{sT}, s{sT}, s{S_J}
    s_lshl_b32 s{sT}, s{sT}, 2
    s_add_u32 s{sT}, s{sT}, s{sK}
    s_mul_i32 s{sT}, s{sT}, 3072
    s_add_u32 s{sT}, s{sT}, {hx(WS_Z2R)}
    """)
    for n in range(3): st(f"buffer_load_dwordx4 {v(zr+4*n,4)}, v{T}, {s(sWS,4)}, s{sT} offen offset:{1024*n}", "zr")
    st.run(kv(1) + kv(2))
    kv_addr(st, t)
    st.run(vo160(vw, t))
    srd(a, sW, P_WOUT, 768*1280)
    st(f"""
    s_mul_i32 s{sSg}, s{sK}, {SG}
    s_add_u32 s{sSg}, s{sSg}, {SG0}
    s_mul_i32 s{sWo}, s{sK}, {192*1280}
    s_mul_i32 s{sT}, s{S_J}, 160
    s_add_u32 s{sWo}, s{sWo}, s{sT}
    v_lshrrev_b32 v{t}, 2, v0
    v_mul_u32_u24 v{aF}, 160, v{t}
    v_and_b32 v{t}, 3, v0
    v_lshl_add_u32 v{aF}, v{t}, 3, v{aF}
    v_add_u32 v{aF}, s{sSg}, v{aF}
    v_mov_b32 v{vA[0]}, v{T}
    v_add_u32 v{vA[1]}, 0x1000, v{T}
    s_mul_i32 s{sT}, s{sK}, 6144
    s_add_u32 s{sT}, s{sT}, {hx(WS_ACT+20*1024)}
    s_mov_b32 s{sCnt}, 0x8000
    s_mov_b32 s{sC}, {fl(1/768)}
    """)
    for i in range(4): st(f"s_add_u32 s{sAct[i]}, s{sAct[i]}, s{sT}")
    st(f"""
    s_mul_i32 s{sO}, s{sT2}, 6144
    s_mul_i32 s{sT}, s{S_J}, {128*3072}
    s_add_u32 s{sO}, s{sO}, s{sT}
    s_lshl_b32 s{sT}, s{sTH}, 7
    s_add_u32 s{sO}, s{sO}, s{sT}
    s_add_u32 s{sO}, s{sO}, {hx(WS_Z2N)}
    s_lshl_b32 s{sT}, s{S_J}, 5
    s_add_u32 s{sT}, s{sT}, s{S_TG}
    s_lshl_b32 s{sT}, s{sT}, 2
    s_add_u32 s{sT}, s{sT}, s{sK}
    s_lshl_b32 s{sT}, s{sT}, 2
    s_add_u32 s{sFl}, s{sT}, {hx(WS_FLAG)}
    s_mov_b32 s{sT}, s{sSg}
    v_lshlrev_b32 v{t}, 5, v{vt}
    v_lshl_add_u32 v{t}, v{vh}, 3, v{t}
    v_add_u32 v{t}, s{sT}, v{t}
    v_lshrrev_b32 v{t+1}, 4, v0
    v_bfe_u32 v{t+2}, v0, 2, 2
    v_lshl_add_u32 v{t+2}, v{t+1}, 3, v{t+2}
    v_and_b32 v{t+3}, 3, v0
    v_lshlrev_b32 v{t+3}, 3, v{t+3}
    v_lshl_add_u32 v{t+2}, v{t+2}, 5, v{t+3}
    v_add_u32 v{t+2}, s{sT}, v{t+2}
    v_mul_u32_u24 v{t+4}, 3072, v{vh}
    v_and_b32 v{t+5}, 1, v{t+1}
    v_lshl_add_u32 v{t+4}, v{t+5}, 9, v{t+4}
    v_and_b32 v{t+5}, 7, v0
    v_lshl_add_u32 v{t+4}, v{t+5}, 4, v{t+4}
    v_bfe_u32 v{t+5}, v0, 3, 1
    v_lshl_add_u32 v{t+4}, v{t+5}, 8, v{t+4}
    v_cmp_eq_u32 vcc, 0, v0
    v_mov_b32 v{t1}, 1
    s_nop 0
    v_cndmask_b32 v{t0}, -4.0, v0, vcc
    """)
    st.w("kv0")
    stamp(a, 1); st("s_barrier"); stamp(a, 2)
    st.w("ss")
    st(f"""
    v_pk_add_f32 {v(ss,2)}, {v(ss,2)}, {v(ss+2,2)}
    v_pk_add_f32 {v(ss+4,2)}, {v(ss+4,2)}, {v(ss+6,2)}
    v_pk_add_f32 {v(ss,2)}, {v(ss,2)}, {v(ss+4,2)}
    v_mov_b64 {v(ss+2,2)}, {v(ss,2)}
    s_nop 1
    v_permlane32_swap_b32 v{ss}, v{ss+2}
    v_permlane32_swap_b32 v{ss+1}, v{ss+3}
    v_pk_add_f32 {v(ss,2)}, {v(ss,2)}, {v(ss+2,2)}
    v_pk_mul_f32 {v(ss,2)}, {v(ss,2)}, {s(sC,2)} op_sel_hi:[1,0]
    v_fma_f32 v{ss+1}, -v{ss}, v{ss}, v{ss+1}
    v_max_f32 v{ss+1}, 0, v{ss+1}
    v_add_f32 v{ss+1}, {fl(1e-5)}, v{ss+1}
    v_rsq_f32 v{ss+2}, v{ss+1}
    """)
    st.w("zr")
    st(f"v_mul_f32 v{ss+4}, v{ss}, v{ss+2}")
    for i in range(12):
        st(f"""
        v_lshlrev_b32 v{tp+2*(i&1)}, 16, v{zr+i}
        v_and_b32 v{tp+2*(i&1)+1}, 0xffff0000, v{zr+i}
        v_pk_fma_f32 {v(tp+2*(i&1),2)}, {v(tp+2*(i&1),2)}, {v(ss+2,2)}, {v(ss+4,2)} op_sel_hi:[1,0,0] neg_lo:[0,0,1] neg_hi:[0,0,1]
        v_cvt_pk_bf16_f32 v{zr+i}, v{tp+2*(i&1)}, v{tp+2*(i&1)+1}
        """)
        if i & 1: st(f"ds_write_b64 v{t}, {v(zr+i-1,2)} offset:{(i>>2)*1024+((i>>1)&1)*16}")
        if i & 3 == 3:
            for p in range(2): st(f"ds_read_b64_tr_b16 {v(zr+i-3+2*p,2)}, v{t+2} offset:{(i>>2)*1024+p*128}", f"tr{i>>2}")
    for n in range(3):
        st.w(f"tr{n}"); st(f"buffer_store_dwordx4 {v(zr+4*n,4)}, v{t+4}, {s(sWS,4)}, s{sO} offen offset:{1024*n} sc1")
    stamp(a, 3)
    pb = cfg.get("pb", 0)
    sc = attention(1, [[0]*4]*16, None, lambda c: [f"kv{c+1}"] + (["woe"] if c == cR+1 else []), lambda c: [(lambda st_, c=c: stamp(a, 8+c))], lambda c, i: pb if (c, i) == (0, 0) and pb else None)
    f = cfg.get("ff", 120)/100
    sc.place([[f"s_waitcnt vmcnt(0)\n buffer_store_dword v{t1}, v{t0}, {s(sWS,4)}, s{sFl} offen sc1", lambda st_: stamp(a, 4)]] + (kv(3) if f >= 1 else []), int(f), f % 1, min(1.0, f % 1+0.15))
    for c in range(int(f), 13): sc.place(kv(c+3), c+1, 0.02, 0.15)
    WU = lambda ks, c: BIG+4*(5*ks+c)
    w0 = cfg.get("w0", 1)
    for pc in range(3):
        sc.place([("@", "wur")] + dma160(vw, sW, sWo, sSg, 10, "wud"), w0+3*pc, 0.25 if w0+3*pc > f else f % 1+0.2, 0.9)
        sc.place([("@", "wud")] + [(f"ds_read_b64_tr_b16 {v(WU(2*pc+k2,c)+2*p,2)}, v{aF} offset:{k2*5120+p*2560+32*c}", "wur") for k2 in range(2) for c in range(5) for p in range(2)], w0+3*pc+2, 0.2, 0.95)
    sc.place([[("@", "wur"), f"""s_mov_b32 s{sW}, s{P_WO}
    s_mov_b32 s{sW+1}, s{P_WO+1}
    s_mov_b32 s{sW+2}, {640*1280}
    s_mul_i32 s{sWo}, s{sK}, {160*1280}
    s_mul_i32 s{sT}, s{S_J}, 160
    s_add_u32 s{sWo}, s{sWo}, s{sT}"""]] + dma160(vw, sW, sWo, sSg, 13, "woe", True), w0+9, 0.25, 0.9)
    act = [224, 12, 36, 60]
    def ald(i): return [(f"buffer_load_dwordx4 {v(act[i]+4*ks,4)}, v{vA[ks>>2]}, {s(sWS,4)}, s{sAct[i]} offen offset:{1024*(ks&3)} sc1", f"{name}_u{i}") for ks in range(6)]
    aP = [5, 6, 7, 8, 9]; aO = 10
    sc.place([f"""s_mul_i32 s{sT}, s{sK}, 6144
    v_add_u32 v{aO}, s{sT}, v{r.aK}
    s_mul_i32 s{sT}, s{sK}, 5120
    v_add_u32 v{aP[4]}, s{sT}, v{r.aK}"""] + [f"""s_xor_b32 s{sT}, s{sK}, {d}
    s_mul_i32 s{sT}, s{sT}, 15360
    s_add_u32 s{sT}, s{sT}, {PB0}
    v_add_u32 v{aP[d]}, s{sT}, v{vA[0]}""" for d in range(4)], 15, 0.3, 0.8)
    sc.place(ald(0), 16, cfg.get("u0", 50)/100, 0.95)
    sc.emit(st)
    for th in range(2):
        if th: st("s_nop 8")
        for i in range(3): st(f"ds_write_b128 v{aO}, {v(r.O[th]+4*i,4)} offset:{(3*th+i)*1024}", "po")
    st.run(ald(1))
    st.w("po")
    stamp(a, 24); st("s_barrier"); stamp(a, 25)
    st.run(ald(2) + ald(3))
    ac = [84, 224, 84, 224]; tc = 250; pr = [12, 36, 84]
    for i in range(4):
        chk_tile(st, f"{name}_u{i}", act[i], 24, tc, sCnt)
        stamp(a, 26+i)
        ex = {}
        if i > 0:
            for c in range(5): ex[c] = (f"ds_write_b128 v{aP[0]}, {v(ac[i-1]+4*c,4)} offset:{(i-1)*5120+c*1024}", "pw")
        if i == 3:
            ex[9] = [("@", "pw"), "s_barrier"]
            for c in range(5):
                for d in range(3): ex[10+3*c+d] = (f"ds_read_b128 {v(pr[d]+4*c,4)}, v{aP[d+1]} offset:{d*5120+c*1024}", f"pr{c}")
        for ks in range(6):
            for c in range(5):
                q = ac[i]+4*c
                st(f"{MF16} {v(q,4)}, {v(WU(ks,c),4)}, {v(act[i]+4*ks,4)}, {'0' if ks == 0 else v(q,4)}")
                if 5*ks+c in ex: st.run(ex[5*ks+c])
    for c in range(5):
        st.w(f"pr{c}"); q = ac[3]+4*c
        for h2 in (0, 2): st(f"v_pk_add_f32 {v(pr[0]+4*c+h2,2)}, {v(pr[0]+4*c+h2,2)}, {v(pr[1]+4*c+h2,2)}")
        for h2 in (0, 2): st(f"v_pk_add_f32 {v(pr[0]+4*c+h2,2)}, {v(pr[0]+4*c+h2,2)}, {v(pr[2]+4*c+h2,2)}")
        for h2 in (0, 2): st(f"v_pk_add_f32 {v(q+h2,2)}, {v(q+h2,2)}, {v(pr[0]+4*c+h2,2)}")
        st(f"ds_write_b128 v{aP[4]}, {v(q,4)} offset:{c*1024}")
    st("s_waitcnt lgkmcnt(0)")
    stamp(a, 30)
    st("s_barrier")
    if TS[0]: st(f"v_writelane_b32 v255, s{sCnt}, 5")
    wend(a, name)
    x = St(a)
    for i in range(4):
        x(f"{name}_u{i}_retry:\n s_cmp_eq_u32 s{sCnt}, 0\n s_cbranch_scc1 {name}_u{i}_ok\n s_sub_u32 s{sCnt}, s{sCnt}, 1")
        for k_ in range(i, 4): x.run(ald(k_))
        x(f"s_branch {name}_u{i}_chk")
```

```python
from asmlib import *
import math, struct
def f2u(x): return struct.unpack("<I", struct.pack("<f", x))[0]
def hx(x): return f"0x{x & 0xffffffff:x}"
def fl(x): return hx(f2u(x))
QF_HEAD = 2560
WS_QF  = 0
WS_KV  = WS_QF + 32*32*QF_HEAD
WS_Z2R = WS_KV + 16*12288
WS_Z1  = WS_Z2R + 256*12288
WS_ST  = WS_Z1 + 256*12288
WS_Z2N = WS_ST + 2048*64
WS_ACT = WS_Z2N + 8*128*3072
WS_GATE= WS_ACT + 128*44*1024
WS_FLAG= WS_GATE + 8192
WS_PK  = WS_FLAG + 65536
WS_ST2 = WS_PK + 32*11*5120
WS_F1  = WS_ST2 + 64*4096
WS_EP  = WS_F1 + 4096
WS_END = WS_EP + 4096
WS_TS = WS_END
WS_ALL = WS_TS + 3*256*8*256
LOG2E = 1.4426950408889634
QSCALE = LOG2E / math.sqrt(20.0)
GK1 = 2.0 * LOG2E * math.sqrt(2.0 / math.pi)
GK2 = GK1 * 0.044715
P_X,P_WQ,P_WK,P_WV,P_WO,P_BX,P_WIN,P_WSP,P_BSP,P_WOUT,P_GW,P_OUT,P_DBG,P_WS = range(4,32,2)
S_TG, S_J, S_W = 32, 33, 34
def header(a, name, JB):
    a(f"""
.globl {name}
.p2align 8
.type {name},@function
{name}:
    s_cmp_ge_u32 s2, 0x100
    s_cbranch_scc1 {name}_exit
""")
    stamp_init(a)
    a(f"""
    s_load_dwordx16 s[4:19], s[0:1], 0
    s_load_dwordx8 s[20:27], s[0:1], 64
    s_load_dwordx4 s[28:31], s[0:1], 96
    v_lshrrev_b32 v1, 6, v0
    v_and_b32 v0, 63, v0
    s_lshr_b32 s3, s2, 3
    v_readfirstlane_b32 s{S_W}, v1
    s_and_b32 s{S_J}, s3, {(1<<JB)-1}
    s_lshr_b32 s{S_TG}, s3, {JB}
""")
    if JB < 3:
        a(f"""
    s_and_b32 s3, s2, {(8>>JB)-1}
    s_lshl_b32 s3, s3, {JB}
    s_or_b32 s{S_J}, s{S_J}, s3
""")
    if JB > 0:
        a(f"""
    s_bfe_u32 s3, s2, {hx((JB<<16)|(3-JB))}
    s_lshl_b32 s3, s3, {5-JB}
    s_or_b32 s{S_TG}, s{S_TG}, s3
""")
def srd(a, d, p, nbytes):
    a(f"""
    s_mov_b32 s{d}, s{p}
    s_mov_b32 s{d+1}, s{p+1}
    s_mov_b32 s{d+2}, {hx(nbytes)}
    s_mov_b32 s{d+3}, 0x20000
""")
def footer(a, name, kern=0):
    a(f"{name}_end:")
    stamp_flush(a, kern)
    pad_wait(a, kern, name)
    a(f"{name}_exit:\n s_endpgm")
def wend(a, name):
    a(f"s_branch {name}_end" if TS[0] else "s_endpgm")
def descriptor(name, nv):
    nv = 256 if TS[0] else (nv + 7) // 8 * 8
    return f""".p2align 6
.amdhsa_kernel {name}
  .amdhsa_next_free_vgpr {nv}
  .amdhsa_next_free_sgpr 102
  .amdhsa_accum_offset {nv}
  .amdhsa_group_segment_fixed_size 0
  .amdhsa_kernarg_size 112
  .amdhsa_user_sgpr_count 2
  .amdhsa_user_sgpr_kernarg_segment_ptr 1
  .amdhsa_system_sgpr_workgroup_id_x 1
.end_amdhsa_kernel
"""
def gelu16(a, x, t0, sK, sum2=None, sq2=None):
    P = range(0, 16, 2)
    for i in P: a(f"v_pk_mul_f32 {v(t0+i,2)}, {v(x+i,2)}, {v(x+i,2)}")
    for i in P: a(f"v_pk_fma_f32 {v(t0+i,2)}, {v(t0+i,2)}, {s(sK,2)}, {v(sK_v(a),2)}")
    for i in P: a(f"v_pk_mul_f32 {v(t0+i,2)}, {v(t0+i,2)}, {v(x+i,2)}")
    for i in range(16): a(f"v_exp_f32 {v(t0+i)}, {v(t0+i)}")
    for i in P: a(f"v_pk_add_f32 {v(t0+i,2)}, {v(t0+i,2)}, 1.0 op_sel_hi:[1,0]")
    for i in range(16): a(f"v_rcp_f32 {v(t0+i)}, {v(t0+i)}")
    for i in P: a(f"v_pk_mul_f32 {v(x+i,2)}, {v(x+i,2)}, {v(t0+i,2)}")
    if sum2 is not None:
        for i in P:
            a(f"v_pk_add_f32 {v(sum2,2)}, {v(sum2,2)}, {v(x+i,2)}")
            a(f"v_pk_fma_f32 {v(sq2,2)}, {v(x+i,2)}, {v(x+i,2)}, {v(sq2,2)}")
def sK_v(a): return a.vK1

TS = [0]
def stamp(a, k):
    if not TS[0]: return
    a(f"""s_waitcnt lgkmcnt(0)
    s_memrealtime s[96:97]
    s_memtime s[98:99]
    s_waitcnt lgkmcnt(0)
    v_writelane_b32 v255, s96, {k}
    v_writelane_b32 v255, s98, {32+k}""")
def stamp_m(a, sreg):
    if not TS[0]: return
    a(f"""s_waitcnt lgkmcnt(0)
    s_memrealtime s[96:97]
    s_memtime s[98:99]
    s_mov_b32 s95, m0
    s_mov_b32 m0, s{sreg}
    s_waitcnt lgkmcnt(0)
    v_writelane_b32 v255, s96, m0
    s_bitset1_b32 m0, 5
    v_writelane_b32 v255, s98, m0
    s_mov_b32 m0, s95""")
def stamp_init(a):
    if not TS[0]: return
    a("v_mov_b32 v255, 0")
    stamp(a, 0)
def stamp_flush(a, kern):
    if not TS[0]: return
    a("s_waitcnt vmcnt(0)")
    stamp(a, 31)
    a(f"""
    s_mov_b32 s88, s{P_WS}
    s_mov_b32 s89, s{P_WS+1}
    s_mov_b32 s90, {hx(WS_ALL)}
    s_mov_b32 s91, 0x20000
    s_lshl_b32 s92, s2, 3
    s_add_u32 s92, s92, s{S_W}
    s_lshl_b32 s92, s92, 8
    s_add_u32 s92, s92, {hx(WS_TS + kern*256*8*256)}
    v_mbcnt_lo_u32_b32 v2, -1, 0
    v_mbcnt_hi_u32_b32 v2, -1, v2
    v_lshlrev_b32 v2, 2, v2
    buffer_store_dword v255, v2, s[88:91], s92 offen
    """)
PAD = [None]
def pad_wait(a, kern, name):
    if not TS[0] or PAD[0] is None or PAD[0][0] != kern: return
    _, k, w, sl = PAD[0]
    a(f"""
    s_cmp_lg_u32 s2, 0
    s_cbranch_scc1 {name}_exit
    s_cmp_lg_u32 s{S_W}, {w}
    s_cbranch_scc1 {name}_exit
    s_waitcnt vmcnt(0)
    v_mov_b32 v2, 0
    s_mov_b32 s92, {hx(WS_TS + k*256*8*256 + w*256 + sl*4)}
    buffer_load_dword v3, v2, s[88:91], s92 offen sc1
    s_waitcnt vmcnt(0)
    v_readfirstlane_b32 s93, v3
    s_mov_b32 s94, 0x20000
    {name}_padl:
    s_memrealtime s[96:97]
    s_sub_u32 s94, s94, 1
    s_cbranch_scc1 {name}_exit
    s_waitcnt lgkmcnt(0)
    s_sub_u32 s96, s96, s93
    s_cmp_lt_u32 s96, 10000
    s_cbranch_scc1 {name}_padl
    """)
```

```python
from kb import *
X0 = KV0; XP = [3, 4, 0, 1, 2, 5, 6, 7, 8, 9]
xblk = lambda i: 8192*XP[i]
MISC = X0 + 81920; GATE = MISC; STX = MISC + 1280; LNS = MISC + 3328
QX = X0 + 5*8192; Z1P = QX + 12288; Z1W = 4096
TX = X0 - 12288; PKS = Z1P + 16384
SZ = [14848]*10 + [12288]*10 + [10240]*10
POS = []; FREE = []
p_ = 0
for s_, z_ in enumerate(SZ):
    if p_ + z_ > (X0 if s_ < 10 else TX): p_ = 0
    POS.append(p_)
    FREE.append(max([q+1 for q in range(s_) if POS[q] < p_+z_ and p_ < POS[q]+SZ[q]] + FREE[-1:], default=-1))
    p_ += z_
TAGC = 0x9E3779B9
def pkloads(reg, n, vA, sWS, sPk, tag):
    return [((f"s_add_u32 s{sPk}, s{sPk}, 0x1000\n" if i and i % 4 == 0 else "") +
             f"buffer_load_dwordx4 {v(reg+4*i,4)}, v{vA}, {s(sWS,4)}, s{sPk} offen offset:{1024*(i&3)} sc1", tag) for i in range(n)]
def kf(name, JB=2, cfg={}):
    a = Asm(); header(a, name, JB)
    S_ = Regs(36, 95)
    sWS = S_(4); sW = S_(4); sAct = [S_() for i in range(4)]; sT = S_(); sT2 = S_(); sO = S_(); sN = S_(); sK = S_(); sTH = S_(); sHP = S_(); sE = S_(2); sOwn = S_(); sTag = S_()
    gS = cfg.get("gs", 3); cR = cfg.get("cr", 13)
    st = St(a)
    st(f"""
    s_and_b32 s{sK}, s{S_W}, 3
    s_cmp_ge_u32 s{S_W}, 4
    s_cbranch_scc1 {name}_B
    """)
    def common(st):
        st(f"s_and_b32 s{sTH}, s{S_W}, 1\n s_bfe_u32 s{sHP}, s{S_W}, 0x10001")
        st(f"s_xor_b32 s{sOwn}, s{sK}, s{S_J}\n s_and_b32 s{sOwn}, s{sOwn}, 3" if cfg.get("rot", 1) else f"s_mov_b32 s{sOwn}, s{sK}")
        for i in range(4):
            st(f"""s_xor_b32 s{sT}, s{sOwn}, {(i+1)&3}
            s_lshl_b32 s{sT2}, s{S_TG}, 2
            s_add_u32 s{sT}, s{sT}, s{sT2}
            s_mul_i32 s{sAct[i]}, s{sT}, {44*1024}""")
    nsC = S_.n
    from kfA import waveA
    from kfB import waveB
    env = dict(locals())
    waveA(env, st.fork())
    S_.n = nsC
    waveB(env, st.fork())
    footer(a, name, 0)
    return a, 256, 163840, 512
if __name__ == "__main__": print(POS, FREE)
```

```python
from kfA1 import *
from kbA import slow_path
def waveA(E, st):
    a = E["a"]; name = E["name"]; cfg = E["cfg"]; S_ = E["S_"]; gS = E["gS"]; cR = E["cR"]; JB = E["JB"]
    sWS, sW, sT, sT2, sO, sN, sK, sTH, sHP, sE, sAct, sTag = [E[k] for k in "sWS sW sT sT2 sO sN sK sTH sHP sE sAct sTag".split()]
    sSP = S_(4); sBS = S_(4); sAr = S_(); sWb = [S_(), S_()]; sB = S_(); sWo = S_(); sZb = S_(); sZn = S_(); sZo = S_(); sFl = S_(); sCnt = S_(); sU = S_(); sOa = S_(); sOx = S_()
    sGm = S_(2); sF3 = S_(); sPk = S_(); sSc = S_(); C = lambda k, d: cfg.get(k, d)/10
    aW = [4, 5, 6, 7]; vl = 8; vo = [9, 10, 11, 252]; acc = BIG; W = [200, 204]; NZ = 11; Z = [208+4*z for z in range(NZ)]; t0, t1 = 253, 254
    T = 12; vE = 162; vu = 250
    st(f"v_lshlrev_b32 v{vSt}, 4, v0\n s_setprio {cfg.get('p1', 1)}")
    E["common"](st)
    kv_addr(st, T+4)
    st(f"v_mov_b32 v{T}, v{vSt}")
    st(f"""
    s_mul_i32 s{sAr}, s{sK}, {AA}
    s_lshl_b32 s{sT}, s{S_TG}, 1
    s_add_u32 s{sT}, s{sT}, s{sTH}
    s_lshl_b32 s{sT2}, s{sK}, 10
    s_lshl_b32 s{sWb[0]}, s{sT}, 17
    s_add_u32 s{sWb[0]}, s{sWb[0]}, s{sT2}
    s_xor_b32 s{sWb[1]}, s{sWb[0]}, 0x20000
    s_and_b32 s{sB}, s{S_TG}, 7
    s_lshl_b32 s{sB}, s{sB}, 7
    s_mov_b32 s{sZn}, s{sB}
    s_mul_i32 s{sU}, s{sT}, {88*1024}
    s_add_u32 s{sU}, s{sU}, {hx(WS_ACT)}
    s_lshl_b32 s{sT}, s{S_J}, 2
    s_add_u32 s{sT}, s{sT}, s{sK}
    s_mul_i32 s{sZb}, s{sT}, {8*12288}
    s_add_u32 s{sZb}, s{sZb}, {hx(WS_Z2N)}
    s_lshl_b32 s{sFl}, s{sT}, 7
    s_add_u32 s{sFl}, s{sFl}, {hx(WS_FLAG)}
    v_lshrrev_b32 v{T+4}, 3, v0
    v_lshlrev_b32 v{T+4}, 12, v{T+4}
    v_lshrrev_b32 v{T+5}, 4, v0
    v_and_b32 v{T+6}, 7, v0
    v_xor_b32 v{T+5}, v{T+5}, v{T+6}
    v_lshl_add_u32 v{vo[0]}, v{T+5}, 4, v{T+4}
    v_xor_b32 v{T+5}, 64, v{vo[0]}
    v_add_u32 v{vo[1]}, {32768-1024}, v{T+5}
    v_add_u32 v{vo[2]}, {2*(32768-1024)}, v{vo[0]}
    v_add_u32 v{vo[3]}, {3*(32768-1024)}, v{T+5}
    v_lshrrev_b32 v{T+4}, 5, v0
    v_bfe_u32 v{T+5}, v0, 1, 3
    v_xor_b32 v{T+5}, v{T+5}, v{T+4}
    v_lshlrev_b32 v{T+5}, 4, v{T+5}
    v_and_b32 v{T+6}, 31, v0
    v_lshl_add_u32 v{T+5}, v{T+6}, 7, v{T+5}
    v_lshlrev_b32 v{t0}, 2, v{T+6}
    s_lshl_b32 s{sT}, s{sHP}, 7
    v_xor_b32 v{vl}, s{sT}, v{T}
    s_mov_b32 s{sCnt}, 0x8000
    """)
    for i in range(4): st(f"v_xor_b32 v{aW[i]}, {hx(32*i)}, v{T+5}\n v_add_u32 v{aW[i]}, s{sAr}, v{aW[i]}")
    st(f"""
    s_lshr_b32 s{sT}, s{S_J}, 1
    s_mul_i32 s{sT}, s{sT}, 5120
    s_add_u32 s{sOa}, s{sU}, s{sT}
    s_and_b32 s{sT}, s{S_J}, 1
    s_lshl_b32 s{sT}, s{sT}, 1
    s_add_u32 s{sT}, s{sT}, s{sHP}
    s_lshl_b32 s{sT2}, s{sT}, 8
    s_add_u32 s{sOx}, s{sOa}, s{sT2}
    s_add_u32 s{sOx}, s{sOx}, 4096
    s_lshl_b32 s{sT}, s{sT}, 10
    s_add_u32 s{sOa}, s{sOa}, s{sT}
    s_mul_i32 s{sT}, s{S_J}, 3072
    s_add_u32 s{sU}, s{sU}, s{sT}
    s_lshl_b32 s{sT}, s{sHP}, 9
    s_add_u32 s{sU}, s{sU}, s{sT}
    s_add_u32 s{sU}, s{sU}, {20*1024}
    s_mul_i32 s{sT}, s{sK}, 5120
    s_add_u32 s{sT}, s{sT}, {hx(WS_ACT)}
    """)
    for i in range(4): st(f"s_add_u32 s{sAct[i]}, s{sAct[i]}, s{sT}")
    uaddr = lambda vu, tp: [f"""v_bfe_u32 v{tp}, v0, 4, 1
    v_mul_u32_u24 v{vu}, {44*1024}, v{tp}
    v_and_b32 v{tp}, 15, v0""", f"""v_cmp_gt_u32 vcc, 32, v0
    v_lshl_add_u32 v{vu}, v{tp}, 4, v{vu}
    v_lshrrev_b32 v{tp}, 5, v0
    v_cndmask_b32 v{vu+1}, -4.0, v{vu}, vcc
    v_lshl_add_u32 v{vu}, v{tp}, 8, v{vu}"""]
    h, e, cb, tok = T+1, T+2, T+3, T+4
    st(f"""
    v_lshrrev_b32 v{h}, 5, v0
    v_bfe_u32 v{e}, v0, 2, 2
    v_and_b32 v{tok}, 31, v0
    v_bfe_u32 v{cb}, v0, 4, 1
    v_and_b32 v{T+5}, 3, v0
    v_lshlrev_b32 v{T+5}, 3, v{T+5}
    v_lshl_add_u32 v{cb}, v{cb}, 5, v{T+5}
    v_lshl_add_u32 v{T+6}, v{h}, 3, v{e}
    s_mul_i32 s{sT}, s{sHP}, 96
    v_mul_u32_u24 v{aZ[0]}, 192, v{T+6}
    v_add3_u32 v{aZ[0]}, v{aZ[0]}, v{cb}, s{sT}
    v_mad_u32_u24 v{T+7}, v{T+6}, 40, v{T+5}
    v_add_u32 v{T+6}, v{T+6}, v{e}
    s_mul_i32 s{sT}, s{sHP}, 40
    v_mul_u32_u24 v{aQ[0]}, 160, v{T+6}
    v_add3_u32 v{aQ[0]}, v{aQ[0]}, v{cb}, s{sT}
    v_add_u32 v{aZ[1]}, 0x8000, v{aZ[0]}
    v_add_u32 v{aQ[1]}, 0x8000, v{aQ[0]}
    v_lshlrev_b32 v{aG}, 4, v{h}
    v_add_u32 v{aG}, {GATE}, v{aG}
    s_lshl_b32 s{sT}, s{sTH}, 12
    s_add_u32 s{sT}, s{sT}, {X0}
    s_sub_u32 s{sT}, s{sT}, s{sAr}
    s_mov_b32 s{sGm}, 0xff000000
    s_mov_b32 s{sGm+1}, 0xff000000
    v_mov_b64 {v(r.Q8,2)}, 0
    v_mov_b64 {v(r.Q8+2,2)}, 0
    """)
    for i in range(4): st(f"v_add_u32 v{aX[0][i]}, s{sT}, v{aW[i]}\n v_add_u32 v{aX[1][i]}, 0x10000, v{aX[0][i]}")
    st(f"""
    s_cmp_lt_u32 s{S_J}, 2
    s_cselect_b32 vcc_lo, 0xffff0000, 0
    s_mov_b32 vcc_hi, vcc_lo
    s_lshl_b32 s{sT}, s{sHP}, 5
    v_add_u32 v{T+7}, s{sT}, v{T+7}""")
    for i in range(8): st(f"""v_add_u32 v{T+8}, {768*(i&1)+3072*(i>>1)+64}, v{aZ[0]}
    v_add_u32 v{T+9}, {12288+160*(i&1)+640*(i>>1)}, v{T+7}
    v_cndmask_b32 v{aKV+i}, v{T+8}, v{T+9}, vcc""")
    st(f"""
    s_lshl_b32 s{sT}, s{sK}, 10
    s_add_u32 s{sT}, s{sT}, {LNS}
    v_lshl_add_u32 v{aLw}, v{tok}, 5, s{sT}
    v_lshl_add_u32 v{aLw}, v{h}, 3, v{aLw}
    s_lshl_b32 s{sT}, s{sK}, 12
    s_add_u32 s{sT}, s{sT}, {Z1P}
    v_add_u32 v{aPark}, s{sT}, v{vSt}
    s_mul_i32 s{sT}, s{sK}, 3072
    v_add_u32 v{aS}, s{sT}, v{vSt}
    v_add_u32 v{aTX}, {TX}, v{aS}
    v_add_u32 v{aS}, {QX}, v{aS}
    s_lshl_b32 s{sT}, s{S_TG}, 3
    s_add_u32 s{sT}, s{sT}, s{S_J}
    s_lshl_b32 s{sT}, s{sT}, 2
    s_add_u32 s{sT}, s{sT}, s{sK}
    s_lshl_b32 s{sT}, s{sT}, 2
    s_add_u32 s{sF3}, s{sT}, {hx(WS_FLAG+8192)}
    s_cmp_eq_u32 s{S_J}, 0
    s_cselect_b32 s{sSc}, {fl(QSCALE)}, 1.0
    s_waitcnt lgkmcnt(0)""")
    srd(a, sWS, P_WS, WS_END); srd(a, sSP, P_WSP, 2048*4096); srd(a, sBS, P_BSP, 4096)
    st(f"s_mov_b32 s{sT}, {hx(WS_EP)}\n buffer_load_dword v{vE}, off, {s(sWS,4)}, s{sT}\n s_barrier", "ep")
    stamp(a, 1)
    sc = Sched()
    for x in reads(0, sGm) + reads(1, sGm): sc.op(x)
    gemm(sc, 0, 120, sGm)
    sc.place([[("@", "ep"), f"v_readfirstlane_b32 s{sTag}, v{vE}"], f"s_add_u32 s{sTag}, s{sTag}, {hx(TAGC)}"], 8, 0.2, 0.8)
    if not cfg.get("tsb"): sc.place([lambda st_: stamp(a, 2)], 10, 0, 0); sc.place([lambda st_: stamp(a, 6)], 20, 0, 0)
    def kvx(st_):
        q = Z2+24
        a(f"s_cmp_ge_u32 s{S_J}, 2\n s_cbranch_scc1 {name}_nokv")
        for i in range(8): a(f"v_mul_f32 v{q+i}, s{sSc}, v{q+i}")
        for i in range(4): a(f"v_cvt_pk_bf16_f32 v{q+i}, v{q+2*i}, v{q+2*i+1}")
        a(f"ds_write_b64 v{aLw}, {v(q,2)}\n ds_write_b64 v{aLw}, {v(q+2,2)} offset:16\n {name}_nokv:")
    for b, q in ((10, Z2), (20, Z1)):
        hx_ = lambda n: [f"v_cvt_pk_bf16_f32 v{q+8*n+i}, v{q+8*n+2*i}, v{q+8*n+2*i+1}" for i in range(4)] + [(f"ds_write_b128 v{aTX}, {v(q+8*n,4)} offset:{1024*n}", "tx")]
        span(sc, hx_(0) + hx_(1), b+0.6, b+0.95, 0)
        span(sc, hx_(2) + ([kvx] if b == 10 else []), b+1.2, b+1.6, 0)
    sc.emit(st)
    st("s_nop 9")
    for ab in range(2):
        for i in range(4): st(f"v_cvt_pk_bf16_f32 v{r.Q16[ab]+i}, v{QA+16*ab+2*i}, v{QA+16*ab+2*i+1}")
        st(f"ds_write_b128 v{aS}, {v(r.Q16[ab],4)} offset:{1024*ab}", "qx")
    st("s_mov_b32 exec_hi, 0")
    for i in range(4): st(f"v_cvt_pk_bf16_f32 v{r.Q8+i}, v{QA+16*(i>>1)+8+2*(i&1)}, v{QA+16*(i>>1)+9+2*(i&1)}")
    st(f"s_mov_b32 exec_hi, -1\n ds_write_b128 v{aS}, {v(r.Q8,4)} offset:2048\n v_mul_f32 v{gl}, {fl(-LOG2E)}, v{QA+12}", "qx")
    st.w("qx"); st("s_barrier"); stamp(a, 7)
    def wsp(blk):
        L = []
        for b in range(8):
            x = ""
            if b & 3 == 0: x = f"s_add_u32 m0, s{sAr}, {(blk&1)*8192+b*1024}\n s_add_u32 s{sWo}, s{sWb[b>>2]}, s{sB}\n"
            x += f"buffer_load_dwordx4 v{vo[b&3]}, {s(sSP,4)}, s{sWo} offen offset:{(b&3)*1024} lds\n"
            if b == 7: x += f"s_add_u32 s{sB}, s{sB}, 128\n s_and_b32 s{sB}, s{sB}, 0x3ff"
            L.append((x, f"wsp{blk}"))
        return L
    def zld(f):
        ks, n = divmod(f, 3); x = ""
        if f % 12 == 0: x = f"s_mul_i32 s{sZo}, s{sZn}, 96\n s_add_u32 s{sZn}, s{sZn}, 128\n s_add_u32 s{sZo}, s{sZo}, s{sZb}\n s_and_b32 s{sZn}, s{sZn}, 0x3ff\n"
        elif n == 0: x = f"s_add_u32 s{sZo}, s{sZo}, 3072\n"
        return (x + f"buffer_load_dwordx4 {v(Z[f%NZ],4)}, v{vl}, {s(sWS,4)}, s{sZo} offen offset:{1024*n} sc1", f"z{f}")
    rW = lambda ks, th: [("@", f"wsp{ks>>2}"), (f"ds_read_b128 {v(W[th],4)}, v{aW[ks&3]} offset:{((ks>>2)&1)*8192+th*4096}", f"W{th}")]
    G = dict(m=0, q=[])
    DPG = cfg.get("dpg", 1)
    def gop():
        m = G["m"]; G["m"] += 1
        ks, th, n = m//6, (m % 6)//3, m % 3; f = 3*ks+n; ac = acc+48*th+16*n
        it = [("@", f"z{f}", f"W{th}"), f"{MF32} {v(ac,16)}, {v(Z[f%NZ],4)}, {v(W[th],4)}, {'0' if ks == 0 else v(ac,16)}"]
        if n == 2 and ks < 31: it += rW(ks+1, th)
        if th == 1 and f+NZ < 96: it.append(zld(f+NZ))
        if m % 24 == 21 and m//24 + 2 < 8: G["q"] = wsp(m//24 + 2)
        it += G["q"][:DPG]; G["q"] = G["q"][DPG:]
        if m == 191: it.append("; end of G")
        return it
    np_ = (cR-gS)*4
    dens = [[0]*4 for c in range(16)]
    for p in range(np_): dens[gS+p//4][p % 4] = 192*(p+1)//np_ - 192*p//np_
    pa = cfg.get("pa", 1)
    sc = attention(0, dens, gop, lambda c: ["rsw"], lambda c: [(lambda st_, c=c: stamp(a, 8+c))], lambda c, i: pa if (c, i) == (0, 0) and pa != cfg.get("p1", 1) else None)
    sc.place([f"v_exp_f32 v{gl}, v{gl}", f"v_add_f32 v{gl}, 1.0, v{gl}", f"v_rcp_f32 v{gl}, v{gl}", f"ds_write_b32 v{aPark}, v{gl} offset:3072"], 0, 0.02, 0.1)
    ff = C("ff", 310)
    span(sc, wsp(0) + wsp(1), ff, ff+C("fl", 6), 30)
    span(sc, uaddr(vu, tg_) + [f"v_mov_b64 {v(tg_,2)}, -1\n v_mov_b64 {v(tg_+2,2)}, -1", f"buffer_store_dwordx4 {v(tg_,4)}, v{vu}, {s(sWS,4)}, s{sOa} offen sc1",
         f"buffer_store_dwordx4 {v(tg_,4)}, v{vu}, {s(sWS,4)}, s{sOa} offen offset:512 sc1", f"buffer_store_dwordx4 {v(tg_,4)}, v{vu+1}, {s(sWS,4)}, s{sOx} offen sc1"], C("s0", 302), C("s1", 309), 30)
    fld = f"buffer_load_dword v{t1}, v{t0}, {s(sWS,4)}, s{sFl} offen sc1"
    def poll(st_):
        st_(f"{name}_poll:"); st_.w("F")
        st_(f"v_cmp_ne_u32 vcc, s{sTag}, v{t1}\n s_cbranch_vccnz {name}_pretry\n {name}_pok:")
        stamp(a, 3)
    sc.place([(fld, "F")], gS-1, cfg.get("f0", 20)/100, cfg.get("f0", 20)/100)
    sc.place([poll] + [zld(f) for f in range(NZ)], gS-1, cfg.get("f1", 60)/100, 1.0)
    sc.place([rW(0, 0), rW(0, 1)], gS, 0.1, 0.2)
    z1 = 208; og = 220; gt = 222; tp = 224; aR = [228, 229, 230, 231]; vu = 232; aF = 240; vt = 242
    quads = lambda d, n: [acc+48*(d & 1)+16*n+4*(d >> 1), acc+48*(d & 1)+16*n+4*(d >> 1)+8]
    wl = sc.win[cR]; e = max(i for i, o in enumerate(wl) if isinstance(o, list) and "; end of G" in o)
    it = [f"""v_lshlrev_b32 v{aF}, 4, v0
    v_add_u32 v{aR[0]}, s{sAr}, v{aF}
    s_lshl_b32 s{sT}, s{sK}, 12
    s_add_u32 s{sT}, s{sT}, {Z1P}
    v_add_u32 v{tp}, s{sT}, v{aF}"""]
    it += [(f"ds_read_b128 {v(z1+4*n,4)}, v{tp} offset:{1024*n}", "zp") for n in range(3)]
    it += [(f"""s_lshl_b32 s{sT}, s{S_TG}, 1
    s_add_u32 s{sT}, s{sT}, s{sTH}
    s_lshl_b32 s{sT2}, s{sT}, 6
    v_lshrrev_b32 v{vt}, 1, v{t0}
    ds_read_b32 v{gt}, v{tp} offset:3072
    buffer_load_ushort v{og+1}, v{vt}, {s(sBS,4)}, s{sT2} offen""", "zp")]
    for d in (2, 1, 3):
        for n in range(3):
            for e2, q in enumerate(quads(d, n)): it.append((f"ds_write_b128 v{aR[0]}, {v(q,4)} offset:{((d-1)*6+2*n+e2)*1024}", "rsw"))
        it.append(f"s_xor_b32 s{sT}, s{sK}, {d}\n s_mul_i32 s{sT}, s{sT}, {AA}\n v_add_u32 v{aR[d]}, s{sT}, v{aF}")
    sc.place(it, cR, (e+3)/len(wl), 0.9)
    it = []
    rd = lambda n: [(f"ds_read_b128 {v(q,4)}, v{aR[d]} offset:{((d-1)*6+2*n+e2)*1024}", f"rs{n}{e2}") for e2 in range(2) for d in (1, 2, 3) for q in [quads(d, n)[e2]]]
    it += rd(0)
    it += [[("@", "zp"), f"""v_sub_f32 v{og}, 1.0, v{gt}
    v_lshlrev_b32 v{og+1}, 16, v{og+1}
    v_mul_f32 v{og+1}, v{og}, v{og+1}"""]] + uaddr(vu, tp)
    for n in range(3):
        nr = rd(n+1) if n < 2 else []
        for e2 in range(2):
            for h2 in (0, 2):
                o_, p1, p2, p3 = [quads(d, n)[e2]+h2 for d in range(4)]; zi = z1+4*n+2*e2+h2//2
                it.append([("@", f"rs{n}{e2}"), f"""v_pk_add_f32 {v(o_,2)}, {v(o_,2)}, {v(p1,2)}
                v_pk_add_f32 {v(p2,2)}, {v(p2,2)}, {v(p3,2)}
                v_lshlrev_b32 v{tp}, 16, v{zi}
                v_pk_add_f32 {v(o_,2)}, {v(o_,2)}, {v(p2,2)}"""])
                it.append(f"""v_and_b32 v{tp+1}, 0xffff0000, v{zi}
                v_pk_fma_f32 {v(o_,2)}, {v(o_,2)}, {v(og,2)}, {v(og,2)} op_sel:[0,0,1] op_sel_hi:[1,0,1]
                v_pk_mul_f32 {v(o_,2)}, {v(o_,2)}, {v(tp,2)}
                v_cvt_pk_bf16_f32 v{zi}, v{o_}, v{o_+1}""")
                it += nr[:2]; nr = nr[2:]
        it.append((f"buffer_store_dwordx4 {v(z1+4*n,4)}, v{vu}, {s(sWS,4)}, s{sU} offen offset:{1024*n} sc1", "us"))
    it.append(lambda st_: stamp(a, 4))
    it.append(f"""s_lshl_b32 s{sT}, s{S_J}, 2
    s_add_u32 s{sT}, s{sT}, s{sK}
    s_mul_i32 s{sPk}, s{sT}, {11*5120}
    s_add_u32 s{sPk}, s{sPk}, {hx(WS_PK+6*5120)}
    s_or_b32 s{sT}, s2, s{sK}
    s_cmp_eq_u32 s{sT}, 0
    s_cselect_b32 s{sE}, 1, 0
    s_mov_b32 s{sE+1}, 0
    v_mov_b32 v{tp+1}, s{sTag}
    v_cndmask_b32 v{tp}, -4.0, v0, {s(sE,2)}
    s_mov_b32 s{sT}, {hx(WS_EP)}
    buffer_store_dword v{tp+1}, v{tp}, {s(sWS,4)}, s{sT} offen sc1""")
    wu = cfg.get("wu", 75)/100
    sc.place(it, cR+1, 0.0, wu)
    WO = lambda ks, c: BIG+4*(5*ks+c)
    f3 = cR+1+wu+C("f3", 5)
    span(sc, [[f"s_mov_b64 exec, 1", ("@", "us"), f"buffer_store_dword v{tp+1}, off, {s(sWS,4)}, s{sF3} sc1\n s_mov_b64 exec, -1", lambda st_: stamp(a, 30)]], f3, f3, 0)
    span(sc, pkloads(BIG, 25, aF, sWS, sPk, "wof"), cR+1+wu+0.02, min(cR+2.9, 16.6), 0)
    sc.emit(st)
    O = r.O; S = r.S; D = 208; t = 244; mx = 226; vA = [4, 5]; aP = [6, 7, 8, 9, 10]; vs = 11
    st(f"""s_mul_i32 s{sT}, s{sK}, 6144
    v_add_u32 v{t}, s{sT}, v{r.aK}
    s_mov_b32 s{sN}, 0""")
    stamp(a, 24); st("s_barrier"); stamp(a, 25)
    for th in range(2):
        for i in range(3): st(f"ds_read_b128 {v(S[th]+4*i,4)}, v{t} offset:{(3*th+i)*1024}", f"po{th}{i}")
    st(f"v_lshlrev_b32 v{vA[0]}, 4, v0\n v_add_u32 v{vA[1]}, 0x1000, v{vA[0]}")
    for i in (2, 0, 1):
        for th in range(2):
            st.w(f"po{th}{i}")
            for h2 in (0, 2): st(f"v_pk_add_f32 {v(O[th]+4*i+h2,2)}, {v(O[th]+4*i+h2,2)}, {v(S[th]+4*i+h2,2)}")
    st(f"{name}_fin:")
    for i in range(4): st(f"v_permlane32_swap_b32 v{O[0]+8+i}, v{O[1]+8+i}")
    L = O[1]+8
    st(f"""
    v_rcp_f32 v{t}, v{L}
    v_cmp_ngt_f32 vcc, 0x5f800000, v{L}
    s_mov_b32 s{sT}, 0x1f800000
    v_mul_f32 v{t}, v{t}, v{gt}
    v_cmp_nlt_f32 {s(sE,2)}, s{sT}, v{L}
    v_mov_b32 v{t+2}, v{t}
    v_mov_b32 v{t+4}, v{t}
    s_or_b64 {s(sE,2)}, {s(sE,2)}, vcc
    v_pk_mul_f32 {v(O[0]+8,2)}, {v(O[0]+8,2)}, {v(t,2)} op_sel_hi:[1,0]
    v_permlane32_swap_b32 v{t+2}, v{t+4}
    v_pk_mul_f32 {v(O[0]+10,2)}, {v(O[0]+10,2)}, {v(t,2)} op_sel_hi:[1,0]
    """)
    for th in range(2):
        for i in range(0, 8, 2): st(f"v_pk_mul_f32 {v(O[th]+i,2)}, {v(O[th]+i,2)}, {v(t+2+2*th,2)} op_sel_hi:[1,0]")
    st(f"v_pk_mul_f32 {v(t+6,2)}, {v(O[0]+8,2)}, 0 op_sel_hi:[1,0]")
    for k_, q in enumerate([O[0]+10] + [O[th]+i for th in range(2) for i in range(0, 8, 2)]):
        st(f"v_pk_fma_f32 {v(t+6,2)}, {v(q,2)}, 0, {v(t+6,2)} op_sel_hi:[1,0,1]")
        if k_ > 0: st(f"v_cvt_pk_bf16_f32 v{D+k_-1}, v{q}, v{q+1}")
    st(f"""
    v_cmp_u_f32 vcc, v{t+6}, v{t+7}
    v_cvt_pk_bf16_f32 v{D+8}, v{O[0]+8}, v{O[0]+9}
    v_cvt_pk_bf16_f32 v{D+9}, v{O[0]+10}, v{O[0]+11}
    s_or_b64 vcc, {s(sE,2)}, vcc
    s_cbranch_vccnz {name}_slow
    {name}_pub:
    buffer_store_dwordx4 {v(D,4)}, v{vu}, {s(sWS,4)}, s{sOa} offen sc1
    v_permlane32_swap_b32 v{D+8}, v{D+10}
    v_permlane32_swap_b32 v{D+9}, v{D+11}
    buffer_store_dwordx4 {v(D+4,4)}, v{vu}, {s(sWS,4)}, s{sOa} offen offset:512 sc1
    buffer_store_dwordx4 {v(D+8,4)}, v{vu+1}, {s(sWS,4)}, s{sOx} offen sc1
    """)
    stamp(a, 26)
    act = [12+20*i for i in range(4)]
    srd(a, sSP, P_OUT, 2048*1280)
    st(f"""
    v_add_u32 v{aP[0]}, s{sAr}, v{vA[0]}
    s_mul_i32 s{sT}, s{sK}, 5120
    s_add_u32 s{sT}, s{sT}, {KV0}
    v_add_u32 v{aP[4]}, s{sT}, v{vA[0]}
    v_and_b32 v{t}, 15, v0
    v_mul_u32_u24 v{vs}, 0x500, v{t}
    v_lshrrev_b32 v{t}, 4, v0
    v_lshl_add_u32 v{vs}, v{t}, 3, v{vs}
    v_mov_b32 v{aP[1]}, v{aR[1]}
    v_mov_b32 v{aP[2]}, v{aR[2]}
    v_mov_b32 v{aP[3]}, v{aR[3]}
    s_lshl_b32 s{sT}, s{S_TG}, 2
    s_add_u32 s{sT}, s{sT}, s{E["sOwn"]}
    s_mul_i32 s{sO}, s{sT}, {16*1280}
    s_mul_i32 s{sT2}, s{S_J}, 160
    s_add_u32 s{sO}, s{sO}, s{sT2}
    """)
    def ald(st_, i0):
        for i in range(i0, 4):
            for ks in range(5): st_(f"buffer_load_dwordx4 {v(act[i]+4*ks,4)}, v{vA[ks>>2]}, {s(sWS,4)}, s{sAct[i]} offen offset:{1024*(ks&3)} sc1", f"{name}_o{i}")
    st("s_waitcnt vmcnt(0)")
    ald(st, 0)
    ac2 = [208, 228]; tc = 250
    for i in range(4):
        chk_tile(st, f"{name}_o{i}", act[i], 20, tc, sCnt)
        stamp(a, 27 if i == 0 else 28) if i in (0, 3) else None
        if i == cfg.get("t2", 1): st("s_barrier")
        ex = {}
        if i > 0:
            for c in range(5): ex[c] = (f"ds_write_b128 v{aP[0]}, {v(ac2[(i-1)&1]+4*c,4)} offset:{(i-1)*5120+c*1024}", "pw")
        pr = act[:3] + [ac2[0]]
        if i == 3:
            ex[8] = [("@", "pw"), "s_barrier"]
            for c in range(5):
                for d in range(4): ex.setdefault(9+(4*c+d)*3//4, []).append((f"ds_read_b128 {v(pr[d]+4*c,4)}, v{aP[d+1]} offset:{(d*5120 if d < 3 else 0)+c*1024}", f"pr{c}"))
        for ks in range(5):
            for c in range(5):
                q = ac2[i & 1]+4*c
                st(f"{MF16} {v(q,4)}, {v(WO(ks,c),4)}, {v(act[i]+4*ks,4)}, {'0' if ks == 0 else v(q,4)}")
                if 5*ks+c in ex: st.run(ex[5*ks+c])
    for c in range(5):
        st.w(f"pr{c}"); q = ac2[1]+4*c
        for h2 in (0, 2):
            p = [x+4*c+h2 for x in pr]
            st(f"v_pk_add_f32 {v(p[0],2)}, {v(p[0],2)}, {v(p[1],2)}\n v_pk_add_f32 {v(p[2],2)}, {v(p[2],2)}, {v(p[3],2)}")
        for h2 in (0, 2): st(f"v_pk_add_f32 {v(pr[0]+4*c+h2,2)}, {v(pr[0]+4*c+h2,2)}, {v(pr[2]+4*c+h2,2)}")
        for h2 in (0, 2): st(f"v_pk_add_f32 {v(q+h2,2)}, {v(q+h2,2)}, {v(pr[0]+4*c+h2,2)}")
        st(f"""v_cvt_pk_bf16_f32 v{q}, v{q}, v{q+1}
        v_cvt_pk_bf16_f32 v{q+1}, v{q+2}, v{q+3}
        buffer_store_dwordx2 {v(q,2)}, v{vs}, {s(sSP,4)}, s{sO} offen offset:{32*c}""")
    if TS[0]: st(f"v_writelane_b32 v255, s{sCnt}, 5")
    wend(a, name)
    x = St(a)
    x(f"""{name}_pretry:
    s_cmp_eq_u32 s{sCnt}, 0
    s_cbranch_scc1 {name}_pok
    s_sub_u32 s{sCnt}, s{sCnt}, 1
    {fld}
    s_waitcnt vmcnt(0)
    s_branch {name}_poll""")
    for i in range(4):
        x(f"{name}_o{i}_retry:\n s_cmp_eq_u32 s{sCnt}, 0\n s_cbranch_scc1 {name}_o{i}_ok\n s_sub_u32 s{sCnt}, s{sCnt}, 1")
        ald(x, i); x(f"s_branch {name}_o{i}_chk")
    slow_path(a, name, sWS, sT, sN, [sWb[0], sWb[1], sB, sZb], mx, t)
```

```python
from kf import *
Z2 = BIG; Z1 = 136; QA = 12; tg_ = 168; gl = 190
aLw, aTX, vSt, vF, aPark = 192, 193, 195, 198, 197
FW = lambda t, n: 208 + 12*(t % 3) + 4*n
FX = lambda t: 60 + 4*(t % 3)
aX = [[88, 89, 90, 91], [72, 73, 74, 75]]; aZ = [92, 93]; aQ = [94, 95]; aKV = 44; aG = 98; aS = 99
def reads(t, sGm):
    q, i = divmod(t, 4); ps = q // 10; hi = int(POS[q] >= 32768); o = POS[q] - 32768*hi; xo = xblk(q % 10)
    L = [(f"ds_read_b128 {v(FX(t),4)}, v{aX[xo >> 16][i]} offset:{xo & 0xffff}", f"f{t}_0")]
    for n in range(2):
        for p in range(2):
            ad = f"v{aZ[hi]} offset:{o+3072*i+768*p+64*n}" if ps < 2 else f"v{aQ[hi]} offset:{o+2560*i+160*p+80*n}"
            if ps == 0 and n == 1: ad = f"v{aKV+2*i+p} offset:{POS[q]}"
            L.append((f"ds_read_b64_tr_b16 {v(FW(t,n)+2*p,2)}, {ad}", f"f{t}_{n}"))
        if ps == 2 and n == 0:
            L.append((f"s_mov_b64 exec, {s(sGm,2)}\n ds_read_b128 {v(FW(t,0),4)}, v{aG} offset:{128*(q-20)+32*i}\n s_mov_b64 exec, -1", f"f{t}_0"))
    return L
def gemm(sc, t0, t1, sGm):
    for t in range(t0, t1):
        q, i = divmod(t, 4); ps = q // 10; ac = [Z2, Z1, QA][ps]
        M = [[("@", f"f{t}_{n}"), f"{MF32} {v(ac+16*n,16)}, {v(FW(t,n),4)}, {v(FX(t),4)}, {'0' if t % 40 == 0 else v(ac+16*n,16)}"] for n in range(2)]
        R = reads(t+2, sGm) if t+2 < 120 else []
        if i == 2 and q < 29:
            for m in M: sc.op(m)
            sc.op([("@", f"f{t+1}_0", f"f{t+1}_1", "tx"), "s_barrier"]); sc.next()
            for x in R: sc.op(x)
        else:
            k = (len(R) + len(M) - 1) // len(M)
            for m in M:
                sc.op(m)
                for x in R[:k]: sc.op(x)
                R = R[k:]
def span(sc, items, w0, w1, base):
    n = len(items)
    for i, it in enumerate(items):
        x = w0 + (w1-w0)*(i+0.5)/n - base
        sc.place([it], int(x), x % 1, x % 1)
```

```python
from kf import *
from kfA1 import span
Z2 = 104; Z1 = 136; ssr = [128, 132, 160, 164]; tg_ = 168; z1p = 176; sm = 188; vK1 = 192; raw = 196
aLw, aLr, vZn, aPark, aS, vSp, vF1, aTX, aPk = range(208, 217); vPk = [217, 218]; pkd = 224; kvd = 232; gr = 244
def gelu(Z, g, sK2, PK, tail):
    X = range(Z+8*g, Z+8*g+8); L = [f"v_lshlrev_b32 v{x}, 16, v{raw+4*g+i}\n v_and_b32 v{x+1}, 0xffff0000, v{raw+4*g+i}" for i, x in enumerate(X[::2])]
    L[0] = [("@", f"tx{g}"), L[0]]
    for f in ("v_mul_f32 {t}, {x}, {x}", "v_fma_f32 {t}, {t}, {k2}, {k1}", "v_mul_f32 {t}, {t}, {x}", "v_exp_f32 {t}, {t}",
              "v_add_f32 {t}, 1.0, {t}", "v_rcp_f32 {t}, {t}", "v_mul_f32 {x}, {x}, {t}") + tail:
        n = 2 if "cvt" in f or PK and f[2:5] in ("mul", "fma", "add") else 1
        if n == 2 and "cvt" not in f: f = "v_pk_" + f[2:] + (" op_sel_hi:[0,1]" if "1.0" in f else "")
        L += [f.format(t=v(tg_+i, n), x=v(X[i], n), k2=s(sK2, n), k1=v(vK1, n), s1=v(sm+(i & 1), n), s2=v(sm+2+(i & 1), n), p=v(z1p+4*g+i//2), x0=v(X[i]), x1=v(X[i]+1)) for i in range(0, 8, n)]
    return L
fl_ = fl
def waveB(E, st):
    a = E["a"]; name = E["name"]; cfg = E["cfg"]; S_ = E["S_"]; gS = E["gS"]; cR = E["cR"]
    sWS, sW, sT, sT2, sO, sN, sK, sTH, sHP, sE, sAct, sTag = [E[k] for k in "sWS sW sT sT2 sO sN sK sTH sHP sE sAct sTag".split()]
    sX = S_(4); sKW = S_(4); sKVo = S_(); sKVb = S_(); sCnt = S_(); sPk = S_(); sCw = S_(); sXo = S_(); sMx = S_(); sMz = S_(); sMq = S_(); sMk = S_(); sFl = S_()
    sK2 = S_(2); sZs = S_(); sSt = S_(); sF2 = S_(); sF3 = S_(); sF4 = S_(); sPs = [S_(), S_()]; C = lambda k, d: cfg.get(k, d)/10
    TB = cfg.get("tsb", 0); stamp_ = globals()["stamp"]; stamp = (lambda a, k: None) if TB else stamp_
    def tb(b, odd):
        if TB and b != 4: a(f"s_bitcmp1_b32 s{sK}, 0\n s_cbranch_scc{1-odd} {name}_tb{b}_{odd}"); stamp_(a, b+1); a(f"{name}_tb{b}_{odd}:")
    vz = 4; vA = [11, 252]; t0, t1 = 253, 254
    vx = [12, 13]; vw = [14, 15, 16]; vq = [17, 18, 19]; vk = 20; vg = 21; aQx = 30; t = 22
    st(f"""{name}_B:
    s_setprio {cfg.get("p2", 0)}
    v_lshrrev_b32 v{t}, 3, v0
    s_lshl_b32 s{sT}, s{sK}, 4
    v_bfe_u32 v{t+1}, v0, 4, 2
    v_and_b32 v{t+2}, 7, v0
    s_lshl_b32 s{sT2}, s{S_TG}, 6
    v_xor_b32 v{t+1}, v{t+1}, v{t+2}
    s_add_u32 s{sT2}, s{sT2}, s{sT}
    v_add_u32 v{t}, s{sT2}, v{t}
    v_mul_u32_u24 v{t}, 0x500, v{t}
    v_lshl_add_u32 v{vx[0]}, v{t+1}, 4, v{t}
    s_mul_i32 s{sMz}, s{sK}, 3072
    v_xor_b32 v{vx[1]}, 64, v{vx[0]}
    s_lshl_b32 s{sT2}, s{sMz}, 4
    v_add_u32 v{vx[1]}, {8*1280-1024}, v{vx[1]}
    v_lshlrev_b32 v{vA[0]}, 4, v0
    """)
    for i in range(3):
        st(f"""v_add_u32 v{t}, {64*i}, v0
        v_mul_u32_u24 v{t}, 5462, v{t}
        v_lshrrev_b32 v{t}, 16, v{t}
        v_mul_u32_u24 v{t}, {3072-192}, v{t}
        v_add3_u32 v{vw[i]}, v{t}, v{vA[0]}, s{sT2}""")
    if cfg.get("stag", 1): st(f"""
    s_mul_i32 s{sT}, s{S_TG}, 26
    s_lshr_b32 s{sT}, s{sT}, 8
    s_mul_i32 s{sT}, s{sT}, 10
    s_sub_u32 s{sCw}, s{S_TG}, s{sT}""")
    else: st(f"s_mov_b32 s{sCw}, 0")
    st(f"""
    s_lshl_b32 s{sXo}, s{sCw}, 7
    s_lshl_b32 s{sMx}, s{sK}, 11
    s_add_u32 s{sMx}, s{sMx}, {X0}
    s_mul_i32 s{sMk}, s{sK}, 640
    v_add_u32 v{vk}, s{sMk}, v{vA[0]}
    s_mul_i32 s{sT}, s{S_J}, 192
    s_add_u32 s{sT}, s{sT}, 1536
    s_sub_u32 s{sW+2}, {640*3072}, s{sT}
    s_mov_b32 s{sW+3}, 0x20000
    s_mov_b32 s{sX+2}, {2048*1280}
    s_mov_b32 s{sX+3}, 0x20000
    s_mov_b32 s{sKW+2}, 25600
    s_mov_b32 s{sKW+3}, 0x20000
    s_waitcnt lgkmcnt(0)
    s_mov_b32 s{sX}, s{P_X}
    s_mov_b32 s{sX+1}, s{P_X+1}
    s_add_u32 s{sW}, s{P_WIN}, s{sT}
    s_addc_u32 s{sW+1}, s{P_WIN+1}, 0
    s_bitcmp1_b32 s{S_J}, 0
    s_cselect_b32 s{sKW}, s{P_WV}, s{P_WK}
    s_cselect_b32 s{sKW+1}, s{P_WV+1}, s{P_WK+1}
    """)
    def dX(i):
        return [(f"""s_add_u32 m0, s{sMx}, {xblk(i)}
        s_add_u32 s{sT}, s{sXo}, 128
        buffer_load_dwordx4 v{vx[0]}, {s(sX,4)}, s{sXo} offen lds
        buffer_load_dwordx4 v{vx[1]}, {s(sX,4)}, s{sXo} offen offset:1024 lds
        s_cmp_eq_u32 s{sT}, 1280
        s_cselect_b32 s{sXo}, 0, s{sT}""", f"x{i}")]
    def dW(q):
        L = []; Q = q >= 20; x = ""
        if q < 10: L.append(lambda st_: a(f"""s_cmp_ge_u32 s{S_J}, 2
            s_cbranch_scc1 {name}_nk{q}
            s_add_u32 m0, s{sMk}, {POS[q]+12288}
            s_mul_i32 s{sO}, s{sCw}, 2560
            s_mov_b32 exec_hi, 0xff
            buffer_load_dwordx4 v{vk}, {s(sKW,4)}, s{sO} offen lds
            s_mov_b32 exec_hi, -1
            {name}_nk{q}:"""))
        if q == 10: x = f"s_sub_u32 s{sW}, s{sW}, 1536\n s_subb_u32 s{sW+1}, s{sW+1}, 0\n"
        if q == 20: x = f"""s_mul_i32 s{sT}, s{S_J}, 160
            s_add_u32 s{sW}, s{P_WQ}, s{sT}
            s_addc_u32 s{sW+1}, s{P_WQ+1}, 0
            s_sub_u32 s{sW+2}, {640*1280}, s{sT}\n"""
        x += f"s_add_u32 m0, s{sMq if Q else sMz}, {POS[q]}\n s_mul_i32 s{sO}, s{sCw}, {64*(1280 if Q else 3072)}\n"
        for i in range(3):
            if Q and i == 2: x += "s_mov_b32 exec_hi, 0\n"
            x += f"buffer_load_dwordx4 v{(vq if Q else vw)[i]}, {s(sW,4)}, s{sO} offen offset:{1024*i} lds\n"
            if i == 0: x += f"s_add_u32 s{sCw}, s{sCw}, 1\n s_cmp_eq_u32 s{sCw}, 10\n s_cselect_b32 s{sCw}, 0, s{sCw}"
            if Q and i == 2: x += "s_mov_b32 exec_hi, -1"
            L.append((x, f"w{q}")); x = ""
        return L
    st(f"s_mov_b32 s{sN}, s{sXo}")
    n0 = cfg.get("n0", 3); nb = cfg.get("nb", 2); xq = list(range(10)); wq = list(range(30))
    def issue(b, n):
        L = []
        for i in range(n):
            if xq: L += dX(xq.pop(0))
            if wq and FREE[wq[0]] <= b: L += dW(wq.pop(0))
        return L
    st.run(issue(-1, n0))
    srd(a, sWS, P_WS, WS_END)
    st(f"s_mov_b32 s{sT}, {hx(WS_EP)}\n s_load_dword s{sTag}, {s(P_WS,2)}, s{sT}")
    st(f"""
    s_mul_i32 s{sT}, s{sK}, 320
    s_add_u32 s{sT}, s{sT}, s{sN}
    v_add_u32 v{vg}, s{sT}, v{vA[0]}
    v_subrev_u32 v{t}, 1280, v{vg}
    v_min_u32 v{vg}, v{vg}, v{t}
    s_mul_i32 s{sMq}, s{sK}, 2560
    s_lshl_b32 s{sT2}, s{sMq}, 3
    """)
    for i in range(3):
        st(f"""v_add_u32 v{t}, {64*i}, v0
        v_mul_u32_u24 v{t}, 6554, v{t}
        v_lshrrev_b32 v{t}, 16, v{t}
        v_mul_u32_u24 v{t+1}, 160, v{t}
        v_sub_u32 v{t+1}, v{vA[0]}, v{t+1}
        v_and_b32 v{t+2}, 8, v{t}
        v_bfe_u32 v{t+3}, v{t}, 1, 2
        v_and_b32 v{t}, 1, v{t}
        v_lshl_add_u32 v{t}, v{t}, 2, v{t+3}
        v_add_u32 v{t}, v{t}, v{t+2}
        v_mul_u32_u24 v{t}, 0x500, v{t}
        v_add3_u32 v{vq[i]}, v{t}, v{t+1}, s{sT2}""")
    E["common"](st)
    kv_addr(st, t)
    st(f"""
    s_add_u32 s{sKVb}, s{sMz}, {KV0}
    v_add_u32 v{vz}, s{sMz}, v{vA[0]}
    v_add_u32 v{aQx}, {QX}, v{vz}
    s_lshr_b32 s{sKVo}, s{S_TG}, 1
    s_mul_i32 s{sKVo}, s{sKVo}, {KVS}
    s_add_u32 s{sKVo}, s{sKVo}, {hx(WS_KV)}
    v_add_u32 v{vA[1]}, 0x1000, v{vA[0]}
    s_mov_b32 s{sCnt}, 0x8000
    s_lshl_b32 s{sFl}, s{sK}, 8
    s_add_u32 s{sFl}, s{sFl}, {hx(WS_F1)}
    v_lshlrev_b32 v{t0}, 2, v0
    s_lshl_b32 s{sT}, s{S_J}, 2
    s_add_u32 s{sT}, s{sT}, s{sK}
    s_lshl_b32 s{sF4}, s{sT}, 7
    s_add_u32 s{sF4}, s{sF4}, {hx(WS_FLAG+4096)}
    s_mul_i32 s{sPk}, s{sT}, {11*5120}
    s_add_u32 s{sPk}, s{sPk}, {hx(WS_PK)}
    s_mul_i32 s{sT}, s{sK}, 6144
    s_add_u32 s{sT}, s{sT}, {hx(WS_ACT+20*1024)}
    """)
    for i in range(4): st(f"s_add_u32 s{sAct[i]}, s{sAct[i]}, s{sT}")
    def kv(c):
        L = [(f"s_add_u32 m0, s{sKVb}, {slot(c)}\n s_nop 0\n" if i == 0 else "") + f"buffer_load_dwordx4 v{vz}, {s(sWS,4)}, s{sKVo} offen offset:{1024*i} sc1 lds" for i in range(3)]
        L[2] += f"\n s_add_u32 s{sKVo}, s{sKVo}, {KVS}\n s_cmp_eq_u32 s{sKVo}, {hx(WS_KV+16*KVS)}\n s_cselect_b32 s{sKVo}, {hx(WS_KV)}, s{sKVo}"
        return [(x, f"kv{c}") for x in L]
    fl = lambda sF: f"buffer_load_dword v{t1}, v{t0}, {s(sWS,4)}, s{sF} offen sc1"
    polls = []
    def poll(nm, sF, k):
        def f(st_):
            st_(f"{name}_{nm}poll:"); st_.w("F")
            st_(f"v_cmp_ne_u32 vcc, s{sTag}, v{t1}\n s_cbranch_vccnz {name}_{nm}retry\n {name}_{nm}ok:"); polls.append((nm, sF))
            if k: stamp(a, k)
        return f
    flag = lambda tag, sF, o=0: ["s_mov_b64 exec, 1", ("@", tag), f"buffer_store_dword v{gr+1}, off, {s(sWS,4)}, s{sF} sc1\n s_mov_b64 exec, -1"]
    ex = [[] for b in range(30)]
    def put(items, w0, w1):
        for i, it in enumerate(items): x = w0 + (w1-w0)*(i+0.5)/len(items); ex[int(x)].append((x, it))
    h, e, tok = t+1, t+2, t+3
    put([f"""
    v_lshrrev_b32 v{h}, 5, v0
    v_bfe_u32 v{e}, v0, 2, 2
    v_and_b32 v{tok}, 31, v0
    v_and_b32 v{t+5}, 3, v0
    s_lshl_b32 s{sT}, s{sTH}, 1
    s_add_u32 s{sT}, s{sT}, s{sHP}
    s_lshl_b32 s{sT}, s{sT}, 9
    s_add_u32 s{sT}, s{sT}, {STX}
    v_lshl_add_u32 v{aS}, v0, 3, s{sT}""", f"""
    s_lshl_b32 s{sT}, s{sK}, 10
    s_add_u32 s{sT}, s{sT}, {LNS}
    v_lshl_add_u32 v{aLw}, v{tok}, 5, s{sT}
    v_lshl_add_u32 v{aLw}, v{h}, 3, v{aLw}
    v_lshrrev_b32 v{t+6}, 4, v0
    v_lshl_add_u32 v{aLr}, v{t+6}, 3, v{e}
    v_lshl_add_u32 v{aLr}, v{aLr}, 5, s{sT}
    v_lshl_add_u32 v{aLr}, v{t+5}, 3, v{aLr}""", f"""
    v_mul_u32_u24 v{vZn}, 3072, v{h}
    v_and_b32 v{t+6}, 1, v{t+6}
    v_lshl_add_u32 v{vZn}, v{t+6}, 9, v{vZn}
    v_and_b32 v{t+6}, 7, v0
    v_lshl_add_u32 v{vZn}, v{t+6}, 4, v{vZn}
    v_bfe_u32 v{t+6}, v0, 3, 1
    v_lshl_add_u32 v{vZn}, v{t+6}, 8, v{vZn}
    s_lshl_b32 s{sT}, s{sK}, 12
    s_add_u32 s{sT}, s{sT}, {Z1P}
    v_add_u32 v{aPark}, s{sT}, v{vA[0]}
    v_add_u32 v{aTX}, {TX}, v{vz}""", f"""
    s_lshl_b32 s{sT}, s{S_TG}, 1
    s_add_u32 s{sT}, s{sT}, s{sTH}
    s_lshl_b32 s{sSt}, s{sT}, 12
    s_add_u32 s{sSt}, s{sSt}, {hx(WS_ST2)}
    s_mul_i32 s{sZs}, s{sT}, 6144
    s_mul_i32 s{sT}, s{S_J}, {128*3072}
    s_add_u32 s{sZs}, s{sZs}, s{sT}
    s_lshl_b32 s{sT}, s{sHP}, 7
    s_add_u32 s{sZs}, s{sZs}, s{sT}
    s_add_u32 s{sZs}, s{sZs}, {hx(WS_Z2N)}""", f"""
    s_lshl_b32 s{sT}, s{S_J}, 5
    s_add_u32 s{sT}, s{sT}, s{S_TG}
    s_lshl_b32 s{sT}, s{sT}, 2
    s_add_u32 s{sT}, s{sT}, s{sK}
    s_lshl_b32 s{sT}, s{sT}, 2
    s_add_u32 s{sF2}, s{sT}, {hx(WS_FLAG)}
    s_lshl_b32 s{sT}, s{S_TG}, 2
    s_add_u32 s{sT}, s{sT}, s{sK}
    s_lshl_b32 s{sT}, s{sT}, 5
    s_add_u32 s{sF3}, s{sT}, {hx(WS_FLAG+8192)}""", f"""
    s_lshl_b32 s{sT2}, s{sHP}, 5
    s_sub_u32 s{sT2}, 32, s{sT2}
    v_cmp_gt_u32 vcc, s{sT2}, v0
    s_lshl_b32 s{sT}, s{S_J}, 9
    v_add_u32 v{t+6}, s{sT}, v{vA[0]}
    v_cndmask_b32 v{vSp}, -4.0, v{t+6}, vcc
    s_mov_b32 s{sK2}, {fl_(-GK2)}
    s_mov_b32 s{sK2+1}, {fl_(-GK2)}
    v_mov_b32 v{vK1}, {fl_(-GK1)}
    v_mov_b32 v{vK1+1}, {fl_(-GK1)}
    v_mov_b64 {v(sm,2)}, 0
    v_mov_b64 {v(sm+2,2)}, 0""",
    f"""s_and_b32 s{sT}, s{S_TG}, 7
    s_lshl_b32 s{sT}, s{sT}, 2
    s_add_u32 s{sT}, s{sT}, s{sK}
    s_lshr_b32 s{sT2}, s{S_TG}, 3
    s_lshl_b32 s{sN}, s{S_J}, 2
    s_add_u32 s{sN}, s{sN}, s{sT2}
    s_mul_i32 s{sN}, s{sN}, 55
    s_add_u32 s{sN}, s{sN}, s{sT}
    s_lshl_b32 s{sN}, s{sN}, 10
    s_add_u32 s{sPs[0]}, s{sN}, {hx(WS_PK)}
    s_add_u32 s{sPs[1]}, s{sN}, {hx(WS_PK+30*1024)}
    s_cmp_lt_u32 s{sT}, 30
    s_cselect_b32 s{sPs[0]}, s{sPs[0]}, {hx(WS_END)}
    s_cmp_lt_u32 s{sT}, 25
    s_cselect_b32 s{sPs[1]}, s{sPs[1]}, {hx(WS_END)}
    s_mul_i32 s{sE}, s{sT}, 52
    s_lshr_b32 s{sE}, s{sE}, 8
    s_sub_u32 s{sN}, s{S_J}, s{sE}
    s_mul_i32 s{sN}, s{sN}, 5
    s_add_u32 s{sN}, s{sN}, s{sT}
    s_lshl_b32 s{sN}, s{sN}, 5
    v_and_b32 v{t}, 1, v0
    v_lshl_add_u32 v{t}, v{t}, 4, s{sN}
    v_bfe_u32 v{t+4}, v0, 1, 2
    v_bfe_u32 v{t+5}, v0, 3, 1
    v_bfe_u32 v{t+6}, v0, 4, 1""", f"""
    s_lshr_b32 s{sT2}, s{S_TG}, 3
    s_mul_i32 s{sN}, s{sT2}, 12
    s_add_u32 s{sN}, s{sN}, s{sE}
    s_cmp_ge_u32 s{sE}, 3
    s_cselect_b32 s{sT}, 3, 0
    s_add_u32 s{sN}, s{sN}, s{sT}
    s_lshl_b32 s{sN}, s{sN}, 4
    v_lshl_add_u32 v{vPk[0]}, v{t+5}, 2, v{t+4}
    v_mad_u32_u24 v{vPk[0]}, v{t+6}, 48, v{vPk[0]}
    v_lshl_add_u32 v{vPk[0]}, v{h}, 3, v{vPk[0]}
    v_add_u32 v{vPk[0]}, s{sN}, v{vPk[0]}
    v_mul_u32_u24 v{vPk[0]}, 0x500, v{vPk[0]}
    v_add_u32 v{vPk[0]}, v{vPk[0]}, v{t}""", f"""
    s_and_b32 s{sT}, s{sE}, 1
    s_and_b32 s{sN}, s{sE}, 2
    s_lshl_b32 s{sN}, s{sN}, 1
    s_add_u32 s{sN}, s{sN}, s{sT}
    s_mul_i32 s{sN}, s{sN}, 20
    s_cmp_eq_u32 s{sE}, 4
    s_cselect_b32 s{sN}, 16, s{sN}
    s_cselect_b32 s{sT}, 20, 4
    v_mad_u32_u24 v{vPk[1]}, v{t+5}, s{sT}, v{t+4}
    s_cselect_b32 s{sT}, 80, 40
    v_mad_u32_u24 v{vPk[1]}, v{t+6}, s{sT}, v{vPk[1]}
    s_cselect_b32 s{sT}, 40, 8
    v_mad_u32_u24 v{vPk[1]}, v{h}, s{sT}, v{vPk[1]}
    s_lshr_b32 s{sT2}, s{S_TG}, 3
    s_mul_i32 s{sT2}, s{sT2}, 160
    s_add_u32 s{sN}, s{sN}, s{sT2}
    v_add_u32 v{vPk[1]}, s{sN}, v{vPk[1]}
    v_mul_u32_u24 v{vPk[1]}, 0x500, v{vPk[1]}
    v_add_u32 v{vPk[1]}, v{vPk[1]}, v{t}
    s_lshl_b32 s{sT}, s{sK}, 11
    s_add_u32 s{sMk}, s{sT}, {PKS}
    v_lshl_add_u32 v{aPk}, v0, 3, s{sMk}""", f"""
    s_waitcnt lgkmcnt(0)
    s_add_u32 s{sTag}, s{sTag}, {hx(TAGC)}
    v_mov_b32 v{gr+1}, s{sTag}
    v_mov_b32 v{gr+3}, s{sTag}
    s_lshl_b32 s{sT}, s{S_TG}, 1
    s_add_u32 s{sT}, s{sT}, s{S_J}
    s_lshl_b32 s{sT}, s{sT}, 2
    s_add_u32 s{sT}, s{sT}, s{sK}
    s_lshl_b32 s{sT}, s{sT}, 2
    s_add_u32 s{sXo}, s{sT}, {hx(WS_F1)}
    s_cmp_lt_u32 s{S_J}, 2
    s_cselect_b32 s{sXo}, s{sXo}, {hx(WS_END)}"""], 6, 11)
    gate = (f"""s_mul_i32 s{sT}, s{sK}, 320
    s_add_u32 m0, s{sT}, {GATE}
    s_mov_b32 s{sX}, s{P_GW}
    s_mov_b32 s{sX+1}, s{P_GW+1}
    s_mov_b32 s{sX+2}, 1280
    s_mov_b64 exec, 0xfffff
    buffer_load_dwordx4 v{vg}, {s(sX,4)}, 0 offen lds
    s_mov_b64 exec, -1""", "x20")
    def kvs(st_):
        a(f"""s_cmp_lt_u32 s{S_J}, 2
        s_cbranch_scc1 {name}_kvs
        {name}_kvr:""")
        st_.vm["kvs"] = 0
    PK = cfg.get("gpk", 0); g2 = C("g2", 159); g1 = C("g1", 255)
    rdx = lambda n: (f"ds_read_b128 {v(raw+4*n,4)}, v{aTX} offset:{1024*n}", f"tx{n}")
    for b in (11, 21): put([rdx(0), rdx(1)], b, b); put([rdx(2)] + ([kvs] if b == 11 else []), b+1, b+1)
    put(sum([gelu(Z2, g, sK2, PK, ("v_add_f32 {s1}, {s1}, {x}", "v_fma_f32 {s2}, {x}, {x}, {s2}")) for g in range(3)], []) +
        [f"v_add_f32 v{sm}, v{sm}, v{sm+1}\n v_add_f32 v{sm+1}, v{sm+2}, v{sm+3}\n v_mov_b64 {v(tg_,2)}, {v(sm,2)}\n s_nop 1\n v_permlane32_swap_b32 v{sm}, v{tg_}\n v_permlane32_swap_b32 v{sm+1}, v{tg_+1}",
         (f"v_add_f32 v{sm}, v{sm}, v{tg_}\n v_add_f32 v{sm+1}, v{sm+1}, v{tg_+1}\n ds_write_b64 v{aS}, {v(sm,2)}", "stx")], 11.1, g2)
    put([(f"ds_read_b64 {v(tg_,2)}, v{aS} offset:512", "sty"),
         [("@", "sty"), f"""v_add_f32 v{gr}, v{sm}, v{tg_}
         v_add_f32 v{gr+2}, v{sm+1}, v{tg_+1}
         buffer_store_dwordx4 {v(gr,4)}, v{vSp}, {s(sWS,4)}, s{sSt} offen sc1"""]], int(g2)+1, int(g2)+1)
    put([flag("kvs", sXo)], C("f1p", 160), C("f1p", 160))
    put(sum([gelu(Z1, g, sK2, PK, ("v_cvt_pk_bf16_f32 {p}, {x0}, {x1}",)) for g in range(3)], []), 21.1, g1)
    put([(f"ds_write_b128 v{aPark}, {v(z1p+4*n,4)} offset:{1024*n}", "stx") for n in range(3)], 29.0, 29.1)
    sld = [(f"buffer_load_dwordx4 {v(ssr[i],4)}, v{vA[0]}, {s(sWS,4)}, s{sSt} offen offset:{1024*i} sc1", "ss") for i in range(4)]
    m, n_ = tg_+2, tg_+3; mu = sm
    def schk(st_):
        st_(f"{name}_schk:"); st_.w("ss")
        G_ = [x+o for x in ssr for o in (1, 3)]
        for op, d in (("max", m), ("min", n_)):
            st_(f"v_{op}3_u32 v{d}, v{G_[0]}, v{G_[1]}, s{sTag}")
            for i in (2, 4, 6): st_(f"v_{op}3_u32 v{d}, v{G_[i]}, v{G_[i+1]}, v{d}")
        st_(f"v_cmp_ne_u32 vcc, v{m}, v{n_}\n s_cbranch_vccnz {name}_sretry\n {name}_sok:")
        stamp(a, 4)
    LN = [schk]
    for o in (0, 2): LN += [f"v_add_f32 v{m}, v{ssr[0]+o}, v{ssr[1]+o}\n v_add_f32 v{n_}, v{ssr[2]+o}, v{ssr[3]+o}\n v_add_f32 v{mu+o//2}, v{m}, v{n_}"]
    LN += [f"v_mov_b64 {v(m,2)}, {v(mu,2)}\n s_nop 1\n v_permlane32_swap_b32 v{mu}, v{m}\n v_permlane32_swap_b32 v{mu+1}, v{m+1}",
           f"v_add_f32 v{mu}, v{mu}, v{m}\n v_add_f32 v{mu+1}, v{mu+1}, v{m+1}\n v_mul_f32 v{mu}, {fl_(1/768)}, v{mu}\n v_mul_f32 v{mu+1}, {fl_(1/768)}, v{mu+1}",
           f"v_fma_f32 v{mu+1}, -v{mu}, v{mu}, v{mu+1}\n v_max_f32 v{mu+1}, 0, v{mu+1}\n v_add_f32 v{mu+1}, {fl_(1e-5)}, v{mu+1}\n v_rsq_f32 v{mu+1}, v{mu+1}\n s_nop 0\n v_mul_f32 v{mu}, v{mu}, v{mu+1}"]
    zst = lambda n: [("@", "tr"), (f"buffer_store_dwordx4 {v(Z2+8*n,4)}, v{vZn}, {s(sWS,4)}, s{sZs} offen offset:{1024*n} sc1", "zn")]
    for n in range(3):
        for a_ in range(2):
            q = Z2+8*n+4*a_
            LN += [f"v_fma_f32 v{q+i}, v{q+i}, v{mu+1}, -v{mu}\n v_fma_f32 v{q+i+1}, v{q+i+1}, v{mu+1}, -v{mu}" for i in (0, 2)]
            LN += [f"v_cvt_pk_bf16_f32 v{q}, v{q}, v{q+1}\n v_cvt_pk_bf16_f32 v{q+1}, v{q+2}, v{q+3}\n ds_write_b64 v{aLw}, {v(q,2)} offset:{16*a_}"]
            if a_ == 0 and n: LN.append(zst(n-1))
        LN += [(f"ds_read_b64_tr_b16 {v(Z2+8*n,2)}, v{aLr}\n ds_read_b64_tr_b16 {v(Z2+8*n+2,2)}, v{aLr} offset:128", "tr")]
    LN.append(zst(2))
    sl, l0, l1 = C("sl", 230), C("l0", 270), C("l1", 295); assert l0 >= g1
    put(sld, sl, sl+0.5); put(LN, l0, l1)
    b1 = cfg.get("b1", 21); b2 = cfg.get("b2", 24)
    assert b2 >= 22
    for b in range(30):
        if b == b2: st.run(poll("k", sFl, 3))
        st.w(f"w{b}", f"x{b}", "stx")
        tb(b, 1); st("s_barrier"); tb(b, 0)
        if b in (0, 10, 20): stamp(a, {0: 1, 10: 2, 20: 6}[b])
        D = ([(fl(sFl), "F")] if b == b1 else []) + issue(b, nb) + ([gate] if b == 8 else [])
        for c in range(3):
            if b == max(b2+c, [22, 24, 25][c]): D += kv(c)
        L = [(b + 0.01 + C("dsp", 7)*i/len(D), x) for i, x in enumerate(D)] + ex[b]
        for x in sorted(L, key=lambda y: y[0]): st.run(x[1])
    assert not xq and not wq
    st.w("kv0", "stx")
    st("s_barrier"); stamp(a, 7)
    for i in range(3): st(f"ds_read_b128 {v(r.Q16[0]+4*i,4)}, v{aQx} offset:{1024*i}", "Q")
    pb = cfg.get("pb", 0)
    sc = attention(1, [[0]*4]*16, None, lambda c: [f"kv{c+1}"], lambda c: [(lambda st_, c=c: stamp(a, 8+c))], lambda c, i: pb if (c, i) == (0, 0) and pb != cfg.get("p2", 0) else None)
    for c in range(13): sc.place(kv(c+3), c+1, 0.02, 0.15)
    WU = lambda ks, c: BIG+4*(5*ks+c)
    w0 = cfg.get("w0", 5); w1 = cfg.get("w1", 13); L = pkloads(BIG, 30, vA[0], sWS, sPk, "wu")
    span(sc, [flag("zn", sF2)], C("f2", 5), C("f2", 5), 0)
    pkl = lambda i, ptr, n: (f"""s_mov_b32 s{sX}, s{ptr}
    s_mov_b32 s{sX+1}, s{ptr+1}
    s_add_u32 m0, s{sMk}, {1024*i}
    s_mov_b32 s{sX+2}, {n*1280}
    buffer_load_dwordx4 v{vPk[i]}, {s(sX,4)}, 0 offen lds""", "pk")
    span(sc, [pkl(0, P_WOUT, 768), pkl(1, P_WO, 640)], C("k0", 6), C("k0", 6)+0.3, 0)
    span(sc, [[("@", "pk")] + [(f"ds_read_b64_tr_b16 {v(pkd+2*i,2)}, v{aPk} offset:{512*i}", "pr") for i in range(4)]] +
         [[("@", "pr"), (f"buffer_store_dwordx4 {v(pkd+4*i,4)}, v{vA[0]}, {s(sWS,4)}, s{sPs[i]} offen sc1", "ps")] for i in range(2)], C("k1", 22), C("k1", 22)+0.3, 0)
    span(sc, [[f"s_add_u32 s{sF2}, s{sF2}, 0x1000"] + flag("ps", sF2)], C("k2", 32), C("k2", 32), 0)
    span(sc, [(f"v_and_b32 v{t0}, 0x7f, v{t0}\n" + fl(sF4), "F")], w0-0.7, w0-0.7, 0)
    span(sc, [poll("w", sF4, 0)], w0+0.18, w0+0.18, 0)
    assert C("k2", 32) < w0-0.7
    for w in range(w0, w1): sc.place(L[30*(w-w0)//(w1-w0):30*(w+1-w0)//(w1-w0)], w, 0.2, 0.9)
    act = [224, 12, 36, 60]
    def ald(i): return [(f"buffer_load_dwordx4 {v(act[i]+4*ks,4)}, v{vA[ks>>2]}, {s(sWS,4)}, s{sAct[i]} offen offset:{1024*(ks&3)} sc1", f"{name}_u{i}") for ks in range(6)]
    aP = [5, 6, 7, 8, 9]; aO = 10
    sc.place([f"""s_mul_i32 s{sT}, s{sK}, 6144
    v_add_u32 v{aO}, s{sT}, v{r.aK}
    s_mul_i32 s{sT}, s{sK}, 5120
    v_add_u32 v{aP[4]}, s{sT}, v{r.aK}"""] + [f"""s_xor_b32 s{sT}, s{sK}, {d}
    s_mul_i32 s{sT}, s{sT}, 15360
    s_add_u32 s{sT}, s{sT}, {PB0}
    v_add_u32 v{aP[d]}, s{sT}, v{vA[0]}""" for d in range(4)], 15, 0.3, 0.8)
    span(sc, [(f"v_and_b32 v{t0}, 0x1f, v{t0}\n" + fl(sF3), "F")], C("u3", 157), C("u3", 157), 0)
    sc.place([poll("u", sF3, 0)] + ald(0), 16, cfg.get("u0", 50)/100, 0.95)
    sc.emit(st)
    for th in range(2):
        if th: st("s_nop 8")
        for i in range(3): st(f"ds_write_b128 v{aO}, {v(r.O[th]+4*i,4)} offset:{(3*th+i)*1024}", "po")
    st.run(ald(1))
    st.w("po")
    stamp(a, 24); st("s_barrier"); stamp(a, 25)
    st.run(ald(2) + ald(3))
    ac = [84, 224, 84, 224]; tc = 250; pr = [12, 36, 84]
    for i in range(4):
        st.w(f"{name}_u{i}")
        stamp(a, 26+i)
        ex = {}
        if i > 0:
            for c in range(5): ex[c+2] = (f"ds_write_b128 v{aP[0]}, {v(ac[i-1]+4*c,4)} offset:{(i-1)*5120+c*1024}", "pw")
        if i == 3:
            ex[9] = [("@", "pw"), "s_barrier"]
            for c in range(5):
                for d in range(3): ex[10+3*c+d] = (f"ds_read_b128 {v(pr[d]+4*c,4)}, v{aP[d+1]} offset:{d*5120+c*1024}", f"pr{c}")
        for ks in range(6):
            for c in range(5):
                q = ac[i]+4*c
                st(f"{MF16} {v(q,4)}, {v(WU(ks,c),4)}, {v(act[i]+4*ks,4)}, {'0' if ks == 0 else v(q,4)}")
                if 5*ks+c in ex: st.run(ex[5*ks+c])
    for c in range(5):
        st.w(f"pr{c}"); q = ac[3]+4*c
        for h2 in (0, 2): st(f"v_pk_add_f32 {v(pr[0]+4*c+h2,2)}, {v(pr[0]+4*c+h2,2)}, {v(pr[1]+4*c+h2,2)}")
        for h2 in (0, 2): st(f"v_pk_add_f32 {v(pr[0]+4*c+h2,2)}, {v(pr[0]+4*c+h2,2)}, {v(pr[2]+4*c+h2,2)}")
        for h2 in (0, 2): st(f"v_pk_add_f32 {v(q+h2,2)}, {v(q+h2,2)}, {v(pr[0]+4*c+h2,2)}")
        st(f"ds_write_b128 v{aP[4]}, {v(q,4)} offset:{c*1024}")
    st("s_waitcnt lgkmcnt(0)")
    stamp(a, 30)
    st("s_barrier")
    if TS[0]: st(f"v_writelane_b32 v255, s{sCnt}, 5")
    wend(a, name)
    x = St(a)
    for nm, sF in polls: x(f"""{name}_{nm}retry:
    s_cmp_eq_u32 s{sCnt}, 0
    s_cbranch_scc1 {name}_{nm}ok
    s_sub_u32 s{sCnt}, s{sCnt}, 1
    {fl(sF)}
    s_waitcnt vmcnt(0)
    s_branch {name}_{nm}poll""")
    x(f"{name}_sretry:\n s_cmp_eq_u32 s{sCnt}, 0\n s_cbranch_scc1 {name}_sok\n s_sub_u32 s{sCnt}, s{sCnt}, 1")
    x.run(sld); x(f"s_waitcnt vmcnt(0)\n s_branch {name}_schk")
    T = kvd+4
    x(f"""{name}_kvs:
    s_lshr_b32 s{sT}, s{S_TG}, 1
    s_mul_i32 s{sN}, s{sT}, {KVS}
    s_and_b32 s{sT}, s{S_TG}, 1
    s_lshl_b32 s{sT2}, s{sT}, 1
    s_add_u32 s{sT2}, s{sT2}, s{sTH}
    s_cmp_eq_u32 s{S_J}, 1
    s_cbranch_scc1 {name}_kvv
    s_lshl_b32 s{sT2}, s{sT2}, 10
    s_lshl_b32 s{sT}, s{sT}, 9
    s_add_u32 s{sT}, s{sT}, 0x1000
    s_cmp_eq_u32 s{sHP}, 0
    s_cselect_b32 s{sT}, s{sT2}, s{sT}
    s_cselect_b32 s{sT2}, 16, 0x400
    v_add_u32 v{T}, s{sT2}, v{aLw}
    ds_read_b64 {v(kvd,2)}, v{aLw}
    ds_read_b64 {v(kvd+2,2)}, v{T}
    s_add_u32 s{sN}, s{sN}, s{sT}
    s_add_u32 s{sN}, s{sN}, {hx(WS_KV)}
    s_lshl_b32 s{sT}, s{sK}, 5
    s_sub_u32 s{sT}, 96, s{sT}
    v_cmp_gt_u32 vcc, s{sT}, v0
    s_nop 1
    v_cndmask_b32 v{T}, -4.0, v{vA[0]}, vcc
    s_waitcnt lgkmcnt(0)
    buffer_store_dwordx4 {v(kvd,4)}, v{T}, {s(sWS,4)}, s{sN} offen sc1
    s_branch {name}_kvr
    {name}_kvv:
    v_bfe_u32 v{T}, v0, 4, 1
    v_lshlrev_b32 v{T}, 7, v{T}
    v_sub_u32 v{T}, v{aLr}, v{T}
    ds_read_b64_tr_b16 {v(kvd,2)}, v{T}
    ds_read_b64_tr_b16 {v(kvd+2,2)}, v{T} offset:256
    s_mul_i32 s{sT2}, s{sT2}, 1536
    s_add_u32 s{sN}, s{sN}, s{sT2}
    s_add_u32 s{sN}, s{sN}, {hx(WS_KV+5120)}
    s_lshl_b32 s{sT}, s{sHP}, 4
    v_and_b32 v{T+1}, 15, v0
    v_add_u32 v{T+1}, s{sT}, v{T+1}
    v_lshrrev_b32 v{T+2}, 4, v0
    v_mul_u32_u24 v{T+2}, 0x180, v{T+2}
    v_lshl_add_u32 v{T+2}, v{T+1}, 4, v{T+2}
    v_mov_b32 v{T+3}, 0x3f803f80
    v_cmp_eq_u32 vcc, 20, v{T+1}
    v_cmp_gt_u32 {s(sE,2)}, 24, v{T+1}
    s_nop 0
    v_cndmask_b32 v{T+3}, 0, v{T+3}, vcc
    v_cmp_gt_u32 vcc, 20, v{T+1}
    v_cndmask_b32 v{T+2}, -4.0, v{T+2}, {s(sE,2)}
    s_waitcnt lgkmcnt(0)""")
    for i in range(4): x(f"v_cndmask_b32 v{kvd+i}, v{T+3}, v{kvd+i}, vcc")
    x(f"""buffer_store_dwordx4 {v(kvd,4)}, v{T+2}, {s(sWS,4)}, s{sN} offen sc1
    s_branch {name}_kvr""")
```

```python
from kb import *
X0 = KV0; XP = [3, 4, 0, 1, 2, 5, 6, 7, 8, 9]
xblk = lambda i: 8192*XP[i]
MISC = X0 + 81920; GATE = MISC; STX = MISC + 1280; LNS = MISC + 3328
QX = X0 + 5*8192; Z1P = QX + 12288; Z1W = 4096
RING = X0
SZ = [14848]*10 + [12288]*10 + [10240]*10
POS = []; FREE = []
p_ = 0
for s_, z_ in enumerate(SZ):
    if p_ + z_ > RING: p_ = 0
    POS.append(p_)
    FREE.append(max([q+1 for q in range(s_) if POS[q] < p_+z_ and p_ < POS[q]+SZ[q]] + FREE[-1:], default=-1))
    p_ += z_
TAGC = 0x9E3779B9
def pkloads(reg, n, vA, sWS, sPk, tag):
    return [((f"s_add_u32 s{sPk}, s{sPk}, 0x1000\n" if i and i % 4 == 0 else "") +
             f"buffer_load_dwordx4 {v(reg+4*i,4)}, v{vA}, {s(sWS,4)}, s{sPk} offen offset:{1024*(i&3)} sc1", tag) for i in range(n)]
def kf(name, JB=2, cfg={}):
    a = Asm(); header(a, name, JB)
    S_ = Regs(36, 88)
    sWS = S_(4); sW = S_(4); sAct = [S_() for i in range(4)]; sT = S_(); sT2 = S_(); sO = S_(); sN = S_(); sK = S_(); sTH = S_(); sHP = S_(); sE = S_(2); sOwn = S_(); sTag = S_()
    gS = cfg.get("gs", 3); cR = cfg.get("cr", 13)
    st = St(a)
    st(f"""
    s_and_b32 s{sK}, s{S_W}, 3
    s_cmp_ge_u32 s{S_W}, 4
    s_cbranch_scc1 {name}_B
    """)
    def common(st):
        st(f"s_and_b32 s{sTH}, s{S_W}, 1\n s_bfe_u32 s{sHP}, s{S_W}, 0x10001")
        st(f"s_xor_b32 s{sOwn}, s{sK}, s{S_J}\n s_and_b32 s{sOwn}, s{sOwn}, 3" if cfg.get("rot", 1) else f"s_mov_b32 s{sOwn}, s{sK}")
        for i in range(4):
            st(f"""s_xor_b32 s{sT}, s{sOwn}, {(i+1)&3}
            s_lshl_b32 s{sT2}, s{S_TG}, 2
            s_add_u32 s{sT}, s{sT}, s{sT2}
            s_mul_i32 s{sAct[i]}, s{sT}, {44*1024}""")
    nsC = S_.n
    from kfA import waveA
    from kfB import waveB
    env = dict(locals())
    waveA(env, st.fork())
    S_.n = nsC
    waveB(env, st.fork())
    footer(a, name, 0)
    return a, 256, 163840, 512
if __name__ == "__main__": print(POS, FREE)
```

```python
from kfA1 import *
from kbA import slow_path
def waveA(E, st):
    a = E["a"]; name = E["name"]; cfg = E["cfg"]; S_ = E["S_"]; gS = E["gS"]; cR = E["cR"]; JB = E["JB"]
    sWS, sW, sT, sT2, sO, sN, sK, sTH, sHP, sE, sAct, sTag = [E[k] for k in "sWS sW sT sT2 sO sN sK sTH sHP sE sAct sTag".split()]
    sSP = S_(4); sBS = S_(4); sAr = S_(); sWb = [S_(), S_()]; sB = S_(); sWo = S_(); sZb = S_(); sZn = S_(); sZo = S_(); sFl = S_(); sCnt = S_(); sU = S_(); sOa = S_(); sOx = S_()
    sK2 = S_(); sGm = S_(2); sZs = S_(); sSt = S_(); sF2 = S_(); sPk = S_(); sPu = 35
    aW = [4, 5, 6, 7]; vl = 8; vo = [9, 10, 11, 252]; acc = BIG; W = [200, 204]; NZ = 11; Z = [208+4*z for z in range(NZ)]; t0, t1 = 253, 254
    T = 12; vp = 156; aF = 161; pk = 136; vE = 162
    sA, sBb, sC, sM = sSP, sSP+1, sSP+2, sSP+3
    st(f"""
    s_and_b32 s{sT}, s{S_TG}, 7
    s_lshl_b32 s{sPu}, s{sK}, 3
    s_add_u32 s{sPu}, s{sPu}, s{sT}
    v_lshlrev_b32 v{vSt}, 4, v0
    {"" if cfg.get("pk", 1) else f"s_mov_b32 s{sPu}, 11"}
    s_cmp_ge_u32 s{sPu}, 11
    s_cbranch_scc1 {name}_nopk1
    s_lshr_b32 s{sT2}, s{S_TG}, 3
    s_mul_i32 s{sO}, s{sT2}, 192
    s_lshl_b32 s{sT}, s{sPu}, 4
    s_add_u32 s{sO}, s{sO}, s{sT}
    s_cmp_ge_u32 s{sPu}, 3
    s_cselect_b32 s{sT}, 48, 0
    s_add_u32 s{sO}, s{sO}, s{sT}
    s_mul_i32 s{sN}, s{sT2}, 160
    s_and_b32 s{sT}, s{sPu}, 1
    s_mul_i32 s{sT}, s{sT}, 20
    s_cmp_ge_u32 s{sPu}, 8
    s_cselect_b32 s{sM}, 80, 0
    s_add_u32 s{sT}, s{sT}, s{sM}
    s_cmp_eq_u32 s{sPu}, 10
    s_cselect_b32 s{sT}, 16, s{sT}
    s_cselect_b32 s{sA}, 80, 8
    s_cselect_b32 s{sC}, 20, 4
    s_add_u32 s{sN}, s{sN}, s{sT}
    s_lshl_b32 s{sM}, s{sK}, 13
    s_add_u32 s{sM}, s{sM}, {X0+xblk(8)}
    s_lshl_b32 s{sT}, s{S_J}, 2
    s_add_u32 s{sT}, s{sT}, s{sT2}
    s_mul_i32 s{sT}, s{sT}, 11
    s_add_u32 s{sT}, s{sT}, s{sPu}
    s_mul_i32 s{sPk}, s{sT}, 5120
    s_add_u32 s{sPk}, s{sPk}, {hx(WS_PK)}
    s_mov_b32 s{sT}, {640*1280}
    s_cmp_ge_u32 s{sPu}, 6
    s_cselect_b32 s{sBb}, 40, 48
    s_cselect_b32 s{sO}, s{sN}, s{sO}
    s_cselect_b32 s{sW+2}, s{sT}, {768*1280}
    s_mov_b32 s{sW+3}, 0x20000
    s_mul_i32 s{sO}, s{sO}, 1280
    s_mul_i32 s{sT}, s{S_J}, 160
    """)
    for i in range(5):
        st(f"""v_add_u32 v{T}, {64*i}, v0
        v_mul_u32_u24 v{T+1}, 6554, v{T}
        v_bfe_u32 v{T+2}, v{T+1}, 16, 2
        v_bfe_u32 v{T+3}, v{T+1}, 18, 1
        v_mad_u32_u24 v{T+2}, v{T+3}, s{sC}, v{T+2}
        v_bfe_u32 v{T+3}, v{T+1}, 19, 1
        v_mad_u32_u24 v{T+2}, v{T+3}, s{sBb}, v{T+2}
        v_bfe_u32 v{T+3}, v{T+1}, 20, 1
        v_mad_u32_u24 v{T+2}, v{T+3}, s{sA}, v{T+2}
        v_lshrrev_b32 v{T+1}, 16, v{T+1}
        v_lshlrev_b32 v{T+2}, 3, v{T+2}
        v_sub_u32 v{T+2}, v{T+2}, v{T+1}
        v_mul_u32_u24 v{T+2}, 160, v{T+2}
        v_lshl_add_u32 v{vp+i}, v{T if i == 4 else 0}, 4, v{T+2}""")
    st(f"""s_waitcnt lgkmcnt(0)
    s_cselect_b32 s{sW}, s{P_WO}, s{P_WOUT}
    s_cselect_b32 s{sW+1}, s{P_WO+1}, s{P_WOUT+1}
    s_add_u32 s{sO}, s{sO}, s{sT}""")
    st.run(dma160(vp, sW, sO, sM, 5, "pk"))
    st(f"""v_lshrrev_b32 v{T}, 2, v0
    v_mul_u32_u24 v{aF}, 160, v{T}
    v_and_b32 v{T}, 3, v0
    v_lshl_add_u32 v{aF}, v{T}, 3, v{aF}
    v_add_u32 v{aF}, s{sM}, v{aF}
    {name}_nopk1:
    s_waitcnt lgkmcnt(0)""")
    srd(a, sWS, P_WS, WS_END)
    E["common"](st)
    if cfg.get("pf", 1):
        NS = 32 >> JB
        st(f"""s_cmp_eq_u32 s{sHP}, 0
        s_cselect_b32 s{sW}, s{P_WIN}, s{P_WQ}
        s_cselect_b32 s{sW+1}, s{P_WIN+1}, s{P_WQ+1}
        s_cselect_b32 s{sT}, 12, 5
        s_cselect_b32 s{sT2}, 6, 5
        s_mul_i32 s{sW+2}, s{sT}, {640*256}
        s_mov_b32 s{sW+3}, 0x20000
        s_add_u32 s{sO}, s{S_J}, s{sTH}
        s_mul_i32 s{sO}, s{sO}, s{sT2}
        s_lshl_b32 s{sO}, s{sO}, 3
        s_sub_u32 s{sO}, s{sO}, s{sTH}
        s_lshl_b32 s{sO}, s{sO}, 2
        s_and_b32 s{sT2}, s{S_TG}, {NS-1}
        s_lshl_b32 s{sT}, s{sT}, 8
        v_lshl_add_u32 v{T}, v0, {5-JB}, s{sT2}
        v_mul_u32_u24 v{T}, s{sT}, v{T}
        s_lshl_b32 s{sT}, s{sT}, {11-JB}""")
        for i in range((640//NS+63)//64): st(f"buffer_load_dword v{vE+1}, v{T}, {s(sW,4)}, s{sO} offen\n s_add_u32 s{sO}, s{sO}, s{sT}")
    st(f"s_mov_b32 s{sT}, {hx(WS_EP)}\n buffer_load_dword v{vE}, off, {s(sWS,4)}, s{sT} sc1", "ep")
    kv_addr(st, T+4)
    srd(a, sSP, P_WSP, 2048*4096)
    st(f"v_mov_b32 v{T}, v{vSt}")
    st(f"""
    s_mul_i32 s{sAr}, s{sK}, {AA}
    s_lshl_b32 s{sT}, s{S_TG}, 1
    s_add_u32 s{sT}, s{sT}, s{sTH}
    s_lshl_b32 s{sT2}, s{sK}, 10
    s_lshl_b32 s{sWb[0]}, s{sT}, 17
    s_add_u32 s{sWb[0]}, s{sWb[0]}, s{sT2}
    s_xor_b32 s{sWb[1]}, s{sWb[0]}, 0x20000
    s_and_b32 s{sB}, s{S_TG}, 7
    s_lshl_b32 s{sB}, s{sB}, 7
    s_mov_b32 s{sZn}, s{sB}
    s_mul_i32 s{sU}, s{sT}, {88*1024}
    s_add_u32 s{sU}, s{sU}, {hx(WS_ACT)}
    s_lshl_b32 s{sT}, s{S_J}, 2
    s_add_u32 s{sT}, s{sT}, s{sK}
    s_mul_i32 s{sZb}, s{sT}, {8*12288}
    s_add_u32 s{sZb}, s{sZb}, {hx(WS_Z2N)}
    s_lshl_b32 s{sFl}, s{sT}, 7
    s_add_u32 s{sFl}, s{sFl}, {hx(WS_FLAG)}
    v_lshrrev_b32 v{T+4}, 3, v0
    v_lshlrev_b32 v{T+4}, 12, v{T+4}
    v_lshrrev_b32 v{T+5}, 4, v0
    v_and_b32 v{T+6}, 7, v0
    v_xor_b32 v{T+5}, v{T+5}, v{T+6}
    v_lshl_add_u32 v{vo[0]}, v{T+5}, 4, v{T+4}
    v_xor_b32 v{T+5}, 64, v{vo[0]}
    v_add_u32 v{vo[1]}, {32768-1024}, v{T+5}
    v_add_u32 v{vo[2]}, {2*(32768-1024)}, v{vo[0]}
    v_add_u32 v{vo[3]}, {3*(32768-1024)}, v{T+5}
    v_lshrrev_b32 v{T+4}, 5, v0
    v_bfe_u32 v{T+5}, v0, 1, 3
    v_xor_b32 v{T+5}, v{T+5}, v{T+4}
    v_lshlrev_b32 v{T+5}, 4, v{T+5}
    v_and_b32 v{T+6}, 31, v0
    v_lshl_add_u32 v{T+5}, v{T+6}, 7, v{T+5}
    v_lshlrev_b32 v{t0}, 2, v{T+6}
    s_lshl_b32 s{sT}, s{sHP}, 7
    v_xor_b32 v{vl}, s{sT}, v{T}
    s_mov_b32 s{sCnt}, 0x8000
    """)
    for i in range(4): st(f"v_xor_b32 v{aW[i]}, {hx(32*i)}, v{T+5}\n v_add_u32 v{aW[i]}, s{sAr}, v{aW[i]}")
    st(f"""
    s_lshr_b32 s{sT}, s{S_J}, 1
    s_mul_i32 s{sT}, s{sT}, 5120
    s_add_u32 s{sOa}, s{sU}, s{sT}
    s_and_b32 s{sT}, s{S_J}, 1
    s_lshl_b32 s{sT2}, s{sT}, 3
    s_add_u32 s{sOx}, s{sOa}, s{sT2}
    s_lshl_b32 s{sT2}, s{sHP}, 8
    s_add_u32 s{sOx}, s{sOx}, s{sT2}
    s_add_u32 s{sOx}, s{sOx}, 4096
    s_lshl_b32 s{sT}, s{sT}, 1
    s_add_u32 s{sT}, s{sT}, s{sHP}
    s_lshl_b32 s{sT}, s{sT}, 10
    s_add_u32 s{sOa}, s{sOa}, s{sT}
    s_mul_i32 s{sT}, s{S_J}, 3072
    s_add_u32 s{sU}, s{sU}, s{sT}
    s_lshl_b32 s{sT}, s{sHP}, 9
    s_add_u32 s{sU}, s{sU}, s{sT}
    s_add_u32 s{sU}, s{sU}, {20*1024}
    s_mul_i32 s{sT}, s{sK}, 5120
    s_add_u32 s{sT}, s{sT}, {hx(WS_ACT)}
    """)
    for i in range(4): st(f"s_add_u32 s{sAct[i]}, s{sAct[i]}, s{sT}")
    srd(a, sBS, P_BSP, 4096)
    vu = T+8
    uaddr = lambda vu, tp: [f"""v_bfe_u32 v{tp}, v0, 4, 1
    v_mul_u32_u24 v{vu}, {44*1024}, v{tp}
    v_and_b32 v{tp}, 15, v0
    v_lshl_add_u32 v{vu}, v{tp}, 4, v{vu}""", f"""v_lshrrev_b32 v{tp}, 5, v0
    v_lshl_add_u32 v{vu+1}, v{tp}, 9, v{vu}
    v_lshl_add_u32 v{vu}, v{tp}, 8, v{vu}"""]
    st.run(uaddr(vu, T+4))
    st(f"v_mov_b64 {v(T+12,2)}, -1\n v_mov_b64 {v(T+14,2)}, -1")
    for n in range(3*cfg.get("sent", 1)): st(f"buffer_store_dwordx4 {v(T+12,4)}, v{vu}, {s(sWS,4)}, s{sU} offen offset:{1024*n} sc1")
    if cfg.get("sent", 1): st(f"""buffer_store_dwordx4 {v(T+12,4)}, v{vu}, {s(sWS,4)}, s{sOa} offen sc1
    buffer_store_dwordx4 {v(T+12,4)}, v{vu}, {s(sWS,4)}, s{sOa} offen offset:512 sc1
    buffer_store_dwordx2 {v(T+12,2)}, v{vu+1}, {s(sWS,4)}, s{sOx} offen sc1""")
    h, e, cb, tok = T+1, T+2, T+3, T+4
    st(f"""
    v_lshrrev_b32 v{h}, 5, v0
    v_bfe_u32 v{e}, v0, 2, 2
    v_and_b32 v{tok}, 31, v0
    v_bfe_u32 v{cb}, v0, 4, 1
    v_and_b32 v{T+5}, 3, v0
    v_lshlrev_b32 v{T+5}, 3, v{T+5}
    v_lshl_add_u32 v{cb}, v{cb}, 5, v{T+5}
    v_lshl_add_u32 v{T+6}, v{h}, 3, v{e}
    s_mul_i32 s{sT}, s{sHP}, 96
    v_mul_u32_u24 v{aZ[0]}, 192, v{T+6}
    v_add3_u32 v{aZ[0]}, v{aZ[0]}, v{cb}, s{sT}
    v_mad_u32_u24 v{aKV[0]}, v{T+6}, 40, v{cb}
    v_add_u32 v{T+6}, v{T+6}, v{e}
    s_mul_i32 s{sT}, s{sHP}, 40
    v_mul_u32_u24 v{aQ[0]}, 160, v{T+6}
    v_add3_u32 v{aQ[0]}, v{aQ[0]}, v{cb}, s{sT}
    v_add_u32 v{aZ[1]}, 0x8000, v{aZ[0]}
    v_add_u32 v{aQ[1]}, 0x8000, v{aQ[0]}
    v_add_u32 v{aKV[1]}, 0x8000, v{aKV[0]}
    v_lshlrev_b32 v{aG}, 4, v{h}
    v_add_u32 v{aG}, {GATE}, v{aG}
    s_lshl_b32 s{sT}, s{sTH}, 12
    s_add_u32 s{sT}, s{sT}, {X0}
    s_sub_u32 s{sT}, s{sT}, s{sAr}
    s_mov_b32 s{sGm}, 0xff000000
    s_mov_b32 s{sGm+1}, 0xff000000
    s_mov_b32 s{sK2}, {fl(-GK2)}
    v_mov_b32 v{vK1}, {fl(-GK1)}
    v_mov_b64 {v(sm,2)}, 0
    v_mov_b64 {v(r.Q8,2)}, 0
    v_mov_b64 {v(r.Q8+2,2)}, 0
    v_mov_b32 v{vF1}, -4.0
    """)
    for i in range(4): st(f"v_add_u32 v{aX[0][i]}, s{sT}, v{aW[i]}\n v_add_u32 v{aX[1][i]}, 0x10000, v{aX[0][i]}")
    st(f"""
    s_lshl_b32 s{sT}, s{sTH}, 1
    s_add_u32 s{sT}, s{sT}, s{sHP}
    s_lshl_b32 s{sT}, s{sT}, 9
    s_add_u32 s{sT}, s{sT}, {STX}
    v_lshl_add_u32 v{aS}, v0, 3, s{sT}
    s_lshl_b32 s{sT}, s{sK}, 10
    s_add_u32 s{sT}, s{sT}, {LNS}
    v_lshl_add_u32 v{aLw}, v{tok}, 5, s{sT}
    v_lshl_add_u32 v{aLw}, v{h}, 3, v{aLw}
    v_lshrrev_b32 v{T+6}, 4, v0
    v_lshl_add_u32 v{aLr}, v{T+6}, 3, v{e}
    v_lshl_add_u32 v{aLr}, v{aLr}, 5, s{sT}
    v_add_u32 v{aLr}, v{aLr}, v{T+5}
    v_mul_u32_u24 v{vZn}, 3072, v{h}
    v_and_b32 v{T+6}, 1, v{T+6}
    v_lshl_add_u32 v{vZn}, v{T+6}, 9, v{vZn}
    v_and_b32 v{T+6}, 7, v0
    v_lshl_add_u32 v{vZn}, v{T+6}, 4, v{vZn}
    v_bfe_u32 v{T+6}, v0, 3, 1
    v_lshl_add_u32 v{vZn}, v{T+6}, 8, v{vZn}
    s_lshl_b32 s{sT}, s{sK}, 12
    s_add_u32 s{sT}, s{sT}, {Z1P}
    v_add_u32 v{aPark}, s{sT}, v{vSt}
    s_lshl_b32 s{sT}, s{S_TG}, 1
    s_add_u32 s{sT}, s{sT}, s{sTH}
    s_lshl_b32 s{sSt}, s{sT}, 12
    s_add_u32 s{sSt}, s{sSt}, {hx(WS_ST2)}
    s_mul_i32 s{sZs}, s{sT}, 6144
    s_mul_i32 s{sT}, s{S_J}, {128*3072}
    s_add_u32 s{sZs}, s{sZs}, s{sT}
    s_lshl_b32 s{sT}, s{sHP}, 7
    s_add_u32 s{sZs}, s{sZs}, s{sT}
    s_add_u32 s{sZs}, s{sZs}, {hx(WS_Z2N)}
    s_lshl_b32 s{sT}, s{S_J}, 5
    s_add_u32 s{sT}, s{sT}, s{S_TG}
    s_lshl_b32 s{sT}, s{sT}, 2
    s_add_u32 s{sT}, s{sT}, s{sK}
    s_lshl_b32 s{sT}, s{sT}, 2
    s_add_u32 s{sF2}, s{sT}, {hx(WS_FLAG)}
    s_lshl_b32 s{sT2}, s{sHP}, 5
    s_sub_u32 s{sT2}, 32, s{sT2}
    v_cmp_gt_u32 vcc, s{sT2}, v0
    v_cmp_eq_u32 {s(sE,2)}, 0, v0
    s_lshl_b32 s{sT}, s{S_J}, 9
    v_add_u32 v{T+6}, s{sT}, v{vSt}
    v_cndmask_b32 v{vSp}, -4.0, v{T+6}, vcc
    v_cndmask_b32 v{vF}, -4.0, v0, {s(sE,2)}
    s_lshl_b32 s{sT}, s{S_J}, 1
    s_add_u32 s{sT}, s{sT}, s{sHP}
    s_barrier""")
    stamp(a, 1)
    st(f"""s_cmp_eq_u32 s{sT}, 1
    s_cbranch_scc1 {name}_pk
    s_cmp_eq_u32 s{sT}, 3
    s_cbranch_scc1 {name}_pv""")
    def pack2(st_):
        a(f"s_cmp_ge_u32 s{sPu}, 11\n s_cbranch_scc1 {name}_nopk2")
        x = st_.fork(); x.w("pk")
        for c in range(5):
            for p in range(2): x(f"ds_read_b64_tr_b16 {v(pk+4*c+2*p,2)}, v{aF} offset:{p*2560+32*c}", f"pk{c}")
        x(f"s_add_u32 s{sT}, s{sPk}, 0x1000")
        for c in range(5):
            x.w(f"pk{c}"); x(f"buffer_store_dwordx4 {v(pk+4*c,4)}, v{vSt}, {s(sWS,4)}, s{sT if c == 4 else sPk} offen offset:{1024*(c&3)} sc1")
        a(f"{name}_nopk2:")
    def pass1(st_, var):
        sc = Sched()
        for x in reads(0, var, sGm) + reads(1, var, sGm): sc.op(x)
        gemm(sc, 0, 40, var, sGm, lambda b: [pack2] if b == 2 and not var else [])
        sc.place([[("@", "ep"), f"v_readfirstlane_b32 s{sTag}, v{vE}"], f"s_add_u32 s{sTag}, s{sTag}, {hx(TAGC)}\n v_mov_b32 v{gr+1}, s{sTag}\n v_mov_b32 v{gr+3}, s{sTag}"], 6, 0.2, 0.8)
        sc.place([lambda st_: stamp(a, 2)], 10, 0, 0)
        sc.emit(st_)
    st0 = st.fork()
    pass1(st, 0)
    st(f"{name}_p2:")
    sc = Sched(); gemm(sc, 40, 120, 0, sGm, lambda b: [])
    C = lambda k, d: cfg.get(k, d)/10
    g2 = C("g2", 169)
    span(sc, gelu(list(range(Z2, Z2+24)), sK2, lambda g, X: [f"v_add_f32 v{sm}, v{sm}, v{x}\n v_fmac_f32 v{sm+1}, v{x}, v{x}" for x in X]) +
         [f"v_mov_b64 {v(tg_,2)}, {v(sm,2)}\n s_nop 1\n v_permlane32_swap_b32 v{sm}, v{tg_}\n v_permlane32_swap_b32 v{sm+1}, v{tg_+1}",
          (f"v_add_f32 v{sm}, v{sm}, v{tg_}\n v_add_f32 v{sm+1}, v{sm+1}, v{tg_+1}\n ds_write_b64 v{aS}, {v(sm,2)}", "stx")], 10.35, g2, 10)
    assert C("f1p", 135) < int(g2)+1
    span(sc, [f"s_mov_b32 s{sT}, {hx(WS_F1)}\n s_waitcnt vmcnt(0)\n buffer_store_dword v{gr+1}, v{vF1}, {s(sWS,4)}, s{sT} offen sc1"], C("f1p", 135), C("f1p", 135), 10)
    span(sc, [(f"ds_read_b64 {v(tg_,2)}, v{aS} offset:512", "sty"),
              [("@", "sty"), f"""v_add_f32 v{gr}, v{sm}, v{tg_}
              v_add_f32 v{gr+2}, v{sm+1}, v{tg_+1}
              buffer_store_dwordx4 {v(gr,4)}, v{vSp}, {s(sWS,4)}, s{sSt} offen sc1"""]], int(g2)+1, int(g2)+1.5, 10)
    span(sc, [lambda st_: stamp(a, 6)], 20, 20, 10)
    span(sc, gelu(list(range(Z1, Z1+24)), sK2, lambda g, X: [f"v_cvt_pk_bf16_f32 v{z1p+g//2+i}, v{X[2*i]}, v{X[2*i+1]}" for i in range(2)]), 20.7, C("g1", 270), 10)
    span(sc, [(f"ds_write_b128 v{aPark}, {v(z1p+4*n,4)} offset:{1024*n}", "qx") for n in range(3)] + [f"s_mul_i32 s{sT}, s{sK}, 3072\n s_add_u32 s{sT}, s{sT}, {QX}\n v_add_u32 v{aS}, s{sT}, v{vSt}"], 29.1, 29.6, 10)
    sld = [(f"buffer_load_dwordx4 {v(ssr[i],4)}, v{vSt}, {s(sWS,4)}, s{sSt} offen offset:{1024*i} sc1", "ss") for i in range(4)]
    m, n_ = tg_+2, tg_+3; mu = sm
    def schk(st_):
        st_(f"{name}_schk:"); st_.w("ss")
        G_ = [x+o for x in ssr for o in (1, 3)]
        for op, d in (("max", m), ("min", n_)):
            st_(f"v_{op}3_u32 v{d}, v{G_[0]}, v{G_[1]}, s{sTag}")
            for i in (2, 4, 6): st_(f"v_{op}3_u32 v{d}, v{G_[i]}, v{G_[i+1]}, v{d}")
        st_(f"v_cmp_ne_u32 vcc, v{m}, v{n_}\n s_cbranch_vccnz {name}_sretry\n {name}_sok:")
        stamp(a, 29)
    LN = [schk]
    for o in (0, 2): LN += [f"v_add_f32 v{m}, v{ssr[0]+o}, v{ssr[1]+o}\n v_add_f32 v{n_}, v{ssr[2]+o}, v{ssr[3]+o}\n v_add_f32 v{mu+o//2}, v{m}, v{n_}"]
    LN += [f"v_mov_b64 {v(m,2)}, {v(mu,2)}\n s_nop 1\n v_permlane32_swap_b32 v{mu}, v{m}\n v_permlane32_swap_b32 v{mu+1}, v{m+1}",
           f"v_add_f32 v{mu}, v{mu}, v{m}\n v_add_f32 v{mu+1}, v{mu+1}, v{m+1}\n v_mul_f32 v{mu}, {fl(1/768)}, v{mu}\n v_mul_f32 v{mu+1}, {fl(1/768)}, v{mu+1}",
           f"v_fma_f32 v{mu+1}, -v{mu}, v{mu}, v{mu+1}\n v_max_f32 v{mu+1}, 0, v{mu+1}\n v_add_f32 v{mu+1}, {fl(1e-5)}, v{mu+1}\n v_rsq_f32 v{mu+1}, v{mu+1}\n s_nop 0\n v_mul_f32 v{mu}, v{mu}, v{mu+1}"]
    for n in range(3):
        for a_ in range(2):
            q = Z2+8*n+4*a_
            LN += [f"v_fma_f32 v{q+i}, v{q+i}, v{mu+1}, -v{mu}\n v_fma_f32 v{q+i+1}, v{q+i+1}, v{mu+1}, -v{mu}" for i in (0, 2)]
            LN += [f"v_cvt_pk_bf16_f32 v{q}, v{q}, v{q+1}\n v_cvt_pk_bf16_f32 v{q+1}, v{q+2}, v{q+3}\n ds_write_b64 v{aLw}, {v(q,2)} offset:{16*a_}"]
            if a_ == 0 and n: LN.append([("@", "tr"), f"buffer_store_dwordx4 {v(Z2+8*n-8,4)}, v{vZn}, {s(sWS,4)}, s{sZs} offen offset:{1024*n-1024} sc1"])
        LN += [(f"ds_read_b64_tr_b16 {v(Z2+8*n,2)}, v{aLr}\n ds_read_b64_tr_b16 {v(Z2+8*n+2,2)}, v{aLr} offset:128", "tr")]
    LN += ["; ln", [("@", "tr"), f"buffer_store_dwordx4 {v(Z2+16,4)}, v{vZn}, {s(sWS,4)}, s{sZs} offen offset:2048 sc1"]]
    sl, l0, l1 = C("sl", 260), C("l0", 301), C("l1", 309)
    if sl < 30: span(sc, sld, sl, sl+0.5, 10)
    if l0 < 30: assert l0 >= C("g1", 270) and l1 <= 30; span(sc, LN, l0, l1, 10)
    sc.emit(st)
    st("s_nop 9")
    for ab in range(2):
        for i in range(4): st(f"v_cvt_pk_bf16_f32 v{r.Q16[ab]+i}, v{QA+16*ab+2*i}, v{QA+16*ab+2*i+1}")
        st(f"ds_write_b128 v{aS}, {v(r.Q16[ab],4)} offset:{1024*ab}", "qx")
    st("s_mov_b32 exec_hi, 0")
    for i in range(4): st(f"v_cvt_pk_bf16_f32 v{r.Q8+i}, v{QA+16*(i>>1)+8+2*(i&1)}, v{QA+16*(i>>1)+9+2*(i&1)}")
    st(f"s_mov_b32 exec_hi, -1\n ds_write_b128 v{aS}, {v(r.Q8,4)} offset:2048\n v_mul_f32 v{gl}, {fl(-LOG2E)}, v{QA+12}", "qx")
    st.w("qx"); st("s_barrier"); stamp(a, 7)
    def wsp(blk):
        L = []
        for b in range(8):
            x = ""
            if b & 3 == 0: x = f"s_add_u32 m0, s{sAr}, {(blk&1)*8192+b*1024}\n s_add_u32 s{sWo}, s{sWb[b>>2]}, s{sB}\n"
            x += f"buffer_load_dwordx4 v{vo[b&3]}, {s(sSP,4)}, s{sWo} offen offset:{(b&3)*1024} lds\n"
            if b == 7: x += f"s_add_u32 s{sB}, s{sB}, 128\n s_and_b32 s{sB}, s{sB}, 0x3ff"
            L.append((x, f"wsp{blk}"))
        return L
    def zld(f):
        ks, n = divmod(f, 3); x = ""
        if f % 12 == 0: x = f"s_mul_i32 s{sZo}, s{sZn}, 96\n s_add_u32 s{sZn}, s{sZn}, 128\n s_add_u32 s{sZo}, s{sZo}, s{sZb}\n s_and_b32 s{sZn}, s{sZn}, 0x3ff\n"
        elif n == 0: x = f"s_add_u32 s{sZo}, s{sZo}, 3072\n"
        return (x + f"buffer_load_dwordx4 {v(Z[f%NZ],4)}, v{vl}, {s(sWS,4)}, s{sZo} offen offset:{1024*n} sc1", f"z{f}")
    rW = lambda ks, th: [("@", f"wsp{ks>>2}"), (f"ds_read_b128 {v(W[th],4)}, v{aW[ks&3]} offset:{((ks>>2)&1)*8192+th*4096}", f"W{th}")]
    G = dict(m=0, q=[])
    DPG = cfg.get("dpg", 1)
    def gop():
        m = G["m"]; G["m"] += 1
        ks, th, n = m//6, (m % 6)//3, m % 3; f = 3*ks+n; ac = acc+48*th+16*n
        it = [("@", f"z{f}", f"W{th}"), f"{MF32} {v(ac,16)}, {v(Z[f%NZ],4)}, {v(W[th],4)}, {'0' if ks == 0 else v(ac,16)}"]
        if n == 2 and ks < 31: it += rW(ks+1, th)
        if th == 1 and f+NZ < 96: it.append(zld(f+NZ))
        if m % 24 == 21 and m//24 + 2 < 8: G["q"] = wsp(m//24 + 2)
        it += G["q"][:DPG]; G["q"] = G["q"][DPG:]
        if m == 191: it.append("; end of G")
        return it
    np_ = (cR-gS)*4
    dens = [[0]*4 for c in range(16)]
    for p in range(np_): dens[gS+p//4][p % 4] = 192*(p+1)//np_ - 192*p//np_
    pa = cfg.get("pa", 1)
    sc = attention(0, dens, gop, lambda c: ["rsw"], lambda c: [(lambda st_, c=c: stamp(a, 8+c))], lambda c, i: pa if (c, i) == (0, 0) and pa else None)
    sc.place([f"v_exp_f32 v{gl}, v{gl}", f"v_add_f32 v{gl}, 1.0, v{gl}", f"v_rcp_f32 v{gl}, v{gl}", f"ds_write_b32 v{aPark}, v{gl} offset:3072"], 0, 0.02, 0.1)
    if sl >= 30: span(sc, sld, sl, sl+0.05, 30)
    if l0 >= 30: span(sc, LN, l0, l1, 30)
    ff = C("ff", 315)
    span(sc, [[f"s_waitcnt vmcnt(0)\n buffer_store_dword v{gr+1}, v{vF}, {s(sWS,4)}, s{sF2} offen sc1", lambda st_: stamp(a, 30)]] + wsp(0) + wsp(1), ff, ff+0.4, 30)
    fld = f"buffer_load_dword v{t1}, v{t0}, {s(sWS,4)}, s{sFl} offen sc1"
    def poll(st_):
        st_(f"{name}_poll:"); st_.w("F")
        st_(f"v_cmp_ne_u32 vcc, s{sTag}, v{t1}\n s_cbranch_vccnz {name}_pretry\n {name}_pok:")
        stamp(a, 3)
    sc.place([(fld, "F")], gS-1, cfg.get("f0", 20)/100, cfg.get("f0", 20)/100)
    sc.place([poll] + [zld(f) for f in range(NZ)], gS-1, cfg.get("f1", 60)/100, 1.0)
    sc.place([rW(0, 0), rW(0, 1)], gS, 0.1, 0.2)
    z1 = 208; og = 220; gt = 222; tp = 224; aR = [228, 229, 230, 231]; vu = 232; aF = 240; vt = 242
    quads = lambda d, n: [acc+48*(d & 1)+16*n+4*(d >> 1), acc+48*(d & 1)+16*n+4*(d >> 1)+8]
    wl = sc.win[cR]; e = max(i for i, o in enumerate(wl) if isinstance(o, list) and "; end of G" in o)
    it = [f"""v_lshlrev_b32 v{aF}, 4, v0
    v_add_u32 v{aR[0]}, s{sAr}, v{aF}
    s_lshl_b32 s{sT}, s{sK}, 12
    s_add_u32 s{sT}, s{sT}, {Z1P}
    v_add_u32 v{tp}, s{sT}, v{aF}"""]
    it += [(f"ds_read_b128 {v(z1+4*n,4)}, v{tp} offset:{1024*n}", "zp") for n in range(3)]
    it += [(f"""s_lshl_b32 s{sT}, s{S_TG}, 1
    s_add_u32 s{sT}, s{sT}, s{sTH}
    s_lshl_b32 s{sT2}, s{sT}, 6
    v_lshrrev_b32 v{vt}, 1, v{t0}
    ds_read_b32 v{gt}, v{tp} offset:3072
    buffer_load_ushort v{og+1}, v{vt}, {s(sBS,4)}, s{sT2} offen""", "zp")]
    for d in (2, 1, 3):
        for n in range(3):
            for e2, q in enumerate(quads(d, n)): it.append((f"ds_write_b128 v{aR[0]}, {v(q,4)} offset:{((d-1)*6+2*n+e2)*1024}", "rsw"))
        it.append(f"s_xor_b32 s{sT}, s{sK}, {d}\n s_mul_i32 s{sT}, s{sT}, {AA}\n v_add_u32 v{aR[d]}, s{sT}, v{aF}")
    sc.place(it, cR, (e+3)/len(wl), 0.9)
    it = []
    rd = lambda n: [(f"ds_read_b128 {v(q,4)}, v{aR[d]} offset:{((d-1)*6+2*n+e2)*1024}", f"rs{n}{e2}") for e2 in range(2) for d in (1, 2, 3) for q in [quads(d, n)[e2]]]
    it += rd(0)
    it += [[("@", "zp"), f"""v_sub_f32 v{og}, 1.0, v{gt}
    v_lshlrev_b32 v{og+1}, 16, v{og+1}
    v_mul_f32 v{og+1}, v{og}, v{og+1}"""]] + uaddr(vu, tp)
    for n in range(3):
        nr = rd(n+1) if n < 2 else []
        for e2 in range(2):
            for h2 in (0, 2):
                o_, p1, p2, p3 = [quads(d, n)[e2]+h2 for d in range(4)]; zi = z1+4*n+2*e2+h2//2
                it.append([("@", f"rs{n}{e2}"), f"""v_pk_add_f32 {v(o_,2)}, {v(o_,2)}, {v(p1,2)}
                v_pk_add_f32 {v(p2,2)}, {v(p2,2)}, {v(p3,2)}
                v_lshlrev_b32 v{tp}, 16, v{zi}
                v_pk_add_f32 {v(o_,2)}, {v(o_,2)}, {v(p2,2)}"""])
                it.append(f"""v_and_b32 v{tp+1}, 0xffff0000, v{zi}
                v_pk_fma_f32 {v(o_,2)}, {v(o_,2)}, {v(og,2)}, {v(og,2)} op_sel:[0,0,1] op_sel_hi:[1,0,1]
                v_pk_mul_f32 {v(o_,2)}, {v(o_,2)}, {v(tp,2)}
                v_cvt_pk_bf16_f32 v{zi}, v{o_}, v{o_+1}""")
                it += nr[:2]; nr = nr[2:]
        it.append(f"buffer_store_dwordx4 {v(z1+4*n,4)}, v{vu}, {s(sWS,4)}, s{sU} offen offset:{1024*n} sc1")
    it.append(lambda st_: stamp(a, 4))
    it.append(f"""s_lshl_b32 s{sT}, s{S_J}, 2
    s_add_u32 s{sT}, s{sT}, s{sK}
    s_mul_i32 s{sPk}, s{sT}, {11*5120}
    s_add_u32 s{sPk}, s{sPk}, {hx(WS_PK+6*5120)}
    s_or_b32 s{sT}, s2, s{sK}
    s_cmp_eq_u32 s{sT}, 0
    s_cselect_b32 s{sE}, 1, 0
    s_mov_b32 s{sE+1}, 0
    v_mov_b32 v{tp+1}, s{sTag}
    v_cndmask_b32 v{tp}, -4.0, v0, {s(sE,2)}
    s_mov_b32 s{sT}, {hx(WS_EP)}
    buffer_store_dword v{tp+1}, v{tp}, {s(sWS,4)}, s{sT} offen sc1""")
    wu = cfg.get("wu", 75)/100
    sc.place(it, cR+1, 0.0, wu)
    WO = lambda ks, c: BIG+4*(5*ks+c)
    span(sc, pkloads(BIG, 25, aF, sWS, sPk, "wof"), cR+1+wu+0.02, min(cR+2.9, 16.6), 0)
    sc.emit(st)
    O = r.O; S = r.S; D = 208; t = 244; mx = 226; vA = [4, 5]; aP = [6, 7, 8, 9, 10]; vs = 11
    st(f"""s_mul_i32 s{sT}, s{sK}, 6144
    v_add_u32 v{t}, s{sT}, v{r.aK}
    s_mov_b32 s{sN}, 0""")
    stamp(a, 24); st("s_barrier"); stamp(a, 25)
    for th in range(2):
        for i in range(3): st(f"ds_read_b128 {v(S[th]+4*i,4)}, v{t} offset:{(3*th+i)*1024}", f"po{th}{i}")
    st(f"v_lshlrev_b32 v{vA[0]}, 4, v0\n v_add_u32 v{vA[1]}, 0x1000, v{vA[0]}")
    for i in (2, 0, 1):
        for th in range(2):
            st.w(f"po{th}{i}")
            for h2 in (0, 2): st(f"v_pk_add_f32 {v(O[th]+4*i+h2,2)}, {v(O[th]+4*i+h2,2)}, {v(S[th]+4*i+h2,2)}")
    st(f"{name}_fin:")
    for i in range(4): st(f"v_permlane32_swap_b32 v{O[0]+8+i}, v{O[1]+8+i}")
    L = O[1]+8
    st(f"""
    v_rcp_f32 v{t}, v{L}
    v_cmp_ngt_f32 vcc, 0x5f800000, v{L}
    s_mov_b32 s{sT}, 0x1f800000
    v_mul_f32 v{t}, v{t}, v{gt}
    v_cmp_nlt_f32 {s(sE,2)}, s{sT}, v{L}
    v_mov_b32 v{t+2}, v{t}
    v_mov_b32 v{t+4}, v{t}
    s_or_b64 {s(sE,2)}, {s(sE,2)}, vcc
    v_pk_mul_f32 {v(O[0]+8,2)}, {v(O[0]+8,2)}, {v(t,2)} op_sel_hi:[1,0]
    v_permlane32_swap_b32 v{t+2}, v{t+4}
    v_pk_mul_f32 {v(O[0]+10,2)}, {v(O[0]+10,2)}, {v(t,2)} op_sel_hi:[1,0]
    """)
    for th in range(2):
        for i in range(0, 8, 2): st(f"v_pk_mul_f32 {v(O[th]+i,2)}, {v(O[th]+i,2)}, {v(t+2+2*th,2)} op_sel_hi:[1,0]")
    st(f"v_pk_mul_f32 {v(t+6,2)}, {v(O[0]+8,2)}, 0 op_sel_hi:[1,0]")
    for k_, q in enumerate([O[0]+10] + [O[th]+i for th in range(2) for i in range(0, 8, 2)]):
        st(f"v_pk_fma_f32 {v(t+6,2)}, {v(q,2)}, 0, {v(t+6,2)} op_sel_hi:[1,0,1]")
        if k_ > 0: st(f"v_cvt_pk_bf16_f32 v{D+k_-1}, v{q}, v{q+1}")
    st(f"""
    v_cmp_u_f32 vcc, v{t+6}, v{t+7}
    v_cvt_pk_bf16_f32 v{D+8}, v{O[0]+8}, v{O[0]+9}
    v_cvt_pk_bf16_f32 v{D+9}, v{O[0]+10}, v{O[0]+11}
    s_or_b64 vcc, {s(sE,2)}, vcc
    s_cbranch_vccnz {name}_slow
    {name}_pub:
    buffer_store_dwordx4 {v(D,4)}, v{vu}, {s(sWS,4)}, s{sOa} offen sc1
    buffer_store_dwordx4 {v(D+4,4)}, v{vu}, {s(sWS,4)}, s{sOa} offen offset:512 sc1
    buffer_store_dwordx2 {v(D+8,2)}, v{vu+1}, {s(sWS,4)}, s{sOx} offen sc1
    """)
    stamp(a, 26)
    act = [12+20*i for i in range(4)]
    srd(a, sSP, P_OUT, 2048*1280)
    st(f"""
    v_add_u32 v{aP[0]}, s{sAr}, v{vA[0]}
    s_mul_i32 s{sT}, s{sK}, 5120
    s_add_u32 s{sT}, s{sT}, {KV0}
    v_add_u32 v{aP[4]}, s{sT}, v{vA[0]}
    v_and_b32 v{t}, 15, v0
    v_mul_u32_u24 v{vs}, 0x500, v{t}
    v_lshrrev_b32 v{t}, 4, v0
    v_lshl_add_u32 v{vs}, v{t}, 3, v{vs}
    v_mov_b32 v{aP[1]}, v{aR[1]}
    v_mov_b32 v{aP[2]}, v{aR[2]}
    v_mov_b32 v{aP[3]}, v{aR[3]}
    s_lshl_b32 s{sT}, s{S_TG}, 2
    s_add_u32 s{sT}, s{sT}, s{E["sOwn"]}
    s_mul_i32 s{sO}, s{sT}, {16*1280}
    s_mul_i32 s{sT2}, s{S_J}, 160
    s_add_u32 s{sO}, s{sO}, s{sT2}
    """)
    def ald(st_, i0):
        for i in range(i0, 4):
            for ks in range(5): st_(f"buffer_load_dwordx4 {v(act[i]+4*ks,4)}, v{vA[ks>>2]}, {s(sWS,4)}, s{sAct[i]} offen offset:{1024*(ks&3)} sc1", f"{name}_o{i}")
    st("s_waitcnt vmcnt(0)")
    ald(st, 0)
    ac2 = [208, 228]; tc = 250
    for i in range(4):
        chk_tile(st, f"{name}_o{i}", act[i], 20, tc, sCnt)
        stamp(a, 27 if i == 0 else 28) if i in (0, 3) else None
        if i == cfg.get("t2", 1): st("s_barrier")
        ex = {}
        if i > 0:
            for c in range(5): ex[c] = (f"ds_write_b128 v{aP[0]}, {v(ac2[(i-1)&1]+4*c,4)} offset:{(i-1)*5120+c*1024}", "pw")
        pr = act[:3] + [ac2[0]]
        if i == 3:
            ex[8] = [("@", "pw"), "s_barrier"]
            for c in range(5):
                for d in range(4): ex.setdefault(9+(4*c+d)*3//4, []).append((f"ds_read_b128 {v(pr[d]+4*c,4)}, v{aP[d+1]} offset:{(d*5120 if d < 3 else 0)+c*1024}", f"pr{c}"))
        for ks in range(5):
            for c in range(5):
                q = ac2[i & 1]+4*c
                st(f"{MF16} {v(q,4)}, {v(WO(ks,c),4)}, {v(act[i]+4*ks,4)}, {'0' if ks == 0 else v(q,4)}")
                if 5*ks+c in ex: st.run(ex[5*ks+c])
    for c in range(5):
        st.w(f"pr{c}"); q = ac2[1]+4*c
        for h2 in (0, 2):
            p = [x+4*c+h2 for x in pr]
            st(f"v_pk_add_f32 {v(p[0],2)}, {v(p[0],2)}, {v(p[1],2)}\n v_pk_add_f32 {v(p[2],2)}, {v(p[2],2)}, {v(p[3],2)}")
        for h2 in (0, 2): st(f"v_pk_add_f32 {v(pr[0]+4*c+h2,2)}, {v(pr[0]+4*c+h2,2)}, {v(pr[2]+4*c+h2,2)}")
        for h2 in (0, 2): st(f"v_pk_add_f32 {v(q+h2,2)}, {v(q+h2,2)}, {v(pr[0]+4*c+h2,2)}")
        st(f"""v_cvt_pk_bf16_f32 v{q}, v{q}, v{q+1}
        v_cvt_pk_bf16_f32 v{q+1}, v{q+2}, v{q+3}
        buffer_store_dwordx2 {v(q,2)}, v{vs}, {s(sSP,4)}, s{sO} offen offset:{32*c}""")
    if TS[0]: st(f"v_writelane_b32 v255, s{sCnt}, 5")
    wend(a, name)
    x = St(a)
    x(f"""{name}_pretry:
    s_cmp_eq_u32 s{sCnt}, 0
    s_cbranch_scc1 {name}_pok
    s_sub_u32 s{sCnt}, s{sCnt}, 1
    {fld}
    s_waitcnt vmcnt(0)
    s_branch {name}_poll""")
    for i in range(4):
        x(f"{name}_o{i}_retry:\n s_cmp_eq_u32 s{sCnt}, 0\n s_cbranch_scc1 {name}_o{i}_ok\n s_sub_u32 s{sCnt}, s{sCnt}, 1")
        ald(x, i); x(f"s_branch {name}_o{i}_chk")
    x(f"{name}_sretry:\n s_cmp_eq_u32 s{sCnt}, 0\n s_cbranch_scc1 {name}_sok\n s_sub_u32 s{sCnt}, s{sCnt}, 1")
    x.run(sld); x(f"s_waitcnt vmcnt(0)\n s_branch {name}_schk")
    for var in (1, 2):
        x = st0.fork(); x(f"{name}_p{'kv'[var-1]}:")
        pass1(x, var); T = tg_
        x(f"""s_lshr_b32 s{sT}, s{S_TG}, 1
        s_mul_i32 s{sO}, s{sT}, {KVS}
        s_and_b32 s{sT}, s{S_TG}, 1
        s_lshl_b32 s{sT2}, s{sT}, 1
        s_add_u32 s{sT2}, s{sT2}, s{sTH}
        s_lshl_b32 s{sN}, s{S_TG}, 2
        s_add_u32 s{sN}, s{sN}, s{sTH}
        s_add_u32 s{sN}, s{sN}, {2*(var-1)}
        s_lshl_b32 s{sN}, s{sN}, 2
        v_or_b32 v{vF1}, s{sN}, v{vF}""")
        if var == 1:
            x(f"""s_lshl_b32 s{sT2}, s{sT2}, 10
            s_lshl_b32 s{sT}, s{sT}, 6
            s_add_u32 s{sT}, s{sT}, s{sTH}
            s_lshl_b32 s{sT}, s{sT}, 3
            s_add_u32 s{sO}, s{sO}, {hx(WS_KV)}
            s_add_u32 s{sT}, s{sT}, s{sO}
            s_add_u32 s{sT}, s{sT}, 0x1000
            s_add_u32 s{sO}, s{sO}, s{sT2}
            v_cmp_gt_u32 vcc, 32, v0""")
            for i in range(12): x(f"v_mul_f32 v{KA+i}, {fl(QSCALE)}, v{KA+i}")
            for i in range(6): x(f"v_cvt_pk_bf16_f32 v{KA+i}, v{KA+2*i}, v{KA+2*i+1}")
            x(f"""v_cndmask_b32 v{T}, -4.0, v{vSt}, vcc
            buffer_store_dwordx4 {v(KA,4)}, v{vSt}, {s(sWS,4)}, s{sO} offen sc1
            buffer_store_dwordx2 {v(KA+4,2)}, v{T}, {s(sWS,4)}, s{sT} offen sc1""")
        else:
            x(f"""s_mul_i32 s{sT2}, s{sT2}, 1536
            s_add_u32 s{sO}, s{sO}, s{sT2}
            s_add_u32 s{sO}, s{sO}, {hx(WS_KV+5120-KV0)}
            v_and_b32 v{T}, 31, v0
            v_mov_b32 v{T+1}, 0x3f803f80
            v_cmp_eq_u32 vcc, 20, v{T}
            v_cmp_gt_u32 {s(sE,2)}, 24, v{T}
            v_cvt_pk_bf16_f32 v{KA}, v{KA}, v{KA+1}
            v_cndmask_b32 v{T+1}, 0, v{T+1}, vcc
            v_cmp_gt_u32 vcc, 20, v{T}
            v_cndmask_b32 v{T}, -4.0, v{r.aV}, {s(sE,2)}""")
            for i in range(1, 8): x(f"v_cvt_pk_bf16_f32 v{KA+i}, v{KA+2*i}, v{KA+2*i+1}")
            for i in range(8): x(f"v_cndmask_b32 v{KA+i}, v{T+1}, v{KA+i}, vcc")
            x(f"""buffer_store_dwordx4 {v(KA,4)}, v{T}, {s(sWS,4)}, s{sO} offen sc1
            buffer_store_dwordx4 {v(KA+4,4)}, v{T}, {s(sWS,4)}, s{sO} offen offset:768 sc1""")
        x(f"s_branch {name}_p2")
    slow_path(a, name, sWS, sT, sN, [sWb[0], sWb[1], sB, sZb], mx, t)
```

```python
from kf import *
Z2 = BIG; Z1 = 136; QA = 12; KA = 44; ssr = [128, 132, 160, 164]; tg_ = 168; z1p = 176; sm = 188; gl = 190; vK1 = 191
aLw, aLr, vZn, vSt, vF, aPark = 192, 193, 194, 195, 196, 197
FW = lambda t, n: 208 + 12*(t % 3) + 4*n
FX = lambda t: 60 + 4*(t % 3)
aX = [[88, 89, 90, 91], [72, 73, 74, 75]]; aZ = [92, 93]; aQ = [94, 95]; aKV = [96, 97]; aG = 98; aS = 99; vSp = 100; vF1 = 101; gr = 244
def gelu(R, sK2, stats):
    L = []
    for g in range(0, len(R), 4):
        X = R[g:g+4]; T = [tg_ + (g & 4) + i for i in range(4)]
        for f in ("v_mul_f32 v{t}, v{x}, v{x}", "v_fma_f32 v{t}, v{t}, s%d, v%d" % (sK2, vK1), "v_mul_f32 v{t}, v{t}, v{x}", "v_exp_f32 v{t}, v{t}",
                  "v_add_f32 v{t}, 1.0, v{t}", "v_rcp_f32 v{t}, v{t}", "v_mul_f32 v{x}, v{x}, v{t}"):
            L += [f.format(t=t, x=x) for t, x in zip(T, X)]
        L += stats(g, X)
    return L
def reads(t, var, sGm):
    q, i = divmod(t, 4); ps = q // 10; hi = int(POS[q] >= 32768); o = POS[q] - 32768*hi; xo = xblk(q % 10)
    L = [(f"ds_read_b128 {v(FX(t),4)}, v{aX[xo >> 16][i]} offset:{xo & 0xffff}", f"f{t}_0")]
    for n in range(2):
        for p in range(2):
            ad = f"v{aZ[hi]} offset:{o+3072*i+768*p+64*n}" if ps < 2 else f"v{aQ[hi]} offset:{o+2560*i+160*p+80*n}"
            L.append((f"ds_read_b64_tr_b16 {v(FW(t,n)+2*p,2)}, {ad}", f"f{t}_{n}"))
        if ps == 2 and n == 0:
            L.append((f"s_mov_b64 exec, {s(sGm,2)}\n ds_read_b128 {v(FW(t,0),4)}, v{aG} offset:{128*(q-20)+32*i}\n s_mov_b64 exec, -1", f"f{t}_0"))
    if ps == 0 and var:
        for p in range(2): L.append((f"ds_read_b64_tr_b16 {v(FW(t,2)+2*p,2)}, v{aKV[hi]} offset:{o+12288+640*i+160*p}", f"f{t}_2"))
    return L
def gemm(sc, t0, t1, var, sGm, bar):
    for t in range(t0, t1):
        q, i = divmod(t, 4); ps = q // 10; ac = [Z2, Z1, QA][ps]
        M = []
        for n in range(3 if ps == 0 and var else 2):
            d = v(KA if n == 2 else ac+16*n, 16); A, B = v(FW(t,n),4), v(FX(t),4)
            if n == 2 and var == 2: A, B = B, A
            M.append([("@", f"f{t}_{n}"), f"{MF32} {d}, {A}, {B}, {'0' if t % 40 == 0 else d}"])
        R = reads(t+2, var, sGm) if t+2 < 120 else []
        if i == 2 and q < 29:
            for m in M: sc.op(m)
            sc.op(bar(q+1) + [("@", f"f{t+1}_0", f"f{t+1}_1", f"f{t+1}_2", "stx"), "s_barrier"]); sc.next()
            for x in R: sc.op(x)
        else:
            k = (len(R) + len(M) - 1) // len(M)
            for m in M:
                sc.op(m)
                for x in R[:k]: sc.op(x)
                R = R[k:]
def span(sc, items, w0, w1, base):
    n = len(items)
    for i, it in enumerate(items):
        x = w0 + (w1-w0)*(i+0.5)/n - base
        sc.place([it], int(x), x % 1, x % 1)
```

```python
from kf import *
def waveB(E, st):
    a = E["a"]; name = E["name"]; cfg = E["cfg"]; S_ = E["S_"]; gS = E["gS"]; cR = E["cR"]
    sWS, sW, sT, sT2, sO, sN, sK, sTH, sHP, sE, sAct, sTag = [E[k] for k in "sWS sW sT sT2 sO sN sK sTH sHP sE sAct sTag".split()]
    sX = S_(4); sKW = S_(4); sKVo = S_(); sKVb = S_(); sCnt = S_(); sPk = S_(); sCw = S_(); sXo = S_(); sMx = S_(); sMz = S_(); sMq = S_(); sMk = S_(); sFl = S_()
    TB = cfg.get("tsb", 0); stamp_ = globals()["stamp"]; stamp = (lambda a, k: None) if TB else stamp_
    def tb(b, odd):
        if TB and b != 4: a(f"s_bitcmp1_b32 s{sK}, 0\n s_cbranch_scc{1-odd} {name}_tb{b}_{odd}"); stamp_(a, b+1); a(f"{name}_tb{b}_{odd}:")
    vz = 4; vA = [11, 252]; t0, t1 = 253, 254
    vx = [104, 105]; vw = [106, 107, 108]; vq = [109, 110, 111]; vk = 112; vg = 113; aQx = 114; vE = 115; t = 116
    st(f"""{name}_B:
    v_lshrrev_b32 v{t}, 3, v0
    s_lshl_b32 s{sT}, s{sK}, 4
    v_bfe_u32 v{t+1}, v0, 4, 2
    v_and_b32 v{t+2}, 7, v0
    s_lshl_b32 s{sT2}, s{S_TG}, 6
    v_xor_b32 v{t+1}, v{t+1}, v{t+2}
    s_add_u32 s{sT2}, s{sT2}, s{sT}
    v_add_u32 v{t}, s{sT2}, v{t}
    v_mul_u32_u24 v{t}, 0x500, v{t}
    v_lshl_add_u32 v{vx[0]}, v{t+1}, 4, v{t}
    s_mul_i32 s{sMz}, s{sK}, 3072
    v_xor_b32 v{vx[1]}, 64, v{vx[0]}
    s_lshl_b32 s{sT2}, s{sMz}, 4
    v_add_u32 v{vx[1]}, {8*1280-1024}, v{vx[1]}
    v_lshlrev_b32 v{vA[0]}, 4, v0
    """)
    for i in range(3):
        st(f"""v_add_u32 v{t}, {64*i}, v0
        v_mul_u32_u24 v{t}, 5462, v{t}
        v_lshrrev_b32 v{t}, 16, v{t}
        v_mul_u32_u24 v{t}, {3072-192}, v{t}
        v_add3_u32 v{vw[i]}, v{t}, v{vA[0]}, s{sT2}""")
    if cfg.get("stag", 1): st(f"""
    s_mul_i32 s{sT}, s{S_TG}, 26
    s_lshr_b32 s{sT}, s{sT}, 8
    s_mul_i32 s{sT}, s{sT}, 10
    s_sub_u32 s{sCw}, s{S_TG}, s{sT}""")
    else: st(f"s_mov_b32 s{sCw}, 0")
    st(f"""
    s_lshl_b32 s{sXo}, s{sCw}, 7
    s_lshl_b32 s{sMx}, s{sK}, 11
    s_add_u32 s{sMx}, s{sMx}, {X0}
    s_mul_i32 s{sMk}, s{sK}, 640
    v_add_u32 v{vk}, s{sMk}, v{vA[0]}
    s_mul_i32 s{sT}, s{S_J}, 192
    s_add_u32 s{sT}, s{sT}, 1536
    s_sub_u32 s{sW+2}, {640*3072}, s{sT}
    s_mov_b32 s{sW+3}, 0x20000
    s_mov_b32 s{sX+2}, {2048*1280}
    s_mov_b32 s{sX+3}, 0x20000
    s_mov_b32 s{sKW+2}, 25600
    s_mov_b32 s{sKW+3}, 0x20000
    s_waitcnt lgkmcnt(0)
    s_mov_b32 s{sX}, s{P_X}
    s_mov_b32 s{sX+1}, s{P_X+1}
    s_add_u32 s{sW}, s{P_WIN}, s{sT}
    s_addc_u32 s{sW+1}, s{P_WIN+1}, 0
    s_bitcmp1_b32 s{S_J}, 0
    s_cselect_b32 s{sKW}, s{P_WV}, s{P_WK}
    s_cselect_b32 s{sKW+1}, s{P_WV+1}, s{P_WK+1}
    """)
    def dX(i):
        st(f"""s_add_u32 m0, s{sMx}, {xblk(i)}
        s_add_u32 s{sT}, s{sXo}, 128
        buffer_load_dwordx4 v{vx[0]}, {s(sX,4)}, s{sXo} offen lds
        buffer_load_dwordx4 v{vx[1]}, {s(sX,4)}, s{sXo} offen offset:1024 lds
        s_cmp_eq_u32 s{sT}, 1280
        s_cselect_b32 s{sXo}, 0, s{sT}""", f"x{i}")
    def dW(q):
        if q < 10:
            a(f"""s_cmp_ge_u32 s{S_J}, 2
            s_cbranch_scc1 {name}_nk{q}
            s_add_u32 m0, s{sMk}, {POS[q]+12288}
            s_mul_i32 s{sO}, s{sCw}, 2560
            s_mov_b32 exec_hi, 0xff
            buffer_load_dwordx4 v{vk}, {s(sKW,4)}, s{sO} offen lds
            s_mov_b32 exec_hi, -1
            {name}_nk{q}:""")
        if q == 10: st(f"s_sub_u32 s{sW}, s{sW}, 1536\n s_subb_u32 s{sW+1}, s{sW+1}, 0")
        if q == 20: st(f"""s_mul_i32 s{sT}, s{S_J}, 160
            s_add_u32 s{sW}, s{P_WQ}, s{sT}
            s_addc_u32 s{sW+1}, s{P_WQ+1}, 0
            s_sub_u32 s{sW+2}, {640*1280}, s{sT}""")
        Q = q >= 20
        st(f"s_add_u32 m0, s{sMq if Q else sMz}, {POS[q]}\n s_mul_i32 s{sO}, s{sCw}, {64*(1280 if Q else 3072)}")
        for i in range(3):
            if Q and i == 2: st("s_mov_b32 exec_hi, 0")
            st(f"buffer_load_dwordx4 v{(vq if Q else vw)[i]}, {s(sW,4)}, s{sO} offen offset:{1024*i} lds", f"w{q}")
            if i == 0: st(f"s_add_u32 s{sCw}, s{sCw}, 1\n s_cmp_eq_u32 s{sCw}, 10\n s_cselect_b32 s{sCw}, 0, s{sCw}")
        if Q: st("s_mov_b32 exec_hi, -1")
    st(f"s_mov_b32 s{sN}, s{sXo}")
    n0 = cfg.get("n0", 5); nb = cfg.get("nb", 2); xq = list(range(10)); wq = list(range(30))
    def issue(b, n):
        for i in range(n):
            if xq and (xq[0] < 8 or b >= xq[0]-6): dX(xq.pop(0))
            if wq and FREE[wq[0]] <= b: dW(wq.pop(0))
    issue(-1, n0)
    srd(a, sWS, P_WS, WS_END)
    st(f"s_mov_b32 s{sT}, {hx(WS_EP)}\n buffer_load_dword v{vE}, off, {s(sWS,4)}, s{sT} sc1", "ep")
    if n0 == 5: issue(-1, 3)
    st(f"""
    s_mul_i32 s{sT}, s{sK}, 320
    s_add_u32 m0, s{sT}, {GATE}
    s_add_u32 s{sT}, s{sT}, s{sN}
    v_add_u32 v{vg}, s{sT}, v{vA[0]}
    v_subrev_u32 v{t}, 1280, v{vg}
    v_min_u32 v{vg}, v{vg}, v{t}
    s_mov_b32 s{sAct[0]}, s{P_GW}
    s_mov_b32 s{sAct[0]+1}, s{P_GW+1}
    s_mov_b32 s{sAct[0]+2}, 1280
    s_mov_b32 s{sAct[0]+3}, 0x20000
    s_mov_b64 exec, 0xfffff
    buffer_load_dwordx4 v{vg}, {s(sAct[0],4)}, 0 offen lds
    s_mov_b64 exec, -1
    s_mul_i32 s{sMq}, s{sK}, 2560
    s_lshl_b32 s{sT2}, s{sMq}, 3
    """)
    assert sAct[0] % 4 == 0
    for i in range(3):
        st(f"""v_add_u32 v{t}, {64*i}, v0
        v_mul_u32_u24 v{t}, 6554, v{t}
        v_lshrrev_b32 v{t}, 16, v{t}
        v_mul_u32_u24 v{t+1}, 160, v{t}
        v_sub_u32 v{t+1}, v{vA[0]}, v{t+1}
        v_and_b32 v{t+2}, 8, v{t}
        v_bfe_u32 v{t+3}, v{t}, 1, 2
        v_and_b32 v{t}, 1, v{t}
        v_lshl_add_u32 v{t}, v{t}, 2, v{t+3}
        v_add_u32 v{t}, v{t}, v{t+2}
        v_mul_u32_u24 v{t}, 0x500, v{t}
        v_add3_u32 v{vq[i]}, v{t}, v{t+1}, s{sT2}""")
    E["common"](st)
    kv_addr(st, t)
    st(f"""
    s_add_u32 s{sKVb}, s{sMz}, {KV0}
    v_add_u32 v{vz}, s{sMz}, v{vA[0]}
    v_add_u32 v{aQx}, {QX}, v{vz}
    s_lshr_b32 s{sKVo}, s{S_TG}, 1
    s_mul_i32 s{sKVo}, s{sKVo}, {KVS}
    s_add_u32 s{sKVo}, s{sKVo}, {hx(WS_KV)}
    v_add_u32 v{vA[1]}, 0x1000, v{vA[0]}
    s_mov_b32 s{sCnt}, 0x8000
    s_lshl_b32 s{sFl}, s{sK}, 7
    s_add_u32 s{sFl}, s{sFl}, {hx(WS_F1)}
    v_and_b32 v{t0}, 31, v0
    v_lshlrev_b32 v{t0}, 2, v{t0}
    s_lshl_b32 s{sT}, s{S_J}, 2
    s_add_u32 s{sT}, s{sT}, s{sK}
    s_mul_i32 s{sPk}, s{sT}, {11*5120}
    s_add_u32 s{sPk}, s{sPk}, {hx(WS_PK)}
    s_mul_i32 s{sT}, s{sK}, 6144
    s_add_u32 s{sT}, s{sT}, {hx(WS_ACT+20*1024)}
    """)
    for i in range(4): st(f"s_add_u32 s{sAct[i]}, s{sAct[i]}, s{sT}")
    def kv(c):
        L = [(f"s_add_u32 m0, s{sKVb}, {slot(c)}\n s_nop 0\n" if i == 0 else "") + f"buffer_load_dwordx4 v{vz}, {s(sWS,4)}, s{sKVo} offen offset:{1024*i} sc1 lds" for i in range(3)]
        L[2] += f"\n s_add_u32 s{sKVo}, s{sKVo}, {KVS}\n s_cmp_eq_u32 s{sKVo}, {hx(WS_KV+16*KVS)}\n s_cselect_b32 s{sKVo}, {hx(WS_KV)}, s{sKVo}"
        return [(x, f"kv{c}") for x in L]
    fl = f"buffer_load_dword v{t1}, v{t0}, {s(sWS,4)}, s{sFl} offen sc1"
    b1 = cfg.get("b1", 21); b2 = cfg.get("b2", 24)
    assert b2 >= 22
    for b in range(30):
        if b == 6: st.w("ep"); st(f"v_add_u32 v{vE}, {hx(TAGC)}, v{vE}")
        if b == b2:
            st(f"{name}_kpoll:"); st.w("F")
            st(f"v_cmp_ne_u32 vcc, v{vE}, v{t1}\n s_cbranch_vccnz {name}_kretry\n {name}_kok:")
            stamp(a, 3)
        st.w(f"w{b}", f"x{b}")
        tb(b, 1); st("s_barrier"); tb(b, 0)
        if b in (0, 10, 20): stamp(a, {0: 1, 10: 2, 20: 6}[b])
        if b == b1: st(fl, "F")
        issue(b, nb)
        for c in range(3):
            if b == max(b2+c, [22, 24, 25][c]): st.run(kv(c))
    st.w("kv0")
    st("s_barrier"); stamp(a, 7)
    for i in range(3): st(f"ds_read_b128 {v(r.Q16[0]+4*i,4)}, v{aQx} offset:{1024*i}", "Q")
    pb = cfg.get("pb", 0)
    sc = attention(1, [[0]*4]*16, None, lambda c: [f"kv{c+1}"], lambda c: [(lambda st_, c=c: stamp(a, 8+c))], lambda c, i: pb if (c, i) == (0, 0) and pb else None)
    for c in range(13): sc.place(kv(c+3), c+1, 0.02, 0.15)
    WU = lambda ks, c: BIG+4*(5*ks+c)
    w0 = cfg.get("w0", gS); w1 = cfg.get("w1", 13); L = pkloads(BIG, 30, vA[0], sWS, sPk, "wu")
    assert w0 >= gS
    for w in range(w0, w1): sc.place(L[30*(w-w0)//(w1-w0):30*(w+1-w0)//(w1-w0)], w, 0.2, 0.9)
    act = [224, 12, 36, 60]
    def ald(i): return [(f"buffer_load_dwordx4 {v(act[i]+4*ks,4)}, v{vA[ks>>2]}, {s(sWS,4)}, s{sAct[i]} offen offset:{1024*(ks&3)} sc1", f"{name}_u{i}") for ks in range(6)]
    aP = [5, 6, 7, 8, 9]; aO = 10
    sc.place([f"""s_mul_i32 s{sT}, s{sK}, 6144
    v_add_u32 v{aO}, s{sT}, v{r.aK}
    s_mul_i32 s{sT}, s{sK}, 5120
    v_add_u32 v{aP[4]}, s{sT}, v{r.aK}"""] + [f"""s_xor_b32 s{sT}, s{sK}, {d}
    s_mul_i32 s{sT}, s{sT}, 15360
    s_add_u32 s{sT}, s{sT}, {PB0}
    v_add_u32 v{aP[d]}, s{sT}, v{vA[0]}""" for d in range(4)], 15, 0.3, 0.8)
    sc.place(ald(0), 16, cfg.get("u0", 50)/100, 0.95)
    sc.emit(st)
    for th in range(2):
        if th: st("s_nop 8")
        for i in range(3): st(f"ds_write_b128 v{aO}, {v(r.O[th]+4*i,4)} offset:{(3*th+i)*1024}", "po")
    st.run(ald(1))
    st.w("po")
    stamp(a, 24); st("s_barrier"); stamp(a, 25)
    st.run(ald(2) + ald(3))
    ac = [84, 224, 84, 224]; tc = 250; pr = [12, 36, 84]
    for i in range(4):
        chk_tile(st, f"{name}_u{i}", act[i], 24, tc, sCnt)
        stamp(a, 26+i)
        ex = {}
        if i > 0:
            for c in range(5): ex[c] = (f"ds_write_b128 v{aP[0]}, {v(ac[i-1]+4*c,4)} offset:{(i-1)*5120+c*1024}", "pw")
        if i == 3:
            ex[9] = [("@", "pw"), "s_barrier"]
            for c in range(5):
                for d in range(3): ex[10+3*c+d] = (f"ds_read_b128 {v(pr[d]+4*c,4)}, v{aP[d+1]} offset:{d*5120+c*1024}", f"pr{c}")
        for ks in range(6):
            for c in range(5):
                q = ac[i]+4*c
                st(f"{MF16} {v(q,4)}, {v(WU(ks,c),4)}, {v(act[i]+4*ks,4)}, {'0' if ks == 0 else v(q,4)}")
                if 5*ks+c in ex: st.run(ex[5*ks+c])
    for c in range(5):
        st.w(f"pr{c}"); q = ac[3]+4*c
        for h2 in (0, 2): st(f"v_pk_add_f32 {v(pr[0]+4*c+h2,2)}, {v(pr[0]+4*c+h2,2)}, {v(pr[1]+4*c+h2,2)}")
        for h2 in (0, 2): st(f"v_pk_add_f32 {v(pr[0]+4*c+h2,2)}, {v(pr[0]+4*c+h2,2)}, {v(pr[2]+4*c+h2,2)}")
        for h2 in (0, 2): st(f"v_pk_add_f32 {v(q+h2,2)}, {v(q+h2,2)}, {v(pr[0]+4*c+h2,2)}")
        st(f"ds_write_b128 v{aP[4]}, {v(q,4)} offset:{c*1024}")
    st("s_waitcnt lgkmcnt(0)")
    stamp(a, 30)
    st("s_barrier")
    if TS[0]: st(f"v_writelane_b32 v255, s{sCnt}, 5")
    wend(a, name)
    x = St(a)
    x(f"""{name}_kretry:
    s_cmp_eq_u32 s{sCnt}, 0
    s_cbranch_scc1 {name}_kok
    s_sub_u32 s{sCnt}, s{sCnt}, 1
    {fl}
    s_waitcnt vmcnt(0)
    s_branch {name}_kpoll""")
    for i in range(4):
        x(f"{name}_u{i}_retry:\n s_cmp_eq_u32 s{sCnt}, 0\n s_cbranch_scc1 {name}_u{i}_ok\n s_sub_u32 s{sCnt}, s{sCnt}, 1")
        for k_ in range(i, 4): x.run(ald(k_))
        x(f"s_branch {name}_u{i}_chk")
```

```python
import sys, os
sys.path.insert(0, os.path.dirname(__file__))
from common import *
NAME = "gated_mix__grouped_kv_mqa__mixer_gmlp__prompt"
def build(kernels):
    ref = open(f"cdna_kernels/{NAME}.s.ref").read().split("\n")
    head = [l for l in ref if l.startswith(";") and "@launch" not in l and "Override" not in l and "grid=ceil" not in l]
    out = head[:]
    for n, (a, nv, lds, blk) in kernels:
        out.append(f"; @launch {'kernel=' + n + ' ' if len(kernels) > 1 else ''}grid=(256,1,1) block=({blk},1,1) lds={lds}")
    out.append('.amdgcn_target "amdgcn-amd-amdhsa--gfx950"\n.text')
    bad = 0
    for n, (a, nv, lds, blk) in kernels:
        bad += lint([l for l in a.lines if TS[0] < 2 or "s_mem" not in l], n)
        out.append(a.text())
        print(f"{n}: {sum(1 for l in a.lines if l.startswith('    '))} instrs, {nv} vgprs, lds {lds}", file=sys.stderr)
    out.append('.section .rodata,"a"')
    for n, (a, nv, lds, blk) in kernels: out.append(descriptor(n, nv))
    if bad: print(f"LINT: {bad} problems", file=sys.stderr); sys.exit(1)
    return "\n".join(out)
if __name__ == "__main__":
    import importlib
    cfg = dict(x.split("=") for x in sys.argv[2:])
    cfg = {k: x if k[0] in "AB" else int(x) for k, x in cfg.items()}
    TS[0] = cfg.get('ts', 0); LA[0] = cfg.get('la', 1)
    if 'pad' in cfg: PAD[0] = (1 if cfg.get('kb', 1) else cfg.get('upto', 3)-1, cfg['pad']//10000, cfg['pad']//100 % 100, cfg['pad'] % 100)
    if cfg.get("kf", 1):
        from kf import kf
        if 'pad' in cfg: PAD[0] = (0,) + PAD[0][1:]
        txt = build([(NAME + "_kernel", kf(NAME + "_kernel", JB=cfg.get("jb2", 2), cfg=cfg))]); open(sys.argv[1], "w").write(txt); sys.exit(0)
    from k1 import k1
    ks = [("k1_kernel", k1("k1_kernel", JB=cfg.get("jb1", 2), NST=cfg.get("nst", 3), stagger=cfg.get("stag", 1)))]
    upto = cfg.get("upto", 3)
    if cfg.get("kb", 1):
        from kb import kb
        ks.append((NAME + "_kernel", kb(NAME + "_kernel", JB=cfg.get("jb2", 2), cfg=cfg)))
        upto = 0
    if upto >= 2:
        from k2 import k2
        ks.append(("k2_kernel", k2("k2_kernel", JB=cfg.get("jb2", 2), cfg=cfg)))
    if upto >= 3:
        from k3 import k3
        ks.append((NAME + "_kernel", k3(NAME + "_kernel", JB=cfg.get("jb3", 2), cfg=cfg)))
    open(sys.argv[1], "w").write(build(ks))
```

```python
from kfA1 import *
from kbA import slow_path
def waveA(E, st):
    a = E["a"]; name = E["name"]; cfg = E["cfg"]; S_ = E["S_"]; gS = E["gS"]; cR = E["cR"]; JB = E["JB"]
    sWS, sW, sT, sT2, sO, sN, sK, sTH, sHP, sE, sAct, sTag = [E[k] for k in "sWS sW sT sT2 sO sN sK sTH sHP sE sAct sTag".split()]
    sSP = S_(4); sBS = S_(4); sAr = S_(); sWb = [S_(), S_()]; sB = S_(); sWo = S_(); sZb = S_(); sZn = S_(); sZo = S_(); sFl = S_(); sCnt = S_(); sU = S_(); sOa = S_(); sOx = S_()
    sGm = S_(2); sF3 = S_(); sPk = S_(); sSc = S_(); C = lambda k, d: cfg.get(k, d)/10
    aW = [4, 5, 6, 7]; vl = 8; vo = [9, 10, 11, 252]; acc = BIG; W = [200, 204]; NZ = 11; Z = [208+4*z for z in range(NZ)]; t0, t1 = 253, 254
    T = 12; vE = 162; vu = 250
    if cfg.get("cpf", 1):
        st(f"""s_getpc_b64 {s(sE,2)}
        {name}_pc:
        s_bfe_u32 s{sT}, s2, 0x10003
        s_lshl_b32 s{sT}, s{sT}, 2
        s_add_u32 s{sT}, s{sT}, s{sK}
        s_lshl_b32 s{sT}, s{sT}, 13
        v_lshl_add_u32 v{T}, v0, 7, s{sT}
        v_min_u32 v{T}, {name}_exit-{name}_pc, v{T}
        global_load_dword v{vE+1}, v{T}, {s(sE,2)}""")
    st(f"v_lshlrev_b32 v{vSt}, 4, v0\n s_setprio {cfg.get('p1', 1)}")
    E["common"](st)
    kv_addr(st, T+4)
    st(f"v_mov_b32 v{T}, v{vSt}")
    st(f"""
    s_mul_i32 s{sAr}, s{sK}, {AA}
    s_lshl_b32 s{sT}, s{S_TG}, 1
    s_add_u32 s{sT}, s{sT}, s{sTH}
    s_lshl_b32 s{sT2}, s{sK}, 10
    s_lshl_b32 s{sWb[0]}, s{sT}, 17
    s_add_u32 s{sWb[0]}, s{sWb[0]}, s{sT2}
    s_xor_b32 s{sWb[1]}, s{sWb[0]}, 0x20000
    s_and_b32 s{sB}, s{S_TG}, 7
    s_lshl_b32 s{sB}, s{sB}, 7
    s_mov_b32 s{sZn}, s{sB}
    s_mul_i32 s{sU}, s{sT}, {88*1024}
    s_add_u32 s{sU}, s{sU}, {hx(WS_ACT)}
    s_lshl_b32 s{sT}, s{S_J}, 2
    s_add_u32 s{sT}, s{sT}, s{sK}
    s_mul_i32 s{sZb}, s{sT}, {8*12288}
    s_add_u32 s{sZb}, s{sZb}, {hx(WS_Z2N)}
    s_lshl_b32 s{sFl}, s{sT}, 7
    s_add_u32 s{sFl}, s{sFl}, {hx(WS_FLAG)}
    v_lshrrev_b32 v{T+4}, 3, v0
    v_lshlrev_b32 v{T+4}, 12, v{T+4}
    v_lshrrev_b32 v{T+5}, 4, v0
    v_and_b32 v{T+6}, 7, v0
    v_xor_b32 v{T+5}, v{T+5}, v{T+6}
    v_lshl_add_u32 v{vo[0]}, v{T+5}, 4, v{T+4}
    v_xor_b32 v{T+5}, 64, v{vo[0]}
    v_add_u32 v{vo[1]}, {32768-1024}, v{T+5}
    v_add_u32 v{vo[2]}, {2*(32768-1024)}, v{vo[0]}
    v_add_u32 v{vo[3]}, {3*(32768-1024)}, v{T+5}
    v_lshrrev_b32 v{T+4}, 5, v0
    v_bfe_u32 v{T+5}, v0, 1, 3
    v_xor_b32 v{T+5}, v{T+5}, v{T+4}
    v_lshlrev_b32 v{T+5}, 4, v{T+5}
    v_and_b32 v{T+6}, 31, v0
    v_lshl_add_u32 v{T+5}, v{T+6}, 7, v{T+5}
    v_lshlrev_b32 v{t0}, 2, v{T+6}
    s_lshl_b32 s{sT}, s{sHP}, 7
    v_xor_b32 v{vl}, s{sT}, v{T}
    s_mov_b32 s{sCnt}, 0x8000
    """)
    for i in range(4): st(f"v_xor_b32 v{aW[i]}, {hx(32*i)}, v{T+5}\n v_add_u32 v{aW[i]}, s{sAr}, v{aW[i]}")
    st(f"""
    s_lshr_b32 s{sT}, s{S_J}, 1
    s_mul_i32 s{sT}, s{sT}, 5120
    s_add_u32 s{sOa}, s{sU}, s{sT}
    s_and_b32 s{sT}, s{S_J}, 1
    s_lshl_b32 s{sT}, s{sT}, 1
    s_add_u32 s{sT}, s{sT}, s{sHP}
    s_lshl_b32 s{sT2}, s{sT}, 8
    s_add_u32 s{sOx}, s{sOa}, s{sT2}
    s_add_u32 s{sOx}, s{sOx}, 4096
    s_lshl_b32 s{sT}, s{sT}, 10
    s_add_u32 s{sOa}, s{sOa}, s{sT}
    s_mul_i32 s{sT}, s{S_J}, 3072
    s_add_u32 s{sU}, s{sU}, s{sT}
    s_lshl_b32 s{sT}, s{sHP}, 9
    s_add_u32 s{sU}, s{sU}, s{sT}
    s_add_u32 s{sU}, s{sU}, {20*1024}
    s_mul_i32 s{sT}, s{sK}, 5120
    s_add_u32 s{sT}, s{sT}, {hx(WS_ACT)}
    """)
    for i in range(4): st(f"s_add_u32 s{sAct[i]}, s{sAct[i]}, s{sT}")
    uaddr = lambda vu, tp: [f"""v_bfe_u32 v{tp}, v0, 4, 1
    v_mul_u32_u24 v{vu}, {44*1024}, v{tp}
    v_and_b32 v{tp}, 15, v0""", f"""v_cmp_gt_u32 vcc, 32, v0
    v_lshl_add_u32 v{vu}, v{tp}, 4, v{vu}
    v_lshrrev_b32 v{tp}, 5, v0
    v_cndmask_b32 v{vu+1}, -4.0, v{vu}, vcc
    v_lshl_add_u32 v{vu}, v{tp}, 8, v{vu}"""]
    h, e, cb, tok = T+1, T+2, T+3, T+4
    st(f"""
    v_lshrrev_b32 v{h}, 5, v0
    v_bfe_u32 v{e}, v0, 2, 2
    v_and_b32 v{tok}, 31, v0
    v_bfe_u32 v{cb}, v0, 4, 1
    v_and_b32 v{T+5}, 3, v0
    v_lshlrev_b32 v{T+5}, 3, v{T+5}
    v_lshl_add_u32 v{cb}, v{cb}, 5, v{T+5}
    v_lshl_add_u32 v{T+6}, v{h}, 3, v{e}
    s_mul_i32 s{sT}, s{sHP}, 96
    v_mul_u32_u24 v{aZ[0]}, 192, v{T+6}
    v_add3_u32 v{aZ[0]}, v{aZ[0]}, v{cb}, s{sT}
    v_mad_u32_u24 v{T+7}, v{T+6}, 40, v{T+5}
    v_add_u32 v{T+6}, v{T+6}, v{e}
    s_mul_i32 s{sT}, s{sHP}, 40
    v_mul_u32_u24 v{aQ[0]}, 160, v{T+6}
    v_add3_u32 v{aQ[0]}, v{aQ[0]}, v{cb}, s{sT}
    v_add_u32 v{aZ[1]}, 0x8000, v{aZ[0]}
    v_add_u32 v{aQ[1]}, 0x8000, v{aQ[0]}
    v_lshlrev_b32 v{aG}, 4, v{h}
    v_add_u32 v{aG}, {GATE}, v{aG}
    s_lshl_b32 s{sT}, s{sTH}, 12
    s_add_u32 s{sT}, s{sT}, {X0}
    s_sub_u32 s{sT}, s{sT}, s{sAr}
    s_mov_b32 s{sGm}, 0xff000000
    s_mov_b32 s{sGm+1}, 0xff000000
    v_mov_b64 {v(r.Q8,2)}, 0
    v_mov_b64 {v(r.Q8+2,2)}, 0
    """)
    for i in range(4): st(f"v_add_u32 v{aX[0][i]}, s{sT}, v{aW[i]}\n v_add_u32 v{aX[1][i]}, 0x10000, v{aX[0][i]}")
    st(f"""
    s_cmp_lt_u32 s{S_J}, 2
    s_cselect_b32 vcc_lo, 0xffff0000, 0
    s_mov_b32 vcc_hi, vcc_lo
    s_lshl_b32 s{sT}, s{sHP}, 5
    v_add_u32 v{T+7}, s{sT}, v{T+7}""")
    for i in range(8): st(f"""v_add_u32 v{T+8}, {768*(i&1)+3072*(i>>1)+64}, v{aZ[0]}
    v_add_u32 v{T+9}, {12288+160*(i&1)+640*(i>>1)}, v{T+7}
    v_cndmask_b32 v{aKV+i}, v{T+8}, v{T+9}, vcc""")
    st(f"""
    s_lshl_b32 s{sT}, s{sK}, 10
    s_add_u32 s{sT}, s{sT}, {LNS}
    v_lshl_add_u32 v{aLw}, v{tok}, 5, s{sT}
    v_lshl_add_u32 v{aLw}, v{h}, 3, v{aLw}
    s_lshl_b32 s{sT}, s{sK}, 12
    s_add_u32 s{sT}, s{sT}, {Z1P}
    v_add_u32 v{aPark}, s{sT}, v{vSt}
    s_mul_i32 s{sT}, s{sK}, 3072
    v_add_u32 v{aS}, s{sT}, v{vSt}
    v_add_u32 v{aTX}, {TX}, v{aS}
    v_add_u32 v{aS}, {QX}, v{aS}
    s_lshl_b32 s{sT}, s{S_TG}, 3
    s_add_u32 s{sT}, s{sT}, s{S_J}
    s_lshl_b32 s{sT}, s{sT}, 2
    s_add_u32 s{sT}, s{sT}, s{sK}
    s_lshl_b32 s{sT}, s{sT}, 2
    s_add_u32 s{sF3}, s{sT}, {hx(WS_FLAG+8192)}
    s_cmp_eq_u32 s{S_J}, 0
    s_cselect_b32 s{sSc}, {fl(QSCALE)}, 1.0
    s_waitcnt lgkmcnt(0)""")
    srd(a, sWS, P_WS, WS_END); srd(a, sSP, P_WSP, 2048*4096); srd(a, sBS, P_BSP, 4096)
    st(f"s_mov_b32 s{sT}, {hx(WS_EP)}\n buffer_load_dword v{vE}, off, {s(sWS,4)}, s{sT}\n s_barrier", "ep")
    stamp(a, 1)
    sc = Sched()
    for x in reads(0, sGm) + reads(1, sGm): sc.op(x)
    gemm(sc, 0, 120, sGm)
    sc.place([[("@", "ep"), f"v_readfirstlane_b32 s{sTag}, v{vE}"], f"s_add_u32 s{sTag}, s{sTag}, {hx(TAGC)}"], 8, 0.2, 0.8)
    if not cfg.get("tsb"): sc.place([lambda st_: stamp(a, 2)], 10, 0, 0); sc.place([lambda st_: stamp(a, 6)], 20, 0, 0)
    def kvx(st_):
        q = Z2+24
        a(f"s_cmp_ge_u32 s{S_J}, 2\n s_cbranch_scc1 {name}_nokv")
        for i in range(8): a(f"v_mul_f32 v{q+i}, s{sSc}, v{q+i}")
        for i in range(4): a(f"v_cvt_pk_bf16_f32 v{q+i}, v{q+2*i}, v{q+2*i+1}")
        a(f"ds_write_b64 v{aLw}, {v(q,2)}\n ds_write_b64 v{aLw}, {v(q+2,2)} offset:16\n {name}_nokv:")
    for b, q in ((10, Z2), (20, Z1)):
        hx_ = lambda n: [f"v_cvt_pk_bf16_f32 v{q+8*n+i}, v{q+8*n+2*i}, v{q+8*n+2*i+1}" for i in range(4)] + [(f"ds_write_b128 v{aTX}, {v(q+8*n,4)} offset:{1024*n}", "tx")]
        span(sc, hx_(0) + hx_(1), b+0.6, b+0.95, 0)
        span(sc, hx_(2) + ([kvx] if b == 10 else []), b+1.2, b+1.6, 0)
    sc.emit(st)
    st("s_nop 9")
    for ab in range(2):
        for i in range(4): st(f"v_cvt_pk_bf16_f32 v{r.Q16[ab]+i}, v{QA+16*ab+2*i}, v{QA+16*ab+2*i+1}")
        st(f"ds_write_b128 v{aS}, {v(r.Q16[ab],4)} offset:{1024*ab}", "qx")
    st("s_mov_b32 exec_hi, 0")
    for i in range(4): st(f"v_cvt_pk_bf16_f32 v{r.Q8+i}, v{QA+16*(i>>1)+8+2*(i&1)}, v{QA+16*(i>>1)+9+2*(i&1)}")
    st(f"s_mov_b32 exec_hi, -1\n ds_write_b128 v{aS}, {v(r.Q8,4)} offset:2048\n v_mul_f32 v{gl}, {fl(-LOG2E)}, v{QA+12}", "qx")
    st.w("qx"); st("s_barrier"); stamp(a, 7)
    def wsp(blk):
        L = []
        for b in range(8):
            x = ""
            if b & 3 == 0: x = f"s_add_u32 m0, s{sAr}, {(blk&1)*8192+b*1024}\n s_add_u32 s{sWo}, s{sWb[b>>2]}, s{sB}\n"
            x += f"buffer_load_dwordx4 v{vo[b&3]}, {s(sSP,4)}, s{sWo} offen offset:{(b&3)*1024} lds\n"
            if b == 7: x += f"s_add_u32 s{sB}, s{sB}, 128\n s_and_b32 s{sB}, s{sB}, 0x3ff"
            L.append((x, f"wsp{blk}"))
        return L
    def zld(f):
        ks, n = divmod(f, 3); x = ""
        if f % 12 == 0: x = f"s_mul_i32 s{sZo}, s{sZn}, 96\n s_add_u32 s{sZn}, s{sZn}, 128\n s_add_u32 s{sZo}, s{sZo}, s{sZb}\n s_and_b32 s{sZn}, s{sZn}, 0x3ff\n"
        elif n == 0: x = f"s_add_u32 s{sZo}, s{sZo}, 3072\n"
        return (x + f"buffer_load_dwordx4 {v(Z[f%NZ],4)}, v{vl}, {s(sWS,4)}, s{sZo} offen offset:{1024*n} sc1", f"z{f}")
    rW = lambda ks, th: [("@", f"wsp{ks>>2}"), (f"ds_read_b128 {v(W[th],4)}, v{aW[ks&3]} offset:{((ks>>2)&1)*8192+th*4096}", f"W{th}")]
    G = dict(m=0, q=[])
    DPG = cfg.get("dpg", 1)
    def gop():
        m = G["m"]; G["m"] += 1
        ks, th, n = m//6, (m % 6)//3, m % 3; f = 3*ks+n; ac = acc+48*th+16*n
        it = [("@", f"z{f}", f"W{th}"), f"{MF32} {v(ac,16)}, {v(Z[f%NZ],4)}, {v(W[th],4)}, {'0' if ks == 0 else v(ac,16)}"]
        if n == 2 and ks < 31: it += rW(ks+1, th)
        if th == 1 and f+NZ < 96: it.append(zld(f+NZ))
        if m % 24 == 21 and m//24 + 2 < 8: G["q"] = wsp(m//24 + 2)
        it += G["q"][:DPG]; G["q"] = G["q"][DPG:]
        if m == 191: it.append("; end of G")
        return it
    np_ = (cR-gS)*4
    dens = [[0]*4 for c in range(16)]
    for p in range(np_): dens[gS+p//4][p % 4] = 192*(p+1)//np_ - 192*p//np_
    pa = cfg.get("pa", 1)
    sc = attention(0, dens, gop, lambda c: ["rsw"], lambda c: [(lambda st_, c=c: stamp(a, 8+c))], lambda c, i: pa if (c, i) == (0, 0) and pa != cfg.get("p1", 1) else None)
    sc.place([f"v_exp_f32 v{gl}, v{gl}", f"v_add_f32 v{gl}, 1.0, v{gl}", f"v_rcp_f32 v{gl}, v{gl}", f"ds_write_b32 v{aPark}, v{gl} offset:3072"], 0, 0.02, 0.1)
    ff = C("ff", 310)
    span(sc, wsp(0) + wsp(1), ff, ff+C("fl", 6), 30)
    span(sc, uaddr(vu, tg_) + [f"v_mov_b64 {v(tg_,2)}, -1\n v_mov_b64 {v(tg_+2,2)}, -1", f"buffer_store_dwordx4 {v(tg_,4)}, v{vu}, {s(sWS,4)}, s{sOa} offen sc1",
         f"buffer_store_dwordx4 {v(tg_,4)}, v{vu}, {s(sWS,4)}, s{sOa} offen offset:512 sc1", f"buffer_store_dwordx4 {v(tg_,4)}, v{vu+1}, {s(sWS,4)}, s{sOx} offen sc1"], C("s0", 302), C("s1", 309), 30)
    fld = f"buffer_load_dword v{t1}, v{t0}, {s(sWS,4)}, s{sFl} offen sc1"
    def poll(st_):
        st_(f"{name}_poll:"); st_.w("F")
        st_(f"v_cmp_ne_u32 vcc, s{sTag}, v{t1}\n s_cbranch_vccnz {name}_pretry\n {name}_pok:")
        stamp(a, 3)
    sc.place([(fld, "F")], gS-1, cfg.get("f0", 20)/100, cfg.get("f0", 20)/100)
    sc.place([poll] + [zld(f) for f in range(NZ)], gS-1, cfg.get("f1", 60)/100, 1.0)
    sc.place([rW(0, 0), rW(0, 1)], gS, 0.1, 0.2)
    z1 = 208; og = 220; gt = 222; tp = 224; aR = [228, 229, 230, 231]; vu = 232; aF = 240; vt = 242
    quads = lambda d, n: [acc+48*(d & 1)+16*n+4*(d >> 1), acc+48*(d & 1)+16*n+4*(d >> 1)+8]
    wl = sc.win[cR]; e = max(i for i, o in enumerate(wl) if isinstance(o, list) and "; end of G" in o)
    it = [f"""v_lshlrev_b32 v{aF}, 4, v0
    v_add_u32 v{aR[0]}, s{sAr}, v{aF}
    s_lshl_b32 s{sT}, s{sK}, 12
    s_add_u32 s{sT}, s{sT}, {Z1P}
    v_add_u32 v{tp}, s{sT}, v{aF}"""]
    it += [(f"ds_read_b128 {v(z1+4*n,4)}, v{tp} offset:{1024*n}", "zp") for n in range(3)]
    it += [(f"""s_lshl_b32 s{sT}, s{S_TG}, 1
    s_add_u32 s{sT}, s{sT}, s{sTH}
    s_lshl_b32 s{sT2}, s{sT}, 6
    v_lshrrev_b32 v{vt}, 1, v{t0}
    ds_read_b32 v{gt}, v{tp} offset:3072
    buffer_load_ushort v{og+1}, v{vt}, {s(sBS,4)}, s{sT2} offen""", "zp")]
    for d in (2, 1, 3):
        for n in range(3):
            for e2, q in enumerate(quads(d, n)): it.append((f"ds_write_b128 v{aR[0]}, {v(q,4)} offset:{((d-1)*6+2*n+e2)*1024}", "rsw"))
        it.append(f"s_xor_b32 s{sT}, s{sK}, {d}\n s_mul_i32 s{sT}, s{sT}, {AA}\n v_add_u32 v{aR[d]}, s{sT}, v{aF}")
    sc.place(it, cR, (e+3)/len(wl), 0.9)
    it = []
    rd = lambda n: [(f"ds_read_b128 {v(q,4)}, v{aR[d]} offset:{((d-1)*6+2*n+e2)*1024}", f"rs{n}{e2}") for e2 in range(2) for d in (1, 2, 3) for q in [quads(d, n)[e2]]]
    it += rd(0)
    it += [[("@", "zp"), f"""v_sub_f32 v{og}, 1.0, v{gt}
    v_lshlrev_b32 v{og+1}, 16, v{og+1}
    v_mul_f32 v{og+1}, v{og}, v{og+1}"""]] + uaddr(vu, tp)
    for n in range(3):
        nr = rd(n+1) if n < 2 else []
        for e2 in range(2):
            for h2 in (0, 2):
                o_, p1, p2, p3 = [quads(d, n)[e2]+h2 for d in range(4)]; zi = z1+4*n+2*e2+h2//2
                it.append([("@", f"rs{n}{e2}"), f"""v_pk_add_f32 {v(o_,2)}, {v(o_,2)}, {v(p1,2)}
                v_pk_add_f32 {v(p2,2)}, {v(p2,2)}, {v(p3,2)}
                v_lshlrev_b32 v{tp}, 16, v{zi}
                v_pk_add_f32 {v(o_,2)}, {v(o_,2)}, {v(p2,2)}"""])
                it.append(f"""v_and_b32 v{tp+1}, 0xffff0000, v{zi}
                v_pk_fma_f32 {v(o_,2)}, {v(o_,2)}, {v(og,2)}, {v(og,2)} op_sel:[0,0,1] op_sel_hi:[1,0,1]
                v_pk_mul_f32 {v(o_,2)}, {v(o_,2)}, {v(tp,2)}
                v_cvt_pk_bf16_f32 v{zi}, v{o_}, v{o_+1}""")
                it += nr[:2]; nr = nr[2:]
        it.append((f"buffer_store_dwordx4 {v(z1+4*n,4)}, v{vu}, {s(sWS,4)}, s{sU} offen offset:{1024*n} sc1", "us"))
    it.append(lambda st_: stamp(a, 4))
    it.append(f"""s_lshl_b32 s{sT}, s{S_J}, 2
    s_add_u32 s{sT}, s{sT}, s{sK}
    s_mul_i32 s{sPk}, s{sT}, {11*5120}
    s_add_u32 s{sPk}, s{sPk}, {hx(WS_PK+6*5120)}
    s_or_b32 s{sT}, s2, s{sK}
    s_cmp_eq_u32 s{sT}, 0
    s_cselect_b32 s{sE}, 1, 0
    s_mov_b32 s{sE+1}, 0
    v_mov_b32 v{tp+1}, s{sTag}
    v_cndmask_b32 v{tp}, -4.0, v0, {s(sE,2)}
    s_mov_b32 s{sT}, {hx(WS_EP)}
    buffer_store_dword v{tp+1}, v{tp}, {s(sWS,4)}, s{sT} offen sc1""")
    wu = cfg.get("wu", 75)/100
    sc.place(it, cR+1, 0.0, wu)
    WO = lambda ks, c: BIG+4*(5*ks+c)
    f3 = cR+1+wu+C("f3", 5)
    span(sc, [[f"s_mov_b64 exec, 1", ("@", "us"), f"buffer_store_dword v{tp+1}, off, {s(sWS,4)}, s{sF3} sc1\n s_mov_b64 exec, -1", lambda st_: stamp(a, 30)]], f3, f3, 0)
    span(sc, pkloads(BIG, 25, aF, sWS, sPk, "wof"), cR+1+wu+0.02, min(cR+2.9, 16.6), 0)
    sc.emit(st)
    O = r.O; S = r.S; D = 208; t = 244; mx = 226; vA = [4, 5]; aP = [6, 7, 8, 9, 10]; vs = 11
    st(f"""s_mul_i32 s{sT}, s{sK}, 6144
    v_add_u32 v{t}, s{sT}, v{r.aK}
    s_mov_b32 s{sN}, 0""")
    stamp(a, 24); st("s_barrier"); stamp(a, 25)
    for th in range(2):
        for i in range(3): st(f"ds_read_b128 {v(S[th]+4*i,4)}, v{t} offset:{(3*th+i)*1024}", f"po{th}{i}")
    st(f"v_lshlrev_b32 v{vA[0]}, 4, v0\n v_add_u32 v{vA[1]}, 0x1000, v{vA[0]}")
    for i in (2, 0, 1):
        for th in range(2):
            st.w(f"po{th}{i}")
            for h2 in (0, 2): st(f"v_pk_add_f32 {v(O[th]+4*i+h2,2)}, {v(O[th]+4*i+h2,2)}, {v(S[th]+4*i+h2,2)}")
    st(f"{name}_fin:")
    for i in range(4): st(f"v_permlane32_swap_b32 v{O[0]+8+i}, v{O[1]+8+i}")
    L = O[1]+8
    st(f"""
    v_rcp_f32 v{t}, v{L}
    v_cmp_ngt_f32 vcc, 0x5f800000, v{L}
    s_mov_b32 s{sT}, 0x1f800000
    v_mul_f32 v{t}, v{t}, v{gt}
    v_cmp_nlt_f32 {s(sE,2)}, s{sT}, v{L}
    v_mov_b32 v{t+2}, v{t}
    v_mov_b32 v{t+4}, v{t}
    s_or_b64 {s(sE,2)}, {s(sE,2)}, vcc
    v_pk_mul_f32 {v(O[0]+8,2)}, {v(O[0]+8,2)}, {v(t,2)} op_sel_hi:[1,0]
    v_permlane32_swap_b32 v{t+2}, v{t+4}
    v_pk_mul_f32 {v(O[0]+10,2)}, {v(O[0]+10,2)}, {v(t,2)} op_sel_hi:[1,0]
    """)
    for th in range(2):
        for i in range(0, 8, 2): st(f"v_pk_mul_f32 {v(O[th]+i,2)}, {v(O[th]+i,2)}, {v(t+2+2*th,2)} op_sel_hi:[1,0]")
    st(f"v_pk_mul_f32 {v(t+6,2)}, {v(O[0]+8,2)}, 0 op_sel_hi:[1,0]")
    for k_, q in enumerate([O[0]+10] + [O[th]+i for th in range(2) for i in range(0, 8, 2)]):
        st(f"v_pk_fma_f32 {v(t+6,2)}, {v(q,2)}, 0, {v(t+6,2)} op_sel_hi:[1,0,1]")
        if k_ > 0: st(f"v_cvt_pk_bf16_f32 v{D+k_-1}, v{q}, v{q+1}")
    st(f"""
    v_cmp_u_f32 vcc, v{t+6}, v{t+7}
    v_cvt_pk_bf16_f32 v{D+8}, v{O[0]+8}, v{O[0]+9}
    v_cvt_pk_bf16_f32 v{D+9}, v{O[0]+10}, v{O[0]+11}
    s_or_b64 vcc, {s(sE,2)}, vcc
    s_cbranch_vccnz {name}_slow
    {name}_pub:
    buffer_store_dwordx4 {v(D,4)}, v{vu}, {s(sWS,4)}, s{sOa} offen sc1
    v_permlane32_swap_b32 v{D+8}, v{D+10}
    v_permlane32_swap_b32 v{D+9}, v{D+11}
    buffer_store_dwordx4 {v(D+4,4)}, v{vu}, {s(sWS,4)}, s{sOa} offen offset:512 sc1
    buffer_store_dwordx4 {v(D+8,4)}, v{vu+1}, {s(sWS,4)}, s{sOx} offen sc1
    """)
    stamp(a, 26)
    act = [12+20*i for i in range(4)]
    srd(a, sSP, P_OUT, 2048*1280)
    st(f"""
    v_add_u32 v{aP[0]}, s{sAr}, v{vA[0]}
    s_mul_i32 s{sT}, s{sK}, 5120
    s_add_u32 s{sT}, s{sT}, {KV0}
    v_add_u32 v{aP[4]}, s{sT}, v{vA[0]}
    v_and_b32 v{t}, 15, v0
    v_mul_u32_u24 v{vs}, 0x500, v{t}
    v_lshrrev_b32 v{t}, 4, v0
    v_lshl_add_u32 v{vs}, v{t}, 3, v{vs}
    v_mov_b32 v{aP[1]}, v{aR[1]}
    v_mov_b32 v{aP[2]}, v{aR[2]}
    v_mov_b32 v{aP[3]}, v{aR[3]}
    s_lshl_b32 s{sT}, s{S_TG}, 2
    s_add_u32 s{sT}, s{sT}, s{E["sOwn"]}
    s_mul_i32 s{sO}, s{sT}, {16*1280}
    s_mul_i32 s{sT2}, s{S_J}, 160
    s_add_u32 s{sO}, s{sO}, s{sT2}
    """)
    def ald(st_, i0):
        for i in range(i0, 4):
            for ks in range(5): st_(f"buffer_load_dwordx4 {v(act[i]+4*ks,4)}, v{vA[ks>>2]}, {s(sWS,4)}, s{sAct[i]} offen offset:{1024*(ks&3)} sc1", f"{name}_o{i}")
    st("s_waitcnt vmcnt(0)")
    ald(st, 0)
    ac2 = [208, 228]; tc = 250
    for i in range(4):
        chk_tile(st, f"{name}_o{i}", act[i], 20, tc, sCnt)
        stamp(a, 27 if i == 0 else 28) if i in (0, 3) else None
        if i == cfg.get("t2", 1): st("s_barrier")
        ex = {}
        if i > 0:
            for c in range(5): ex[c] = (f"ds_write_b128 v{aP[0]}, {v(ac2[(i-1)&1]+4*c,4)} offset:{(i-1)*5120+c*1024}", "pw")
        pr = act[:3] + [ac2[0]]
        if i == 3:
            ex[8] = [("@", "pw"), "s_barrier"]
            for c in range(5):
                for d in range(4): ex.setdefault(9+(4*c+d)*3//4, []).append((f"ds_read_b128 {v(pr[d]+4*c,4)}, v{aP[d+1]} offset:{(d*5120 if d < 3 else 0)+c*1024}", f"pr{c}"))
        for ks in range(5):
            for c in range(5):
                q = ac2[i & 1]+4*c
                st(f"{MF16} {v(q,4)}, {v(WO(ks,c),4)}, {v(act[i]+4*ks,4)}, {'0' if ks == 0 else v(q,4)}")
                if 5*ks+c in ex: st.run(ex[5*ks+c])
    for c in range(5):
        st.w(f"pr{c}"); q = ac2[1]+4*c
        for h2 in (0, 2):
            p = [x+4*c+h2 for x in pr]
            st(f"v_pk_add_f32 {v(p[0],2)}, {v(p[0],2)}, {v(p[1],2)}\n v_pk_add_f32 {v(p[2],2)}, {v(p[2],2)}, {v(p[3],2)}")
        for h2 in (0, 2): st(f"v_pk_add_f32 {v(pr[0]+4*c+h2,2)}, {v(pr[0]+4*c+h2,2)}, {v(pr[2]+4*c+h2,2)}")
        for h2 in (0, 2): st(f"v_pk_add_f32 {v(q+h2,2)}, {v(q+h2,2)}, {v(pr[0]+4*c+h2,2)}")
        st(f"""v_cvt_pk_bf16_f32 v{q}, v{q}, v{q+1}
        v_cvt_pk_bf16_f32 v{q+1}, v{q+2}, v{q+3}
        buffer_store_dwordx2 {v(q,2)}, v{vs}, {s(sSP,4)}, s{sO} offen offset:{32*c}""")
    if TS[0]: st(f"v_writelane_b32 v255, s{sCnt}, 5")
    wend(a, name)
    x = St(a)
    x(f"""{name}_pretry:
    s_cmp_eq_u32 s{sCnt}, 0
    s_cbranch_scc1 {name}_pok
    s_sub_u32 s{sCnt}, s{sCnt}, 1
    {fld}
    s_waitcnt vmcnt(0)
    s_branch {name}_poll""")
    for i in range(4):
        x(f"{name}_o{i}_retry:\n s_cmp_eq_u32 s{sCnt}, 0\n s_cbranch_scc1 {name}_o{i}_ok\n s_sub_u32 s{sCnt}, s{sCnt}, 1")
        ald(x, i); x(f"s_branch {name}_o{i}_chk")
    slow_path(a, name, sWS, sT, sN, [sWb[0], sWb[1], sB, sZb], mx, t)
```

```python
from asmlib import *
import math, struct
def f2u(x): return struct.unpack("<I", struct.pack("<f", x))[0]
def hx(x): return f"0x{x & 0xffffffff:x}"
def fl(x): return hx(f2u(x))
QF_HEAD = 2560
WS_QF  = 0
WS_KV  = WS_QF + 32*32*QF_HEAD
WS_Z2R = WS_KV + 16*12288
WS_Z1  = WS_Z2R + 256*12288
WS_ST  = WS_Z1 + 256*12288
WS_Z2N = WS_ST + 2048*64
WS_ACT = WS_Z2N + 8*128*3072
WS_GATE= WS_ACT + 128*44*1024
WS_FLAG= WS_GATE + 8192
WS_PK  = WS_FLAG + 65536
WS_ST2 = WS_PK + 32*11*5120
WS_F1  = WS_ST2 + 64*4096
WS_EP  = WS_F1 + 4096
WS_END = WS_EP + 4096
WS_TS = WS_END
WS_ALL = WS_TS + 3*256*8*256
LOG2E = 1.4426950408889634
QSCALE = LOG2E / math.sqrt(20.0)
GK1 = 2.0 * LOG2E * math.sqrt(2.0 / math.pi)
GK2 = GK1 * 0.044715
P_X,P_WQ,P_WK,P_WV,P_WO,P_BX,P_WIN,P_WSP,P_BSP,P_WOUT,P_GW,P_OUT,P_DBG,P_WS = range(4,32,2)
S_TG, S_J, S_W = 32, 33, 34
def header(a, name, JB):
    a(f"""
.globl {name}
.p2align 8
.type {name},@function
{name}:
    s_cmp_ge_u32 s2, 0x100
    s_cbranch_scc1 {name}_exit
""")
    stamp_init(a)
    a(f"""
    s_load_dwordx16 s[4:19], s[0:1], 0
    s_load_dwordx8 s[20:27], s[0:1], 64
    s_load_dwordx4 s[28:31], s[0:1], 96
    v_lshrrev_b32 v1, 6, v0
    v_and_b32 v0, 63, v0
    s_lshr_b32 s3, s2, 3
    v_readfirstlane_b32 s{S_W}, v1
    s_and_b32 s{S_J}, s3, {(1<<JB)-1}
    s_lshr_b32 s{S_TG}, s3, {JB}
""")
    if JB < 3:
        a(f"""
    s_and_b32 s3, s2, {(8>>JB)-1}
    s_lshl_b32 s3, s3, {JB}
    s_or_b32 s{S_J}, s{S_J}, s3
""")
    if JB > 0:
        a(f"""
    s_bfe_u32 s3, s2, {hx((JB<<16)|(3-JB))}
    s_lshl_b32 s3, s3, {5-JB}
    s_or_b32 s{S_TG}, s{S_TG}, s3
""")
def srd(a, d, p, nbytes):
    a(f"""
    s_mov_b32 s{d}, s{p}
    s_mov_b32 s{d+1}, s{p+1}
    s_mov_b32 s{d+2}, {hx(nbytes)}
    s_mov_b32 s{d+3}, 0x20000
""")
def footer(a, name, kern=0):
    a(f"{name}_end:")
    stamp_flush(a, kern)
    pad_wait(a, kern, name)
    a(f"{name}_exit:\n s_endpgm")
def wend(a, name):
    a(f"s_branch {name}_end" if TS[0] else "s_endpgm")
def descriptor(name, nv):
    nv = 256 if TS[0] else (nv + 7) // 8 * 8
    return f""".p2align 6
.amdhsa_kernel {name}
  .amdhsa_next_free_vgpr {nv}
  .amdhsa_next_free_sgpr 102
  .amdhsa_accum_offset {nv}
  .amdhsa_group_segment_fixed_size 0
  .amdhsa_kernarg_size 112
  .amdhsa_user_sgpr_count 2
  .amdhsa_user_sgpr_kernarg_segment_ptr 1
  .amdhsa_system_sgpr_workgroup_id_x 1
.end_amdhsa_kernel
"""
def gelu16(a, x, t0, sK, sum2=None, sq2=None):
    P = range(0, 16, 2)
    for i in P: a(f"v_pk_mul_f32 {v(t0+i,2)}, {v(x+i,2)}, {v(x+i,2)}")
    for i in P: a(f"v_pk_fma_f32 {v(t0+i,2)}, {v(t0+i,2)}, {s(sK,2)}, {v(sK_v(a),2)}")
    for i in P: a(f"v_pk_mul_f32 {v(t0+i,2)}, {v(t0+i,2)}, {v(x+i,2)}")
    for i in range(16): a(f"v_exp_f32 {v(t0+i)}, {v(t0+i)}")
    for i in P: a(f"v_pk_add_f32 {v(t0+i,2)}, {v(t0+i,2)}, 1.0 op_sel_hi:[1,0]")
    for i in range(16): a(f"v_rcp_f32 {v(t0+i)}, {v(t0+i)}")
    for i in P: a(f"v_pk_mul_f32 {v(x+i,2)}, {v(x+i,2)}, {v(t0+i,2)}")
    if sum2 is not None:
        for i in P:
            a(f"v_pk_add_f32 {v(sum2,2)}, {v(sum2,2)}, {v(x+i,2)}")
            a(f"v_pk_fma_f32 {v(sq2,2)}, {v(x+i,2)}, {v(x+i,2)}, {v(sq2,2)}")
def sK_v(a): return a.vK1

TS = [0]
LQ = []
LA = [1]
def lstamp(a, k, opt=0):
    if TS[0] != 3 or opt and not LA[0]: return
    if k is None:
        a("s_waitcnt lgkmcnt(0)")
        while LQ: p = LQ.pop(0); a(f"v_writelane_b32 v255, s{p[1]}, {p[0]}")
        return
    r_ = 96 if not LQ else 98 if len(LQ) == 1 else 100
    if len(LQ) == 3: p = LQ.pop(0); a(f"v_writelane_b32 v255, s{p[1]}, {p[0]}"); r_ = p[1]
    a(f"s_memtime s[{r_}:{r_+1}]"); LQ.append((k, r_))
def stamp(a, k):
    if not TS[0] or TS[0] == 3 or TS[0] == 2 and k not in (0, 31): return
    a(f"""s_waitcnt lgkmcnt(0)
    s_memrealtime s[96:97]
    s_memtime s[98:99]
    s_waitcnt lgkmcnt(0)
    v_writelane_b32 v255, s96, {k}
    v_writelane_b32 v255, s98, {32+k}""")
def stamp_m(a, sreg):
    if not TS[0]: return
    a(f"""s_waitcnt lgkmcnt(0)
    s_memrealtime s[96:97]
    s_memtime s[98:99]
    s_mov_b32 s95, m0
    s_mov_b32 m0, s{sreg}
    s_waitcnt lgkmcnt(0)
    v_writelane_b32 v255, s96, m0
    s_bitset1_b32 m0, 5
    v_writelane_b32 v255, s98, m0
    s_mov_b32 m0, s95""")
def stamp_init(a):
    if not TS[0]: return
    a("v_mov_b32 v255, 0")
    stamp(a, 0)
def stamp_flush(a, kern):
    if not TS[0]: return
    a("s_waitcnt vmcnt(0)")
    stamp(a, 31)
    a(f"""
    s_mov_b32 s88, s{P_WS}
    s_mov_b32 s89, s{P_WS+1}
    s_mov_b32 s90, {hx(WS_ALL)}
    s_mov_b32 s91, 0x20000
    s_lshl_b32 s92, s2, 3
    s_add_u32 s92, s92, s{S_W}
    s_lshl_b32 s92, s92, 8
    s_add_u32 s92, s92, {hx(WS_TS + kern*256*8*256)}
    v_mbcnt_lo_u32_b32 v2, -1, 0
    v_mbcnt_hi_u32_b32 v2, -1, v2
    v_lshlrev_b32 v2, 2, v2
    buffer_store_dword v255, v2, s[88:91], s92 offen
    """)
PAD = [None]
def pad_wait(a, kern, name):
    if not TS[0] or PAD[0] is None or PAD[0][0] != kern: return
    _, k, w, sl = PAD[0]
    a(f"""
    s_cmp_lg_u32 s2, 0
    s_cbranch_scc1 {name}_exit
    s_cmp_lg_u32 s{S_W}, {w}
    s_cbranch_scc1 {name}_exit
    s_waitcnt vmcnt(0)
    v_mov_b32 v2, 0
    s_mov_b32 s92, {hx(WS_TS + k*256*8*256 + w*256 + sl*4)}
    buffer_load_dword v3, v2, s[88:91], s92 offen sc1
    s_waitcnt vmcnt(0)
    v_readfirstlane_b32 s93, v3
    s_mov_b32 s94, 0x20000
    {name}_padl:
    s_memrealtime s[96:97]
    s_sub_u32 s94, s94, 1
    s_cbranch_scc1 {name}_exit
    s_waitcnt lgkmcnt(0)
    s_sub_u32 s96, s96, s93
    s_cmp_lt_u32 s96, 10000
    s_cbranch_scc1 {name}_padl
    """)
```

```python
from kb import *
X0 = KV0; XP = [3, 4, 0, 1, 2, 5, 6, 7, 8, 9]
xblk = lambda i: 8192*XP[i]
MISC = X0 + 81920; GATE = MISC; STX = MISC + 1280; LNS = MISC + 3328
QX = X0 + 5*8192; Z1P = QX + 12288; Z1W = 4096
TX = X0 - 12288; PKS = Z1P + 16384
POS = [14848*(q % 5) for q in range(10)]
FREE = [-1]*5 + [1, 2, 3, 4, 5]
TXF = 15
fr_ = [max(q+1 for q in range(10) if POS[q] < 12288*(i+1) and 12288*i < POS[q]+14848) for i in range(5)] + [TXF]
for q in range(10, 30):
    i_ = fr_.index(min(fr_)); POS.append(12288*i_); FREE.append(fr_[i_]); fr_[i_] = q+2
FL2, FL4, FL3, FL1 = [n << 17 for n in range(4)]
FL5 = FL1 + 0x8000
TAGC = 0x9E3779B9
def pkloads(reg, n, vA, sWS, sPk, tag):
    return [((f"s_add_u32 s{sPk}, s{sPk}, 0x1000\n" if i and i % 4 == 0 else "") +
             f"buffer_load_dwordx4 {v(reg+4*i,4)}, v{vA}, {s(sWS,4)}, s{sPk} offen offset:{1024*(i&3)} sc1", tag) for i in range(n)]
def kf(name, JB=2, cfg={}):
    a = Asm(); header(a, name, JB)
    S_ = Regs(36, 95)
    sWS = S_(4); sW = S_(4); sAct = [S_() for i in range(4)]; sT = S_(); sT2 = S_(); sO = S_(); sN = S_(); sK = S_(); sTH = S_(); sHP = S_(); sE = S_(2); sOwn = S_(); sTag = S_()
    gS = cfg.get("gs", 4); cR = cfg.get("cr", 13)
    st = St(a)
    st(f"""
    s_and_b32 s{sK}, s{S_W}, 3
    s_cmp_ge_u32 s{S_W}, 4
    s_cbranch_scc1 {name}_B
    """)
    if cfg.get("cpf", 1):
        st(f"""s_getpc_b64 {s(sE,2)}
        {name}_pc:
        s_bfe_u32 s{sT}, s2, 0x30003
        s_lshl_b32 s{sT}, s{sT}, 2
        s_add_u32 s{sT}, s{sT}, s{sK}
        s_lshl_b32 s{sT}, s{sT}, 11
        v_lshl_add_u32 v2, v0, 7, s{sT}
        v_min_u32 v2, {name}_exit-{name}_pc, v2
        s_mov_b64 exec, 0xffff
        global_load_dword v163, v2, {s(sE,2)}
        s_mov_b64 exec, -1""")
    if cfg.get("bf", 1): st(f"s_branch {name}_A")
    def common(st):
        st(f"s_and_b32 s{sTH}, s{S_W}, 1\n s_bfe_u32 s{sHP}, s{S_W}, 0x10001")
        st(f"s_xor_b32 s{sOwn}, s{sK}, s{S_J}\n s_and_b32 s{sOwn}, s{sOwn}, 3" if cfg.get("rot", 1) else f"s_mov_b32 s{sOwn}, s{sK}")
        for i in range(4):
            st(f"""s_xor_b32 s{sT}, s{sOwn}, {(i+1)&3}
            s_lshl_b32 s{sT2}, s{S_TG}, 2
            s_add_u32 s{sT}, s{sT}, s{sT2}
            s_mul_i32 s{sAct[i]}, s{sT}, {44*1024}""")
    nsC = S_.n
    from kfA import waveA
    from kfB import waveB
    env = dict(locals())
    for f in (waveA, waveB)[::-1 if cfg.get("bf", 1) else 1]:
        S_.n = nsC; f(env, st.fork())
    footer(a, name, 0)
    return a, 256, 163840, 512
if __name__ == "__main__": print(POS, FREE)
```

```python
from kfA1 import *
from kbA import slow_path
def waveA(E, st):
    a = E["a"]; name = E["name"]; cfg = E["cfg"]; S_ = E["S_"]; gS = E["gS"]; cR = E["cR"]; JB = E["JB"]
    sWS, sW, sT, sT2, sO, sN, sK, sTH, sHP, sE, sAct, sTag = [E[k] for k in "sWS sW sT sT2 sO sN sK sTH sHP sE sAct sTag".split()]
    sSP = S_(4); sBS = S_(4); sAr = S_(); sWb = [S_(), S_()]; sB = S_(); sWo = S_(); sZb = S_(); sZn = S_(); sZo = S_(); sFl = S_(); sCnt = S_(); sU = S_(); sOa = S_(); sOx = S_()
    sGm = S_(2); sF3 = S_(); sPk = S_(); sSc = S_(); C = lambda k, d: cfg.get(k, d)/10; FS = cfg.get('fs', 7)
    aW = [4, 5, 6, 7]; vl = 8; vo = [9, 10, 11, 252]; acc = BIG; W = [200, 204]; NZ = 11; Z = [208+4*z for z in range(NZ)]; t0, t1 = 253, 254
    T = 12; vE = 162; vu = 250
    st(f"{name}_A:")
    st(f"v_lshlrev_b32 v{vSt}, 4, v0\n s_setprio {cfg.get('p1', 1)}")
    E["common"](st)
    kv_addr(st, T+4)
    st(f"v_mov_b32 v{T}, v{vSt}")
    st(f"""
    s_mul_i32 s{sAr}, s{sK}, {AA}
    s_lshl_b32 s{sT}, s{S_TG}, 1
    s_add_u32 s{sT}, s{sT}, s{sTH}
    s_lshl_b32 s{sT2}, s{sK}, 10
    s_lshl_b32 s{sWb[0]}, s{sT}, 17
    s_add_u32 s{sWb[0]}, s{sWb[0]}, s{sT2}
    s_xor_b32 s{sWb[1]}, s{sWb[0]}, 0x20000
    s_mul_i32 s{sB}, s{S_J}, {cfg.get("wj", 2)}
    s_add_u32 s{sB}, s{sB}, s{S_TG}
    s_and_b32 s{sB}, s{sB}, 7
    s_lshl_b32 s{sB}, s{sB}, 7
    s_mov_b32 s{sZn}, s{sB}
    s_mul_i32 s{sU}, s{sT}, {88*1024}
    s_add_u32 s{sU}, s{sU}, {hx(WS_ACT)}
    s_lshl_b32 s{sT}, s{S_J}, 2
    s_add_u32 s{sT}, s{sT}, s{sK}
    s_mul_i32 s{sZb}, s{sT}, {8*12288}
    s_add_u32 s{sZb}, s{sZb}, {hx(WS_Z2N)}
    s_lshl_b32 s{sFl}, s{sT}, {FS+5}
    v_lshrrev_b32 v{T+4}, 3, v0
    v_lshlrev_b32 v{T+4}, 12, v{T+4}
    v_lshrrev_b32 v{T+5}, 4, v0
    v_and_b32 v{T+6}, 7, v0
    v_xor_b32 v{T+5}, v{T+5}, v{T+6}
    v_lshl_add_u32 v{vo[0]}, v{T+5}, 4, v{T+4}
    v_xor_b32 v{T+5}, 64, v{vo[0]}
    v_add_u32 v{vo[1]}, {32768-1024}, v{T+5}
    v_add_u32 v{vo[2]}, {2*(32768-1024)}, v{vo[0]}
    v_add_u32 v{vo[3]}, {3*(32768-1024)}, v{T+5}
    v_lshrrev_b32 v{T+4}, 5, v0
    v_bfe_u32 v{T+5}, v0, 1, 3
    v_xor_b32 v{T+5}, v{T+5}, v{T+4}
    v_lshlrev_b32 v{T+5}, 4, v{T+5}
    v_and_b32 v{T+6}, 31, v0
    v_lshl_add_u32 v{T+5}, v{T+6}, 7, v{T+5}
    v_lshlrev_b32 v{t0}, {FS}, v{T+6}
    s_lshl_b32 s{sT}, s{sHP}, 7
    v_xor_b32 v{vl}, s{sT}, v{T}
    s_mov_b32 s{sCnt}, 0x8000
    """)
    for i in range(4): st(f"v_xor_b32 v{aW[i]}, {hx(32*i)}, v{T+5}\n v_add_u32 v{aW[i]}, s{sAr}, v{aW[i]}")
    st(f"""
    s_lshr_b32 s{sT}, s{S_J}, 1
    s_mul_i32 s{sT}, s{sT}, 5120
    s_add_u32 s{sOa}, s{sU}, s{sT}
    s_and_b32 s{sT}, s{S_J}, 1
    s_lshl_b32 s{sT}, s{sT}, 1
    s_add_u32 s{sT}, s{sT}, s{sHP}
    s_lshl_b32 s{sT2}, s{sT}, 8
    s_add_u32 s{sOx}, s{sOa}, s{sT2}
    s_add_u32 s{sOx}, s{sOx}, 4096
    s_lshl_b32 s{sT}, s{sT}, 10
    s_add_u32 s{sOa}, s{sOa}, s{sT}
    s_mul_i32 s{sT}, s{S_J}, 3072
    s_add_u32 s{sU}, s{sU}, s{sT}
    s_lshl_b32 s{sT}, s{sHP}, 9
    s_add_u32 s{sU}, s{sU}, s{sT}
    s_add_u32 s{sU}, s{sU}, {20*1024}
    s_mul_i32 s{sT}, s{sK}, 5120
    s_add_u32 s{sT}, s{sT}, {hx(WS_ACT)}
    """)
    for i in range(4): st(f"s_add_u32 s{sAct[i]}, s{sAct[i]}, s{sT}")
    uaddr = lambda vu, tp: [f"""v_bfe_u32 v{tp}, v0, 4, 1
    v_mul_u32_u24 v{vu}, {44*1024}, v{tp}
    v_and_b32 v{tp}, 15, v0""", f"""v_cmp_gt_u32 vcc, 32, v0
    v_lshl_add_u32 v{vu}, v{tp}, 4, v{vu}
    v_lshrrev_b32 v{tp}, 5, v0
    v_cndmask_b32 v{vu+1}, -4.0, v{vu}, vcc
    v_lshl_add_u32 v{vu}, v{tp}, 8, v{vu}"""]
    h, e, cb, tok = T+1, T+2, T+3, T+4
    st(f"""
    v_lshrrev_b32 v{h}, 5, v0
    v_bfe_u32 v{e}, v0, 2, 2
    v_and_b32 v{tok}, 31, v0
    v_bfe_u32 v{cb}, v0, 4, 1
    v_and_b32 v{T+5}, 3, v0
    v_lshlrev_b32 v{T+5}, 3, v{T+5}
    v_lshl_add_u32 v{cb}, v{cb}, 5, v{T+5}
    v_lshl_add_u32 v{T+6}, v{h}, 3, v{e}
    s_mul_i32 s{sT}, s{sHP}, 96
    v_mul_u32_u24 v{aZ[0]}, 192, v{T+6}
    v_add3_u32 v{aZ[0]}, v{aZ[0]}, v{cb}, s{sT}
    v_mad_u32_u24 v{T+7}, v{T+6}, 40, v{T+5}
    v_add_u32 v{T+6}, v{T+6}, v{e}
    s_mul_i32 s{sT}, s{sHP}, 40
    v_mul_u32_u24 v{aQ}, 160, v{T+6}
    v_add3_u32 v{aQ}, v{aQ}, v{cb}, s{sT}
    v_add_u32 v{aZ[1]}, 0x8000, v{aZ[0]}
    v_lshlrev_b32 v{aG}, 4, v{h}
    v_add_u32 v{aG}, {GATE}, v{aG}
    s_lshl_b32 s{sT}, s{sTH}, 12
    s_add_u32 s{sT}, s{sT}, {X0}
    s_sub_u32 s{sT}, s{sT}, s{sAr}
    s_mov_b32 s{sGm}, 0x100000
    s_mov_b32 s{sGm+1}, 0x100000
    v_mov_b64 {v(r.Q8,2)}, 0
    v_mov_b64 {v(r.Q8+2,2)}, 0
    """)
    for i in range(4): st(f"v_add_u32 v{aX[0][i]}, s{sT}, v{aW[i]}\n v_add_u32 v{aX[1][i]}, 0x10000, v{aX[0][i]}")
    st(f"""
    s_cmp_lt_u32 s{S_J}, 2
    s_cselect_b32 vcc_lo, 0xffff0000, 0
    s_mov_b32 vcc_hi, vcc_lo
    s_lshl_b32 s{sT}, s{sHP}, 5
    v_add_u32 v{T+7}, s{sT}, v{T+7}""")
    for i in range(8): st(f"""v_add_u32 v{T+8}, {768*(i&1)+3072*(i>>1)+64}, v{aZ[0]}
    v_add_u32 v{T+9}, {12288+160*(i&1)+640*(i>>1)}, v{T+7}
    v_cndmask_b32 v{aKV+i}, v{T+8}, v{T+9}, vcc""")
    st(f"""
    s_lshl_b32 s{sT}, s{sK}, 10
    s_add_u32 s{sT}, s{sT}, {LNS}
    v_lshl_add_u32 v{aLw}, v{tok}, 5, s{sT}
    v_lshl_add_u32 v{aLw}, v{h}, 3, v{aLw}
    s_lshl_b32 s{sT}, s{sK}, 12
    s_add_u32 s{sT}, s{sT}, {Z1P}
    v_add_u32 v{aPark}, s{sT}, v{vSt}
    s_mul_i32 s{sT}, s{sK}, 3072
    v_add_u32 v{aS}, s{sT}, v{vSt}
    v_add_u32 v{aTX}, {TX}, v{aS}
    v_add_u32 v{aS}, {QX}, v{aS}
    s_lshl_b32 s{sT}, s{S_TG}, 3
    s_add_u32 s{sT}, s{sT}, s{S_J}
    s_lshl_b32 s{sT}, s{sT}, 2
    s_add_u32 s{sT}, s{sT}, s{sK}
    s_lshl_b32 s{sT}, s{sT}, {FS}
    s_add_u32 s{sF3}, s{sT}, {hx(FL3)}
    s_cmp_eq_u32 s{S_J}, 0
    s_cselect_b32 s{sSc}, {fl(QSCALE)}, 1.0
    s_waitcnt lgkmcnt(0)""")
    srd(a, sWS, P_WS, WS_END); srd(a, sSP, P_WSP, 2048*4096); srd(a, sBS, P_BSP, 4096)
    st(f"s_mov_b32 s{sT}, {hx(WS_EP)}\n buffer_load_dword v{vE}, off, {s(sWS,4)}, s{sT}\n s_barrier", "ep")
    stamp(a, 1); lstamp(a, 1)
    sc = Sched()
    for x in reads(0, sGm) + reads(1, sGm): sc.op(x)
    gemm(sc, sGm)
    sc.place(["s_mov_b32 vcc_lo, 0xcccc0000\n s_mov_b32 vcc_hi, 0xcccc0000"] + [f"""v_add_u32 v{T+8}, {768*(i&1)+16*(i>>1)+16}, v{aZ[0]}
    v_add_u32 v{T+9}, {3072+160*(i&1)+80*(i>>1)}, v{aQ}
    v_cndmask_b32 v{aM+i}, v{T+9}, v{T+8}, vcc
    v_add_u32 v{aM+4+i}, 0x8000, v{aM+i}""" for i in range(4)], 1, 0.1, 0.9)
    sc.place([[("@", "ep"), f"v_readfirstlane_b32 s{sTag}, v{vE}"], f"s_add_u32 s{sTag}, s{sTag}, {hx(TAGC)}"], 8, 0.2, 0.8)
    if not cfg.get("tsb"): sc.place([lambda st_: stamp(a, 2)], 10, 0, 0); sc.place([lambda st_: stamp(a, 6)], 20, 0, 0)
    q = Z2+24
    kvx = sum([[f"v_mul_f32 v{q+2*i}, s{sSc}, v{q+2*i}\n v_mul_f32 v{q+2*i+1}, s{sSc}, v{q+2*i+1}", f"v_cvt_pk_bf16_f32 v{q+i}, v{q+2*i}, v{q+2*i+1}"] +
               [(f"ds_write_b64 v{aLw}, {v(q+i-1,2)} offset:{8*i-8}", "tx")]*(i & 1) for i in range(4)], [])
    hx_ = lambda n: [f"v_cvt_pk_bf16_f32 v{Z2+8*n+i}, v{Z2+8*n+2*i}, v{Z2+8*n+2*i+1}" for i in range(4)] + [(f"ds_write_b128 v{aTX}, {v(Z2+8*n,4)} offset:{1024*n}", "tx")]
    span(sc, hx_(0) + kvx, 11.1, 11.8, 0)
    for n in (1, 2): span(sc, hx_(n), 11.15+n, 11.6+n, 0)
    sc.emit(st)
    st("s_nop 8")
    for ab in range(2):
        for i in range(4): st(f"v_cvt_pk_bf16_f32 v{r.Q16[ab]+i}, v{QA+16*ab+2*i}, v{QA+16*ab+2*i+1}")
        st(f"ds_write_b128 v{aS}, {v(r.Q16[ab],4)} offset:{1024*ab}", "qx")
    st("s_mov_b32 exec_hi, 0")
    for i in range(4): st(f"v_cvt_pk_bf16_f32 v{r.Q8+i}, v{QA+16*(i>>1)+8+2*(i&1)}, v{QA+16*(i>>1)+9+2*(i&1)}")
    st(f"s_mov_b32 exec_hi, -1\n ds_write_b128 v{aS}, {v(r.Q8,4)} offset:2048\n v_mul_f32 v{gl}, {fl(-LOG2E)}, v{QA+8}", "qx")
    ZR = [Z1+i for i in range(16)] + [QA+12+i for i in range(4)] + [QA+28+i for i in range(4)]; zp = 112; k1 = 186; ag = cfg.get("ag", 3)
    g1 = lambda g, pk: (gelu(ZR[8*g:8*g+8], Z2, k1, pk=pk) + [f"v_cvt_pk_bf16_f32 v{zp+4*g+i}, v{ZR[8*g+2*i]}, v{ZR[8*g+2*i+1]}" for i in range(4)] +
                        [f"ds_write_b128 v{aPark}, {v(zp+4*g,4)} offset:{1024*g}"])
    st(f"v_mov_b32 v{k1}, {fl(-GK1)}\n s_mov_b32 s{sGm}, {fl(-GK2)}\n s_mov_b32 s{sGm+1}, s{sGm}")
    for g in range(ag): st.run(g1(g, sGm))
    lstamp(a, 60); st.w("qx"); st("s_barrier"); stamp(a, 7); lstamp(a, 61); lstamp(a, None)
    def wsp(blk):
        L = []
        for b in range(8):
            x = ""
            if b & 3 == 0: x = f"s_add_u32 m0, s{sAr}, {(blk&1)*8192+b*1024}\n s_add_u32 s{sWo}, s{sWb[b>>2]}, s{sB}\n"
            x += f"buffer_load_dwordx4 v{vo[b&3]}, {s(sSP,4)}, s{sWo} offen offset:{(b&3)*1024} lds\n"
            if b == 7: x += f"s_add_u32 s{sB}, s{sB}, 128\n s_and_b32 s{sB}, s{sB}, 0x3ff"
            L.append((x, f"wsp{blk}"))
        return L
    def zld(f):
        ks, n = divmod(f, 3); x = ""
        if f % 12 == 0: x = f"s_mul_i32 s{sZo}, s{sZn}, 96\n s_add_u32 s{sZn}, s{sZn}, 128\n s_add_u32 s{sZo}, s{sZo}, s{sZb}\n s_and_b32 s{sZn}, s{sZn}, 0x3ff\n"
        elif n == 0: x = f"s_add_u32 s{sZo}, s{sZo}, 3072\n"
        return (x + f"buffer_load_dwordx4 {v(Z[f%NZ],4)}, v{vl}, {s(sWS,4)}, s{sZo} offen offset:{1024*n} sc1", f"z{f}")
    rW = lambda ks, th: [("@", f"wsp{ks>>2}"), (f"ds_read_b128 {v(W[th],4)}, v{aW[ks&3]} offset:{((ks>>2)&1)*8192+th*4096}", f"W{th}")]
    G = dict(m=0, q=[])
    DPG = cfg.get("dpg", 1)
    def gop():
        m = G["m"]; G["m"] += 1
        ks, th, n = m//6, (m % 6)//3, m % 3; f = 3*ks+n; ac = acc+48*th+16*n
        it = [("@", f"z{f}", f"W{th}"), f"{MF32} {v(ac,16)}, {v(Z[f%NZ],4)}, {v(W[th],4)}, {'0' if ks == 0 else v(ac,16)}"]
        if n == 2 and ks < 31: it += rW(ks+1, th)
        if th == 1 and f+NZ < 96: it.append(zld(f+NZ))
        if m % 24 == 21 and m//24 + 2 < 8: G["q"] = wsp(m//24 + 2)
        it += G["q"][:DPG]; G["q"] = G["q"][DPG:]
        if m == 191: it.append("; end of G")
        return it
    np_ = (cR-gS)*4
    dens = [[0]*4 for c in range(16)]
    for p in range(np_): dens[gS+p//4][p % 4] = 192*(p+1)//np_ - 192*p//np_
    pa = cfg.get("pa", 1)
    sc = attention(0, dens, gop, lambda c: ["rsw"], lambda c: [(lambda st_, c=c: stamp(a, 8+c))], lambda c, i: pa if (c, i) == (0, 0) and pa != cfg.get("p1", 1) else None)
    span(sc, sum([g1(g, 0) for g in range(ag, 3)], []), C("a0", 2), C("a1", 10*gS-1), 0)
    sc.place([f"v_mov_b32 v{gl-1}, v{gl}", f"s_nop 0\n v_permlane32_swap_b32 v{gl-1}, v{gl}", f"v_exp_f32 v{gl}, v{gl}", f"v_add_f32 v{gl}, 1.0, v{gl}", f"v_rcp_f32 v{gl}, v{gl}", f"ds_write_b32 v{aPark}, v{gl} offset:3072"], 0, 0.02, 0.1)
    ff = C("ff", 302)
    span(sc, wsp(0) + wsp(1), ff, ff+C("fl", 27), 30)
    span(sc, uaddr(vu, tg_) + [f"v_mov_b64 {v(tg_,2)}, -1\n v_mov_b64 {v(tg_+2,2)}, -1", f"buffer_store_dwordx4 {v(tg_,4)}, v{vu}, {s(sWS,4)}, s{sOa} offen sc1",
         f"buffer_store_dwordx4 {v(tg_,4)}, v{vu}, {s(sWS,4)}, s{sOa} offen offset:512 sc1", f"buffer_store_dwordx4 {v(tg_,4)}, v{vu+1}, {s(sWS,4)}, s{sOx} offen sc1"], C("s0", 302), C("s1", 309), 30)
    fld = f"buffer_load_dword v{t1}, v{t0}, {s(sWS,4)}, s{sFl} offen sc1"
    def poll(st_):
        st_(f"{name}_poll:"); st_.w("F")
        st_(f"v_cmp_ne_u32 vcc, s{sTag}, v{t1}\n s_cbranch_vccnz {name}_pretry\n {name}_pok:")
        stamp(a, 3)
    sc.place([(fld, "F")], gS-1, cfg.get("f0", 20)/100, cfg.get("f0", 20)/100)
    sc.place([poll] + [zld(f) for f in range(NZ)], gS-1, cfg.get("f1", 60)/100, 1.0)
    sc.place([rW(0, 0), rW(0, 1)], gS, 0.1, 0.2)
    z1 = 208; og = 220; gt = 222; tp = 224; aR = [228, 229, 230, 231]; vu = 232; aF = 240; vt = 242
    quads = lambda d, n: [acc+48*(d & 1)+16*n+4*(d >> 1), acc+48*(d & 1)+16*n+4*(d >> 1)+8]
    wl = sc.win[cR]; e = max(i for i, o in enumerate(wl) if isinstance(o, list) and "; end of G" in o)
    it = [f"""v_lshlrev_b32 v{aF}, 4, v0
    v_add_u32 v{aR[0]}, s{sAr}, v{aF}
    s_lshl_b32 s{sT}, s{sK}, 12
    s_add_u32 s{sT}, s{sT}, {Z1P}
    v_add_u32 v{tp}, s{sT}, v{aF}"""]
    it += [(f"ds_read_b128 {v(z1+4*n,4)}, v{tp} offset:{1024*n}", "zp") for n in range(3)]
    it += [(f"""s_lshl_b32 s{sT}, s{S_TG}, 1
    s_add_u32 s{sT}, s{sT}, s{sTH}
    s_lshl_b32 s{sT2}, s{sT}, 6
    v_lshrrev_b32 v{vt}, {FS-1}, v{t0}
    ds_read_b32 v{gt}, v{tp} offset:3072
    buffer_load_ushort v{og+1}, v{vt}, {s(sBS,4)}, s{sT2} offen""", "zp")]
    for d in (2, 1, 3):
        for n in range(3):
            for e2, q in enumerate(quads(d, n)): it.append((f"ds_write_b128 v{aR[0]}, {v(q,4)} offset:{((d-1)*6+2*n+e2)*1024}", "rsw"))
        it.append(f"s_xor_b32 s{sT}, s{sK}, {d}\n s_mul_i32 s{sT}, s{sT}, {AA}\n v_add_u32 v{aR[d]}, s{sT}, v{aF}")
    sc.place(it, cR, (e+3)/len(wl), 0.9)
    it = []
    rd = lambda n: [(f"ds_read_b128 {v(q,4)}, v{aR[d]} offset:{((d-1)*6+2*n+e2)*1024}", f"rs{n}{e2}") for e2 in range(2) for d in (1, 2, 3) for q in [quads(d, n)[e2]]]
    it += rd(0)
    it += [[("@", "zp"), f"""v_sub_f32 v{og}, 1.0, v{gt}
    v_lshlrev_b32 v{og+1}, 16, v{og+1}
    v_mul_f32 v{og+1}, v{og}, v{og+1}"""]] + uaddr(vu, tp)
    for n in range(3):
        nr = rd(n+1) if n < 2 else []
        for e2 in range(2):
            for h2 in (0, 2):
                o_, p1, p2, p3 = [quads(d, n)[e2]+h2 for d in range(4)]; zi = z1+4*n+2*e2+h2//2
                it.append([("@", f"rs{n}{e2}"), f"""v_pk_add_f32 {v(o_,2)}, {v(o_,2)}, {v(p1,2)}
                v_pk_add_f32 {v(p2,2)}, {v(p2,2)}, {v(p3,2)}
                v_lshlrev_b32 v{tp}, 16, v{zi}
                v_pk_add_f32 {v(o_,2)}, {v(o_,2)}, {v(p2,2)}"""])
                it.append(f"""v_and_b32 v{tp+1}, 0xffff0000, v{zi}
                v_pk_fma_f32 {v(o_,2)}, {v(o_,2)}, {v(og,2)}, {v(og,2)} op_sel:[0,0,1] op_sel_hi:[1,0,1]
                v_pk_mul_f32 {v(o_,2)}, {v(o_,2)}, {v(tp,2)}
                v_cvt_pk_bf16_f32 v{zi}, v{o_}, v{o_+1}""")
                it += nr[:2]; nr = nr[2:]
        it.append((f"buffer_store_dwordx4 {v(z1+4*n,4)}, v{vu}, {s(sWS,4)}, s{sU} offen offset:{1024*n} sc1", "us"))
    it.append(lambda st_: stamp(a, 4))
    it.append(f"""s_lshl_b32 s{sT}, s{S_J}, 2
    s_add_u32 s{sT}, s{sT}, s{sK}
    s_mul_i32 s{sPk}, s{sT}, {11*5120}
    s_add_u32 s{sPk}, s{sPk}, {hx(WS_PK+6*5120)}
    s_or_b32 s{sT}, s2, s{sK}
    s_cmp_eq_u32 s{sT}, 0
    s_cselect_b32 s{sE}, 1, 0
    s_mov_b32 s{sE+1}, 0
    v_mov_b32 v{tp+1}, s{sTag}
    v_cndmask_b32 v{tp}, -4.0, v0, {s(sE,2)}
    s_mov_b32 s{sT}, {hx(WS_EP)}
    buffer_store_dword v{tp+1}, v{tp}, {s(sWS,4)}, s{sT} offen sc1""")
    wu = cfg.get("wu", 75)/100
    sc.place(it, cR+1, 0.0, wu)
    WO = lambda ks, c: BIG+4*(5*ks+c)
    f3 = cR+1+wu+C("f3", 5)
    span(sc, [[f"s_mov_b64 exec, 1", ("@", "us"), f"buffer_store_dword v{tp+1}, off, {s(sWS,4)}, s{sF3} sc1\n s_mov_b64 exec, -1", lambda st_: stamp(a, 30)]], f3, f3, 0)
    span(sc, pkloads(BIG, 25, aF, sWS, sPk, "wof"), cR+1+wu+0.02, min(cR+2.9, 16.6), 0)
    sc.emit(st)
    O = r.O; S = r.S; D = 208; t = 244; mx = 226; vA = [4, 5]; aP = [6, 7, 8, 9, 10]; vs = 11
    st(f"""s_mul_i32 s{sT}, s{sK}, 6144
    v_add_u32 v{t}, s{sT}, v{r.aK}
    s_mov_b32 s{sN}, 0""")
    stamp(a, 24); st("s_barrier"); stamp(a, 25)
    for th in range(2):
        for i in range(3): st(f"ds_read_b128 {v(S[th]+4*i,4)}, v{t} offset:{(3*th+i)*1024}", f"po{th}{i}")
    st(f"v_lshlrev_b32 v{vA[0]}, 4, v0\n v_add_u32 v{vA[1]}, 0x1000, v{vA[0]}")
    for i in (2, 0, 1):
        for th in range(2):
            st.w(f"po{th}{i}")
            for h2 in (0, 2): st(f"v_pk_add_f32 {v(O[th]+4*i+h2,2)}, {v(O[th]+4*i+h2,2)}, {v(S[th]+4*i+h2,2)}")
    st(f"{name}_fin:")
    for i in range(4): st(f"v_permlane32_swap_b32 v{O[0]+8+i}, v{O[1]+8+i}")
    L = O[1]+8
    st(f"""
    v_rcp_f32 v{t}, v{L}
    v_cmp_ngt_f32 vcc, 0x5f800000, v{L}
    s_mov_b32 s{sT}, 0x1f800000
    v_mul_f32 v{t}, v{t}, v{gt}
    v_cmp_nlt_f32 {s(sE,2)}, s{sT}, v{L}
    v_mov_b32 v{t+2}, v{t}
    v_mov_b32 v{t+4}, v{t}
    s_or_b64 {s(sE,2)}, {s(sE,2)}, vcc
    v_pk_mul_f32 {v(O[0]+8,2)}, {v(O[0]+8,2)}, {v(t,2)} op_sel_hi:[1,0]
    v_permlane32_swap_b32 v{t+2}, v{t+4}
    v_pk_mul_f32 {v(O[0]+10,2)}, {v(O[0]+10,2)}, {v(t,2)} op_sel_hi:[1,0]
    """)
    for th in range(2):
        for i in range(0, 8, 2): st(f"v_pk_mul_f32 {v(O[th]+i,2)}, {v(O[th]+i,2)}, {v(t+2+2*th,2)} op_sel_hi:[1,0]")
    st(f"v_pk_mul_f32 {v(t+6,2)}, {v(O[0]+8,2)}, 0 op_sel_hi:[1,0]")
    for k_, q in enumerate([O[0]+10] + [O[th]+i for th in range(2) for i in range(0, 8, 2)]):
        st(f"v_pk_fma_f32 {v(t+6,2)}, {v(q,2)}, 0, {v(t+6,2)} op_sel_hi:[1,0,1]")
        if k_ > 0: st(f"v_cvt_pk_bf16_f32 v{D+k_-1}, v{q}, v{q+1}")
    st(f"""
    v_cmp_u_f32 vcc, v{t+6}, v{t+7}
    v_cvt_pk_bf16_f32 v{D+8}, v{O[0]+8}, v{O[0]+9}
    v_cvt_pk_bf16_f32 v{D+9}, v{O[0]+10}, v{O[0]+11}
    s_or_b64 vcc, {s(sE,2)}, vcc
    s_cbranch_vccnz {name}_slow
    {name}_pub:
    buffer_store_dwordx4 {v(D,4)}, v{vu}, {s(sWS,4)}, s{sOa} offen sc1
    v_permlane32_swap_b32 v{D+8}, v{D+10}
    v_permlane32_swap_b32 v{D+9}, v{D+11}
    buffer_store_dwordx4 {v(D+4,4)}, v{vu}, {s(sWS,4)}, s{sOa} offen offset:512 sc1
    buffer_store_dwordx4 {v(D+8,4)}, v{vu+1}, {s(sWS,4)}, s{sOx} offen sc1
    """)
    stamp(a, 26)
    act = [12+20*i for i in range(4)]
    srd(a, sSP, P_OUT, 2048*1280)
    st(f"""
    v_add_u32 v{aP[0]}, s{sAr}, v{vA[0]}
    s_mul_i32 s{sT}, s{sK}, 5120
    s_add_u32 s{sT}, s{sT}, {KV0}
    v_add_u32 v{aP[4]}, s{sT}, v{vA[0]}
    v_and_b32 v{t}, 15, v0
    v_mul_u32_u24 v{vs}, 0x500, v{t}
    v_lshrrev_b32 v{t}, 4, v0
    v_lshl_add_u32 v{vs}, v{t}, 3, v{vs}
    v_mov_b32 v{aP[1]}, v{aR[1]}
    v_mov_b32 v{aP[2]}, v{aR[2]}
    v_mov_b32 v{aP[3]}, v{aR[3]}
    s_lshl_b32 s{sT}, s{S_TG}, 2
    s_add_u32 s{sT}, s{sT}, s{E["sOwn"]}
    s_mul_i32 s{sO}, s{sT}, {16*1280}
    s_mul_i32 s{sT2}, s{S_J}, 160
    s_add_u32 s{sO}, s{sO}, s{sT2}
    """)
    def ald(st_, i0):
        for i in range(i0, 4):
            for ks in range(5): st_(f"buffer_load_dwordx4 {v(act[i]+4*ks,4)}, v{vA[ks>>2]}, {s(sWS,4)}, s{sAct[i]} offen offset:{1024*(ks&3)} sc1", f"{name}_o{i}")
    st("s_waitcnt vmcnt(0)")
    ald(st, 0)
    ac2 = [208, 228]; tc = 250
    for i in range(4):
        chk_tile(st, f"{name}_o{i}", act[i], 20, tc, sCnt)
        stamp(a, 27 if i == 0 else 28) if i in (0, 3) else None
        if i == cfg.get("t2", 1): st("s_barrier")
        ex = {}
        if i > 0:
            for c in range(5): ex[c] = (f"ds_write_b128 v{aP[0]}, {v(ac2[(i-1)&1]+4*c,4)} offset:{(i-1)*5120+c*1024}", "pw")
        pr = act[:3] + [ac2[0]]
        if i == 3:
            ex[8] = [("@", "pw"), "s_barrier"]
            for c in range(5):
                for d in range(4): ex.setdefault(9+(4*c+d)*3//4, []).append((f"ds_read_b128 {v(pr[d]+4*c,4)}, v{aP[d+1]} offset:{(d*5120 if d < 3 else 0)+c*1024}", f"pr{c}"))
        for ks in range(5):
            for c in range(5):
                q = ac2[i & 1]+4*c
                st(f"{MF16} {v(q,4)}, {v(WO(ks,c),4)}, {v(act[i]+4*ks,4)}, {'0' if ks == 0 else v(q,4)}")
                if 5*ks+c in ex: st.run(ex[5*ks+c])
    for c in range(5):
        st.w(f"pr{c}"); q = ac2[1]+4*c
        for h2 in (0, 2):
            p = [x+4*c+h2 for x in pr]
            st(f"v_pk_add_f32 {v(p[0],2)}, {v(p[0],2)}, {v(p[1],2)}\n v_pk_add_f32 {v(p[2],2)}, {v(p[2],2)}, {v(p[3],2)}")
        for h2 in (0, 2): st(f"v_pk_add_f32 {v(pr[0]+4*c+h2,2)}, {v(pr[0]+4*c+h2,2)}, {v(pr[2]+4*c+h2,2)}")
        for h2 in (0, 2): st(f"v_pk_add_f32 {v(q+h2,2)}, {v(q+h2,2)}, {v(pr[0]+4*c+h2,2)}")
        st(f"""v_cvt_pk_bf16_f32 v{q}, v{q}, v{q+1}
        v_cvt_pk_bf16_f32 v{q+1}, v{q+2}, v{q+3}
        buffer_store_dwordx2 {v(q,2)}, v{vs}, {s(sSP,4)}, s{sO} offen offset:{32*c}""")
    if TS[0] == 1: st(f"v_writelane_b32 v255, s{sCnt}, 5")
    wend(a, name)
    x = St(a)
    x(f"""{name}_pretry:
    s_cmp_eq_u32 s{sCnt}, 0
    s_cbranch_scc1 {name}_pok
    s_sub_u32 s{sCnt}, s{sCnt}, 1
    {fld}
    s_waitcnt vmcnt(0)
    s_branch {name}_poll""")
    for i in range(4):
        x(f"{name}_o{i}_retry:\n s_cmp_eq_u32 s{sCnt}, 0\n s_cbranch_scc1 {name}_o{i}_ok\n s_sub_u32 s{sCnt}, s{sCnt}, 1")
        ald(x, i); x(f"s_branch {name}_o{i}_chk")
    slow_path(a, name, sWS, sT, sN, [sWb[0], sWb[1], sB, sZb], mx, t)
```

```python
from kf import *
Z2 = BIG; Z1 = 136; QA = 152; tg_ = 168; gl = 190
aLw, aTX, vSt, vF, aPark = 192, 193, 195, 198, 197
FW = lambda t, n: 208 + 12*(t % 3) + 4*n
FX = lambda t: 60 + 4*(t % 3)
aX = [[88, 89, 90, 91], [72, 73, 74, 75]]; aZ = [92, 93]; aQ = 94; aKV = 44; aM = 52; aG = 98; aS = 99
stage = lambda t: divmod(t, 4) if t < 40 else (10 + (t-40)//2, t & 1)
def reads(t, sGm):
    q, i = stage(t); hi = int(POS[q] >= 32768); o = POS[q] - 32768*hi; xo = xblk(t % 40 // 4)
    L = [(f"ds_read_b128 {v(FX(t),4)}, v{aX[xo >> 16][t & 3]} offset:{xo & 0xffff}", f"f{t}_0")]
    for n in range(2 if t < 40 else 3):
        for p in range(2):
            ad = f"v{aZ[hi]} offset:{o+(3072 if t < 40 else 6144)*i+768*p}"
            if n: ad = f"v{aKV+2*i+p} offset:{POS[q]}" if t < 40 else f"v{aM+4*hi+2*n-2+p} offset:{o+6144*i}"
            L.append((f"ds_read_b64_tr_b16 {v(FW(t,n)+2*p,2)}, {ad}", f"f{t}_{n}"))
        if t >= 40 and n == 1:
            L.append((f"s_mov_b64 exec, {s(sGm,2)}\n ds_read_b128 {v(FW(t,1),4)}, v{aG} offset:{32*(t-40)}\n s_mov_b64 exec, -1", f"f{t}_1"))
    return L
def gemm(sc, sGm):
    for t in range(80):
        q, i = stage(t); ac = Z2 if t < 40 else Z1
        M = [[("@", f"f{t}_{n}"), f"{MF32} {v(ac+16*n,16)}, {v(FW(t,n),4)}, {v(FX(t),4)}, {'0' if t % 40 == 0 else v(ac+16*n,16)}"] for n in range(2 if t < 40 else 3)]
        R = reads(t+2, sGm) if t+2 < 80 else []
        bar = lambda *w: [lambda st_, q=q: lstamp(st_.a, 2*q+2, 1), ("@", "tx") + w, "s_barrier", lambda st_, q=q: lstamp(st_.a, 2*q+3)]
        nw = R and stage(t+2)[1] == 0
        if t == 79: M = M[1:] + M[:1]
        if nw and t < 40:
            for m in M: sc.op(m)
            sc.op(bar(f"f{t+1}_0", f"f{t+1}_1")); sc.next()
            for x in R: sc.op(x)
        else:
            k = (len(R) + len(M) - 1) // len(M)
            for m in M:
                sc.op(m)
                if nw: sc.op(bar()); sc.next(); nw = 0
                for x in R[:k]: sc.op(x)
                R = R[k:]
def gelu(X, T, k1, tail=(), pk=0, **kw):
    L = []
    for f in ("v_mul_f32 {t}, {x}, {x}", f"v_fmamk_f32 {{t}}, {{t}}, {fl(-GK2)}, v{k1}", "v_mul_f32 {t}, {t}, {x}", "v_exp_f32 {t}, {t}",
              "v_add_f32 {t}, 1.0, {t}", "v_rcp_f32 {t}, {t}", "v_mul_f32 {x}, {x}, {t}") + tail:
        n = 2 if pk and f[2:5] in ("mul", "fma", "add") else 1
        if n == 2: f = f"v_pk_fma_f32 {{t}}, {{t}}, {s(pk,2)}, {v(k1,2)} op_sel_hi:[1,1,0]" if "fma" in f else "v_pk_" + f[2:] + (" op_sel_hi:[0,1]" if "1.0" in f else "")
        L += [f.format(t=v(T+i, n), x=v(X[i], n), **{k: v(b+(i & 1)) for k, b in kw.items()}) for i in range(0, len(X), n)]
    return L
def span(sc, items, w0, w1, base):
    n = len(items)
    for i, it in enumerate(items):
        x = w0 + (w1-w0)*(i+0.5)/n - base
        sc.place([it], int(x), x % 1, x % 1)
```

```python
from kf import *
from kfA1 import span, gelu
Z2 = 104; Z1 = 136; ssr = [128, 132, 160, 164]; tg_ = 168; z1p = 176; sm = 188; vK1 = 192; raw = 196
aLw, aLr, vZn, aPark, aS, vSp, vF1, aTX, aPk = range(208, 217); vPk = [217, 218]; pkd = 224; kvd = 232; gr = 244
fl_ = fl
def waveB(E, st):
    a = E["a"]; name = E["name"]; cfg = E["cfg"]; S_ = E["S_"]; gS = E["gS"]; cR = E["cR"]
    sWS, sW, sT, sT2, sO, sN, sK, sTH, sHP, sE, sAct, sTag = [E[k] for k in "sWS sW sT sT2 sO sN sK sTH sHP sE sAct sTag".split()]
    sX = S_(4); sKW = S_(4); sKVo = S_(); sKVb = S_(); sCnt = S_(); sPk = S_(); sCw = S_(); sXo = S_(); sMx = S_(); sMz = S_(); sMq = S_(); sMk = S_(); sFl = S_()
    sMK = S_(2); sStr = S_(); sEx = S_(); sZs = S_(); sSt = S_(); sF2 = S_(); sF3 = S_(); sF4 = S_(); sPs = [S_(), S_()]; C = lambda k, d: cfg.get(k, d)/10; FS = cfg.get('fs', 7)
    TB = cfg.get("tsb", 0); stamp_ = globals()["stamp"]; stamp = (lambda a, k: None) if TB else stamp_
    def tb(b, odd):
        if TB and b != 4: a(f"s_bitcmp1_b32 s{sK}, 0\n s_cbranch_scc{1-odd} {name}_tb{b}_{odd}"); stamp_(a, b+1); a(f"{name}_tb{b}_{odd}:")
    vz = 4; vA = [11, 252]; t0, t1 = 253, 254
    vx = [12, 13]; vw = [14, 15, 16]; vq = [17, 18, 19]; vk = 20; vg = 21; aQx = 30; t = 22
    st(f"""{name}_B:
    s_setprio {cfg.get("p2", 0)}
    v_lshrrev_b32 v{t}, 3, v0
    s_lshl_b32 s{sT}, s{sK}, 4
    v_bfe_u32 v{t+1}, v0, 4, 2
    v_and_b32 v{t+2}, 7, v0
    s_lshl_b32 s{sT2}, s{S_TG}, 6
    v_xor_b32 v{t+1}, v{t+1}, v{t+2}
    s_add_u32 s{sT2}, s{sT2}, s{sT}
    v_add_u32 v{t}, s{sT2}, v{t}
    v_mul_u32_u24 v{t}, 0x500, v{t}
    v_lshl_add_u32 v{vx[0]}, v{t+1}, 4, v{t}
    s_mul_i32 s{sMz}, s{sK}, 3072
    v_xor_b32 v{vx[1]}, 64, v{vx[0]}
    s_lshl_b32 s{sT2}, s{sMz}, 4
    v_add_u32 v{vx[1]}, {8*1280-1024}, v{vx[1]}
    v_lshlrev_b32 v{vA[0]}, 4, v0
    """)
    for i in range(3):
        st(f"""v_add_u32 v{t}, {64*i}, v0
        v_mul_u32_u24 v{t}, 5462, v{t}
        v_lshrrev_b32 v{t}, 16, v{t}
        v_mul_u32_u24 v{t}, {3072-192}, v{t}
        v_add3_u32 v{vw[i]}, v{t}, v{vA[0]}, s{sT2}""")
    if cfg.get("stag", 1): st(f"""
    s_and_b32 s{sT}, s{S_J}, 3
    s_mul_i32 s{sT}, s{sT}, {cfg.get("sj", 3)}
    s_add_u32 s{sCw}, s{sT}, s{S_TG}
    s_mul_i32 s{sT}, s{sCw}, 26
    s_lshr_b32 s{sT}, s{sT}, 8
    s_mul_i32 s{sT}, s{sT}, 10
    s_sub_u32 s{sCw}, s{sCw}, s{sT}""")
    else: st(f"s_mov_b32 s{sCw}, 0")
    st(f"""
    s_lshl_b32 s{sXo}, s{sCw}, 7
    s_lshl_b32 s{sMx}, s{sK}, 11
    s_add_u32 s{sMx}, s{sMx}, {X0}
    s_mul_i32 s{sMk}, s{sK}, 640
    v_add_u32 v{vk}, s{sMk}, v{vA[0]}
    s_mul_i32 s{sT}, s{S_J}, 192
    s_add_u32 s{sT}, s{sT}, 1536
    s_sub_u32 s{sW+2}, {640*3072}, s{sT}
    s_mov_b32 s{sW+3}, 0x20000
    s_mov_b32 s{sX+2}, {2048*1280}
    s_mov_b32 s{sX+3}, 0x20000
    s_cmp_lt_u32 s{S_J}, 2
    s_cselect_b32 s{sMK}, -1, 0
    s_cselect_b32 s{sMK+1}, 0xff, 0
    s_mov_b32 s{sKW+2}, 25600
    s_mov_b32 s{sKW+3}, 0x20000
    s_waitcnt lgkmcnt(0)
    s_mov_b32 s{sX}, s{P_X}
    s_mov_b32 s{sX+1}, s{P_X+1}
    s_add_u32 s{sW}, s{P_WIN}, s{sT}
    s_addc_u32 s{sW+1}, s{P_WIN+1}, 0
    s_bitcmp1_b32 s{S_J}, 0
    s_cselect_b32 s{sKW}, s{P_WV}, s{P_WK}
    s_cselect_b32 s{sKW+1}, s{P_WV+1}, s{P_WK+1}
    """)
    def dX(i):
        return [(f"""s_add_u32 m0, s{sMx}, {xblk(i)}
        s_add_u32 s{sT}, s{sXo}, 128
        buffer_load_dwordx4 v{vx[0]}, {s(sX,4)}, s{sXo} offen lds
        buffer_load_dwordx4 v{vx[1]}, {s(sX,4)}, s{sXo} offen offset:1024 lds
        s_cmp_eq_u32 s{sT}, 1280
        s_cselect_b32 s{sXo}, 0, s{sT}""", f"x{i}")]
    def dW(q):
        L = []; Q = q >= 10; x = ""
        if q < 10: L.append((f"""s_add_u32 m0, s{sMk}, {POS[q]+12288}
            s_mul_i32 s{sO}, s{sCw}, 2560
            s_mov_b64 exec, {s(sMK,2)}
            buffer_load_dwordx4 v{vk}, {s(sKW,4)}, s{sO} offen lds
            s_mov_b64 exec, -1""", f"w{q}"))
        if q == 10: x = f"""s_mul_i32 s{sT}, s{S_J}, 160
            s_add_u32 s{sE}, s{P_WQ}, s{sT}
            s_addc_u32 s{sE+1}, s{P_WQ+1}, 0
            s_sub_u32 s{sT}, {640*1280}, s{sT}
            s_sub_u32 s{sW}, s{sW}, 1536
            s_subb_u32 s{sW+1}, s{sW+1}, 0
            s_mul_i32 s{sCw}, s{sCw}, s{sStr}
            s_lshl_b32 s{sCw}, s{sCw}, 1
            s_cmp_lt_u32 s{sK}, 2
            s_cselect_b64 {s(sW,2)}, {s(sW,2)}, {s(sE,2)}
            s_cselect_b32 s{sW+2}, s{sW+2}, s{sT}\n"""
        x += f"s_add_u32 m0, s{sMq}, {POS[q]}\n s_add_u32 s{sO}, s{sCw}, s{sStr}\n" if Q else f"s_add_u32 m0, s{sMz}, {POS[q]}\n s_mul_i32 s{sO}, s{sCw}, {64*3072}\n"
        for i in range(3):
            x += f"buffer_load_dwordx4 v{(vq if Q else vw)[i]}, {s(sW,4)}, s{sCw if Q else sO} offen offset:{1024*i} lds\n"
            if i == 0 and not Q: x += f"s_add_u32 s{sCw}, s{sCw}, 1\n s_cmp_eq_u32 s{sCw}, 10\n s_cselect_b32 s{sCw}, 0, s{sCw}"
            if i == 2 and Q: x += f"s_cmp_eq_u32 s{sO}, s{sEx}\n s_cselect_b32 s{sCw}, 0, s{sO}"
            L.append((x, f"w{q}")); x = ""
        return L
    st(f"s_mov_b32 s{sN}, s{sXo}")
    n0 = cfg.get("n0", 3); nb = cfg.get("nb", 2); xq = list(range(10)); wq = list(range(30))
    def issue(b, n):
        L = []
        for i in range(n):
            if xq: L += dX(xq.pop(0))
            if wq and FREE[wq[0]] <= b: L += dW(wq.pop(0))
        return L
    st.run(issue(-1, n0))
    srd(a, sWS, P_WS, WS_END)
    st(f"s_mov_b32 s{sT}, {hx(WS_EP)}\n s_load_dword s{sTag}, {s(P_WS,2)}, s{sT}")
    st(f"""
    s_mul_i32 s{sT}, s{sK}, 320
    s_add_u32 s{sT}, s{sT}, s{sN}
    v_add_u32 v{vg}, s{sT}, v{vA[0]}
    v_subrev_u32 v{t}, 1280, v{vg}
    v_min_u32 v{vg}, v{vg}, v{t}
    s_and_b32 s{sT}, s{sK}, 1
    s_mul_i32 s{sMq}, s{sT}, 6144
    s_mul_i32 s{sT2}, s{sT}, {16*1280}
    s_cmp_lt_u32 s{sK}, 2
    s_cselect_b32 s{sStr}, {32*3072}, {0}
    s_cselect_b64 vcc, -1, 0
    s_cselect_b32 s{sT}, 0, 3072
    s_add_u32 s{sMq}, s{sMq}, s{sT}
    s_max_u32 s{sStr}, s{sStr}, {32*1280}
    s_mul_i32 s{sEx}, s{sStr}, 20
    """)
    for i in range(3):
        st(f"""v_add_u32 v{t}, {64*i}, v0
        v_mul_u32_u24 v{t}, 6554, v{t}
        v_lshrrev_b32 v{t}, 16, v{t}
        v_mul_u32_u24 v{t+1}, 160, v{t}
        v_sub_u32 v{t+1}, v{vA[0]}, v{t+1}
        v_and_b32 v{t+2}, 8, v{t}
        v_bfe_u32 v{t+3}, v{t}, 1, 2
        v_and_b32 v{t}, 1, v{t}
        v_lshl_add_u32 v{t}, v{t}, 2, v{t+3}
        v_add_u32 v{t}, v{t}, v{t+2}
        v_mul_u32_u24 v{t}, 0x500, v{t}
        v_add3_u32 v{vq[i]}, v{t}, v{t+1}, s{sT2}
        {f"s_mov_b32 exec_lo, 0{chr(10)} v_mov_b32 v{vq[i]}, -4.0{chr(10)} s_mov_b32 exec_lo, -1" if i == 2 else ""}
        v_cndmask_b32 v{vq[i]}, v{vq[i]}, v{vw[i]}, vcc""")
    E["common"](st)
    kv_addr(st, t)
    st(f"""
    s_add_u32 s{sKVb}, s{sMz}, {KV0}
    v_add_u32 v{vz}, s{sMz}, v{vA[0]}
    v_add_u32 v{aQx}, {QX}, v{vz}
    s_lshr_b32 s{sKVo}, s{S_TG}, 1
    s_mul_i32 s{sKVo}, s{sKVo}, {KVS}
    s_add_u32 s{sKVo}, s{sKVo}, {hx(WS_KV)}
    v_add_u32 v{vA[1]}, 0x1000, v{vA[0]}
    s_mov_b32 s{sCnt}, 0x8000
    s_mov_b32 s{sFl}, {hx(FL1)}
    s_and_b32 s{sT}, s{S_TG}, 30
    v_min_u32 v{t0}, {cfg.get("nf", 12)-1}, v0
    v_lshl_add_u32 v{t0}, s{sT}, 1, v{t0}
    v_and_b32 v{t0}, 63, v{t0}
    v_lshlrev_b32 v{t0}, {FS}, v{t0}
    s_lshl_b32 s{sT}, s{S_J}, 2
    s_add_u32 s{sT}, s{sT}, s{sK}
    s_lshl_b32 s{sF4}, s{sT}, {FS+5}
    s_add_u32 s{sF4}, s{sF4}, {hx(FL4)}
    s_mul_i32 s{sPk}, s{sT}, {11*5120}
    s_add_u32 s{sPk}, s{sPk}, {hx(WS_PK)}
    s_mul_i32 s{sT}, s{sK}, 6144
    s_add_u32 s{sT}, s{sT}, {hx(WS_ACT+20*1024)}
    """)
    for i in range(4): st(f"s_add_u32 s{sAct[i]}, s{sAct[i]}, s{sT}")
    def kv(c):
        L = [(f"s_add_u32 m0, s{sKVb}, {slot(c)}\n s_nop 0\n" if i == 0 else "") + f"buffer_load_dwordx4 v{vz}, {s(sWS,4)}, s{sKVo} offen offset:{1024*i} sc1 lds" for i in range(3)]
        L[2] += f"\n s_add_u32 s{sKVo}, s{sKVo}, {KVS}\n s_cmp_eq_u32 s{sKVo}, {hx(WS_KV+16*KVS)}\n s_cselect_b32 s{sKVo}, {hx(WS_KV)}, s{sKVo}"
        return [(x, f"kv{c}") for x in L]
    fl = lambda sF: f"buffer_load_dword v{t1}, v{t0}, {s(sWS,4)}, s{sF} offen sc1"
    polls = []
    def poll(nm, sF, k):
        def f(st_):
            st_(f"{name}_{nm}poll:"); st_.w("F")
            st_(f"v_cmp_ne_u32 vcc, s{sTag}, v{t1}\n s_cbranch_vccnz {name}_{nm}retry\n {name}_{nm}ok:"); polls.append((nm, sF))
            if k: stamp(a, k)
        return f
    flag = lambda tag, sF, o=0: ["s_mov_b64 exec, 1", ("@", tag), f"buffer_store_dword v{gr+1}, off, {s(sWS,4)}, s{sF} sc1\n s_mov_b64 exec, -1"]
    ex = [[] for b in range(47)]
    def put(items, w0, w1):
        for i, it in enumerate(items): x = w0 + (w1-w0)*(i+0.5)/len(items); ex[int(x)].append((x, it))
    h, e, tok = t+1, t+2, t+3; T = kvd+4
    put([f"""
    v_lshrrev_b32 v{h}, 5, v0
    v_bfe_u32 v{e}, v0, 2, 2
    v_and_b32 v{tok}, 31, v0
    v_and_b32 v{t+5}, 3, v0
    s_lshl_b32 s{sT}, s{sTH}, 1
    s_add_u32 s{sT}, s{sT}, s{sHP}
    s_lshl_b32 s{sT}, s{sT}, 9
    s_add_u32 s{sT}, s{sT}, {STX}
    v_lshl_add_u32 v{aS}, v0, 3, s{sT}""", f"""
    s_lshl_b32 s{sT}, s{sK}, 10
    s_add_u32 s{sT}, s{sT}, {LNS}
    v_lshl_add_u32 v{aLw}, v{tok}, 5, s{sT}
    v_lshl_add_u32 v{aLw}, v{h}, 3, v{aLw}
    v_lshrrev_b32 v{t+6}, 4, v0
    v_lshl_add_u32 v{aLr}, v{t+6}, 3, v{e}
    v_lshl_add_u32 v{aLr}, v{aLr}, 5, s{sT}
    v_lshl_add_u32 v{aLr}, v{t+5}, 3, v{aLr}""", f"""
    v_mul_u32_u24 v{vZn}, 3072, v{h}
    v_and_b32 v{t+6}, 1, v{t+6}
    v_lshl_add_u32 v{vZn}, v{t+6}, 9, v{vZn}
    v_and_b32 v{t+6}, 7, v0
    v_lshl_add_u32 v{vZn}, v{t+6}, 4, v{vZn}
    v_bfe_u32 v{t+6}, v0, 3, 1
    v_lshl_add_u32 v{vZn}, v{t+6}, 8, v{vZn}
    v_add_u32 v{aTX}, {TX}, v{vz}""", f"""
    s_lshl_b32 s{sT}, s{S_TG}, 1
    s_add_u32 s{sT}, s{sT}, s{sTH}
    s_lshl_b32 s{sSt}, s{sT}, 12
    s_add_u32 s{sSt}, s{sSt}, {hx(WS_ST2)}
    s_mul_i32 s{sZs}, s{sT}, 6144
    s_mul_i32 s{sT}, s{S_J}, {128*3072}
    s_add_u32 s{sZs}, s{sZs}, s{sT}
    s_lshl_b32 s{sT}, s{sHP}, 7
    s_add_u32 s{sZs}, s{sZs}, s{sT}
    s_add_u32 s{sZs}, s{sZs}, {hx(WS_Z2N)}""", f"""
    s_lshl_b32 s{sT}, s{S_J}, 5
    s_add_u32 s{sT}, s{sT}, s{S_TG}
    s_lshl_b32 s{sT}, s{sT}, 2
    s_add_u32 s{sT}, s{sT}, s{sK}
    s_lshl_b32 s{sF2}, s{sT}, {FS}
    s_lshl_b32 s{sT}, s{S_TG}, 2
    s_add_u32 s{sT}, s{sT}, s{sK}
    s_lshl_b32 s{sT}, s{sT}, {FS+3}
    s_add_u32 s{sF3}, s{sT}, {hx(FL3)}""", f"""
    s_lshl_b32 s{sT2}, s{sHP}, 5
    s_sub_u32 s{sT2}, 32, s{sT2}
    v_cmp_gt_u32 vcc, s{sT2}, v0
    s_lshl_b32 s{sT}, s{S_J}, 9
    v_add_u32 v{t+6}, s{sT}, v{vA[0]}
    v_cndmask_b32 v{vSp}, -4.0, v{t+6}, vcc
    v_mov_b32 v{vK1}, {fl_(-GK1)}
    v_mov_b64 {v(sm,2)}, 0
    v_mov_b64 {v(sm+2,2)}, 0""",
    f"""s_lshr_b32 s{sT}, s{S_TG}, 1
    s_mul_i32 s{sN}, s{sT}, {KVS}
    s_and_b32 s{sT}, s{S_TG}, 1
    s_lshl_b32 s{sT2}, s{sT}, 1
    s_add_u32 s{sT2}, s{sT2}, s{sTH}
    s_mul_i32 s{sKW+2}, s{sT2}, 1536
    s_add_u32 s{sKW+2}, s{sKW+2}, 5120
    s_lshl_b32 s{sT2}, s{sT2}, 10
    s_lshl_b32 s{sT}, s{sT}, 9
    s_add_u32 s{sT}, s{sT}, 0x1000
    s_cmp_eq_u32 s{sHP}, 0
    s_cselect_b32 s{sT}, s{sT2}, s{sT}
    s_cselect_b32 s{sT2}, 16, 0x400
    v_add_u32 v{T}, s{sT2}, v{aLw}
    s_cmp_eq_u32 s{S_J}, 0
    s_cselect_b32 s{sT}, s{sT}, s{sKW+2}
    s_cselect_b64 {s(sMK,2)}, -1, 0
    s_add_u32 s{sN}, s{sN}, s{sT}
    s_add_u32 s{sN}, s{sN}, {hx(WS_KV)}
    s_cmp_lt_u32 s{S_J}, 2
    s_cselect_b32 s{sKW+2}, s{sN}, {hx(WS_END)}""", f"""
    v_bfe_u32 v{T+1}, v0, 4, 1
    v_lshlrev_b32 v{T+1}, 7, v{T+1}
    v_sub_u32 v{T+1}, v{aLr}, v{T+1}
    s_lshl_b32 s{sT}, s{sHP}, 4
    v_and_b32 v{t+4}, 15, v0
    v_add_u32 v{t+4}, s{sT}, v{t+4}
    v_lshrrev_b32 v{T+2}, 4, v0
    v_mul_u32_u24 v{T+2}, 0x180, v{T+2}
    v_lshl_add_u32 v{T+2}, v{t+4}, 4, v{T+2}
    v_mov_b32 v{T+3}, 0x3f803f80
    v_cmp_eq_u32 vcc, 20, v{t+4}
    v_cmp_gt_u32 {s(sKW,2)}, 24, v{t+4}
    s_lshl_b32 s{sT}, s{sK}, 5
    s_sub_u32 s{sT}, 96, s{sT}
    v_cndmask_b32 v{T+3}, 0, v{T+3}, vcc
    v_cmp_gt_u32 vcc, s{sT}, v0
    v_cndmask_b32 v{T+2}, -4.0, v{T+2}, {s(sKW,2)}
    v_cmp_gt_u32 {s(sKW,2)}, 20, v{t+4}
    v_cndmask_b32 v{t+4}, -4.0, v{vA[0]}, vcc
    v_cndmask_b32 v{T+2}, v{T+2}, v{t+4}, {s(sMK,2)}
    s_or_b64 {s(sKW,2)}, {s(sKW,2)}, {s(sMK,2)}""",
    f"""s_and_b32 s{sT}, s{S_TG}, 7
    s_lshl_b32 s{sT}, s{sT}, 2
    s_add_u32 s{sT}, s{sT}, s{sK}
    s_lshr_b32 s{sT2}, s{S_TG}, 3
    s_lshl_b32 s{sN}, s{S_J}, 2
    s_add_u32 s{sN}, s{sN}, s{sT2}
    s_mul_i32 s{sN}, s{sN}, 55
    s_add_u32 s{sN}, s{sN}, s{sT}
    s_lshl_b32 s{sN}, s{sN}, 10
    s_add_u32 s{sPs[0]}, s{sN}, {hx(WS_PK)}
    s_add_u32 s{sPs[1]}, s{sN}, {hx(WS_PK+30*1024)}
    s_cmp_lt_u32 s{sT}, 30
    s_cselect_b32 s{sPs[0]}, s{sPs[0]}, {hx(WS_END)}
    s_cmp_lt_u32 s{sT}, 25
    s_cselect_b32 s{sPs[1]}, s{sPs[1]}, {hx(WS_END)}
    s_mul_i32 s{sE}, s{sT}, 52
    s_lshr_b32 s{sE}, s{sE}, 8
    s_sub_u32 s{sN}, s{S_J}, s{sE}
    s_mul_i32 s{sN}, s{sN}, 5
    s_add_u32 s{sN}, s{sN}, s{sT}
    s_lshl_b32 s{sN}, s{sN}, 5
    v_and_b32 v{t}, 1, v0
    v_lshl_add_u32 v{t}, v{t}, 4, s{sN}
    v_bfe_u32 v{t+4}, v0, 1, 2
    v_bfe_u32 v{t+5}, v0, 3, 1
    v_bfe_u32 v{t+6}, v0, 4, 1""", f"""
    s_lshr_b32 s{sT2}, s{S_TG}, 3
    s_mul_i32 s{sN}, s{sT2}, 12
    s_add_u32 s{sN}, s{sN}, s{sE}
    s_cmp_ge_u32 s{sE}, 3
    s_cselect_b32 s{sT}, 3, 0
    s_add_u32 s{sN}, s{sN}, s{sT}
    s_lshl_b32 s{sN}, s{sN}, 4
    v_lshl_add_u32 v{vPk[0]}, v{t+5}, 2, v{t+4}
    v_mad_u32_u24 v{vPk[0]}, v{t+6}, 48, v{vPk[0]}
    v_lshl_add_u32 v{vPk[0]}, v{h}, 3, v{vPk[0]}
    v_add_u32 v{vPk[0]}, s{sN}, v{vPk[0]}
    v_mul_u32_u24 v{vPk[0]}, 0x500, v{vPk[0]}
    v_add_u32 v{vPk[0]}, v{vPk[0]}, v{t}""", f"""
    s_and_b32 s{sT}, s{sE}, 1
    s_and_b32 s{sN}, s{sE}, 2
    s_lshl_b32 s{sN}, s{sN}, 1
    s_add_u32 s{sN}, s{sN}, s{sT}
    s_mul_i32 s{sN}, s{sN}, 20
    s_cmp_eq_u32 s{sE}, 4
    s_cselect_b32 s{sN}, 16, s{sN}
    s_cselect_b32 s{sT}, 20, 4
    v_mad_u32_u24 v{vPk[1]}, v{t+5}, s{sT}, v{t+4}
    s_cselect_b32 s{sT}, 80, 40
    v_mad_u32_u24 v{vPk[1]}, v{t+6}, s{sT}, v{vPk[1]}
    s_cselect_b32 s{sT}, 40, 8
    v_mad_u32_u24 v{vPk[1]}, v{h}, s{sT}, v{vPk[1]}
    s_lshr_b32 s{sT2}, s{S_TG}, 3
    s_mul_i32 s{sT2}, s{sT2}, 160
    s_add_u32 s{sN}, s{sN}, s{sT2}
    v_add_u32 v{vPk[1]}, s{sN}, v{vPk[1]}
    v_mul_u32_u24 v{vPk[1]}, 0x500, v{vPk[1]}
    v_add_u32 v{vPk[1]}, v{vPk[1]}, v{t}
    s_lshl_b32 s{sT}, s{sK}, 11
    s_add_u32 s{sMk}, s{sT}, {PKS}
    v_lshl_add_u32 v{aPk}, v0, 3, s{sMk}""", f"""
    s_waitcnt lgkmcnt(0)
    s_add_u32 s{sTag}, s{sTag}, {hx(TAGC)}
    v_mov_b32 v{gr+1}, s{sTag}
    v_mov_b32 v{gr+3}, s{sTag}
    s_lshl_b32 s{sT}, s{S_TG}, 1
    s_add_u32 s{sT}, s{sT}, s{S_J}
    s_lshl_b32 s{sT}, s{sT}, {FS}
    s_add_u32 s{sXo}, s{sT}, {hx(FL1)}
    s_lshl_b32 s{sT}, s{sK}, 1
    s_or_b32 s{sT}, s{sT}, s{S_J}
    s_cmp_lt_u32 s{sT}, 2
    s_cselect_b32 s{sXo}, s{sXo}, {hx(WS_END)}"""], 6, 12)
    gate = (f"""s_mul_i32 s{sT}, s{sK}, 320
    s_add_u32 m0, s{sT}, {GATE}
    s_mov_b32 s{sX}, s{P_GW}
    s_mov_b32 s{sX+1}, s{P_GW+1}
    s_mov_b32 s{sX+2}, 1280
    s_mov_b64 exec, 0xfffff
    buffer_load_dwordx4 v{vg}, {s(sX,4)}, 0 offen lds
    s_mov_b64 exec, -1""", "x10")
    kvs = [(f"""ds_read_b64_tr_b16 {v(kvd,2)}, v{T+1}
    ds_read_b64_tr_b16 {v(kvd+2,2)}, v{T+1} offset:256
    s_mov_b64 exec, {s(sMK,2)}
    ds_read_b64 {v(kvd,2)}, v{aLw}
    ds_read_b64 {v(kvd+2,2)}, v{T}
    s_mov_b64 exec, -1""", "kr"), [("@", "kr")] + [f"v_cndmask_b32 v{kvd+i}, v{T+3}, v{kvd+i}, {s(sKW,2)}" for i in range(4)] +
    [(f"buffer_store_dwordx4 {v(kvd,4)}, v{T+2}, {s(sWS,4)}, s{sKW+2} offen sc1", "kvs")]]
    g2 = C("g2", 269); hl = 1
    for n in range(3): put([(f"ds_read_b128 {v(raw+4*n,4)}, v{aTX} offset:{1024*n}", f"tx{n}")] , 11+n+hl, 11+n+hl)
    put(kvs[:1], 12, 12); put(kvs[1:], C("kp", 128), C("kp", 128))
    def gz(g):
        X = range(Z2+8*g, Z2+8*g+8); L = [f"v_lshlrev_b32 v{x}, 16, v{raw+4*g+i}\n v_and_b32 v{x+1}, 0xffff0000, v{raw+4*g+i}" for i, x in enumerate(X[::2])]
        return [[("@", f"tx{g}"), L[0]]] + L[1:] + gelu(X, tg_, vK1, ("v_add_f32 {s1}, {s1}, {x}", "v_fmac_f32 {s2}, {x}, {x}"), s1=sm, s2=sm+2)
    assert g2 >= 14.2+hl
    put(gz(0) + gz(1) + gz(2) +
        [f"v_add_f32 v{sm}, v{sm}, v{sm+1}\n v_add_f32 v{sm+1}, v{sm+2}, v{sm+3}\n v_mov_b64 {v(tg_,2)}, {v(sm,2)}\n s_nop 1\n v_permlane32_swap_b32 v{sm}, v{tg_}\n v_permlane32_swap_b32 v{sm+1}, v{tg_+1}",
         (f"v_add_f32 v{sm}, v{sm}, v{tg_}\n v_add_f32 v{sm+1}, v{sm+1}, v{tg_+1}\n ds_write_b64 v{aS}, {v(sm,2)}", "stx")], 11.1+hl, g2)
    put([(f"ds_read_b64 {v(tg_,2)}, v{aS} offset:512", "sty"),
         [("@", "sty"), f"""v_add_f32 v{gr}, v{sm}, v{tg_}
         v_add_f32 v{gr+2}, v{sm+1}, v{tg_+1}
         buffer_store_dwordx4 {v(gr,4)}, v{vSp}, {s(sWS,4)}, s{sSt} offen sc1"""]], int(g2)+1, int(g2)+1)
    f1b = cfg.get("f1b", 16)
    put([flag("kvs", sXo)], f1b, f1b)
    sld = [(f"buffer_load_dwordx4 {v(ssr[i],4)}, v{vA[0]}, {s(sWS,4)}, s{sSt} offen offset:{1024*i} sc1", "ss") for i in range(4)]
    m, n_ = tg_+2, tg_+3; mu = sm
    def schk(st_):
        st_(f"{name}_schk:"); st_.w("ss")
        G_ = [x+o for x in ssr for o in (1, 3)]
        for op, d in (("max", m), ("min", n_)):
            st_(f"v_{op}3_u32 v{d}, v{G_[0]}, v{G_[1]}, s{sTag}")
            for i in (2, 4, 6): st_(f"v_{op}3_u32 v{d}, v{G_[i]}, v{G_[i+1]}, v{d}")
        st_(f"v_cmp_ne_u32 vcc, v{m}, v{n_}\n s_cbranch_vccnz {name}_sretry\n {name}_sok:")
        stamp(a, 4)
    LN = [schk]
    for o in (0, 2): LN += [f"v_add_f32 v{m}, v{ssr[0]+o}, v{ssr[1]+o}\n v_add_f32 v{n_}, v{ssr[2]+o}, v{ssr[3]+o}\n v_add_f32 v{mu+o//2}, v{m}, v{n_}"]
    LN += [f"v_mov_b64 {v(m,2)}, {v(mu,2)}\n s_nop 1\n v_permlane32_swap_b32 v{mu}, v{m}\n v_permlane32_swap_b32 v{mu+1}, v{m+1}",
           f"v_add_f32 v{mu}, v{mu}, v{m}\n v_add_f32 v{mu+1}, v{mu+1}, v{m+1}\n v_mul_f32 v{mu}, {fl_(1/768)}, v{mu}\n v_mul_f32 v{mu+1}, {fl_(1/768)}, v{mu+1}",
           f"v_fma_f32 v{mu+1}, -v{mu}, v{mu}, v{mu+1}\n v_max_f32 v{mu+1}, 0, v{mu+1}\n v_add_f32 v{mu+1}, {fl_(1e-5)}, v{mu+1}\n v_rsq_f32 v{mu+1}, v{mu+1}\n s_nop 0\n v_mul_f32 v{mu}, v{mu}, v{mu+1}"]
    zst = lambda n: [("@", "tr"), (f"buffer_store_dwordx4 {v(Z2+8*n,4)}, v{vZn}, {s(sWS,4)}, s{sZs} offen offset:{1024*n} sc1", "zn")]
    for n in range(3):
        for a_ in range(2):
            q = Z2+8*n+4*a_
            LN += [f"v_fma_f32 v{q+i}, v{q+i}, v{mu+1}, -v{mu}\n v_fma_f32 v{q+i+1}, v{q+i+1}, v{mu+1}, -v{mu}" for i in (0, 2)]
            LN += [f"v_cvt_pk_bf16_f32 v{q}, v{q}, v{q+1}\n v_cvt_pk_bf16_f32 v{q+1}, v{q+2}, v{q+3}\n ds_write_b64 v{aLw}, {v(q,2)} offset:{16*a_}"]
            if a_ == 0 and n: LN.append(zst(n-1))
        LN += [(f"ds_read_b64_tr_b16 {v(Z2+8*n,2)}, v{aLr}\n ds_read_b64_tr_b16 {v(Z2+8*n+2,2)}, v{aLr} offset:128", "tr")]
    LN.append(zst(2))
    sl, l0, l1 = C("sl", 301), C("l0", 310), C("l1", 317)
    put(sld, sl, sl+0.5); put(LN, l0, l1)
    b1 = C("b1", 258); b2 = C("b2", 280); kd = C("kd", 5); assert b2 >= 21
    put([(fl(sFl), "F")], b1, b1)
    put([poll("k", sFl, 3)], b2, b2)
    for c in range(3): put([kv(c)], b2+0.01+c*kd, b2+0.01+c*kd)
    put([(f"v_lshlrev_b32 v{t0}, {FS}, v0\n" + fl(sFl), "F")], C("b3", 301), C("b3", 301))
    put([poll("l", sFl, 0)], 30.99, 30.99)
    for b in range(30):
        lstamp(a, 2*b); st.w(f"w{b}", f"x{b}", "stx", *(["kvs"] if b == f1b else []), *(["tx2"] if b == TXF else []))
        tb(b, 1); st("s_barrier"); tb(b, 0); lstamp(a, 2*b+1)
        if b in (0, 10, 20): stamp(a, {0: 1, 10: 2, 20: 6}[b])
        D = issue(b, nb) + ([gate] if b == 5 else [])
        L = [(b + 0.01 + C("dsp", 7)*i/len(D), x) for i, x in enumerate(D)] + ex[b]
        for x in sorted(L, key=lambda y: y[0]): st.run(x[1])
    assert not xq and not wq
    lstamp(a, 60); st.w("kv0", "stx")
    st("s_barrier"); stamp(a, 7); lstamp(a, 61); lstamp(a, None)
    for i in range(3): st(f"ds_read_b128 {v(r.Q16[0]+4*i,4)}, v{aQx} offset:{1024*i}", "Q")
    pb = cfg.get("pb", 0)
    sc = attention(1, [[0]*4]*16, None, lambda c: [f"kv{c+1}"], lambda c: [(lambda st_, c=c: stamp(a, 8+c))], lambda c, i: pb if (c, i) == (0, 0) and pb != cfg.get("p2", 0) else None)
    for c in range(13): sc.place(kv(c+3), c+1, 0.02, 0.15)
    for x, it in sorted(sum(ex[30:], []), key=lambda y: y[0]): span(sc, [it], x, x, 30)
    WU = lambda ks, c: BIG+4*(5*ks+c)
    w0 = cfg.get("w0", 5); w1 = cfg.get("w1", 13); L = pkloads(BIG, 30, vA[0], sWS, sPk, "wu")
    span(sc, [flag("zn", sF2)], C("f2", 25), C("f2", 25), 0)
    pkl = lambda i, ptr, n: (f"""s_mov_b32 s{sX}, s{ptr}
    s_mov_b32 s{sX+1}, s{ptr+1}
    s_add_u32 m0, s{sMk}, {1024*i}
    s_mov_b32 s{sX+2}, {n*1280}
    buffer_load_dwordx4 v{vPk[i]}, {s(sX,4)}, 0 offen lds""", "pk")
    span(sc, [pkl(0, P_WOUT, 768), pkl(1, P_WO, 640)], C("k0", 6), C("k0", 6)+0.3, 0)
    span(sc, [[("@", "pk")] + [(f"ds_read_b64_tr_b16 {v(pkd+2*i,2)}, v{aPk} offset:{512*i}", "pr") for i in range(4)]] +
         [[("@", "pr"), (f"buffer_store_dwordx4 {v(pkd+4*i,4)}, v{vA[0]}, {s(sWS,4)}, s{sPs[i]} offen sc1", "ps")] for i in range(2)], C("k1", 22), C("k1", 22)+0.3, 0)
    span(sc, [[f"s_add_u32 s{sF2}, s{sF2}, {hx(FL4)}"] + flag("ps", sF2)], C("k2", 32), C("k2", 32), 0)
    span(sc, [(f"v_and_b32 v{t0}, {hx((32 << FS)-1)}, v{t0}\n" + fl(sF4), "F")], w0-0.7, w0-0.7, 0)
    span(sc, [poll("w", sF4, 0)], w0+0.18, w0+0.18, 0)
    assert l1-30 < C("f2", 25) < C("k2", 32) < w0-0.7
    for w in range(w0, w1): sc.place(L[30*(w-w0)//(w1-w0):30*(w+1-w0)//(w1-w0)], w, 0.2, 0.9)
    act = [224, 12, 36, 60]
    def ald(i): return [(f"buffer_load_dwordx4 {v(act[i]+4*ks,4)}, v{vA[ks>>2]}, {s(sWS,4)}, s{sAct[i]} offen offset:{1024*(ks&3)} sc1", f"{name}_u{i}") for ks in range(6)]
    aP = [5, 6, 7, 8, 9]; aO = 10
    sc.place([f"""s_mul_i32 s{sT}, s{sK}, 6144
    v_add_u32 v{aO}, s{sT}, v{r.aK}
    s_mul_i32 s{sT}, s{sK}, 5120
    v_add_u32 v{aP[4]}, s{sT}, v{r.aK}"""] + [f"""s_xor_b32 s{sT}, s{sK}, {d}
    s_mul_i32 s{sT}, s{sT}, 15360
    s_add_u32 s{sT}, s{sT}, {PB0}
    v_add_u32 v{aP[d]}, s{sT}, v{vA[0]}""" for d in range(4)], 15, 0.3, 0.8)
    span(sc, [(f"v_and_b32 v{t0}, {hx((8 << FS)-1)}, v{t0}\n" + fl(sF3), "F")], C("u3", 157), C("u3", 157), 0)
    sc.place([poll("u", sF3, 0)] + ald(0), 16, cfg.get("u0", 50)/100, 0.95)
    sc.emit(st)
    for th in range(2):
        if th: st("s_nop 8")
        for i in range(3): st(f"ds_write_b128 v{aO}, {v(r.O[th]+4*i,4)} offset:{(3*th+i)*1024}", "po")
    st.run(ald(1))
    st.w("po")
    stamp(a, 24); st("s_barrier"); stamp(a, 25)
    st.run(ald(2) + ald(3))
    ac = [84, 224, 84, 224]; tc = 250; pr = [12, 36, 84]
    for i in range(4):
        st.w(f"{name}_u{i}")
        stamp(a, 26+i)
        ex = {}
        if i > 0:
            for c in range(5): ex[c+2] = (f"ds_write_b128 v{aP[0]}, {v(ac[i-1]+4*c,4)} offset:{(i-1)*5120+c*1024}", "pw")
        if i == 3:
            ex[9] = [("@", "pw"), "s_barrier"]
            for c in range(5):
                for d in range(3): ex[10+3*c+d] = (f"ds_read_b128 {v(pr[d]+4*c,4)}, v{aP[d+1]} offset:{d*5120+c*1024}", f"pr{c}")
        for ks in range(6):
            for c in range(5):
                q = ac[i]+4*c
                st(f"{MF16} {v(q,4)}, {v(WU(ks,c),4)}, {v(act[i]+4*ks,4)}, {'0' if ks == 0 else v(q,4)}")
                if 5*ks+c in ex: st.run(ex[5*ks+c])
    for c in range(5):
        st.w(f"pr{c}"); q = ac[3]+4*c
        for h2 in (0, 2): st(f"v_pk_add_f32 {v(pr[0]+4*c+h2,2)}, {v(pr[0]+4*c+h2,2)}, {v(pr[1]+4*c+h2,2)}")
        for h2 in (0, 2): st(f"v_pk_add_f32 {v(pr[0]+4*c+h2,2)}, {v(pr[0]+4*c+h2,2)}, {v(pr[2]+4*c+h2,2)}")
        for h2 in (0, 2): st(f"v_pk_add_f32 {v(q+h2,2)}, {v(q+h2,2)}, {v(pr[0]+4*c+h2,2)}")
        st(f"ds_write_b128 v{aP[4]}, {v(q,4)} offset:{c*1024}")
    st("s_waitcnt lgkmcnt(0)")
    stamp(a, 30)
    st("s_barrier")
    if TS[0] == 1: st(f"v_writelane_b32 v255, s{sCnt}, 5")
    wend(a, name)
    x = St(a)
    for nm, sF in polls: x(f"""{name}_{nm}retry:
    s_cmp_eq_u32 s{sCnt}, 0
    s_cbranch_scc1 {name}_{nm}ok
    s_sub_u32 s{sCnt}, s{sCnt}, 1
    {fl(sF)}
    s_waitcnt vmcnt(0)
    s_branch {name}_{nm}poll""")
    x(f"{name}_sretry:\n s_cmp_eq_u32 s{sCnt}, 0\n s_cbranch_scc1 {name}_sok\n s_sub_u32 s{sCnt}, s{sCnt}, 1")
    x.run(sld); x(f"s_waitcnt vmcnt(0)\n s_branch {name}_schk")
```

```python
from kfA1 import *
from kbA import slow_path
def waveA(E, st):
    a = E["a"]; name = E["name"]; cfg = E["cfg"]; S_ = E["S_"]; gS = E["gS"]; cR = E["cR"]; JB = E["JB"]
    sWS, sW, sT, sT2, sO, sN, sK, sTH, sHP, sE, sAct, sTag = [E[k] for k in "sWS sW sT sT2 sO sN sK sTH sHP sE sAct sTag".split()]
    sSP = S_(4); sBS = S_(4); sAr = S_(); sWb = [S_(), S_()]; sB = S_(); sWo = S_(); sZb = S_(); sZn = S_(); sZo = S_(); sFl = S_(); sCnt = S_(); sU = S_(); sOa = S_(); sOx = S_()
    sGm = S_(2); sF3 = S_(); sPk = S_(); sSc = S_(); C = lambda k, d: cfg.get(k, d)/10
    aW = [4, 5, 6, 7]; vl = 8; vo = [9, 10, 11, 252]; acc = BIG; W = [200, 204]; NZ = 11; Z = [208+4*z for z in range(NZ)]; t0, t1 = 253, 254
    T = 12; vE = 162; vu = 250
    if cfg.get("cpf", 1):
        st(f"""s_getpc_b64 {s(sE,2)}
        {name}_pc:
        s_bfe_u32 s{sT}, s2, 0x10003
        s_lshl_b32 s{sT}, s{sT}, 2
        s_add_u32 s{sT}, s{sT}, s{sK}
        s_lshl_b32 s{sT}, s{sT}, 13
        v_lshl_add_u32 v{T}, v0, 7, s{sT}
        v_min_u32 v{T}, {name}_exit-{name}_pc, v{T}
        global_load_dword v{vE+1}, v{T}, {s(sE,2)}""")
    st(f"v_lshlrev_b32 v{vSt}, 4, v0\n s_setprio {cfg.get('p1', 1)}")
    E["common"](st)
    kv_addr(st, T+4)
    st(f"v_mov_b32 v{T}, v{vSt}")
    st(f"""
    s_mul_i32 s{sAr}, s{sK}, {AA}
    s_lshl_b32 s{sT}, s{S_TG}, 1
    s_add_u32 s{sT}, s{sT}, s{sTH}
    s_lshl_b32 s{sT2}, s{sK}, 10
    s_lshl_b32 s{sWb[0]}, s{sT}, 17
    s_add_u32 s{sWb[0]}, s{sWb[0]}, s{sT2}
    s_xor_b32 s{sWb[1]}, s{sWb[0]}, 0x20000
    s_and_b32 s{sB}, s{S_TG}, 7
    s_lshl_b32 s{sB}, s{sB}, 7
    s_mov_b32 s{sZn}, s{sB}
    s_mul_i32 s{sU}, s{sT}, {88*1024}
    s_add_u32 s{sU}, s{sU}, {hx(WS_ACT)}
    s_lshl_b32 s{sT}, s{S_J}, 2
    s_add_u32 s{sT}, s{sT}, s{sK}
    s_mul_i32 s{sZb}, s{sT}, {8*12288}
    s_add_u32 s{sZb}, s{sZb}, {hx(WS_Z2N)}
    s_lshl_b32 s{sFl}, s{sT}, 7
    s_add_u32 s{sFl}, s{sFl}, {hx(WS_FLAG)}
    v_lshrrev_b32 v{T+4}, 3, v0
    v_lshlrev_b32 v{T+4}, 12, v{T+4}
    v_lshrrev_b32 v{T+5}, 4, v0
    v_and_b32 v{T+6}, 7, v0
    v_xor_b32 v{T+5}, v{T+5}, v{T+6}
    v_lshl_add_u32 v{vo[0]}, v{T+5}, 4, v{T+4}
    v_xor_b32 v{T+5}, 64, v{vo[0]}
    v_add_u32 v{vo[1]}, {32768-1024}, v{T+5}
    v_add_u32 v{vo[2]}, {2*(32768-1024)}, v{vo[0]}
    v_add_u32 v{vo[3]}, {3*(32768-1024)}, v{T+5}
    v_lshrrev_b32 v{T+4}, 5, v0
    v_bfe_u32 v{T+5}, v0, 1, 3
    v_xor_b32 v{T+5}, v{T+5}, v{T+4}
    v_lshlrev_b32 v{T+5}, 4, v{T+5}
    v_and_b32 v{T+6}, 31, v0
    v_lshl_add_u32 v{T+5}, v{T+6}, 7, v{T+5}
    v_lshlrev_b32 v{t0}, 2, v{T+6}
    s_lshl_b32 s{sT}, s{sHP}, 7
    v_xor_b32 v{vl}, s{sT}, v{T}
    s_mov_b32 s{sCnt}, 0x8000
    """)
    for i in range(4): st(f"v_xor_b32 v{aW[i]}, {hx(32*i)}, v{T+5}\n v_add_u32 v{aW[i]}, s{sAr}, v{aW[i]}")
    st(f"""
    s_lshr_b32 s{sT}, s{S_J}, 1
    s_mul_i32 s{sT}, s{sT}, 5120
    s_add_u32 s{sOa}, s{sU}, s{sT}
    s_and_b32 s{sT}, s{S_J}, 1
    s_lshl_b32 s{sT}, s{sT}, 1
    s_add_u32 s{sT}, s{sT}, s{sHP}
    s_lshl_b32 s{sT2}, s{sT}, 8
    s_add_u32 s{sOx}, s{sOa}, s{sT2}
    s_add_u32 s{sOx}, s{sOx}, 4096
    s_lshl_b32 s{sT}, s{sT}, 10
    s_add_u32 s{sOa}, s{sOa}, s{sT}
    s_mul_i32 s{sT}, s{S_J}, 3072
    s_add_u32 s{sU}, s{sU}, s{sT}
    s_lshl_b32 s{sT}, s{sHP}, 9
    s_add_u32 s{sU}, s{sU}, s{sT}
    s_add_u32 s{sU}, s{sU}, {20*1024}
    s_mul_i32 s{sT}, s{sK}, 5120
    s_add_u32 s{sT}, s{sT}, {hx(WS_ACT)}
    """)
    for i in range(4): st(f"s_add_u32 s{sAct[i]}, s{sAct[i]}, s{sT}")
    uaddr = lambda vu, tp: [f"""v_bfe_u32 v{tp}, v0, 4, 1
    v_mul_u32_u24 v{vu}, {44*1024}, v{tp}
    v_and_b32 v{tp}, 15, v0""", f"""v_cmp_gt_u32 vcc, 32, v0
    v_lshl_add_u32 v{vu}, v{tp}, 4, v{vu}
    v_lshrrev_b32 v{tp}, 5, v0
    v_cndmask_b32 v{vu+1}, -4.0, v{vu}, vcc
    v_lshl_add_u32 v{vu}, v{tp}, 8, v{vu}"""]
    h, e, cb, tok = T+1, T+2, T+3, T+4
    st(f"""
    v_lshrrev_b32 v{h}, 5, v0
    v_bfe_u32 v{e}, v0, 2, 2
    v_and_b32 v{tok}, 31, v0
    v_bfe_u32 v{cb}, v0, 4, 1
    v_and_b32 v{T+5}, 3, v0
    v_lshlrev_b32 v{T+5}, 3, v{T+5}
    v_lshl_add_u32 v{cb}, v{cb}, 5, v{T+5}
    v_lshl_add_u32 v{T+6}, v{h}, 3, v{e}
    s_mul_i32 s{sT}, s{sHP}, 96
    v_mul_u32_u24 v{aZ[0]}, 192, v{T+6}
    v_add3_u32 v{aZ[0]}, v{aZ[0]}, v{cb}, s{sT}
    v_mad_u32_u24 v{T+7}, v{T+6}, 40, v{T+5}
    v_add_u32 v{T+6}, v{T+6}, v{e}
    s_mul_i32 s{sT}, s{sHP}, 40
    v_mul_u32_u24 v{aQ[0]}, 160, v{T+6}
    v_add3_u32 v{aQ[0]}, v{aQ[0]}, v{cb}, s{sT}
    v_add_u32 v{aZ[1]}, 0x8000, v{aZ[0]}
    v_add_u32 v{aQ[1]}, 0x8000, v{aQ[0]}
    v_lshlrev_b32 v{aG}, 4, v{h}
    v_add_u32 v{aG}, {GATE}, v{aG}
    s_lshl_b32 s{sT}, s{sTH}, 12
    s_add_u32 s{sT}, s{sT}, {X0}
    s_sub_u32 s{sT}, s{sT}, s{sAr}
    s_mov_b32 s{sGm}, 0xff000000
    s_mov_b32 s{sGm+1}, 0xff000000
    v_mov_b64 {v(r.Q8,2)}, 0
    v_mov_b64 {v(r.Q8+2,2)}, 0
    """)
    for i in range(4): st(f"v_add_u32 v{aX[0][i]}, s{sT}, v{aW[i]}\n v_add_u32 v{aX[1][i]}, 0x10000, v{aX[0][i]}")
    st(f"""
    s_cmp_lt_u32 s{S_J}, 2
    s_cselect_b32 vcc_lo, 0xffff0000, 0
    s_mov_b32 vcc_hi, vcc_lo
    s_lshl_b32 s{sT}, s{sHP}, 5
    v_add_u32 v{T+7}, s{sT}, v{T+7}""")
    for i in range(8): st(f"""v_add_u32 v{T+8}, {768*(i&1)+3072*(i>>1)+64}, v{aZ[0]}
    v_add_u32 v{T+9}, {12288+160*(i&1)+640*(i>>1)}, v{T+7}
    v_cndmask_b32 v{aKV+i}, v{T+8}, v{T+9}, vcc""")
    st(f"""
    s_lshl_b32 s{sT}, s{sK}, 10
    s_add_u32 s{sT}, s{sT}, {LNS}
    v_lshl_add_u32 v{aLw}, v{tok}, 5, s{sT}
    v_lshl_add_u32 v{aLw}, v{h}, 3, v{aLw}
    s_lshl_b32 s{sT}, s{sK}, 12
    s_add_u32 s{sT}, s{sT}, {Z1P}
    v_add_u32 v{aPark}, s{sT}, v{vSt}
    s_mul_i32 s{sT}, s{sK}, 3072
    v_add_u32 v{aS}, s{sT}, v{vSt}
    v_add_u32 v{aTX}, {TX}, v{aS}
    v_add_u32 v{aS}, {QX}, v{aS}
    s_lshl_b32 s{sT}, s{S_TG}, 3
    s_add_u32 s{sT}, s{sT}, s{S_J}
    s_lshl_b32 s{sT}, s{sT}, 2
    s_add_u32 s{sT}, s{sT}, s{sK}
    s_lshl_b32 s{sT}, s{sT}, 2
    s_add_u32 s{sF3}, s{sT}, {hx(WS_FLAG+8192)}
    s_cmp_eq_u32 s{S_J}, 0
    s_cselect_b32 s{sSc}, {fl(QSCALE)}, 1.0
    s_waitcnt lgkmcnt(0)""")
    srd(a, sWS, P_WS, WS_END); srd(a, sSP, P_WSP, 2048*4096); srd(a, sBS, P_BSP, 4096)
    st(f"s_mov_b32 s{sT}, {hx(WS_EP)}\n buffer_load_dword v{vE}, off, {s(sWS,4)}, s{sT}\n s_barrier", "ep")
    stamp(a, 1); lstamp(a, 1)
    sc = Sched()
    for x in reads(0, sGm) + reads(1, sGm): sc.op(x)
    gemm(sc, 0, 120, sGm)
    sc.place([[("@", "ep"), f"v_readfirstlane_b32 s{sTag}, v{vE}"], f"s_add_u32 s{sTag}, s{sTag}, {hx(TAGC)}"], 8, 0.2, 0.8)
    if not cfg.get("tsb"): sc.place([lambda st_: stamp(a, 2)], 10, 0, 0); sc.place([lambda st_: stamp(a, 6)], 20, 0, 0)
    def kvx(st_):
        q = Z2+24
        a(f"s_cmp_ge_u32 s{S_J}, 2\n s_cbranch_scc1 {name}_nokv")
        for i in range(8): a(f"v_mul_f32 v{q+i}, s{sSc}, v{q+i}")
        for i in range(4): a(f"v_cvt_pk_bf16_f32 v{q+i}, v{q+2*i}, v{q+2*i+1}")
        a(f"ds_write_b64 v{aLw}, {v(q,2)}\n ds_write_b64 v{aLw}, {v(q+2,2)} offset:16\n {name}_nokv:")
    for b, q in ((10, Z2), (20, Z1)):
        hx_ = lambda n: [f"v_cvt_pk_bf16_f32 v{q+8*n+i}, v{q+8*n+2*i}, v{q+8*n+2*i+1}" for i in range(4)] + [(f"ds_write_b128 v{aTX}, {v(q+8*n,4)} offset:{1024*n}", "tx")]
        span(sc, hx_(0) + hx_(1), b+0.6, b+0.95, 0)
        span(sc, hx_(2) + ([kvx] if b == 10 else []), b+1.2, b+1.6, 0)
    sc.emit(st)
    st("s_nop 9")
    for ab in range(2):
        for i in range(4): st(f"v_cvt_pk_bf16_f32 v{r.Q16[ab]+i}, v{QA+16*ab+2*i}, v{QA+16*ab+2*i+1}")
        st(f"ds_write_b128 v{aS}, {v(r.Q16[ab],4)} offset:{1024*ab}", "qx")
    st("s_mov_b32 exec_hi, 0")
    for i in range(4): st(f"v_cvt_pk_bf16_f32 v{r.Q8+i}, v{QA+16*(i>>1)+8+2*(i&1)}, v{QA+16*(i>>1)+9+2*(i&1)}")
    st(f"s_mov_b32 exec_hi, -1\n ds_write_b128 v{aS}, {v(r.Q8,4)} offset:2048\n v_mul_f32 v{gl}, {fl(-LOG2E)}, v{QA+12}", "qx")
    lstamp(a, 60); st.w("qx"); st("s_barrier"); stamp(a, 7); lstamp(a, 61); lstamp(a, None)
    def wsp(blk):
        L = []
        for b in range(8):
            x = ""
            if b & 3 == 0: x = f"s_add_u32 m0, s{sAr}, {(blk&1)*8192+b*1024}\n s_add_u32 s{sWo}, s{sWb[b>>2]}, s{sB}\n"
            x += f"buffer_load_dwordx4 v{vo[b&3]}, {s(sSP,4)}, s{sWo} offen offset:{(b&3)*1024} lds\n"
            if b == 7: x += f"s_add_u32 s{sB}, s{sB}, 128\n s_and_b32 s{sB}, s{sB}, 0x3ff"
            L.append((x, f"wsp{blk}"))
        return L
    def zld(f):
        ks, n = divmod(f, 3); x = ""
        if f % 12 == 0: x = f"s_mul_i32 s{sZo}, s{sZn}, 96\n s_add_u32 s{sZn}, s{sZn}, 128\n s_add_u32 s{sZo}, s{sZo}, s{sZb}\n s_and_b32 s{sZn}, s{sZn}, 0x3ff\n"
        elif n == 0: x = f"s_add_u32 s{sZo}, s{sZo}, 3072\n"
        return (x + f"buffer_load_dwordx4 {v(Z[f%NZ],4)}, v{vl}, {s(sWS,4)}, s{sZo} offen offset:{1024*n} sc1", f"z{f}")
    rW = lambda ks, th: [("@", f"wsp{ks>>2}"), (f"ds_read_b128 {v(W[th],4)}, v{aW[ks&3]} offset:{((ks>>2)&1)*8192+th*4096}", f"W{th}")]
    G = dict(m=0, q=[])
    DPG = cfg.get("dpg", 1)
    def gop():
        m = G["m"]; G["m"] += 1
        ks, th, n = m//6, (m % 6)//3, m % 3; f = 3*ks+n; ac = acc+48*th+16*n
        it = [("@", f"z{f}", f"W{th}"), f"{MF32} {v(ac,16)}, {v(Z[f%NZ],4)}, {v(W[th],4)}, {'0' if ks == 0 else v(ac,16)}"]
        if n == 2 and ks < 31: it += rW(ks+1, th)
        if th == 1 and f+NZ < 96: it.append(zld(f+NZ))
        if m % 24 == 21 and m//24 + 2 < 8: G["q"] = wsp(m//24 + 2)
        it += G["q"][:DPG]; G["q"] = G["q"][DPG:]
        if m == 191: it.append("; end of G")
        return it
    np_ = (cR-gS)*4
    dens = [[0]*4 for c in range(16)]
    for p in range(np_): dens[gS+p//4][p % 4] = 192*(p+1)//np_ - 192*p//np_
    pa = cfg.get("pa", 1)
    sc = attention(0, dens, gop, lambda c: ["rsw"], lambda c: [(lambda st_, c=c: stamp(a, 8+c))], lambda c, i: pa if (c, i) == (0, 0) and pa != cfg.get("p1", 1) else None)
    sc.place([f"v_exp_f32 v{gl}, v{gl}", f"v_add_f32 v{gl}, 1.0, v{gl}", f"v_rcp_f32 v{gl}, v{gl}", f"ds_write_b32 v{aPark}, v{gl} offset:3072"], 0, 0.02, 0.1)
    ff = C("ff", 310)
    span(sc, wsp(0) + wsp(1), ff, ff+C("fl", 6), 30)
    span(sc, uaddr(vu, tg_) + [f"v_mov_b64 {v(tg_,2)}, -1\n v_mov_b64 {v(tg_+2,2)}, -1", f"buffer_store_dwordx4 {v(tg_,4)}, v{vu}, {s(sWS,4)}, s{sOa} offen sc1",
         f"buffer_store_dwordx4 {v(tg_,4)}, v{vu}, {s(sWS,4)}, s{sOa} offen offset:512 sc1", f"buffer_store_dwordx4 {v(tg_,4)}, v{vu+1}, {s(sWS,4)}, s{sOx} offen sc1"], C("s0", 302), C("s1", 309), 30)
    fld = f"buffer_load_dword v{t1}, v{t0}, {s(sWS,4)}, s{sFl} offen sc1"
    def poll(st_):
        st_(f"{name}_poll:"); st_.w("F")
        st_(f"v_cmp_ne_u32 vcc, s{sTag}, v{t1}\n s_cbranch_vccnz {name}_pretry\n {name}_pok:")
        stamp(a, 3)
    sc.place([(fld, "F")], gS-1, cfg.get("f0", 20)/100, cfg.get("f0", 20)/100)
    sc.place([poll] + [zld(f) for f in range(NZ)], gS-1, cfg.get("f1", 60)/100, 1.0)
    sc.place([rW(0, 0), rW(0, 1)], gS, 0.1, 0.2)
    z1 = 208; og = 220; gt = 222; tp = 224; aR = [228, 229, 230, 231]; vu = 232; aF = 240; vt = 242
    quads = lambda d, n: [acc+48*(d & 1)+16*n+4*(d >> 1), acc+48*(d & 1)+16*n+4*(d >> 1)+8]
    wl = sc.win[cR]; e = max(i for i, o in enumerate(wl) if isinstance(o, list) and "; end of G" in o)
    it = [f"""v_lshlrev_b32 v{aF}, 4, v0
    v_add_u32 v{aR[0]}, s{sAr}, v{aF}
    s_lshl_b32 s{sT}, s{sK}, 12
    s_add_u32 s{sT}, s{sT}, {Z1P}
    v_add_u32 v{tp}, s{sT}, v{aF}"""]
    it += [(f"ds_read_b128 {v(z1+4*n,4)}, v{tp} offset:{1024*n}", "zp") for n in range(3)]
    it += [(f"""s_lshl_b32 s{sT}, s{S_TG}, 1
    s_add_u32 s{sT}, s{sT}, s{sTH}
    s_lshl_b32 s{sT2}, s{sT}, 6
    v_lshrrev_b32 v{vt}, 1, v{t0}
    ds_read_b32 v{gt}, v{tp} offset:3072
    buffer_load_ushort v{og+1}, v{vt}, {s(sBS,4)}, s{sT2} offen""", "zp")]
    for d in (2, 1, 3):
        for n in range(3):
            for e2, q in enumerate(quads(d, n)): it.append((f"ds_write_b128 v{aR[0]}, {v(q,4)} offset:{((d-1)*6+2*n+e2)*1024}", "rsw"))
        it.append(f"s_xor_b32 s{sT}, s{sK}, {d}\n s_mul_i32 s{sT}, s{sT}, {AA}\n v_add_u32 v{aR[d]}, s{sT}, v{aF}")
    sc.place(it, cR, (e+3)/len(wl), 0.9)
    it = []
    rd = lambda n: [(f"ds_read_b128 {v(q,4)}, v{aR[d]} offset:{((d-1)*6+2*n+e2)*1024}", f"rs{n}{e2}") for e2 in range(2) for d in (1, 2, 3) for q in [quads(d, n)[e2]]]
    it += rd(0)
    it += [[("@", "zp"), f"""v_sub_f32 v{og}, 1.0, v{gt}
    v_lshlrev_b32 v{og+1}, 16, v{og+1}
    v_mul_f32 v{og+1}, v{og}, v{og+1}"""]] + uaddr(vu, tp)
    for n in range(3):
        nr = rd(n+1) if n < 2 else []
        for e2 in range(2):
            for h2 in (0, 2):
                o_, p1, p2, p3 = [quads(d, n)[e2]+h2 for d in range(4)]; zi = z1+4*n+2*e2+h2//2
                it.append([("@", f"rs{n}{e2}"), f"""v_pk_add_f32 {v(o_,2)}, {v(o_,2)}, {v(p1,2)}
                v_pk_add_f32 {v(p2,2)}, {v(p2,2)}, {v(p3,2)}
                v_lshlrev_b32 v{tp}, 16, v{zi}
                v_pk_add_f32 {v(o_,2)}, {v(o_,2)}, {v(p2,2)}"""])
                it.append(f"""v_and_b32 v{tp+1}, 0xffff0000, v{zi}
                v_pk_fma_f32 {v(o_,2)}, {v(o_,2)}, {v(og,2)}, {v(og,2)} op_sel:[0,0,1] op_sel_hi:[1,0,1]
                v_pk_mul_f32 {v(o_,2)}, {v(o_,2)}, {v(tp,2)}
                v_cvt_pk_bf16_f32 v{zi}, v{o_}, v{o_+1}""")
                it += nr[:2]; nr = nr[2:]
        it.append((f"buffer_store_dwordx4 {v(z1+4*n,4)}, v{vu}, {s(sWS,4)}, s{sU} offen offset:{1024*n} sc1", "us"))
    it.append(lambda st_: stamp(a, 4))
    it.append(f"""s_lshl_b32 s{sT}, s{S_J}, 2
    s_add_u32 s{sT}, s{sT}, s{sK}
    s_mul_i32 s{sPk}, s{sT}, {11*5120}
    s_add_u32 s{sPk}, s{sPk}, {hx(WS_PK+6*5120)}
    s_or_b32 s{sT}, s2, s{sK}
    s_cmp_eq_u32 s{sT}, 0
    s_cselect_b32 s{sE}, 1, 0
    s_mov_b32 s{sE+1}, 0
    v_mov_b32 v{tp+1}, s{sTag}
    v_cndmask_b32 v{tp}, -4.0, v0, {s(sE,2)}
    s_mov_b32 s{sT}, {hx(WS_EP)}
    buffer_store_dword v{tp+1}, v{tp}, {s(sWS,4)}, s{sT} offen sc1""")
    wu = cfg.get("wu", 75)/100
    sc.place(it, cR+1, 0.0, wu)
    WO = lambda ks, c: BIG+4*(5*ks+c)
    f3 = cR+1+wu+C("f3", 5)
    span(sc, [[f"s_mov_b64 exec, 1", ("@", "us"), f"buffer_store_dword v{tp+1}, off, {s(sWS,4)}, s{sF3} sc1\n s_mov_b64 exec, -1", lambda st_: stamp(a, 30)]], f3, f3, 0)
    span(sc, pkloads(BIG, 25, aF, sWS, sPk, "wof"), cR+1+wu+0.02, min(cR+2.9, 16.6), 0)
    sc.emit(st)
    O = r.O; S = r.S; D = 208; t = 244; mx = 226; vA = [4, 5]; aP = [6, 7, 8, 9, 10]; vs = 11
    st(f"""s_mul_i32 s{sT}, s{sK}, 6144
    v_add_u32 v{t}, s{sT}, v{r.aK}
    s_mov_b32 s{sN}, 0""")
    stamp(a, 24); st("s_barrier"); stamp(a, 25)
    for th in range(2):
        for i in range(3): st(f"ds_read_b128 {v(S[th]+4*i,4)}, v{t} offset:{(3*th+i)*1024}", f"po{th}{i}")
    st(f"v_lshlrev_b32 v{vA[0]}, 4, v0\n v_add_u32 v{vA[1]}, 0x1000, v{vA[0]}")
    for i in (2, 0, 1):
        for th in range(2):
            st.w(f"po{th}{i}")
            for h2 in (0, 2): st(f"v_pk_add_f32 {v(O[th]+4*i+h2,2)}, {v(O[th]+4*i+h2,2)}, {v(S[th]+4*i+h2,2)}")
    st(f"{name}_fin:")
    for i in range(4): st(f"v_permlane32_swap_b32 v{O[0]+8+i}, v{O[1]+8+i}")
    L = O[1]+8
    st(f"""
    v_rcp_f32 v{t}, v{L}
    v_cmp_ngt_f32 vcc, 0x5f800000, v{L}
    s_mov_b32 s{sT}, 0x1f800000
    v_mul_f32 v{t}, v{t}, v{gt}
    v_cmp_nlt_f32 {s(sE,2)}, s{sT}, v{L}
    v_mov_b32 v{t+2}, v{t}
    v_mov_b32 v{t+4}, v{t}
    s_or_b64 {s(sE,2)}, {s(sE,2)}, vcc
    v_pk_mul_f32 {v(O[0]+8,2)}, {v(O[0]+8,2)}, {v(t,2)} op_sel_hi:[1,0]
    v_permlane32_swap_b32 v{t+2}, v{t+4}
    v_pk_mul_f32 {v(O[0]+10,2)}, {v(O[0]+10,2)}, {v(t,2)} op_sel_hi:[1,0]
    """)
    for th in range(2):
        for i in range(0, 8, 2): st(f"v_pk_mul_f32 {v(O[th]+i,2)}, {v(O[th]+i,2)}, {v(t+2+2*th,2)} op_sel_hi:[1,0]")
    st(f"v_pk_mul_f32 {v(t+6,2)}, {v(O[0]+8,2)}, 0 op_sel_hi:[1,0]")
    for k_, q in enumerate([O[0]+10] + [O[th]+i for th in range(2) for i in range(0, 8, 2)]):
        st(f"v_pk_fma_f32 {v(t+6,2)}, {v(q,2)}, 0, {v(t+6,2)} op_sel_hi:[1,0,1]")
        if k_ > 0: st(f"v_cvt_pk_bf16_f32 v{D+k_-1}, v{q}, v{q+1}")
    st(f"""
    v_cmp_u_f32 vcc, v{t+6}, v{t+7}
    v_cvt_pk_bf16_f32 v{D+8}, v{O[0]+8}, v{O[0]+9}
    v_cvt_pk_bf16_f32 v{D+9}, v{O[0]+10}, v{O[0]+11}
    s_or_b64 vcc, {s(sE,2)}, vcc
    s_cbranch_vccnz {name}_slow
    {name}_pub:
    buffer_store_dwordx4 {v(D,4)}, v{vu}, {s(sWS,4)}, s{sOa} offen sc1
    v_permlane32_swap_b32 v{D+8}, v{D+10}
    v_permlane32_swap_b32 v{D+9}, v{D+11}
    buffer_store_dwordx4 {v(D+4,4)}, v{vu}, {s(sWS,4)}, s{sOa} offen offset:512 sc1
    buffer_store_dwordx4 {v(D+8,4)}, v{vu+1}, {s(sWS,4)}, s{sOx} offen sc1
    """)
    stamp(a, 26)
    act = [12+20*i for i in range(4)]
    srd(a, sSP, P_OUT, 2048*1280)
    st(f"""
    v_add_u32 v{aP[0]}, s{sAr}, v{vA[0]}
    s_mul_i32 s{sT}, s{sK}, 5120
    s_add_u32 s{sT}, s{sT}, {KV0}
    v_add_u32 v{aP[4]}, s{sT}, v{vA[0]}
    v_and_b32 v{t}, 15, v0
    v_mul_u32_u24 v{vs}, 0x500, v{t}
    v_lshrrev_b32 v{t}, 4, v0
    v_lshl_add_u32 v{vs}, v{t}, 3, v{vs}
    v_mov_b32 v{aP[1]}, v{aR[1]}
    v_mov_b32 v{aP[2]}, v{aR[2]}
    v_mov_b32 v{aP[3]}, v{aR[3]}
    s_lshl_b32 s{sT}, s{S_TG}, 2
    s_add_u32 s{sT}, s{sT}, s{E["sOwn"]}
    s_mul_i32 s{sO}, s{sT}, {16*1280}
    s_mul_i32 s{sT2}, s{S_J}, 160
    s_add_u32 s{sO}, s{sO}, s{sT2}
    """)
    def ald(st_, i0):
        for i in range(i0, 4):
            for ks in range(5): st_(f"buffer_load_dwordx4 {v(act[i]+4*ks,4)}, v{vA[ks>>2]}, {s(sWS,4)}, s{sAct[i]} offen offset:{1024*(ks&3)} sc1", f"{name}_o{i}")
    st("s_waitcnt vmcnt(0)")
    ald(st, 0)
    ac2 = [208, 228]; tc = 250
    for i in range(4):
        chk_tile(st, f"{name}_o{i}", act[i], 20, tc, sCnt)
        stamp(a, 27 if i == 0 else 28) if i in (0, 3) else None
        if i == cfg.get("t2", 1): st("s_barrier")
        ex = {}
        if i > 0:
            for c in range(5): ex[c] = (f"ds_write_b128 v{aP[0]}, {v(ac2[(i-1)&1]+4*c,4)} offset:{(i-1)*5120+c*1024}", "pw")
        pr = act[:3] + [ac2[0]]
        if i == 3:
            ex[8] = [("@", "pw"), "s_barrier"]
            for c in range(5):
                for d in range(4): ex.setdefault(9+(4*c+d)*3//4, []).append((f"ds_read_b128 {v(pr[d]+4*c,4)}, v{aP[d+1]} offset:{(d*5120 if d < 3 else 0)+c*1024}", f"pr{c}"))
        for ks in range(5):
            for c in range(5):
                q = ac2[i & 1]+4*c
                st(f"{MF16} {v(q,4)}, {v(WO(ks,c),4)}, {v(act[i]+4*ks,4)}, {'0' if ks == 0 else v(q,4)}")
                if 5*ks+c in ex: st.run(ex[5*ks+c])
    for c in range(5):
        st.w(f"pr{c}"); q = ac2[1]+4*c
        for h2 in (0, 2):
            p = [x+4*c+h2 for x in pr]
            st(f"v_pk_add_f32 {v(p[0],2)}, {v(p[0],2)}, {v(p[1],2)}\n v_pk_add_f32 {v(p[2],2)}, {v(p[2],2)}, {v(p[3],2)}")
        for h2 in (0, 2): st(f"v_pk_add_f32 {v(pr[0]+4*c+h2,2)}, {v(pr[0]+4*c+h2,2)}, {v(pr[2]+4*c+h2,2)}")
        for h2 in (0, 2): st(f"v_pk_add_f32 {v(q+h2,2)}, {v(q+h2,2)}, {v(pr[0]+4*c+h2,2)}")
        st(f"""v_cvt_pk_bf16_f32 v{q}, v{q}, v{q+1}
        v_cvt_pk_bf16_f32 v{q+1}, v{q+2}, v{q+3}
        buffer_store_dwordx2 {v(q,2)}, v{vs}, {s(sSP,4)}, s{sO} offen offset:{32*c}""")
    if TS[0] == 1: st(f"v_writelane_b32 v255, s{sCnt}, 5")
    wend(a, name)
    x = St(a)
    x(f"""{name}_pretry:
    s_cmp_eq_u32 s{sCnt}, 0
    s_cbranch_scc1 {name}_pok
    s_sub_u32 s{sCnt}, s{sCnt}, 1
    {fld}
    s_waitcnt vmcnt(0)
    s_branch {name}_poll""")
    for i in range(4):
        x(f"{name}_o{i}_retry:\n s_cmp_eq_u32 s{sCnt}, 0\n s_cbranch_scc1 {name}_o{i}_ok\n s_sub_u32 s{sCnt}, s{sCnt}, 1")
        ald(x, i); x(f"s_branch {name}_o{i}_chk")
    slow_path(a, name, sWS, sT, sN, [sWb[0], sWb[1], sB, sZb], mx, t)
```

```python
from kf import *
Z2 = BIG; Z1 = 136; QA = 12; tg_ = 168; gl = 190
aLw, aTX, vSt, vF, aPark = 192, 193, 195, 198, 197
FW = lambda t, n: 208 + 12*(t % 3) + 4*n
FX = lambda t: 60 + 4*(t % 3)
aX = [[88, 89, 90, 91], [72, 73, 74, 75]]; aZ = [92, 93]; aQ = [94, 95]; aKV = 44; aG = 98; aS = 99
def reads(t, sGm):
    q, i = divmod(t, 4); ps = q // 10; hi = int(POS[q] >= 32768); o = POS[q] - 32768*hi; xo = xblk(q % 10)
    L = [(f"ds_read_b128 {v(FX(t),4)}, v{aX[xo >> 16][i]} offset:{xo & 0xffff}", f"f{t}_0")]
    for n in range(2):
        for p in range(2):
            ad = f"v{aZ[hi]} offset:{o+3072*i+768*p+64*n}" if ps < 2 else f"v{aQ[hi]} offset:{o+2560*i+160*p+80*n}"
            if ps == 0 and n == 1: ad = f"v{aKV+2*i+p} offset:{POS[q]}"
            L.append((f"ds_read_b64_tr_b16 {v(FW(t,n)+2*p,2)}, {ad}", f"f{t}_{n}"))
        if ps == 2 and n == 0:
            L.append((f"s_mov_b64 exec, {s(sGm,2)}\n ds_read_b128 {v(FW(t,0),4)}, v{aG} offset:{128*(q-20)+32*i}\n s_mov_b64 exec, -1", f"f{t}_0"))
    return L
def gemm(sc, t0, t1, sGm):
    for t in range(t0, t1):
        q, i = divmod(t, 4); ps = q // 10; ac = [Z2, Z1, QA][ps]
        M = [[("@", f"f{t}_{n}"), f"{MF32} {v(ac+16*n,16)}, {v(FW(t,n),4)}, {v(FX(t),4)}, {'0' if t % 40 == 0 else v(ac+16*n,16)}"] for n in range(2)]
        R = reads(t+2, sGm) if t+2 < 120 else []
        if i == 2 and q < 29:
            for m in M: sc.op(m)
            sc.op([lambda st_, q=q: lstamp(st_.a, 2*q+2), ("@", f"f{t+1}_0", f"f{t+1}_1", "tx"), "s_barrier", lambda st_, q=q: lstamp(st_.a, 2*q+3)]); sc.next()
            for x in R: sc.op(x)
        else:
            k = (len(R) + len(M) - 1) // len(M)
            for m in M:
                sc.op(m)
                for x in R[:k]: sc.op(x)
                R = R[k:]
def span(sc, items, w0, w1, base):
    n = len(items)
    for i, it in enumerate(items):
        x = w0 + (w1-w0)*(i+0.5)/n - base
        sc.place([it], int(x), x % 1, x % 1)
```

```python
from kf import *
from kfA1 import span
Z2 = 104; Z1 = 136; ssr = [128, 132, 160, 164]; tg_ = 168; z1p = 176; sm = 188; vK1 = 192; raw = 196
aLw, aLr, vZn, aPark, aS, vSp, vF1, aTX, aPk = range(208, 217); vPk = [217, 218]; pkd = 224; kvd = 232; gr = 244
def gelu(Z, g, sK2, PK, tail):
    X = range(Z+8*g, Z+8*g+8); L = [f"v_lshlrev_b32 v{x}, 16, v{raw+4*g+i}\n v_and_b32 v{x+1}, 0xffff0000, v{raw+4*g+i}" for i, x in enumerate(X[::2])]
    L[0] = [("@", f"tx{g}"), L[0]]
    for f in ("v_mul_f32 {t}, {x}, {x}", "v_fma_f32 {t}, {t}, {k2}, {k1}", "v_mul_f32 {t}, {t}, {x}", "v_exp_f32 {t}, {t}",
              "v_add_f32 {t}, 1.0, {t}", "v_rcp_f32 {t}, {t}", "v_mul_f32 {x}, {x}, {t}") + tail:
        n = 2 if "cvt" in f or PK and f[2:5] in ("mul", "fma", "add") else 1
        if n == 2 and "cvt" not in f: f = "v_pk_" + f[2:] + (" op_sel_hi:[0,1]" if "1.0" in f else "")
        L += [f.format(t=v(tg_+i, n), x=v(X[i], n), k2=s(sK2, n), k1=v(vK1, n), s1=v(sm+(i & 1), n), s2=v(sm+2+(i & 1), n), p=v(z1p+4*g+i//2), x0=v(X[i]), x1=v(X[i]+1)) for i in range(0, 8, n)]
    return L
fl_ = fl
def waveB(E, st):
    a = E["a"]; name = E["name"]; cfg = E["cfg"]; S_ = E["S_"]; gS = E["gS"]; cR = E["cR"]
    sWS, sW, sT, sT2, sO, sN, sK, sTH, sHP, sE, sAct, sTag = [E[k] for k in "sWS sW sT sT2 sO sN sK sTH sHP sE sAct sTag".split()]
    sX = S_(4); sKW = S_(4); sKVo = S_(); sKVb = S_(); sCnt = S_(); sPk = S_(); sCw = S_(); sXo = S_(); sMx = S_(); sMz = S_(); sMq = S_(); sMk = S_(); sFl = S_()
    sK2 = S_(2); sZs = S_(); sSt = S_(); sF2 = S_(); sF3 = S_(); sF4 = S_(); sPs = [S_(), S_()]; C = lambda k, d: cfg.get(k, d)/10
    TB = cfg.get("tsb", 0); stamp_ = globals()["stamp"]; stamp = (lambda a, k: None) if TB else stamp_
    def tb(b, odd):
        if TB and b != 4: a(f"s_bitcmp1_b32 s{sK}, 0\n s_cbranch_scc{1-odd} {name}_tb{b}_{odd}"); stamp_(a, b+1); a(f"{name}_tb{b}_{odd}:")
    vz = 4; vA = [11, 252]; t0, t1 = 253, 254
    vx = [12, 13]; vw = [14, 15, 16]; vq = [17, 18, 19]; vk = 20; vg = 21; aQx = 30; t = 22
    st(f"""{name}_B:
    s_setprio {cfg.get("p2", 0)}
    v_lshrrev_b32 v{t}, 3, v0
    s_lshl_b32 s{sT}, s{sK}, 4
    v_bfe_u32 v{t+1}, v0, 4, 2
    v_and_b32 v{t+2}, 7, v0
    s_lshl_b32 s{sT2}, s{S_TG}, 6
    v_xor_b32 v{t+1}, v{t+1}, v{t+2}
    s_add_u32 s{sT2}, s{sT2}, s{sT}
    v_add_u32 v{t}, s{sT2}, v{t}
    v_mul_u32_u24 v{t}, 0x500, v{t}
    v_lshl_add_u32 v{vx[0]}, v{t+1}, 4, v{t}
    s_mul_i32 s{sMz}, s{sK}, 3072
    v_xor_b32 v{vx[1]}, 64, v{vx[0]}
    s_lshl_b32 s{sT2}, s{sMz}, 4
    v_add_u32 v{vx[1]}, {8*1280-1024}, v{vx[1]}
    v_lshlrev_b32 v{vA[0]}, 4, v0
    """)
    for i in range(3):
        st(f"""v_add_u32 v{t}, {64*i}, v0
        v_mul_u32_u24 v{t}, 5462, v{t}
        v_lshrrev_b32 v{t}, 16, v{t}
        v_mul_u32_u24 v{t}, {3072-192}, v{t}
        v_add3_u32 v{vw[i]}, v{t}, v{vA[0]}, s{sT2}""")
    if cfg.get("stag", 1): st(f"""
    s_mul_i32 s{sT}, s{S_TG}, 26
    s_lshr_b32 s{sT}, s{sT}, 8
    s_mul_i32 s{sT}, s{sT}, 10
    s_sub_u32 s{sCw}, s{S_TG}, s{sT}""")
    else: st(f"s_mov_b32 s{sCw}, 0")
    st(f"""
    s_lshl_b32 s{sXo}, s{sCw}, 7
    s_lshl_b32 s{sMx}, s{sK}, 11
    s_add_u32 s{sMx}, s{sMx}, {X0}
    s_mul_i32 s{sMk}, s{sK}, 640
    v_add_u32 v{vk}, s{sMk}, v{vA[0]}
    s_mul_i32 s{sT}, s{S_J}, 192
    s_add_u32 s{sT}, s{sT}, 1536
    s_sub_u32 s{sW+2}, {640*3072}, s{sT}
    s_mov_b32 s{sW+3}, 0x20000
    s_mov_b32 s{sX+2}, {2048*1280}
    s_mov_b32 s{sX+3}, 0x20000
    s_mov_b32 s{sKW+2}, 25600
    s_mov_b32 s{sKW+3}, 0x20000
    s_waitcnt lgkmcnt(0)
    s_mov_b32 s{sX}, s{P_X}
    s_mov_b32 s{sX+1}, s{P_X+1}
    s_add_u32 s{sW}, s{P_WIN}, s{sT}
    s_addc_u32 s{sW+1}, s{P_WIN+1}, 0
    s_bitcmp1_b32 s{S_J}, 0
    s_cselect_b32 s{sKW}, s{P_WV}, s{P_WK}
    s_cselect_b32 s{sKW+1}, s{P_WV+1}, s{P_WK+1}
    """)
    def dX(i):
        return [(f"""s_add_u32 m0, s{sMx}, {xblk(i)}
        s_add_u32 s{sT}, s{sXo}, 128
        buffer_load_dwordx4 v{vx[0]}, {s(sX,4)}, s{sXo} offen lds
        buffer_load_dwordx4 v{vx[1]}, {s(sX,4)}, s{sXo} offen offset:1024 lds
        s_cmp_eq_u32 s{sT}, 1280
        s_cselect_b32 s{sXo}, 0, s{sT}""", f"x{i}")]
    def dW(q):
        L = []; Q = q >= 20; x = ""
        if q < 10: L.append(lambda st_: a(f"""s_cmp_ge_u32 s{S_J}, 2
            s_cbranch_scc1 {name}_nk{q}
            s_add_u32 m0, s{sMk}, {POS[q]+12288}
            s_mul_i32 s{sO}, s{sCw}, 2560
            s_mov_b32 exec_hi, 0xff
            buffer_load_dwordx4 v{vk}, {s(sKW,4)}, s{sO} offen lds
            s_mov_b32 exec_hi, -1
            {name}_nk{q}:"""))
        if q == 10: x = f"s_sub_u32 s{sW}, s{sW}, 1536\n s_subb_u32 s{sW+1}, s{sW+1}, 0\n"
        if q == 20: x = f"""s_mul_i32 s{sT}, s{S_J}, 160
            s_add_u32 s{sW}, s{P_WQ}, s{sT}
            s_addc_u32 s{sW+1}, s{P_WQ+1}, 0
            s_sub_u32 s{sW+2}, {640*1280}, s{sT}\n"""
        x += f"s_add_u32 m0, s{sMq if Q else sMz}, {POS[q]}\n s_mul_i32 s{sO}, s{sCw}, {64*(1280 if Q else 3072)}\n"
        for i in range(3):
            if Q and i == 2: x += "s_mov_b32 exec_hi, 0\n"
            x += f"buffer_load_dwordx4 v{(vq if Q else vw)[i]}, {s(sW,4)}, s{sO} offen offset:{1024*i} lds\n"
            if i == 0: x += f"s_add_u32 s{sCw}, s{sCw}, 1\n s_cmp_eq_u32 s{sCw}, 10\n s_cselect_b32 s{sCw}, 0, s{sCw}"
            if Q and i == 2: x += "s_mov_b32 exec_hi, -1"
            L.append((x, f"w{q}")); x = ""
        return L
    st(f"s_mov_b32 s{sN}, s{sXo}")
    n0 = cfg.get("n0", 3); nb = cfg.get("nb", 2); xq = list(range(10)); wq = list(range(30))
    def issue(b, n):
        L = []
        for i in range(n):
            if xq: L += dX(xq.pop(0))
            if wq and FREE[wq[0]] <= b: L += dW(wq.pop(0))
        return L
    st.run(issue(-1, n0))
    srd(a, sWS, P_WS, WS_END)
    st(f"s_mov_b32 s{sT}, {hx(WS_EP)}\n s_load_dword s{sTag}, {s(P_WS,2)}, s{sT}")
    st(f"""
    s_mul_i32 s{sT}, s{sK}, 320
    s_add_u32 s{sT}, s{sT}, s{sN}
    v_add_u32 v{vg}, s{sT}, v{vA[0]}
    v_subrev_u32 v{t}, 1280, v{vg}
    v_min_u32 v{vg}, v{vg}, v{t}
    s_mul_i32 s{sMq}, s{sK}, 2560
    s_lshl_b32 s{sT2}, s{sMq}, 3
    """)
    for i in range(3):
        st(f"""v_add_u32 v{t}, {64*i}, v0
        v_mul_u32_u24 v{t}, 6554, v{t}
        v_lshrrev_b32 v{t}, 16, v{t}
        v_mul_u32_u24 v{t+1}, 160, v{t}
        v_sub_u32 v{t+1}, v{vA[0]}, v{t+1}
        v_and_b32 v{t+2}, 8, v{t}
        v_bfe_u32 v{t+3}, v{t}, 1, 2
        v_and_b32 v{t}, 1, v{t}
        v_lshl_add_u32 v{t}, v{t}, 2, v{t+3}
        v_add_u32 v{t}, v{t}, v{t+2}
        v_mul_u32_u24 v{t}, 0x500, v{t}
        v_add3_u32 v{vq[i]}, v{t}, v{t+1}, s{sT2}""")
    E["common"](st)
    kv_addr(st, t)
    st(f"""
    s_add_u32 s{sKVb}, s{sMz}, {KV0}
    v_add_u32 v{vz}, s{sMz}, v{vA[0]}
    v_add_u32 v{aQx}, {QX}, v{vz}
    s_lshr_b32 s{sKVo}, s{S_TG}, 1
    s_mul_i32 s{sKVo}, s{sKVo}, {KVS}
    s_add_u32 s{sKVo}, s{sKVo}, {hx(WS_KV)}
    v_add_u32 v{vA[1]}, 0x1000, v{vA[0]}
    s_mov_b32 s{sCnt}, 0x8000
    s_lshl_b32 s{sFl}, s{sK}, 8
    s_add_u32 s{sFl}, s{sFl}, {hx(WS_F1)}
    v_lshlrev_b32 v{t0}, 2, v0
    s_lshl_b32 s{sT}, s{S_J}, 2
    s_add_u32 s{sT}, s{sT}, s{sK}
    s_lshl_b32 s{sF4}, s{sT}, 7
    s_add_u32 s{sF4}, s{sF4}, {hx(WS_FLAG+4096)}
    s_mul_i32 s{sPk}, s{sT}, {11*5120}
    s_add_u32 s{sPk}, s{sPk}, {hx(WS_PK)}
    s_mul_i32 s{sT}, s{sK}, 6144
    s_add_u32 s{sT}, s{sT}, {hx(WS_ACT+20*1024)}
    """)
    for i in range(4): st(f"s_add_u32 s{sAct[i]}, s{sAct[i]}, s{sT}")
    def kv(c):
        L = [(f"s_add_u32 m0, s{sKVb}, {slot(c)}\n s_nop 0\n" if i == 0 else "") + f"buffer_load_dwordx4 v{vz}, {s(sWS,4)}, s{sKVo} offen offset:{1024*i} sc1 lds" for i in range(3)]
        L[2] += f"\n s_add_u32 s{sKVo}, s{sKVo}, {KVS}\n s_cmp_eq_u32 s{sKVo}, {hx(WS_KV+16*KVS)}\n s_cselect_b32 s{sKVo}, {hx(WS_KV)}, s{sKVo}"
        return [(x, f"kv{c}") for x in L]
    fl = lambda sF: f"buffer_load_dword v{t1}, v{t0}, {s(sWS,4)}, s{sF} offen sc1"
    polls = []
    def poll(nm, sF, k):
        def f(st_):
            st_(f"{name}_{nm}poll:"); st_.w("F")
            st_(f"v_cmp_ne_u32 vcc, s{sTag}, v{t1}\n s_cbranch_vccnz {name}_{nm}retry\n {name}_{nm}ok:"); polls.append((nm, sF))
            if k: stamp(a, k)
        return f
    flag = lambda tag, sF, o=0: ["s_mov_b64 exec, 1", ("@", tag), f"buffer_store_dword v{gr+1}, off, {s(sWS,4)}, s{sF} sc1\n s_mov_b64 exec, -1"]
    ex = [[] for b in range(30)]
    def put(items, w0, w1):
        for i, it in enumerate(items): x = w0 + (w1-w0)*(i+0.5)/len(items); ex[int(x)].append((x, it))
    h, e, tok = t+1, t+2, t+3
    put([f"""
    v_lshrrev_b32 v{h}, 5, v0
    v_bfe_u32 v{e}, v0, 2, 2
    v_and_b32 v{tok}, 31, v0
    v_and_b32 v{t+5}, 3, v0
    s_lshl_b32 s{sT}, s{sTH}, 1
    s_add_u32 s{sT}, s{sT}, s{sHP}
    s_lshl_b32 s{sT}, s{sT}, 9
    s_add_u32 s{sT}, s{sT}, {STX}
    v_lshl_add_u32 v{aS}, v0, 3, s{sT}""", f"""
    s_lshl_b32 s{sT}, s{sK}, 10
    s_add_u32 s{sT}, s{sT}, {LNS}
    v_lshl_add_u32 v{aLw}, v{tok}, 5, s{sT}
    v_lshl_add_u32 v{aLw}, v{h}, 3, v{aLw}
    v_lshrrev_b32 v{t+6}, 4, v0
    v_lshl_add_u32 v{aLr}, v{t+6}, 3, v{e}
    v_lshl_add_u32 v{aLr}, v{aLr}, 5, s{sT}
    v_lshl_add_u32 v{aLr}, v{t+5}, 3, v{aLr}""", f"""
    v_mul_u32_u24 v{vZn}, 3072, v{h}
    v_and_b32 v{t+6}, 1, v{t+6}
    v_lshl_add_u32 v{vZn}, v{t+6}, 9, v{vZn}
    v_and_b32 v{t+6}, 7, v0
    v_lshl_add_u32 v{vZn}, v{t+6}, 4, v{vZn}
    v_bfe_u32 v{t+6}, v0, 3, 1
    v_lshl_add_u32 v{vZn}, v{t+6}, 8, v{vZn}
    s_lshl_b32 s{sT}, s{sK}, 12
    s_add_u32 s{sT}, s{sT}, {Z1P}
    v_add_u32 v{aPark}, s{sT}, v{vA[0]}
    v_add_u32 v{aTX}, {TX}, v{vz}""", f"""
    s_lshl_b32 s{sT}, s{S_TG}, 1
    s_add_u32 s{sT}, s{sT}, s{sTH}
    s_lshl_b32 s{sSt}, s{sT}, 12
    s_add_u32 s{sSt}, s{sSt}, {hx(WS_ST2)}
    s_mul_i32 s{sZs}, s{sT}, 6144
    s_mul_i32 s{sT}, s{S_J}, {128*3072}
    s_add_u32 s{sZs}, s{sZs}, s{sT}
    s_lshl_b32 s{sT}, s{sHP}, 7
    s_add_u32 s{sZs}, s{sZs}, s{sT}
    s_add_u32 s{sZs}, s{sZs}, {hx(WS_Z2N)}""", f"""
    s_lshl_b32 s{sT}, s{S_J}, 5
    s_add_u32 s{sT}, s{sT}, s{S_TG}
    s_lshl_b32 s{sT}, s{sT}, 2
    s_add_u32 s{sT}, s{sT}, s{sK}
    s_lshl_b32 s{sT}, s{sT}, 2
    s_add_u32 s{sF2}, s{sT}, {hx(WS_FLAG)}
    s_lshl_b32 s{sT}, s{S_TG}, 2
    s_add_u32 s{sT}, s{sT}, s{sK}
    s_lshl_b32 s{sT}, s{sT}, 5
    s_add_u32 s{sF3}, s{sT}, {hx(WS_FLAG+8192)}""", f"""
    s_lshl_b32 s{sT2}, s{sHP}, 5
    s_sub_u32 s{sT2}, 32, s{sT2}
    v_cmp_gt_u32 vcc, s{sT2}, v0
    s_lshl_b32 s{sT}, s{S_J}, 9
    v_add_u32 v{t+6}, s{sT}, v{vA[0]}
    v_cndmask_b32 v{vSp}, -4.0, v{t+6}, vcc
    s_mov_b32 s{sK2}, {fl_(-GK2)}
    s_mov_b32 s{sK2+1}, {fl_(-GK2)}
    v_mov_b32 v{vK1}, {fl_(-GK1)}
    v_mov_b32 v{vK1+1}, {fl_(-GK1)}
    v_mov_b64 {v(sm,2)}, 0
    v_mov_b64 {v(sm+2,2)}, 0""",
    f"""s_and_b32 s{sT}, s{S_TG}, 7
    s_lshl_b32 s{sT}, s{sT}, 2
    s_add_u32 s{sT}, s{sT}, s{sK}
    s_lshr_b32 s{sT2}, s{S_TG}, 3
    s_lshl_b32 s{sN}, s{S_J}, 2
    s_add_u32 s{sN}, s{sN}, s{sT2}
    s_mul_i32 s{sN}, s{sN}, 55
    s_add_u32 s{sN}, s{sN}, s{sT}
    s_lshl_b32 s{sN}, s{sN}, 10
    s_add_u32 s{sPs[0]}, s{sN}, {hx(WS_PK)}
    s_add_u32 s{sPs[1]}, s{sN}, {hx(WS_PK+30*1024)}
    s_cmp_lt_u32 s{sT}, 30
    s_cselect_b32 s{sPs[0]}, s{sPs[0]}, {hx(WS_END)}
    s_cmp_lt_u32 s{sT}, 25
    s_cselect_b32 s{sPs[1]}, s{sPs[1]}, {hx(WS_END)}
    s_mul_i32 s{sE}, s{sT}, 52
    s_lshr_b32 s{sE}, s{sE}, 8
    s_sub_u32 s{sN}, s{S_J}, s{sE}
    s_mul_i32 s{sN}, s{sN}, 5
    s_add_u32 s{sN}, s{sN}, s{sT}
    s_lshl_b32 s{sN}, s{sN}, 5
    v_and_b32 v{t}, 1, v0
    v_lshl_add_u32 v{t}, v{t}, 4, s{sN}
    v_bfe_u32 v{t+4}, v0, 1, 2
    v_bfe_u32 v{t+5}, v0, 3, 1
    v_bfe_u32 v{t+6}, v0, 4, 1""", f"""
    s_lshr_b32 s{sT2}, s{S_TG}, 3
    s_mul_i32 s{sN}, s{sT2}, 12
    s_add_u32 s{sN}, s{sN}, s{sE}
    s_cmp_ge_u32 s{sE}, 3
    s_cselect_b32 s{sT}, 3, 0
    s_add_u32 s{sN}, s{sN}, s{sT}
    s_lshl_b32 s{sN}, s{sN}, 4
    v_lshl_add_u32 v{vPk[0]}, v{t+5}, 2, v{t+4}
    v_mad_u32_u24 v{vPk[0]}, v{t+6}, 48, v{vPk[0]}
    v_lshl_add_u32 v{vPk[0]}, v{h}, 3, v{vPk[0]}
    v_add_u32 v{vPk[0]}, s{sN}, v{vPk[0]}
    v_mul_u32_u24 v{vPk[0]}, 0x500, v{vPk[0]}
    v_add_u32 v{vPk[0]}, v{vPk[0]}, v{t}""", f"""
    s_and_b32 s{sT}, s{sE}, 1
    s_and_b32 s{sN}, s{sE}, 2
    s_lshl_b32 s{sN}, s{sN}, 1
    s_add_u32 s{sN}, s{sN}, s{sT}
    s_mul_i32 s{sN}, s{sN}, 20
    s_cmp_eq_u32 s{sE}, 4
    s_cselect_b32 s{sN}, 16, s{sN}
    s_cselect_b32 s{sT}, 20, 4
    v_mad_u32_u24 v{vPk[1]}, v{t+5}, s{sT}, v{t+4}
    s_cselect_b32 s{sT}, 80, 40
    v_mad_u32_u24 v{vPk[1]}, v{t+6}, s{sT}, v{vPk[1]}
    s_cselect_b32 s{sT}, 40, 8
    v_mad_u32_u24 v{vPk[1]}, v{h}, s{sT}, v{vPk[1]}
    s_lshr_b32 s{sT2}, s{S_TG}, 3
    s_mul_i32 s{sT2}, s{sT2}, 160
    s_add_u32 s{sN}, s{sN}, s{sT2}
    v_add_u32 v{vPk[1]}, s{sN}, v{vPk[1]}
    v_mul_u32_u24 v{vPk[1]}, 0x500, v{vPk[1]}
    v_add_u32 v{vPk[1]}, v{vPk[1]}, v{t}
    s_lshl_b32 s{sT}, s{sK}, 11
    s_add_u32 s{sMk}, s{sT}, {PKS}
    v_lshl_add_u32 v{aPk}, v0, 3, s{sMk}""", f"""
    s_waitcnt lgkmcnt(0)
    s_add_u32 s{sTag}, s{sTag}, {hx(TAGC)}
    v_mov_b32 v{gr+1}, s{sTag}
    v_mov_b32 v{gr+3}, s{sTag}
    s_lshl_b32 s{sT}, s{S_TG}, 1
    s_add_u32 s{sT}, s{sT}, s{S_J}
    s_lshl_b32 s{sT}, s{sT}, 2
    s_add_u32 s{sT}, s{sT}, s{sK}
    s_lshl_b32 s{sT}, s{sT}, 2
    s_add_u32 s{sXo}, s{sT}, {hx(WS_F1)}
    s_cmp_lt_u32 s{S_J}, 2
    s_cselect_b32 s{sXo}, s{sXo}, {hx(WS_END)}"""], 6, 11)
    gate = (f"""s_mul_i32 s{sT}, s{sK}, 320
    s_add_u32 m0, s{sT}, {GATE}
    s_mov_b32 s{sX}, s{P_GW}
    s_mov_b32 s{sX+1}, s{P_GW+1}
    s_mov_b32 s{sX+2}, 1280
    s_mov_b64 exec, 0xfffff
    buffer_load_dwordx4 v{vg}, {s(sX,4)}, 0 offen lds
    s_mov_b64 exec, -1""", "x20")
    def kvs(st_):
        a(f"""s_cmp_lt_u32 s{S_J}, 2
        s_cbranch_scc1 {name}_kvs
        {name}_kvr:""")
        st_.vm["kvs"] = 0
    PK = cfg.get("gpk", 0); g2 = C("g2", 159); g1 = C("g1", 255)
    rdx = lambda n: (f"ds_read_b128 {v(raw+4*n,4)}, v{aTX} offset:{1024*n}", f"tx{n}")
    for b in (11, 21): put([rdx(0), rdx(1)], b, b); put([rdx(2)] + ([kvs] if b == 11 else []), b+1, b+1)
    put(sum([gelu(Z2, g, sK2, PK, ("v_add_f32 {s1}, {s1}, {x}", "v_fma_f32 {s2}, {x}, {x}, {s2}")) for g in range(3)], []) +
        [f"v_add_f32 v{sm}, v{sm}, v{sm+1}\n v_add_f32 v{sm+1}, v{sm+2}, v{sm+3}\n v_mov_b64 {v(tg_,2)}, {v(sm,2)}\n s_nop 1\n v_permlane32_swap_b32 v{sm}, v{tg_}\n v_permlane32_swap_b32 v{sm+1}, v{tg_+1}",
         (f"v_add_f32 v{sm}, v{sm}, v{tg_}\n v_add_f32 v{sm+1}, v{sm+1}, v{tg_+1}\n ds_write_b64 v{aS}, {v(sm,2)}", "stx")], 11.1, g2)
    put([(f"ds_read_b64 {v(tg_,2)}, v{aS} offset:512", "sty"),
         [("@", "sty"), f"""v_add_f32 v{gr}, v{sm}, v{tg_}
         v_add_f32 v{gr+2}, v{sm+1}, v{tg_+1}
         buffer_store_dwordx4 {v(gr,4)}, v{vSp}, {s(sWS,4)}, s{sSt} offen sc1"""]], int(g2)+1, int(g2)+1)
    put([flag("kvs", sXo)], C("f1p", 160), C("f1p", 160))
    put(sum([gelu(Z1, g, sK2, PK, ("v_cvt_pk_bf16_f32 {p}, {x0}, {x1}",)) for g in range(3)], []), 21.1, g1)
    put([(f"ds_write_b128 v{aPark}, {v(z1p+4*n,4)} offset:{1024*n}", "stx") for n in range(3)], 29.0, 29.1)
    sld = [(f"buffer_load_dwordx4 {v(ssr[i],4)}, v{vA[0]}, {s(sWS,4)}, s{sSt} offen offset:{1024*i} sc1", "ss") for i in range(4)]
    m, n_ = tg_+2, tg_+3; mu = sm
    def schk(st_):
        st_(f"{name}_schk:"); st_.w("ss")
        G_ = [x+o for x in ssr for o in (1, 3)]
        for op, d in (("max", m), ("min", n_)):
            st_(f"v_{op}3_u32 v{d}, v{G_[0]}, v{G_[1]}, s{sTag}")
            for i in (2, 4, 6): st_(f"v_{op}3_u32 v{d}, v{G_[i]}, v{G_[i+1]}, v{d}")
        st_(f"v_cmp_ne_u32 vcc, v{m}, v{n_}\n s_cbranch_vccnz {name}_sretry\n {name}_sok:")
        stamp(a, 4)
    LN = [schk]
    for o in (0, 2): LN += [f"v_add_f32 v{m}, v{ssr[0]+o}, v{ssr[1]+o}\n v_add_f32 v{n_}, v{ssr[2]+o}, v{ssr[3]+o}\n v_add_f32 v{mu+o//2}, v{m}, v{n_}"]
    LN += [f"v_mov_b64 {v(m,2)}, {v(mu,2)}\n s_nop 1\n v_permlane32_swap_b32 v{mu}, v{m}\n v_permlane32_swap_b32 v{mu+1}, v{m+1}",
           f"v_add_f32 v{mu}, v{mu}, v{m}\n v_add_f32 v{mu+1}, v{mu+1}, v{m+1}\n v_mul_f32 v{mu}, {fl_(1/768)}, v{mu}\n v_mul_f32 v{mu+1}, {fl_(1/768)}, v{mu+1}",
           f"v_fma_f32 v{mu+1}, -v{mu}, v{mu}, v{mu+1}\n v_max_f32 v{mu+1}, 0, v{mu+1}\n v_add_f32 v{mu+1}, {fl_(1e-5)}, v{mu+1}\n v_rsq_f32 v{mu+1}, v{mu+1}\n s_nop 0\n v_mul_f32 v{mu}, v{mu}, v{mu+1}"]
    zst = lambda n: [("@", "tr"), (f"buffer_store_dwordx4 {v(Z2+8*n,4)}, v{vZn}, {s(sWS,4)}, s{sZs} offen offset:{1024*n} sc1", "zn")]
    for n in range(3):
        for a_ in range(2):
            q = Z2+8*n+4*a_
            LN += [f"v_fma_f32 v{q+i}, v{q+i}, v{mu+1}, -v{mu}\n v_fma_f32 v{q+i+1}, v{q+i+1}, v{mu+1}, -v{mu}" for i in (0, 2)]
            LN += [f"v_cvt_pk_bf16_f32 v{q}, v{q}, v{q+1}\n v_cvt_pk_bf16_f32 v{q+1}, v{q+2}, v{q+3}\n ds_write_b64 v{aLw}, {v(q,2)} offset:{16*a_}"]
            if a_ == 0 and n: LN.append(zst(n-1))
        LN += [(f"ds_read_b64_tr_b16 {v(Z2+8*n,2)}, v{aLr}\n ds_read_b64_tr_b16 {v(Z2+8*n+2,2)}, v{aLr} offset:128", "tr")]
    LN.append(zst(2))
    sl, l0, l1 = C("sl", 230), C("l0", 270), C("l1", 295); assert l0 >= g1
    put(sld, sl, sl+0.5); put(LN, l0, l1)
    b1 = cfg.get("b1", 21); b2 = cfg.get("b2", 24)
    assert b2 >= 22
    for b in range(30):
        if b == b2: st.run(poll("k", sFl, 3))
        lstamp(a, 2*b); st.w(f"w{b}", f"x{b}", "stx")
        tb(b, 1); st("s_barrier"); tb(b, 0); lstamp(a, 2*b+1)
        if b in (0, 10, 20): stamp(a, {0: 1, 10: 2, 20: 6}[b])
        D = ([(fl(sFl), "F")] if b == b1 else []) + issue(b, nb) + ([gate] if b == 8 else [])
        for c in range(3):
            if b == max(b2+c, [22, 24, 25][c]): D += kv(c)
        L = [(b + 0.01 + C("dsp", 7)*i/len(D), x) for i, x in enumerate(D)] + ex[b]
        for x in sorted(L, key=lambda y: y[0]): st.run(x[1])
    assert not xq and not wq
    lstamp(a, 60); st.w("kv0", "stx")
    st("s_barrier"); stamp(a, 7); lstamp(a, 61); lstamp(a, None)
    for i in range(3): st(f"ds_read_b128 {v(r.Q16[0]+4*i,4)}, v{aQx} offset:{1024*i}", "Q")
    pb = cfg.get("pb", 0)
    sc = attention(1, [[0]*4]*16, None, lambda c: [f"kv{c+1}"], lambda c: [(lambda st_, c=c: stamp(a, 8+c))], lambda c, i: pb if (c, i) == (0, 0) and pb != cfg.get("p2", 0) else None)
    for c in range(13): sc.place(kv(c+3), c+1, 0.02, 0.15)
    WU = lambda ks, c: BIG+4*(5*ks+c)
    w0 = cfg.get("w0", 5); w1 = cfg.get("w1", 13); L = pkloads(BIG, 30, vA[0], sWS, sPk, "wu")
    span(sc, [flag("zn", sF2)], C("f2", 5), C("f2", 5), 0)
    pkl = lambda i, ptr, n: (f"""s_mov_b32 s{sX}, s{ptr}
    s_mov_b32 s{sX+1}, s{ptr+1}
    s_add_u32 m0, s{sMk}, {1024*i}
    s_mov_b32 s{sX+2}, {n*1280}
    buffer_load_dwordx4 v{vPk[i]}, {s(sX,4)}, 0 offen lds""", "pk")
    span(sc, [pkl(0, P_WOUT, 768), pkl(1, P_WO, 640)], C("k0", 6), C("k0", 6)+0.3, 0)
    span(sc, [[("@", "pk")] + [(f"ds_read_b64_tr_b16 {v(pkd+2*i,2)}, v{aPk} offset:{512*i}", "pr") for i in range(4)]] +
         [[("@", "pr"), (f"buffer_store_dwordx4 {v(pkd+4*i,4)}, v{vA[0]}, {s(sWS,4)}, s{sPs[i]} offen sc1", "ps")] for i in range(2)], C("k1", 22), C("k1", 22)+0.3, 0)
    span(sc, [[f"s_add_u32 s{sF2}, s{sF2}, 0x1000"] + flag("ps", sF2)], C("k2", 32), C("k2", 32), 0)
    span(sc, [(f"v_and_b32 v{t0}, 0x7f, v{t0}\n" + fl(sF4), "F")], w0-0.7, w0-0.7, 0)
    span(sc, [poll("w", sF4, 0)], w0+0.18, w0+0.18, 0)
    assert C("k2", 32) < w0-0.7
    for w in range(w0, w1): sc.place(L[30*(w-w0)//(w1-w0):30*(w+1-w0)//(w1-w0)], w, 0.2, 0.9)
    act = [224, 12, 36, 60]
    def ald(i): return [(f"buffer_load_dwordx4 {v(act[i]+4*ks,4)}, v{vA[ks>>2]}, {s(sWS,4)}, s{sAct[i]} offen offset:{1024*(ks&3)} sc1", f"{name}_u{i}") for ks in range(6)]
    aP = [5, 6, 7, 8, 9]; aO = 10
    sc.place([f"""s_mul_i32 s{sT}, s{sK}, 6144
    v_add_u32 v{aO}, s{sT}, v{r.aK}
    s_mul_i32 s{sT}, s{sK}, 5120
    v_add_u32 v{aP[4]}, s{sT}, v{r.aK}"""] + [f"""s_xor_b32 s{sT}, s{sK}, {d}
    s_mul_i32 s{sT}, s{sT}, 15360
    s_add_u32 s{sT}, s{sT}, {PB0}
    v_add_u32 v{aP[d]}, s{sT}, v{vA[0]}""" for d in range(4)], 15, 0.3, 0.8)
    span(sc, [(f"v_and_b32 v{t0}, 0x1f, v{t0}\n" + fl(sF3), "F")], C("u3", 157), C("u3", 157), 0)
    sc.place([poll("u", sF3, 0)] + ald(0), 16, cfg.get("u0", 50)/100, 0.95)
    sc.emit(st)
    for th in range(2):
        if th: st("s_nop 8")
        for i in range(3): st(f"ds_write_b128 v{aO}, {v(r.O[th]+4*i,4)} offset:{(3*th+i)*1024}", "po")
    st.run(ald(1))
    st.w("po")
    stamp(a, 24); st("s_barrier"); stamp(a, 25)
    st.run(ald(2) + ald(3))
    ac = [84, 224, 84, 224]; tc = 250; pr = [12, 36, 84]
    for i in range(4):
        st.w(f"{name}_u{i}")
        stamp(a, 26+i)
        ex = {}
        if i > 0:
            for c in range(5): ex[c+2] = (f"ds_write_b128 v{aP[0]}, {v(ac[i-1]+4*c,4)} offset:{(i-1)*5120+c*1024}", "pw")
        if i == 3:
            ex[9] = [("@", "pw"), "s_barrier"]
            for c in range(5):
                for d in range(3): ex[10+3*c+d] = (f"ds_read_b128 {v(pr[d]+4*c,4)}, v{aP[d+1]} offset:{d*5120+c*1024}", f"pr{c}")
        for ks in range(6):
            for c in range(5):
                q = ac[i]+4*c
                st(f"{MF16} {v(q,4)}, {v(WU(ks,c),4)}, {v(act[i]+4*ks,4)}, {'0' if ks == 0 else v(q,4)}")
                if 5*ks+c in ex: st.run(ex[5*ks+c])
    for c in range(5):
        st.w(f"pr{c}"); q = ac[3]+4*c
        for h2 in (0, 2): st(f"v_pk_add_f32 {v(pr[0]+4*c+h2,2)}, {v(pr[0]+4*c+h2,2)}, {v(pr[1]+4*c+h2,2)}")
        for h2 in (0, 2): st(f"v_pk_add_f32 {v(pr[0]+4*c+h2,2)}, {v(pr[0]+4*c+h2,2)}, {v(pr[2]+4*c+h2,2)}")
        for h2 in (0, 2): st(f"v_pk_add_f32 {v(q+h2,2)}, {v(q+h2,2)}, {v(pr[0]+4*c+h2,2)}")
        st(f"ds_write_b128 v{aP[4]}, {v(q,4)} offset:{c*1024}")
    st("s_waitcnt lgkmcnt(0)")
    stamp(a, 30)
    st("s_barrier")
    if TS[0] == 1: st(f"v_writelane_b32 v255, s{sCnt}, 5")
    wend(a, name)
    x = St(a)
    for nm, sF in polls: x(f"""{name}_{nm}retry:
    s_cmp_eq_u32 s{sCnt}, 0
    s_cbranch_scc1 {name}_{nm}ok
    s_sub_u32 s{sCnt}, s{sCnt}, 1
    {fl(sF)}
    s_waitcnt vmcnt(0)
    s_branch {name}_{nm}poll""")
    x(f"{name}_sretry:\n s_cmp_eq_u32 s{sCnt}, 0\n s_cbranch_scc1 {name}_sok\n s_sub_u32 s{sCnt}, s{sCnt}, 1")
    x.run(sld); x(f"s_waitcnt vmcnt(0)\n s_branch {name}_schk")
    T = kvd+4
    x(f"""{name}_kvs:
    s_lshr_b32 s{sT}, s{S_TG}, 1
    s_mul_i32 s{sN}, s{sT}, {KVS}
    s_and_b32 s{sT}, s{S_TG}, 1
    s_lshl_b32 s{sT2}, s{sT}, 1
    s_add_u32 s{sT2}, s{sT2}, s{sTH}
    s_cmp_eq_u32 s{S_J}, 1
    s_cbranch_scc1 {name}_kvv
    s_lshl_b32 s{sT2}, s{sT2}, 10
    s_lshl_b32 s{sT}, s{sT}, 9
    s_add_u32 s{sT}, s{sT}, 0x1000
    s_cmp_eq_u32 s{sHP}, 0
    s_cselect_b32 s{sT}, s{sT2}, s{sT}
    s_cselect_b32 s{sT2}, 16, 0x400
    v_add_u32 v{T}, s{sT2}, v{aLw}
    ds_read_b64 {v(kvd,2)}, v{aLw}
    ds_read_b64 {v(kvd+2,2)}, v{T}
    s_add_u32 s{sN}, s{sN}, s{sT}
    s_add_u32 s{sN}, s{sN}, {hx(WS_KV)}
    s_lshl_b32 s{sT}, s{sK}, 5
    s_sub_u32 s{sT}, 96, s{sT}
    v_cmp_gt_u32 vcc, s{sT}, v0
    s_nop 1
    v_cndmask_b32 v{T}, -4.0, v{vA[0]}, vcc
    s_waitcnt lgkmcnt(0)
    buffer_store_dwordx4 {v(kvd,4)}, v{T}, {s(sWS,4)}, s{sN} offen sc1
    s_branch {name}_kvr
    {name}_kvv:
    v_bfe_u32 v{T}, v0, 4, 1
    v_lshlrev_b32 v{T}, 7, v{T}
    v_sub_u32 v{T}, v{aLr}, v{T}
    ds_read_b64_tr_b16 {v(kvd,2)}, v{T}
    ds_read_b64_tr_b16 {v(kvd+2,2)}, v{T} offset:256
    s_mul_i32 s{sT2}, s{sT2}, 1536
    s_add_u32 s{sN}, s{sN}, s{sT2}
    s_add_u32 s{sN}, s{sN}, {hx(WS_KV+5120)}
    s_lshl_b32 s{sT}, s{sHP}, 4
    v_and_b32 v{T+1}, 15, v0
    v_add_u32 v{T+1}, s{sT}, v{T+1}
    v_lshrrev_b32 v{T+2}, 4, v0
    v_mul_u32_u24 v{T+2}, 0x180, v{T+2}
    v_lshl_add_u32 v{T+2}, v{T+1}, 4, v{T+2}
    v_mov_b32 v{T+3}, 0x3f803f80
    v_cmp_eq_u32 vcc, 20, v{T+1}
    v_cmp_gt_u32 {s(sE,2)}, 24, v{T+1}
    s_nop 0
    v_cndmask_b32 v{T+3}, 0, v{T+3}, vcc
    v_cmp_gt_u32 vcc, 20, v{T+1}
    v_cndmask_b32 v{T+2}, -4.0, v{T+2}, {s(sE,2)}
    s_waitcnt lgkmcnt(0)""")
    for i in range(4): x(f"v_cndmask_b32 v{kvd+i}, v{T+3}, v{kvd+i}, vcc")
    x(f"""buffer_store_dwordx4 {v(kvd,4)}, v{T+2}, {s(sWS,4)}, s{sN} offen sc1
    s_branch {name}_kvr""")
```

```python
from kfA1 import *
from kbA import slow_path
def waveA(E, st):
    a = E["a"]; name = E["name"]; cfg = E["cfg"]; S_ = E["S_"]; gS = E["gS"]; cR = E["cR"]; JB = E["JB"]
    sWS, sW, sT, sT2, sO, sN, sK, sTH, sHP, sE, sAct, sTag = [E[k] for k in "sWS sW sT sT2 sO sN sK sTH sHP sE sAct sTag".split()]
    sSP = S_(4); sBS = S_(4); sAr = S_(); sWb = [S_(), S_()]; sB = S_(); sWo = S_(); sZb = S_(); sZn = S_(); sZo = S_(); sFl = S_(); sCnt = S_(); sU = S_(); sOa = S_(); sOx = S_()
    sGm = S_(2); sF3 = S_(); sPk = S_(); sSc = S_(); C = lambda k, d: cfg.get(k, d)/10; FS = cfg.get('fs', 7)
    aW = [4, 5, 6, 7]; vl = 8; vo = [9, 10, 11, 252]; acc = BIG; W = [200, 204]; NZ = 11; Z = [208+4*z for z in range(NZ)]; t0, t1 = 253, 254
    T = 12; vE = 162; vu = 250
    st(f"{name}_A:")
    st(f"v_lshlrev_b32 v{vSt}, 4, v0\n s_setprio {cfg.get('p1', 1)}")
    E["common"](st)
    kv_addr(st, T+4)
    st(f"v_mov_b32 v{T}, v{vSt}")
    st(f"""
    s_mul_i32 s{sAr}, s{sK}, {AA}
    s_lshl_b32 s{sT}, s{S_TG}, 1
    s_add_u32 s{sT}, s{sT}, s{sTH}
    s_lshl_b32 s{sT2}, s{sK}, 10
    s_lshl_b32 s{sWb[0]}, s{sT}, 17
    s_add_u32 s{sWb[0]}, s{sWb[0]}, s{sT2}
    s_xor_b32 s{sWb[1]}, s{sWb[0]}, 0x20000
    s_mul_i32 s{sB}, s{S_J}, {cfg.get("wj", 2)}
    s_add_u32 s{sB}, s{sB}, s{S_TG}
    s_and_b32 s{sB}, s{sB}, 7
    s_lshl_b32 s{sB}, s{sB}, 7
    s_mov_b32 s{sZn}, s{sB}
    s_mul_i32 s{sU}, s{sT}, {88*1024}
    s_add_u32 s{sU}, s{sU}, {hx(WS_ACT)}
    s_lshl_b32 s{sT}, s{S_J}, 2
    s_add_u32 s{sT}, s{sT}, s{sK}
    s_mul_i32 s{sZb}, s{sT}, {8*12288}
    s_add_u32 s{sZb}, s{sZb}, {hx(WS_Z2N)}
    s_lshl_b32 s{sFl}, s{sT}, {FS+5}
    v_lshrrev_b32 v{T+4}, 3, v0
    v_lshlrev_b32 v{T+4}, 12, v{T+4}
    v_lshrrev_b32 v{T+5}, 4, v0
    v_and_b32 v{T+6}, 7, v0
    v_xor_b32 v{T+5}, v{T+5}, v{T+6}
    v_lshl_add_u32 v{vo[0]}, v{T+5}, 4, v{T+4}
    v_xor_b32 v{T+5}, 64, v{vo[0]}
    v_add_u32 v{vo[1]}, {32768-1024}, v{T+5}
    v_add_u32 v{vo[2]}, {2*(32768-1024)}, v{vo[0]}
    v_add_u32 v{vo[3]}, {3*(32768-1024)}, v{T+5}
    v_lshrrev_b32 v{T+4}, 5, v0
    v_bfe_u32 v{T+5}, v0, 1, 3
    v_xor_b32 v{T+5}, v{T+5}, v{T+4}
    v_lshlrev_b32 v{T+5}, 4, v{T+5}
    v_and_b32 v{T+6}, 31, v0
    v_lshl_add_u32 v{T+5}, v{T+6}, 7, v{T+5}
    v_lshlrev_b32 v{t0}, {FS}, v{T+6}
    s_lshl_b32 s{sT}, s{sHP}, 7
    v_xor_b32 v{vl}, s{sT}, v{T}
    s_mov_b32 s{sCnt}, 0x8000
    """)
    for i in range(4): st(f"v_xor_b32 v{aW[i]}, {hx(32*i)}, v{T+5}\n v_add_u32 v{aW[i]}, s{sAr}, v{aW[i]}")
    st(f"""
    s_lshr_b32 s{sT}, s{S_J}, 1
    s_mul_i32 s{sT}, s{sT}, 5120
    s_add_u32 s{sOa}, s{sU}, s{sT}
    s_and_b32 s{sT}, s{S_J}, 1
    s_lshl_b32 s{sT}, s{sT}, 1
    s_add_u32 s{sT}, s{sT}, s{sHP}
    s_lshl_b32 s{sT2}, s{sT}, 8
    s_add_u32 s{sOx}, s{sOa}, s{sT2}
    s_add_u32 s{sOx}, s{sOx}, 4096
    s_lshl_b32 s{sT}, s{sT}, 10
    s_add_u32 s{sOa}, s{sOa}, s{sT}
    s_mul_i32 s{sT}, s{S_J}, 3072
    s_add_u32 s{sU}, s{sU}, s{sT}
    s_lshl_b32 s{sT}, s{sHP}, 9
    s_add_u32 s{sU}, s{sU}, s{sT}
    s_add_u32 s{sU}, s{sU}, {20*1024}
    s_mul_i32 s{sT}, s{sK}, 5120
    s_add_u32 s{sT}, s{sT}, {hx(WS_ACT)}
    """)
    for i in range(4): st(f"s_add_u32 s{sAct[i]}, s{sAct[i]}, s{sT}")
    uaddr = lambda vu, tp: [f"""v_bfe_u32 v{tp}, v0, 4, 1
    v_mul_u32_u24 v{vu}, {44*1024}, v{tp}
    v_and_b32 v{tp}, 15, v0""", f"""v_cmp_gt_u32 vcc, 32, v0
    v_lshl_add_u32 v{vu}, v{tp}, 4, v{vu}
    v_lshrrev_b32 v{tp}, 5, v0
    v_cndmask_b32 v{vu+1}, -4.0, v{vu}, vcc
    v_lshl_add_u32 v{vu}, v{tp}, 8, v{vu}"""]
    h, e, cb, tok = T+1, T+2, T+3, T+4
    st(f"""
    v_lshrrev_b32 v{h}, 5, v0
    v_bfe_u32 v{e}, v0, 2, 2
    v_and_b32 v{tok}, 31, v0
    v_bfe_u32 v{cb}, v0, 4, 1
    v_and_b32 v{T+5}, 3, v0
    v_lshlrev_b32 v{T+5}, 3, v{T+5}
    v_lshl_add_u32 v{cb}, v{cb}, 5, v{T+5}
    v_lshl_add_u32 v{T+6}, v{h}, 3, v{e}
    s_mul_i32 s{sT}, s{sHP}, 96
    v_mul_u32_u24 v{aZ[0]}, 192, v{T+6}
    v_add3_u32 v{aZ[0]}, v{aZ[0]}, v{cb}, s{sT}
    v_mad_u32_u24 v{T+7}, v{T+6}, 40, v{T+5}
    v_add_u32 v{T+6}, v{T+6}, v{e}
    s_mul_i32 s{sT}, s{sHP}, 40
    v_mul_u32_u24 v{aQ}, 160, v{T+6}
    v_add3_u32 v{aQ}, v{aQ}, v{cb}, s{sT}
    v_add_u32 v{aZ[1]}, 0x8000, v{aZ[0]}
    v_lshlrev_b32 v{aG}, 4, v{h}
    v_add_u32 v{aG}, {GATE}, v{aG}
    s_lshl_b32 s{sT}, s{sTH}, 12
    s_add_u32 s{sT}, s{sT}, {X0}
    s_sub_u32 s{sT}, s{sT}, s{sAr}
    s_mov_b32 s{sGm}, 0x100000
    s_mov_b32 s{sGm+1}, 0x100000
    v_mov_b64 {v(r.Q8,2)}, 0
    v_mov_b64 {v(r.Q8+2,2)}, 0
    """)
    for i in range(4): st(f"v_add_u32 v{aX[0][i]}, s{sT}, v{aW[i]}\n v_add_u32 v{aX[1][i]}, 0x10000, v{aX[0][i]}")
    st(f"""
    s_cmp_lt_u32 s{S_J}, 2
    s_cselect_b32 vcc_lo, 0xffff0000, 0
    s_mov_b32 vcc_hi, vcc_lo
    s_lshl_b32 s{sT}, s{sHP}, 5
    v_add_u32 v{T+7}, s{sT}, v{T+7}""")
    for i in range(8): st(f"""v_add_u32 v{T+8}, {768*(i&1)+3072*(i>>1)+64}, v{aZ[0]}
    v_add_u32 v{T+9}, {12288+160*(i&1)+640*(i>>1)}, v{T+7}
    v_cndmask_b32 v{aKV+i}, v{T+8}, v{T+9}, vcc""")
    st(f"""
    s_lshl_b32 s{sT}, s{sK}, 10
    s_add_u32 s{sT}, s{sT}, {LNS}
    v_lshl_add_u32 v{aLw}, v{tok}, 5, s{sT}
    v_lshl_add_u32 v{aLw}, v{h}, 3, v{aLw}
    s_lshl_b32 s{sT}, s{sK}, 12
    s_add_u32 s{sT}, s{sT}, {Z1P}
    v_add_u32 v{aPark}, s{sT}, v{vSt}
    s_mul_i32 s{sT}, s{sK}, 3072
    v_add_u32 v{aS}, s{sT}, v{vSt}
    v_add_u32 v{aTX}, {TX}, v{aS}
    v_add_u32 v{aS}, {QX}, v{aS}
    s_lshl_b32 s{sT}, s{S_TG}, 3
    s_add_u32 s{sT}, s{sT}, s{S_J}
    s_lshl_b32 s{sT}, s{sT}, 2
    s_add_u32 s{sT}, s{sT}, s{sK}
    s_lshl_b32 s{sT}, s{sT}, {FS}
    s_add_u32 s{sF3}, s{sT}, {hx(FL3)}
    s_cmp_eq_u32 s{S_J}, 0
    s_cselect_b32 s{sSc}, {fl(QSCALE)}, 1.0
    s_waitcnt lgkmcnt(0)""")
    srd(a, sWS, P_WS, WS_END); srd(a, sSP, P_WSP, 2048*4096); srd(a, sBS, P_BSP, 4096)
    st(f"s_mov_b32 s{sT}, {hx(WS_EP)}\n buffer_load_dword v{vE}, off, {s(sWS,4)}, s{sT}\n s_barrier", "ep")
    stamp(a, 1); lstamp(a, 1)
    sc = Sched()
    for x in reads(0, sGm) + reads(1, sGm): sc.op(x)
    gemm(sc, sGm)
    sc.place(["s_mov_b32 vcc_lo, 0xcccc0000\n s_mov_b32 vcc_hi, 0xcccc0000"] + [f"""v_add_u32 v{T+8}, {768*(i&1)+16*(i>>1)+16}, v{aZ[0]}
    v_add_u32 v{T+9}, {3072+160*(i&1)+80*(i>>1)}, v{aQ}
    v_cndmask_b32 v{aM+i}, v{T+9}, v{T+8}, vcc
    v_add_u32 v{aM+4+i}, 0x8000, v{aM+i}""" for i in range(4)], 1, 0.1, 0.9)
    sc.place([[("@", "ep"), f"v_readfirstlane_b32 s{sTag}, v{vE}"], f"s_add_u32 s{sTag}, s{sTag}, {hx(TAGC)}"], 8, 0.2, 0.8)
    if not cfg.get("tsb"): sc.place([lambda st_: stamp(a, 2)], 10, 0, 0); sc.place([lambda st_: stamp(a, 6)], 20, 0, 0)
    q = Z2+24
    kvx = sum([[f"v_mul_f32 v{q+2*i}, s{sSc}, v{q+2*i}\n v_mul_f32 v{q+2*i+1}, s{sSc}, v{q+2*i+1}", f"v_cvt_pk_bf16_f32 v{q+i}, v{q+2*i}, v{q+2*i+1}"] +
               [(f"ds_write_b64 v{aLw}, {v(q+i-1,2)} offset:{8*i-8}", "tx")]*(i & 1) for i in range(4)], [])
    hx_ = lambda n: [f"v_cvt_pk_bf16_f32 v{Z2+8*n+i}, v{Z2+8*n+2*i}, v{Z2+8*n+2*i+1}" for i in range(4)] + [(f"ds_write_b128 v{aTX}, {v(Z2+8*n,4)} offset:{1024*n}", "tx")]
    span(sc, hx_(0) + kvx, 11.1, 11.8, 0)
    for n in (1, 2): span(sc, hx_(n), 11.15+n, 11.6+n, 0)
    mark = lambda vu, d: [f"v_mov_b64 {v(d,2)}, -1\n v_mov_b64 {v(d+2,2)}, -1", f"buffer_store_dwordx4 {v(d,4)}, v{vu}, {s(sWS,4)}, s{sOa} offen sc1",
         f"buffer_store_dwordx4 {v(d,4)}, v{vu}, {s(sWS,4)}, s{sOa} offen offset:512 sc1", f"buffer_store_dwordx4 {v(d,4)}, v{vu+1}, {s(sWS,4)}, s{sOx} offen sc1"]
    if C("s0", 302) < 30: span(sc, uaddr(vu, 244) + mark(vu, 244), C("s0", 302), C("s1", 309), 0)
    sc.emit(st)
    st("s_nop 8")
    for ab in range(2):
        for i in range(4): st(f"v_cvt_pk_bf16_f32 v{r.Q16[ab]+i}, v{QA+16*ab+2*i}, v{QA+16*ab+2*i+1}")
        st(f"ds_write_b128 v{aS}, {v(r.Q16[ab],4)} offset:{1024*ab}", "qx")
    st("s_mov_b32 exec_hi, 0")
    for i in range(4): st(f"v_cvt_pk_bf16_f32 v{r.Q8+i}, v{QA+16*(i>>1)+8+2*(i&1)}, v{QA+16*(i>>1)+9+2*(i&1)}")
    st(f"s_mov_b32 exec_hi, -1\n ds_write_b128 v{aS}, {v(r.Q8,4)} offset:2048\n v_mul_f32 v{gl}, {fl(-LOG2E)}, v{QA+8}", "qx")
    ZR = [Z1+i for i in range(16)] + [QA+12+i for i in range(4)] + [QA+28+i for i in range(4)]; zp = 112; k1 = 186; ag = cfg.get("ag", 3)
    g1 = lambda g, pk: (gelu(ZR[8*g:8*g+8], Z2, k1, pk=pk) + [f"v_cvt_pk_bf16_f32 v{zp+4*g+i}, v{ZR[8*g+2*i]}, v{ZR[8*g+2*i+1]}" for i in range(4)] +
                        [f"ds_write_b128 v{aPark}, {v(zp+4*g,4)} offset:{1024*g}"])
    st(f"v_mov_b32 v{k1}, {fl(-GK1)}\n s_mov_b32 s{sGm}, {fl(-GK2)}\n s_mov_b32 s{sGm+1}, s{sGm}")
    for g in range(ag): st.run(g1(g, sGm))
    lstamp(a, 60); st.w("qx"); st("s_barrier"); stamp(a, 7); lstamp(a, 61); lstamp(a, None)
    def wsp(blk):
        L = []
        for b in range(8):
            x = ""
            if b & 3 == 0: x = f"s_add_u32 m0, s{sAr}, {(blk&1)*8192+b*1024}\n s_add_u32 s{sWo}, s{sWb[b>>2]}, s{sB}\n"
            x += f"buffer_load_dwordx4 v{vo[b&3]}, {s(sSP,4)}, s{sWo} offen offset:{(b&3)*1024} lds\n"
            if b == 7: x += f"s_add_u32 s{sB}, s{sB}, 128\n s_and_b32 s{sB}, s{sB}, 0x3ff"
            L.append((x, f"wsp{blk}"))
        return L
    def zld(f):
        ks, n = divmod(f, 3); x = ""
        if f % 12 == 0: x = f"s_mul_i32 s{sZo}, s{sZn}, 96\n s_add_u32 s{sZn}, s{sZn}, 128\n s_add_u32 s{sZo}, s{sZo}, s{sZb}\n s_and_b32 s{sZn}, s{sZn}, 0x3ff\n"
        elif n == 0: x = f"s_add_u32 s{sZo}, s{sZo}, 3072\n"
        return (x + f"buffer_load_dwordx4 {v(Z[f%NZ],4)}, v{vl}, {s(sWS,4)}, s{sZo} offen offset:{1024*n} sc1", f"z{f}")
    rW = lambda ks, th: [("@", f"wsp{ks>>2}"), (f"ds_read_b128 {v(W[th],4)}, v{aW[ks&3]} offset:{((ks>>2)&1)*8192+th*4096}", f"W{th}")]
    G = dict(m=0, q=[])
    DPG = cfg.get("dpg", 1)
    def gop():
        m = G["m"]; G["m"] += 1
        ks, th, n = m//6, (m % 6)//3, m % 3; f = 3*ks+n; ac = acc+48*th+16*n
        it = [("@", f"z{f}", f"W{th}"), f"{MF32} {v(ac,16)}, {v(Z[f%NZ],4)}, {v(W[th],4)}, {'0' if ks == 0 else v(ac,16)}"]
        if n == 2 and ks < 31: it += rW(ks+1, th)
        if th == 1 and f+NZ < 96: it.append(zld(f+NZ))
        if m % 24 == 21 and m//24 + 2 < 8: G["q"] = wsp(m//24 + 2)
        it += G["q"][:DPG]; G["q"] = G["q"][DPG:]
        if m == 191: it.append("; end of G")
        return it
    np_ = (cR-gS)*4
    dens = [[0]*4 for c in range(16)]
    for p in range(np_): dens[gS+p//4][p % 4] = 192*(p+1)//np_ - 192*p//np_
    pa = cfg.get("pa", 1)
    sc = attention(0, dens, gop, lambda c: ["rsw"], lambda c: [(lambda st_, c=c: stamp(a, 8+c))], lambda c, i: pa if (c, i) == (0, 0) and pa != cfg.get("p1", 1) else None)
    span(sc, sum([g1(g, 0) for g in range(ag, 3)], []), C("a0", 2), C("a1", 10*gS-1), 0)
    sc.place([f"v_mov_b32 v{gl-1}, v{gl}", f"s_nop 0\n v_permlane32_swap_b32 v{gl-1}, v{gl}", f"v_exp_f32 v{gl}, v{gl}", f"v_add_f32 v{gl}, 1.0, v{gl}", f"v_rcp_f32 v{gl}, v{gl}", f"ds_write_b32 v{aPark}, v{gl} offset:3072"], 0, 0.02, 0.1)
    ff = C("ff", 302)
    if cfg.get("tp0"):
        for i in range(2): span(sc, [f"""s_add_u32 s{sT}, s{sB}, {128*i}
        s_and_b32 s{sT}, s{sT}, 0x3ff
        s_andn2_b32 s{sT2}, s{sWb[0]}, 0x20000
        v_lshlrev_b32 v{Z[0]}, 12, v0
        s_add_u32 s{sT}, s{sT}, s{sT2}
        buffer_load_dword v{Z[0]+1}, v{Z[0]}, {s(sSP,4)}, s{sT} offen"""], C(f"tp{i}", 0), C(f"tp{i}", 0), 30)
        assert C("tp1", 0) < ff
    span(sc, wsp(0) + wsp(1), ff, ff+C("fl", 27), 30)
    if 30 <= C("s0", 302) < 40: span(sc, uaddr(vu, tg_) + mark(vu, tg_), C("s0", 302), C("s1", 309), 30)
    fld = f"buffer_load_dword v{t1}, v{t0}, {s(sWS,4)}, s{sFl} offen sc1"
    def poll(st_, p="p", k=3):
        st_(f"{name}_{p}oll:"); st_.w("F")
        st_(f"v_cmp_ne_u32 vcc, s{sTag}, v{t1}\n s_cbranch_vccnz {name}_{p}retry\n {name}_{p}ok:")
        stamp(a, k)
    sc.place([(fld, "F")], gS-1, cfg.get("f0", 20)/100, cfg.get("f0", 20)/100)
    sc.place([poll] + [zld(f) for f in range(NZ)], gS-1, cfg.get("f1", 60)/100, 1.0)
    sc.place([rW(0, 0), rW(0, 1)], gS, 0.1, 0.2)
    z1 = 208; og = 220; gt = 222; tp = 224; aR = [228, 229, 230, 231]; vu = 232; aF = 240; vt = 242
    quads = lambda d, n: [acc+48*(d & 1)+16*n+4*(d >> 1), acc+48*(d & 1)+16*n+4*(d >> 1)+8]
    wl = sc.win[cR]; e = max(i for i, o in enumerate(wl) if isinstance(o, list) and "; end of G" in o)
    it = [f"""v_lshlrev_b32 v{aF}, 4, v0
    v_add_u32 v{aR[0]}, s{sAr}, v{aF}
    s_lshl_b32 s{sT}, s{sK}, 12
    s_add_u32 s{sT}, s{sT}, {Z1P}
    v_add_u32 v{tp}, s{sT}, v{aF}"""]
    it += [(f"ds_read_b128 {v(z1+4*n,4)}, v{tp} offset:{1024*n}", "zp") for n in range(3)]
    it += [(f"""s_lshl_b32 s{sT}, s{S_TG}, 1
    s_add_u32 s{sT}, s{sT}, s{sTH}
    s_lshl_b32 s{sT2}, s{sT}, 6
    v_lshrrev_b32 v{vt}, {FS-1}, v{t0}
    ds_read_b32 v{gt}, v{tp} offset:3072
    buffer_load_ushort v{og+1}, v{vt}, {s(sBS,4)}, s{sT2} offen""", "zp")]
    for d in (2, 1, 3):
        for n in range(3):
            for e2, q in enumerate(quads(d, n)): it.append((f"ds_write_b128 v{aR[0]}, {v(q,4)} offset:{((d-1)*6+2*n+e2)*1024}", "rsw"))
        it.append(f"s_xor_b32 s{sT}, s{sK}, {d}\n s_mul_i32 s{sT}, s{sT}, {AA}\n v_add_u32 v{aR[d]}, s{sT}, v{aF}")
    sc.place(it, cR, (e+3)/len(wl), 0.9)
    it = []
    rd = lambda n: [(f"ds_read_b128 {v(q,4)}, v{aR[d]} offset:{((d-1)*6+2*n+e2)*1024}", f"rs{n}{e2}") for e2 in range(2) for d in (1, 2, 3) for q in [quads(d, n)[e2]]]
    it += rd(0)
    it += [[("@", "zp"), f"""v_sub_f32 v{og}, 1.0, v{gt}
    v_lshlrev_b32 v{og+1}, 16, v{og+1}
    v_mul_f32 v{og+1}, v{og}, v{og+1}"""]] + uaddr(vu, tp) + (mark(vu, 244) if C("s0", 302) >= 40 else [])
    for n in range(3):
        nr = rd(n+1) if n < 2 else []
        for e2 in range(2):
            for h2 in (0, 2):
                o_, p1, p2, p3 = [quads(d, n)[e2]+h2 for d in range(4)]; zi = z1+4*n+2*e2+h2//2
                it.append([("@", f"rs{n}{e2}"), f"""v_pk_add_f32 {v(o_,2)}, {v(o_,2)}, {v(p1,2)}
                v_pk_add_f32 {v(p2,2)}, {v(p2,2)}, {v(p3,2)}
                v_lshlrev_b32 v{tp}, 16, v{zi}
                v_pk_add_f32 {v(o_,2)}, {v(o_,2)}, {v(p2,2)}"""])
                it.append(f"""v_and_b32 v{tp+1}, 0xffff0000, v{zi}
                v_pk_fma_f32 {v(o_,2)}, {v(o_,2)}, {v(og,2)}, {v(og,2)} op_sel:[0,0,1] op_sel_hi:[1,0,1]
                v_pk_mul_f32 {v(o_,2)}, {v(o_,2)}, {v(tp,2)}
                v_cvt_pk_bf16_f32 v{zi}, v{o_}, v{o_+1}""")
                it += nr[:2]; nr = nr[2:]
        it.append((f"buffer_store_dwordx4 {v(z1+4*n,4)}, v{vu}, {s(sWS,4)}, s{sU} offen offset:{1024*n} sc1", "us"))
    it.append(lambda st_: stamp(a, 4))
    it.append(f"""s_lshl_b32 s{sT}, s{S_J}, 2
    s_add_u32 s{sT}, s{sT}, s{sK}
    s_mul_i32 s{sPk}, s{sT}, {11*5120}
    s_add_u32 s{sPk}, s{sPk}, {hx(WS_PK+6*5120)}
    s_or_b32 s{sT}, s2, s{sK}
    s_cmp_eq_u32 s{sT}, 0
    s_cselect_b32 s{sE}, 1, 0
    s_mov_b32 s{sE+1}, 0
    v_mov_b32 v{tp+1}, s{sTag}
    v_cndmask_b32 v{tp}, -4.0, v0, {s(sE,2)}
    s_mov_b32 s{sT}, {hx(WS_EP)}
    buffer_store_dword v{tp+1}, v{tp}, {s(sWS,4)}, s{sT} offen sc1""")
    wu = cfg.get("wu", 75)/100
    sc.place(it, cR+1, 0.0, wu)
    WO = lambda ks, c: BIG+4*(5*ks+c)
    f3 = cR+1+wu+C("f3", 5)
    span(sc, [[f"s_mov_b64 exec, 1", ("@", "us"), f"buffer_store_dword v{tp+1}, off, {s(sWS,4)}, s{sF3} sc1\n s_mov_b64 exec, -1", lambda st_: stamp(a, 30)]], f3, f3, 0)
    span(sc, pkloads(BIG, 25, aF, sWS, sPk, "wof"), cR+1+wu+0.02, min(cR+2.9, 16.6), 0)
    sc.emit(st)
    O = r.O; S = r.S; D = 208; t = 244; mx = 226; vA = [4, 5]; aP = [6, 7, 8, 9, 10]; vs = 11
    st(f"""s_mul_i32 s{sT}, s{sK}, 6144
    v_add_u32 v{t}, s{sT}, v{r.aK}
    s_mov_b32 s{sN}, 0""")
    f5 = cfg.get("f5", 1); fl5 = f"s_mov_b64 exec, 1\n buffer_store_dword v{tp+1}, off, {s(sWS,4)}, s{sF3} sc1\n s_mov_b64 exec, -1"
    if f5 >= 0: st(f"""s_lshl_b32 s{sT}, s{S_TG}, 3
    s_lshl_b32 s{sFl}, s{sK}, 1
    s_add_u32 s{sFl}, s{sFl}, s{sT}
    s_add_u32 s{sT}, s{sT}, s{S_J}
    s_lshl_b32 s{sFl}, s{sFl}, {FS}
    s_lshl_b32 s{sT}, s{sT}, {FS}
    s_add_u32 s{sFl}, s{sFl}, {hx(FL5)}
    s_add_u32 s{sT}, s{sT}, {hx(FL5)}
    s_cmp_eq_u32 s{sK}, 0
    s_cselect_b32 s{sF3}, s{sT}, {hx(WS_END)}
    v_and_b32 v{t0}, {1 << FS}, v{t0}""")
    if f5 == 0: st(fl5)
    stamp(a, 24); st("s_barrier"); stamp(a, 25)
    if f5 == 1: st(fl5)
    for th in range(2):
        for i in range(3): st(f"ds_read_b128 {v(S[th]+4*i,4)}, v{t} offset:{(3*th+i)*1024}", f"po{th}{i}")
    st(f"v_lshlrev_b32 v{vA[0]}, 4, v0\n v_add_u32 v{vA[1]}, 0x1000, v{vA[0]}")
    for i in (2, 0, 1):
        for th in range(2):
            st.w(f"po{th}{i}")
            for h2 in (0, 2): st(f"v_pk_add_f32 {v(O[th]+4*i+h2,2)}, {v(O[th]+4*i+h2,2)}, {v(S[th]+4*i+h2,2)}")
    st(f"{name}_fin:")
    for i in range(4): st(f"v_permlane32_swap_b32 v{O[0]+8+i}, v{O[1]+8+i}")
    L = O[1]+8
    st(f"""
    v_rcp_f32 v{t}, v{L}
    v_cmp_ngt_f32 vcc, 0x5f800000, v{L}
    s_mov_b32 s{sT}, 0x1f800000
    v_mul_f32 v{t}, v{t}, v{gt}
    v_cmp_nlt_f32 {s(sE,2)}, s{sT}, v{L}
    v_mov_b32 v{t+2}, v{t}
    v_mov_b32 v{t+4}, v{t}
    s_or_b64 {s(sE,2)}, {s(sE,2)}, vcc
    v_pk_mul_f32 {v(O[0]+8,2)}, {v(O[0]+8,2)}, {v(t,2)} op_sel_hi:[1,0]
    v_permlane32_swap_b32 v{t+2}, v{t+4}
    v_pk_mul_f32 {v(O[0]+10,2)}, {v(O[0]+10,2)}, {v(t,2)} op_sel_hi:[1,0]
    """)
    for th in range(2):
        for i in range(0, 8, 2): st(f"v_pk_mul_f32 {v(O[th]+i,2)}, {v(O[th]+i,2)}, {v(t+2+2*th,2)} op_sel_hi:[1,0]")
    st(f"v_pk_mul_f32 {v(t+6,2)}, {v(O[0]+8,2)}, 0 op_sel_hi:[1,0]")
    for k_, q in enumerate([O[0]+10] + [O[th]+i for th in range(2) for i in range(0, 8, 2)]):
        st(f"v_pk_fma_f32 {v(t+6,2)}, {v(q,2)}, 0, {v(t+6,2)} op_sel_hi:[1,0,1]")
        if k_ > 0: st(f"v_cvt_pk_bf16_f32 v{D+k_-1}, v{q}, v{q+1}")
    st(f"""
    v_cmp_u_f32 vcc, v{t+6}, v{t+7}
    v_cvt_pk_bf16_f32 v{D+8}, v{O[0]+8}, v{O[0]+9}
    v_cvt_pk_bf16_f32 v{D+9}, v{O[0]+10}, v{O[0]+11}
    s_or_b64 vcc, {s(sE,2)}, vcc
    s_cbranch_vccnz {name}_slow
    {name}_pub:""")
    if f5 >= 0 and cfg.get("p5", 2) == 0: st(fld, "F")
    st(f"""
    buffer_store_dwordx4 {v(D,4)}, v{vu}, {s(sWS,4)}, s{sOa} offen sc1
    v_permlane32_swap_b32 v{D+8}, v{D+10}
    v_permlane32_swap_b32 v{D+9}, v{D+11}
    buffer_store_dwordx4 {v(D+4,4)}, v{vu}, {s(sWS,4)}, s{sOa} offen offset:512 sc1
    buffer_store_dwordx4 {v(D+8,4)}, v{vu+1}, {s(sWS,4)}, s{sOx} offen sc1
    """)
    if f5 == 2: st(fl5)
    if f5 >= 0 and cfg.get("p5", 2) == 1: st(fld, "F")
    stamp(a, 26)
    act = [12+20*i for i in range(4)]
    srd(a, sSP, P_OUT, 2048*1280)
    st(f"""
    v_add_u32 v{aP[0]}, s{sAr}, v{vA[0]}
    s_mul_i32 s{sT}, s{sK}, 5120
    s_add_u32 s{sT}, s{sT}, {KV0}
    v_add_u32 v{aP[4]}, s{sT}, v{vA[0]}
    v_and_b32 v{t}, 15, v0
    v_mul_u32_u24 v{vs}, 0x500, v{t}
    v_lshrrev_b32 v{t}, 4, v0
    v_lshl_add_u32 v{vs}, v{t}, 3, v{vs}
    v_mov_b32 v{aP[1]}, v{aR[1]}
    v_mov_b32 v{aP[2]}, v{aR[2]}
    v_mov_b32 v{aP[3]}, v{aR[3]}
    s_lshl_b32 s{sT}, s{S_TG}, 2
    s_add_u32 s{sT}, s{sT}, s{E["sOwn"]}
    s_mul_i32 s{sO}, s{sT}, {16*1280}
    s_mul_i32 s{sT2}, s{S_J}, 160
    s_add_u32 s{sO}, s{sO}, s{sT2}
    """)
    def ald(st_, i):
        for ks in range(5): st_(f"buffer_load_dwordx4 {v(act[i]+4*ks,4)}, v{vA[ks>>2]}, {s(sWS,4)}, s{sAct[i]} offen offset:{1024*(ks&3)} sc1", f"o{i}_{ks}")
    if f5 < 0 or cfg.get("p5", 2) == 2: st("s_waitcnt vmcnt(0)")
    if f5 >= 0 and cfg.get("p5", 2) == 2: st(fld, "F")
    if cfg.get("y0", 0) == 0: st("s_barrier")
    if f5 >= 0: poll(st, "q", 29)
    st.w("wof")
    for i in range(4):
        ald(st, i)
        if cfg.get("y0", 0) == i+1: st("s_barrier")
    ac2 = [208, 228]; tc = 250
    ck = lambda i, ks: [f"v_max3_u32 v{tc+e}, v{act[i]+4*ks+2*e}, v{act[i]+4*ks+2*e+1}, v{tc+e}" if ks else f"v_max_u32 v{tc+e}, v{act[i]+2*e}, v{act[i]+2*e+1}" for e in range(2)]
    cke = f"v_max_u32 v{tc}, v{tc}, v{tc+1}\n v_cmp_eq_u32 vcc, -1, v{tc}"
    padd = lambda x, y: [f"v_pk_add_f32 {v(x+h2,2)}, {v(x+h2,2)}, {v(y+h2,2)}" for h2 in (0, 2)]
    for i in range(4):
        st(f"{name}_o{i}:")
        ex = [[] for m in range(25)]; br = f"s_cbranch_vccnz {name}_o{i}_retry\n {name}_o{i}_ok:"
        rdp = lambda d, q, c: (f"ds_read_b128 {v(q+4*c,4)}, v{aP[d+1]} offset:{(d*5120 if d < 3 else 0)+c*1024}", f"pr{d}{c}")
        ws_ = cfg.get("tw", 4) if i < 3 else cfg.get("tv", 2); yb = cfg.get("ty", 12)
        for c in range(5):
            if i: ex[ws_*c+1].append((f"ds_write_b128 v{aP[0]}, {v(ac2[(i-1)&1]+4*c,4)} offset:{(i-1)*5120+c*1024}", "pw"))
            if i: ex[ws_*c if i < 3 else c+yb-6].append(rdp((i+2) & 3, act[i-1], c))
            if i == 2: ex[min(ws_*c+8, 24)] += [("@", f"pr0{c}")] + padd(act[1]+4*c, act[0]+4*c)
            if i == 3: ex[yb+c].append(rdp(2, act[0], c)); ex[20+c] += [("@", f"pr2{c}")] + padd(act[0]+4*c, act[2]+4*c)
            ex[5*c+1 if i < 3 else c] += [("@", f"o{i}_{c}")] + ck(i, c)
        ex[22 if i < 3 else 4].append(cke)
        if i == 3: ex[5].insert(0, br); ex[yb] = [("@", "pw"), "s_barrier"] + ex[yb]
        for ks in range(5):
            st.w(f"o{i}_{ks}")
            if ks == 0 and i in (0, 3): stamp(a, 27 if i == 0 else 28)
            for c in range(5):
                q = ac2[i & 1]+4*c
                st(f"{MF16} {v(q,4)}, {v(WO(ks,c),4)}, {v(act[i]+4*ks,4)}, {v(q,4) if ks else v(act[1]+4*c,4) if i == 3 else '0'}")
                st.run(ex[5*ks+c])
        if i < 3: st(br); st.w("pw"); st("s_barrier")
    for c in range(5):
        q = ac2[1]+4*c; st.run(padd(q, act[0]+4*c))
        st(f"""v_cvt_pk_bf16_f32 v{q}, v{q}, v{q+1}
        v_cvt_pk_bf16_f32 v{q+1}, v{q+2}, v{q+3}
        buffer_store_dwordx2 {v(q,2)}, v{vs}, {s(sSP,4)}, s{sO} offen offset:{32*c} {["", "sc1", "nt", "sc0 sc1"][cfg.get("os", 0)]}""")
    if TS[0] == 1: st(f"v_writelane_b32 v255, s{sCnt}, 5")
    wend(a, name)
    x = St(a)
    for p in "pq"[:1 + (f5 >= 0)]: x(f"""{name}_{p}retry:
    s_cmp_eq_u32 s{sCnt}, 0
    s_cbranch_scc1 {name}_{p}ok
    s_sub_u32 s{sCnt}, s{sCnt}, 1
    {fld}
    s_waitcnt vmcnt(0)
    s_branch {name}_{p}oll""")
    for i in range(4):
        x(f"{name}_o{i}_retry:\n s_cmp_eq_u32 s{sCnt}, 0\n s_cbranch_scc1 {name}_o{i}_ok\n s_sub_u32 s{sCnt}, s{sCnt}, 1")
        ald(x, i)
        for m in range(i+1, 4):
            x(f"s_waitcnt vmcnt({5*(4-m)})")
            for ks in range(5): x.run(ck(m, ks))
            x(f"{cke}\n s_cbranch_vccz {name}_o{i}_r{m}"); ald(x, m); x(f"{name}_o{i}_r{m}:")
        x(f"s_waitcnt vmcnt(0) lgkmcnt(0)\n s_branch {name}_o{i}")
    slow_path(a, name, sWS, sT, sN, [sWb[0], sWb[1], sB, sZb], mx, t)
```

```python
from kf import *
from kfA1 import span, gelu
Z2 = 104; Z1 = 136; ssr = [128, 132, 160, 164]; tg_ = 168; z1p = 176; sm = 188; vK1 = 192; raw = 196
aLw, aLr, vZn, aPark, aS, vSp, vF1, aTX, aPk = range(208, 217); vPk = [217, 218]; pkd = 224; kvd = 232; gr = 244
fl_ = fl
def waveB(E, st):
    a = E["a"]; name = E["name"]; cfg = E["cfg"]; S_ = E["S_"]; gS = E["gS"]; cR = E["cR"]
    sWS, sW, sT, sT2, sO, sN, sK, sTH, sHP, sE, sAct, sTag = [E[k] for k in "sWS sW sT sT2 sO sN sK sTH sHP sE sAct sTag".split()]
    sX = S_(4); sKW = S_(4); sKVo = S_(); sKVb = S_(); sCnt = S_(); sPk = S_(); sCw = S_(); sXo = S_(); sMx = S_(); sMz = S_(); sMq = S_(); sMk = S_(); sFl = S_()
    sMK = S_(2); sStr = S_(); sEx = S_(); sZs = S_(); sSt = S_(); sF2 = S_(); sF3 = S_(); sF4 = S_(); sPs = [S_(), S_()]; C = lambda k, d: cfg.get(k, d)/10; FS = cfg.get('fs', 7)
    TB = cfg.get("tsb", 0); stamp_ = globals()["stamp"]; stamp = (lambda a, k: None) if TB else stamp_
    def tb(b, odd):
        if TB and b != 4: a(f"s_bitcmp1_b32 s{sK}, 0\n s_cbranch_scc{1-odd} {name}_tb{b}_{odd}"); stamp_(a, b+1); a(f"{name}_tb{b}_{odd}:")
    vz = 4; vA = [11, 252]; t0, t1 = 253, 254
    vx = [12, 13]; vw = [14, 15, 16]; vq = [17, 18, 19]; vk = 20; vg = 21; aQx = 30; t = 22
    st(f"""{name}_B:
    s_setprio {cfg.get("p2", 0)}
    v_lshrrev_b32 v{t}, 3, v0
    s_lshl_b32 s{sT}, s{sK}, 4
    v_bfe_u32 v{t+1}, v0, 4, 2
    v_and_b32 v{t+2}, 7, v0
    s_lshl_b32 s{sT2}, s{S_TG}, 6
    v_xor_b32 v{t+1}, v{t+1}, v{t+2}
    s_add_u32 s{sT2}, s{sT2}, s{sT}
    v_add_u32 v{t}, s{sT2}, v{t}
    v_mul_u32_u24 v{t}, 0x500, v{t}
    v_lshl_add_u32 v{vx[0]}, v{t+1}, 4, v{t}
    s_mul_i32 s{sMz}, s{sK}, 3072
    v_xor_b32 v{vx[1]}, 64, v{vx[0]}
    s_lshl_b32 s{sT2}, s{sMz}, 4
    v_add_u32 v{vx[1]}, {8*1280-1024}, v{vx[1]}
    v_lshlrev_b32 v{vA[0]}, 4, v0
    """)
    for i in range(3):
        st(f"""v_add_u32 v{t}, {64*i}, v0
        v_mul_u32_u24 v{t}, 5462, v{t}
        v_lshrrev_b32 v{t}, 16, v{t}
        v_mul_u32_u24 v{t}, {3072-192}, v{t}
        v_add3_u32 v{vw[i]}, v{t}, v{vA[0]}, s{sT2}""")
    if cfg.get("stag", 1): st(f"""
    s_and_b32 s{sT}, s{S_J}, 3
    s_mul_i32 s{sT}, s{sT}, {cfg.get("sj", 3)}
    s_add_u32 s{sCw}, s{sT}, s{S_TG}
    s_mul_i32 s{sT}, s{sCw}, 26
    s_lshr_b32 s{sT}, s{sT}, 8
    s_mul_i32 s{sT}, s{sT}, 10
    s_sub_u32 s{sCw}, s{sCw}, s{sT}""")
    else: st(f"s_mov_b32 s{sCw}, 0")
    st(f"""
    s_lshl_b32 s{sXo}, s{sCw}, 7
    s_lshl_b32 s{sMx}, s{sK}, 11
    s_add_u32 s{sMx}, s{sMx}, {X0}
    s_mul_i32 s{sMk}, s{sK}, 640
    v_add_u32 v{vk}, s{sMk}, v{vA[0]}
    s_mul_i32 s{sT}, s{S_J}, 192
    s_add_u32 s{sT}, s{sT}, 1536
    s_sub_u32 s{sW+2}, {640*3072}, s{sT}
    s_mov_b32 s{sW+3}, 0x20000
    s_mov_b32 s{sX+2}, {2048*1280}
    s_mov_b32 s{sX+3}, 0x20000
    s_cmp_lt_u32 s{S_J}, 2
    s_cselect_b32 s{sMK}, -1, 0
    s_cselect_b32 s{sMK+1}, 0xff, 0
    s_mov_b32 s{sKW+2}, 25600
    s_mov_b32 s{sKW+3}, 0x20000
    s_waitcnt lgkmcnt(0)
    s_mov_b32 s{sX}, s{P_X}
    s_mov_b32 s{sX+1}, s{P_X+1}
    s_add_u32 s{sW}, s{P_WIN}, s{sT}
    s_addc_u32 s{sW+1}, s{P_WIN+1}, 0
    s_bitcmp1_b32 s{S_J}, 0
    s_cselect_b32 s{sKW}, s{P_WV}, s{P_WK}
    s_cselect_b32 s{sKW+1}, s{P_WV+1}, s{P_WK+1}
    """)
    def dX(i):
        return [(f"""s_add_u32 m0, s{sMx}, {xblk(i)}
        s_add_u32 s{sT}, s{sXo}, 128
        buffer_load_dwordx4 v{vx[0]}, {s(sX,4)}, s{sXo} offen lds
        buffer_load_dwordx4 v{vx[1]}, {s(sX,4)}, s{sXo} offen offset:1024 lds
        s_cmp_eq_u32 s{sT}, 1280
        s_cselect_b32 s{sXo}, 0, s{sT}""", f"x{i}")]
    def dW(q):
        L = []; Q = q >= 10; x = ""
        if q < 10: L.append((f"""s_add_u32 m0, s{sMk}, {POS[q]+12288}
            s_mul_i32 s{sO}, s{sCw}, 2560
            s_mov_b64 exec, {s(sMK,2)}
            buffer_load_dwordx4 v{vk}, {s(sKW,4)}, s{sO} offen lds
            s_mov_b64 exec, -1""", f"w{q}"))
        if q == 10: x = f"""s_mul_i32 s{sT}, s{S_J}, 160
            s_add_u32 s{sE}, s{P_WQ}, s{sT}
            s_addc_u32 s{sE+1}, s{P_WQ+1}, 0
            s_sub_u32 s{sT}, {640*1280}, s{sT}
            s_sub_u32 s{sW}, s{sW}, 1536
            s_subb_u32 s{sW+1}, s{sW+1}, 0
            s_mul_i32 s{sCw}, s{sCw}, s{sStr}
            s_lshl_b32 s{sCw}, s{sCw}, 1
            s_cmp_lt_u32 s{sK}, 2
            s_cselect_b64 {s(sW,2)}, {s(sW,2)}, {s(sE,2)}
            s_cselect_b32 s{sW+2}, s{sW+2}, s{sT}\n"""
        x += f"s_add_u32 m0, s{sMq}, {POS[q]}\n s_add_u32 s{sO}, s{sCw}, s{sStr}\n" if Q else f"s_add_u32 m0, s{sMz}, {POS[q]}\n s_mul_i32 s{sO}, s{sCw}, {64*3072}\n"
        for i in range(3):
            x += f"buffer_load_dwordx4 v{(vq if Q else vw)[i]}, {s(sW,4)}, s{sCw if Q else sO} offen offset:{1024*i} lds\n"
            if i == 0 and not Q: x += f"s_add_u32 s{sCw}, s{sCw}, 1\n s_cmp_eq_u32 s{sCw}, 10\n s_cselect_b32 s{sCw}, 0, s{sCw}"
            if i == 2 and Q: x += f"s_cmp_eq_u32 s{sO}, s{sEx}\n s_cselect_b32 s{sCw}, 0, s{sO}"
            L.append((x, f"w{q}")); x = ""
        return L
    st(f"s_mov_b32 s{sN}, s{sXo}")
    n0 = cfg.get("n0", 3); nb = cfg.get("nb", 2); xq = list(range(10)); wq = list(range(30))
    def issue(b, n):
        L = []
        for i in range(n):
            if xq: L += dX(xq.pop(0))
            if wq and FREE[wq[0]] <= b: L += dW(wq.pop(0))
        return L
    st.run(issue(-1, n0))
    srd(a, sWS, P_WS, WS_END)
    st(f"s_mov_b32 s{sT}, {hx(WS_EP)}\n s_load_dword s{sTag}, {s(P_WS,2)}, s{sT}")
    st(f"""
    s_mul_i32 s{sT}, s{sK}, 320
    s_add_u32 s{sT}, s{sT}, s{sN}
    v_add_u32 v{vg}, s{sT}, v{vA[0]}
    v_subrev_u32 v{t}, 1280, v{vg}
    v_min_u32 v{vg}, v{vg}, v{t}
    s_and_b32 s{sT}, s{sK}, 1
    s_mul_i32 s{sMq}, s{sT}, 6144
    s_mul_i32 s{sT2}, s{sT}, {16*1280}
    s_cmp_lt_u32 s{sK}, 2
    s_cselect_b32 s{sStr}, {32*3072}, {0}
    s_cselect_b64 vcc, -1, 0
    s_cselect_b32 s{sT}, 0, 3072
    s_add_u32 s{sMq}, s{sMq}, s{sT}
    s_max_u32 s{sStr}, s{sStr}, {32*1280}
    s_mul_i32 s{sEx}, s{sStr}, 20
    """)
    for i in range(3):
        st(f"""v_add_u32 v{t}, {64*i}, v0
        v_mul_u32_u24 v{t}, 6554, v{t}
        v_lshrrev_b32 v{t}, 16, v{t}
        v_mul_u32_u24 v{t+1}, 160, v{t}
        v_sub_u32 v{t+1}, v{vA[0]}, v{t+1}
        v_and_b32 v{t+2}, 8, v{t}
        v_bfe_u32 v{t+3}, v{t}, 1, 2
        v_and_b32 v{t}, 1, v{t}
        v_lshl_add_u32 v{t}, v{t}, 2, v{t+3}
        v_add_u32 v{t}, v{t}, v{t+2}
        v_mul_u32_u24 v{t}, 0x500, v{t}
        v_add3_u32 v{vq[i]}, v{t}, v{t+1}, s{sT2}
        {f"s_mov_b32 exec_lo, 0{chr(10)} v_mov_b32 v{vq[i]}, -4.0{chr(10)} s_mov_b32 exec_lo, -1" if i == 2 else ""}
        v_cndmask_b32 v{vq[i]}, v{vq[i]}, v{vw[i]}, vcc""")
    E["common"](st)
    kv_addr(st, t)
    st(f"""
    s_add_u32 s{sKVb}, s{sMz}, {KV0}
    v_add_u32 v{vz}, s{sMz}, v{vA[0]}
    v_add_u32 v{aQx}, {QX}, v{vz}
    s_lshr_b32 s{sKVo}, s{S_TG}, 1
    s_mul_i32 s{sKVo}, s{sKVo}, {KVS}
    s_add_u32 s{sKVo}, s{sKVo}, {hx(WS_KV)}
    v_add_u32 v{vA[1]}, 0x1000, v{vA[0]}
    s_mov_b32 s{sCnt}, 0x8000
    s_mov_b32 s{sFl}, {hx(FL1)}
    s_and_b32 s{sT}, s{S_TG}, 30
    v_min_u32 v{t0}, {cfg.get("nf", 12)-1}, v0
    v_lshl_add_u32 v{t0}, s{sT}, 1, v{t0}
    v_and_b32 v{t0}, 63, v{t0}
    v_lshlrev_b32 v{t0}, {FS}, v{t0}
    s_lshl_b32 s{sT}, s{S_J}, 2
    s_add_u32 s{sT}, s{sT}, s{sK}
    s_lshl_b32 s{sF4}, s{sT}, {FS+5}
    s_add_u32 s{sF4}, s{sF4}, {hx(FL4)}
    s_mul_i32 s{sPk}, s{sT}, {11*5120}
    s_add_u32 s{sPk}, s{sPk}, {hx(WS_PK)}
    s_mul_i32 s{sT}, s{sK}, 6144
    s_add_u32 s{sT}, s{sT}, {hx(WS_ACT+20*1024)}
    """)
    for i in range(4): st(f"s_add_u32 s{sAct[i]}, s{sAct[i]}, s{sT}")
    def kv(c):
        L = [(f"s_add_u32 m0, s{sKVb}, {slot(c)}\n s_nop 0\n" if i == 0 else "") + f"buffer_load_dwordx4 v{vz}, {s(sWS,4)}, s{sKVo} offen offset:{1024*i} sc1 lds" for i in range(3)]
        L[2] += f"\n s_add_u32 s{sKVo}, s{sKVo}, {KVS}\n s_cmp_eq_u32 s{sKVo}, {hx(WS_KV+16*KVS)}\n s_cselect_b32 s{sKVo}, {hx(WS_KV)}, s{sKVo}"
        return [(x, f"kv{c}") for x in L]
    fl = lambda sF: f"buffer_load_dword v{t1}, v{t0}, {s(sWS,4)}, s{sF} offen sc1"
    polls = []
    def poll(nm, sF, k):
        def f(st_):
            st_(f"{name}_{nm}poll:"); st_.w("F")
            st_(f"v_cmp_ne_u32 vcc, s{sTag}, v{t1}\n s_cbranch_vccnz {name}_{nm}retry\n {name}_{nm}ok:"); polls.append((nm, sF))
            if k: stamp(a, k)
        return f
    flag = lambda tag, sF, o=0: ["s_mov_b64 exec, 1", ("@", tag), f"buffer_store_dword v{gr+1}, off, {s(sWS,4)}, s{sF} sc1\n s_mov_b64 exec, -1"]
    ex = [[] for b in range(47)]
    def put(items, w0, w1):
        for i, it in enumerate(items): x = w0 + (w1-w0)*(i+0.5)/len(items); ex[int(x)].append((x, it))
    h, e, tok = t+1, t+2, t+3; T = kvd+4
    put([f"""
    v_lshrrev_b32 v{h}, 5, v0
    v_bfe_u32 v{e}, v0, 2, 2
    v_and_b32 v{tok}, 31, v0
    v_and_b32 v{t+5}, 3, v0
    s_lshl_b32 s{sT}, s{sTH}, 1
    s_add_u32 s{sT}, s{sT}, s{sHP}
    s_lshl_b32 s{sT}, s{sT}, 9
    s_add_u32 s{sT}, s{sT}, {STX}
    v_lshl_add_u32 v{aS}, v0, 3, s{sT}""", f"""
    s_lshl_b32 s{sT}, s{sK}, 10
    s_add_u32 s{sT}, s{sT}, {LNS}
    v_lshl_add_u32 v{aLw}, v{tok}, 5, s{sT}
    v_lshl_add_u32 v{aLw}, v{h}, 3, v{aLw}
    v_lshrrev_b32 v{t+6}, 4, v0
    v_lshl_add_u32 v{aLr}, v{t+6}, 3, v{e}
    v_lshl_add_u32 v{aLr}, v{aLr}, 5, s{sT}
    v_lshl_add_u32 v{aLr}, v{t+5}, 3, v{aLr}""", f"""
    v_mul_u32_u24 v{vZn}, 3072, v{h}
    v_and_b32 v{t+6}, 1, v{t+6}
    v_lshl_add_u32 v{vZn}, v{t+6}, 9, v{vZn}
    v_and_b32 v{t+6}, 7, v0
    v_lshl_add_u32 v{vZn}, v{t+6}, 4, v{vZn}
    v_bfe_u32 v{t+6}, v0, 3, 1
    v_lshl_add_u32 v{vZn}, v{t+6}, 8, v{vZn}
    v_add_u32 v{aTX}, {TX}, v{vz}""", f"""
    s_lshl_b32 s{sT}, s{S_TG}, 1
    s_add_u32 s{sT}, s{sT}, s{sTH}
    s_lshl_b32 s{sSt}, s{sT}, 12
    s_add_u32 s{sSt}, s{sSt}, {hx(WS_ST2)}
    s_mul_i32 s{sZs}, s{sT}, 6144
    s_mul_i32 s{sT}, s{S_J}, {128*3072}
    s_add_u32 s{sZs}, s{sZs}, s{sT}
    s_lshl_b32 s{sT}, s{sHP}, 7
    s_add_u32 s{sZs}, s{sZs}, s{sT}
    s_add_u32 s{sZs}, s{sZs}, {hx(WS_Z2N)}""", f"""
    s_lshl_b32 s{sT}, s{S_J}, 5
    s_add_u32 s{sT}, s{sT}, s{S_TG}
    s_lshl_b32 s{sT}, s{sT}, 2
    s_add_u32 s{sT}, s{sT}, s{sK}
    s_lshl_b32 s{sF2}, s{sT}, {FS}
    s_lshl_b32 s{sT}, s{S_TG}, 2
    s_add_u32 s{sT}, s{sT}, s{sK}
    s_lshl_b32 s{sT}, s{sT}, {FS+3}
    s_add_u32 s{sF3}, s{sT}, {hx(FL3)}""", f"""
    s_lshl_b32 s{sT2}, s{sHP}, 5
    s_sub_u32 s{sT2}, 32, s{sT2}
    v_cmp_gt_u32 vcc, s{sT2}, v0
    s_lshl_b32 s{sT}, s{S_J}, 9
    v_add_u32 v{t+6}, s{sT}, v{vA[0]}
    v_cndmask_b32 v{vSp}, -4.0, v{t+6}, vcc
    v_mov_b32 v{vK1}, {fl_(-GK1)}
    v_mov_b64 {v(sm,2)}, 0
    v_mov_b64 {v(sm+2,2)}, 0""",
    f"""s_lshr_b32 s{sT}, s{S_TG}, 1
    s_mul_i32 s{sN}, s{sT}, {KVS}
    s_and_b32 s{sT}, s{S_TG}, 1
    s_lshl_b32 s{sT2}, s{sT}, 1
    s_add_u32 s{sT2}, s{sT2}, s{sTH}
    s_mul_i32 s{sKW+2}, s{sT2}, 1536
    s_add_u32 s{sKW+2}, s{sKW+2}, 5120
    s_lshl_b32 s{sT2}, s{sT2}, 10
    s_lshl_b32 s{sT}, s{sT}, 9
    s_add_u32 s{sT}, s{sT}, 0x1000
    s_cmp_eq_u32 s{sHP}, 0
    s_cselect_b32 s{sT}, s{sT2}, s{sT}
    s_cselect_b32 s{sT2}, 16, 0x400
    v_add_u32 v{T}, s{sT2}, v{aLw}
    s_cmp_eq_u32 s{S_J}, 0
    s_cselect_b32 s{sT}, s{sT}, s{sKW+2}
    s_cselect_b64 {s(sMK,2)}, -1, 0
    s_add_u32 s{sN}, s{sN}, s{sT}
    s_add_u32 s{sN}, s{sN}, {hx(WS_KV)}
    s_cmp_lt_u32 s{S_J}, 2
    s_cselect_b32 s{sKW+2}, s{sN}, {hx(WS_END)}""", f"""
    v_bfe_u32 v{T+1}, v0, 4, 1
    v_lshlrev_b32 v{T+1}, 7, v{T+1}
    v_sub_u32 v{T+1}, v{aLr}, v{T+1}
    s_lshl_b32 s{sT}, s{sHP}, 4
    v_and_b32 v{t+4}, 15, v0
    v_add_u32 v{t+4}, s{sT}, v{t+4}
    v_lshrrev_b32 v{T+2}, 4, v0
    v_mul_u32_u24 v{T+2}, 0x180, v{T+2}
    v_lshl_add_u32 v{T+2}, v{t+4}, 4, v{T+2}
    v_mov_b32 v{T+3}, 0x3f803f80
    v_cmp_eq_u32 vcc, 20, v{t+4}
    v_cmp_gt_u32 {s(sKW,2)}, 24, v{t+4}
    s_lshl_b32 s{sT}, s{sK}, 5
    s_sub_u32 s{sT}, 96, s{sT}
    v_cndmask_b32 v{T+3}, 0, v{T+3}, vcc
    v_cmp_gt_u32 vcc, s{sT}, v0
    v_cndmask_b32 v{T+2}, -4.0, v{T+2}, {s(sKW,2)}
    v_cmp_gt_u32 {s(sKW,2)}, 20, v{t+4}
    v_cndmask_b32 v{t+4}, -4.0, v{vA[0]}, vcc
    v_cndmask_b32 v{T+2}, v{T+2}, v{t+4}, {s(sMK,2)}
    s_or_b64 {s(sKW,2)}, {s(sKW,2)}, {s(sMK,2)}""",
    f"""s_and_b32 s{sT}, s{S_TG}, 7
    s_lshl_b32 s{sT}, s{sT}, 2
    s_add_u32 s{sT}, s{sT}, s{sK}
    s_lshr_b32 s{sT2}, s{S_TG}, 3
    s_lshl_b32 s{sN}, s{S_J}, 2
    s_add_u32 s{sN}, s{sN}, s{sT2}
    s_mul_i32 s{sN}, s{sN}, 55
    s_add_u32 s{sN}, s{sN}, s{sT}
    s_lshl_b32 s{sN}, s{sN}, 10
    s_add_u32 s{sPs[0]}, s{sN}, {hx(WS_PK)}
    s_add_u32 s{sPs[1]}, s{sN}, {hx(WS_PK+30*1024)}
    s_cmp_lt_u32 s{sT}, 30
    s_cselect_b32 s{sPs[0]}, s{sPs[0]}, {hx(WS_END)}
    s_cmp_lt_u32 s{sT}, 25
    s_cselect_b32 s{sPs[1]}, s{sPs[1]}, {hx(WS_END)}
    s_mul_i32 s{sE}, s{sT}, 52
    s_lshr_b32 s{sE}, s{sE}, 8
    s_sub_u32 s{sN}, s{S_J}, s{sE}
    s_mul_i32 s{sN}, s{sN}, 5
    s_add_u32 s{sN}, s{sN}, s{sT}
    s_lshl_b32 s{sN}, s{sN}, 5
    v_and_b32 v{t}, 1, v0
    v_lshl_add_u32 v{t}, v{t}, 4, s{sN}
    v_bfe_u32 v{t+4}, v0, 1, 2
    v_bfe_u32 v{t+5}, v0, 3, 1
    v_bfe_u32 v{t+6}, v0, 4, 1""", f"""
    s_lshr_b32 s{sT2}, s{S_TG}, 3
    s_mul_i32 s{sN}, s{sT2}, 12
    s_add_u32 s{sN}, s{sN}, s{sE}
    s_cmp_ge_u32 s{sE}, 3
    s_cselect_b32 s{sT}, 3, 0
    s_add_u32 s{sN}, s{sN}, s{sT}
    s_lshl_b32 s{sN}, s{sN}, 4
    v_lshl_add_u32 v{vPk[0]}, v{t+5}, 2, v{t+4}
    v_mad_u32_u24 v{vPk[0]}, v{t+6}, 48, v{vPk[0]}
    v_lshl_add_u32 v{vPk[0]}, v{h}, 3, v{vPk[0]}
    v_add_u32 v{vPk[0]}, s{sN}, v{vPk[0]}
    v_mul_u32_u24 v{vPk[0]}, 0x500, v{vPk[0]}
    v_add_u32 v{vPk[0]}, v{vPk[0]}, v{t}""", f"""
    s_and_b32 s{sT}, s{sE}, 1
    s_and_b32 s{sN}, s{sE}, 2
    s_lshl_b32 s{sN}, s{sN}, 1
    s_add_u32 s{sN}, s{sN}, s{sT}
    s_mul_i32 s{sN}, s{sN}, 20
    s_cmp_eq_u32 s{sE}, 4
    s_cselect_b32 s{sN}, 16, s{sN}
    s_cselect_b32 s{sT}, 20, 4
    v_mad_u32_u24 v{vPk[1]}, v{t+5}, s{sT}, v{t+4}
    s_cselect_b32 s{sT}, 80, 40
    v_mad_u32_u24 v{vPk[1]}, v{t+6}, s{sT}, v{vPk[1]}
    s_cselect_b32 s{sT}, 40, 8
    v_mad_u32_u24 v{vPk[1]}, v{h}, s{sT}, v{vPk[1]}
    s_lshr_b32 s{sT2}, s{S_TG}, 3
    s_mul_i32 s{sT2}, s{sT2}, 160
    s_add_u32 s{sN}, s{sN}, s{sT2}
    v_add_u32 v{vPk[1]}, s{sN}, v{vPk[1]}
    v_mul_u32_u24 v{vPk[1]}, 0x500, v{vPk[1]}
    v_add_u32 v{vPk[1]}, v{vPk[1]}, v{t}
    s_lshl_b32 s{sT}, s{sK}, 11
    s_add_u32 s{sMk}, s{sT}, {PKS}
    v_lshl_add_u32 v{aPk}, v0, 3, s{sMk}""", f"""
    s_waitcnt lgkmcnt(0)
    s_add_u32 s{sTag}, s{sTag}, {hx(TAGC)}
    v_mov_b32 v{gr+1}, s{sTag}
    v_mov_b32 v{gr+3}, s{sTag}
    s_lshl_b32 s{sT}, s{S_TG}, 1
    s_add_u32 s{sT}, s{sT}, s{S_J}
    s_lshl_b32 s{sT}, s{sT}, {FS}
    s_add_u32 s{sXo}, s{sT}, {hx(FL1)}
    s_lshl_b32 s{sT}, s{sK}, 1
    s_or_b32 s{sT}, s{sT}, s{S_J}
    s_cmp_lt_u32 s{sT}, 2
    s_cselect_b32 s{sXo}, s{sXo}, {hx(WS_END)}"""], 6, 12)
    gate = (f"""s_mul_i32 s{sT}, s{sK}, 320
    s_add_u32 m0, s{sT}, {GATE}
    s_mov_b32 s{sX}, s{P_GW}
    s_mov_b32 s{sX+1}, s{P_GW+1}
    s_mov_b32 s{sX+2}, 1280
    s_mov_b64 exec, 0xfffff
    buffer_load_dwordx4 v{vg}, {s(sX,4)}, 0 offen lds
    s_mov_b64 exec, -1""", "x10")
    kvs = [(f"""ds_read_b64_tr_b16 {v(kvd,2)}, v{T+1}
    ds_read_b64_tr_b16 {v(kvd+2,2)}, v{T+1} offset:256
    s_mov_b64 exec, {s(sMK,2)}
    ds_read_b64 {v(kvd,2)}, v{aLw}
    ds_read_b64 {v(kvd+2,2)}, v{T}
    s_mov_b64 exec, -1""", "kr"), [("@", "kr")] + [f"v_cndmask_b32 v{kvd+i}, v{T+3}, v{kvd+i}, {s(sKW,2)}" for i in range(4)] +
    [(f"buffer_store_dwordx4 {v(kvd,4)}, v{T+2}, {s(sWS,4)}, s{sKW+2} offen sc1", "kvs")]]
    g2 = C("g2", 269); hl = 1
    for n in range(3): put([(f"ds_read_b128 {v(raw+4*n,4)}, v{aTX} offset:{1024*n}", f"tx{n}")] , 11+n+hl, 11+n+hl)
    put(kvs[:1], 12, 12); put(kvs[1:], C("kp", 128), C("kp", 128))
    def gz(g):
        X = range(Z2+8*g, Z2+8*g+8); L = [f"v_lshlrev_b32 v{x}, 16, v{raw+4*g+i}\n v_and_b32 v{x+1}, 0xffff0000, v{raw+4*g+i}" for i, x in enumerate(X[::2])]
        return [[("@", f"tx{g}"), L[0]]] + L[1:] + gelu(X, tg_, vK1, ("v_add_f32 {s1}, {s1}, {x}", "v_fmac_f32 {s2}, {x}, {x}"), s1=sm, s2=sm+2)
    assert g2 >= 14.2+hl
    put(gz(0) + gz(1) + gz(2) +
        [f"v_add_f32 v{sm}, v{sm}, v{sm+1}\n v_add_f32 v{sm+1}, v{sm+2}, v{sm+3}\n v_mov_b64 {v(tg_,2)}, {v(sm,2)}\n s_nop 1\n v_permlane32_swap_b32 v{sm}, v{tg_}\n v_permlane32_swap_b32 v{sm+1}, v{tg_+1}",
         (f"v_add_f32 v{sm}, v{sm}, v{tg_}\n v_add_f32 v{sm+1}, v{sm+1}, v{tg_+1}\n ds_write_b64 v{aS}, {v(sm,2)}", "stx")], 11.1+hl, g2)
    put([(f"ds_read_b64 {v(tg_,2)}, v{aS} offset:512", "sty"),
         [("@", "sty"), f"""v_add_f32 v{gr}, v{sm}, v{tg_}
         v_add_f32 v{gr+2}, v{sm+1}, v{tg_+1}
         buffer_store_dwordx4 {v(gr,4)}, v{vSp}, {s(sWS,4)}, s{sSt} offen sc1"""]], int(g2)+1, int(g2)+1)
    f1b = cfg.get("f1b", 16)
    put([flag("kvs", sXo)], f1b, f1b)
    sld = [(f"buffer_load_dwordx4 {v(ssr[i],4)}, v{vA[0]}, {s(sWS,4)}, s{sSt} offen offset:{1024*i} sc1", "ss") for i in range(4)]
    m, n_ = tg_+2, tg_+3; mu = sm
    def schk(st_):
        st_(f"{name}_schk:"); st_.w("ss")
        G_ = [x+o for x in ssr for o in (1, 3)]
        for op, d in (("max", m), ("min", n_)):
            st_(f"v_{op}3_u32 v{d}, v{G_[0]}, v{G_[1]}, s{sTag}")
            for i in (2, 4, 6): st_(f"v_{op}3_u32 v{d}, v{G_[i]}, v{G_[i+1]}, v{d}")
        st_(f"v_cmp_ne_u32 vcc, v{m}, v{n_}\n s_cbranch_vccnz {name}_sretry\n {name}_sok:")
        stamp(a, 4)
    LN = [schk]
    for o in (0, 2): LN += [f"v_add_f32 v{m}, v{ssr[0]+o}, v{ssr[1]+o}\n v_add_f32 v{n_}, v{ssr[2]+o}, v{ssr[3]+o}\n v_add_f32 v{mu+o//2}, v{m}, v{n_}"]
    LN += [f"v_mov_b64 {v(m,2)}, {v(mu,2)}\n s_nop 1\n v_permlane32_swap_b32 v{mu}, v{m}\n v_permlane32_swap_b32 v{mu+1}, v{m+1}",
           f"v_add_f32 v{mu}, v{mu}, v{m}\n v_add_f32 v{mu+1}, v{mu+1}, v{m+1}\n v_mul_f32 v{mu}, {fl_(1/768)}, v{mu}\n v_mul_f32 v{mu+1}, {fl_(1/768)}, v{mu+1}",
           f"v_fma_f32 v{mu+1}, -v{mu}, v{mu}, v{mu+1}\n v_max_f32 v{mu+1}, 0, v{mu+1}\n v_add_f32 v{mu+1}, {fl_(1e-5)}, v{mu+1}\n v_rsq_f32 v{mu+1}, v{mu+1}\n s_nop 0\n v_mul_f32 v{mu}, v{mu}, v{mu+1}"]
    zst = lambda n: [("@", "tr"), (f"buffer_store_dwordx4 {v(Z2+8*n,4)}, v{vZn}, {s(sWS,4)}, s{sZs} offen offset:{1024*n} sc1", "zn")]
    for n in range(3):
        for a_ in range(2):
            q = Z2+8*n+4*a_
            LN += [f"v_fma_f32 v{q+i}, v{q+i}, v{mu+1}, -v{mu}\n v_fma_f32 v{q+i+1}, v{q+i+1}, v{mu+1}, -v{mu}" for i in (0, 2)]
            LN += [f"v_cvt_pk_bf16_f32 v{q}, v{q}, v{q+1}\n v_cvt_pk_bf16_f32 v{q+1}, v{q+2}, v{q+3}\n ds_write_b64 v{aLw}, {v(q,2)} offset:{16*a_}"]
            if a_ == 0 and n: LN.append(zst(n-1))
        LN += [(f"ds_read_b64_tr_b16 {v(Z2+8*n,2)}, v{aLr}\n ds_read_b64_tr_b16 {v(Z2+8*n+2,2)}, v{aLr} offset:128", "tr")]
    LN.append(zst(2))
    sl, l0, l1 = C("sl", 301), C("l0", 310), C("l1", 317)
    put(sld, sl, sl+0.5); put(LN, l0, l1)
    b1 = C("b1", 258); b2 = C("b2", 280); kd = C("kd", 5); assert b2 >= 21
    put([(fl(sFl), "F")], b1, b1)
    put([poll("k", sFl, 3)], b2, b2)
    for c in range(3): put([kv(c)], b2+0.01+c*kd, b2+0.01+c*kd)
    put([(f"v_lshlrev_b32 v{t0}, {FS}, v0\n" + fl(sFl), "F")], C("b3", 301), C("b3", 301))
    put([poll("l", sFl, 0)], 30.99, 30.99)
    for b in range(30):
        lstamp(a, 2*b); st.w(f"w{b}", f"x{b}", "stx", *(["kvs"] if b == f1b else []), *(["tx2"] if b == TXF else []))
        tb(b, 1); st("s_barrier"); tb(b, 0); lstamp(a, 2*b+1)
        if b in (0, 10, 20): stamp(a, {0: 1, 10: 2, 20: 6}[b])
        D = issue(b, nb) + ([gate] if b == 5 else [])
        L = [(b + 0.01 + C("dsp", 7)*i/len(D), x) for i, x in enumerate(D)] + ex[b]
        for x in sorted(L, key=lambda y: y[0]): st.run(x[1])
    assert not xq and not wq
    lstamp(a, 60); st.w("kv0", "stx")
    st("s_barrier"); stamp(a, 7); lstamp(a, 61); lstamp(a, None)
    for i in range(3): st(f"ds_read_b128 {v(r.Q16[0]+4*i,4)}, v{aQx} offset:{1024*i}", "Q")
    pb = cfg.get("pb", 0)
    sc = attention(1, [[0]*4]*16, None, lambda c: [f"kv{c+1}"], lambda c: [(lambda st_, c=c: stamp(a, 8+c))], lambda c, i: pb if (c, i) == (0, 0) and pb != cfg.get("p2", 0) else None)
    for c in range(13): sc.place(kv(c+3), c+1, 0.02, 0.15)
    for x, it in sorted(sum(ex[30:], []), key=lambda y: y[0]): span(sc, [it], x, x, 30)
    WU = lambda ks, c: BIG+4*(5*ks+c)
    w0 = cfg.get("w0", 5); w1 = cfg.get("w1", 13); L = pkloads(BIG, 30, vA[0], sWS, sPk, "wu")
    span(sc, [flag("zn", sF2)], C("f2", 25), C("f2", 25), 0)
    pkl = lambda i, ptr, n: (f"""s_mov_b32 s{sX}, s{ptr}
    s_mov_b32 s{sX+1}, s{ptr+1}
    s_add_u32 m0, s{sMk}, {1024*i}
    s_mov_b32 s{sX+2}, {n*1280}
    buffer_load_dwordx4 v{vPk[i]}, {s(sX,4)}, 0 offen lds""", "pk")
    span(sc, [pkl(0, P_WOUT, 768), pkl(1, P_WO, 640)], C("k0", 6), C("k0", 6)+0.3, 0)
    span(sc, [[("@", "pk")] + [(f"ds_read_b64_tr_b16 {v(pkd+2*i,2)}, v{aPk} offset:{512*i}", "pr") for i in range(4)]] +
         [[("@", "pr"), (f"buffer_store_dwordx4 {v(pkd+4*i,4)}, v{vA[0]}, {s(sWS,4)}, s{sPs[i]} offen sc1", "ps")] for i in range(2)], C("k1", 22), C("k1", 22)+0.3, 0)
    span(sc, [[f"s_add_u32 s{sF2}, s{sF2}, {hx(FL4)}"] + flag("ps", sF2)], C("k2", 32), C("k2", 32), 0)
    span(sc, [(f"v_and_b32 v{t0}, {hx((32 << FS)-1)}, v{t0}\n" + fl(sF4), "F")], w0-0.7, w0-0.7, 0)
    span(sc, [poll("w", sF4, 0)], w0+0.18, w0+0.18, 0)
    assert l1-30 < C("f2", 25) < C("k2", 32) < w0-0.7 and (C("k0", 6) < .71 or 1 < cfg.get("k0", 6) % 10 < 8)
    for w in range(w0, w1): sc.place(L[30*(w-w0)//(w1-w0):30*(w+1-w0)//(w1-w0)], w, 0.2, 0.9)
    act = [224, 12, 36, 60]
    def ald(i): return [(f"buffer_load_dwordx4 {v(act[i]+4*ks,4)}, v{vA[ks>>2]}, {s(sWS,4)}, s{sAct[i]} offen offset:{1024*(ks&3)} sc1", f"{name}_u{i}") for ks in range(6)]
    aP = [5, 6, 7, 8, 9]; aO = 10
    sc.place([f"""s_mul_i32 s{sT}, s{sK}, 6144
    v_add_u32 v{aO}, s{sT}, v{r.aK}
    s_mul_i32 s{sT}, s{sK}, 5120
    v_add_u32 v{aP[4]}, s{sT}, v{r.aK}"""] + [f"""s_xor_b32 s{sT}, s{sK}, {d}
    s_mul_i32 s{sT}, s{sT}, 15360
    s_add_u32 s{sT}, s{sT}, {PB0}
    v_add_u32 v{aP[d]}, s{sT}, v{vA[0]}""" for d in range(4)], 15, 0.3, 0.8)
    span(sc, [(f"v_and_b32 v{t0}, {hx((8 << FS)-1)}, v{t0}\n" + fl(sF3), "F")], C("u3", 157), C("u3", 157), 0)
    u0 = cfg.get("u0", 50); assert u0 < 100 or cfg.get("f5", 1) >= 0
    if u0 < 100: sc.place([poll("u", sF3, 0)] + ald(0), 16, u0/100, 0.95)
    sc.emit(st)
    for th in range(2):
        if th: st("s_nop 8")
        for i in range(3): st(f"ds_write_b128 v{aO}, {v(r.O[th]+4*i,4)} offset:{(3*th+i)*1024}", "po")
    if u0 < 100: st.run(ald(1))
    st.w("po")
    stamp(a, 24); st("s_barrier"); stamp(a, 25)
    if u0 >= 100: st.run([poll("u", sF3, 0)] + ald(0) + ald(1))
    st.run(ald(2) + ald(3))
    ac = [84, 224, 84, 224]; tc = 250; pr = [12, 36, 84]
    for i in range(4):
        st.w(f"{name}_u{i}")
        stamp(a, 26+i)
        ex = {}
        if i > 0:
            for c in range(5): ex[c+2] = (f"ds_write_b128 v{aP[0]}, {v(ac[i-1]+4*c,4)} offset:{(i-1)*5120+c*1024}", "pw")
        if i == 3:
            ex[9] = [("@", "pw"), "s_barrier"]
            for c in range(5):
                for d in range(3): ex[10+3*c+d] = (f"ds_read_b128 {v(pr[d]+4*c,4)}, v{aP[d+1]} offset:{d*5120+c*1024}", f"pr{c}")
        for ks in range(6):
            for c in range(5):
                q = ac[i]+4*c
                st(f"{MF16} {v(q,4)}, {v(WU(ks,c),4)}, {v(act[i]+4*ks,4)}, {'0' if ks == 0 else v(q,4)}")
                if 5*ks+c in ex: st.run(ex[5*ks+c])
    for c in range(5):
        st.w(f"pr{c}"); q = ac[3]+4*c
        for h2 in (0, 2): st(f"v_pk_add_f32 {v(pr[0]+4*c+h2,2)}, {v(pr[0]+4*c+h2,2)}, {v(pr[1]+4*c+h2,2)}")
        for h2 in (0, 2): st(f"v_pk_add_f32 {v(pr[0]+4*c+h2,2)}, {v(pr[0]+4*c+h2,2)}, {v(pr[2]+4*c+h2,2)}")
        for h2 in (0, 2): st(f"v_pk_add_f32 {v(q+h2,2)}, {v(q+h2,2)}, {v(pr[0]+4*c+h2,2)}")
        st(f"ds_write_b128 v{aP[4]}, {v(q,4)} offset:{c*1024}")
    st("s_waitcnt lgkmcnt(0)")
    stamp(a, 30)
    st("s_barrier\n"*4)
    if TS[0] == 1: st(f"v_writelane_b32 v255, s{sCnt}, 5")
    wend(a, name)
    x = St(a)
    for nm, sF in polls: x(f"""{name}_{nm}retry:
    s_cmp_eq_u32 s{sCnt}, 0
    s_cbranch_scc1 {name}_{nm}ok
    s_sub_u32 s{sCnt}, s{sCnt}, 1
    {fl(sF)}
    s_waitcnt vmcnt(0)
    s_branch {name}_{nm}poll""")
    x(f"{name}_sretry:\n s_cmp_eq_u32 s{sCnt}, 0\n s_cbranch_scc1 {name}_sok\n s_sub_u32 s{sCnt}, s{sCnt}, 1")
    x.run(sld); x(f"s_waitcnt vmcnt(0)\n s_branch {name}_schk")
```

```python
from kfA1 import *
from kbA import slow_path
def waveA(E, st):
    a = E["a"]; name = E["name"]; cfg = E["cfg"]; S_ = E["S_"]; gS = E["gS"]; cR = E["cR"]; JB = E["JB"]
    sWS, sW, sT, sT2, sO, sN, sK, sTH, sHP, sE, sAct, sTag = [E[k] for k in "sWS sW sT sT2 sO sN sK sTH sHP sE sAct sTag".split()]
    sSP = S_(4); sBS = S_(4); sAr = S_(); sWb = [S_(), S_()]; sB = S_(); sWo = S_(); sZb = S_(); sZn = S_(); sZo = S_(); sFl = S_(); sCnt = S_(); sU = S_(); sOa = S_(); sOx = S_()
    sGm = S_(2); sF3 = S_(); sPk = S_(); sSc = S_(); C = lambda k, d: cfg.get(k, d)/10; FS = cfg.get('fs', 7)
    aW = [4, 5, 6, 7]; vl = 8; vo = [9, 10, 11, 252]; acc = BIG; W = [200, 204]; NZ = 11; Z = [208+4*z for z in range(NZ)]; t0, t1 = 253, 254
    T = 12; vE = 162; vu = 250
    st(f"{name}_A:")
    st(f"v_lshlrev_b32 v{vSt}, 4, v0\n s_setprio {cfg.get('p1', 1)}")
    E["common"](st)
    kv_addr(st, T+4)
    st(f"v_mov_b32 v{T}, v{vSt}")
    st(f"""
    s_mul_i32 s{sAr}, s{sK}, {AA}
    s_lshl_b32 s{sT}, s{S_TG}, 1
    s_add_u32 s{sT}, s{sT}, s{sTH}
    s_lshl_b32 s{sT2}, s{sK}, 10
    s_lshl_b32 s{sWb[0]}, s{sT}, 17
    s_add_u32 s{sWb[0]}, s{sWb[0]}, s{sT2}
    s_xor_b32 s{sWb[1]}, s{sWb[0]}, 0x20000
    s_mul_i32 s{sB}, s{S_J if JB < 3 else S_TG}, {cfg.get("wj", 2)}
    s_add_u32 s{sB}, s{sB}, s{S_TG if JB < 3 else S_J}
    s_and_b32 s{sB}, s{sB}, 7
    s_lshl_b32 s{sB}, s{sB}, 7
    s_mov_b32 s{sZn}, s{sB}
    s_mul_i32 s{sU}, s{sT}, {88*1024}
    s_add_u32 s{sU}, s{sU}, {hx(WS_ACT)}
    s_lshl_b32 s{sT}, s{S_J}, 2
    s_add_u32 s{sT}, s{sT}, s{sK}
    s_mul_i32 s{sZb}, s{sT}, {8*12288}
    s_add_u32 s{sZb}, s{sZb}, {hx(WS_Z2N)}
    s_lshl_b32 s{sFl}, s{sT}, {FS+5}
    v_lshrrev_b32 v{T+4}, 3, v0
    v_lshlrev_b32 v{T+4}, 12, v{T+4}
    v_lshrrev_b32 v{T+5}, 4, v0
    v_and_b32 v{T+6}, 7, v0
    v_xor_b32 v{T+5}, v{T+5}, v{T+6}
    v_lshl_add_u32 v{vo[0]}, v{T+5}, 4, v{T+4}
    v_xor_b32 v{T+5}, 64, v{vo[0]}
    v_add_u32 v{vo[1]}, {32768-1024}, v{T+5}
    v_add_u32 v{vo[2]}, {2*(32768-1024)}, v{vo[0]}
    v_add_u32 v{vo[3]}, {3*(32768-1024)}, v{T+5}
    v_lshrrev_b32 v{T+4}, 5, v0
    v_bfe_u32 v{T+5}, v0, 1, 3
    v_xor_b32 v{T+5}, v{T+5}, v{T+4}
    v_lshlrev_b32 v{T+5}, 4, v{T+5}
    v_and_b32 v{T+6}, 31, v0
    v_lshl_add_u32 v{T+5}, v{T+6}, 7, v{T+5}
    v_lshlrev_b32 v{t0}, {FS}, v{T+6}
    s_lshl_b32 s{sT}, s{sHP}, 7
    v_xor_b32 v{vl}, s{sT}, v{T}
    s_mov_b32 s{sCnt}, 0x8000
    """)
    for i in range(4): st(f"v_xor_b32 v{aW[i]}, {hx(32*i)}, v{T+5}\n v_add_u32 v{aW[i]}, s{sAr}, v{aW[i]}")
    st(f"""
    s_lshr_b32 s{sT}, s{S_J}, 1
    s_mul_i32 s{sT}, s{sT}, 5120
    s_add_u32 s{sOa}, s{sU}, s{sT}
    s_and_b32 s{sT}, s{S_J}, 1
    s_lshl_b32 s{sT}, s{sT}, 1
    s_add_u32 s{sT}, s{sT}, s{sHP}
    s_lshl_b32 s{sT2}, s{sT}, 8
    s_add_u32 s{sOx}, s{sOa}, s{sT2}
    s_add_u32 s{sOx}, s{sOx}, 4096
    s_lshl_b32 s{sT}, s{sT}, 10
    s_add_u32 s{sOa}, s{sOa}, s{sT}
    s_mul_i32 s{sT}, s{S_J}, 3072
    s_add_u32 s{sU}, s{sU}, s{sT}
    s_lshl_b32 s{sT}, s{sHP}, 9
    s_add_u32 s{sU}, s{sU}, s{sT}
    s_add_u32 s{sU}, s{sU}, {20*1024}
    s_mul_i32 s{sT}, s{sK}, 5120
    s_add_u32 s{sT}, s{sT}, {hx(WS_ACT)}
    """)
    for i in range(4): st(f"s_add_u32 s{sAct[i]}, s{sAct[i]}, s{sT}")
    uaddr = lambda vu, tp: [f"""v_bfe_u32 v{tp}, v0, 4, 1
    v_mul_u32_u24 v{vu}, {44*1024}, v{tp}
    v_and_b32 v{tp}, 15, v0""", f"""v_cmp_gt_u32 vcc, 32, v0
    v_lshl_add_u32 v{vu}, v{tp}, 4, v{vu}
    v_lshrrev_b32 v{tp}, 5, v0
    v_cndmask_b32 v{vu+1}, -4.0, v{vu}, vcc
    v_lshl_add_u32 v{vu}, v{tp}, 8, v{vu}"""]
    h, e, cb, tok = T+1, T+2, T+3, T+4
    st(f"""
    v_lshrrev_b32 v{h}, 5, v0
    v_bfe_u32 v{e}, v0, 2, 2
    v_and_b32 v{tok}, 31, v0
    v_bfe_u32 v{cb}, v0, 4, 1
    v_and_b32 v{T+5}, 3, v0
    v_lshlrev_b32 v{T+5}, 3, v{T+5}
    v_lshl_add_u32 v{cb}, v{cb}, 5, v{T+5}
    v_lshl_add_u32 v{T+6}, v{h}, 3, v{e}
    s_mul_i32 s{sT}, s{sHP}, 96
    v_mul_u32_u24 v{aZ[0]}, 192, v{T+6}
    v_add3_u32 v{aZ[0]}, v{aZ[0]}, v{cb}, s{sT}
    v_mad_u32_u24 v{T+7}, v{T+6}, 40, v{T+5}
    v_add_u32 v{T+6}, v{T+6}, v{e}
    s_mul_i32 s{sT}, s{sHP}, 40
    v_mul_u32_u24 v{aQ}, 160, v{T+6}
    v_add3_u32 v{aQ}, v{aQ}, v{cb}, s{sT}
    v_add_u32 v{aZ[1]}, 0x8000, v{aZ[0]}
    v_lshlrev_b32 v{aG}, 4, v{h}
    v_add_u32 v{aG}, {GATE}, v{aG}
    s_lshl_b32 s{sT}, s{sTH}, 12
    s_add_u32 s{sT}, s{sT}, {X0}
    s_sub_u32 s{sT}, s{sT}, s{sAr}
    s_mov_b32 s{sGm}, 0x100000
    s_mov_b32 s{sGm+1}, 0x100000
    v_mov_b64 {v(r.Q8,2)}, 0
    v_mov_b64 {v(r.Q8+2,2)}, 0
    """)
    for i in range(4): st(f"v_add_u32 v{aX[0][i]}, s{sT}, v{aW[i]}\n v_add_u32 v{aX[1][i]}, 0x10000, v{aX[0][i]}")
    st(f"""
    s_cmp_lt_u32 s{S_J}, 2
    s_cselect_b32 vcc_lo, 0xffff0000, 0
    s_mov_b32 vcc_hi, vcc_lo
    s_lshl_b32 s{sT}, s{sHP}, 5
    v_add_u32 v{T+7}, s{sT}, v{T+7}""")
    for i in range(8): st(f"""v_add_u32 v{T+8}, {768*(i&1)+3072*(i>>1)+64}, v{aZ[0]}
    v_add_u32 v{T+9}, {12288+160*(i&1)+640*(i>>1)}, v{T+7}
    v_cndmask_b32 v{aKV+i}, v{T+8}, v{T+9}, vcc""")
    st(f"""
    s_lshl_b32 s{sT}, s{sK}, 10
    s_add_u32 s{sT}, s{sT}, {LNS}
    v_lshl_add_u32 v{aLw}, v{tok}, 5, s{sT}
    v_lshl_add_u32 v{aLw}, v{h}, 3, v{aLw}
    s_lshl_b32 s{sT}, s{sK}, 12
    s_add_u32 s{sT}, s{sT}, {Z1P}
    v_add_u32 v{aPark}, s{sT}, v{vSt}
    s_mul_i32 s{sT}, s{sK}, 3072
    v_add_u32 v{aS}, s{sT}, v{vSt}
    v_add_u32 v{aTX}, {TX}, v{aS}
    v_add_u32 v{aS}, {QX}, v{aS}
    s_lshl_b32 s{sT}, s{S_TG}, 3
    s_add_u32 s{sT}, s{sT}, s{S_J}
    s_lshl_b32 s{sT}, s{sT}, 2
    s_add_u32 s{sT}, s{sT}, s{sK}
    s_lshl_b32 s{sT}, s{sT}, {FS}
    s_add_u32 s{sF3}, s{sT}, {hx(FL3)}
    s_cmp_eq_u32 s{S_J}, 0
    s_cselect_b32 s{sSc}, {fl(QSCALE)}, 1.0
    s_waitcnt lgkmcnt(0)""")
    srd(a, sWS, P_WS, WS_END); srd(a, sSP, P_WSP, 2048*4096); srd(a, sBS, P_BSP, 4096)
    st(f"s_mov_b32 s{sT}, {hx(WS_EP)}\n buffer_load_dword v{vE}, off, {s(sWS,4)}, s{sT}\n s_barrier", "ep")
    stamp(a, 1); lstamp(a, 1)
    sc = Sched()
    for x in reads(0, sGm) + reads(1, sGm): sc.op(x)
    gemm(sc, sGm)
    sc.place(["s_mov_b32 vcc_lo, 0xcccc0000\n s_mov_b32 vcc_hi, 0xcccc0000"] + [f"""v_add_u32 v{T+8}, {768*(i&1)+16*(i>>1)+16}, v{aZ[0]}
    v_add_u32 v{T+9}, {3072+160*(i&1)+80*(i>>1)}, v{aQ}
    v_cndmask_b32 v{aM+i}, v{T+9}, v{T+8}, vcc
    v_add_u32 v{aM+4+i}, 0x8000, v{aM+i}""" for i in range(4)], 1, 0.1, 0.9)
    sc.place([[("@", "ep"), f"v_readfirstlane_b32 s{sTag}, v{vE}"], f"s_add_u32 s{sTag}, s{sTag}, {hx(TAGC)}"], 8, 0.2, 0.8)
    if not cfg.get("tsb"): sc.place([lambda st_: stamp(a, 2)], 10, 0, 0); sc.place([lambda st_: stamp(a, 6)], 20, 0, 0)
    q = Z2+24
    kvx = sum([[f"v_mul_f32 v{q+2*i}, s{sSc}, v{q+2*i}\n v_mul_f32 v{q+2*i+1}, s{sSc}, v{q+2*i+1}", f"v_cvt_pk_bf16_f32 v{q+i}, v{q+2*i}, v{q+2*i+1}"] +
               [(f"ds_write_b64 v{aLw}, {v(q+i-1,2)} offset:{8*i-8}", "tx")]*(i & 1) for i in range(4)], [])
    hx_ = lambda n: [f"v_cvt_pk_bf16_f32 v{Z2+8*n+i}, v{Z2+8*n+2*i}, v{Z2+8*n+2*i+1}" for i in range(4)] + [(f"ds_write_b128 v{aTX}, {v(Z2+8*n,4)} offset:{1024*n}", "tx")]
    span(sc, hx_(0) + kvx, 11.1, 11.8, 0)
    for n in (1, 2): span(sc, hx_(n), 11.15+n, 11.6+n, 0)
    mark = lambda vu, d: [f"v_mov_b64 {v(d,2)}, -1\n v_mov_b64 {v(d+2,2)}, -1", f"buffer_store_dwordx4 {v(d,4)}, v{vu}, {s(sWS,4)}, s{sOa} offen sc1",
         f"buffer_store_dwordx4 {v(d,4)}, v{vu}, {s(sWS,4)}, s{sOa} offen offset:512 sc1", f"buffer_store_dwordx4 {v(d,4)}, v{vu+1}, {s(sWS,4)}, s{sOx} offen sc1"]
    if C("s0", 400) < 30: span(sc, uaddr(vu, 244) + mark(vu, 244), C("s0", 400), C("s1", 309), 0)
    sc.emit(st)
    st("s_nop 8")
    for ab in range(2):
        for i in range(4): st(f"v_cvt_pk_bf16_f32 v{r.Q16[ab]+i}, v{QA+16*ab+2*i}, v{QA+16*ab+2*i+1}")
        st(f"ds_write_b128 v{aS}, {v(r.Q16[ab],4)} offset:{1024*ab}", "qx")
    st("s_mov_b32 exec_hi, 0")
    for i in range(4): st(f"v_cvt_pk_bf16_f32 v{r.Q8+i}, v{QA+16*(i>>1)+8+2*(i&1)}, v{QA+16*(i>>1)+9+2*(i&1)}")
    st(f"s_mov_b32 exec_hi, -1\n ds_write_b128 v{aS}, {v(r.Q8,4)} offset:2048\n v_mul_f32 v{gl}, {fl(-LOG2E)}, v{QA+8}", "qx")
    ZR = [Z1+i for i in range(16)] + [QA+12+i for i in range(4)] + [QA+28+i for i in range(4)]; zp = 112; k1 = 186; ag = cfg.get("ag", 3)
    g1 = lambda g, pk: (gelu(ZR[8*g:8*g+8], Z2, k1, pk=pk) + [f"v_cvt_pk_bf16_f32 v{zp+4*g+i}, v{ZR[8*g+2*i]}, v{ZR[8*g+2*i+1]}" for i in range(4)] +
                        [f"ds_write_b128 v{aPark}, {v(zp+4*g,4)} offset:{1024*g}"])
    st(f"v_mov_b32 v{k1}, {fl(-GK1)}\n s_mov_b32 s{sGm}, {fl(-GK2)}\n s_mov_b32 s{sGm+1}, s{sGm}")
    for g in range(ag): st.run(g1(g, sGm))
    lstamp(a, 60); st.w("qx"); st("s_barrier"); stamp(a, 7); lstamp(a, 61); lstamp(a, None)
    def wsp(blk):
        L = []
        for b in range(8):
            x = ""
            if b & 3 == 0: x = f"s_add_u32 m0, s{sAr}, {(blk&1)*8192+b*1024}\n s_add_u32 s{sWo}, s{sWb[b>>2]}, s{sB}\n"
            x += f"buffer_load_dwordx4 v{vo[b&3]}, {s(sSP,4)}, s{sWo} offen offset:{(b&3)*1024} lds\n"
            if b == 7: x += f"s_add_u32 s{sB}, s{sB}, 128\n s_and_b32 s{sB}, s{sB}, 0x3ff"
            L.append((x, f"wsp{blk}"))
        return L
    def zld(f):
        ks, n = divmod(f, 3); x = ""
        if f % 12 == 0: x = f"s_mul_i32 s{sZo}, s{sZn}, 96\n s_add_u32 s{sZn}, s{sZn}, 128\n s_add_u32 s{sZo}, s{sZo}, s{sZb}\n s_and_b32 s{sZn}, s{sZn}, 0x3ff\n"
        elif n == 0: x = f"s_add_u32 s{sZo}, s{sZo}, 3072\n"
        return (x + f"buffer_load_dwordx4 {v(Z[f%NZ],4)}, v{vl}, {s(sWS,4)}, s{sZo} offen offset:{1024*n} sc1", f"z{f}")
    rW = lambda ks, th: [("@", f"wsp{ks>>2}"), (f"ds_read_b128 {v(W[th],4)}, v{aW[ks&3]} offset:{((ks>>2)&1)*8192+th*4096}", f"W{th}")]
    G = dict(m=0, q=[])
    DPG = cfg.get("dpg", 1)
    def gop():
        m = G["m"]; G["m"] += 1
        ks, th, n = m//6, (m % 6)//3, m % 3; f = 3*ks+n; ac = acc+48*th+16*n
        it = [("@", f"z{f}", f"W{th}"), f"{MF32} {v(ac,16)}, {v(Z[f%NZ],4)}, {v(W[th],4)}, {'0' if ks == 0 else v(ac,16)}"]
        if n == 2 and ks < 31: it += rW(ks+1, th)
        if th == 1 and f+NZ < 96: it.append(zld(f+NZ))
        if m % 24 == 21 and m//24 + 2 < 8: G["q"] = wsp(m//24 + 2)
        it += G["q"][:DPG]; G["q"] = G["q"][DPG:]
        if m == 191: it.append("; end of G")
        return it
    np_ = (cR-gS)*4
    dens = [[0]*4 for c in range(16)]
    for p in range(np_): dens[gS+p//4][p % 4] = 192*(p+1)//np_ - 192*p//np_
    pa = cfg.get("pa", 1)
    sc = attention(0, dens, gop, lambda c: ["rsw"], lambda c: [(lambda st_, c=c: stamp(a, 8+c))], lambda c, i: pa if (c, i) == (0, 0) and pa != cfg.get("p1", 1) else None)
    span(sc, sum([g1(g, 0) for g in range(ag, 3)], []), C("a0", 2), C("a1", 10*gS-1), 0)
    sc.place([f"v_mov_b32 v{gl-1}, v{gl}", f"s_nop 0\n v_permlane32_swap_b32 v{gl-1}, v{gl}", f"v_exp_f32 v{gl}, v{gl}", f"v_add_f32 v{gl}, 1.0, v{gl}", f"v_rcp_f32 v{gl}, v{gl}", f"ds_write_b32 v{aPark}, v{gl} offset:3072"], 0, 0.02, 0.1)
    ff = C("ff", 302)
    if cfg.get("tp0"):
        for i in range(2): span(sc, [f"""s_add_u32 s{sT}, s{sB}, {128*i}
        s_and_b32 s{sT}, s{sT}, 0x3ff
        s_andn2_b32 s{sT2}, s{sWb[0]}, 0x20000
        v_lshlrev_b32 v{Z[0]}, 12, v0
        s_add_u32 s{sT}, s{sT}, s{sT2}
        buffer_load_dword v{Z[0]+1}, v{Z[0]}, {s(sSP,4)}, s{sT} offen"""], C(f"tp{i}", 0), C(f"tp{i}", 0), 30)
        assert C("tp1", 0) < ff
    span(sc, wsp(0) + wsp(1), ff, ff+C("fl", 30), 30)
    if 30 <= C("s0", 400) < 40: span(sc, uaddr(vu, tg_) + mark(vu, tg_), C("s0", 400), C("s1", 309), 30)
    fld = f"buffer_load_dword v{t1}, v{t0}, {s(sWS,4)}, s{sFl} offen sc1"
    def poll(st_, p="p", k=3):
        st_(f"{name}_{p}oll:"); st_.w("F")
        st_(f"v_cmp_ne_u32 vcc, s{sTag}, v{t1}\n s_cbranch_vccnz {name}_{p}retry\n {name}_{p}ok:")
        stamp(a, k)
    sc.place([(fld, "F")], gS-1, cfg.get("f0", 20)/100, cfg.get("f0", 20)/100)
    sc.place([poll] + [zld(f) for f in range(NZ)], gS-1, cfg.get("f1", 60)/100, 1.0)
    sc.place([rW(0, 0), rW(0, 1)], gS, 0.1, 0.2)
    z1 = 208; og = 220; gt = 222; tp = 224; aR = [228, 229, 230, 231]; vu = 232; aF = 240; vt = 242
    quads = lambda d, n: [acc+48*(d & 1)+16*n+4*(d >> 1), acc+48*(d & 1)+16*n+4*(d >> 1)+8]
    wl = sc.win[cR]; e = max(i for i, o in enumerate(wl) if isinstance(o, list) and "; end of G" in o)
    it = [f"""v_lshlrev_b32 v{aF}, 4, v0
    v_add_u32 v{aR[0]}, s{sAr}, v{aF}
    s_lshl_b32 s{sT}, s{sK}, 12
    s_add_u32 s{sT}, s{sT}, {Z1P}
    v_add_u32 v{tp}, s{sT}, v{aF}"""]
    it += [(f"ds_read_b128 {v(z1+4*n,4)}, v{tp} offset:{1024*n}", "zp") for n in range(3)]
    it += [(f"""s_lshl_b32 s{sT}, s{S_TG}, 1
    s_add_u32 s{sT}, s{sT}, s{sTH}
    s_lshl_b32 s{sT2}, s{sT}, 6
    v_lshrrev_b32 v{vt}, {FS-1}, v{t0}
    ds_read_b32 v{gt}, v{tp} offset:3072
    buffer_load_ushort v{og+1}, v{vt}, {s(sBS,4)}, s{sT2} offen""", "zp")]
    for d in (2, 1, 3):
        for n in range(3):
            for e2, q in enumerate(quads(d, n)): it.append((f"ds_write_b128 v{aR[0]}, {v(q,4)} offset:{((d-1)*6+2*n+e2)*1024}", "rsw"))
        it.append(f"s_xor_b32 s{sT}, s{sK}, {d}\n s_mul_i32 s{sT}, s{sT}, {AA}\n v_add_u32 v{aR[d]}, s{sT}, v{aF}")
    sc.place(it, cR, (e+3)/len(wl), 0.9)
    it = []
    rd = lambda n: [(f"ds_read_b128 {v(q,4)}, v{aR[d]} offset:{((d-1)*6+2*n+e2)*1024}", f"rs{n}{e2}") for e2 in range(2) for d in (1, 2, 3) for q in [quads(d, n)[e2]]]
    it += rd(0)
    it += [[("@", "zp"), f"""v_sub_f32 v{og}, 1.0, v{gt}
    v_lshlrev_b32 v{og+1}, 16, v{og+1}
    v_mul_f32 v{og+1}, v{og}, v{og+1}"""]] + uaddr(vu, tp) + (mark(vu, 244) if C("s0", 400) >= 40 else [])
    for n in range(3):
        nr = rd(n+1) if n < 2 else []
        for e2 in range(2):
            for h2 in (0, 2):
                o_, p1, p2, p3 = [quads(d, n)[e2]+h2 for d in range(4)]; zi = z1+4*n+2*e2+h2//2
                it.append([("@", f"rs{n}{e2}"), f"""v_pk_add_f32 {v(o_,2)}, {v(o_,2)}, {v(p1,2)}
                v_pk_add_f32 {v(p2,2)}, {v(p2,2)}, {v(p3,2)}
                v_lshlrev_b32 v{tp}, 16, v{zi}
                v_pk_add_f32 {v(o_,2)}, {v(o_,2)}, {v(p2,2)}"""])
                it.append(f"""v_and_b32 v{tp+1}, 0xffff0000, v{zi}
                v_pk_fma_f32 {v(o_,2)}, {v(o_,2)}, {v(og,2)}, {v(og,2)} op_sel:[0,0,1] op_sel_hi:[1,0,1]
                v_pk_mul_f32 {v(o_,2)}, {v(o_,2)}, {v(tp,2)}
                v_cvt_pk_bf16_f32 v{zi}, v{o_}, v{o_+1}""")
                it += nr[:2]; nr = nr[2:]
        it.append((f"buffer_store_dwordx4 {v(z1+4*n,4)}, v{vu}, {s(sWS,4)}, s{sU} offen offset:{1024*n} sc1", "us"))
    it.append(lambda st_: stamp(a, 4))
    it.append(f"""s_lshl_b32 s{sT}, s{S_J}, 2
    s_add_u32 s{sT}, s{sT}, s{sK}
    s_mul_i32 s{sPk}, s{sT}, {11*5120}
    s_add_u32 s{sPk}, s{sPk}, {hx(WS_PK+6*5120)}
    s_or_b32 s{sT}, s2, s{sK}
    s_cmp_eq_u32 s{sT}, 0
    s_cselect_b32 s{sE}, 1, 0
    s_mov_b32 s{sE+1}, 0
    v_mov_b32 v{tp+1}, s{sTag}
    v_cndmask_b32 v{tp}, -4.0, v0, {s(sE,2)}
    s_mov_b32 s{sT}, {hx(WS_EP)}
    buffer_store_dword v{tp+1}, v{tp}, {s(sWS,4)}, s{sT} offen sc1""")
    wu = cfg.get("wu", 75)/100
    sc.place(it, cR+1, 0.0, wu)
    WO = lambda ks, c: BIG+4*(5*ks+c)
    f3 = cR+1+wu+C("f3", 5)
    span(sc, [[f"s_mov_b64 exec, 1", ("@", "us"), f"buffer_store_dword v{tp+1}, off, {s(sWS,4)}, s{sF3} sc1\n s_mov_b64 exec, -1", lambda st_: stamp(a, 30)]], f3, f3, 0)
    span(sc, pkloads(BIG, 25, aF, sWS, sPk, "wof"), cR+1+wu+0.02, min(cR+2.9, 16.6), 0)
    sc.emit(st)
    O = r.O; S = r.S; D = 208; t = 244; mx = 226; vA = [4, 5]; aP = [6, 7, 8, 9, 10]; vs = 11
    st(f"""s_mul_i32 s{sT}, s{sK}, 6144
    v_add_u32 v{t}, s{sT}, v{r.aK}
    s_mov_b32 s{sN}, 0""")
    f5 = cfg.get("f5", 1); fl5 = f"s_mov_b64 exec, 1\n buffer_store_dword v{tp+1}, off, {s(sWS,4)}, s{sF3} sc1\n s_mov_b64 exec, -1"
    if f5 >= 0: st(f"""s_lshl_b32 s{sT}, s{S_TG}, 3
    s_lshl_b32 s{sFl}, s{sK}, 1
    s_add_u32 s{sFl}, s{sFl}, s{sT}
    s_add_u32 s{sT}, s{sT}, s{S_J}
    s_lshl_b32 s{sFl}, s{sFl}, {FS}
    s_lshl_b32 s{sT}, s{sT}, {FS}
    s_add_u32 s{sFl}, s{sFl}, {hx(FL5)}
    s_add_u32 s{sT}, s{sT}, {hx(FL5)}
    s_cmp_eq_u32 s{sK}, 0
    s_cselect_b32 s{sF3}, s{sT}, {hx(WS_END)}
    v_and_b32 v{t0}, {1 << FS}, v{t0}""")
    if f5 == 0: st(fl5)
    st(f"v_lshlrev_b32 v{vA[0]}, 4, v0\n v_add_u32 v{vA[1]}, 0x1000, v{vA[0]}")
    srd(a, sSP, P_OUT, 2048*1280)
    st(f"""
    v_add_u32 v{aP[0]}, s{sAr}, v{vA[0]}
    s_mul_i32 s{sT}, s{sK}, 5120
    s_add_u32 s{sT}, s{sT}, {KV0}
    v_add_u32 v{aP[4]}, s{sT}, v{vA[0]}
    v_and_b32 v{t+1}, 15, v0
    v_mul_u32_u24 v{vs}, 0x500, v{t+1}
    v_lshrrev_b32 v{t+1}, 4, v0
    v_lshl_add_u32 v{vs}, v{t+1}, 3, v{vs}
    v_mov_b32 v{aP[1]}, v{aR[1]}
    v_mov_b32 v{aP[2]}, v{aR[2]}
    v_mov_b32 v{aP[3]}, v{aR[3]}
    s_lshl_b32 s{sT}, s{S_TG}, 2
    s_add_u32 s{sT}, s{sT}, s{E["sOwn"]}
    s_mul_i32 s{sO}, s{sT}, {16*1280}
    s_mul_i32 s{sT2}, s{S_J}, 160
    s_add_u32 s{sO}, s{sO}, s{sT2}
    """)
    lt = cfg.get("lt", 1); vo_ = [248, 249, 252]
    if lt:
        st(f"""v_and_b32 v{t+1}, 15, v0
        v_mul_u32_u24 v{t+1}, {1280-160}, v{t+1}
        v_sub_u32 v{vs}, v{vs}, v{t+1}
        v_add_u32 v{vs}, s{sAr}, v{vs}""")
    stamp(a, 24); st("s_barrier"); stamp(a, 25)
    if f5 == 1: st(fl5)
    for th in range(2):
        for i in range(3): st(f"ds_read_b128 {v(S[th]+4*i,4)}, v{t} offset:{(3*th+i)*1024}", f"po{th}{i}")
    for i in (2, 0, 1):
        for th in range(2):
            st.w(f"po{th}{i}")
            for h2 in (0, 2): st(f"v_pk_add_f32 {v(O[th]+4*i+h2,2)}, {v(O[th]+4*i+h2,2)}, {v(S[th]+4*i+h2,2)}")
    st(f"{name}_fin:")
    for i in range(4): st(f"v_permlane32_swap_b32 v{O[0]+8+i}, v{O[1]+8+i}")
    L = O[1]+8
    st(f"""
    v_rcp_f32 v{t}, v{L}
    v_cmp_ngt_f32 vcc, 0x5f800000, v{L}
    s_mov_b32 s{sT}, 0x1f800000
    v_mul_f32 v{t}, v{t}, v{gt}
    v_cmp_nlt_f32 {s(sE,2)}, s{sT}, v{L}
    v_mov_b32 v{t+2}, v{t}
    v_mov_b32 v{t+4}, v{t}
    s_or_b64 {s(sE,2)}, {s(sE,2)}, vcc
    v_pk_mul_f32 {v(O[0]+8,2)}, {v(O[0]+8,2)}, {v(t,2)} op_sel_hi:[1,0]
    v_permlane32_swap_b32 v{t+2}, v{t+4}
    v_pk_mul_f32 {v(O[0]+10,2)}, {v(O[0]+10,2)}, {v(t,2)} op_sel_hi:[1,0]
    """)
    for th in range(2):
        for i in range(0, 8, 2): st(f"v_pk_mul_f32 {v(O[th]+i,2)}, {v(O[th]+i,2)}, {v(t+2+2*th,2)} op_sel_hi:[1,0]")
    st(f"v_pk_mul_f32 {v(t+6,2)}, {v(O[0]+8,2)}, 0 op_sel_hi:[1,0]")
    for k_, q in enumerate([O[0]+10] + [O[th]+i for th in range(2) for i in range(0, 8, 2)]):
        st(f"v_pk_fma_f32 {v(t+6,2)}, {v(q,2)}, 0, {v(t+6,2)} op_sel_hi:[1,0,1]")
        if k_ > 0: st(f"v_cvt_pk_bf16_f32 v{D+k_-1}, v{q}, v{q+1}")
    st(f"""
    v_cmp_u_f32 vcc, v{t+6}, v{t+7}
    v_cvt_pk_bf16_f32 v{D+8}, v{O[0]+8}, v{O[0]+9}
    v_cvt_pk_bf16_f32 v{D+9}, v{O[0]+10}, v{O[0]+11}
    s_or_b64 vcc, {s(sE,2)}, vcc
    s_cbranch_vccnz {name}_slow
    {name}_pub:""")
    if f5 >= 0 and cfg.get("p5", 2) == 0: st(fld, "F")
    st(f"""
    buffer_store_dwordx4 {v(D,4)}, v{vu}, {s(sWS,4)}, s{sOa} offen sc1
    v_permlane32_swap_b32 v{D+8}, v{D+10}
    v_permlane32_swap_b32 v{D+9}, v{D+11}
    buffer_store_dwordx4 {v(D+4,4)}, v{vu}, {s(sWS,4)}, s{sOa} offen offset:512 sc1
    buffer_store_dwordx4 {v(D+8,4)}, v{vu+1}, {s(sWS,4)}, s{sOx} offen sc1
    """)
    if f5 == 2: st(fl5)
    if f5 >= 0 and cfg.get("p5", 2) == 1: st(fld, "F")
    stamp(a, 26)
    for i in range(3*lt): st(f"""v_add_u32 v{t+1}, {64*i}, v0
    v_mul_u32_u24 v{t+1}, 6554, v{t+1}
    v_lshrrev_b32 v{t+1}, 16, v{t+1}
    v_mul_u32_u24 v{t+1}, {1280-160}, v{t+1}
    v_add_u32 v{vo_[i]}, v{t+1}, v{vA[0]}""")
    act = [12+20*i for i in range(4)]
    def ald(st_, i):
        for ks in range(5): st_(f"buffer_load_dwordx4 {v(act[i]+4*ks,4)}, v{vA[ks>>2]}, {s(sWS,4)}, s{sAct[i]} offen offset:{1024*(ks&3)} sc1", f"o{i}_{ks}")
    if f5 < 0 or cfg.get("p5", 2) == 2: st("s_waitcnt vmcnt(0)")
    if f5 >= 0 and cfg.get("p5", 2) == 2: st(fld, "F")
    if cfg.get("y0", 0) == 0: st("s_barrier")
    if f5 >= 0: poll(st, "q", 29)
    st.w("wof")
    for i in range(4):
        ald(st, i)
        if cfg.get("y0", 0) == i+1: st("s_barrier")
    ac2 = [208, 228]; tc = 250
    ck = lambda i, ks: [f"v_max3_u32 v{tc+e}, v{act[i]+4*ks+2*e}, v{act[i]+4*ks+2*e+1}, v{tc+e}" if ks else f"v_max_u32 v{tc+e}, v{act[i]+2*e}, v{act[i]+2*e+1}" for e in range(2)]
    cke = f"v_max_u32 v{tc}, v{tc}, v{tc+1}\n v_cmp_eq_u32 vcc, -1, v{tc}"
    padd = lambda x, y: [f"v_pk_add_f32 {v(x+h2,2)}, {v(x+h2,2)}, {v(y+h2,2)}" for h2 in (0, 2)]
    for i in range(4):
        st(f"{name}_o{i}:")
        ex = [[] for m in range(25)]; br = f"s_cbranch_vccnz {name}_o{i}_retry\n {name}_o{i}_ok:"
        rdp = lambda d, q, c: (f"ds_read_b128 {v(q+4*c,4)}, v{aP[d+1]} offset:{(d*5120 if d < 3 else 0)+c*1024}", f"pr{d}{c}")
        ws_ = cfg.get("tw", 4) if i < 3 else cfg.get("tv", 2); yb = cfg.get("ty", 12)
        for c in range(5):
            if i: ex[ws_*c+1].append((f"ds_write_b128 v{aP[0]}, {v(ac2[(i-1)&1]+4*c,4)} offset:{(i-1)*5120+c*1024}", "pw"))
            if i: ex[ws_*c if i < 3 else c+yb-6].append(rdp((i+2) & 3, act[i-1], c))
            if i == 2: ex[min(ws_*c+8, 24)] += [("@", f"pr0{c}")] + padd(act[1]+4*c, act[0]+4*c)
            if i == 3: ex[yb+c].append(rdp(2, act[0], c)); ex[20+c] += [("@", f"pr2{c}")] + padd(act[0]+4*c, act[2]+4*c)
            ex[5*c+1 if i < 3 else c] += [("@", f"o{i}_{c}")] + ck(i, c)
        ex[22 if i < 3 else 4].append(cke)
        if i == 3: ex[5].insert(0, br); ex[yb] = [("@", "pw"), "s_barrier"] + ex[yb]
        for ks in range(5):
            st.w(f"o{i}_{ks}")
            if ks == 0 and i in (0, 3): stamp(a, 27 if i == 0 else 28)
            for c in range(5):
                q = ac2[i & 1]+4*c
                st(f"{MF16} {v(q,4)}, {v(WO(ks,c),4)}, {v(act[i]+4*ks,4)}, {v(q,4) if ks else v(act[1]+4*c,4) if i == 3 else '0'}")
                st.run(ex[5*ks+c])
        if i < 3: st(br); st.w("pw"); st("s_barrier")
    for c in range(5):
        q = ac2[1]+4*c; st.run(padd(q, act[0]+4*c))
        st(f"v_cvt_pk_bf16_f32 v{q}, v{q}, v{q+1}\n v_cvt_pk_bf16_f32 v{q+1}, v{q+2}, v{q+3}")
        st(f"ds_write_b64 v{vs}, {v(q,2)} offset:{15360+32*c}" if lt else f"buffer_store_dwordx2 {v(q,2)}, v{vs}, {s(sSP,4)}, s{sO} offen offset:{32*c}")
    for i in range(3*lt): st(f"ds_read_b128 {v(act[1]+4*i,4)}, v{aP[0]} offset:{15360+1024*i}", f"fo{i}")
    for i in range(3*lt):
        if i == 2: st("s_mov_b32 exec_hi, 0")
        st.w(f"fo{i}"); st(f"""buffer_store_dwordx4 {v(act[1]+4*i,4)}, v{vo_[i]}, {s(sSP,4)}, s{sO} offen offset:{1024*i} {["", "sc1", "nt", "sc0 sc1"][cfg.get("os", 0)]}""")
    if TS[0]: st("s_mov_b64 exec, -1")
    if TS[0] == 1: st(f"v_writelane_b32 v255, s{sCnt}, 5")
    wend(a, name)
    x = St(a)
    for p in "pq"[:1 + (f5 >= 0)]: x(f"""{name}_{p}retry:
    s_cmp_eq_u32 s{sCnt}, 0
    s_cbranch_scc1 {name}_{p}ok
    s_sub_u32 s{sCnt}, s{sCnt}, 1
    {fld}
    s_waitcnt vmcnt(0)
    s_branch {name}_{p}oll""")
    for i in range(4):
        x(f"{name}_o{i}_retry:\n s_cmp_eq_u32 s{sCnt}, 0\n s_cbranch_scc1 {name}_o{i}_ok\n s_sub_u32 s{sCnt}, s{sCnt}, 1")
        ald(x, i)
        for m in range(i+1, 4):
            x(f"s_waitcnt vmcnt({5*(4-m)})")
            for ks in range(5): x.run(ck(m, ks))
            x(f"{cke}\n s_cbranch_vccz {name}_o{i}_r{m}"); ald(x, m); x(f"{name}_o{i}_r{m}:")
        x(f"s_waitcnt vmcnt(0) lgkmcnt(0)\n s_branch {name}_o{i}")
    slow_path(a, name, sWS, sT, sN, [sWb[0], sWb[1], sB, sZb], mx, t)
```

```python
from kf import *
from kfA1 import span, gelu
Z2 = 104; Z1 = 136; ssr = [128, 132, 160, 164]; tg_ = 168; z1p = 176; sm = 188; vK1 = 192; raw = 196
aLw, aLr, vZn, aPark, aS, vSp, vF1, aTX, aPk = range(208, 217); vPk = [217, 218]; pkd = 224; kvd = 232; gr = 244
fl_ = fl
def waveB(E, st):
    a = E["a"]; name = E["name"]; cfg = E["cfg"]; S_ = E["S_"]; gS = E["gS"]; cR = E["cR"]
    sWS, sW, sT, sT2, sO, sN, sK, sTH, sHP, sE, sAct, sTag = [E[k] for k in "sWS sW sT sT2 sO sN sK sTH sHP sE sAct sTag".split()]
    sX = S_(4); sKW = S_(4); sKVo = S_(); sKVb = S_(); sCnt = S_(); sPk = S_(); sCw = S_(); sXo = S_(); sMx = S_(); sMz = S_(); sMq = S_(); sMk = S_(); sFl = S_()
    sMK = S_(2); sStr = S_(); sEx = S_(); sZs = S_(); sSt = S_(); sF2 = S_(); sF3 = S_(); sF4 = S_(); sPs = [S_(), S_()]; C = lambda k, d: cfg.get(k, d)/10; FS = cfg.get('fs', 7)
    TB = cfg.get("tsb", 0); stamp_ = globals()["stamp"]; stamp = (lambda a, k: None) if TB else stamp_
    def tb(b, odd):
        if TB and b != 4: a(f"s_bitcmp1_b32 s{sK}, 0\n s_cbranch_scc{1-odd} {name}_tb{b}_{odd}"); stamp_(a, b+1); a(f"{name}_tb{b}_{odd}:")
    vz = 4; vA = [11, 252]; t0, t1 = 253, 254
    vx = [12, 13]; vw = [14, 15, 16]; vq = [17, 18, 19]; vk = 20; vg = 21; aQx = 30; t = 22
    st(f"""{name}_B:
    s_setprio {cfg.get("p2", 0)}
    v_lshrrev_b32 v{t}, 3, v0
    s_lshl_b32 s{sT}, s{sK}, 4
    v_bfe_u32 v{t+1}, v0, 4, 2
    v_and_b32 v{t+2}, 7, v0
    s_lshl_b32 s{sT2}, s{S_TG}, 6
    v_xor_b32 v{t+1}, v{t+1}, v{t+2}
    s_add_u32 s{sT2}, s{sT2}, s{sT}
    v_add_u32 v{t}, s{sT2}, v{t}
    v_mul_u32_u24 v{t}, 0x500, v{t}
    v_lshl_add_u32 v{vx[0]}, v{t+1}, 4, v{t}
    s_mul_i32 s{sMz}, s{sK}, 3072
    v_xor_b32 v{vx[1]}, 64, v{vx[0]}
    s_lshl_b32 s{sT2}, s{sMz}, 4
    v_add_u32 v{vx[1]}, {8*1280-1024}, v{vx[1]}
    v_lshlrev_b32 v{vA[0]}, 4, v0
    """)
    for i in range(3):
        st(f"""v_add_u32 v{t}, {64*i}, v0
        v_mul_u32_u24 v{t}, 5462, v{t}
        v_lshrrev_b32 v{t}, 16, v{t}
        v_mul_u32_u24 v{t}, {3072-192}, v{t}
        v_add3_u32 v{vw[i]}, v{t}, v{vA[0]}, s{sT2}""")
    if cfg.get("stag", 1): st(f"""
    s_and_b32 s{sT}, s{S_J if E["JB"] < 3 else S_TG}, 3
    s_mul_i32 s{sT}, s{sT}, {cfg.get("sj", 3)}
    s_add_u32 s{sCw}, s{sT}, s{S_TG if E["JB"] < 3 else S_J}
    s_mul_i32 s{sT}, s{sCw}, 26
    s_lshr_b32 s{sT}, s{sT}, 8
    s_mul_i32 s{sT}, s{sT}, 10
    s_sub_u32 s{sCw}, s{sCw}, s{sT}""")
    else: st(f"s_mov_b32 s{sCw}, 0")
    st(f"""
    s_lshl_b32 s{sXo}, s{sCw}, 7
    s_lshl_b32 s{sMx}, s{sK}, 11
    s_add_u32 s{sMx}, s{sMx}, {X0}
    s_mul_i32 s{sMk}, s{sK}, 640
    v_add_u32 v{vk}, s{sMk}, v{vA[0]}
    s_mul_i32 s{sT}, s{S_J}, 192
    s_add_u32 s{sT}, s{sT}, 1536
    s_sub_u32 s{sW+2}, {640*3072}, s{sT}
    s_mov_b32 s{sW+3}, 0x20000
    s_mov_b32 s{sX+2}, {2048*1280}
    s_mov_b32 s{sX+3}, 0x20000
    s_cmp_lt_u32 s{S_J}, 2
    s_cselect_b32 s{sMK}, -1, 0
    s_cselect_b32 s{sMK+1}, 0xff, 0
    s_mov_b32 s{sKW+2}, 25600
    s_mov_b32 s{sKW+3}, 0x20000
    s_waitcnt lgkmcnt(0)
    s_mov_b32 s{sX}, s{P_X}
    s_mov_b32 s{sX+1}, s{P_X+1}
    s_add_u32 s{sW}, s{P_WIN}, s{sT}
    s_addc_u32 s{sW+1}, s{P_WIN+1}, 0
    s_bitcmp1_b32 s{S_J}, 0
    s_cselect_b32 s{sKW}, s{P_WV}, s{P_WK}
    s_cselect_b32 s{sKW+1}, s{P_WV+1}, s{P_WK+1}
    """)
    def dX(i):
        return [(f"""s_add_u32 m0, s{sMx}, {xblk(i)}
        s_add_u32 s{sT}, s{sXo}, 128
        buffer_load_dwordx4 v{vx[0]}, {s(sX,4)}, s{sXo} offen lds
        buffer_load_dwordx4 v{vx[1]}, {s(sX,4)}, s{sXo} offen offset:1024 lds
        s_cmp_eq_u32 s{sT}, 1280
        s_cselect_b32 s{sXo}, 0, s{sT}""", f"x{i}")]
    def dW(q):
        L = []; Q = q >= 10; x = ""
        if q < 10: L.append((f"""s_add_u32 m0, s{sMk}, {POS[q]+12288}
            s_mul_i32 s{sO}, s{sCw}, 2560
            s_mov_b64 exec, {s(sMK,2)}
            buffer_load_dwordx4 v{vk}, {s(sKW,4)}, s{sO} offen lds
            s_mov_b64 exec, -1""", f"w{q}"))
        if q == 10: x = f"""s_mul_i32 s{sT}, s{S_J}, 160
            s_add_u32 s{sE}, s{P_WQ}, s{sT}
            s_addc_u32 s{sE+1}, s{P_WQ+1}, 0
            s_sub_u32 s{sT}, {640*1280}, s{sT}
            s_sub_u32 s{sW}, s{sW}, 1536
            s_subb_u32 s{sW+1}, s{sW+1}, 0
            s_mul_i32 s{sCw}, s{sCw}, s{sStr}
            s_lshl_b32 s{sCw}, s{sCw}, 1
            s_cmp_lt_u32 s{sK}, 2
            s_cselect_b64 {s(sW,2)}, {s(sW,2)}, {s(sE,2)}
            s_cselect_b32 s{sW+2}, s{sW+2}, s{sT}\n"""
        x += f"s_add_u32 m0, s{sMq}, {POS[q]}\n s_add_u32 s{sO}, s{sCw}, s{sStr}\n" if Q else f"s_add_u32 m0, s{sMz}, {POS[q]}\n s_mul_i32 s{sO}, s{sCw}, {64*3072}\n"
        for i in range(3):
            x += f"buffer_load_dwordx4 v{(vq if Q else vw)[i]}, {s(sW,4)}, s{sCw if Q else sO} offen offset:{1024*i} lds\n"
            if i == 0 and not Q: x += f"s_add_u32 s{sCw}, s{sCw}, 1\n s_cmp_eq_u32 s{sCw}, 10\n s_cselect_b32 s{sCw}, 0, s{sCw}"
            if i == 2 and Q: x += f"s_cmp_eq_u32 s{sO}, s{sEx}\n s_cselect_b32 s{sCw}, 0, s{sO}"
            L.append((x, f"w{q}")); x = ""
        return L
    st(f"s_mov_b32 s{sN}, s{sXo}")
    n0 = cfg.get("n0", 3); nb = cfg.get("nb", 2); xq = list(range(10)); wq = list(range(30))
    def issue(b, n):
        L = []
        for i in range(n):
            if xq: L += dX(xq.pop(0))
            if wq and FREE[wq[0]] <= b: L += dW(wq.pop(0))
        return L
    st.run(issue(-1, n0))
    srd(a, sWS, P_WS, WS_END)
    st(f"s_mov_b32 s{sT}, {hx(WS_EP)}\n s_load_dword s{sTag}, {s(P_WS,2)}, s{sT}")
    st(f"""
    s_mul_i32 s{sT}, s{sK}, 320
    s_add_u32 s{sT}, s{sT}, s{sN}
    v_add_u32 v{vg}, s{sT}, v{vA[0]}
    v_subrev_u32 v{t}, 1280, v{vg}
    v_min_u32 v{vg}, v{vg}, v{t}
    s_and_b32 s{sT}, s{sK}, 1
    s_mul_i32 s{sMq}, s{sT}, 6144
    s_mul_i32 s{sT2}, s{sT}, {16*1280}
    s_cmp_lt_u32 s{sK}, 2
    s_cselect_b32 s{sStr}, {32*3072}, {0}
    s_cselect_b64 vcc, -1, 0
    s_cselect_b32 s{sT}, 0, 3072
    s_add_u32 s{sMq}, s{sMq}, s{sT}
    s_max_u32 s{sStr}, s{sStr}, {32*1280}
    s_mul_i32 s{sEx}, s{sStr}, 20
    """)
    for i in range(3):
        st(f"""v_add_u32 v{t}, {64*i}, v0
        v_mul_u32_u24 v{t}, 6554, v{t}
        v_lshrrev_b32 v{t}, 16, v{t}
        v_mul_u32_u24 v{t+1}, 160, v{t}
        v_sub_u32 v{t+1}, v{vA[0]}, v{t+1}
        v_and_b32 v{t+2}, 8, v{t}
        v_bfe_u32 v{t+3}, v{t}, 1, 2
        v_and_b32 v{t}, 1, v{t}
        v_lshl_add_u32 v{t}, v{t}, 2, v{t+3}
        v_add_u32 v{t}, v{t}, v{t+2}
        v_mul_u32_u24 v{t}, 0x500, v{t}
        v_add3_u32 v{vq[i]}, v{t}, v{t+1}, s{sT2}
        {f"s_mov_b32 exec_lo, 0{chr(10)} v_mov_b32 v{vq[i]}, -4.0{chr(10)} s_mov_b32 exec_lo, -1" if i == 2 else ""}
        v_cndmask_b32 v{vq[i]}, v{vq[i]}, v{vw[i]}, vcc""")
    E["common"](st)
    kv_addr(st, t)
    st(f"""
    s_add_u32 s{sKVb}, s{sMz}, {KV0}
    v_add_u32 v{vz}, s{sMz}, v{vA[0]}
    v_add_u32 v{aQx}, {QX}, v{vz}
    s_lshr_b32 s{sKVo}, s{S_TG}, 1
    s_mul_i32 s{sKVo}, s{sKVo}, {KVS}
    s_add_u32 s{sKVo}, s{sKVo}, {hx(WS_KV)}
    v_add_u32 v{vA[1]}, 0x1000, v{vA[0]}
    s_mov_b32 s{sCnt}, 0x8000
    s_mov_b32 s{sFl}, {hx(FL1)}
    s_and_b32 s{sT}, s{S_TG}, 30
    v_min_u32 v{t0}, {cfg.get("nf", 12)-1}, v0
    v_lshl_add_u32 v{t0}, s{sT}, 1, v{t0}
    v_and_b32 v{t0}, 63, v{t0}
    v_lshlrev_b32 v{t0}, {FS}, v{t0}
    s_lshl_b32 s{sT}, s{S_J}, 2
    s_add_u32 s{sT}, s{sT}, s{sK}
    s_lshl_b32 s{sF4}, s{sT}, {FS+5}
    s_add_u32 s{sF4}, s{sF4}, {hx(FL4)}
    s_mul_i32 s{sPk}, s{sT}, {11*5120}
    s_add_u32 s{sPk}, s{sPk}, {hx(WS_PK)}
    s_mul_i32 s{sT}, s{sK}, 6144
    s_add_u32 s{sT}, s{sT}, {hx(WS_ACT+20*1024)}
    """)
    for i in range(4): st(f"s_add_u32 s{sAct[i]}, s{sAct[i]}, s{sT}")
    def kv(c):
        L = [(f"s_add_u32 m0, s{sKVb}, {slot(c)}\n s_nop 0\n" if i == 0 else "") + f"buffer_load_dwordx4 v{vz}, {s(sWS,4)}, s{sKVo} offen offset:{1024*i} sc1 lds" for i in range(3)]
        L[2] += f"\n s_add_u32 s{sKVo}, s{sKVo}, {KVS}\n s_cmp_eq_u32 s{sKVo}, {hx(WS_KV+16*KVS)}\n s_cselect_b32 s{sKVo}, {hx(WS_KV)}, s{sKVo}"
        return [(x, f"kv{c}") for x in L]
    fl = lambda sF: f"buffer_load_dword v{t1}, v{t0}, {s(sWS,4)}, s{sF} offen sc1"
    polls = []
    def poll(nm, sF, k):
        def f(st_):
            st_(f"{name}_{nm}poll:"); st_.w("F")
            st_(f"v_cmp_ne_u32 vcc, s{sTag}, v{t1}\n s_cbranch_vccnz {name}_{nm}retry\n {name}_{nm}ok:"); polls.append((nm, sF))
            if k: stamp(a, k)
        return f
    flag = lambda tag, sF, o=0: ["s_mov_b64 exec, 1", ("@", tag), f"buffer_store_dword v{gr+1}, off, {s(sWS,4)}, s{sF} sc1\n s_mov_b64 exec, -1"]
    ex = [[] for b in range(47)]
    def put(items, w0, w1):
        for i, it in enumerate(items): x = w0 + (w1-w0)*(i+0.5)/len(items); ex[int(x)].append((x, it))
    h, e, tok = t+1, t+2, t+3; T = kvd+4
    put([f"""
    v_lshrrev_b32 v{h}, 5, v0
    v_bfe_u32 v{e}, v0, 2, 2
    v_and_b32 v{tok}, 31, v0
    v_and_b32 v{t+5}, 3, v0
    s_lshl_b32 s{sT}, s{sTH}, 1
    s_add_u32 s{sT}, s{sT}, s{sHP}
    s_lshl_b32 s{sT}, s{sT}, 9
    s_add_u32 s{sT}, s{sT}, {STX}
    v_lshl_add_u32 v{aS}, v0, 3, s{sT}""", f"""
    s_lshl_b32 s{sT}, s{sK}, 10
    s_add_u32 s{sT}, s{sT}, {LNS}
    v_lshl_add_u32 v{aLw}, v{tok}, 5, s{sT}
    v_lshl_add_u32 v{aLw}, v{h}, 3, v{aLw}
    v_lshrrev_b32 v{t+6}, 4, v0
    v_lshl_add_u32 v{aLr}, v{t+6}, 3, v{e}
    v_lshl_add_u32 v{aLr}, v{aLr}, 5, s{sT}
    v_lshl_add_u32 v{aLr}, v{t+5}, 3, v{aLr}""", f"""
    v_mul_u32_u24 v{vZn}, 3072, v{h}
    v_and_b32 v{t+6}, 1, v{t+6}
    v_lshl_add_u32 v{vZn}, v{t+6}, 9, v{vZn}
    v_and_b32 v{t+6}, 7, v0
    v_lshl_add_u32 v{vZn}, v{t+6}, 4, v{vZn}
    v_bfe_u32 v{t+6}, v0, 3, 1
    v_lshl_add_u32 v{vZn}, v{t+6}, 8, v{vZn}
    v_add_u32 v{aTX}, {TX}, v{vz}""", f"""
    s_lshl_b32 s{sT}, s{S_TG}, 1
    s_add_u32 s{sT}, s{sT}, s{sTH}
    s_lshl_b32 s{sSt}, s{sT}, 12
    s_add_u32 s{sSt}, s{sSt}, {hx(WS_ST2)}
    s_mul_i32 s{sZs}, s{sT}, 6144
    s_mul_i32 s{sT}, s{S_J}, {128*3072}
    s_add_u32 s{sZs}, s{sZs}, s{sT}
    s_lshl_b32 s{sT}, s{sHP}, 7
    s_add_u32 s{sZs}, s{sZs}, s{sT}
    s_add_u32 s{sZs}, s{sZs}, {hx(WS_Z2N)}""", f"""
    s_lshl_b32 s{sT}, s{S_J}, 5
    s_add_u32 s{sT}, s{sT}, s{S_TG}
    s_lshl_b32 s{sT}, s{sT}, 2
    s_add_u32 s{sT}, s{sT}, s{sK}
    s_lshl_b32 s{sF2}, s{sT}, {FS}
    s_lshl_b32 s{sT}, s{S_TG}, 2
    s_add_u32 s{sT}, s{sT}, s{sK}
    s_lshl_b32 s{sT}, s{sT}, {FS+3}
    s_add_u32 s{sF3}, s{sT}, {hx(FL3)}""", f"""
    s_lshl_b32 s{sT2}, s{sHP}, 5
    s_sub_u32 s{sT2}, 32, s{sT2}
    v_cmp_gt_u32 vcc, s{sT2}, v0
    s_lshl_b32 s{sT}, s{S_J}, 9
    v_add_u32 v{t+6}, s{sT}, v{vA[0]}
    v_cndmask_b32 v{vSp}, -4.0, v{t+6}, vcc
    v_mov_b32 v{vK1}, {fl_(-GK1)}
    v_mov_b64 {v(sm,2)}, 0
    v_mov_b64 {v(sm+2,2)}, 0""",
    f"""s_lshr_b32 s{sT}, s{S_TG}, 1
    s_mul_i32 s{sN}, s{sT}, {KVS}
    s_and_b32 s{sT}, s{S_TG}, 1
    s_lshl_b32 s{sT2}, s{sT}, 1
    s_add_u32 s{sT2}, s{sT2}, s{sTH}
    s_mul_i32 s{sKW+2}, s{sT2}, 1536
    s_add_u32 s{sKW+2}, s{sKW+2}, 5120
    s_lshl_b32 s{sT2}, s{sT2}, 10
    s_lshl_b32 s{sT}, s{sT}, 9
    s_add_u32 s{sT}, s{sT}, 0x1000
    s_cmp_eq_u32 s{sHP}, 0
    s_cselect_b32 s{sT}, s{sT2}, s{sT}
    s_cselect_b32 s{sT2}, 16, 0x400
    v_add_u32 v{T}, s{sT2}, v{aLw}
    s_cmp_eq_u32 s{S_J}, 0
    s_cselect_b32 s{sT}, s{sT}, s{sKW+2}
    s_cselect_b64 {s(sMK,2)}, -1, 0
    s_add_u32 s{sN}, s{sN}, s{sT}
    s_add_u32 s{sN}, s{sN}, {hx(WS_KV)}
    s_cmp_lt_u32 s{S_J}, 2
    s_cselect_b32 s{sKW+2}, s{sN}, {hx(WS_END)}""", f"""
    v_bfe_u32 v{T+1}, v0, 4, 1
    v_lshlrev_b32 v{T+1}, 7, v{T+1}
    v_sub_u32 v{T+1}, v{aLr}, v{T+1}
    s_lshl_b32 s{sT}, s{sHP}, 4
    v_and_b32 v{t+4}, 15, v0
    v_add_u32 v{t+4}, s{sT}, v{t+4}
    v_lshrrev_b32 v{T+2}, 4, v0
    v_mul_u32_u24 v{T+2}, 0x180, v{T+2}
    v_lshl_add_u32 v{T+2}, v{t+4}, 4, v{T+2}
    v_mov_b32 v{T+3}, 0x3f803f80
    v_cmp_eq_u32 vcc, 20, v{t+4}
    v_cmp_gt_u32 {s(sKW,2)}, 24, v{t+4}
    s_lshl_b32 s{sT}, s{sK}, 5
    s_sub_u32 s{sT}, 96, s{sT}
    v_cndmask_b32 v{T+3}, 0, v{T+3}, vcc
    v_cmp_gt_u32 vcc, s{sT}, v0
    v_cndmask_b32 v{T+2}, -4.0, v{T+2}, {s(sKW,2)}
    v_cmp_gt_u32 {s(sKW,2)}, 20, v{t+4}
    v_cndmask_b32 v{t+4}, -4.0, v{vA[0]}, vcc
    v_cndmask_b32 v{T+2}, v{T+2}, v{t+4}, {s(sMK,2)}
    s_or_b64 {s(sKW,2)}, {s(sKW,2)}, {s(sMK,2)}""",
    f"""s_and_b32 s{sT}, s{S_TG}, 7
    s_lshl_b32 s{sT}, s{sT}, 2
    s_add_u32 s{sT}, s{sT}, s{sK}
    s_lshr_b32 s{sT2}, s{S_TG}, 3
    s_lshl_b32 s{sN}, s{S_J}, 2
    s_add_u32 s{sN}, s{sN}, s{sT2}
    s_mul_i32 s{sN}, s{sN}, 55
    s_add_u32 s{sN}, s{sN}, s{sT}
    s_lshl_b32 s{sN}, s{sN}, 10
    s_add_u32 s{sPs[0]}, s{sN}, {hx(WS_PK)}
    s_add_u32 s{sPs[1]}, s{sN}, {hx(WS_PK+30*1024)}
    s_cmp_lt_u32 s{sT}, 30
    s_cselect_b32 s{sPs[0]}, s{sPs[0]}, {hx(WS_END)}
    s_cmp_lt_u32 s{sT}, 25
    s_cselect_b32 s{sPs[1]}, s{sPs[1]}, {hx(WS_END)}
    s_mul_i32 s{sE}, s{sT}, 52
    s_lshr_b32 s{sE}, s{sE}, 8
    s_sub_u32 s{sN}, s{S_J}, s{sE}
    s_mul_i32 s{sN}, s{sN}, 5
    s_add_u32 s{sN}, s{sN}, s{sT}
    s_lshl_b32 s{sN}, s{sN}, 5
    v_and_b32 v{t}, 1, v0
    v_lshl_add_u32 v{t}, v{t}, 4, s{sN}
    v_bfe_u32 v{t+4}, v0, 1, 2
    v_bfe_u32 v{t+5}, v0, 3, 1
    v_bfe_u32 v{t+6}, v0, 4, 1""", f"""
    s_lshr_b32 s{sT2}, s{S_TG}, 3
    s_mul_i32 s{sN}, s{sT2}, 12
    s_add_u32 s{sN}, s{sN}, s{sE}
    s_cmp_ge_u32 s{sE}, 3
    s_cselect_b32 s{sT}, 3, 0
    s_add_u32 s{sN}, s{sN}, s{sT}
    s_lshl_b32 s{sN}, s{sN}, 4
    v_lshl_add_u32 v{vPk[0]}, v{t+5}, 2, v{t+4}
    v_mad_u32_u24 v{vPk[0]}, v{t+6}, 48, v{vPk[0]}
    v_lshl_add_u32 v{vPk[0]}, v{h}, 3, v{vPk[0]}
    v_add_u32 v{vPk[0]}, s{sN}, v{vPk[0]}
    v_mul_u32_u24 v{vPk[0]}, 0x500, v{vPk[0]}
    v_add_u32 v{vPk[0]}, v{vPk[0]}, v{t}""", f"""
    s_and_b32 s{sT}, s{sE}, 1
    s_and_b32 s{sN}, s{sE}, 2
    s_lshl_b32 s{sN}, s{sN}, 1
    s_add_u32 s{sN}, s{sN}, s{sT}
    s_mul_i32 s{sN}, s{sN}, 20
    s_cmp_eq_u32 s{sE}, 4
    s_cselect_b32 s{sN}, 16, s{sN}
    s_cselect_b32 s{sT}, 20, 4
    v_mad_u32_u24 v{vPk[1]}, v{t+5}, s{sT}, v{t+4}
    s_cselect_b32 s{sT}, 80, 40
    v_mad_u32_u24 v{vPk[1]}, v{t+6}, s{sT}, v{vPk[1]}
    s_cselect_b32 s{sT}, 40, 8
    v_mad_u32_u24 v{vPk[1]}, v{h}, s{sT}, v{vPk[1]}
    s_lshr_b32 s{sT2}, s{S_TG}, 3
    s_mul_i32 s{sT2}, s{sT2}, 160
    s_add_u32 s{sN}, s{sN}, s{sT2}
    v_add_u32 v{vPk[1]}, s{sN}, v{vPk[1]}
    v_mul_u32_u24 v{vPk[1]}, 0x500, v{vPk[1]}
    v_add_u32 v{vPk[1]}, v{vPk[1]}, v{t}
    s_lshl_b32 s{sT}, s{sK}, 11
    s_add_u32 s{sMk}, s{sT}, {PKS}
    v_lshl_add_u32 v{aPk}, v0, 3, s{sMk}""", f"""
    s_waitcnt lgkmcnt(0)
    s_add_u32 s{sTag}, s{sTag}, {hx(TAGC)}
    v_mov_b32 v{gr+1}, s{sTag}
    v_mov_b32 v{gr+3}, s{sTag}
    s_lshl_b32 s{sT}, s{S_TG}, 1
    s_add_u32 s{sT}, s{sT}, s{S_J}
    s_lshl_b32 s{sT}, s{sT}, {FS}
    s_add_u32 s{sXo}, s{sT}, {hx(FL1)}
    s_lshl_b32 s{sT}, s{sK}, 1
    s_or_b32 s{sT}, s{sT}, s{S_J}
    s_cmp_lt_u32 s{sT}, 2
    s_cselect_b32 s{sXo}, s{sXo}, {hx(WS_END)}"""], 6, 12)
    gate = (f"""s_mul_i32 s{sT}, s{sK}, 320
    s_add_u32 m0, s{sT}, {GATE}
    s_mov_b32 s{sX}, s{P_GW}
    s_mov_b32 s{sX+1}, s{P_GW+1}
    s_mov_b32 s{sX+2}, 1280
    s_mov_b64 exec, 0xfffff
    buffer_load_dwordx4 v{vg}, {s(sX,4)}, 0 offen lds
    s_mov_b64 exec, -1""", "x10")
    kvs = [(f"""ds_read_b64_tr_b16 {v(kvd,2)}, v{T+1}
    ds_read_b64_tr_b16 {v(kvd+2,2)}, v{T+1} offset:256
    s_mov_b64 exec, {s(sMK,2)}
    ds_read_b64 {v(kvd,2)}, v{aLw}
    ds_read_b64 {v(kvd+2,2)}, v{T}
    s_mov_b64 exec, -1""", "kr"), [("@", "kr")] + [f"v_cndmask_b32 v{kvd+i}, v{T+3}, v{kvd+i}, {s(sKW,2)}" for i in range(4)] +
    [(f"buffer_store_dwordx4 {v(kvd,4)}, v{T+2}, {s(sWS,4)}, s{sKW+2} offen sc1", "kvs")]]
    g2 = C("g2", 239); hl = 1
    for n in range(3): put([(f"ds_read_b128 {v(raw+4*n,4)}, v{aTX} offset:{1024*n}", f"tx{n}")] , 11+n+hl, 11+n+hl)
    put(kvs[:1], 12, 12); put(kvs[1:], C("kp", 128), C("kp", 128))
    def gz(g):
        X = range(Z2+8*g, Z2+8*g+8); L = [f"v_lshlrev_b32 v{x}, 16, v{raw+4*g+i}\n v_and_b32 v{x+1}, 0xffff0000, v{raw+4*g+i}" for i, x in enumerate(X[::2])]
        return [[("@", f"tx{g}"), L[0]]] + L[1:] + gelu(X, tg_, vK1, ("v_add_f32 {s1}, {s1}, {x}", "v_fmac_f32 {s2}, {x}, {x}"), s1=sm, s2=sm+2)
    assert g2 >= 14.2+hl
    put(gz(0) + gz(1) + gz(2) +
        [f"v_add_f32 v{sm}, v{sm}, v{sm+1}\n v_add_f32 v{sm+1}, v{sm+2}, v{sm+3}\n v_mov_b64 {v(tg_,2)}, {v(sm,2)}\n s_nop 1\n v_permlane32_swap_b32 v{sm}, v{tg_}\n v_permlane32_swap_b32 v{sm+1}, v{tg_+1}",
         (f"v_add_f32 v{sm}, v{sm}, v{tg_}\n v_add_f32 v{sm+1}, v{sm+1}, v{tg_+1}\n ds_write_b64 v{aS}, {v(sm,2)}", "stx")], 11.1+hl, g2)
    put([(f"ds_read_b64 {v(tg_,2)}, v{aS} offset:512", "sty"),
         [("@", "sty"), f"""v_add_f32 v{gr}, v{sm}, v{tg_}
         v_add_f32 v{gr+2}, v{sm+1}, v{tg_+1}
         buffer_store_dwordx4 {v(gr,4)}, v{vSp}, {s(sWS,4)}, s{sSt} offen sc1"""]], int(g2)+1, int(g2)+1)
    f1b = cfg.get("f1b", 16)
    put([flag("kvs", sXo)], f1b, f1b)
    sld = [(f"buffer_load_dwordx4 {v(ssr[i],4)}, v{vA[0]}, {s(sWS,4)}, s{sSt} offen offset:{1024*i} sc1", "ss") for i in range(4)]
    m, n_ = tg_+2, tg_+3; mu = sm
    def schk(st_):
        st_(f"{name}_schk:"); st_.w("ss")
        G_ = [x+o for x in ssr for o in (1, 3)]
        for op, d in (("max", m), ("min", n_)):
            st_(f"v_{op}3_u32 v{d}, v{G_[0]}, v{G_[1]}, s{sTag}")
            for i in (2, 4, 6): st_(f"v_{op}3_u32 v{d}, v{G_[i]}, v{G_[i+1]}, v{d}")
        st_(f"v_cmp_ne_u32 vcc, v{m}, v{n_}\n s_cbranch_vccnz {name}_sretry\n {name}_sok:")
        stamp(a, 4)
    LN = [schk]
    for o in (0, 2): LN += [f"v_add_f32 v{m}, v{ssr[0]+o}, v{ssr[1]+o}\n v_add_f32 v{n_}, v{ssr[2]+o}, v{ssr[3]+o}\n v_add_f32 v{mu+o//2}, v{m}, v{n_}"]
    LN += [f"v_mov_b64 {v(m,2)}, {v(mu,2)}\n s_nop 1\n v_permlane32_swap_b32 v{mu}, v{m}\n v_permlane32_swap_b32 v{mu+1}, v{m+1}",
           f"v_add_f32 v{mu}, v{mu}, v{m}\n v_add_f32 v{mu+1}, v{mu+1}, v{m+1}\n v_mul_f32 v{mu}, {fl_(1/768)}, v{mu}\n v_mul_f32 v{mu+1}, {fl_(1/768)}, v{mu+1}",
           f"v_fma_f32 v{mu+1}, -v{mu}, v{mu}, v{mu+1}\n v_max_f32 v{mu+1}, 0, v{mu+1}\n v_add_f32 v{mu+1}, {fl_(1e-5)}, v{mu+1}\n v_rsq_f32 v{mu+1}, v{mu+1}\n s_nop 0\n v_mul_f32 v{mu}, v{mu}, v{mu+1}"]
    zst = lambda n: [("@", "tr"), (f"buffer_store_dwordx4 {v(Z2+8*n,4)}, v{vZn}, {s(sWS,4)}, s{sZs} offen offset:{1024*n} sc1", "zn")]
    for n in range(3):
        for a_ in range(2):
            q = Z2+8*n+4*a_
            LN += [f"v_fma_f32 v{q+i}, v{q+i}, v{mu+1}, -v{mu}\n v_fma_f32 v{q+i+1}, v{q+i+1}, v{mu+1}, -v{mu}" for i in (0, 2)]
            LN += [f"v_cvt_pk_bf16_f32 v{q}, v{q}, v{q+1}\n v_cvt_pk_bf16_f32 v{q+1}, v{q+2}, v{q+3}\n ds_write_b64 v{aLw}, {v(q,2)} offset:{16*a_}"]
            if a_ == 0 and n: LN.append(zst(n-1))
        LN += [(f"ds_read_b64_tr_b16 {v(Z2+8*n,2)}, v{aLr}\n ds_read_b64_tr_b16 {v(Z2+8*n+2,2)}, v{aLr} offset:128", "tr")]
    LN.append(zst(2))
    sl, l0, l1 = C("sl", 285), C("l0", 293), C("l1", 299)
    put(sld, sl, sl+0.5); put(LN, l0, l1)
    b1 = C("b1", 258); b2 = C("b2", 280); kd = C("kd", 5); assert b2 >= 21
    put([(fl(sFl), "F")], b1, b1)
    put([poll("k", sFl, 3)], b2, b2)
    for c in range(3): put([kv(c)], b2+0.01+c*kd, b2+0.01+c*kd)
    put([(f"v_lshlrev_b32 v{t0}, {FS}, v0\n" + fl(sFl), "F")], C("b3", 290), C("b3", 290))
    put([poll("l", sFl, 0)], 30.99, 30.99)
    for b in range(30):
        lstamp(a, 2*b); st.w(f"w{b}", f"x{b}", "stx", *(["kvs"] if b == f1b else []), *(["tx2"] if b == TXF else []))
        tb(b, 1); st("s_barrier"); tb(b, 0); lstamp(a, 2*b+1)
        if b in (0, 10, 20): stamp(a, {0: 1, 10: 2, 20: 6}[b])
        D = issue(b, nb) + ([gate] if b == 5 else [])
        L = [(b + 0.01 + C("dsp", 7)*i/len(D), x) for i, x in enumerate(D)] + ex[b]
        for x in sorted(L, key=lambda y: y[0]): st.run(x[1])
    assert not xq and not wq
    lstamp(a, 60); st.w("kv0", "stx")
    st("s_barrier"); stamp(a, 7); lstamp(a, 61); lstamp(a, None)
    if TS[0] == 2: a("s_memrealtime s[98:99]")
    for i in range(3): st(f"ds_read_b128 {v(r.Q16[0]+4*i,4)}, v{aQx} offset:{1024*i}", "Q")
    pb = cfg.get("pb", 0)
    sc = attention(1, [[0]*4]*16, None, lambda c: [f"kv{c+1}"], lambda c: [(lambda st_, c=c: stamp(a, 8+c))], lambda c, i: pb if (c, i) == (0, 0) and pb != cfg.get("p2", 0) else None)
    for c in range(13): sc.place(kv(c+3), c+1, 0.02, 0.15)
    for x, it in sorted(sum(ex[30:], []), key=lambda y: y[0]): span(sc, [it], x, x, 30)
    WU = lambda ks, c: BIG+4*(5*ks+c)
    w0 = cfg.get("w0", 8); w1 = cfg.get("w1", 14); L = pkloads(BIG, 30, vA[0], sWS, sPk, "wu")
    span(sc, [flag("zn", sF2)], C("f2", 15), C("f2", 15), 0)
    pkl = lambda i, ptr, n: (f"""s_mov_b32 s{sX}, s{ptr}
    s_mov_b32 s{sX+1}, s{ptr+1}
    s_add_u32 m0, s{sMk}, {1024*i}
    s_mov_b32 s{sX+2}, {n*1280}
    buffer_load_dwordx4 v{vPk[i]}, {s(sX,4)}, 0 offen lds""", "pk")
    span(sc, [pkl(0, P_WOUT, 768), pkl(1, P_WO, 640)], C("k0", 42), C("k0", 42)+0.3, 0)
    span(sc, [[("@", "pk")] + [(f"ds_read_b64_tr_b16 {v(pkd+2*i,2)}, v{aPk} offset:{512*i}", "pr") for i in range(4)]] +
         [[("@", "pr"), (f"buffer_store_dwordx4 {v(pkd+4*i,4)}, v{vA[0]}, {s(sWS,4)}, s{sPs[i]} offen sc1", "ps")] for i in range(2)], C("k1", 55), C("k1", 55)+0.3, 0)
    span(sc, [[f"s_add_u32 s{sF2}, s{sF2}, {hx(FL4)}"] + flag("ps", sF2)], C("k2", 62), C("k2", 62), 0)
    span(sc, [(f"v_and_b32 v{t0}, {hx((32 << FS)-1)}, v{t0}\n" + fl(sF4), "F")], w0-0.7, w0-0.7, 0)
    span(sc, [poll("w", sF4, 0)], w0+0.18, w0+0.18, 0)
    assert l1-30 < C("f2", 15) < C("k2", 62) < w0-0.7 and (C("k0", 42) < .71 or 1 < cfg.get("k0", 42) % 10 < 8)
    for w in range(w0, w1): sc.place(L[30*(w-w0)//(w1-w0):30*(w+1-w0)//(w1-w0)], w, 0.2, 0.9)
    act = [224, 12, 36, 60]
    def ald(i): return [(f"buffer_load_dwordx4 {v(act[i]+4*ks,4)}, v{vA[ks>>2]}, {s(sWS,4)}, s{sAct[i]} offen offset:{1024*(ks&3)} sc1", f"{name}_u{i}") for ks in range(6)]
    aP = [5, 6, 7, 8, 9]; aO = 10
    sc.place([f"""s_mul_i32 s{sT}, s{sK}, 6144
    v_add_u32 v{aO}, s{sT}, v{r.aK}
    s_mul_i32 s{sT}, s{sK}, 5120
    v_add_u32 v{aP[4]}, s{sT}, v{r.aK}"""] + [f"""s_xor_b32 s{sT}, s{sK}, {d}
    s_mul_i32 s{sT}, s{sT}, 15360
    s_add_u32 s{sT}, s{sT}, {PB0}
    v_add_u32 v{aP[d]}, s{sT}, v{vA[0]}""" for d in range(4)] + [f"""s_lshl_b32 s{sT}, s{S_TG}, 3
    s_add_u32 s{sT}, s{sT}, s{S_J}
    s_lshl_b32 s{sT}, s{sT}, {FS}
    s_add_u32 s{sT}, s{sT}, {hx(FL5)}
    s_cmp_eq_u32 s{sK}, 0
    s_cselect_b32 s{sF4}, s{sT}, {hx(WS_END)}"""]*(cfg.get("f5", 1) > 2), 15, 0.3, 0.8)
    span(sc, [(f"v_and_b32 v{t0}, {hx((8 << FS)-1)}, v{t0}\n" + fl(sF3), "F")], C("u3", 157), C("u3", 157), 0)
    u0 = cfg.get("u0", 50); assert u0 < 100 or 0 <= cfg.get("f5", 1) < 3
    if u0 < 100: sc.place([poll("u", sF3, 0)] + ald(0), 16, u0/100, 0.95)
    sc.emit(st)
    f5 = cfg.get("f5", 1); fl5 = f"s_mov_b64 exec, 1\n buffer_store_dword v{t1}, off, {s(sWS,4)}, s{sF4} sc1\n s_mov_b64 exec, -1"
    if f5 == 4: st(fl5)
    for th in range(2):
        if th: st("s_nop 8")
        for i in range(3): st(f"ds_write_b128 v{aO}, {v(r.O[th]+4*i,4)} offset:{(3*th+i)*1024}", "po")
    if u0 < 100: st.run(ald(1))
    st.w("po")
    stamp(a, 24); st("s_barrier"); stamp(a, 25)
    if TS[0] == 2: a("s_memrealtime s[96:97]")
    if u0 >= 100: st.run([poll("u", sF3, 0)] + ald(0) + ald(1))
    if f5 == 3: st(fl5)
    ub = divmod(cfg.get("ub", 0), 100)
    ac = [84, 224, 84, 224]; tc = 250; pr = [12, 36, 84]
    for e in range(2):
        if ub[e] == 0: st.run(ald(2+e))
    for i in range(4):
        st.w(f"{name}_u{i}")
        stamp(a, 26+i)
        ex = {}
        if i > 0:
            for c in range(5): ex[c+2] = (f"ds_write_b128 v{aP[0]}, {v(ac[i-1]+4*c,4)} offset:{(i-1)*5120+c*1024}", "pw")
        if i == 3:
            ex[9] = [("@", "pw"), "s_barrier"]
            for c in range(5):
                for d in range(3): ex[10+3*c+d] = (f"ds_read_b128 {v(pr[d]+4*c,4)}, v{aP[d+1]} offset:{d*5120+c*1024}", f"pr{c}")
        for ks in range(6):
            for c in range(5):
                q = ac[i]+4*c
                if f5 == 10+30*i+5*ks+c: st(fl5)
                for e in range(2):
                    if ub[e] == 30*i+5*ks+c > 0: st.run(ald(2+e))
                st(f"{MF16} {v(q,4)}, {v(WU(ks,c),4)}, {v(act[i]+4*ks,4)}, {'0' if ks == 0 else v(q,4)}")
                if 5*ks+c in ex: st.run(ex[5*ks+c])
    for c in range(5):
        st.w(f"pr{c}"); q = ac[3]+4*c
        for h2 in (0, 2): st(f"v_pk_add_f32 {v(pr[0]+4*c+h2,2)}, {v(pr[0]+4*c+h2,2)}, {v(pr[1]+4*c+h2,2)}")
        for h2 in (0, 2): st(f"v_pk_add_f32 {v(pr[0]+4*c+h2,2)}, {v(pr[0]+4*c+h2,2)}, {v(pr[2]+4*c+h2,2)}")
        for h2 in (0, 2): st(f"v_pk_add_f32 {v(q+h2,2)}, {v(q+h2,2)}, {v(pr[0]+4*c+h2,2)}")
        st(f"ds_write_b128 v{aP[4]}, {v(q,4)} offset:{c*1024}")
    st("s_waitcnt lgkmcnt(0)")
    stamp(a, 30)
    if TS[0] == 2: a("v_writelane_b32 v255, s96, 25\n v_writelane_b32 v255, s98, 7")
    st("s_barrier\n"*4)
    if TS[0] == 1: st(f"v_writelane_b32 v255, s{sCnt}, 5")
    wend(a, name)
    x = St(a)
    for nm, sF in polls: x(f"""{name}_{nm}retry:
    s_cmp_eq_u32 s{sCnt}, 0
    s_cbranch_scc1 {name}_{nm}ok
    s_sub_u32 s{sCnt}, s{sCnt}, 1
    {fl(sF)}
    s_waitcnt vmcnt(0)
    s_branch {name}_{nm}poll""")
    x(f"{name}_sretry:\n s_cmp_eq_u32 s{sCnt}, 0\n s_cbranch_scc1 {name}_sok\n s_sub_u32 s{sCnt}, s{sCnt}, 1")
    x.run(sld); x(f"s_waitcnt vmcnt(0)\n s_branch {name}_schk")
```

```python
from kfA1 import *
from kbA import slow_path
def waveA(E, st):
    a = E["a"]; name = E["name"]; cfg = E["cfg"]; S_ = E["S_"]; gS = E["gS"]; cR = E["cR"]; JB = E["JB"]
    sWS, sW, sT, sT2, sO, sN, sK, sTH, sHP, sE, sAct, sTag = [E[k] for k in "sWS sW sT sT2 sO sN sK sTH sHP sE sAct sTag".split()]
    sSP = S_(4); sBS = S_(4); sAr = S_(); sWb = [S_(), S_()]; sB = S_(); sWo = S_(); sZb = S_(); sZn = S_(); sZo = S_(); sFl = S_(); sCnt = S_(); sU = S_(); sOa = S_(); sOx = S_()
    sGm = S_(2); sF3 = S_(); sPk = S_(); sSc = S_(); C = lambda k, d: cfg.get(k, d)/10; FS = cfg.get('fs', 7)
    aW = [4, 5, 6, 7]; vl = 8; vo = [9, 10, 11, 252]; acc = BIG; W = [200, 204]; NZ = 11; Z = [208+4*z for z in range(NZ)]; t0, t1 = 253, 254
    T = 12; vE = 162; vu = 250
    st(f"{name}_A:")
    st(f"v_lshlrev_b32 v{vSt}, 4, v0\n s_setprio {cfg.get('p1', 1)}")
    E["common"](st)
    kv_addr(st, T+4)
    st(f"v_mov_b32 v{T}, v{vSt}")
    st(f"""
    s_mul_i32 s{sAr}, s{sK}, {AA}
    s_lshl_b32 s{sT}, s{S_TG}, 1
    s_add_u32 s{sT}, s{sT}, s{sTH}
    s_lshl_b32 s{sT2}, s{sK}, 10
    s_lshl_b32 s{sWb[0]}, s{sT}, 17
    s_add_u32 s{sWb[0]}, s{sWb[0]}, s{sT2}
    s_xor_b32 s{sWb[1]}, s{sWb[0]}, 0x20000
    s_mul_i32 s{sB}, s{S_J if JB < 3 else S_TG}, {cfg.get("wj", 2)}
    s_add_u32 s{sB}, s{sB}, s{S_TG if JB < 3 else S_J}
    s_and_b32 s{sB}, s{sB}, 7
    s_lshl_b32 s{sB}, s{sB}, 7
    s_mov_b32 s{sZn}, s{sB}
    s_mul_i32 s{sU}, s{sT}, {88*1024}
    s_add_u32 s{sU}, s{sU}, {hx(WS_ACT)}
    s_lshl_b32 s{sT}, s{S_J}, 2
    s_add_u32 s{sT}, s{sT}, s{sK}
    s_mul_i32 s{sZb}, s{sT}, {8*12288}
    s_add_u32 s{sZb}, s{sZb}, {hx(WS_Z2N)}
    s_lshl_b32 s{sFl}, s{sT}, {FS+5}
    v_lshrrev_b32 v{T+4}, 3, v0
    v_lshlrev_b32 v{T+4}, 12, v{T+4}
    v_lshrrev_b32 v{T+5}, 4, v0
    v_and_b32 v{T+6}, 7, v0
    v_xor_b32 v{T+5}, v{T+5}, v{T+6}
    v_lshl_add_u32 v{vo[0]}, v{T+5}, 4, v{T+4}
    v_xor_b32 v{T+5}, 64, v{vo[0]}
    v_add_u32 v{vo[1]}, {32768-1024}, v{T+5}
    v_add_u32 v{vo[2]}, {2*(32768-1024)}, v{vo[0]}
    v_add_u32 v{vo[3]}, {3*(32768-1024)}, v{T+5}
    v_lshrrev_b32 v{T+4}, 5, v0
    v_bfe_u32 v{T+5}, v0, 1, 3
    v_xor_b32 v{T+5}, v{T+5}, v{T+4}
    v_lshlrev_b32 v{T+5}, 4, v{T+5}
    v_and_b32 v{T+6}, 31, v0
    v_lshl_add_u32 v{T+5}, v{T+6}, 7, v{T+5}
    v_lshlrev_b32 v{t0}, {FS}, v{T+6}
    s_lshl_b32 s{sT}, s{sHP}, 7
    v_xor_b32 v{vl}, s{sT}, v{T}
    s_mov_b32 s{sCnt}, 0x8000
    """)
    for i in range(4): st(f"v_xor_b32 v{aW[i]}, {hx(32*i)}, v{T+5}\n v_add_u32 v{aW[i]}, s{sAr}, v{aW[i]}")
    st(f"""
    s_lshr_b32 s{sT}, s{S_J}, 1
    s_mul_i32 s{sT}, s{sT}, 5120
    s_add_u32 s{sOa}, s{sU}, s{sT}
    s_and_b32 s{sT}, s{S_J}, 1
    s_lshl_b32 s{sT}, s{sT}, 1
    s_add_u32 s{sT}, s{sT}, s{sHP}
    s_lshl_b32 s{sT2}, s{sT}, 8
    s_add_u32 s{sOx}, s{sOa}, s{sT2}
    s_add_u32 s{sOx}, s{sOx}, 4096
    s_lshl_b32 s{sT}, s{sT}, 10
    s_add_u32 s{sOa}, s{sOa}, s{sT}
    s_mul_i32 s{sT}, s{S_J}, 3072
    s_add_u32 s{sU}, s{sU}, s{sT}
    s_lshl_b32 s{sT}, s{sHP}, 9
    s_add_u32 s{sU}, s{sU}, s{sT}
    s_add_u32 s{sU}, s{sU}, {20*1024}
    s_mul_i32 s{sT}, s{sK}, 5120
    s_add_u32 s{sT}, s{sT}, {hx(WS_ACT)}
    """)
    for i in range(4): st(f"s_add_u32 s{sAct[i]}, s{sAct[i]}, s{sT}")
    uaddr = lambda vu, tp: [f"""v_bfe_u32 v{tp}, v0, 4, 1
    v_mul_u32_u24 v{vu}, {44*1024}, v{tp}
    v_and_b32 v{tp}, 15, v0""", f"""v_cmp_gt_u32 vcc, 32, v0
    v_lshl_add_u32 v{vu}, v{tp}, 4, v{vu}
    v_lshrrev_b32 v{tp}, 5, v0
    v_cndmask_b32 v{vu+1}, -4.0, v{vu}, vcc
    v_lshl_add_u32 v{vu}, v{tp}, 8, v{vu}"""]
    h, e, cb, tok = T+1, T+2, T+3, T+4
    st(f"""
    v_lshrrev_b32 v{h}, 5, v0
    v_bfe_u32 v{e}, v0, 2, 2
    v_and_b32 v{tok}, 31, v0
    v_bfe_u32 v{cb}, v0, 4, 1
    v_and_b32 v{T+5}, 3, v0
    v_lshlrev_b32 v{T+5}, 3, v{T+5}
    v_lshl_add_u32 v{cb}, v{cb}, 5, v{T+5}
    v_lshl_add_u32 v{T+6}, v{h}, 3, v{e}
    s_mul_i32 s{sT}, s{sHP}, 96
    v_mul_u32_u24 v{aZ[0]}, 192, v{T+6}
    v_add3_u32 v{aZ[0]}, v{aZ[0]}, v{cb}, s{sT}
    v_mad_u32_u24 v{T+7}, v{T+6}, 40, v{T+5}
    v_add_u32 v{T+6}, v{T+6}, v{e}
    s_mul_i32 s{sT}, s{sHP}, 40
    v_mul_u32_u24 v{aQ}, 160, v{T+6}
    v_add3_u32 v{aQ}, v{aQ}, v{cb}, s{sT}
    v_add_u32 v{aZ[1]}, 0x8000, v{aZ[0]}
    v_lshlrev_b32 v{aG}, 4, v{h}
    v_add_u32 v{aG}, {GATE}, v{aG}
    s_lshl_b32 s{sT}, s{sTH}, 12
    s_add_u32 s{sT}, s{sT}, {X0}
    s_sub_u32 s{sT}, s{sT}, s{sAr}
    s_mov_b32 s{sGm}, 0x100000
    s_mov_b32 s{sGm+1}, 0x100000
    v_mov_b64 {v(r.Q8,2)}, 0
    v_mov_b64 {v(r.Q8+2,2)}, 0
    """)
    for i in range(4): st(f"v_add_u32 v{aX[0][i]}, s{sT}, v{aW[i]}\n v_add_u32 v{aX[1][i]}, 0x10000, v{aX[0][i]}")
    st(f"""
    s_cmp_lt_u32 s{S_J}, 2
    s_cselect_b32 vcc_lo, 0xffff0000, 0
    s_mov_b32 vcc_hi, vcc_lo
    s_lshl_b32 s{sT}, s{sHP}, 5
    v_add_u32 v{T+7}, s{sT}, v{T+7}""")
    for i in range(8): st(f"""v_add_u32 v{T+8}, {768*(i&1)+3072*(i>>1)+64}, v{aZ[0]}
    v_add_u32 v{T+9}, {12288+160*(i&1)+640*(i>>1)}, v{T+7}
    v_cndmask_b32 v{aKV+i}, v{T+8}, v{T+9}, vcc""")
    st(f"""
    s_lshl_b32 s{sT}, s{sK}, 10
    s_add_u32 s{sT}, s{sT}, {LNS}
    v_lshl_add_u32 v{aLw}, v{tok}, 5, s{sT}
    v_lshl_add_u32 v{aLw}, v{h}, 3, v{aLw}
    s_lshl_b32 s{sT}, s{sK}, 12
    s_add_u32 s{sT}, s{sT}, {Z1P}
    v_add_u32 v{aPark}, s{sT}, v{vSt}
    s_mul_i32 s{sT}, s{sK}, 3072
    v_add_u32 v{aS}, s{sT}, v{vSt}
    v_add_u32 v{aTX}, {TX}, v{aS}
    v_add_u32 v{aS}, {QX}, v{aS}
    s_lshl_b32 s{sT}, s{S_TG}, 3
    s_add_u32 s{sT}, s{sT}, s{S_J}
    s_lshl_b32 s{sT}, s{sT}, 2
    s_add_u32 s{sT}, s{sT}, s{sK}
    s_lshl_b32 s{sT}, s{sT}, {FS}
    s_add_u32 s{sF3}, s{sT}, {hx(FL3)}
    s_cmp_eq_u32 s{S_J}, 0
    s_cselect_b32 s{sSc}, {fl(QSCALE)}, 1.0
    s_waitcnt lgkmcnt(0)""")
    srd(a, sWS, P_WS, WS_END); srd(a, sSP, P_WSP, 2048*4096); srd(a, sBS, P_BSP, 4096)
    st(f"s_mov_b32 s{sT}, {hx(WS_EP)}\n buffer_load_dword v{vE}, off, {s(sWS,4)}, s{sT}\n s_barrier", "ep")
    stamp(a, 1); lstamp(a, 1)
    sc = Sched()
    for x in reads(0, sGm) + reads(1, sGm): sc.op(x)
    gemm(sc, sGm)
    sc.place(["s_mov_b32 vcc_lo, 0xcccc0000\n s_mov_b32 vcc_hi, 0xcccc0000"] + [f"""v_add_u32 v{T+8}, {768*(i&1)+16*(i>>1)+16}, v{aZ[0]}
    v_add_u32 v{T+9}, {3072+160*(i&1)+80*(i>>1)}, v{aQ}
    v_cndmask_b32 v{aM+i}, v{T+9}, v{T+8}, vcc
    v_add_u32 v{aM+4+i}, 0x8000, v{aM+i}""" for i in range(4)], 1, 0.1, 0.9)
    sc.place([[("@", "ep"), f"v_readfirstlane_b32 s{sTag}, v{vE}"], f"s_add_u32 s{sTag}, s{sTag}, {hx(TAGC)}"], 8, 0.2, 0.8)
    if not cfg.get("tsb"): sc.place([lambda st_: stamp(a, 2)], 10, 0, 0); sc.place([lambda st_: stamp(a, 6)], 20, 0, 0)
    q = Z2+24
    kvx = sum([[f"v_mul_f32 v{q+2*i}, s{sSc}, v{q+2*i}\n v_mul_f32 v{q+2*i+1}, s{sSc}, v{q+2*i+1}", f"v_cvt_pk_bf16_f32 v{q+i}, v{q+2*i}, v{q+2*i+1}"] +
               [(f"ds_write_b64 v{aLw}, {v(q+i-1,2)} offset:{8*i-8}", "tx")]*(i & 1) for i in range(4)], [])
    hx_ = lambda n: [f"v_cvt_pk_bf16_f32 v{Z2+8*n+i}, v{Z2+8*n+2*i}, v{Z2+8*n+2*i+1}" for i in range(4)] + [(f"ds_write_b128 v{aTX}, {v(Z2+8*n,4)} offset:{1024*n}", "tx")]
    span(sc, hx_(0) + kvx, 11.1, 11.8, 0)
    for n in (1, 2): span(sc, hx_(n), 11.15+n, 11.6+n, 0)
    mark = lambda vu, d: [f"v_mov_b64 {v(d,2)}, -1\n v_mov_b64 {v(d+2,2)}, -1", f"buffer_store_dwordx4 {v(d,4)}, v{vu}, {s(sWS,4)}, s{sOa} offen sc1",
         f"buffer_store_dwordx4 {v(d,4)}, v{vu}, {s(sWS,4)}, s{sOa} offen offset:512 sc1", f"buffer_store_dwordx4 {v(d,4)}, v{vu+1}, {s(sWS,4)}, s{sOx} offen sc1"]
    if C("s0", 400) < 30: span(sc, uaddr(vu, 244) + mark(vu, 244), C("s0", 400), C("s1", 309), 0)
    sc.emit(st)
    st("s_nop 8")
    for ab in range(2):
        for i in range(4): st(f"v_cvt_pk_bf16_f32 v{r.Q16[ab]+i}, v{QA+16*ab+2*i}, v{QA+16*ab+2*i+1}")
        st(f"ds_write_b128 v{aS}, {v(r.Q16[ab],4)} offset:{1024*ab}", "qx")
    st("s_mov_b32 exec_hi, 0")
    for i in range(4): st(f"v_cvt_pk_bf16_f32 v{r.Q8+i}, v{QA+16*(i>>1)+8+2*(i&1)}, v{QA+16*(i>>1)+9+2*(i&1)}")
    st(f"s_mov_b32 exec_hi, -1\n ds_write_b128 v{aS}, {v(r.Q8,4)} offset:2048\n v_mul_f32 v{gl}, {fl(-LOG2E)}, v{QA+8}", "qx")
    ZR = [Z1+i for i in range(16)] + [QA+12+i for i in range(4)] + [QA+28+i for i in range(4)]; zp = 112; k1 = 186; ag = cfg.get("ag", 3)
    g1 = lambda g, pk: (gelu(ZR[8*g:8*g+8], Z2, k1, pk=pk) + [f"v_cvt_pk_bf16_f32 v{zp+4*g+i}, v{ZR[8*g+2*i]}, v{ZR[8*g+2*i+1]}" for i in range(4)] +
                        [f"ds_write_b128 v{aPark}, {v(zp+4*g,4)} offset:{1024*g}"])
    st(f"v_mov_b32 v{k1}, {fl(-GK1)}\n s_mov_b32 s{sGm}, {fl(-GK2)}\n s_mov_b32 s{sGm+1}, s{sGm}")
    for g in range(ag): st.run(g1(g, sGm))
    lstamp(a, 60); st.w("qx"); st("s_barrier"); stamp(a, 7); lstamp(a, 61); lstamp(a, None)
    def wsp(blk):
        L = []
        for b in range(8):
            x = ""
            if b & 3 == 0: x = f"s_add_u32 m0, s{sAr}, {(blk&1)*8192+b*1024}\n s_add_u32 s{sWo}, s{sWb[b>>2]}, s{sB}\n"
            x += f"buffer_load_dwordx4 v{vo[b&3]}, {s(sSP,4)}, s{sWo} offen offset:{(b&3)*1024} lds\n"
            if b == 7: x += f"s_add_u32 s{sB}, s{sB}, 128\n s_and_b32 s{sB}, s{sB}, 0x3ff"
            L.append((x, f"wsp{blk}"))
        return L
    def zld(f):
        ks, n = divmod(f, 3); x = ""
        if f % 12 == 0: x = f"s_mul_i32 s{sZo}, s{sZn}, 96\n s_add_u32 s{sZn}, s{sZn}, 128\n s_add_u32 s{sZo}, s{sZo}, s{sZb}\n s_and_b32 s{sZn}, s{sZn}, 0x3ff\n"
        elif n == 0: x = f"s_add_u32 s{sZo}, s{sZo}, 3072\n"
        return (x + f"buffer_load_dwordx4 {v(Z[f%NZ],4)}, v{vl}, {s(sWS,4)}, s{sZo} offen offset:{1024*n} sc1", f"z{f}")
    rW = lambda ks, th: [("@", f"wsp{ks>>2}"), (f"ds_read_b128 {v(W[th],4)}, v{aW[ks&3]} offset:{((ks>>2)&1)*8192+th*4096}", f"W{th}")]
    G = dict(m=0, q=[])
    DPG = cfg.get("dpg", 1)
    def gop():
        m = G["m"]; G["m"] += 1
        ks, th, n = m//6, (m % 6)//3, m % 3; f = 3*ks+n; ac = acc+48*th+16*n
        it = [("@", f"z{f}", f"W{th}"), f"{MF32} {v(ac,16)}, {v(Z[f%NZ],4)}, {v(W[th],4)}, {'0' if ks == 0 else v(ac,16)}"]
        if n == 2 and ks < 31: it += rW(ks+1, th)
        if th == 1 and f+NZ < 96: it.append(zld(f+NZ))
        if m % 24 == 21 and m//24 + 2 < 8: G["q"] = wsp(m//24 + 2)
        it += G["q"][:DPG]; G["q"] = G["q"][DPG:]
        if m == 191: it.append("; end of G")
        return it
    np_ = (cR-gS)*4
    dens = [[0]*4 for c in range(16)]
    for p in range(np_): dens[gS+p//4][p % 4] = 192*(p+1)//np_ - 192*p//np_
    pa = cfg.get("pa", 1)
    sc = attention(0, dens, gop, lambda c: ["rsw"], lambda c: [(lambda st_, c=c: stamp(a, 8+c))], lambda c, i: pa if (c, i) == (0, 0) and pa != cfg.get("p1", 1) else None)
    span(sc, sum([g1(g, 0) for g in range(ag, 3)], []), C("a0", 2), C("a1", 10*gS-1), 0)
    sc.place([f"v_mov_b32 v{gl-1}, v{gl}", f"s_nop 0\n v_permlane32_swap_b32 v{gl-1}, v{gl}", f"v_exp_f32 v{gl}, v{gl}", f"v_add_f32 v{gl}, 1.0, v{gl}", f"v_rcp_f32 v{gl}, v{gl}", f"ds_write_b32 v{aPark}, v{gl} offset:3072"], 0, 0.02, 0.1)
    ff = C("ff", 302)
    if cfg.get("tp0"):
        for i in range(2): span(sc, [f"""s_add_u32 s{sT}, s{sB}, {128*i}
        s_and_b32 s{sT}, s{sT}, 0x3ff
        s_andn2_b32 s{sT2}, s{sWb[0]}, 0x20000
        v_lshlrev_b32 v{Z[0]}, 12, v0
        s_add_u32 s{sT}, s{sT}, s{sT2}
        buffer_load_dword v{Z[0]+1}, v{Z[0]}, {s(sSP,4)}, s{sT} offen"""], C(f"tp{i}", 0), C(f"tp{i}", 0), 30)
        assert C("tp1", 0) < ff
    span(sc, wsp(0) + wsp(1), ff, ff+C("fl", 30), 30)
    if 30 <= C("s0", 400) < 40: span(sc, uaddr(vu, tg_) + mark(vu, tg_), C("s0", 400), C("s1", 309), 30)
    fld = f"buffer_load_dword v{t1}, v{t0}, {s(sWS,4)}, s{sFl} offen sc1"
    def poll(st_, p="p", k=3):
        st_(f"{name}_{p}oll:"); st_.w("F")
        st_(f"v_cmp_ne_u32 vcc, s{sTag}, v{t1}\n s_cbranch_vccnz {name}_{p}retry\n {name}_{p}ok:")
        stamp(a, k)
    sc.place([(fld, "F")], gS-1, cfg.get("f0", 20)/100, cfg.get("f0", 20)/100)
    sc.place([poll] + [zld(f) for f in range(NZ)], gS-1, cfg.get("f1", 60)/100, 1.0)
    sc.place([rW(0, 0), rW(0, 1)], gS, 0.1, 0.2)
    z1 = 208; og = 220; gt = 222; tp = 224; aR = [228, 229, 230, 231]; vu = 232; aF = 240; vt = 242
    quads = lambda d, n: [acc+48*(d & 1)+16*n+4*(d >> 1), acc+48*(d & 1)+16*n+4*(d >> 1)+8]
    wl = sc.win[cR]; e = max(i for i, o in enumerate(wl) if isinstance(o, list) and "; end of G" in o)
    it = [f"""v_lshlrev_b32 v{aF}, 4, v0
    v_add_u32 v{aR[0]}, s{sAr}, v{aF}
    s_lshl_b32 s{sT}, s{sK}, 12
    s_add_u32 s{sT}, s{sT}, {Z1P}
    v_add_u32 v{tp}, s{sT}, v{aF}"""]
    it += [(f"ds_read_b128 {v(z1+4*n,4)}, v{tp} offset:{1024*n}", "zp") for n in range(3)]
    it += [(f"""s_lshl_b32 s{sT}, s{S_TG}, 1
    s_add_u32 s{sT}, s{sT}, s{sTH}
    s_lshl_b32 s{sT2}, s{sT}, 6
    v_lshrrev_b32 v{vt}, {FS-1}, v{t0}
    ds_read_b32 v{gt}, v{tp} offset:3072
    buffer_load_ushort v{og+1}, v{vt}, {s(sBS,4)}, s{sT2} offen""", "zp")]
    for d in (2, 1, 3):
        for n in range(3):
            for e2, q in enumerate(quads(d, n)): it.append((f"ds_write_b128 v{aR[0]}, {v(q,4)} offset:{((d-1)*6+2*n+e2)*1024}", "rsw"))
        it.append(f"s_xor_b32 s{sT}, s{sK}, {d}\n s_mul_i32 s{sT}, s{sT}, {AA}\n v_add_u32 v{aR[d]}, s{sT}, v{aF}")
    sc.place(it, cR, (e+3)/len(wl), 0.9)
    it = []
    rd = lambda n: [(f"ds_read_b128 {v(q,4)}, v{aR[d]} offset:{((d-1)*6+2*n+e2)*1024}", f"rs{n}{e2}") for e2 in range(2) for d in (1, 2, 3) for q in [quads(d, n)[e2]]]
    it += rd(0)
    it += [[("@", "zp"), f"""v_sub_f32 v{og}, 1.0, v{gt}
    v_lshlrev_b32 v{og+1}, 16, v{og+1}
    v_mul_f32 v{og+1}, v{og}, v{og+1}"""]] + uaddr(vu, tp) + (mark(vu, 244) if C("s0", 400) >= 40 else [])
    for n in range(3):
        nr = rd(n+1) if n < 2 else []
        for e2 in range(2):
            for h2 in (0, 2):
                o_, p1, p2, p3 = [quads(d, n)[e2]+h2 for d in range(4)]; zi = z1+4*n+2*e2+h2//2
                it.append([("@", f"rs{n}{e2}"), f"""v_pk_add_f32 {v(o_,2)}, {v(o_,2)}, {v(p1,2)}
                v_pk_add_f32 {v(p2,2)}, {v(p2,2)}, {v(p3,2)}
                v_lshlrev_b32 v{tp}, 16, v{zi}
                v_pk_add_f32 {v(o_,2)}, {v(o_,2)}, {v(p2,2)}"""])
                it.append(f"""v_and_b32 v{tp+1}, 0xffff0000, v{zi}
                v_pk_fma_f32 {v(o_,2)}, {v(o_,2)}, {v(og,2)}, {v(og,2)} op_sel:[0,0,1] op_sel_hi:[1,0,1]
                v_pk_mul_f32 {v(o_,2)}, {v(o_,2)}, {v(tp,2)}
                v_cvt_pk_bf16_f32 v{zi}, v{o_}, v{o_+1}""")
                it += nr[:2]; nr = nr[2:]
        it.append((f"buffer_store_dwordx4 {v(z1+4*n,4)}, v{vu}, {s(sWS,4)}, s{sU} offen offset:{1024*n} sc1", "us"))
        if cfg.get("od", 0) & 2: it.append(f"buffer_store_dwordx4 {v(z1+4*n,4)}, v{vu}, {s(sWS,4)}, s{sU} offen offset:{1024*n}")
    it.append(lambda st_: stamp(a, 4))
    it.append(f"""s_lshl_b32 s{sT}, s{S_J}, 2
    s_add_u32 s{sT}, s{sT}, s{sK}
    s_mul_i32 s{sPk}, s{sT}, {11*5120}
    s_add_u32 s{sPk}, s{sPk}, {hx(WS_PK+6*5120)}
    s_or_b32 s{sT}, s2, s{sK}
    s_cmp_eq_u32 s{sT}, 0
    s_cselect_b32 s{sE}, 1, 0
    s_mov_b32 s{sE+1}, 0
    v_mov_b32 v{tp+1}, s{sTag}
    v_cndmask_b32 v{tp}, -4.0, v0, {s(sE,2)}
    s_mov_b32 s{sT}, {hx(WS_EP)}
    buffer_store_dword v{tp+1}, v{tp}, {s(sWS,4)}, s{sT} offen sc1""")
    wu = cfg.get("wu", 60)/100
    sc.place(it, cR+1, 0.0, wu)
    WO = lambda ks, c: BIG+4*(5*ks+c)
    f3 = cR+1+wu+C("f3", 4)
    span(sc, [[f"s_mov_b64 exec, 1", ("@", "us"), f"buffer_store_dword v{tp+1}, off, {s(sWS,4)}, s{sF3} sc1\n s_mov_b64 exec, -1", lambda st_: stamp(a, 30)]], f3, f3, 0)
    span(sc, pkloads(BIG, 25, aF, sWS, sPk, "wof"), cR+1+wu+0.02, min(cR+2.9, 16.6), 0)
    sc.emit(st)
    O = r.O; S = r.S; D = 208; t = 244; mx = 226; vA = [4, 5]; aP = [6, 7, 8, 9, 10]; vs = 11
    st(f"""s_mul_i32 s{sT}, s{sK}, 6144
    v_add_u32 v{t}, s{sT}, v{r.aK}
    s_mov_b32 s{sN}, 0""")
    f5 = cfg.get("f5", -1); fl5 = f"s_mov_b64 exec, 1\n buffer_store_dword v{tp+1}, off, {s(sWS,4)}, s{sF3} sc1\n s_mov_b64 exec, -1"
    if f5 >= 0: st(f"""s_lshl_b32 s{sT}, s{S_TG}, 3
    s_lshl_b32 s{sFl}, s{sK}, 1
    s_add_u32 s{sFl}, s{sFl}, s{sT}
    s_add_u32 s{sT}, s{sT}, s{S_J}
    s_lshl_b32 s{sFl}, s{sFl}, {FS}
    s_lshl_b32 s{sT}, s{sT}, {FS}
    s_add_u32 s{sFl}, s{sFl}, {hx(FL5)}
    s_add_u32 s{sT}, s{sT}, {hx(FL5)}
    s_cmp_eq_u32 s{sK}, 0
    s_cselect_b32 s{sF3}, s{sT}, {hx(WS_END)}
    v_and_b32 v{t0}, {1 << FS}, v{t0}""")
    if f5 == 0: st(fl5)
    st(f"v_lshlrev_b32 v{vA[0]}, 4, v0\n v_add_u32 v{vA[1]}, 0x1000, v{vA[0]}")
    srd(a, sSP, P_OUT, 2048*1280)
    st(f"""
    v_add_u32 v{aP[0]}, s{sAr}, v{vA[0]}
    s_mul_i32 s{sT}, s{sK}, 5120
    s_add_u32 s{sT}, s{sT}, {KV0}
    v_add_u32 v{aP[4]}, s{sT}, v{vA[0]}
    v_and_b32 v{t+1}, 15, v0
    v_mul_u32_u24 v{vs}, 0x500, v{t+1}
    v_lshrrev_b32 v{t+1}, 4, v0
    v_lshl_add_u32 v{vs}, v{t+1}, 3, v{vs}
    v_mov_b32 v{aP[1]}, v{aR[1]}
    v_mov_b32 v{aP[2]}, v{aR[2]}
    v_mov_b32 v{aP[3]}, v{aR[3]}
    s_lshl_b32 s{sT}, s{S_TG}, 2
    s_add_u32 s{sT}, s{sT}, s{E["sOwn"]}
    s_mul_i32 s{sO}, s{sT}, {16*1280}
    s_mul_i32 s{sT2}, s{S_J}, 160
    s_add_u32 s{sO}, s{sO}, s{sT2}
    """)
    lt = cfg.get("lt", 1); vo_ = [248, 249, 252]
    if lt:
        st(f"""v_and_b32 v{t+1}, 15, v0
        v_mul_u32_u24 v{t+1}, {1280-160}, v{t+1}
        v_sub_u32 v{vs}, v{vs}, v{t+1}
        v_add_u32 v{vs}, s{sAr}, v{vs}""")
    stamp(a, 24); st("s_barrier"); stamp(a, 25)
    if f5 == 1: st(fl5)
    for th in range(2):
        for i in range(3): st(f"ds_read_b128 {v(S[th]+4*i,4)}, v{t} offset:{(3*th+i)*1024}", f"po{th}{i}")
    for i in (2, 0, 1):
        for th in range(2):
            st.w(f"po{th}{i}")
            for h2 in (0, 2): st(f"v_pk_add_f32 {v(O[th]+4*i+h2,2)}, {v(O[th]+4*i+h2,2)}, {v(S[th]+4*i+h2,2)}")
    st(f"{name}_fin:")
    for i in range(4): st(f"v_permlane32_swap_b32 v{O[0]+8+i}, v{O[1]+8+i}")
    L = O[1]+8
    st(f"""
    v_rcp_f32 v{t}, v{L}
    v_cmp_ngt_f32 vcc, 0x5f800000, v{L}
    s_mov_b32 s{sT}, 0x1f800000
    v_mul_f32 v{t}, v{t}, v{gt}
    v_cmp_nlt_f32 {s(sE,2)}, s{sT}, v{L}
    v_mov_b32 v{t+2}, v{t}
    v_mov_b32 v{t+4}, v{t}
    s_or_b64 {s(sE,2)}, {s(sE,2)}, vcc
    v_pk_mul_f32 {v(O[0]+8,2)}, {v(O[0]+8,2)}, {v(t,2)} op_sel_hi:[1,0]
    v_permlane32_swap_b32 v{t+2}, v{t+4}
    v_pk_mul_f32 {v(O[0]+10,2)}, {v(O[0]+10,2)}, {v(t,2)} op_sel_hi:[1,0]
    """)
    for th in range(2):
        for i in range(0, 8, 2): st(f"v_pk_mul_f32 {v(O[th]+i,2)}, {v(O[th]+i,2)}, {v(t+2+2*th,2)} op_sel_hi:[1,0]")
    st(f"v_pk_mul_f32 {v(t+6,2)}, {v(O[0]+8,2)}, 0 op_sel_hi:[1,0]")
    for k_, q in enumerate([O[0]+10] + [O[th]+i for th in range(2) for i in range(0, 8, 2)]):
        st(f"v_pk_fma_f32 {v(t+6,2)}, {v(q,2)}, 0, {v(t+6,2)} op_sel_hi:[1,0,1]")
        if k_ > 0: st(f"v_cvt_pk_bf16_f32 v{D+k_-1}, v{q}, v{q+1}")
    st(f"""
    v_cmp_u_f32 vcc, v{t+6}, v{t+7}
    v_cvt_pk_bf16_f32 v{D+8}, v{O[0]+8}, v{O[0]+9}
    v_cvt_pk_bf16_f32 v{D+9}, v{O[0]+10}, v{O[0]+11}
    s_or_b64 vcc, {s(sE,2)}, vcc
    s_cbranch_vccnz {name}_slow
    {name}_pub:""")
    if cfg.get("xb", 1) == 1: st("s_barrier")
    if f5 >= 0 and cfg.get("p5", 2) == 0: st(fld, "F")
    st(f"""
    buffer_store_dwordx4 {v(D,4)}, v{vu}, {s(sWS,4)}, s{sOa} offen sc1
    v_permlane32_swap_b32 v{D+8}, v{D+10}
    v_permlane32_swap_b32 v{D+9}, v{D+11}
    buffer_store_dwordx4 {v(D+4,4)}, v{vu}, {s(sWS,4)}, s{sOa} offen offset:512 sc1
    buffer_store_dwordx4 {v(D+8,4)}, v{vu+1}, {s(sWS,4)}, s{sOx} offen sc1
    """)
    if cfg.get("od", 0) & 1: st(f"""
    buffer_store_dwordx4 {v(D,4)}, v{vu}, {s(sWS,4)}, s{sOa} offen
    buffer_store_dwordx4 {v(D+4,4)}, v{vu}, {s(sWS,4)}, s{sOa} offen offset:512
    buffer_store_dwordx4 {v(D+8,4)}, v{vu+1}, {s(sWS,4)}, s{sOx} offen""")
    if cfg.get("xb", 1) == 2: st("s_barrier")
    if f5 == 2: st(fl5)
    if f5 >= 0 and cfg.get("p5", 2) == 1: st(fld, "F")
    stamp(a, 26)
    for i in range(3*lt): st(f"""v_add_u32 v{t+1}, {64*i}, v0
    v_mul_u32_u24 v{t+1}, 6554, v{t+1}
    v_lshrrev_b32 v{t+1}, 16, v{t+1}
    v_mul_u32_u24 v{t+1}, {1280-160}, v{t+1}
    v_add_u32 v{vo_[i]}, v{t+1}, v{vA[0]}""")
    act = [12+20*i for i in range(4)]
    al1 = lambda i, ks: (f"buffer_load_dwordx4 {v(act[i]+4*ks,4)}, v{vA[ks>>2]}, {s(sWS,4)}, s{sAct[i]} offen offset:{1024*(ks&3)} sc1", f"o{i}_{ks}")
    def ald(st_, i):
        for ks in range(5): st_(*al1(i, ks))
    ny = cfg.get("ny", 0); oi = cfg.get("oi", 4)
    if (f5 < 0 or cfg.get("p5", 2) == 2) and not cfg.get("nw", 0): st("s_waitcnt vmcnt(0)")
    if f5 >= 0 and cfg.get("p5", 2) == 2: st(fld, "F")
    if cfg.get("y0", 2) == 0 or cfg.get("xs", 70): st("s_barrier")
    assert cfg.get("y0", 2) or not cfg.get("xs", 70)
    if f5 >= 0: poll(st, "q", 29)
    st.w("wof")
    assert cfg.get("y0", 2) <= oi
    for i in range(oi):
        ald(st, i)
        if cfg.get("y0", 2) == i+1 and not ny: st("s_barrier")
    ac2 = [208, 228]; tc = 250; nq = cfg.get("nq", 1)
    ck = lambda i, ks: [f"v_max3_u32 v{tc+e}, v{act[i]+4*ks+2*e}, v{act[i]+4*ks+2*e+1}, v{tc+e}" if ks else f"v_max_u32 v{tc+e}, v{act[i]+2*e}, v{act[i]+2*e+1}" for e in range(2)]
    cke = f"v_max_u32 v{tc}, v{tc}, v{tc+1}\n v_cmp_eq_u32 vcc, -1, v{tc}"
    padd = lambda x, y: [f"v_pk_add_f32 {v(x+h2,2)}, {v(x+h2,2)}, {v(y+h2,2)}" for h2 in (0, 2)]
    for i in range(4):
        st(f"{name}_o{i}:")
        ex = [[] for m in range(25)]; br = f"s_cbranch_vccnz {name}_o{i}_retry\n {name}_o{i}_ok:"
        rdp = lambda d, q, c: (f"ds_read_b128 {v(q+4*c,4)}, v{aP[d+1]} offset:{(d*5120 if d < 3 else 0)+c*1024}", f"pr{d}{c}")
        ws_ = cfg.get("tw", 4) if i < 3 else cfg.get("tv", 2); yb = cfg.get("ty", 14)
        for c in range(5):
            if i: ex[ws_*c+1].append((f"ds_write_b128 v{aP[0]}, {v(ac2[(i-1)&1]+4*c,4)} offset:{(i-1)*5120+c*1024}", "pw"))
            if i == 2 and nq: ex[ws_*c].append(rdp(3, act[0], c))
            if i > nq: ex[ws_*c if i < 3 else c+yb-6].append(rdp((i+2) & 3, act[i-1], c))
            if i == 2: ex[min(ws_*c+8, 24)] += [("@", f"pr0{c}")] + padd(act[1]+4*c, act[0]+4*c)
            if i == 3: ex[yb+c].append(rdp(2, act[0], c)); ex[20+c] += [("@", f"pr2{c}")] + padd(act[0]+4*c, act[2]+4*c)
            ex[5*c+1 if i < 3 else c] += [("@", f"o{i}_{c}")] + ck(i, c)
        for m in range(5*oi, 20*(i == 0)): ex[(m-5*oi)*cfg.get("oj", 20)//(20-5*oi)].insert(0, al1(*divmod(m, 5)))
        ex[22 if i < 3 else 4].append(cke)
        if i == 3: ex[5].insert(0, br); ex[yb] = [("@", "pw"), "s_barrier"] + ex[yb]
        for ks in range(5):
            st.w(f"o{i}_{ks}")
            if ks == 0 and i in (0, 3): stamp(a, 27 if i == 0 else 28)
            for c in range(5):
                q = ac2[i & 1]+4*c
                st(f"{MF16} {v(q,4)}, {v(WO(ks,c),4)}, {v(act[i]+4*ks,4)}, {v(q,4) if ks else v(act[1]+4*c,4) if i == 3 else '0'}")
                st.run(ex[5*ks+c])
        if i < 3: st(br)
        if nq-ny <= i < 3: st.w("pw"); st("s_barrier")
    for c in range(5):
        q = ac2[1]+4*c; st.run(padd(q, act[0]+4*c))
        st(f"v_cvt_pk_bf16_f32 v{q}, v{q}, v{q+1}\n v_cvt_pk_bf16_f32 v{q+1}, v{q+2}, v{q+3}")
        st(f"ds_write_b64 v{vs}, {v(q,2)} offset:{15360+32*c}" if lt else f"buffer_store_dwordx2 {v(q,2)}, v{vs}, {s(sSP,4)}, s{sO} offen offset:{32*c}")
    for i in range(3*lt): st(f"ds_read_b128 {v(act[1]+4*i,4)}, v{aP[0]} offset:{15360+1024*i}", f"fo{i}")
    for i in range(3*lt):
        if i == 2: st("s_mov_b32 exec_hi, 0")
        st.w(f"fo{i}"); st(f"""buffer_store_dwordx4 {v(act[1]+4*i,4)}, v{vo_[i]}, {s(sSP,4)}, s{sO} offen offset:{1024*i} {["", "sc1", "nt", "sc0 sc1"][cfg.get("os", 0)]}""")
    if TS[0]: st("s_mov_b64 exec, -1")
    if TS[0] == 1: st(f"v_writelane_b32 v255, s{sCnt}, 5")
    wend(a, name)
    x = St(a)
    for p in "pq"[:1 + (f5 >= 0)]: x(f"""{name}_{p}retry:
    s_cmp_eq_u32 s{sCnt}, 0
    s_cbranch_scc1 {name}_{p}ok
    s_sub_u32 s{sCnt}, s{sCnt}, 1
    {fld}
    s_waitcnt vmcnt(0)
    s_branch {name}_{p}oll""")
    for i in range(4):
        x(f"{name}_o{i}_retry:\n s_cmp_eq_u32 s{sCnt}, 0\n s_cbranch_scc1 {name}_o{i}_ok\n s_sub_u32 s{sCnt}, s{sCnt}, 1")
        ald(x, i)
        for m in range(i+1, 4 if i else oi):
            x(f"s_waitcnt vmcnt({5*(4-m)})")
            for ks in range(5): x.run(ck(m, ks))
            x(f"{cke}\n s_cbranch_vccz {name}_o{i}_r{m}"); ald(x, m); x(f"{name}_o{i}_r{m}:")
        x(f"s_waitcnt vmcnt(0) lgkmcnt(0)\n s_branch {name}_o{i}")
    slow_path(a, name, sWS, sT, sN, [sWb[0], sWb[1], sB, sZb], mx, t)
```

```python
from kf import *
from kfA1 import span, gelu
Z2 = 104; Z1 = 136; ssr = [128, 132, 160, 164]; tg_ = 168; z1p = 176; sm = 188; vK1 = 192; raw = 196
aLw, aLr, vZn, aPark, aS, vSp, vF1, aTX, aPk = range(208, 217); vPk = [217, 218]; pkd = 224; kvd = 232; gr = 244
fl_ = fl
def waveB(E, st):
    a = E["a"]; name = E["name"]; cfg = E["cfg"]; S_ = E["S_"]; gS = E["gS"]; cR = E["cR"]
    sWS, sW, sT, sT2, sO, sN, sK, sTH, sHP, sE, sAct, sTag = [E[k] for k in "sWS sW sT sT2 sO sN sK sTH sHP sE sAct sTag".split()]
    sX = S_(4); sKW = S_(4); sKVo = S_(); sKVb = S_(); sCnt = S_(); sPk = S_(); sCw = S_(); sXo = S_(); sMx = S_(); sMz = S_(); sMq = S_(); sMk = S_(); sFl = S_()
    sMK = S_(2); sStr = S_(); sEx = S_(); sZs = S_(); sSt = S_(); sF2 = S_(); sF3 = S_(); sF4 = S_(); sPs = [S_(), S_()]; C = lambda k, d: cfg.get(k, d)/10; FS = cfg.get('fs', 7)
    TB = cfg.get("tsb", 0); stamp_ = globals()["stamp"]; stamp = (lambda a, k: None) if TB else stamp_
    def tb(b, odd):
        if TB and b != 4: a(f"s_bitcmp1_b32 s{sK}, 0\n s_cbranch_scc{1-odd} {name}_tb{b}_{odd}"); stamp_(a, b+1); a(f"{name}_tb{b}_{odd}:")
    vz = 4; vA = [11, 252]; t0, t1 = 253, 254
    vx = [12, 13]; vw = [14, 15, 16]; vq = [17, 18, 19]; vk = 20; vg = 21; aQx = 30; t = 22
    st(f"""{name}_B:
    s_setprio {cfg.get("p2", 0)}
    v_lshrrev_b32 v{t}, 3, v0
    s_lshl_b32 s{sT}, s{sK}, 4
    v_bfe_u32 v{t+1}, v0, 4, 2
    v_and_b32 v{t+2}, 7, v0
    s_lshl_b32 s{sT2}, s{S_TG}, 6
    v_xor_b32 v{t+1}, v{t+1}, v{t+2}
    s_add_u32 s{sT2}, s{sT2}, s{sT}
    v_add_u32 v{t}, s{sT2}, v{t}
    v_mul_u32_u24 v{t}, 0x500, v{t}
    v_lshl_add_u32 v{vx[0]}, v{t+1}, 4, v{t}
    s_mul_i32 s{sMz}, s{sK}, 3072
    v_xor_b32 v{vx[1]}, 64, v{vx[0]}
    s_lshl_b32 s{sT2}, s{sMz}, 4
    v_add_u32 v{vx[1]}, {8*1280-1024}, v{vx[1]}
    v_lshlrev_b32 v{vA[0]}, 4, v0
    """)
    for i in range(3):
        st(f"""v_add_u32 v{t}, {64*i}, v0
        v_mul_u32_u24 v{t}, 5462, v{t}
        v_lshrrev_b32 v{t}, 16, v{t}
        v_mul_u32_u24 v{t}, {3072-192}, v{t}
        v_add3_u32 v{vw[i]}, v{t}, v{vA[0]}, s{sT2}""")
    if cfg.get("stag", 1): st(f"""
    s_and_b32 s{sT}, s{S_J if E["JB"] < 3 else S_TG}, 3
    s_mul_i32 s{sT}, s{sT}, {cfg.get("sj", 3)}
    s_add_u32 s{sCw}, s{sT}, s{S_TG if E["JB"] < 3 else S_J}
    s_mul_i32 s{sT}, s{sCw}, 26
    s_lshr_b32 s{sT}, s{sT}, 8
    s_mul_i32 s{sT}, s{sT}, 10
    s_sub_u32 s{sCw}, s{sCw}, s{sT}""")
    else: st(f"s_mov_b32 s{sCw}, 0")
    st(f"""
    s_lshl_b32 s{sXo}, s{sCw}, 7
    s_lshl_b32 s{sMx}, s{sK}, 11
    s_add_u32 s{sMx}, s{sMx}, {X0}
    s_mul_i32 s{sMk}, s{sK}, 640
    v_add_u32 v{vk}, s{sMk}, v{vA[0]}
    s_mul_i32 s{sT}, s{S_J}, 192
    s_add_u32 s{sT}, s{sT}, 1536
    s_sub_u32 s{sW+2}, {640*3072}, s{sT}
    s_mov_b32 s{sW+3}, 0x20000
    s_mov_b32 s{sX+2}, {2048*1280}
    s_mov_b32 s{sX+3}, 0x20000
    s_cmp_lt_u32 s{S_J}, 2
    s_cselect_b32 s{sMK}, -1, 0
    s_cselect_b32 s{sMK+1}, 0xff, 0
    s_mov_b32 s{sKW+2}, 25600
    s_mov_b32 s{sKW+3}, 0x20000
    s_waitcnt lgkmcnt(0)
    s_mov_b32 s{sX}, s{P_X}
    s_mov_b32 s{sX+1}, s{P_X+1}
    s_add_u32 s{sW}, s{P_WIN}, s{sT}
    s_addc_u32 s{sW+1}, s{P_WIN+1}, 0
    s_bitcmp1_b32 s{S_J}, 0
    s_cselect_b32 s{sKW}, s{P_WV}, s{P_WK}
    s_cselect_b32 s{sKW+1}, s{P_WV+1}, s{P_WK+1}
    """)
    def dX(i):
        return [(f"""s_add_u32 m0, s{sMx}, {xblk(i)}
        s_add_u32 s{sT}, s{sXo}, 128
        buffer_load_dwordx4 v{vx[0]}, {s(sX,4)}, s{sXo} offen lds
        buffer_load_dwordx4 v{vx[1]}, {s(sX,4)}, s{sXo} offen offset:1024 lds
        s_cmp_eq_u32 s{sT}, 1280
        s_cselect_b32 s{sXo}, 0, s{sT}""", f"x{i}")]
    def dW(q):
        L = []; Q = q >= 10; x = ""
        if q < 10: L.append((f"""s_add_u32 m0, s{sMk}, {POS[q]+12288}
            s_mul_i32 s{sO}, s{sCw}, 2560
            s_mov_b64 exec, {s(sMK,2)}
            buffer_load_dwordx4 v{vk}, {s(sKW,4)}, s{sO} offen lds
            s_mov_b64 exec, -1""", f"w{q}"))
        if q == 10: x = f"""s_mul_i32 s{sT}, s{S_J}, 160
            s_add_u32 s{sE}, s{P_WQ}, s{sT}
            s_addc_u32 s{sE+1}, s{P_WQ+1}, 0
            s_sub_u32 s{sT}, {640*1280}, s{sT}
            s_sub_u32 s{sW}, s{sW}, 1536
            s_subb_u32 s{sW+1}, s{sW+1}, 0
            s_mul_i32 s{sCw}, s{sCw}, s{sStr}
            s_lshl_b32 s{sCw}, s{sCw}, 1
            s_cmp_lt_u32 s{sK}, 2
            s_cselect_b64 {s(sW,2)}, {s(sW,2)}, {s(sE,2)}
            s_cselect_b32 s{sW+2}, s{sW+2}, s{sT}\n"""
        x += f"s_add_u32 m0, s{sMq}, {POS[q]}\n s_add_u32 s{sO}, s{sCw}, s{sStr}\n" if Q else f"s_add_u32 m0, s{sMz}, {POS[q]}\n s_mul_i32 s{sO}, s{sCw}, {64*3072}\n"
        for i in range(3):
            x += f"buffer_load_dwordx4 v{(vq if Q else vw)[i]}, {s(sW,4)}, s{sCw if Q else sO} offen offset:{1024*i} lds\n"
            if i == 0 and not Q: x += f"s_add_u32 s{sCw}, s{sCw}, 1\n s_cmp_eq_u32 s{sCw}, 10\n s_cselect_b32 s{sCw}, 0, s{sCw}"
            if i == 2 and Q: x += f"s_cmp_eq_u32 s{sO}, s{sEx}\n s_cselect_b32 s{sCw}, 0, s{sO}"
            L.append((x, f"w{q}")); x = ""
        return L
    st(f"s_mov_b32 s{sN}, s{sXo}")
    n0 = cfg.get("n0", 3); nb = cfg.get("nb", 2); xq = list(range(10)); wq = list(range(30))
    def issue(b, n):
        L = []
        for i in range(n):
            if xq: L += dX(xq.pop(0))
            if wq and FREE[wq[0]] <= b: L += dW(wq.pop(0))
        return L
    st.run(issue(-1, n0))
    srd(a, sWS, P_WS, WS_END)
    st(f"s_mov_b32 s{sT}, {hx(WS_EP)}\n s_load_dword s{sTag}, {s(P_WS,2)}, s{sT}")
    st(f"""
    s_mul_i32 s{sT}, s{sK}, 320
    s_add_u32 s{sT}, s{sT}, s{sN}
    v_add_u32 v{vg}, s{sT}, v{vA[0]}
    v_subrev_u32 v{t}, 1280, v{vg}
    v_min_u32 v{vg}, v{vg}, v{t}
    s_and_b32 s{sT}, s{sK}, 1
    s_mul_i32 s{sMq}, s{sT}, 6144
    s_mul_i32 s{sT2}, s{sT}, {16*1280}
    s_cmp_lt_u32 s{sK}, 2
    s_cselect_b32 s{sStr}, {32*3072}, {0}
    s_cselect_b64 vcc, -1, 0
    s_cselect_b32 s{sT}, 0, 3072
    s_add_u32 s{sMq}, s{sMq}, s{sT}
    s_max_u32 s{sStr}, s{sStr}, {32*1280}
    s_mul_i32 s{sEx}, s{sStr}, 20
    """)
    for i in range(3):
        st(f"""v_add_u32 v{t}, {64*i}, v0
        v_mul_u32_u24 v{t}, 6554, v{t}
        v_lshrrev_b32 v{t}, 16, v{t}
        v_mul_u32_u24 v{t+1}, 160, v{t}
        v_sub_u32 v{t+1}, v{vA[0]}, v{t+1}
        v_and_b32 v{t+2}, 8, v{t}
        v_bfe_u32 v{t+3}, v{t}, 1, 2
        v_and_b32 v{t}, 1, v{t}
        v_lshl_add_u32 v{t}, v{t}, 2, v{t+3}
        v_add_u32 v{t}, v{t}, v{t+2}
        v_mul_u32_u24 v{t}, 0x500, v{t}
        v_add3_u32 v{vq[i]}, v{t}, v{t+1}, s{sT2}
        {f"s_mov_b32 exec_lo, 0{chr(10)} v_mov_b32 v{vq[i]}, -4.0{chr(10)} s_mov_b32 exec_lo, -1" if i == 2 else ""}
        v_cndmask_b32 v{vq[i]}, v{vq[i]}, v{vw[i]}, vcc""")
    E["common"](st)
    kv_addr(st, t)
    st(f"""
    s_add_u32 s{sKVb}, s{sMz}, {KV0}
    v_add_u32 v{vz}, s{sMz}, v{vA[0]}
    v_add_u32 v{aQx}, {QX}, v{vz}
    s_lshr_b32 s{sKVo}, s{S_TG}, 1
    s_mul_i32 s{sKVo}, s{sKVo}, {KVS}
    s_add_u32 s{sKVo}, s{sKVo}, {hx(WS_KV)}
    v_add_u32 v{vA[1]}, 0x1000, v{vA[0]}
    s_mov_b32 s{sCnt}, 0x8000
    s_mov_b32 s{sFl}, {hx(FL1)}
    s_and_b32 s{sT}, s{S_TG}, 30
    v_min_u32 v{t0}, {cfg.get("nf", 12)-1}, v0
    v_lshl_add_u32 v{t0}, s{sT}, 1, v{t0}
    v_and_b32 v{t0}, 63, v{t0}
    v_lshlrev_b32 v{t0}, {FS}, v{t0}
    s_lshl_b32 s{sT}, s{S_J}, 2
    s_add_u32 s{sT}, s{sT}, s{sK}
    s_lshl_b32 s{sF4}, s{sT}, {FS+5}
    s_add_u32 s{sF4}, s{sF4}, {hx(FL4)}
    s_mul_i32 s{sPk}, s{sT}, {11*5120}
    s_add_u32 s{sPk}, s{sPk}, {hx(WS_PK)}
    s_mul_i32 s{sT}, s{sK}, 6144
    s_add_u32 s{sT}, s{sT}, {hx(WS_ACT+20*1024)}
    """)
    for i in range(4): st(f"s_add_u32 s{sAct[i]}, s{sAct[i]}, s{sT}")
    def kv(c):
        L = [(f"s_add_u32 m0, s{sKVb}, {slot(c)}\n s_nop 0\n" if i == 0 else "") + f"buffer_load_dwordx4 v{vz}, {s(sWS,4)}, s{sKVo} offen offset:{1024*i} sc1 lds" for i in range(3)]
        L[2] += f"\n s_add_u32 s{sKVo}, s{sKVo}, {KVS}\n s_cmp_eq_u32 s{sKVo}, {hx(WS_KV+16*KVS)}\n s_cselect_b32 s{sKVo}, {hx(WS_KV)}, s{sKVo}"
        return [(x, f"kv{c}") for x in L]
    fl = lambda sF: f"buffer_load_dword v{t1}, v{t0}, {s(sWS,4)}, s{sF} offen sc1"
    polls = []
    def poll(nm, sF, k):
        def f(st_):
            st_(f"{name}_{nm}poll:"); st_.w("F")
            st_(f"v_cmp_ne_u32 vcc, s{sTag}, v{t1}\n s_cbranch_vccnz {name}_{nm}retry\n {name}_{nm}ok:"); polls.append((nm, sF))
            if k: stamp(a, k)
        return f
    flag = lambda tag, sF, o=0: ["s_mov_b64 exec, 1", ("@", tag), f"buffer_store_dword v{gr+1}, off, {s(sWS,4)}, s{sF} sc1\n s_mov_b64 exec, -1"]
    ex = [[] for b in range(47)]
    def put(items, w0, w1):
        for i, it in enumerate(items): x = w0 + (w1-w0)*(i+0.5)/len(items); ex[int(x)].append((x, it))
    h, e, tok = t+1, t+2, t+3; T = kvd+4
    put([f"""
    v_lshrrev_b32 v{h}, 5, v0
    v_bfe_u32 v{e}, v0, 2, 2
    v_and_b32 v{tok}, 31, v0
    v_and_b32 v{t+5}, 3, v0
    s_lshl_b32 s{sT}, s{sTH}, 1
    s_add_u32 s{sT}, s{sT}, s{sHP}
    s_lshl_b32 s{sT}, s{sT}, 9
    s_add_u32 s{sT}, s{sT}, {STX}
    v_lshl_add_u32 v{aS}, v0, 3, s{sT}""", f"""
    s_lshl_b32 s{sT}, s{sK}, 10
    s_add_u32 s{sT}, s{sT}, {LNS}
    v_lshl_add_u32 v{aLw}, v{tok}, 5, s{sT}
    v_lshl_add_u32 v{aLw}, v{h}, 3, v{aLw}
    v_lshrrev_b32 v{t+6}, 4, v0
    v_lshl_add_u32 v{aLr}, v{t+6}, 3, v{e}
    v_lshl_add_u32 v{aLr}, v{aLr}, 5, s{sT}
    v_lshl_add_u32 v{aLr}, v{t+5}, 3, v{aLr}""", f"""
    v_mul_u32_u24 v{vZn}, 3072, v{h}
    v_and_b32 v{t+6}, 1, v{t+6}
    v_lshl_add_u32 v{vZn}, v{t+6}, 9, v{vZn}
    v_and_b32 v{t+6}, 7, v0
    v_lshl_add_u32 v{vZn}, v{t+6}, 4, v{vZn}
    v_bfe_u32 v{t+6}, v0, 3, 1
    v_lshl_add_u32 v{vZn}, v{t+6}, 8, v{vZn}
    v_add_u32 v{aTX}, {TX}, v{vz}""", f"""
    s_lshl_b32 s{sT}, s{S_TG}, 1
    s_add_u32 s{sT}, s{sT}, s{sTH}
    s_lshl_b32 s{sSt}, s{sT}, 12
    s_add_u32 s{sSt}, s{sSt}, {hx(WS_ST2)}
    s_mul_i32 s{sZs}, s{sT}, 6144
    s_mul_i32 s{sT}, s{S_J}, {128*3072}
    s_add_u32 s{sZs}, s{sZs}, s{sT}
    s_lshl_b32 s{sT}, s{sHP}, 7
    s_add_u32 s{sZs}, s{sZs}, s{sT}
    s_add_u32 s{sZs}, s{sZs}, {hx(WS_Z2N)}""", f"""
    s_lshl_b32 s{sT}, s{S_J}, 5
    s_add_u32 s{sT}, s{sT}, s{S_TG}
    s_lshl_b32 s{sT}, s{sT}, 2
    s_add_u32 s{sT}, s{sT}, s{sK}
    s_lshl_b32 s{sF2}, s{sT}, {FS}
    s_lshl_b32 s{sT}, s{S_TG}, 2
    s_add_u32 s{sT}, s{sT}, s{sK}
    s_lshl_b32 s{sT}, s{sT}, {FS+3}
    s_add_u32 s{sF3}, s{sT}, {hx(FL3)}""", f"""
    s_lshl_b32 s{sT2}, s{sHP}, 5
    s_sub_u32 s{sT2}, 32, s{sT2}
    v_cmp_gt_u32 vcc, s{sT2}, v0
    s_lshl_b32 s{sT}, s{S_J}, 9
    v_add_u32 v{t+6}, s{sT}, v{vA[0]}
    v_cndmask_b32 v{vSp}, -4.0, v{t+6}, vcc
    v_mov_b32 v{vK1}, {fl_(-GK1)}
    v_mov_b64 {v(sm,2)}, 0
    v_mov_b64 {v(sm+2,2)}, 0""",
    f"""s_lshr_b32 s{sT}, s{S_TG}, 1
    s_mul_i32 s{sN}, s{sT}, {KVS}
    s_and_b32 s{sT}, s{S_TG}, 1
    s_lshl_b32 s{sT2}, s{sT}, 1
    s_add_u32 s{sT2}, s{sT2}, s{sTH}
    s_mul_i32 s{sKW+2}, s{sT2}, 1536
    s_add_u32 s{sKW+2}, s{sKW+2}, 5120
    s_lshl_b32 s{sT2}, s{sT2}, 10
    s_lshl_b32 s{sT}, s{sT}, 9
    s_add_u32 s{sT}, s{sT}, 0x1000
    s_cmp_eq_u32 s{sHP}, 0
    s_cselect_b32 s{sT}, s{sT2}, s{sT}
    s_cselect_b32 s{sT2}, 16, 0x400
    v_add_u32 v{T}, s{sT2}, v{aLw}
    s_cmp_eq_u32 s{S_J}, 0
    s_cselect_b32 s{sT}, s{sT}, s{sKW+2}
    s_cselect_b64 {s(sMK,2)}, -1, 0
    s_add_u32 s{sN}, s{sN}, s{sT}
    s_add_u32 s{sN}, s{sN}, {hx(WS_KV)}
    s_cmp_lt_u32 s{S_J}, 2
    s_cselect_b32 s{sKW+2}, s{sN}, {hx(WS_END)}""", f"""
    v_bfe_u32 v{T+1}, v0, 4, 1
    v_lshlrev_b32 v{T+1}, 7, v{T+1}
    v_sub_u32 v{T+1}, v{aLr}, v{T+1}
    s_lshl_b32 s{sT}, s{sHP}, 4
    v_and_b32 v{t+4}, 15, v0
    v_add_u32 v{t+4}, s{sT}, v{t+4}
    v_lshrrev_b32 v{T+2}, 4, v0
    v_mul_u32_u24 v{T+2}, 0x180, v{T+2}
    v_lshl_add_u32 v{T+2}, v{t+4}, 4, v{T+2}
    v_mov_b32 v{T+3}, 0x3f803f80
    v_cmp_eq_u32 vcc, 20, v{t+4}
    v_cmp_gt_u32 {s(sKW,2)}, 24, v{t+4}
    s_lshl_b32 s{sT}, s{sK}, 5
    s_sub_u32 s{sT}, 96, s{sT}
    v_cndmask_b32 v{T+3}, 0, v{T+3}, vcc
    v_cmp_gt_u32 vcc, s{sT}, v0
    v_cndmask_b32 v{T+2}, -4.0, v{T+2}, {s(sKW,2)}
    v_cmp_gt_u32 {s(sKW,2)}, 20, v{t+4}
    v_cndmask_b32 v{t+4}, -4.0, v{vA[0]}, vcc
    v_cndmask_b32 v{T+2}, v{T+2}, v{t+4}, {s(sMK,2)}
    s_or_b64 {s(sKW,2)}, {s(sKW,2)}, {s(sMK,2)}""",
    f"""s_and_b32 s{sT}, s{S_TG}, 7
    s_lshl_b32 s{sT}, s{sT}, 2
    s_add_u32 s{sT}, s{sT}, s{sK}
    s_lshr_b32 s{sT2}, s{S_TG}, 3
    s_lshl_b32 s{sN}, s{S_J}, 2
    s_add_u32 s{sN}, s{sN}, s{sT2}
    s_mul_i32 s{sN}, s{sN}, 55
    s_add_u32 s{sN}, s{sN}, s{sT}
    s_lshl_b32 s{sN}, s{sN}, 10
    s_add_u32 s{sPs[0]}, s{sN}, {hx(WS_PK)}
    s_add_u32 s{sPs[1]}, s{sN}, {hx(WS_PK+30*1024)}
    s_cmp_lt_u32 s{sT}, 30
    s_cselect_b32 s{sPs[0]}, s{sPs[0]}, {hx(WS_END)}
    s_cmp_lt_u32 s{sT}, 25
    s_cselect_b32 s{sPs[1]}, s{sPs[1]}, {hx(WS_END)}
    s_mul_i32 s{sE}, s{sT}, 52
    s_lshr_b32 s{sE}, s{sE}, 8
    s_sub_u32 s{sN}, s{S_J}, s{sE}
    s_mul_i32 s{sN}, s{sN}, 5
    s_add_u32 s{sN}, s{sN}, s{sT}
    s_lshl_b32 s{sN}, s{sN}, 5
    v_and_b32 v{t}, 1, v0
    v_lshl_add_u32 v{t}, v{t}, 4, s{sN}
    v_bfe_u32 v{t+4}, v0, 1, 2
    v_bfe_u32 v{t+5}, v0, 3, 1
    v_bfe_u32 v{t+6}, v0, 4, 1""", f"""
    s_lshr_b32 s{sT2}, s{S_TG}, 3
    s_mul_i32 s{sN}, s{sT2}, 12
    s_add_u32 s{sN}, s{sN}, s{sE}
    s_cmp_ge_u32 s{sE}, 3
    s_cselect_b32 s{sT}, 3, 0
    s_add_u32 s{sN}, s{sN}, s{sT}
    s_lshl_b32 s{sN}, s{sN}, 4
    v_lshl_add_u32 v{vPk[0]}, v{t+5}, 2, v{t+4}
    v_mad_u32_u24 v{vPk[0]}, v{t+6}, 48, v{vPk[0]}
    v_lshl_add_u32 v{vPk[0]}, v{h}, 3, v{vPk[0]}
    v_add_u32 v{vPk[0]}, s{sN}, v{vPk[0]}
    v_mul_u32_u24 v{vPk[0]}, 0x500, v{vPk[0]}
    v_add_u32 v{vPk[0]}, v{vPk[0]}, v{t}""", f"""
    s_and_b32 s{sT}, s{sE}, 1
    s_and_b32 s{sN}, s{sE}, 2
    s_lshl_b32 s{sN}, s{sN}, 1
    s_add_u32 s{sN}, s{sN}, s{sT}
    s_mul_i32 s{sN}, s{sN}, 20
    s_cmp_eq_u32 s{sE}, 4
    s_cselect_b32 s{sN}, 16, s{sN}
    s_cselect_b32 s{sT}, 20, 4
    v_mad_u32_u24 v{vPk[1]}, v{t+5}, s{sT}, v{t+4}
    s_cselect_b32 s{sT}, 80, 40
    v_mad_u32_u24 v{vPk[1]}, v{t+6}, s{sT}, v{vPk[1]}
    s_cselect_b32 s{sT}, 40, 8
    v_mad_u32_u24 v{vPk[1]}, v{h}, s{sT}, v{vPk[1]}
    s_lshr_b32 s{sT2}, s{S_TG}, 3
    s_mul_i32 s{sT2}, s{sT2}, 160
    s_add_u32 s{sN}, s{sN}, s{sT2}
    v_add_u32 v{vPk[1]}, s{sN}, v{vPk[1]}
    v_mul_u32_u24 v{vPk[1]}, 0x500, v{vPk[1]}
    v_add_u32 v{vPk[1]}, v{vPk[1]}, v{t}
    s_lshl_b32 s{sT}, s{sK}, 11
    s_add_u32 s{sMk}, s{sT}, {PKS}
    v_lshl_add_u32 v{aPk}, v0, 3, s{sMk}""", f"""
    s_waitcnt lgkmcnt(0)
    s_add_u32 s{sTag}, s{sTag}, {hx(TAGC)}
    v_mov_b32 v{gr+1}, s{sTag}
    v_mov_b32 v{gr+3}, s{sTag}
    s_lshl_b32 s{sT}, s{S_TG}, 1
    s_add_u32 s{sT}, s{sT}, s{S_J}
    s_lshl_b32 s{sT}, s{sT}, {FS}
    s_add_u32 s{sXo}, s{sT}, {hx(FL1)}
    s_lshl_b32 s{sT}, s{sK}, 1
    s_or_b32 s{sT}, s{sT}, s{S_J}
    s_cmp_lt_u32 s{sT}, 2
    s_cselect_b32 s{sXo}, s{sXo}, {hx(WS_END)}"""], 6, 12)
    gate = (f"""s_mul_i32 s{sT}, s{sK}, 320
    s_add_u32 m0, s{sT}, {GATE}
    s_mov_b32 s{sX}, s{P_GW}
    s_mov_b32 s{sX+1}, s{P_GW+1}
    s_mov_b32 s{sX+2}, 1280
    s_mov_b64 exec, 0xfffff
    buffer_load_dwordx4 v{vg}, {s(sX,4)}, 0 offen lds
    s_mov_b64 exec, -1""", "x10")
    kvs = [(f"""ds_read_b64_tr_b16 {v(kvd,2)}, v{T+1}
    ds_read_b64_tr_b16 {v(kvd+2,2)}, v{T+1} offset:256
    s_mov_b64 exec, {s(sMK,2)}
    ds_read_b64 {v(kvd,2)}, v{aLw}
    ds_read_b64 {v(kvd+2,2)}, v{T}
    s_mov_b64 exec, -1""", "kr"), [("@", "kr")] + [f"v_cndmask_b32 v{kvd+i}, v{T+3}, v{kvd+i}, {s(sKW,2)}" for i in range(4)] +
    [(f"buffer_store_dwordx4 {v(kvd,4)}, v{T+2}, {s(sWS,4)}, s{sKW+2} offen sc1", "kvs")]]
    g2 = C("g2", 239); hl = 1
    for n in range(3): put([(f"ds_read_b128 {v(raw+4*n,4)}, v{aTX} offset:{1024*n}", f"tx{n}")] , 11+n+hl, 11+n+hl)
    put(kvs[:1], 12, 12); put(kvs[1:], C("kp", 128), C("kp", 128))
    def gz(g):
        X = range(Z2+8*g, Z2+8*g+8); L = [f"v_lshlrev_b32 v{x}, 16, v{raw+4*g+i}\n v_and_b32 v{x+1}, 0xffff0000, v{raw+4*g+i}" for i, x in enumerate(X[::2])]
        return [[("@", f"tx{g}"), L[0]]] + L[1:] + gelu(X, tg_, vK1, ("v_add_f32 {s1}, {s1}, {x}", "v_fmac_f32 {s2}, {x}, {x}"), s1=sm, s2=sm+2)
    assert g2 >= 14.2+hl
    put(gz(0) + gz(1) + gz(2) +
        [f"v_add_f32 v{sm}, v{sm}, v{sm+1}\n v_add_f32 v{sm+1}, v{sm+2}, v{sm+3}\n v_mov_b64 {v(tg_,2)}, {v(sm,2)}\n s_nop 1\n v_permlane32_swap_b32 v{sm}, v{tg_}\n v_permlane32_swap_b32 v{sm+1}, v{tg_+1}",
         (f"v_add_f32 v{sm}, v{sm}, v{tg_}\n v_add_f32 v{sm+1}, v{sm+1}, v{tg_+1}\n ds_write_b64 v{aS}, {v(sm,2)}", "stx")], 11.1+hl, g2)
    put([(f"ds_read_b64 {v(tg_,2)}, v{aS} offset:512", "sty"),
         [("@", "sty"), f"""v_add_f32 v{gr}, v{sm}, v{tg_}
         v_add_f32 v{gr+2}, v{sm+1}, v{tg_+1}
         buffer_store_dwordx4 {v(gr,4)}, v{vSp}, {s(sWS,4)}, s{sSt} offen sc1"""]], int(g2)+1, int(g2)+1)
    f1b = cfg.get("f1b", 16)
    put([flag("kvs", sXo)], f1b, f1b)
    sld = [(f"buffer_load_dwordx4 {v(ssr[i],4)}, v{vA[0]}, {s(sWS,4)}, s{sSt} offen offset:{1024*i} sc1", "ss") for i in range(4)]
    m, n_ = tg_+2, tg_+3; mu = sm
    def schk(st_):
        st_(f"{name}_schk:"); st_.w("ss")
        G_ = [x+o for x in ssr for o in (1, 3)]
        for op, d in (("max", m), ("min", n_)):
            st_(f"v_{op}3_u32 v{d}, v{G_[0]}, v{G_[1]}, s{sTag}")
            for i in (2, 4, 6): st_(f"v_{op}3_u32 v{d}, v{G_[i]}, v{G_[i+1]}, v{d}")
        st_(f"v_cmp_ne_u32 vcc, v{m}, v{n_}\n s_cbranch_vccnz {name}_sretry\n {name}_sok:")
        stamp(a, 4)
    LN = [schk]
    for o in (0, 2): LN += [f"v_add_f32 v{m}, v{ssr[0]+o}, v{ssr[1]+o}\n v_add_f32 v{n_}, v{ssr[2]+o}, v{ssr[3]+o}\n v_add_f32 v{mu+o//2}, v{m}, v{n_}"]
    LN += [f"v_mov_b64 {v(m,2)}, {v(mu,2)}\n s_nop 1\n v_permlane32_swap_b32 v{mu}, v{m}\n v_permlane32_swap_b32 v{mu+1}, v{m+1}",
           f"v_add_f32 v{mu}, v{mu}, v{m}\n v_add_f32 v{mu+1}, v{mu+1}, v{m+1}\n v_mul_f32 v{mu}, {fl_(1/768)}, v{mu}\n v_mul_f32 v{mu+1}, {fl_(1/768)}, v{mu+1}",
           f"v_fma_f32 v{mu+1}, -v{mu}, v{mu}, v{mu+1}\n v_max_f32 v{mu+1}, 0, v{mu+1}\n v_add_f32 v{mu+1}, {fl_(1e-5)}, v{mu+1}\n v_rsq_f32 v{mu+1}, v{mu+1}\n s_nop 0\n v_mul_f32 v{mu}, v{mu}, v{mu+1}"]
    zst = lambda n: [("@", "tr"), (f"buffer_store_dwordx4 {v(Z2+8*n,4)}, v{vZn}, {s(sWS,4)}, s{sZs} offen offset:{1024*n} sc1", "zn")]
    for n in range(3):
        for a_ in range(2):
            q = Z2+8*n+4*a_
            LN += [f"v_fma_f32 v{q+i}, v{q+i}, v{mu+1}, -v{mu}\n v_fma_f32 v{q+i+1}, v{q+i+1}, v{mu+1}, -v{mu}" for i in (0, 2)]
            LN += [f"v_cvt_pk_bf16_f32 v{q}, v{q}, v{q+1}\n v_cvt_pk_bf16_f32 v{q+1}, v{q+2}, v{q+3}\n ds_write_b64 v{aLw}, {v(q,2)} offset:{16*a_}"]
            if a_ == 0 and n: LN.append(zst(n-1))
        LN += [(f"ds_read_b64_tr_b16 {v(Z2+8*n,2)}, v{aLr}\n ds_read_b64_tr_b16 {v(Z2+8*n+2,2)}, v{aLr} offset:128", "tr")]
    LN.append(zst(2))
    sl, l0, l1 = C("sl", 285), C("l0", 293), C("l1", 299)
    put(sld, sl, sl+0.5); put(LN, l0, l1)
    b1 = C("b1", 258); b2 = C("b2", 280); kd = C("kd", 5); assert b2 >= 21
    put([(fl(sFl), "F")], b1, b1)
    put([poll("k", sFl, 3)], b2, b2)
    for c in range(3): put([kv(c)], b2+0.01+c*kd, b2+0.01+c*kd)
    put([(f"v_lshlrev_b32 v{t0}, {FS}, v0\n" + fl(sFl), "F")], C("b3", 290), C("b3", 290))
    put([poll("l", sFl, 0)], 30.99, 30.99)
    for b in range(30):
        lstamp(a, 2*b); st.w(f"w{b}", f"x{b}", "stx", *(["kvs"] if b == f1b else []), *(["tx2"] if b == TXF else []))
        tb(b, 1); st("s_barrier"); tb(b, 0); lstamp(a, 2*b+1)
        if b in (0, 10, 20): stamp(a, {0: 1, 10: 2, 20: 6}[b])
        D = issue(b, nb) + ([gate] if b == 5 else [])
        L = [(b + 0.01 + C("dsp", 7)*i/len(D), x) for i, x in enumerate(D)] + ex[b]
        for x in sorted(L, key=lambda y: y[0]): st.run(x[1])
    assert not xq and not wq
    lstamp(a, 60); st.w("kv0", "stx")
    st("s_barrier"); stamp(a, 7); lstamp(a, 61); lstamp(a, None)
    if TS[0] == 2: a("s_memrealtime s[98:99]")
    for i in range(3): st(f"ds_read_b128 {v(r.Q16[0]+4*i,4)}, v{aQx} offset:{1024*i}", "Q")
    pb = cfg.get("pb", 0)
    sc = attention(1, [[0]*4]*16, None, lambda c: [f"kv{c+1}"], lambda c: [(lambda st_, c=c: stamp(a, 8+c))], lambda c, i: pb if (c, i) == (0, 0) and pb != cfg.get("p2", 0) else 2 if 4*c+i == cfg.get("pc", -1) else None)
    for c in range(13): sc.place(kv(c+3), c+1, 0.02, 0.15)
    for x, it in sorted(sum(ex[30:], []), key=lambda y: y[0]): span(sc, [it], x, x, 30)
    WU = lambda ks, c: BIG+4*(5*ks+c)
    w0 = cfg.get("w0", 11); w1 = cfg.get("w1", 16); L = pkloads(BIG, 30, vA[0], sWS, sPk, "wu")
    span(sc, [flag("zn", sF2)], C("f2", 15), C("f2", 15), 0)
    pkl = lambda i, ptr, n: (f"""s_mov_b32 s{sX}, s{ptr}
    s_mov_b32 s{sX+1}, s{ptr+1}
    s_add_u32 m0, s{sMk}, {1024*i}
    s_mov_b32 s{sX+2}, {n*1280}
    buffer_load_dwordx4 v{vPk[i]}, {s(sX,4)}, 0 offen lds""", "pk")
    span(sc, [pkl(0, P_WOUT, 768), pkl(1, P_WO, 640)], C("k0", 42), C("k0", 42)+0.3, 0)
    span(sc, [[("@", "pk")] + [(f"ds_read_b64_tr_b16 {v(pkd+2*i,2)}, v{aPk} offset:{512*i}", "pr") for i in range(4)]] +
         [[("@", "pr"), (f"buffer_store_dwordx4 {v(pkd+4*i,4)}, v{vA[0]}, {s(sWS,4)}, s{sPs[i]} offen sc1", "ps")] for i in range(2)], C("k1", 55), C("k1", 55)+0.3, 0)
    span(sc, [[f"s_add_u32 s{sF2}, s{sF2}, {hx(FL4)}"] + flag("ps", sF2)], C("k2", 62), C("k2", 62), 0)
    span(sc, [(f"v_and_b32 v{t0}, {hx((32 << FS)-1)}, v{t0}\n" + fl(sF4), "F")], w0-0.7, w0-0.7, 0)
    span(sc, [poll("w", sF4, 0)], w0+0.18, w0+0.18, 0)
    assert l1-30 < C("f2", 15) < C("k2", 62) < w0-0.7 and (C("k0", 42) < .71 or 1 < cfg.get("k0", 42) % 10 < 8)
    for w in range(w0, w1): sc.place(L[30*(w-w0)//(w1-w0):30*(w+1-w0)//(w1-w0)], w, 0.2, 0.9)
    act = [224, 12, 36, 60]
    def ald(i): return [(f"buffer_load_dwordx4 {v(act[i]+4*ks,4)}, v{vA[ks>>2]}, {s(sWS,4)}, s{sAct[i]} offen offset:{1024*(ks&3)} sc1", f"{name}_u{i}") for ks in range(6)]
    aP = [5, 6, 7, 8, 9]; aO = 10
    sc.place([f"""s_mul_i32 s{sT}, s{sK}, 6144
    v_add_u32 v{aO}, s{sT}, v{r.aK}
    s_mul_i32 s{sT}, s{sK}, 5120
    v_add_u32 v{aP[4]}, s{sT}, v{r.aK}"""] + [f"""s_xor_b32 s{sT}, s{sK}, {d}
    s_mul_i32 s{sT}, s{sT}, 15360
    s_add_u32 s{sT}, s{sT}, {PB0}
    v_add_u32 v{aP[d]}, s{sT}, v{vA[0]}""" for d in range(4)] + [f"""s_lshl_b32 s{sT}, s{S_TG}, 3
    s_add_u32 s{sT}, s{sT}, s{S_J}
    s_lshl_b32 s{sT}, s{sT}, {FS}
    s_add_u32 s{sT}, s{sT}, {hx(FL5)}
    s_cmp_eq_u32 s{sK}, 0
    s_cselect_b32 s{sF4}, s{sT}, {hx(WS_END)}"""]*(cfg.get("f5", -1) > 2), 15, 0.3, 0.8)
    span(sc, [(f"v_and_b32 v{t0}, {hx((8 << FS)-1)}, v{t0}\n" + fl(sF3), "F")], C("u3", 157), C("u3", 157), 0)
    u0 = cfg.get("u0", 50); assert u0 < 100 or 0 <= cfg.get("f5", -1) < 3 or cfg.get("y0", 2) == 0 or cfg.get("xb", 1) or cfg.get("xs", 70)
    ud = C("ud", 0); aU = 248
    dld = lambda i: [((f"s_add_u32 m0, s{sMk}, {6144*(i-1)+1024*ks}\n s_nop 0\n" if ks & 3 == 0 else "") +
        f"buffer_load_dwordx4 v{vA[ks>>2]}, {s(sWS,4)}, s{sAct[i]} offen offset:{1024*(ks&3)} sc1 lds", f"ud{i}") for ks in range(6)]
    if ud:
        assert C("u3", 157) < ud >= cR+2; u0 = -1
        sc.place([f"s_mul_i32 s{sMk}, s{sK}, {AA}\n v_add_u32 v{aU}, s{sMk}, v{vA[0]}"], 13, 0.5, 0.5)
        span(sc, [poll("u", sF3, 0)] + ald(0) + dld(1) + dld(2) + dld(3), ud, C("ue", 163), 0)
    elif u0 < 100: sc.place([poll("u", sF3, 0)] + ald(0), 16, u0/100, 0.95)
    sc.emit(st)
    f5 = cfg.get("f5", -1); fl5 = f"s_mov_b64 exec, 1\n buffer_store_dword v{t1}, off, {s(sWS,4)}, s{sF4} sc1\n s_mov_b64 exec, -1"
    if f5 == 4: st(fl5)
    for th in range(2):
        if th: st("s_nop 8")
        for i in range(3): st(f"ds_write_b128 v{aO}, {v(r.O[th]+4*i,4)} offset:{(3*th+i)*1024}", "po")
    ua = cfg.get("ua", 1)
    if 0 <= u0 < 100 and not ua: st.run(ald(1))
    if cfg.get("pc", -1) >= 0: st("s_setprio 0")
    st.w("po")
    stamp(a, 24); st("s_barrier"); stamp(a, 25)
    if TS[0] == 2: a("s_memrealtime s[96:97]")
    if u0 >= 100: st.run([poll("u", sF3, 0)] + ald(0) + ald(1))
    if 0 <= u0 < 100 and ua == 1: st.run(ald(1))
    if f5 == 3: st(fl5)
    ub = divmod(cfg.get("ub", 2045), 100)
    ac = [84, 224, 84, 224]; tc = 250; pr = [12, 36, 84]
    if ud: ub = (-1, -1)
    ny = cfg.get("ny", 0); assert not ny or (68 <= cfg.get("xs", 70) <= 90 and cfg.get("nq", 1) == 1)
    for e in range(2):
        if ub[e] == 0: st.run(ald(2+e))
    if cfg.get("xb", 1): st("s_barrier")
    for i in range(4):
        st.w(f"{name}_u{i}")
        stamp(a, 26+i)
        ex = {}
        if i > 0:
            for c in range(5): ex[c+2] = (f"ds_write_b128 v{aP[0]}, {v(ac[i-1]+4*c,4)} offset:{(i-1)*5120+c*1024}", "pw")
        if ud and i < 3:
            for ks in range(6): ex[cfg.get("ur", 10)+2*ks] = [("@", f"ud{i+1}"), (f"ds_read_b128 {v(act[i+1]+4*ks,4)}, v{aU} offset:{6144*i+1024*ks}", f"{name}_u{i+1}")]
        rp = lambda d, c: (f"ds_read_b128 {v(pr[d]+4*c,4)}, v{aP[d+1]} offset:{d*5120+c*1024}", f"pr{c}")
        padd = lambda x, y: [f"v_pk_add_f32 {v(x+h2,2)}, {v(x+h2,2)}, {v(y+h2,2)}" for h2 in (0, 2)]
        if i == 3 and ny:
            for c in range(5): ex[8+2*c] = rp(0, c); ex[9+2*c] = rp(1, c); ex[20+2*c] = [("@", f"pr{c}")] + padd(pr[0]+4*c, pr[1]+4*c)
        elif i == 3:
            ex[9] = [("@", "pw"), "s_barrier"]
            for c in range(5):
                for d in range(3): ex[10+3*c+d] = rp(d, c)
        for ks in range(6):
            for c in range(5):
                q = ac[i]+4*c
                if f5 == 10+30*i+5*ks+c: st(fl5)
                if cfg.get("xs", 70) == 30*i+5*ks+c > 0: st.run([("@", "pw")]*ny + ["s_barrier"])
                for e in range(2):
                    if ub[e] == 30*i+5*ks+c > 0: st.run(ald(2+e))
                st(f"{MF16} {v(q,4)}, {v(WU(ks,c),4)}, {v(act[i]+4*ks,4)}, {'0' if ks == 0 else v(q,4)}")
                if 5*ks+c in ex: st.run(ex[5*ks+c])
    if ny:
        st("s_nop 3")
        for c in range(5): st.run(padd(ac[3]+4*c, pr[0]+4*c))
        st.w("pw"); st("s_barrier")
        if cfg.get("pz", 0): st("s_setprio 2")
        for c in range(5): st.run(rp(2, c))
    for c in range(5):
        st.w(f"pr{c}"); q = ac[3]+4*c
        if ny: st.run(padd(q, pr[2]+4*c))
        else: st.run(padd(pr[0]+4*c, pr[1]+4*c) + padd(pr[0]+4*c, pr[2]+4*c) + padd(q, pr[0]+4*c))
        st(f"ds_write_b128 v{aP[4]}, {v(q,4)} offset:{c*1024}")
    st("s_waitcnt lgkmcnt(0)")
    stamp(a, 30)
    if TS[0] == 2: a("v_writelane_b32 v255, s96, 25\n v_writelane_b32 v255, s98, 7")
    st("s_barrier\n"*(4-cfg.get("nq", 1)))
    if TS[0] == 1: st(f"v_writelane_b32 v255, s{sCnt}, 5")
    wend(a, name)
    x = St(a)
    for nm, sF in polls: x(f"""{name}_{nm}retry:
    s_cmp_eq_u32 s{sCnt}, 0
    s_cbranch_scc1 {name}_{nm}ok
    s_sub_u32 s{sCnt}, s{sCnt}, 1
    {fl(sF)}
    s_waitcnt vmcnt(0)
    s_branch {name}_{nm}poll""")
    x(f"{name}_sretry:\n s_cmp_eq_u32 s{sCnt}, 0\n s_cbranch_scc1 {name}_sok\n s_sub_u32 s{sCnt}, s{sCnt}, 1")
    x.run(sld); x(f"s_waitcnt vmcnt(0)\n s_branch {name}_schk")
```

```python
from kfA1 import *
from kbA import slow_path
def waveA(E, st):
    a = E["a"]; name = E["name"]; cfg = E["cfg"]; S_ = E["S_"]; gS = E["gS"]; cR = E["cR"]; JB = E["JB"]
    sWS, sW, sT, sT2, sO, sN, sK, sTH, sHP, sE, sAct, sTag = [E[k] for k in "sWS sW sT sT2 sO sN sK sTH sHP sE sAct sTag".split()]
    sSP = S_(4); sBS = S_(4); sAr = S_(); sWb = [S_(), S_()]; sB = S_(); sWo = S_(); sZb = S_(); sZn = S_(); sZo = S_(); sFl = S_(); sCnt = S_(); sU = S_(); sOa = S_(); sOx = S_()
    sGm = S_(2); sF3 = S_(); sPk = S_(); sSc = S_(); C = lambda k, d: cfg.get(k, d)/10; FS = cfg.get('fs', 7)
    aW = [4, 5, 6, 7]; vl = 8; vo = [9, 10, 11, 252]; acc = BIG; W = [200, 204]; NZ = 11; Z = [208+4*z for z in range(NZ)]; t0, t1 = 253, 254
    T = 12; vE = 162; vu = 250
    st(f"{name}_A:")
    st(f"v_lshlrev_b32 v{vSt}, 4, v0\n s_setprio {cfg.get('p1', 1)}")
    E["common"](st)
    kv_addr(st, T+4)
    st(f"v_mov_b32 v{T}, v{vSt}")
    st(f"""
    s_mul_i32 s{sAr}, s{sK}, {AA}
    s_lshl_b32 s{sT}, s{S_TG}, 1
    s_add_u32 s{sT}, s{sT}, s{sTH}
    s_lshl_b32 s{sT2}, s{sK}, 10
    s_lshl_b32 s{sWb[0]}, s{sT}, 17
    s_add_u32 s{sWb[0]}, s{sWb[0]}, s{sT2}
    s_xor_b32 s{sWb[1]}, s{sWb[0]}, 0x20000
    s_mul_i32 s{sB}, s{S_J if JB < 3 else S_TG}, {cfg.get("wj", 2)}
    s_add_u32 s{sB}, s{sB}, s{S_TG if JB < 3 else S_J}
    s_and_b32 s{sB}, s{sB}, 7
    s_lshl_b32 s{sB}, s{sB}, 7
    s_mov_b32 s{sZn}, s{sB}
    s_mul_i32 s{sU}, s{sT}, {88*1024}
    s_add_u32 s{sU}, s{sU}, {hx(WS_ACT)}
    s_lshl_b32 s{sT}, s{S_J}, 2
    s_add_u32 s{sT}, s{sT}, s{sK}
    s_mul_i32 s{sZb}, s{sT}, {8*12288}
    s_add_u32 s{sZb}, s{sZb}, {hx(WS_Z2N)}
    s_lshl_b32 s{sFl}, s{sT}, {FS+5}
    v_lshrrev_b32 v{T+4}, 3, v0
    v_lshlrev_b32 v{T+4}, 12, v{T+4}
    v_lshrrev_b32 v{T+5}, 4, v0
    v_and_b32 v{T+6}, 7, v0
    v_xor_b32 v{T+5}, v{T+5}, v{T+6}
    v_lshl_add_u32 v{vo[0]}, v{T+5}, 4, v{T+4}
    v_xor_b32 v{T+5}, 64, v{vo[0]}
    v_add_u32 v{vo[1]}, {32768-1024}, v{T+5}
    v_add_u32 v{vo[2]}, {2*(32768-1024)}, v{vo[0]}
    v_add_u32 v{vo[3]}, {3*(32768-1024)}, v{T+5}
    v_lshrrev_b32 v{T+4}, 5, v0
    v_bfe_u32 v{T+5}, v0, 1, 3
    v_xor_b32 v{T+5}, v{T+5}, v{T+4}
    v_lshlrev_b32 v{T+5}, 4, v{T+5}
    v_and_b32 v{T+6}, 31, v0
    v_lshl_add_u32 v{T+5}, v{T+6}, 7, v{T+5}
    v_lshlrev_b32 v{t0}, {FS}, v{T+6}
    s_lshl_b32 s{sT}, s{sHP}, 7
    v_xor_b32 v{vl}, s{sT}, v{T}
    s_mov_b32 s{sCnt}, 0x8000
    """)
    for i in range(4): st(f"v_xor_b32 v{aW[i]}, {hx(32*i)}, v{T+5}\n v_add_u32 v{aW[i]}, s{sAr}, v{aW[i]}")
    st(f"""
    s_lshr_b32 s{sT}, s{S_J}, 1
    s_mul_i32 s{sT}, s{sT}, 5120
    s_add_u32 s{sOa}, s{sU}, s{sT}
    s_and_b32 s{sT}, s{S_J}, 1
    s_lshl_b32 s{sT}, s{sT}, 1
    s_add_u32 s{sT}, s{sT}, s{sHP}
    s_lshl_b32 s{sT2}, s{sT}, 8
    s_add_u32 s{sOx}, s{sOa}, s{sT2}
    s_add_u32 s{sOx}, s{sOx}, 4096
    s_lshl_b32 s{sT}, s{sT}, 10
    s_add_u32 s{sOa}, s{sOa}, s{sT}
    s_mul_i32 s{sT}, s{S_J}, 3072
    s_add_u32 s{sU}, s{sU}, s{sT}
    s_lshl_b32 s{sT}, s{sHP}, 9
    s_add_u32 s{sU}, s{sU}, s{sT}
    s_add_u32 s{sU}, s{sU}, {20*1024}
    s_mul_i32 s{sT}, s{sK}, 5120
    s_add_u32 s{sT}, s{sT}, {hx(WS_ACT)}
    """)
    for i in range(4): st(f"s_add_u32 s{sAct[i]}, s{sAct[i]}, s{sT}")
    uaddr = lambda vu, tp: [f"""v_bfe_u32 v{tp}, v0, 4, 1
    v_mul_u32_u24 v{vu}, {44*1024}, v{tp}
    v_and_b32 v{tp}, 15, v0""", f"""v_cmp_gt_u32 vcc, 32, v0
    v_lshl_add_u32 v{vu}, v{tp}, 4, v{vu}
    v_lshrrev_b32 v{tp}, 5, v0
    v_cndmask_b32 v{vu+1}, -4.0, v{vu}, vcc
    v_lshl_add_u32 v{vu}, v{tp}, 8, v{vu}"""]
    h, e, cb, tok = T+1, T+2, T+3, T+4
    st(f"""
    v_lshrrev_b32 v{h}, 5, v0
    v_bfe_u32 v{e}, v0, 2, 2
    v_and_b32 v{tok}, 31, v0
    v_bfe_u32 v{cb}, v0, 4, 1
    v_and_b32 v{T+5}, 3, v0
    v_lshlrev_b32 v{T+5}, 3, v{T+5}
    v_lshl_add_u32 v{cb}, v{cb}, 5, v{T+5}
    v_lshl_add_u32 v{T+6}, v{h}, 3, v{e}
    s_mul_i32 s{sT}, s{sHP}, 96
    v_mul_u32_u24 v{aZ[0]}, 192, v{T+6}
    v_add3_u32 v{aZ[0]}, v{aZ[0]}, v{cb}, s{sT}
    v_mad_u32_u24 v{T+7}, v{T+6}, 40, v{T+5}
    v_add_u32 v{T+6}, v{T+6}, v{e}
    s_mul_i32 s{sT}, s{sHP}, 40
    v_mul_u32_u24 v{aQ}, 160, v{T+6}
    v_add3_u32 v{aQ}, v{aQ}, v{cb}, s{sT}
    v_add_u32 v{aZ[1]}, 0x8000, v{aZ[0]}
    v_lshlrev_b32 v{aG}, 4, v{h}
    v_add_u32 v{aG}, {GATE}, v{aG}
    s_lshl_b32 s{sT}, s{sTH}, 12
    s_add_u32 s{sT}, s{sT}, {X0}
    s_sub_u32 s{sT}, s{sT}, s{sAr}
    s_mov_b32 s{sGm}, 0x100000
    s_mov_b32 s{sGm+1}, 0x100000
    v_mov_b64 {v(r.Q8,2)}, 0
    v_mov_b64 {v(r.Q8+2,2)}, 0
    """)
    for i in range(4): st(f"v_add_u32 v{aX[0][i]}, s{sT}, v{aW[i]}\n v_add_u32 v{aX[1][i]}, 0x10000, v{aX[0][i]}")
    st(f"""
    s_cmp_lt_u32 s{S_J}, 2
    s_cselect_b32 vcc_lo, 0xffff0000, 0
    s_mov_b32 vcc_hi, vcc_lo
    s_lshl_b32 s{sT}, s{sHP}, 5
    v_add_u32 v{T+7}, s{sT}, v{T+7}""")
    for i in range(8): st(f"""v_add_u32 v{T+8}, {768*(i&1)+3072*(i>>1)+64}, v{aZ[0]}
    v_add_u32 v{T+9}, {12288+160*(i&1)+640*(i>>1)}, v{T+7}
    v_cndmask_b32 v{aKV+i}, v{T+8}, v{T+9}, vcc""")
    st(f"""
    s_lshl_b32 s{sT}, s{sK}, 10
    s_add_u32 s{sT}, s{sT}, {LNS}
    v_lshl_add_u32 v{aLw}, v{tok}, 5, s{sT}
    v_lshl_add_u32 v{aLw}, v{h}, {4 if cfg.get("hm", 3) else 3}, v{aLw}
    s_lshl_b32 s{sT}, s{sK}, 12
    s_add_u32 s{sT}, s{sT}, {Z1P}
    v_add_u32 v{aPark}, s{sT}, v{vSt}
    s_mul_i32 s{sT}, s{sK}, 3072
    v_add_u32 v{aS}, s{sT}, v{vSt}
    v_add_u32 v{aTX}, {TX}, v{aS}
    v_add_u32 v{aS}, {QX}, v{aS}
    s_lshl_b32 s{sT}, s{S_TG}, 3
    s_add_u32 s{sT}, s{sT}, s{S_J}
    s_lshl_b32 s{sT}, s{sT}, 2
    s_add_u32 s{sT}, s{sT}, s{sK}
    s_lshl_b32 s{sT}, s{sT}, {FS}
    s_add_u32 s{sF3}, s{sT}, {hx(FL3)}
    s_cmp_eq_u32 s{S_J}, 0
    s_cselect_b32 s{sSc}, {fl(QSCALE)}, 1.0
    s_waitcnt lgkmcnt(0)""")
    srd(a, sWS, P_WS, WS_END); srd(a, sSP, P_WSP, 2048*4096); srd(a, sBS, P_BSP, 4096)
    st(f"s_mov_b32 s{sT}, {hx(WS_EP)}\n buffer_load_dword v{vE}, off, {s(sWS,4)}, s{sT}\n s_barrier", "ep")
    stamp(a, 1); lstamp(a, 1)
    sc = Sched()
    for x in reads(0, sGm) + reads(1, sGm): sc.op(x)
    gemm(sc, sGm)
    sc.place(["s_mov_b32 vcc_lo, 0xcccc0000\n s_mov_b32 vcc_hi, 0xcccc0000"] + [f"""v_add_u32 v{T+8}, {768*(i&1)+16*(i>>1)+16}, v{aZ[0]}
    v_add_u32 v{T+9}, {3072+160*(i&1)+80*(i>>1)}, v{aQ}
    v_cndmask_b32 v{aM+i}, v{T+9}, v{T+8}, vcc
    v_add_u32 v{aM+4+i}, 0x8000, v{aM+i}""" for i in range(4)], 1, 0.1, 0.9)
    sc.place([[("@", "ep"), f"v_readfirstlane_b32 s{sTag}, v{vE}"], f"s_add_u32 s{sTag}, s{sTag}, {hx(TAGC)}"], 8, 0.2, 0.8)
    if not cfg.get("tsb"): sc.place([lambda st_: stamp(a, 2)], 10, 0, 0); sc.place([lambda st_: stamp(a, 6)], 20, 0, 0)
    q = Z2+24
    kvx = sum([[f"v_mul_f32 v{q+2*i}, s{sSc}, v{q+2*i}\n v_mul_f32 v{q+2*i+1}, s{sSc}, v{q+2*i+1}", f"v_cvt_pk_bf16_f32 v{q+i}, v{q+2*i}, v{q+2*i+1}"] +
               [(f"ds_write_b64 v{aLw}, {v(q+i-1,2)} offset:{8*i-8}", "tx")]*(i & 1) for i in range(4)], [])
    hx_ = lambda n: [f"v_cvt_pk_bf16_f32 v{Z2+8*n+i}, v{Z2+8*n+2*i}, v{Z2+8*n+2*i+1}" for i in range(4)] + [(f"ds_write_b128 v{aTX}, {v(Z2+8*n,4)} offset:{1024*n}", "tx")]
    hm = cfg.get("hm", 3); H = [hx_(n) for n in range(3)]
    if hm: kvx = [x for x in kvx if isinstance(x, str)] + [f"s_nop 0\n v_permlane32_swap_b32 v{q}, v{q+2}\n v_permlane32_swap_b32 v{q+1}, v{q+3}", (f"ds_write_b128 v{aLw}, {v(q,4)}", "tx")]
    cat = lambda *L: sum([x[:-1] for x in L], []) + [[x[-1] for x in L]]
    H = [[H[0] + kvx, H[1], H[2]], [H[0] + kvx, H[1], H[2]], [cat(*H, kvx)], [cat(H[0], kvx), cat(H[1], H[2])], [cat(H[0], kvx), H[1], H[2]]][hm]
    span(sc, H[0], 11+cfg.get("h0", 10)/100, 11+cfg.get("h1", 50)/100, 0)
    for n in range(1, len(H)): span(sc, H[n], 11+n+cfg.get("h2", 2)/100, 11+n+cfg.get("h3", 35)/100, 0)
    mark = lambda vu, d: [f"v_mov_b64 {v(d,2)}, -1\n v_mov_b64 {v(d+2,2)}, -1", f"buffer_store_dwordx4 {v(d,4)}, v{vu}, {s(sWS,4)}, s{sOa} offen sc1",
         f"buffer_store_dwordx4 {v(d,4)}, v{vu}, {s(sWS,4)}, s{sOa} offen offset:512 sc1", f"buffer_store_dwordx4 {v(d,4)}, v{vu+1}, {s(sWS,4)}, s{sOx} offen sc1"]
    if C("s0", 400) < 30: span(sc, uaddr(vu, 244) + mark(vu, 244), C("s0", 400), C("s1", 309), 0)
    sc.emit(st)
    st("s_nop 8")
    for ab in range(2):
        for i in range(4): st(f"v_cvt_pk_bf16_f32 v{r.Q16[ab]+i}, v{QA+16*ab+2*i}, v{QA+16*ab+2*i+1}")
        st(f"ds_write_b128 v{aS}, {v(r.Q16[ab],4)} offset:{1024*ab}", "qx")
    st("s_mov_b32 exec_hi, 0")
    for i in range(4): st(f"v_cvt_pk_bf16_f32 v{r.Q8+i}, v{QA+16*(i>>1)+8+2*(i&1)}, v{QA+16*(i>>1)+9+2*(i&1)}")
    st(f"s_mov_b32 exec_hi, -1\n ds_write_b128 v{aS}, {v(r.Q8,4)} offset:2048\n v_mul_f32 v{gl}, {fl(-LOG2E)}, v{QA+8}", "qx")
    ZR = [Z1+i for i in range(16)] + [QA+12+i for i in range(4)] + [QA+28+i for i in range(4)]; zp = 112; k1 = 186; ag = cfg.get("ag", 3)
    g1 = lambda g, pk: (gelu(ZR[8*g:8*g+8], Z2, k1, pk=pk) + [f"v_cvt_pk_bf16_f32 v{zp+4*g+i}, v{ZR[8*g+2*i]}, v{ZR[8*g+2*i+1]}" for i in range(4)] +
                        [f"ds_write_b128 v{aPark}, {v(zp+4*g,4)} offset:{1024*g}"])
    st(f"v_mov_b32 v{k1}, {fl(-GK1)}\n s_mov_b32 s{sGm}, {fl(-GK2)}\n s_mov_b32 s{sGm+1}, s{sGm}")
    for g in range(ag): st.run(g1(g, sGm))
    lstamp(a, 60); st.w("qx"); st("s_barrier"); stamp(a, 7); lstamp(a, 61); lstamp(a, None)
    if cfg.get("xp", 0) & 2: st(f"v_mov_b32 v{vl}, 0")
    if cfg.get("xp", 0) & 4: st(f"v_mov_b32 v{vo[0]}, 0\n v_mov_b32 v{vo[1]}, 0")
    def wsp(blk):
        L = []
        for b in range(8):
            x = ""
            if b & 3 == 0: x = f"s_add_u32 m0, s{sAr}, {(blk&1)*8192+b*1024}\n s_add_u32 s{sWo}, s{sWb[b>>2]}, s{sB}\n"
            x += f"buffer_load_dwordx4 v{vo[b&3]}, {s(sSP,4)}, s{sWo} offen offset:{(b&3)*1024} lds\n"
            if b == 7: x += f"s_add_u32 s{sB}, s{sB}, 128\n s_and_b32 s{sB}, s{sB}, 0x3ff"
            L.append((x, f"wsp{blk}"))
        return L
    def zld(f):
        ks, n = divmod(f, 3); x = ""
        if f % 12 == 0: x = f"s_mul_i32 s{sZo}, s{sZn}, 96\n s_add_u32 s{sZn}, s{sZn}, 128\n s_add_u32 s{sZo}, s{sZo}, s{sZb}\n s_and_b32 s{sZn}, s{sZn}, 0x3ff\n"
        elif n == 0: x = f"s_add_u32 s{sZo}, s{sZo}, 3072\n"
        return (x + f"buffer_load_dwordx4 {v(Z[f%NZ],4)}, v{vl}, {s(sWS,4)}, s{sZo} offen offset:{1024*n} sc1", f"z{f}")
    rW = lambda ks, th: [("@", f"wsp{ks>>2}"), (f"ds_read_b128 {v(W[th],4)}, v{aW[ks&3]} offset:{((ks>>2)&1)*8192+th*4096}", f"W{th}")]
    G = dict(m=0, q=[])
    DPG = cfg.get("dpg", 1)
    def gop():
        m = G["m"]; G["m"] += 1
        ks, th, n = m//6, (m % 6)//3, m % 3; f = 3*ks+n; ac = acc+48*th+16*n
        it = [("@", f"z{f}", f"W{th}"), f"{MF32} {v(ac,16)}, {v(Z[f%NZ],4)}, {v(W[th],4)}, {'0' if ks == 0 else v(ac,16)}"]
        if n == 2 and ks < 31: it += rW(ks+1, th)
        if th == 1 and f+NZ < 96: it.append(zld(f+NZ))
        if m % 24 == 21 and m//24 + 2 < 8: G["q"] = wsp(m//24 + 2)
        it += G["q"][:DPG]; G["q"] = G["q"][DPG:]
        if m == 191: it.append("; end of G")
        return it
    np_ = (cR-gS)*4
    dens = [[0]*4 for c in range(16)]
    for p in range(np_): dens[gS+p//4][p % 4] = 192*(p+1)//np_ - 192*p//np_
    pa = cfg.get("pa", 1)
    sc = attention(0, dens, gop, lambda c: ["rsw"], lambda c: [(lambda st_, c=c: stamp(a, 8+c))], lambda c, i: pa if (c, i) == (0, 0) and pa != cfg.get("p1", 1) else None)
    span(sc, sum([g1(g, 0) for g in range(ag, 3)], []), C("a0", 2), C("a1", 10*gS-1), 0)
    sc.place([f"v_mov_b32 v{gl-1}, v{gl}", f"s_nop 0\n v_permlane32_swap_b32 v{gl-1}, v{gl}", f"v_exp_f32 v{gl}, v{gl}", f"v_add_f32 v{gl}, 1.0, v{gl}", f"v_rcp_f32 v{gl}, v{gl}", f"ds_write_b32 v{aPark}, v{gl} offset:3072"], 0, 0.02, 0.1)
    ff = C("ff", 302)
    if cfg.get("tp0"):
        for i in range(2): span(sc, [f"""s_add_u32 s{sT}, s{sB}, {128*i}
        s_and_b32 s{sT}, s{sT}, 0x3ff
        s_andn2_b32 s{sT2}, s{sWb[0]}, 0x20000
        v_lshlrev_b32 v{Z[0]}, 12, v0
        s_add_u32 s{sT}, s{sT}, s{sT2}
        buffer_load_dword v{Z[0]+1}, v{Z[0]}, {s(sSP,4)}, s{sT} offen"""], C(f"tp{i}", 0), C(f"tp{i}", 0), 30)
        assert C("tp1", 0) < ff
    span(sc, wsp(0) + wsp(1), ff, ff+C("fl", 30), 30)
    if 30 <= C("s0", 400) < 40: span(sc, uaddr(vu, tg_) + mark(vu, tg_), C("s0", 400), C("s1", 309), 30)
    fld = f"buffer_load_dword v{t1}, v{t0}, {s(sWS,4)}, s{sFl} offen sc1"
    def poll(st_, p="p", k=3):
        st_(f"{name}_{p}oll:"); st_.w("F")
        st_(f"v_cmp_ne_u32 vcc, s{sTag}, v{t1}\n s_cbranch_vccnz {name}_{p}retry\n {name}_{p}ok:")
        stamp(a, k)
    sc.place([(fld, "F")], gS-1, cfg.get("f0", 10)/100, cfg.get("f0", 10)/100)
    sc.place([poll] + [zld(f) for f in range(NZ)], gS-1, cfg.get("f1", 50)/100, 1.0)
    sc.place([rW(0, 0), rW(0, 1)], gS, 0.1, 0.2)
    z1 = 208; og = 220; gt = 222; tp = 224; aR = [228, 229, 230, 231]; vu = 232; aF = 240; vt = 242
    quads = lambda d, n: [acc+48*(d & 1)+16*n+4*(d >> 1), acc+48*(d & 1)+16*n+4*(d >> 1)+8]
    wl = sc.win[cR]; e = max(i for i, o in enumerate(wl) if isinstance(o, list) and "; end of G" in o)
    it = [f"""v_lshlrev_b32 v{aF}, 4, v0
    v_add_u32 v{aR[0]}, s{sAr}, v{aF}
    s_lshl_b32 s{sT}, s{sK}, 12
    s_add_u32 s{sT}, s{sT}, {Z1P}
    v_add_u32 v{tp}, s{sT}, v{aF}"""]
    it += [(f"ds_read_b128 {v(z1+4*n,4)}, v{tp} offset:{1024*n}", "zp") for n in range(3)]
    it += [(f"""s_lshl_b32 s{sT}, s{S_TG}, 1
    s_add_u32 s{sT}, s{sT}, s{sTH}
    s_lshl_b32 s{sT2}, s{sT}, 6
    v_lshrrev_b32 v{vt}, {FS-1}, v{t0}
    ds_read_b32 v{gt}, v{tp} offset:3072
    buffer_load_ushort v{og+1}, v{vt}, {s(sBS,4)}, s{sT2} offen""", "zp")]
    for d in (2, 1, 3):
        for n in range(3):
            for e2, q in enumerate(quads(d, n)): it.append((f"ds_write_b128 v{aR[0]}, {v(q,4)} offset:{((d-1)*6+2*n+e2)*1024}", "rsw"))
        it.append(f"s_xor_b32 s{sT}, s{sK}, {d}\n s_mul_i32 s{sT}, s{sT}, {AA}\n v_add_u32 v{aR[d]}, s{sT}, v{aF}")
    sc.place(it, cR, (e+3)/len(wl), 0.9)
    it = []
    rd = lambda n: [(f"ds_read_b128 {v(q,4)}, v{aR[d]} offset:{((d-1)*6+2*n+e2)*1024}", f"rs{n}{e2}") for e2 in range(2) for d in (1, 2, 3) for q in [quads(d, n)[e2]]]
    it += rd(0)
    it += [[("@", "zp"), f"""v_sub_f32 v{og}, 1.0, v{gt}
    v_lshlrev_b32 v{og+1}, 16, v{og+1}
    v_mul_f32 v{og+1}, v{og}, v{og+1}"""]] + uaddr(vu, tp) + (mark(vu, 244) if C("s0", 400) >= 40 else [])
    for n in range(3):
        nr = rd(n+1) if n < 2 else []
        for e2 in range(2):
            for h2 in (0, 2):
                o_, p1, p2, p3 = [quads(d, n)[e2]+h2 for d in range(4)]; zi = z1+4*n+2*e2+h2//2
                it.append([("@", f"rs{n}{e2}"), f"""v_pk_add_f32 {v(o_,2)}, {v(o_,2)}, {v(p1,2)}
                v_pk_add_f32 {v(p2,2)}, {v(p2,2)}, {v(p3,2)}
                v_lshlrev_b32 v{tp}, 16, v{zi}
                v_pk_add_f32 {v(o_,2)}, {v(o_,2)}, {v(p2,2)}"""])
                it.append(f"""v_and_b32 v{tp+1}, 0xffff0000, v{zi}
                v_pk_fma_f32 {v(o_,2)}, {v(o_,2)}, {v(og,2)}, {v(og,2)} op_sel:[0,0,1] op_sel_hi:[1,0,1]
                v_pk_mul_f32 {v(o_,2)}, {v(o_,2)}, {v(tp,2)}
                v_cvt_pk_bf16_f32 v{zi}, v{o_}, v{o_+1}""")
                it += nr[:2]; nr = nr[2:]
        it.append((f"buffer_store_dwordx4 {v(z1+4*n,4)}, v{vu}, {s(sWS,4)}, s{sU} offen offset:{1024*n} sc1", "us"))
        if cfg.get("od", 0) & 2: it.append(f"buffer_store_dwordx4 {v(z1+4*n,4)}, v{vu}, {s(sWS,4)}, s{sU} offen offset:{1024*n}")
    it.append(lambda st_: stamp(a, 4))
    it.append(f"""s_lshl_b32 s{sT}, s{S_J}, 2
    s_add_u32 s{sT}, s{sT}, s{sK}
    s_mul_i32 s{sPk}, s{sT}, {11*5120}
    s_add_u32 s{sPk}, s{sPk}, {hx(WS_PK+6*5120)}
    s_or_b32 s{sT}, s2, s{sK}
    s_cmp_eq_u32 s{sT}, 0
    s_cselect_b32 s{sE}, 1, 0
    s_mov_b32 s{sE+1}, 0
    v_mov_b32 v{tp+1}, s{sTag}
    v_cndmask_b32 v{tp}, -4.0, v0, {s(sE,2)}
    s_mov_b32 s{sT}, {hx(WS_EP)}
    buffer_store_dword v{tp+1}, v{tp}, {s(sWS,4)}, s{sT} offen sc1""")
    wu = cfg.get("wu", 60)/100
    NP = cfg.get("np", 7)
    if NP & 1: it = sum([[y] if not isinstance(y, str) or "v_fma" not in y else ["\n".join(y.split("\n")[:3]), "\n".join(y.split("\n")[3:])] for y in
                   sum([[[y[0], "\n".join(y[1].split("\n")[:4])], "\n".join(y[1].split("\n")[4:])] if isinstance(y, list) and y[0][1][:2] == "rs" else [y] for y in unpk(it)], [])], [])
    sc.place(it, cR+1, 0.0, wu)
    WO = lambda ks, c: BIG+4*(5*ks+c)
    f3 = cR+1+wu+C("f3", 4)
    span(sc, [[f"s_mov_b64 exec, 1", ("@", "us"), f"buffer_store_dword v{tp+1}, off, {s(sWS,4)}, s{sF3} sc1\n s_mov_b64 exec, -1", lambda st_: stamp(a, 30)]], f3, f3, 0)
    span(sc, pkloads(BIG, 25, aF, sWS, sPk, "wof"), cR+1+wu+0.02, min(cR+2.9, 16.6), 0)
    sc.emit(st)
    O = r.O; S = r.S; D = 208; t = 244; mx = 226; vA = [4, 5]; aP = [6, 7, 8, 9, 10]; vs = 11
    st(f"""s_mul_i32 s{sT}, s{sK}, 6144
    v_add_u32 v{t}, s{sT}, v{r.aK}
    s_mov_b32 s{sN}, 0""")
    f5 = cfg.get("f5", -1); fl5 = f"s_mov_b64 exec, 1\n buffer_store_dword v{tp+1}, off, {s(sWS,4)}, s{sF3} sc1\n s_mov_b64 exec, -1"
    if f5 >= 0: st(f"""s_lshl_b32 s{sT}, s{S_TG}, 3
    s_lshl_b32 s{sFl}, s{sK}, 1
    s_add_u32 s{sFl}, s{sFl}, s{sT}
    s_add_u32 s{sT}, s{sT}, s{S_J}
    s_lshl_b32 s{sFl}, s{sFl}, {FS}
    s_lshl_b32 s{sT}, s{sT}, {FS}
    s_add_u32 s{sFl}, s{sFl}, {hx(FL5)}
    s_add_u32 s{sT}, s{sT}, {hx(FL5)}
    s_cmp_eq_u32 s{sK}, 0
    s_cselect_b32 s{sF3}, s{sT}, {hx(WS_END)}
    v_and_b32 v{t0}, {1 << FS}, v{t0}""")
    if f5 == 0: st(fl5)
    st(f"v_lshlrev_b32 v{vA[0]}, 4, v0\n v_add_u32 v{vA[1]}, 0x1000, v{vA[0]}")
    srd(a, sSP, P_OUT, 2048*1280)
    st(f"""
    v_add_u32 v{aP[0]}, s{sAr}, v{vA[0]}
    s_mul_i32 s{sT}, s{sK}, 5120
    s_add_u32 s{sT}, s{sT}, {KV0}
    v_add_u32 v{aP[4]}, s{sT}, v{vA[0]}
    v_and_b32 v{t+1}, 15, v0
    v_mul_u32_u24 v{vs}, 0x500, v{t+1}
    v_lshrrev_b32 v{t+1}, 4, v0
    v_lshl_add_u32 v{vs}, v{t+1}, 3, v{vs}
    v_mov_b32 v{aP[1]}, v{aR[1]}
    v_mov_b32 v{aP[2]}, v{aR[2]}
    v_mov_b32 v{aP[3]}, v{aR[3]}
    s_lshl_b32 s{sT}, s{S_TG}, 2
    s_add_u32 s{sT}, s{sT}, s{E["sOwn"]}
    s_mul_i32 s{sO}, s{sT}, {16*1280}
    s_mul_i32 s{sT2}, s{S_J}, 160
    s_add_u32 s{sO}, s{sO}, s{sT2}
    """)
    lt = cfg.get("lt", 1); vo_ = [248, 249, 252]
    if lt:
        st(f"""v_and_b32 v{t+1}, 15, v0
        v_mul_u32_u24 v{t+1}, {1280-160}, v{t+1}
        v_sub_u32 v{vs}, v{vs}, v{t+1}
        v_add_u32 v{vs}, s{sAr}, v{vs}""")
    stamp(a, 24); st("s_barrier"); stamp(a, 25)
    if f5 == 1: st(fl5)
    for th in range(2):
        for i in range(3): st(f"ds_read_b128 {v(S[th]+4*i,4)}, v{t} offset:{(3*th+i)*1024}", f"po{th}{i}")
    su = lambda x: st(unpk(x, NP & 8))
    for i in (2, 0, 1):
        for th in range(2):
            st.w(f"po{th}{i}")
            for h2 in (0, 2): su(f"v_pk_add_f32 {v(O[th]+4*i+h2,2)}, {v(O[th]+4*i+h2,2)}, {v(S[th]+4*i+h2,2)}")
    su(f"{name}_fin:")
    for i in range(4): su(f"v_permlane32_swap_b32 v{O[0]+8+i}, v{O[1]+8+i}")
    L = O[1]+8
    su(f"""
    v_rcp_f32 v{t}, v{L}
    v_cmp_ngt_f32 vcc, 0x5f800000, v{L}
    s_mov_b32 s{sT}, 0x1f800000
    v_mul_f32 v{t}, v{t}, v{gt}
    v_cmp_nlt_f32 {s(sE,2)}, s{sT}, v{L}
    v_mov_b32 v{t+2}, v{t}
    v_mov_b32 v{t+4}, v{t}
    s_or_b64 {s(sE,2)}, {s(sE,2)}, vcc
    v_pk_mul_f32 {v(O[0]+8,2)}, {v(O[0]+8,2)}, {v(t,2)} op_sel_hi:[1,0]
    v_permlane32_swap_b32 v{t+2}, v{t+4}
    v_pk_mul_f32 {v(O[0]+10,2)}, {v(O[0]+10,2)}, {v(t,2)} op_sel_hi:[1,0]
    """)
    for th in range(2):
        for i in range(0, 8, 2): su(f"v_pk_mul_f32 {v(O[th]+i,2)}, {v(O[th]+i,2)}, {v(t+2+2*th,2)} op_sel_hi:[1,0]")
    su(f"v_pk_mul_f32 {v(t+6,2)}, {v(O[0]+8,2)}, 0 op_sel_hi:[1,0]")
    for k_, q in enumerate([O[0]+10] + [O[th]+i for th in range(2) for i in range(0, 8, 2)]):
        su(f"v_pk_fma_f32 {v(t+6,2)}, {v(q,2)}, 0, {v(t+6,2)} op_sel_hi:[1,0,1]")
        if k_ > 0: su(f"v_cvt_pk_bf16_f32 v{D+k_-1}, v{q}, v{q+1}")
    su(f"""
    v_cmp_u_f32 vcc, v{t+6}, v{t+7}
    v_cvt_pk_bf16_f32 v{D+8}, v{O[0]+8}, v{O[0]+9}
    v_cvt_pk_bf16_f32 v{D+9}, v{O[0]+10}, v{O[0]+11}
    s_or_b64 vcc, {s(sE,2)}, vcc
    s_cbranch_vccnz {name}_slow
    {name}_pub:""")
    if cfg.get("xb", 1) == 1: st("s_barrier")
    if f5 >= 0 and cfg.get("p5", 2) == 0: st(fld, "F")
    st(f"""
    buffer_store_dwordx4 {v(D,4)}, v{vu}, {s(sWS,4)}, s{sOa} offen sc1
    v_permlane32_swap_b32 v{D+8}, v{D+10}
    v_permlane32_swap_b32 v{D+9}, v{D+11}
    buffer_store_dwordx4 {v(D+4,4)}, v{vu}, {s(sWS,4)}, s{sOa} offen offset:512 sc1
    buffer_store_dwordx4 {v(D+8,4)}, v{vu+1}, {s(sWS,4)}, s{sOx} offen sc1
    """)
    if cfg.get("od", 0) & 1: st(f"""
    buffer_store_dwordx4 {v(D,4)}, v{vu}, {s(sWS,4)}, s{sOa} offen
    buffer_store_dwordx4 {v(D+4,4)}, v{vu}, {s(sWS,4)}, s{sOa} offen offset:512
    buffer_store_dwordx4 {v(D+8,4)}, v{vu+1}, {s(sWS,4)}, s{sOx} offen""")
    if cfg.get("xb", 1) == 2: st("s_barrier")
    if f5 == 2: st(fl5)
    if f5 >= 0 and cfg.get("p5", 2) == 1: st(fld, "F")
    stamp(a, 26)
    for i in range(3*lt): st(f"""v_add_u32 v{t+1}, {64*i}, v0
    v_mul_u32_u24 v{t+1}, 6554, v{t+1}
    v_lshrrev_b32 v{t+1}, 16, v{t+1}
    v_mul_u32_u24 v{t+1}, {1280-160}, v{t+1}
    v_add_u32 v{vo_[i]}, v{t+1}, v{vA[0]}""")
    act = [12+20*i for i in range(4)]
    al1 = lambda i, ks: (f"buffer_load_dwordx4 {v(act[i]+4*ks,4)}, v{vA[ks>>2]}, {s(sWS,4)}, s{sAct[i]} offen offset:{1024*(ks&3)} sc1", f"o{i}_{ks}")
    def ald(st_, i):
        for ks in range(5): st_(*al1(i, ks))
    ny = cfg.get("ny", 0); oi = cfg.get("oi", 4)
    if (f5 < 0 or cfg.get("p5", 2) == 2) and not cfg.get("nw", 0): st("s_waitcnt vmcnt(0)")
    if f5 >= 0 and cfg.get("p5", 2) == 2: st(fld, "F")
    if cfg.get("y0", 2) == 0 or cfg.get("xs", 70): st("s_barrier")
    assert cfg.get("y0", 2) or not cfg.get("xs", 70)
    if f5 >= 0: poll(st, "q", 29)
    st.w("wof")
    assert cfg.get("y0", 2) <= oi
    for i in range(oi):
        ald(st, i)
        if cfg.get("y0", 2) == i+1 and not ny: st("s_barrier")
    ac2 = [208, 228]; tc = 250; nq = cfg.get("nq", 1)
    ck = lambda i, ks: [f"v_max3_u32 v{tc+e}, v{act[i]+4*ks+2*e}, v{act[i]+4*ks+2*e+1}, v{tc+e}" if ks else f"v_max_u32 v{tc+e}, v{act[i]+2*e}, v{act[i]+2*e+1}" for e in range(2)]
    cke = f"v_max_u32 v{tc}, v{tc}, v{tc+1}\n v_cmp_eq_u32 vcc, -1, v{tc}"
    padd = lambda x, y: [f"v_pk_add_f32 {v(x+h2,2)}, {v(x+h2,2)}, {v(y+h2,2)}" for h2 in (0, 2)]
    for i in range(4):
        st(f"{name}_o{i}:")
        ex = [[] for m in range(25)]; br = f"s_cbranch_vccnz {name}_o{i}_retry\n {name}_o{i}_ok:"
        rdp = lambda d, q, c: (f"ds_read_b128 {v(q+4*c,4)}, v{aP[d+1]} offset:{(d*5120 if d < 3 else 0)+c*1024}", f"pr{d}{c}")
        ws_ = cfg.get("tw", 4) if i < 3 else cfg.get("tv", 2); yb = cfg.get("ty", 14)
        for c in range(5):
            if i: ex[ws_*c+1].append((f"ds_write_b128 v{aP[0]}, {v(ac2[(i-1)&1]+4*c,4)} offset:{(i-1)*5120+c*1024}", "pw"))
            if i == 2 and nq: ex[ws_*c].append(rdp(3, act[0], c))
            if i > nq: ex[ws_*c if i < 3 else c+yb-6].append(rdp((i+2) & 3, act[i-1], c))
            if i == 2: ex[min(ws_*c+8, 24)] += [("@", f"pr0{c}")] + unpk(padd(act[1]+4*c, act[0]+4*c), NP & 2)
            if i == 3: ex[yb+c].append(rdp(2, act[0], c)); ex[20+c] += [("@", f"pr2{c}")] + unpk(padd(act[0]+4*c, act[2]+4*c), NP & 2)
            ex[5*c+1 if i < 3 else c] += [("@", f"o{i}_{c}")] + ck(i, c)
        for m in range(5*oi, 20*(i == 0)): ex[(m-5*oi)*cfg.get("oj", 20)//(20-5*oi)].insert(0, al1(*divmod(m, 5)))
        ex[22 if i < 3 else 4].append(cke)
        if i == 3: ex[5].insert(0, br); ex[yb] = [("@", "pw"), "s_barrier"] + ex[yb]
        for ks in range(5):
            st.w(f"o{i}_{ks}")
            if ks == 0 and i in (0, 3): stamp(a, 27 if i == 0 else 28)
            for c in range(5):
                q = ac2[i & 1]+4*c
                st(f"{MF16} {v(q,4)}, {v(WO(ks,c),4)}, {v(act[i]+4*ks,4)}, {v(q,4) if ks else v(act[1]+4*c,4) if i == 3 else '0'}")
                st.run(ex[5*ks+c])
        if i < 3: st(br)
        if nq-ny <= i < 3: st.w("pw"); st("s_barrier")
    for c in range(5):
        q = ac2[1]+4*c; st.run(padd(q, act[0]+4*c))
        st(f"v_cvt_pk_bf16_f32 v{q}, v{q}, v{q+1}\n v_cvt_pk_bf16_f32 v{q+1}, v{q+2}, v{q+3}")
        st(f"ds_write_b64 v{vs}, {v(q,2)} offset:{15360+32*c}" if lt else f"buffer_store_dwordx2 {v(q,2)}, v{vs}, {s(sSP,4)}, s{sO} offen offset:{32*c}")
    for i in range(3*lt): st(f"ds_read_b128 {v(act[1]+4*i,4)}, v{aP[0]} offset:{15360+1024*i}", f"fo{i}")
    for i in range(3*lt):
        if i == 2: st("s_mov_b32 exec_hi, 0")
        st.w(f"fo{i}"); st(f"""buffer_store_dwordx4 {v(act[1]+4*i,4)}, v{vo_[i]}, {s(sSP,4)}, s{sO} offen offset:{1024*i} {["", "sc1", "nt", "sc0 sc1"][cfg.get("os", 0)]}""")
    if TS[0]: st("s_mov_b64 exec, -1")
    if TS[0] == 1: st(f"v_writelane_b32 v255, s{sCnt}, 5")
    wend(a, name)
    x = St(a)
    for p in "pq"[:1 + (f5 >= 0)]: x(f"""{name}_{p}retry:
    s_cmp_eq_u32 s{sCnt}, 0
    s_cbranch_scc1 {name}_{p}ok
    s_sub_u32 s{sCnt}, s{sCnt}, 1
    {fld}
    s_waitcnt vmcnt(0)
    s_branch {name}_{p}oll""")
    for i in range(4):
        x(f"{name}_o{i}_retry:\n s_cmp_eq_u32 s{sCnt}, 0\n s_cbranch_scc1 {name}_o{i}_ok\n s_sub_u32 s{sCnt}, s{sCnt}, 1")
        ald(x, i)
        for m in range(i+1, 4 if i else oi):
            x(f"s_waitcnt vmcnt({5*(4-m)})")
            for ks in range(5): x.run(ck(m, ks))
            x(f"{cke}\n s_cbranch_vccz {name}_o{i}_r{m}"); ald(x, m); x(f"{name}_o{i}_r{m}:")
        x(f"s_waitcnt vmcnt(0) lgkmcnt(0)\n s_branch {name}_o{i}")
    slow_path(a, name, sWS, sT, sN, [sWb[0], sWb[1], sB, sZb], mx, t)
```

```python
from kf import *
Z2 = BIG; Z1 = 136; QA = 152; tg_ = 168; gl = 190
aLw, aTX, vSt, vF, aPark = 192, 193, 195, 198, 197
FW = lambda t, n: 208 + 12*(t % 3) + 4*n
FX = lambda t: 60 + 4*(t % 3)
aX = [[88, 89, 90, 91], [72, 73, 74, 75]]; aZ = [92, 93]; aQ = 94; aKV = 44; aM = 52; aG = 98; aS = 99
stage = lambda t: divmod(t, 4) if t < 40 else (10 + (t-40)//2, t & 1)
def reads(t, sGm):
    q, i = stage(t); hi = int(POS[q] >= 32768); o = POS[q] - 32768*hi; xo = xblk(t % 40 // 4)
    L = [(f"ds_read_b128 {v(FX(t),4)}, v{aX[xo >> 16][t & 3]} offset:{xo & 0xffff}", f"f{t}_0")]
    for n in range(2 if t < 40 else 3):
        for p in range(2):
            ad = f"v{aZ[hi]} offset:{o+(3072 if t < 40 else 6144)*i+768*p}"
            if n: ad = f"v{aKV+2*i+p} offset:{POS[q]}" if t < 40 else f"v{aM+4*hi+2*n-2+p} offset:{o+6144*i}"
            L.append((f"ds_read_b64_tr_b16 {v(FW(t,n)+2*p,2)}, {ad}", f"f{t}_{n}"))
        if t >= 40 and n == 1:
            L.append((f"s_mov_b64 exec, {s(sGm,2)}\n ds_read_b128 {v(FW(t,1),4)}, v{aG} offset:{32*(t-40)}\n s_mov_b64 exec, -1", f"f{t}_1"))
    return L
def gemm(sc, sGm):
    for t in range(80):
        q, i = stage(t); ac = Z2 if t < 40 else Z1
        M = [[("@", f"f{t}_{n}"), f"{MF32} {v(ac+16*n,16)}, {v(FW(t,n),4)}, {v(FX(t),4)}, {'0' if t % 40 == 0 else v(ac+16*n,16)}"] for n in range(2 if t < 40 else 3)]
        R = reads(t+2, sGm) if t+2 < 80 else []
        bar = lambda *w: [lambda st_, q=q: lstamp(st_.a, 2*q+2, 1), ("@", "tx") + w, "s_barrier", lambda st_, q=q: lstamp(st_.a, 2*q+3)]
        nw = R and stage(t+2)[1] == 0
        if t == 79: M = M[1:] + M[:1]
        if nw and t < 40:
            for m in M: sc.op(m)
            sc.op(bar(f"f{t+1}_0", f"f{t+1}_1")); sc.next()
            for x in R: sc.op(x)
        else:
            k = (len(R) + len(M) - 1) // len(M)
            for m in M:
                sc.op(m)
                if nw: sc.op(bar()); sc.next(); nw = 0
                for x in R[:k]: sc.op(x)
                R = R[k:]
def gelu(X, T, k1, tail=(), pk=0, **kw):
    L = []
    for f in ("v_mul_f32 {t}, {x}, {x}", f"v_fmamk_f32 {{t}}, {{t}}, {fl(-GK2)}, v{k1}", "v_mul_f32 {t}, {t}, {x}", "v_exp_f32 {t}, {t}",
              "v_add_f32 {t}, 1.0, {t}", "v_rcp_f32 {t}, {t}", "v_mul_f32 {x}, {x}, {t}") + tail:
        n = 2 if pk and f[2:5] in ("mul", "fma", "add") else 1
        if n == 2: f = f"v_pk_fma_f32 {{t}}, {{t}}, {s(pk,2)}, {v(k1,2)} op_sel_hi:[1,1,0]" if "fma" in f else "v_pk_" + f[2:] + (" op_sel_hi:[0,1]" if "1.0" in f else "")
        L += [f.format(t=v(T+i, n), x=v(X[i], n), **{k: v(b+(i & 1)) for k, b in kw.items()}) for i in range(0, len(X), n)]
    return L
def span(sc, items, w0, w1, base):
    n = len(items)
    for i, it in enumerate(items):
        x = w0 + (w1-w0)*(i+0.5)/n - base
        sc.place([it], int(x), x % 1, x % 1)

import re as _re
def unpk(x, on=1):
    if not on: return x
    if isinstance(x, (list, tuple)): return type(x)(unpk(y) for y in x)
    if not isinstance(x, str): return x
    out = []
    for l in x.split("\n"):
        m = _re.match(r"\s*v_pk_(\w+)_f32 (.*?)(?: op_sel:\[(.*?)\])?(?: op_sel_hi:\[(.*?)\])?\s*$", l)
        if not m: out.append(l); continue
        ops = [o.strip() for o in m.group(2).split(",")]; n = len(ops)-1
        sel = [[int(c) for c in (m.group(3) or ",".join("0"*n)).split(",")], [int(c) for c in (m.group(4) or ",".join("1"*n)).split(",")]]
        rg = lambda o, h: f"{o[0]}{int(o[2:].split(':')[0])+h}" if "[" in o else o
        for h in range(2):
            src = [rg(o, sel[h][i]) for i, o in enumerate(ops[1:])]
            assert h == 0 or rg(ops[0], 0) not in src
            if n == 2 and src[1][0] != "v": src.reverse()
            out.append(f"v_{m.group(1)}_f32 {rg(ops[0], h)}, " + ", ".join(src))
    return "\n".join(out)
```

```python
from kf import *
from kfA1 import span, gelu, unpk
Z2 = 104; Z1 = 136; ssr = [128, 132, 160, 164]; tg_ = 168; z1p = 176; sm = 188; vK1 = 192; raw = 196
aLw, aLr, vZn, aPark, aS, vSp, vF1, aTX, aPk = range(208, 217); vPk = [217, 218]; pkd = 224; kvd = 232; gr = 244
fl_ = fl
def waveB(E, st):
    a = E["a"]; name = E["name"]; cfg = E["cfg"]; S_ = E["S_"]; gS = E["gS"]; cR = E["cR"]
    sWS, sW, sT, sT2, sO, sN, sK, sTH, sHP, sE, sAct, sTag = [E[k] for k in "sWS sW sT sT2 sO sN sK sTH sHP sE sAct sTag".split()]
    sX = S_(4); sKW = S_(4); sKVo = S_(); sKVb = S_(); sCnt = S_(); sPk = S_(); sCw = S_(); sXo = S_(); sMx = S_(); sMz = S_(); sMq = S_(); sMk = S_(); sFl = S_()
    sMK = S_(2); sStr = S_(); sEx = S_(); sZs = S_(); sSt = S_(); sF2 = S_(); sF3 = S_(); sF4 = S_(); sPs = [S_(), S_()]; C = lambda k, d: cfg.get(k, d)/10; FS = cfg.get('fs', 7)
    TB = cfg.get("tsb", 0); stamp_ = globals()["stamp"]; stamp = (lambda a, k: None) if TB else stamp_
    def tb(b, odd):
        if TB and b != 4: a(f"s_bitcmp1_b32 s{sK}, 0\n s_cbranch_scc{1-odd} {name}_tb{b}_{odd}"); stamp_(a, b+1); a(f"{name}_tb{b}_{odd}:")
    vz = 4; vA = [11, 252]; t0, t1 = 253, 254
    vx = [12, 13]; vw = [14, 15, 16]; vq = [17, 18, 19]; vk = 20; vg = 21; aQx = 30; t = 22
    st(f"""{name}_B:
    s_setprio {cfg.get("p2", 0)}
    v_lshrrev_b32 v{t}, 3, v0
    s_lshl_b32 s{sT}, s{sK}, 4
    v_bfe_u32 v{t+1}, v0, 4, 2
    v_and_b32 v{t+2}, 7, v0
    s_lshl_b32 s{sT2}, s{S_TG}, 6
    v_xor_b32 v{t+1}, v{t+1}, v{t+2}
    s_add_u32 s{sT2}, s{sT2}, s{sT}
    v_add_u32 v{t}, s{sT2}, v{t}
    v_mul_u32_u24 v{t}, 0x500, v{t}
    v_lshl_add_u32 v{vx[0]}, v{t+1}, 4, v{t}
    s_mul_i32 s{sMz}, s{sK}, 3072
    v_xor_b32 v{vx[1]}, 64, v{vx[0]}
    s_lshl_b32 s{sT2}, s{sMz}, 4
    v_add_u32 v{vx[1]}, {8*1280-1024}, v{vx[1]}
    v_lshlrev_b32 v{vA[0]}, 4, v0
    """)
    for i in range(3):
        st(f"""v_add_u32 v{t}, {64*i}, v0
        v_mul_u32_u24 v{t}, 5462, v{t}
        v_lshrrev_b32 v{t}, 16, v{t}
        v_mul_u32_u24 v{t}, {3072-192}, v{t}
        v_add3_u32 v{vw[i]}, v{t}, v{vA[0]}, s{sT2}""")
    if cfg.get("stag", 1): st(f"""
    s_and_b32 s{sT}, s{S_J if E["JB"] < 3 else S_TG}, 3
    s_mul_i32 s{sT}, s{sT}, {cfg.get("sj", 3)}
    s_add_u32 s{sCw}, s{sT}, s{S_TG if E["JB"] < 3 else S_J}
    s_mul_i32 s{sT}, s{sCw}, 26
    s_lshr_b32 s{sT}, s{sT}, 8
    s_mul_i32 s{sT}, s{sT}, 10
    s_sub_u32 s{sCw}, s{sCw}, s{sT}""")
    else: st(f"s_mov_b32 s{sCw}, 0")
    st(f"""
    s_lshl_b32 s{sXo}, s{sCw}, 7
    s_lshl_b32 s{sMx}, s{sK}, 11
    s_add_u32 s{sMx}, s{sMx}, {X0}
    s_mul_i32 s{sMk}, s{sK}, 640
    v_add_u32 v{vk}, s{sMk}, v{vA[0]}
    s_mul_i32 s{sT}, s{S_J}, 192
    s_add_u32 s{sT}, s{sT}, 1536
    s_sub_u32 s{sW+2}, {640*3072}, s{sT}
    s_mov_b32 s{sW+3}, 0x20000
    s_mov_b32 s{sX+2}, {2048*1280}
    s_mov_b32 s{sX+3}, 0x20000
    s_cmp_lt_u32 s{S_J}, 2
    s_cselect_b32 s{sMK}, -1, 0
    s_cselect_b32 s{sMK+1}, 0xff, 0
    s_mov_b32 s{sKW+2}, 25600
    s_mov_b32 s{sKW+3}, 0x20000
    s_waitcnt lgkmcnt(0)
    s_mov_b32 s{sX}, s{P_X}
    s_mov_b32 s{sX+1}, s{P_X+1}
    s_add_u32 s{sW}, s{P_WIN}, s{sT}
    s_addc_u32 s{sW+1}, s{P_WIN+1}, 0
    s_bitcmp1_b32 s{S_J}, 0
    s_cselect_b32 s{sKW}, s{P_WV}, s{P_WK}
    s_cselect_b32 s{sKW+1}, s{P_WV+1}, s{P_WK+1}
    """)
    def dX(i):
        return [(f"""s_add_u32 m0, s{sMx}, {xblk(i)}
        s_add_u32 s{sT}, s{sXo}, 128
        buffer_load_dwordx4 v{vx[0]}, {s(sX,4)}, s{sXo} offen lds
        buffer_load_dwordx4 v{vx[1]}, {s(sX,4)}, s{sXo} offen offset:1024 lds
        s_cmp_eq_u32 s{sT}, 1280
        s_cselect_b32 s{sXo}, 0, s{sT}""", f"x{i}")]
    def dW(q):
        L = []; Q = q >= 10; x = ""
        if q < 10: L.append((f"""s_add_u32 m0, s{sMk}, {POS[q]+12288}
            s_mul_i32 s{sO}, s{sCw}, 2560
            s_mov_b64 exec, {s(sMK,2)}
            buffer_load_dwordx4 v{vk}, {s(sKW,4)}, s{sO} offen lds
            s_mov_b64 exec, -1""", f"w{q}"))
        if q == 10: x = f"""s_mul_i32 s{sT}, s{S_J}, 160
            s_add_u32 s{sE}, s{P_WQ}, s{sT}
            s_addc_u32 s{sE+1}, s{P_WQ+1}, 0
            s_sub_u32 s{sT}, {640*1280}, s{sT}
            s_sub_u32 s{sW}, s{sW}, 1536
            s_subb_u32 s{sW+1}, s{sW+1}, 0
            s_mul_i32 s{sCw}, s{sCw}, s{sStr}
            s_lshl_b32 s{sCw}, s{sCw}, 1
            s_cmp_lt_u32 s{sK}, 2
            s_cselect_b64 {s(sW,2)}, {s(sW,2)}, {s(sE,2)}
            s_cselect_b32 s{sW+2}, s{sW+2}, s{sT}\n"""
        x += f"s_add_u32 m0, s{sMq}, {POS[q]}\n s_add_u32 s{sO}, s{sCw}, s{sStr}\n" if Q else f"s_add_u32 m0, s{sMz}, {POS[q]}\n s_mul_i32 s{sO}, s{sCw}, {64*3072}\n"
        for i in range(3):
            x += f"buffer_load_dwordx4 v{(vq if Q else vw)[i]}, {s(sW,4)}, s{sCw if Q else sO} offen offset:{1024*i} lds\n"
            if i == 0 and not Q: x += f"s_add_u32 s{sCw}, s{sCw}, 1\n s_cmp_eq_u32 s{sCw}, 10\n s_cselect_b32 s{sCw}, 0, s{sCw}"
            if i == 2 and Q: x += f"s_cmp_eq_u32 s{sO}, s{sEx}\n s_cselect_b32 s{sCw}, 0, s{sO}"
            L.append((x, f"w{q}")); x = ""
        return L
    st(f"s_mov_b32 s{sN}, s{sXo}")
    n0 = cfg.get("n0", 3); nb = cfg.get("nb", 2); xq = list(range(10)); wq = list(range(30))
    def issue(b, n):
        L = []
        for i in range(n):
            if xq: L += dX(xq.pop(0))
            if wq and FREE[wq[0]] <= b: L += dW(wq.pop(0))
        return L
    st.run(issue(-1, n0))
    srd(a, sWS, P_WS, WS_END)
    st(f"s_mov_b32 s{sT}, {hx(WS_EP)}\n s_load_dword s{sTag}, {s(P_WS,2)}, s{sT}")
    st(f"""
    s_mul_i32 s{sT}, s{sK}, 320
    s_add_u32 s{sT}, s{sT}, s{sN}
    v_add_u32 v{vg}, s{sT}, v{vA[0]}
    v_subrev_u32 v{t}, 1280, v{vg}
    v_min_u32 v{vg}, v{vg}, v{t}
    s_and_b32 s{sT}, s{sK}, 1
    s_mul_i32 s{sMq}, s{sT}, 6144
    s_mul_i32 s{sT2}, s{sT}, {16*1280}
    s_cmp_lt_u32 s{sK}, 2
    s_cselect_b32 s{sStr}, {32*3072}, {0}
    s_cselect_b64 vcc, -1, 0
    s_cselect_b32 s{sT}, 0, 3072
    s_add_u32 s{sMq}, s{sMq}, s{sT}
    s_max_u32 s{sStr}, s{sStr}, {32*1280}
    s_mul_i32 s{sEx}, s{sStr}, 20
    """)
    for i in range(3):
        st(f"""v_add_u32 v{t}, {64*i}, v0
        v_mul_u32_u24 v{t}, 6554, v{t}
        v_lshrrev_b32 v{t}, 16, v{t}
        v_mul_u32_u24 v{t+1}, 160, v{t}
        v_sub_u32 v{t+1}, v{vA[0]}, v{t+1}
        v_and_b32 v{t+2}, 8, v{t}
        v_bfe_u32 v{t+3}, v{t}, 1, 2
        v_and_b32 v{t}, 1, v{t}
        v_lshl_add_u32 v{t}, v{t}, 2, v{t+3}
        v_add_u32 v{t}, v{t}, v{t+2}
        v_mul_u32_u24 v{t}, 0x500, v{t}
        v_add3_u32 v{vq[i]}, v{t}, v{t+1}, s{sT2}
        {f"s_mov_b32 exec_lo, 0{chr(10)} v_mov_b32 v{vq[i]}, -4.0{chr(10)} s_mov_b32 exec_lo, -1" if i == 2 else ""}
        v_cndmask_b32 v{vq[i]}, v{vq[i]}, v{vw[i]}, vcc""")
    E["common"](st)
    kv_addr(st, t)
    st(f"""
    s_add_u32 s{sKVb}, s{sMz}, {KV0}
    v_add_u32 v{vz}, s{sMz}, v{vA[0]}
    v_add_u32 v{aQx}, {QX}, v{vz}
    s_lshr_b32 s{sKVo}, s{S_TG}, 1
    s_mul_i32 s{sKVo}, s{sKVo}, {KVS}
    s_add_u32 s{sKVo}, s{sKVo}, {hx(WS_KV)}
    v_add_u32 v{vA[1]}, 0x1000, v{vA[0]}
    s_mov_b32 s{sCnt}, 0x8000
    s_mov_b32 s{sFl}, {hx(FL1)}
    s_and_b32 s{sT}, s{S_TG}, 30
    v_min_u32 v{t0}, {cfg.get("nf", 12)-1}, v0
    v_lshl_add_u32 v{t0}, s{sT}, 1, v{t0}
    v_and_b32 v{t0}, 63, v{t0}
    v_lshlrev_b32 v{t0}, {FS}, v{t0}
    s_lshl_b32 s{sT}, s{S_J}, 2
    s_add_u32 s{sT}, s{sT}, s{sK}
    s_lshl_b32 s{sF4}, s{sT}, {FS+5}
    s_add_u32 s{sF4}, s{sF4}, {hx(FL4)}
    s_mul_i32 s{sPk}, s{sT}, {11*5120}
    s_add_u32 s{sPk}, s{sPk}, {hx(WS_PK)}
    s_mul_i32 s{sT}, s{sK}, 6144
    s_add_u32 s{sT}, s{sT}, {hx(WS_ACT+20*1024)}
    """)
    for i in range(4): st(f"s_add_u32 s{sAct[i]}, s{sAct[i]}, s{sT}")
    def kv(c):
        L = [(f"s_add_u32 m0, s{sKVb}, {slot(c)}\n s_nop 0\n" if i == 0 else "") + f"buffer_load_dwordx4 v{vz}, {s(sWS,4)}, s{sKVo} offen offset:{1024*i} sc1 lds" for i in range(3)]
        L[2] += f"\n s_add_u32 s{sKVo}, s{sKVo}, {KVS}\n s_cmp_eq_u32 s{sKVo}, {hx(WS_KV+16*KVS)}\n s_cselect_b32 s{sKVo}, {hx(WS_KV)}, s{sKVo}"
        return [(x, f"kv{c}") for x in L]
    fl = lambda sF: f"buffer_load_dword v{t1}, v{t0}, {s(sWS,4)}, s{sF} offen sc1"
    polls = []
    def poll(nm, sF, k):
        def f(st_):
            st_(f"{name}_{nm}poll:"); st_.w("F")
            st_(f"v_cmp_ne_u32 vcc, s{sTag}, v{t1}\n s_cbranch_vccnz {name}_{nm}retry\n {name}_{nm}ok:"); polls.append((nm, sF))
            if k: stamp(a, k)
        return f
    flag = lambda tag, sF, o=0: ["s_mov_b64 exec, 1", ("@", tag), f"buffer_store_dword v{gr+1}, off, {s(sWS,4)}, s{sF} sc1\n s_mov_b64 exec, -1"]
    ex = [[] for b in range(47)]
    def put(items, w0, w1):
        for i, it in enumerate(items): x = w0 + (w1-w0)*(i+0.5)/len(items); ex[int(x)].append((x, it))
    h, e, tok = t+1, t+2, t+3; T = kvd+4
    put([f"""
    v_lshrrev_b32 v{h}, 5, v0
    v_bfe_u32 v{e}, v0, 2, 2
    v_and_b32 v{tok}, 31, v0
    v_and_b32 v{t+5}, 3, v0
    s_lshl_b32 s{sT}, s{sTH}, 1
    s_add_u32 s{sT}, s{sT}, s{sHP}
    s_lshl_b32 s{sT}, s{sT}, 9
    s_add_u32 s{sT}, s{sT}, {STX}
    v_lshl_add_u32 v{aS}, v0, 3, s{sT}""", f"""
    s_lshl_b32 s{sT}, s{sK}, 10
    s_add_u32 s{sT}, s{sT}, {LNS}
    v_lshl_add_u32 v{aLw}, v{tok}, 5, s{sT}
    v_lshl_add_u32 v{aLw}, v{h}, 3, v{aLw}
    v_lshrrev_b32 v{t+6}, 4, v0
    v_lshl_add_u32 v{aLr}, v{t+6}, 3, v{e}
    v_lshl_add_u32 v{aLr}, v{aLr}, 5, s{sT}
    v_lshl_add_u32 v{aLr}, v{t+5}, 3, v{aLr}""", f"""
    v_mul_u32_u24 v{vZn}, 3072, v{h}
    v_and_b32 v{t+6}, 1, v{t+6}
    v_lshl_add_u32 v{vZn}, v{t+6}, 9, v{vZn}
    v_and_b32 v{t+6}, 7, v0
    v_lshl_add_u32 v{vZn}, v{t+6}, 4, v{vZn}
    v_bfe_u32 v{t+6}, v0, 3, 1
    v_lshl_add_u32 v{vZn}, v{t+6}, 8, v{vZn}
    v_add_u32 v{aTX}, {TX}, v{vz}""", f"""
    s_lshl_b32 s{sT}, s{S_TG}, 1
    s_add_u32 s{sT}, s{sT}, s{sTH}
    s_lshl_b32 s{sSt}, s{sT}, 12
    s_add_u32 s{sSt}, s{sSt}, {hx(WS_ST2)}
    s_mul_i32 s{sZs}, s{sT}, 6144
    s_mul_i32 s{sT}, s{S_J}, {128*3072}
    s_add_u32 s{sZs}, s{sZs}, s{sT}
    s_lshl_b32 s{sT}, s{sHP}, 7
    s_add_u32 s{sZs}, s{sZs}, s{sT}
    s_add_u32 s{sZs}, s{sZs}, {hx(WS_Z2N)}""", f"""
    s_lshl_b32 s{sT}, s{S_J}, 5
    s_add_u32 s{sT}, s{sT}, s{S_TG}
    s_lshl_b32 s{sT}, s{sT}, 2
    s_add_u32 s{sT}, s{sT}, s{sK}
    s_lshl_b32 s{sF2}, s{sT}, {FS}
    s_lshl_b32 s{sT}, s{S_TG}, 2
    s_add_u32 s{sT}, s{sT}, s{sK}
    s_lshl_b32 s{sT}, s{sT}, {FS+3}
    s_add_u32 s{sF3}, s{sT}, {hx(FL3)}""", f"""
    s_lshl_b32 s{sT2}, s{sHP}, 5
    s_sub_u32 s{sT2}, 32, s{sT2}
    v_cmp_gt_u32 vcc, s{sT2}, v0
    s_lshl_b32 s{sT}, s{S_J}, 9
    v_add_u32 v{t+6}, s{sT}, v{vA[0]}
    v_cndmask_b32 v{vSp}, -4.0, v{t+6}, vcc
    v_mov_b32 v{vK1}, {fl_(-GK1)}
    v_mov_b64 {v(sm,2)}, 0
    v_mov_b64 {v(sm+2,2)}, 0""",
    f"""s_lshr_b32 s{sT}, s{S_TG}, 1
    s_mul_i32 s{sN}, s{sT}, {KVS}
    s_and_b32 s{sT}, s{S_TG}, 1
    s_lshl_b32 s{sT2}, s{sT}, 1
    s_add_u32 s{sT2}, s{sT2}, s{sTH}
    s_mul_i32 s{sKW+2}, s{sT2}, 1536
    s_add_u32 s{sKW+2}, s{sKW+2}, 5120
    s_lshl_b32 s{sT2}, s{sT2}, 10
    s_lshl_b32 s{sT}, s{sT}, 9
    s_add_u32 s{sT}, s{sT}, 0x1000
    s_cmp_eq_u32 s{sHP}, 0
    s_cselect_b32 s{sT}, s{sT2}, s{sT}
    s_cselect_b32 s{sT2}, 16, 0x400
    v_add_u32 v{T}, s{sT2}, v{aLw}
    s_cmp_eq_u32 s{S_J}, 0
    s_cselect_b32 s{sT}, s{sT}, s{sKW+2}
    s_cselect_b64 {s(sMK,2)}, -1, 0
    s_add_u32 s{sN}, s{sN}, s{sT}
    s_add_u32 s{sN}, s{sN}, {hx(WS_KV)}
    s_cmp_lt_u32 s{S_J}, 2
    s_cselect_b32 s{sKW+2}, s{sN}, {hx(WS_END)}""", f"""
    v_bfe_u32 v{T+1}, v0, 4, 1
    v_lshlrev_b32 v{T+1}, 7, v{T+1}
    v_sub_u32 v{T+1}, v{aLr}, v{T+1}
    s_lshl_b32 s{sT}, s{sHP}, 4
    v_and_b32 v{t+4}, 15, v0
    v_add_u32 v{t+4}, s{sT}, v{t+4}
    v_lshrrev_b32 v{T+2}, 4, v0
    v_mul_u32_u24 v{T+2}, 0x180, v{T+2}
    v_lshl_add_u32 v{T+2}, v{t+4}, 4, v{T+2}
    v_mov_b32 v{T+3}, 0x3f803f80
    v_cmp_eq_u32 vcc, 20, v{t+4}
    v_cmp_gt_u32 {s(sKW,2)}, 24, v{t+4}
    s_lshl_b32 s{sT}, s{sK}, 5
    s_sub_u32 s{sT}, 96, s{sT}
    v_cndmask_b32 v{T+3}, 0, v{T+3}, vcc
    v_cmp_gt_u32 vcc, s{sT}, v0
    v_cndmask_b32 v{T+2}, -4.0, v{T+2}, {s(sKW,2)}
    v_cmp_gt_u32 {s(sKW,2)}, 20, v{t+4}
    v_cndmask_b32 v{t+4}, -4.0, v{vA[0]}, vcc
    v_cndmask_b32 v{T+2}, v{T+2}, v{t+4}, {s(sMK,2)}
    s_or_b64 {s(sKW,2)}, {s(sKW,2)}, {s(sMK,2)}""",
    f"""s_and_b32 s{sT}, s{S_TG}, 7
    s_lshl_b32 s{sT}, s{sT}, 2
    s_add_u32 s{sT}, s{sT}, s{sK}
    s_lshr_b32 s{sT2}, s{S_TG}, 3
    s_lshl_b32 s{sN}, s{S_J}, 2
    s_add_u32 s{sN}, s{sN}, s{sT2}
    s_mul_i32 s{sN}, s{sN}, 55
    s_add_u32 s{sN}, s{sN}, s{sT}
    s_lshl_b32 s{sN}, s{sN}, 10
    s_add_u32 s{sPs[0]}, s{sN}, {hx(WS_PK)}
    s_add_u32 s{sPs[1]}, s{sN}, {hx(WS_PK+30*1024)}
    s_cmp_lt_u32 s{sT}, 30
    s_cselect_b32 s{sPs[0]}, s{sPs[0]}, {hx(WS_END)}
    s_cmp_lt_u32 s{sT}, 25
    s_cselect_b32 s{sPs[1]}, s{sPs[1]}, {hx(WS_END)}
    s_mul_i32 s{sE}, s{sT}, 52
    s_lshr_b32 s{sE}, s{sE}, 8
    s_sub_u32 s{sN}, s{S_J}, s{sE}
    s_mul_i32 s{sN}, s{sN}, 5
    s_add_u32 s{sN}, s{sN}, s{sT}
    s_lshl_b32 s{sN}, s{sN}, 5
    v_and_b32 v{t}, 1, v0
    v_lshl_add_u32 v{t}, v{t}, 4, s{sN}
    v_bfe_u32 v{t+4}, v0, 1, 2
    v_bfe_u32 v{t+5}, v0, 3, 1
    v_bfe_u32 v{t+6}, v0, 4, 1""", f"""
    s_lshr_b32 s{sT2}, s{S_TG}, 3
    s_mul_i32 s{sN}, s{sT2}, 12
    s_add_u32 s{sN}, s{sN}, s{sE}
    s_cmp_ge_u32 s{sE}, 3
    s_cselect_b32 s{sT}, 3, 0
    s_add_u32 s{sN}, s{sN}, s{sT}
    s_lshl_b32 s{sN}, s{sN}, 4
    v_lshl_add_u32 v{vPk[0]}, v{t+5}, 2, v{t+4}
    v_mad_u32_u24 v{vPk[0]}, v{t+6}, 48, v{vPk[0]}
    v_lshl_add_u32 v{vPk[0]}, v{h}, 3, v{vPk[0]}
    v_add_u32 v{vPk[0]}, s{sN}, v{vPk[0]}
    v_mul_u32_u24 v{vPk[0]}, 0x500, v{vPk[0]}
    v_add_u32 v{vPk[0]}, v{vPk[0]}, v{t}""", f"""
    s_and_b32 s{sT}, s{sE}, 1
    s_and_b32 s{sN}, s{sE}, 2
    s_lshl_b32 s{sN}, s{sN}, 1
    s_add_u32 s{sN}, s{sN}, s{sT}
    s_mul_i32 s{sN}, s{sN}, 20
    s_cmp_eq_u32 s{sE}, 4
    s_cselect_b32 s{sN}, 16, s{sN}
    s_cselect_b32 s{sT}, 20, 4
    v_mad_u32_u24 v{vPk[1]}, v{t+5}, s{sT}, v{t+4}
    s_cselect_b32 s{sT}, 80, 40
    v_mad_u32_u24 v{vPk[1]}, v{t+6}, s{sT}, v{vPk[1]}
    s_cselect_b32 s{sT}, 40, 8
    v_mad_u32_u24 v{vPk[1]}, v{h}, s{sT}, v{vPk[1]}
    s_lshr_b32 s{sT2}, s{S_TG}, 3
    s_mul_i32 s{sT2}, s{sT2}, 160
    s_add_u32 s{sN}, s{sN}, s{sT2}
    v_add_u32 v{vPk[1]}, s{sN}, v{vPk[1]}
    v_mul_u32_u24 v{vPk[1]}, 0x500, v{vPk[1]}
    v_add_u32 v{vPk[1]}, v{vPk[1]}, v{t}
    s_lshl_b32 s{sT}, s{sK}, 11
    s_add_u32 s{sMk}, s{sT}, {PKS}
    v_lshl_add_u32 v{aPk}, v0, 3, s{sMk}""", f"""
    s_waitcnt lgkmcnt(0)
    s_add_u32 s{sTag}, s{sTag}, {hx(TAGC)}
    v_mov_b32 v{gr+1}, s{sTag}
    v_mov_b32 v{gr+3}, s{sTag}
    s_lshl_b32 s{sT}, s{S_TG}, 1
    s_add_u32 s{sT}, s{sT}, s{S_J}
    s_lshl_b32 s{sT}, s{sT}, {FS}
    s_add_u32 s{sXo}, s{sT}, {hx(FL1)}
    s_lshl_b32 s{sT}, s{sK}, 1
    s_or_b32 s{sT}, s{sT}, s{S_J}
    s_cmp_lt_u32 s{sT}, 2
    s_cselect_b32 s{sXo}, s{sXo}, {hx(WS_END)}"""], 6, 12)
    gate = (f"""s_mul_i32 s{sT}, s{sK}, 320
    s_add_u32 m0, s{sT}, {GATE}
    s_mov_b32 s{sX}, s{P_GW}
    s_mov_b32 s{sX+1}, s{P_GW+1}
    s_mov_b32 s{sX+2}, 1280
    s_mov_b64 exec, 0xfffff
    buffer_load_dwordx4 v{vg}, {s(sX,4)}, 0 offen lds
    s_mov_b64 exec, -1""", "x10")
    kvs = [(f"""ds_read_b64_tr_b16 {v(kvd,2)}, v{T+1}
    ds_read_b64_tr_b16 {v(kvd+2,2)}, v{T+1} offset:256
    s_mov_b64 exec, {s(sMK,2)}
    ds_read_b64 {v(kvd,2)}, v{aLw}
    ds_read_b64 {v(kvd+2,2)}, v{T}
    s_mov_b64 exec, -1""", "kr"), [("@", "kr")] + [f"v_cndmask_b32 v{kvd+i}, v{T+3}, v{kvd+i}, {s(sKW,2)}" for i in range(4)] +
    [(f"buffer_store_dwordx4 {v(kvd,4)}, v{T+2}, {s(sWS,4)}, s{sKW+2} offen sc1", "kvs")]]
    g2 = C("g2", 219); hl = 1
    for n in range(3): put([(f"ds_read_b128 {v(raw+4*n,4)}, v{aTX} offset:{1024*n}", f"tx{n}")] , 11+n+hl, 11+n+hl)
    put(kvs[:1], 12, 12); put(kvs[1:], C("kp", 128), C("kp", 128))
    def gz(g):
        X = range(Z2+8*g, Z2+8*g+8); L = [f"v_lshlrev_b32 v{x}, 16, v{raw+4*g+i}\n v_and_b32 v{x+1}, 0xffff0000, v{raw+4*g+i}" for i, x in enumerate(X[::2])]
        return [[("@", f"tx{g}"), L[0]]] + L[1:] + gelu(X, tg_, vK1, ("v_add_f32 {s1}, {s1}, {x}", "v_fmac_f32 {s2}, {x}, {x}"), s1=sm, s2=sm+2)
    assert g2 >= 14.2+hl
    put(gz(0) + gz(1) + gz(2) +
        [f"v_add_f32 v{sm}, v{sm}, v{sm+1}\n v_add_f32 v{sm+1}, v{sm+2}, v{sm+3}\n v_mov_b64 {v(tg_,2)}, {v(sm,2)}\n s_nop 1\n v_permlane32_swap_b32 v{sm}, v{tg_}\n v_permlane32_swap_b32 v{sm+1}, v{tg_+1}",
         (f"v_add_f32 v{sm}, v{sm}, v{tg_}\n v_add_f32 v{sm+1}, v{sm+1}, v{tg_+1}\n ds_write_b64 v{aS}, {v(sm,2)}", "stx")], 11.1+hl, g2)
    put([(f"ds_read_b64 {v(tg_,2)}, v{aS} offset:512", "sty"),
         [("@", "sty"), f"""v_add_f32 v{gr}, v{sm}, v{tg_}
         v_add_f32 v{gr+2}, v{sm+1}, v{tg_+1}
         buffer_store_dwordx4 {v(gr,4)}, v{vSp}, {s(sWS,4)}, s{sSt} offen sc1"""]], int(g2)+1, int(g2)+1)
    f1b = cfg.get("f1b", 16)
    put([flag("kvs", sXo)], f1b, f1b)
    sld = [(f"buffer_load_dwordx4 {v(ssr[i],4)}, v{vA[0]}, {s(sWS,4)}, s{sSt} offen offset:{1024*i} sc1", "ss") for i in range(4)]
    m, n_ = tg_+2, tg_+3; mu = sm
    def schk(st_):
        st_(f"{name}_schk:"); st_.w("ss")
        G_ = [x+o for x in ssr for o in (1, 3)]
        for op, d in (("max", m), ("min", n_)):
            st_(f"v_{op}3_u32 v{d}, v{G_[0]}, v{G_[1]}, s{sTag}")
            for i in (2, 4, 6): st_(f"v_{op}3_u32 v{d}, v{G_[i]}, v{G_[i+1]}, v{d}")
        st_(f"v_cmp_ne_u32 vcc, v{m}, v{n_}\n s_cbranch_vccnz {name}_sretry\n {name}_sok:")
        stamp(a, 4)
    LN = [schk]
    for o in (0, 2): LN += [f"v_add_f32 v{m}, v{ssr[0]+o}, v{ssr[1]+o}\n v_add_f32 v{n_}, v{ssr[2]+o}, v{ssr[3]+o}\n v_add_f32 v{mu+o//2}, v{m}, v{n_}"]
    LN += [f"v_mov_b64 {v(m,2)}, {v(mu,2)}\n s_nop 1\n v_permlane32_swap_b32 v{mu}, v{m}\n v_permlane32_swap_b32 v{mu+1}, v{m+1}",
           f"v_add_f32 v{mu}, v{mu}, v{m}\n v_add_f32 v{mu+1}, v{mu+1}, v{m+1}\n v_mul_f32 v{mu}, {fl_(1/768)}, v{mu}\n v_mul_f32 v{mu+1}, {fl_(1/768)}, v{mu+1}",
           f"v_fma_f32 v{mu+1}, -v{mu}, v{mu}, v{mu+1}\n v_max_f32 v{mu+1}, 0, v{mu+1}\n v_add_f32 v{mu+1}, {fl_(1e-5)}, v{mu+1}\n v_rsq_f32 v{mu+1}, v{mu+1}\n s_nop 0\n v_mul_f32 v{mu}, v{mu}, v{mu+1}"]
    zst = lambda n: [("@", "tr"), (f"buffer_store_dwordx4 {v(Z2+8*n,4)}, v{vZn}, {s(sWS,4)}, s{sZs} offen offset:{1024*n} sc1", "zn")]
    for n in range(3):
        for a_ in range(2):
            q = Z2+8*n+4*a_
            LN += [f"v_fma_f32 v{q+i}, v{q+i}, v{mu+1}, -v{mu}\n v_fma_f32 v{q+i+1}, v{q+i+1}, v{mu+1}, -v{mu}" for i in (0, 2)]
            LN += [f"v_cvt_pk_bf16_f32 v{q}, v{q}, v{q+1}\n v_cvt_pk_bf16_f32 v{q+1}, v{q+2}, v{q+3}\n ds_write_b64 v{aLw}, {v(q,2)} offset:{16*a_}"]
            if a_ == 0 and n: LN.append(zst(n-1))
        LN += [(f"ds_read_b64_tr_b16 {v(Z2+8*n,2)}, v{aLr}\n ds_read_b64_tr_b16 {v(Z2+8*n+2,2)}, v{aLr} offset:128", "tr")]
    LN.append(zst(2))
    sl, l0, l1 = C("sl", 285), C("l0", 293), C("l1", 299)
    put(sld, sl, sl+0.5); put(LN, l0, l1)
    if C("pl", 280): put(["s_setprio 2"], C("pl", 280), C("pl", 280)); put([f"s_setprio {cfg.get('p2', 0)}"], 29.99, 29.99)
    b1 = C("b1", 258); b2 = C("b2", 280); kd = C("kd", 5); assert b2 >= 21
    put([(fl(sFl), "F")], b1, b1)
    put([poll("k", sFl, 3)], b2, b2)
    for c in range(3): put([kv(c)], b2+0.01+c*kd, b2+0.01+c*kd)
    put([(f"v_lshlrev_b32 v{t0}, {FS}, v0\n" + fl(sFl), "F")], C("b3", 290), C("b3", 290))
    put([poll("l", sFl, 0)], 30.99, 30.99)
    for b in range(30):
        lstamp(a, 2*b); st.w(f"w{b}", f"x{b}", "stx", *(["kvs"] if b == f1b else []), *(["tx2"] if b == TXF else []))
        tb(b, 1); st("s_barrier"); tb(b, 0); lstamp(a, 2*b+1)
        if b in (0, 10, 20): stamp(a, {0: 1, 10: 2, 20: 6}[b])
        D = issue(b, nb if b >= cfg.get("nc", 0) else 1) + ([gate] if b == cfg.get("gb", 5) else []); assert b < cfg.get("gb", 5) or not xq
        L = [(b + 0.01 + C("dsp", 7)*i/len(D), x) for i, x in enumerate(D)] + ex[b]
        for x in sorted(L, key=lambda y: y[0]): st.run(x[1])
    assert not xq and not wq
    lstamp(a, 60); st.w("kv0", "stx")
    st("s_barrier"); stamp(a, 7); lstamp(a, 61); lstamp(a, None)
    if TS[0] == 2: a("s_memrealtime s[98:99]")
    for i in range(3): st(f"ds_read_b128 {v(r.Q16[0]+4*i,4)}, v{aQx} offset:{1024*i}", "Q")
    pb = cfg.get("pb", 0)
    sc = attention(1, [[0]*4]*16, None, lambda c: [f"kv{c+1}"], lambda c: [(lambda st_, c=c: stamp(a, 8+c))], lambda c, i: pb if (c, i) == (0, 0) and pb != cfg.get("p2", 0) else 2 if 4*c+i == cfg.get("pc", -1) else None)
    for c in range(13): sc.place(kv(c+3), c+1, 0.02, 0.15)
    for x, it in sorted(sum(ex[30:], []), key=lambda y: y[0]): span(sc, [it], x, x, 30)
    WU = lambda ks, c: BIG+4*(5*ks+c)
    w0 = cfg.get("w0", 11); w1 = cfg.get("w1", 16); L = pkloads(BIG, 30, 249 if cfg.get("xp", 0) & 1 else vA[0], sWS, sPk, "wu")
    if cfg.get("xp", 0) & 1: st("v_mov_b32 v249, 0")
    span(sc, [flag("zn", sF2)], C("f2", 10), C("f2", 10), 0)
    pkl = lambda i, ptr, n: (f"""s_mov_b32 s{sX}, s{ptr}
    s_mov_b32 s{sX+1}, s{ptr+1}
    s_add_u32 m0, s{sMk}, {1024*i}
    s_mov_b32 s{sX+2}, {n*1280}
    buffer_load_dwordx4 v{vPk[i]}, {s(sX,4)}, 0 offen lds""", "pk")
    span(sc, [pkl(0, P_WOUT, 768), pkl(1, P_WO, 640)], C("k0", 42), C("k0", 42)+0.3, 0)
    span(sc, [[("@", "pk")] + [(f"ds_read_b64_tr_b16 {v(pkd+2*i,2)}, v{aPk} offset:{512*i}", "pr") for i in range(4)]] +
         [[("@", "pr"), (f"buffer_store_dwordx4 {v(pkd+4*i,4)}, v{vA[0]}, {s(sWS,4)}, s{sPs[i]} offen sc1", "ps")] for i in range(2)], C("k1", 55), C("k1", 55)+0.3, 0)
    span(sc, [[f"s_add_u32 s{sF2}, s{sF2}, {hx(FL4)}"] + flag("ps", sF2)], C("k2", 62), C("k2", 62), 0)
    span(sc, [(f"v_and_b32 v{t0}, {hx((32 << FS)-1)}, v{t0}\n" + fl(sF4), "F")], w0-0.7, w0-0.7, 0)
    span(sc, [poll("w", sF4, 0)], w0+0.18, w0+0.18, 0)
    assert l1-30 < C("f2", 10) < C("k2", 62) < w0-0.7 and (C("k0", 42) < .71 or 1 < cfg.get("k0", 42) % 10 < 8)
    for w in range(w0, w1): sc.place(L[30*(w-w0)//(w1-w0):30*(w+1-w0)//(w1-w0)], w, 0.2, 0.9)
    act = [224, 12, 36, 60]
    def ald(i): return [(f"buffer_load_dwordx4 {v(act[i]+4*ks,4)}, v{vA[ks>>2]}, {s(sWS,4)}, s{sAct[i]} offen offset:{1024*(ks&3)} sc1", f"{name}_u{i}") for ks in range(6)]
    aP = [5, 6, 7, 8, 9]; aO = 10
    sc.place([f"""s_mul_i32 s{sT}, s{sK}, 6144
    v_add_u32 v{aO}, s{sT}, v{r.aK}
    s_mul_i32 s{sT}, s{sK}, 5120
    v_add_u32 v{aP[4]}, s{sT}, v{r.aK}"""] + [f"""s_xor_b32 s{sT}, s{sK}, {d}
    s_mul_i32 s{sT}, s{sT}, 15360
    s_add_u32 s{sT}, s{sT}, {PB0}
    v_add_u32 v{aP[d]}, s{sT}, v{vA[0]}""" for d in range(4)] + [f"""s_lshl_b32 s{sT}, s{S_TG}, 3
    s_add_u32 s{sT}, s{sT}, s{S_J}
    s_lshl_b32 s{sT}, s{sT}, {FS}
    s_add_u32 s{sT}, s{sT}, {hx(FL5)}
    s_cmp_eq_u32 s{sK}, 0
    s_cselect_b32 s{sF4}, s{sT}, {hx(WS_END)}"""]*(cfg.get("f5", -1) > 2), 15, 0.3, 0.8)
    span(sc, [(f"v_and_b32 v{t0}, {hx((8 << FS)-1)}, v{t0}\n" + fl(sF3), "F")], C("u3", 157), C("u3", 157), 0)
    u0 = cfg.get("u0", 50); assert u0 < 100 or 0 <= cfg.get("f5", -1) < 3 or cfg.get("y0", 2) == 0 or cfg.get("xb", 1) or cfg.get("xs", 70)
    ud = C("ud", 0); aU = 248
    dld = lambda i: [((f"s_add_u32 m0, s{sMk}, {6144*(i-1)+1024*ks}\n s_nop 0\n" if ks & 3 == 0 else "") +
        f"buffer_load_dwordx4 v{vA[ks>>2]}, {s(sWS,4)}, s{sAct[i]} offen offset:{1024*(ks&3)} sc1 lds", f"ud{i}") for ks in range(6)]
    if ud:
        assert C("u3", 157) < ud >= cR+2; u0 = -1
        sc.place([f"s_mul_i32 s{sMk}, s{sK}, {AA}\n v_add_u32 v{aU}, s{sMk}, v{vA[0]}"], 13, 0.5, 0.5)
        span(sc, [poll("u", sF3, 0)] + ald(0) + dld(1) + dld(2) + dld(3), ud, C("ue", 163), 0)
    elif u0 < 100: sc.place([poll("u", sF3, 0)] + ald(0), 16, u0/100, 0.95)
    sc.emit(st)
    f5 = cfg.get("f5", -1); fl5 = f"s_mov_b64 exec, 1\n buffer_store_dword v{t1}, off, {s(sWS,4)}, s{sF4} sc1\n s_mov_b64 exec, -1"
    if f5 == 4: st(fl5)
    for th in range(2):
        if th: st("s_nop 8")
        for i in range(3): st(f"ds_write_b128 v{aO}, {v(r.O[th]+4*i,4)} offset:{(3*th+i)*1024}", "po")
    ua = cfg.get("ua", 1)
    if 0 <= u0 < 100 and not ua: st.run(ald(1))
    if cfg.get("pc", -1) >= 0: st("s_setprio 0")
    st.w("po")
    stamp(a, 24); st("s_barrier"); stamp(a, 25)
    if TS[0] == 2: a("s_memrealtime s[96:97]")
    if u0 >= 100: st.run([poll("u", sF3, 0)] + ald(0) + ald(1))
    if 0 <= u0 < 100 and ua == 1: st.run(ald(1))
    if f5 == 3: st(fl5)
    ub = divmod(cfg.get("ub", 2045), 100)
    ac = [84, 224, 84, 224]; tc = 250; pr = [12, 36, 84]
    if ud: ub = (-1, -1)
    ny = cfg.get("ny", 0); assert not ny or (68 <= cfg.get("xs", 70) <= 90 and cfg.get("nq", 1) == 1)
    for e in range(2):
        if ub[e] == 0: st.run(ald(2+e))
    if cfg.get("xb", 1): st("s_barrier")
    for i in range(4):
        st.w(f"{name}_u{i}")
        stamp(a, 26+i)
        ex = {}
        if i > 0:
            for c in range(5): ex[c+2] = (f"ds_write_b128 v{aP[0]}, {v(ac[i-1]+4*c,4)} offset:{(i-1)*5120+c*1024}", "pw")
        if ud and i < 3:
            for ks in range(6): ex[cfg.get("ur", 10)+2*ks] = [("@", f"ud{i+1}"), (f"ds_read_b128 {v(act[i+1]+4*ks,4)}, v{aU} offset:{6144*i+1024*ks}", f"{name}_u{i+1}")]
        rp = lambda d, c: (f"ds_read_b128 {v(pr[d]+4*c,4)}, v{aP[d+1]} offset:{d*5120+c*1024}", f"pr{c}")
        padd = lambda x, y: unpk([f"v_pk_add_f32 {v(x+h2,2)}, {v(x+h2,2)}, {v(y+h2,2)}" for h2 in (0, 2)], cfg.get("np", 7) & 4)
        if i == 3 and ny:
            for c in range(5): ex[8+2*c] = rp(0, c); ex[9+2*c] = rp(1, c); ex[20+2*c] = [("@", f"pr{c}")] + padd(pr[0]+4*c, pr[1]+4*c)
        elif i == 3:
            ex[9] = [("@", "pw"), "s_barrier"]
            for c in range(5):
                for d in range(3): ex[10+3*c+d] = rp(d, c)
        for ks in range(6):
            for c in range(5):
                q = ac[i]+4*c
                if f5 == 10+30*i+5*ks+c: st(fl5)
                if cfg.get("xs", 70) == 30*i+5*ks+c > 0: st.run([("@", "pw")]*ny + ["s_barrier"])
                for e in range(2):
                    if ub[e] == 30*i+5*ks+c > 0: st.run(ald(2+e))
                st(f"{MF16} {v(q,4)}, {v(WU(ks,c),4)}, {v(act[i]+4*ks,4)}, {'0' if ks == 0 else v(q,4)}")
                if 5*ks+c in ex: st.run(ex[5*ks+c])
    if ny:
        st("s_nop 3")
        for c in range(5): st.run(padd(ac[3]+4*c, pr[0]+4*c))
        st.w("pw"); st("s_barrier")
        if cfg.get("pz", 0): st("s_setprio 2")
        for c in range(5): st.run(rp(2, c))
    for c in range(5):
        st.w(f"pr{c}"); q = ac[3]+4*c
        if ny: st.run(padd(q, pr[2]+4*c))
        else: st.run(padd(pr[0]+4*c, pr[1]+4*c) + padd(pr[0]+4*c, pr[2]+4*c) + padd(q, pr[0]+4*c))
        st(f"ds_write_b128 v{aP[4]}, {v(q,4)} offset:{c*1024}")
    st("s_waitcnt lgkmcnt(0)")
    stamp(a, 30)
    if TS[0] == 2: a("v_writelane_b32 v255, s96, 25\n v_writelane_b32 v255, s98, 7")
    st("s_barrier\n"*(4-cfg.get("nq", 1)))
    if TS[0] == 1: st(f"v_writelane_b32 v255, s{sCnt}, 5")
    wend(a, name)
    x = St(a)
    for nm, sF in polls: x(f"""{name}_{nm}retry:
    s_cmp_eq_u32 s{sCnt}, 0
    s_cbranch_scc1 {name}_{nm}ok
    s_sub_u32 s{sCnt}, s{sCnt}, 1
    {fl(sF)}
    s_waitcnt vmcnt(0)
    s_branch {name}_{nm}poll""")
    x(f"{name}_sretry:\n s_cmp_eq_u32 s{sCnt}, 0\n s_cbranch_scc1 {name}_sok\n s_sub_u32 s{sCnt}, s{sCnt}, 1")
    x.run(sld); x(f"s_waitcnt vmcnt(0)\n s_branch {name}_schk")
```

```python
from common import *
from stream import *
KVS = 12288; AA = 18432; KV0 = 74240; SG0 = 111104; SG = 12800; PB0 = KV0 + 2*KVS
slot = lambda c: ((c + 2) % 3) * KVS
SEQ = {0: "e e C e e P c e e c Q e e c e q e c e e p c e e c e e c",
       1: "e e C e e P c e e c Q e e c e q e c e e p c e e g c e e c",
       2: "e g e C e e P c e e c Q e e c e q e c e e p c e e c g e e c",
       3: "e g e C e e P c e g e c Q e e c e q e c e e p c e e c g e e c",
       4: "e g e C e e P c e g e c Q e e c e q e c g e e p c e e c g e e c",
       5: "g e e g C e e P c e g e c Q e e c e q e c g e e p c e e c g e e c",
       6: "g e e g C e e P c e g e c Q e e g c e q e c g e e p c e e c g e e c"}
SQS = [{0: "e e P e e Q e q e e e e e p e e e e e e",
        5: "g e e P e e Q e g e q e e g e e p e e g e e g e e",
        6: "g e e P e g e Q e g e q e e g e e p e e g e e g e e"},
       {0: "e e P e Q e e q e e e e e p e e e e e e",
        5: "e g e P e e Q e e q e e g e e p e g e e g e e g e",
        6: "e g e P e e Q e g e q e e g e e p e g e e g e e g e"},
       {0: "e e P e Q e q e e e e e e e p e e e e e",
        5: "g e e P e e g e Q e e q e g e e p e e g e e g e e",
        6: "g e e P e g e Q e e q e g e e g e p e e g e e g e e"},
       {0: "e e P Q e e e q e e e e e p e e e e e e",
        5: "e e P e e Q e e q e e g e e p e g e e g e e g e g",
        6: "e e P e g e Q e e q e g e e g e p e e g e e g e e g"},
       {0: "e e e P e Q e q e e e e e p e e e e e e",
        5: "g e e P e Q e e g e q e e g e e p e e g e e g e e",
        6: "g e e P e Q e e g e q e g e e g e p e e g e e g e e"},
       {0: "e e P e Q e e q e e e e e e e e p e e e",
        5: "e g e e P e e Q e e q e g e e p e g e e g e e g e",
        6: "e g e e P e g e Q e q e e g e e p e g e e g e g e e"}]
for d_ in SQS: d_.update({3: "e e P e e Q e e q e e g e e p e e g e e g e e", 4: "g e e P e e Q e e q e e g e e p e e g e e g e e",
                          7: "g e e P e g e Q e g e q e g e e g e p e e g e e g e e"})
SMF = "v_smfmac_f32_32x32x32_bf16"
MF32 = "v_mfma_f32_32x32x16_bf16"; MF8 = "v_mfma_f32_32x32x8bf16_1k"; MF16 = "v_mfma_f32_16x16x32_bf16"
class R: pass
r = R()
r.aK, r.aK8, r.aV = 1, 2, 3
r.S = [12, 28]; r.O = [44, 60]; r.Q16 = [76, 80]; r.Q8 = 84; r.K16 = 88; r.K8 = 92; r.V0 = 96; r.V1 = 100
BIG = 104
def kv_addr(st, t):
    st(f"""
    v_lshlrev_b32 v{r.aK}, 4, v0
    v_and_b32 v{t}, 31, v0
    v_lshrrev_b32 v{t+1}, 5, v0
    v_lshlrev_b32 v{r.aK8}, 4, v{t}
    v_min_u32 v{r.aV}, 23, v{t}
    v_mul_u32_u24 v{t+1}, 0x180, v{t+1}
    v_lshl_add_u32 v{r.aV}, v{r.aV}, 4, v{t+1}
    v_add_u32 v{r.aK}, {KV0}, v{r.aK}
    v_add_u32 v{r.aK8}, {KV0}, v{r.aK8}
    v_add_u32 v{r.aV}, {KV0}, v{r.aV}
    """)
def attention(role, dens, gop, bar, post, prio, sm=0, ix=0):
    sc = Sched()
    rK = lambda c, t: (f"ds_read_b128 {v(r.K16,4)}, v{r.aK} offset:{slot(c)+(2*role+t)*1024}", "K")
    rK8 = lambda c: (f"ds_read_b128 {v(r.K8,4)}, v{r.aK8} offset:{slot(c)+4096+role*512}", "K8")
    rV = lambda c, t, f: (f"ds_read_b128 {v(r.V1 if f else r.V0,4)}, v{r.aV} offset:{slot(c)+5120+(2*(2*role+t)+f)*768}", f"V{f}")
    zo = lambda b: "\n".join(f"v_mov_b32 v{r.O[b]+i}, 0" for i in range(16))
    pv = lambda o, a_, p_, h: f"{SMF} {v(o,16)}, {v(a_,4)}, {v(p_+8*h,8)}, v{ix}" if sm else f"{MF32} {v(o,16)}, {v(a_,4)}, {v(p_+4*h,4)}, {v(o,16)}"
    sc.op([rK(0, 0), rK8(0), rV(0, 0, 0)] + ([f"v_mov_b32 v{ix}, 0xdddddddd", zo(0)] if sm else []) + [("@", "K", "K8", "Q"),
           f"{MF32} {v(r.S[0],16)}, {v(r.K16,4)}, {v(r.Q16[0],4)}, 0", f"{MF8} {v(r.S[0],16)}, {v(r.K8,2)}, {v(r.Q8,2)}, {v(r.S[0],16)}", zo(1) if sm else "s_nop 11"])
    for c in range(16):
        for i in range(4):
            b = i & 1; kt = i >> 1; cur = r.S[b]; nx = r.S[b ^ 1]; ne = nc = 0
            first = (c, i) == (0, 0); last = (c, i) == (15, 3)
            if prio(c, i) is not None: sc.op(f"s_setprio {prio(c, i)}")
            for op in (SQS[sm-1] if sm else SEQ)[dens[c][i]].split():
                if op == "e": sc.op(f"v_exp_f32 v{cur+ne}, v{cur+ne}"); ne += 1
                elif op == "c": sc.op(f"v_cvt_pk_bf16_f32 v{cur+nc}, v{cur+2*nc}, v{cur+2*nc+1}"); nc += 1
                elif op == "C":
                    if not first: sc.op(f"v_cvt_pk_bf16_f32 v{nx+7}, v{nx+14}, v{nx+15}")
                elif op == "P":
                    it = [] if first else [("@", "V1"), pv(r.O[b^1], r.V1, nx, 1)]
                    if not b: it.append(rV(c, kt, 1))
                    sc.op(it)
                elif op == "Q":
                    if last: continue
                    sc.op([("@", "K"), f"{MF32} {v(nx,16)}, {v(r.K16,4)}, {v(r.Q16[b^1],4)}, 0"] + ([rK(c, 1)] if i == 0 else []))
                elif op == "q":
                    if last: continue
                    sc.op([("@", "K8"), f"{MF8} {v(nx,16)}, {v(r.K8+2*(((i+1)>>1)&1),2)}, {v(r.Q8+2*(b^1),2)}, {v(nx,16)}"])
                elif op == "p":
                    it = []
                    if i == 2:
                        sc.op([("@", "V0", "V1") + tuple(bar(c)), "s_barrier"]); sc.next()
                        if c < 15: it += [rK(c+1, 0), rK8(c+1)]
                    it += [("@", "V0"), pv(r.O[b], r.V0, cur, 0) if sm else f"{MF32} {v(r.O[b],16)}, {v(r.V0,4)}, {v(cur,4)}, {'0' if c == 0 and i < 2 else v(r.O[b],16)}"]
                    if i == 1: it.append(rV(c, 1, 0))
                    if i == 3 and c < 15: it.append(rV(c+1, 0, 0))
                    if i == 2: it += post(c)
                    sc.op(it)
                elif op == "g": sc.op(gop())
    sc.op([f"v_cvt_pk_bf16_f32 v{r.S[1]+7}, v{r.S[1]+14}, v{r.S[1]+15}"]*(not sm) + ["s_nop 1", pv(r.O[1], r.V1, r.S[1], 1)])
    return sc
def vo160(vo, t):
    L = []
    for i in range(5):
        L.append(f"""v_add_u32 v{t}, {64*i}, v0
        v_mul_u32_u24 v{t+1}, 6554, v{t}
        v_lshrrev_b32 v{t+1}, 16, v{t+1}
        v_mul_u32_u24 v{t+1}, {1280-160}, v{t+1}
        v_lshl_add_u32 v{vo+i}, v{t if i == 4 else 0}, 4, v{t+1}""")
    return L
def dma160(vo, srd_, sO, sM, n, tag, half_last=False):
    L = []
    for i in range(n):
        x = ""
        if i % 5 in (0, 4): x += f"s_add_u32 m0, s{sM}, {1024*i}\n s_nop 0\n"
        if half_last and i == n-1: x += "s_mov_b32 exec_hi, 0\n"
        x += f"buffer_load_dwordx4 v{vo+i%5}, {s(srd_,4)}, s{sO} offen offset:{1024*((i%5)&3)} lds\n"
        if half_last and i == n-1: x += "s_mov_b32 exec_hi, -1\n"
        if i % 5 == 4: x += f"s_add_u32 s{sO}, s{sO}, {32*1280}\n"
        L.append((x, tag))
    return L
def chk_tile(st, name, regs, n, t, sCnt):
    st(f"{name}_chk:")
    st.w(name)
    st(f"v_max3_u32 v{t}, v{regs}, v{regs+1}, v{regs+2}\n v_max3_u32 v{t+1}, v{regs+3}, v{regs+4}, v{regs+5}")
    for i in range(6, n, 2): st(f"v_max3_u32 v{t+(i>>1&1)}, v{regs+i}, v{regs+i+1}, v{t+(i>>1&1)}")
    st(f"""v_max_u32 v{t}, v{t}, v{t+1}
    v_cmp_eq_u32 vcc, -1, v{t}
    s_cbranch_vccnz {name}_retry
    {name}_ok:""")

def kb(name, JB=2, cfg={}):
    a = Asm(); header(a, name, JB)
    S_ = Regs(36, 88)
    sWS = S_(4); sW = S_(4); sT = S_(); sT2 = S_(); sO = S_(); sN = S_(); sK = S_(); sTH = S_(); sHP = S_(); sE = S_(2); sAct = [S_() for i in range(4)]; sOwn = S_()
    gS = cfg.get("gs", 2); cR = cfg.get("cr", 14)
    st = St(a)
    T = 208
    st(f"""
    s_and_b32 s{sK}, s{S_W}, 3
    s_and_b32 s{sTH}, s{S_W}, 1
    s_bfe_u32 s{sHP}, s{S_W}, 0x10001
    s_lshl_b32 s{sT}, s{S_TG}, 3
    s_add_u32 s{sT}, s{sT}, s{S_J}
    s_lshl_b32 s{sT}, s{sT}, 2
    s_add_u32 s{sT}, s{sT}, s{sHP}
    s_mul_i32 s{sO}, s{sT}, {QF_HEAD}
    s_lshl_b32 s{sT}, s{sTH}, 10
    s_lshl_b32 s{sT2}, s{sTH}, 3
    v_lshlrev_b32 v{T}, 4, v0
    v_cmp_gt_u32 vcc, 32, v0
    v_add_u32 v{T+1}, s{sT}, v{T}
    v_add_u32 v{T+2}, s{sT2}, v{T}
    s_add_u32 s{sN}, s{sO}, {2*QF_HEAD}
    v_cndmask_b32 v{T+2}, -4.0, v{T+2}, vcc
    s_waitcnt lgkmcnt(0)
    """)
    srd(a, sWS, P_WS, WS_END)
    st(f"s_xor_b32 s{sOwn}, s{sK}, s{S_J}\n s_and_b32 s{sOwn}, s{sOwn}, 3" if cfg.get("rot", 1) else f"s_mov_b32 s{sOwn}, s{sK}")
    for i in range(4):
        st(f"""s_xor_b32 s{sT}, s{sOwn}, {(i+1)&3}
        s_lshl_b32 s{sT2}, s{S_TG}, 2
        s_add_u32 s{sT}, s{sT}, s{sT2}
        s_mul_i32 s{sAct[i]}, s{sT}, {44*1024}""")
    qld = f"""buffer_load_dwordx4 {v(r.Q16[0],4)}, v{T+1}, {s(sWS,4)}, s{sO} offen
    buffer_load_dwordx2 {v(r.Q8,2)}, v{T+2}, {s(sWS,4)}, s{sO} offen offset:2048
    buffer_load_dwordx4 {v(r.Q16[1],4)}, v{T+1}, {s(sWS,4)}, s{sN} offen
    buffer_load_dwordx2 {v(r.Q8+2,2)}, v{T+2}, {s(sWS,4)}, s{sN} offen offset:2048"""
    st(f"""
    s_cmp_ge_u32 s{S_W}, 4
    s_cbranch_scc1 {name}_B
    """)
    nsC = S_.n
    from kbA import waveA
    from kbB import waveB
    env = dict(locals())
    waveA(env, st.fork())
    S_.n = nsC
    waveB(env, st.fork())
    footer(a, name, 1)
    return a, 256, 163840, 512
```

```python
from kb import *
X0 = KV0; XP = [3, 4, 0, 1, 2, 5, 6, 7, 8, 9]
xblk = lambda i: 8192*XP[i]
MISC = X0 + 81920; GATE = MISC; STX = MISC + 1280; LNS = MISC + 3328
QX = X0 + 5*8192; Z1P = QX + 12288; Z1W = 4096
TX = X0 - 12288; PKS = Z1P + 16384
POS = [14848*(q % 5) for q in range(10)]
FREE = [-1]*5 + [1, 2, 3, 4, 5]
TXF = 15
fr_ = [max(q+1 for q in range(10) if POS[q] < 12288*(i+1) and 12288*i < POS[q]+14848) for i in range(5)] + [TXF]
for q in range(10, 30):
    i_ = fr_.index(min(fr_)); POS.append(12288*i_); FREE.append(fr_[i_]); fr_[i_] = q+2
FL2, FL4, FL3, FL1 = [n << 17 for n in range(4)]
FL5 = FL1 + 0x8000
TAGC = 0x9E3779B9
CP = ['', 'nt', 'sc1', 'sc0 sc1', 'sc1 nt']; CQ = ['sc1', 'sc1 nt', 'sc0 sc1', 'sc0 sc1 nt']
def pkloads(reg, n, vA, sWS, sPk, tag, cfg={}):
    return [((f"s_add_u32 s{sPk}, s{sPk}, 0x1000\n" if i and i % 4 == 0 else "") +
             f"buffer_load_dwordx4 {v(reg+4*i,4)}, v{vA}, {s(sWS,4)}, s{sPk} offen offset:{1024*(i&3)} {CQ[cfg.get('c5', 0)]}", tag) for i in range(n)]
def kf(name, JB=2, cfg={}):
    a = Asm(); header(a, name, JB)
    S_ = Regs(36, 95)
    sWS = S_(4); sW = S_(4); sAct = [S_() for i in range(4)]; sT = S_(); sT2 = S_(); sO = S_(); sN = S_(); sK = S_(); sTH = S_(); sHP = S_(); sE = S_(2); sOwn = S_(); sTag = S_()
    gS = cfg.get("gs", 4); cR = cfg.get("cr", 13)
    st = St(a)
    st(f"""
    s_and_b32 s{sK}, s{S_W}, 3
    s_cmp_ge_u32 s{S_W}, 4
    s_cbranch_scc1 {name}_B
    """)
    if cfg.get("cpf", 1):
        st(f"""s_getpc_b64 {s(sE,2)}
        {name}_pc:
        s_bfe_u32 s{sT}, s2, 0x30003
        s_lshl_b32 s{sT}, s{sT}, 2
        s_add_u32 s{sT}, s{sT}, s{sK}
        s_lshl_b32 s{sT}, s{sT}, 11
        v_lshl_add_u32 v2, v0, 7, s{sT}
        v_min_u32 v2, {name}_exit-{name}_pc, v2
        s_mov_b64 exec, 0xffff
        global_load_dword v163, v2, {s(sE,2)}
        s_mov_b64 exec, -1""")
    if cfg.get("bf", 1): st(f"s_branch {name}_A")
    def common(st):
        st(f"s_and_b32 s{sTH}, s{S_W}, 1\n s_bfe_u32 s{sHP}, s{S_W}, 0x10001")
        st(f"s_xor_b32 s{sOwn}, s{sK}, s{S_J}\n s_and_b32 s{sOwn}, s{sOwn}, 3" if cfg.get("rot", 1) else f"s_mov_b32 s{sOwn}, s{sK}")
        for i in range(4):
            st(f"""s_xor_b32 s{sT}, s{sOwn}, {(i+1)&3}
            s_lshl_b32 s{sT2}, s{S_TG}, 2
            s_add_u32 s{sT}, s{sT}, s{sT2}
            s_mul_i32 s{sAct[i]}, s{sT}, {44*1024}""")
    nsC = S_.n
    from kfA import waveA
    from kfB import waveB
    env = dict(locals())
    for f in (waveA, waveB)[::-1 if cfg.get("bf", 1) else 1]:
        S_.n = nsC; f(env, st.fork())
    footer(a, name, 0)
    return a, 256, 163840, 512
if __name__ == "__main__": print(POS, FREE)
```

```python
from kfA1 import *
from kbA import slow_path
def waveA(E, st):
    a = E["a"]; name = E["name"]; cfg = E["cfg"]; S_ = E["S_"]; gS = E["gS"]; cR = E["cR"]; JB = E["JB"]
    sWS, sW, sT, sT2, sO, sN, sK, sTH, sHP, sE, sAct, sTag = [E[k] for k in "sWS sW sT sT2 sO sN sK sTH sHP sE sAct sTag".split()]
    sSP = S_(4); sBS = S_(4); sAr = S_(); sWb = [S_(), S_()]; sB = S_(); sWo = S_(); sZb = S_(); sZn = S_(); sZo = S_(); sFl = S_(); sCnt = S_(); sU = S_(); sOa = S_(); sOx = S_()
    sGm = S_(2); sF3 = S_(); sPk = S_(); sSc = S_(); C = lambda k, d: cfg.get(k, d)/10; FS = cfg.get('fs', 7)
    aW = [4, 5, 6, 7]; vl = 8; vo = [9, 10, 11, 252]; acc = BIG; W = [200, 204]; NZ = 11; Z = [208+4*z for z in range(NZ)]; t0, t1 = 253, 204 if cfg.get("sa", 1) else 254
    T = 12; vE = 162; vu = 250
    st(f"{name}_A:")
    st(f"v_lshlrev_b32 v{vSt}, 4, v0\n s_setprio {cfg.get('p1', 1)}")
    E["common"](st)
    kv_addr(st, T+4)
    st(f"v_mov_b32 v{T}, v{vSt}")
    st(f"""
    s_mul_i32 s{sAr}, s{sK}, {AA}
    s_lshl_b32 s{sT}, s{S_TG}, 1
    s_add_u32 s{sT}, s{sT}, s{sTH}
    s_lshl_b32 s{sT2}, s{sK}, 10
    s_lshl_b32 s{sWb[0]}, s{sT}, 17
    s_add_u32 s{sWb[0]}, s{sWb[0]}, s{sT2}
    s_xor_b32 s{sWb[1]}, s{sWb[0]}, 0x20000
    s_mul_i32 s{sB}, s{S_J if JB < 3 else S_TG}, {cfg.get("wj", 2)}
    s_add_u32 s{sB}, s{sB}, s{S_TG if JB < 3 else S_J}
    s_and_b32 s{sB}, s{sB}, 7
    s_lshl_b32 s{sB}, s{sB}, 7
    s_mov_b32 s{sZn}, s{sB}
    s_mul_i32 s{sU}, s{sT}, {88*1024}
    s_add_u32 s{sU}, s{sU}, {hx(WS_ACT)}
    s_lshl_b32 s{sT}, s{S_J}, 2
    s_add_u32 s{sT}, s{sT}, s{sK}
    s_mul_i32 s{sZb}, s{sT}, {8*12288}
    s_add_u32 s{sZb}, s{sZb}, {hx(WS_Z2N)}
    s_lshl_b32 s{sFl}, s{sT}, {FS+5}
    v_lshrrev_b32 v{T+4}, 3, v0
    v_lshlrev_b32 v{T+4}, 12, v{T+4}
    v_lshrrev_b32 v{T+5}, 4, v0
    v_and_b32 v{T+6}, 7, v0
    v_xor_b32 v{T+5}, v{T+5}, v{T+6}
    v_lshl_add_u32 v{vo[0]}, v{T+5}, 4, v{T+4}
    v_xor_b32 v{T+5}, 64, v{vo[0]}
    v_add_u32 v{vo[1]}, {32768-1024}, v{T+5}
    v_add_u32 v{vo[2]}, {2*(32768-1024)}, v{vo[0]}
    v_add_u32 v{vo[3]}, {3*(32768-1024)}, v{T+5}
    v_lshrrev_b32 v{T+4}, 5, v0
    v_bfe_u32 v{T+5}, v0, 1, 3
    v_xor_b32 v{T+5}, v{T+5}, v{T+4}
    v_lshlrev_b32 v{T+5}, 4, v{T+5}
    v_and_b32 v{T+6}, 31, v0
    v_lshl_add_u32 v{T+5}, v{T+6}, 7, v{T+5}
    v_lshlrev_b32 v{t0}, {FS}, v{T+6}
    s_lshl_b32 s{sT}, s{sHP}, 7
    v_xor_b32 v{vl}, s{sT}, v{T}
    s_mov_b32 s{sCnt}, 0x8000
    """)
    for i in range(4): st(f"v_xor_b32 v{aW[i]}, {hx(32*i)}, v{T+5}\n v_add_u32 v{aW[i]}, s{sAr}, v{aW[i]}")
    st(f"""
    s_lshr_b32 s{sT}, s{S_J}, 1
    s_mul_i32 s{sT}, s{sT}, 5120
    s_add_u32 s{sOa}, s{sU}, s{sT}
    s_and_b32 s{sT}, s{S_J}, 1
    s_lshl_b32 s{sT}, s{sT}, 1
    s_add_u32 s{sT}, s{sT}, s{sHP}
    s_lshl_b32 s{sT2}, s{sT}, 8
    s_add_u32 s{sOx}, s{sOa}, s{sT2}
    s_add_u32 s{sOx}, s{sOx}, 4096
    s_lshl_b32 s{sT}, s{sT}, 10
    s_add_u32 s{sOa}, s{sOa}, s{sT}
    s_mul_i32 s{sT}, s{S_J}, 3072
    s_add_u32 s{sU}, s{sU}, s{sT}
    s_lshl_b32 s{sT}, s{sHP}, 9
    s_add_u32 s{sU}, s{sU}, s{sT}
    s_add_u32 s{sU}, s{sU}, {20*1024}
    s_mul_i32 s{sT}, s{sK}, 5120
    s_add_u32 s{sT}, s{sT}, {hx(WS_ACT)}
    """)
    for i in range(4): st(f"s_add_u32 s{sAct[i]}, s{sAct[i]}, s{sT}")
    uaddr = lambda vu, tp: [f"""v_bfe_u32 v{tp}, v0, 4, 1
    v_mul_u32_u24 v{vu}, {44*1024}, v{tp}
    v_and_b32 v{tp}, 15, v0""", f"""v_cmp_gt_u32 vcc, 32, v0
    v_lshl_add_u32 v{vu}, v{tp}, 4, v{vu}
    v_lshrrev_b32 v{tp}, 5, v0
    v_cndmask_b32 v{vu+1}, -4.0, v{vu}, vcc
    v_lshl_add_u32 v{vu}, v{tp}, 8, v{vu}"""]
    h, e, cb, tok = T+1, T+2, T+3, T+4
    st(f"""
    v_lshrrev_b32 v{h}, 5, v0
    v_bfe_u32 v{e}, v0, 2, 2
    v_and_b32 v{tok}, 31, v0
    v_bfe_u32 v{cb}, v0, 4, 1
    v_and_b32 v{T+5}, 3, v0
    v_lshlrev_b32 v{T+5}, 3, v{T+5}
    v_lshl_add_u32 v{cb}, v{cb}, 5, v{T+5}
    v_lshl_add_u32 v{T+6}, v{h}, 3, v{e}
    s_mul_i32 s{sT}, s{sHP}, 96
    v_mul_u32_u24 v{aZ[0]}, 192, v{T+6}
    v_add3_u32 v{aZ[0]}, v{aZ[0]}, v{cb}, s{sT}
    v_mad_u32_u24 v{T+7}, v{T+6}, 40, v{T+5}
    v_add_u32 v{T+6}, v{T+6}, v{e}
    s_mul_i32 s{sT}, s{sHP}, 40
    v_mul_u32_u24 v{aQ}, 160, v{T+6}
    v_add3_u32 v{aQ}, v{aQ}, v{cb}, s{sT}
    v_add_u32 v{aZ[1]}, 0x8000, v{aZ[0]}
    v_lshlrev_b32 v{aG}, 4, v{h}
    v_add_u32 v{aG}, {GATE}, v{aG}
    s_lshl_b32 s{sT}, s{sTH}, 12
    s_add_u32 s{sT}, s{sT}, {X0}
    s_sub_u32 s{sT}, s{sT}, s{sAr}
    s_mov_b32 s{sGm}, 0x100000
    s_mov_b32 s{sGm+1}, 0x100000
    v_mov_b64 {v(r.Q8,2)}, 0
    v_mov_b64 {v(r.Q8+2,2)}, 0
    """)
    for i in range(4): st(f"v_add_u32 v{aX[0][i]}, s{sT}, v{aW[i]}\n v_add_u32 v{aX[1][i]}, 0x10000, v{aX[0][i]}")
    st(f"""
    s_cmp_lt_u32 s{S_J}, 2
    s_cselect_b32 vcc_lo, 0xffff0000, 0
    s_mov_b32 vcc_hi, vcc_lo
    s_lshl_b32 s{sT}, s{sHP}, 5
    v_add_u32 v{T+7}, s{sT}, v{T+7}""")
    for i in range(8): st(f"""v_add_u32 v{T+8}, {768*(i&1)+3072*(i>>1)+64}, v{aZ[0]}
    v_add_u32 v{T+9}, {12288+160*(i&1)+640*(i>>1)}, v{T+7}
    v_cndmask_b32 v{aKV+i}, v{T+8}, v{T+9}, vcc""")
    st(f"""
    s_lshl_b32 s{sT}, s{sK}, 10
    s_add_u32 s{sT}, s{sT}, {LNS}
    v_lshl_add_u32 v{aLw}, v{tok}, 5, s{sT}
    v_lshl_add_u32 v{aLw}, v{h}, {4 if cfg.get("hm", 3) else 3}, v{aLw}
    s_lshl_b32 s{sT}, s{sK}, 12
    s_add_u32 s{sT}, s{sT}, {Z1P}
    v_add_u32 v{aPark}, s{sT}, v{vSt}
    s_mul_i32 s{sT}, s{sK}, 3072
    v_add_u32 v{aS}, s{sT}, v{vSt}
    v_add_u32 v{aTX}, {TX}, v{aS}
    v_add_u32 v{aS}, {QX}, v{aS}
    s_lshl_b32 s{sT}, s{S_TG}, 3
    s_add_u32 s{sT}, s{sT}, s{S_J}
    s_lshl_b32 s{sT}, s{sT}, 2
    s_add_u32 s{sT}, s{sT}, s{sK}
    s_lshl_b32 s{sT}, s{sT}, {FS}
    s_add_u32 s{sF3}, s{sT}, {hx(FL3)}
    s_cmp_eq_u32 s{S_J}, 0
    s_cselect_b32 s{sSc}, {fl(QSCALE)}, 1.0
    s_waitcnt lgkmcnt(0)""")
    srd(a, sWS, P_WS, WS_END); srd(a, sSP, P_WSP, 2048*4096); srd(a, sBS, P_BSP, 4096)
    st(f"s_mov_b32 s{sT}, {hx(WS_EP)}\n buffer_load_dword v{vE}, off, {s(sWS,4)}, s{sT}\n s_barrier", "ep")
    stamp(a, 1); lstamp(a, 1)
    sc = Sched()
    for x in reads(0, sGm) + reads(1, sGm): sc.op(x)
    gemm(sc, sGm)
    sc.place(["s_mov_b32 vcc_lo, 0xcccc0000\n s_mov_b32 vcc_hi, 0xcccc0000"] + [f"""v_add_u32 v{T+8}, {768*(i&1)+16*(i>>1)+16}, v{aZ[0]}
    v_add_u32 v{T+9}, {3072+160*(i&1)+80*(i>>1)}, v{aQ}
    v_cndmask_b32 v{aM+i}, v{T+9}, v{T+8}, vcc
    v_add_u32 v{aM+4+i}, 0x8000, v{aM+i}""" for i in range(4)], 1, 0.1, 0.9)
    sc.place([[("@", "ep"), f"v_readfirstlane_b32 s{sTag}, v{vE}"], f"s_add_u32 s{sTag}, s{sTag}, {hx(TAGC)}"], 8, 0.2, 0.8)
    if not cfg.get("tsb"): sc.place([lambda st_: stamp(a, 2)], 10, 0, 0); sc.place([lambda st_: stamp(a, 6)], 20, 0, 0)
    q = Z2+24
    kvx = sum([[f"v_mul_f32 v{q+2*i}, s{sSc}, v{q+2*i}\n v_mul_f32 v{q+2*i+1}, s{sSc}, v{q+2*i+1}", f"v_cvt_pk_bf16_f32 v{q+i}, v{q+2*i}, v{q+2*i+1}"] +
               [(f"ds_write_b64 v{aLw}, {v(q+i-1,2)} offset:{8*i-8}", "tx")]*(i & 1) for i in range(4)], [])
    hx_ = lambda n: [f"v_cvt_pk_bf16_f32 v{Z2+8*n+i}, v{Z2+8*n+2*i}, v{Z2+8*n+2*i+1}" for i in range(4)] + [(f"ds_write_b128 v{aTX}, {v(Z2+8*n,4)} offset:{1024*n}", "tx")]
    hm = cfg.get("hm", 3); H = [hx_(n) for n in range(3)]
    if hm: kvx = [x for x in kvx if isinstance(x, str)] + [f"s_nop 0\n v_permlane32_swap_b32 v{q}, v{q+2}\n v_permlane32_swap_b32 v{q+1}, v{q+3}", (f"ds_write_b128 v{aLw}, {v(q,4)}", "tx")]
    cat = lambda *L: sum([x[:-1] for x in L], []) + [[x[-1] for x in L]]
    H = [[H[0] + kvx, H[1], H[2]], [H[0] + kvx, H[1], H[2]], [cat(*H, kvx)], [cat(H[0], kvx), cat(H[1], H[2])], [cat(H[0], kvx), H[1], H[2]]][hm]
    span(sc, H[0], 11+cfg.get("h0", 10)/100, 11+cfg.get("h1", 50)/100, 0)
    for n in range(1, len(H)): span(sc, H[n], 11+n+cfg.get("h2", 2)/100, 11+n+cfg.get("h3", 35)/100, 0)
    mark = lambda vu, d: [f"v_mov_b64 {v(d,2)}, -1\n v_mov_b64 {v(d+2,2)}, -1", f"buffer_store_dwordx4 {v(d,4)}, v{vu}, {s(sWS,4)}, s{sOa} offen sc1",
         f"buffer_store_dwordx4 {v(d,4)}, v{vu}, {s(sWS,4)}, s{sOa} offen offset:512 sc1", f"buffer_store_dwordx4 {v(d,4)}, v{vu+1}, {s(sWS,4)}, s{sOx} offen sc1"]
    if C("s0", 400) < 30: span(sc, uaddr(vu, 244) + mark(vu, 244), C("s0", 400), C("s1", 309), 0)
    sc.emit(st)
    st("s_nop 8")
    for ab in range(2):
        for i in range(4): st(f"v_cvt_pk_bf16_f32 v{r.Q16[ab]+i}, v{QA+16*ab+2*i}, v{QA+16*ab+2*i+1}")
        st(f"ds_write_b128 v{aS}, {v(r.Q16[ab],4)} offset:{1024*ab}", "qx")
    st("s_mov_b32 exec_hi, 0")
    for i in range(4): st(f"v_cvt_pk_bf16_f32 v{r.Q8+i}, v{QA+16*(i>>1)+8+2*(i&1)}, v{QA+16*(i>>1)+9+2*(i&1)}")
    st(f"s_mov_b32 exec_hi, -1\n ds_write_b128 v{aS}, {v(r.Q8,4)} offset:2048\n v_mul_f32 v{gl}, {fl(-LOG2E)}, v{QA+8}", "qx")
    ZR = [Z1+i for i in range(16)] + [QA+12+i for i in range(4)] + [QA+28+i for i in range(4)]; zp = 112; k1 = 186; ag = cfg.get("ag", 3)
    g1 = lambda g, pk: (gelu(ZR[8*g:8*g+8], Z2, k1, pk=pk) + [f"v_cvt_pk_bf16_f32 v{zp+4*g+i}, v{ZR[8*g+2*i]}, v{ZR[8*g+2*i+1]}" for i in range(4)] +
                        [f"ds_write_b128 v{aPark}, {v(zp+4*g,4)} offset:{1024*g}"])
    st(f"v_mov_b32 v{k1}, {fl(-GK1)}\n s_mov_b32 s{sGm}, {fl(-GK2)}\n s_mov_b32 s{sGm+1}, s{sGm}")
    for g in range(ag): st.run(g1(g, sGm))
    lstamp(a, 60); st.w("qx"); st("s_barrier"); stamp(a, 7); lstamp(a, 61); lstamp(a, None)
    if cfg.get("xp", 0) & 2: st(f"v_mov_b32 v{vl}, 0")
    if cfg.get("xp", 0) & 4: st(f"v_mov_b32 v{vo[0]}, 0\n v_mov_b32 v{vo[1]}, 0")
    def wsp(blk):
        L = []
        for b in range(8):
            x = ""
            if b & 3 == 0: x = f"s_add_u32 m0, s{sAr}, {(blk&1)*8192+b*1024}\n s_add_u32 s{sWo}, s{sWb[b>>2]}, s{sB}\n"
            x += f"buffer_load_dwordx4 v{vo[b&3]}, {s(sSP,4)}, s{sWo} offen offset:{(b&3)*1024} {CP[cfg.get('c1', 0)]} lds\n"
            if b == 7: x += f"s_add_u32 s{sB}, s{sB}, 128\n s_and_b32 s{sB}, s{sB}, 0x3ff"
            L.append((x, f"wsp{blk}"))
        return L
    def zld(f):
        ks, n = divmod(f, 3); x = ""
        if f % 12 == 0: x = f"s_mul_i32 s{sZo}, s{sZn}, 96\n s_add_u32 s{sZn}, s{sZn}, 128\n s_add_u32 s{sZo}, s{sZo}, s{sZb}\n s_and_b32 s{sZn}, s{sZn}, 0x3ff\n"
        elif n == 0: x = f"s_add_u32 s{sZo}, s{sZo}, 3072\n"
        return (x + f"buffer_load_dwordx4 {v(Z[f%NZ],4)}, v{vl}, {s(sWS,4)}, s{sZo} offen offset:{1024*n} {CQ[cfg.get('c4', 0)]}", f"z{f}")
    rW = lambda ks, th: [("@", f"wsp{ks>>2}"), (f"ds_read_b128 {v(W[th],4)}, v{aW[ks&3]} offset:{((ks>>2)&1)*8192+th*4096}", f"W{th}")]
    G = dict(m=0, q=[])
    DPG = cfg.get("dpg", 1)
    def gop():
        m = G["m"]; G["m"] += 1
        ks, th, n = m//6, (m % 6)//3, m % 3; f = 3*ks+n; ac = acc+48*th+16*n
        it = [("@", f"z{f}", f"W{th}"), f"{MF32} {v(ac,16)}, {v(Z[f%NZ],4)}, {v(W[th],4)}, {'0' if ks == 0 else v(ac,16)}"]
        if n == 2 and ks < 31: it += rW(ks+1, th)
        if th == 1 and f+NZ < 96: it.append(zld(f+NZ))
        if m % 24 == 21 and m//24 + 2 < 8: G["q"] = wsp(m//24 + 2)
        it += G["q"][:DPG]; G["q"] = G["q"][DPG:]
        if m == 191: it.append("; end of G")
        return it
    np_ = (cR-gS)*4
    dens = [[0]*4 for c in range(16)]
    for p in range(np_): dens[gS+p//4][p % 4] = 192*(p+1)//np_ - 192*p//np_
    pa = cfg.get("pa", 1)
    sc = attention(0, dens, gop, lambda c: ["rsw"], lambda c: [(lambda st_, c=c: stamp(a, 8+c))], lambda c, i: pa if (c, i) == (0, 0) and pa != cfg.get("p1", 1) else None, cfg.get("sa", 1), 254)
    span(sc, sum([g1(g, 0) for g in range(ag, 3)], []), C("a0", 2), C("a1", 10*gS-1), 0)
    sc.place([f"v_mov_b32 v{gl-1}, v{gl}", f"s_nop 0\n v_permlane32_swap_b32 v{gl-1}, v{gl}", f"v_exp_f32 v{gl}, v{gl}", f"v_add_f32 v{gl}, 1.0, v{gl}", f"v_rcp_f32 v{gl}, v{gl}", f"ds_write_b32 v{aPark}, v{gl} offset:3072"], 0, 0.02, 0.1)
    ff = C("ff", 302)
    if cfg.get("tp0"):
        for i in range(2): span(sc, [f"""s_add_u32 s{sT}, s{sB}, {128*i}
        s_and_b32 s{sT}, s{sT}, 0x3ff
        s_andn2_b32 s{sT2}, s{sWb[0]}, 0x20000
        v_lshlrev_b32 v{Z[0]}, 12, v0
        s_add_u32 s{sT}, s{sT}, s{sT2}
        buffer_load_dword v{Z[0]+1}, v{Z[0]}, {s(sSP,4)}, s{sT} offen"""], C(f"tp{i}", 0), C(f"tp{i}", 0), 30)
        assert C("tp1", 0) < ff
    span(sc, wsp(0) + wsp(1), ff, ff+C("fl", 30), 30)
    if 30 <= C("s0", 400) < 40: span(sc, uaddr(vu, tg_) + mark(vu, tg_), C("s0", 400), C("s1", 309), 30)
    fld = f"buffer_load_dword v{t1}, v{t0}, {s(sWS,4)}, s{sFl} offen sc1"
    def poll(st_, p="p", k=3):
        st_(f"{name}_{p}oll:"); st_.w("F")
        st_(f"v_cmp_ne_u32 vcc, s{sTag}, v{t1}\n s_cbranch_vccnz {name}_{p}retry\n {name}_{p}ok:")
        stamp(a, k)
    sc.place([(fld, "F")], gS-1, cfg.get("f0", 10)/100, cfg.get("f0", 10)/100)
    sc.place([poll] + [zld(f) for f in range(NZ)], gS-1, cfg.get("f1", 50)/100, 1.0)
    sc.place([rW(0, 0), rW(0, 1)], gS, 0.1, 0.2)
    z1 = 208; og = 220; gt = 222; tp = 224; aR = [228, 229, 230, 231]; vu = 232; aF = 240; vt = 242
    quads = lambda d, n: [acc+48*(d & 1)+16*n+4*(d >> 1), acc+48*(d & 1)+16*n+4*(d >> 1)+8]
    wl = sc.win[cR]; e = max(i for i, o in enumerate(wl) if isinstance(o, list) and "; end of G" in o)
    it = [f"""v_lshlrev_b32 v{aF}, 4, v0
    v_add_u32 v{aR[0]}, s{sAr}, v{aF}
    s_lshl_b32 s{sT}, s{sK}, 12
    s_add_u32 s{sT}, s{sT}, {Z1P}
    v_add_u32 v{tp}, s{sT}, v{aF}"""]
    it += [(f"ds_read_b128 {v(z1+4*n,4)}, v{tp} offset:{1024*n}", "zp") for n in range(3)]
    it += [(f"""s_lshl_b32 s{sT}, s{S_TG}, 1
    s_add_u32 s{sT}, s{sT}, s{sTH}
    s_lshl_b32 s{sT2}, s{sT}, 6
    v_lshrrev_b32 v{vt}, {FS-1}, v{t0}
    ds_read_b32 v{gt}, v{tp} offset:3072
    buffer_load_ushort v{og+1}, v{vt}, {s(sBS,4)}, s{sT2} offen""", "zp")]
    for d in (2, 1, 3):
        for n in range(3):
            for e2, q in enumerate(quads(d, n)): it.append((f"ds_write_b128 v{aR[0]}, {v(q,4)} offset:{((d-1)*6+2*n+e2)*1024}", "rsw"))
        it.append(f"s_xor_b32 s{sT}, s{sK}, {d}\n s_mul_i32 s{sT}, s{sT}, {AA}\n v_add_u32 v{aR[d]}, s{sT}, v{aF}")
    sc.place(it, cR, (e+3)/len(wl), 0.9)
    it = []
    rd = lambda n: [(f"ds_read_b128 {v(q,4)}, v{aR[d]} offset:{((d-1)*6+2*n+e2)*1024}", f"rs{n}{e2}") for e2 in range(2) for d in (1, 2, 3) for q in [quads(d, n)[e2]]]
    it += rd(0)
    it += [[("@", "zp"), f"""v_sub_f32 v{og}, 1.0, v{gt}
    v_lshlrev_b32 v{og+1}, 16, v{og+1}
    v_mul_f32 v{og+1}, v{og}, v{og+1}"""]] + uaddr(vu, tp) + (mark(vu, 244) if C("s0", 400) >= 40 else [])
    for n in range(3):
        nr = rd(n+1) if n < 2 else []
        for e2 in range(2):
            for h2 in (0, 2):
                o_, p1, p2, p3 = [quads(d, n)[e2]+h2 for d in range(4)]; zi = z1+4*n+2*e2+h2//2
                it.append([("@", f"rs{n}{e2}"), f"""v_pk_add_f32 {v(o_,2)}, {v(o_,2)}, {v(p1,2)}
                v_pk_add_f32 {v(p2,2)}, {v(p2,2)}, {v(p3,2)}
                v_lshlrev_b32 v{tp}, 16, v{zi}
                v_pk_add_f32 {v(o_,2)}, {v(o_,2)}, {v(p2,2)}"""])
                it.append(f"""v_and_b32 v{tp+1}, 0xffff0000, v{zi}
                v_pk_fma_f32 {v(o_,2)}, {v(o_,2)}, {v(og,2)}, {v(og,2)} op_sel:[0,0,1] op_sel_hi:[1,0,1]
                v_pk_mul_f32 {v(o_,2)}, {v(o_,2)}, {v(tp,2)}
                v_cvt_pk_bf16_f32 v{zi}, v{o_}, v{o_+1}""")
                it += nr[:2]; nr = nr[2:]
        it.append((f"buffer_store_dwordx4 {v(z1+4*n,4)}, v{vu}, {s(sWS,4)}, s{sU} offen offset:{1024*n} sc1", "us"))
        if cfg.get("od", 0) & 2: it.append(f"buffer_store_dwordx4 {v(z1+4*n,4)}, v{vu}, {s(sWS,4)}, s{sU} offen offset:{1024*n}")
    it.append(lambda st_: stamp(a, 4))
    it.append(f"""s_lshl_b32 s{sT}, s{S_J}, 2
    s_add_u32 s{sT}, s{sT}, s{sK}
    s_mul_i32 s{sPk}, s{sT}, {11*5120}
    s_add_u32 s{sPk}, s{sPk}, {hx(WS_PK+6*5120)}
    s_or_b32 s{sT}, s2, s{sK}
    s_cmp_eq_u32 s{sT}, 0
    s_cselect_b32 s{sE}, 1, 0
    s_mov_b32 s{sE+1}, 0
    v_mov_b32 v{tp+1}, s{sTag}
    v_cndmask_b32 v{tp}, -4.0, v0, {s(sE,2)}
    s_mov_b32 s{sT}, {hx(WS_EP)}
    buffer_store_dword v{tp+1}, v{tp}, {s(sWS,4)}, s{sT} offen sc1""")
    wu = cfg.get("wu", 60)/100
    NP = cfg.get("np", 7)
    if NP & 1: it = sum([[y] if not isinstance(y, str) or "v_fma" not in y else ["\n".join(y.split("\n")[:3]), "\n".join(y.split("\n")[3:])] for y in
                   sum([[[y[0], "\n".join(y[1].split("\n")[:4])], "\n".join(y[1].split("\n")[4:])] if isinstance(y, list) and y[0][1][:2] == "rs" else [y] for y in unpk(it)], [])], [])
    sc.place(it, cR+1, 0.0, wu)
    WO = lambda ks, c: BIG+4*(5*ks+c)
    f3 = cR+1+wu+C("f3", 4)
    span(sc, [[f"s_mov_b64 exec, 1", ("@", "us"), f"buffer_store_dword v{tp+1}, off, {s(sWS,4)}, s{sF3} sc1\n s_mov_b64 exec, -1", lambda st_: stamp(a, 30)]], f3, f3, 0)
    span(sc, pkloads(BIG, 25, aF, sWS, sPk, "wof", cfg), cR+1+wu+0.02, C('we', 164), 0)
    sc.emit(st)
    O = r.O; S = r.S; D = 208; t = 244; mx = 226; vA = [4, 5]; aP = [6, 7, 8, 9, 10]; vs = 11
    st(f"""s_mul_i32 s{sT}, s{sK}, 6144
    v_add_u32 v{t}, s{sT}, v{r.aK}
    s_mov_b32 s{sN}, 0""")
    f5 = cfg.get("f5", -1); fl5 = f"s_mov_b64 exec, 1\n buffer_store_dword v{tp+1}, off, {s(sWS,4)}, s{sF3} sc1\n s_mov_b64 exec, -1"
    if f5 >= 0: st(f"""s_lshl_b32 s{sT}, s{S_TG}, 3
    s_lshl_b32 s{sFl}, s{sK}, 1
    s_add_u32 s{sFl}, s{sFl}, s{sT}
    s_add_u32 s{sT}, s{sT}, s{S_J}
    s_lshl_b32 s{sFl}, s{sFl}, {FS}
    s_lshl_b32 s{sT}, s{sT}, {FS}
    s_add_u32 s{sFl}, s{sFl}, {hx(FL5)}
    s_add_u32 s{sT}, s{sT}, {hx(FL5)}
    s_cmp_eq_u32 s{sK}, 0
    s_cselect_b32 s{sF3}, s{sT}, {hx(WS_END)}
    v_and_b32 v{t0}, {1 << FS}, v{t0}""")
    if f5 == 0: st(fl5)
    st(f"v_lshlrev_b32 v{vA[0]}, 4, v0\n v_add_u32 v{vA[1]}, 0x1000, v{vA[0]}")
    srd(a, sSP, P_OUT, 2048*1280)
    st(f"""
    v_add_u32 v{aP[0]}, s{sAr}, v{vA[0]}
    s_mul_i32 s{sT}, s{sK}, 5120
    s_add_u32 s{sT}, s{sT}, {KV0}
    v_add_u32 v{aP[4]}, s{sT}, v{vA[0]}
    v_and_b32 v{t+1}, 15, v0
    v_mul_u32_u24 v{vs}, 0x500, v{t+1}
    v_lshrrev_b32 v{t+1}, 4, v0
    v_lshl_add_u32 v{vs}, v{t+1}, 3, v{vs}
    v_mov_b32 v{aP[1]}, v{aR[1]}
    v_mov_b32 v{aP[2]}, v{aR[2]}
    v_mov_b32 v{aP[3]}, v{aR[3]}
    s_lshl_b32 s{sT}, s{S_TG}, 2
    s_add_u32 s{sT}, s{sT}, s{E["sOwn"]}
    s_mul_i32 s{sO}, s{sT}, {16*1280}
    s_mul_i32 s{sT2}, s{S_J}, 160
    s_add_u32 s{sO}, s{sO}, s{sT2}
    """)
    lt = cfg.get("lt", 1); vo_ = [248, 249, 252]
    if lt:
        st(f"""v_and_b32 v{t+1}, 15, v0
        v_mul_u32_u24 v{t+1}, {1280-160}, v{t+1}
        v_sub_u32 v{vs}, v{vs}, v{t+1}
        v_add_u32 v{vs}, s{sAr}, v{vs}""")
    stamp(a, 24); st("s_barrier"); stamp(a, 25)
    if f5 == 1: st(fl5)
    for th in range(2):
        for i in range(3): st(f"ds_read_b128 {v(S[th]+4*i,4)}, v{t} offset:{(3*th+i)*1024}", f"po{th}{i}")
    su = lambda x: st(unpk(x, NP & 8))
    for i in (2, 0, 1):
        for th in range(2):
            st.w(f"po{th}{i}")
            for h2 in (0, 2): su(f"v_pk_add_f32 {v(O[th]+4*i+h2,2)}, {v(O[th]+4*i+h2,2)}, {v(S[th]+4*i+h2,2)}")
    su(f"{name}_fin:")
    for i in range(4): su(f"v_permlane32_swap_b32 v{O[0]+8+i}, v{O[1]+8+i}")
    L = O[1]+8
    su(f"""
    v_rcp_f32 v{t}, v{L}
    v_cmp_ngt_f32 vcc, 0x5f800000, v{L}
    s_mov_b32 s{sT}, 0x1f800000
    v_mul_f32 v{t}, v{t}, v{gt}
    v_cmp_nlt_f32 {s(sE,2)}, s{sT}, v{L}
    v_mov_b32 v{t+2}, v{t}
    v_mov_b32 v{t+4}, v{t}
    s_or_b64 {s(sE,2)}, {s(sE,2)}, vcc
    v_pk_mul_f32 {v(O[0]+8,2)}, {v(O[0]+8,2)}, {v(t,2)} op_sel_hi:[1,0]
    v_permlane32_swap_b32 v{t+2}, v{t+4}
    v_pk_mul_f32 {v(O[0]+10,2)}, {v(O[0]+10,2)}, {v(t,2)} op_sel_hi:[1,0]
    """)
    for th in range(2):
        for i in range(0, 8, 2): su(f"v_pk_mul_f32 {v(O[th]+i,2)}, {v(O[th]+i,2)}, {v(t+2+2*th,2)} op_sel_hi:[1,0]")
    su(f"v_pk_mul_f32 {v(t+6,2)}, {v(O[0]+8,2)}, 0 op_sel_hi:[1,0]")
    for k_, q in enumerate([O[0]+10] + [O[th]+i for th in range(2) for i in range(0, 8, 2)]):
        su(f"v_pk_fma_f32 {v(t+6,2)}, {v(q,2)}, 0, {v(t+6,2)} op_sel_hi:[1,0,1]")
        if k_ > 0: su(f"v_cvt_pk_bf16_f32 v{D+k_-1}, v{q}, v{q+1}")
    su(f"""
    v_cmp_u_f32 vcc, v{t+6}, v{t+7}
    v_cvt_pk_bf16_f32 v{D+8}, v{O[0]+8}, v{O[0]+9}
    v_cvt_pk_bf16_f32 v{D+9}, v{O[0]+10}, v{O[0]+11}
    s_or_b64 vcc, {s(sE,2)}, vcc
    s_cbranch_vccnz {name}_slow
    {name}_pub:""")
    if cfg.get("xb", 1) == 1: st("s_barrier")
    if f5 >= 0 and cfg.get("p5", 2) == 0: st(fld, "F")
    st(f"""
    buffer_store_dwordx4 {v(D,4)}, v{vu}, {s(sWS,4)}, s{sOa} offen sc1
    v_permlane32_swap_b32 v{D+8}, v{D+10}
    v_permlane32_swap_b32 v{D+9}, v{D+11}
    buffer_store_dwordx4 {v(D+4,4)}, v{vu}, {s(sWS,4)}, s{sOa} offen offset:512 sc1
    buffer_store_dwordx4 {v(D+8,4)}, v{vu+1}, {s(sWS,4)}, s{sOx} offen sc1
    """)
    if cfg.get("od", 0) & 1: st(f"""
    buffer_store_dwordx4 {v(D,4)}, v{vu}, {s(sWS,4)}, s{sOa} offen
    buffer_store_dwordx4 {v(D+4,4)}, v{vu}, {s(sWS,4)}, s{sOa} offen offset:512
    buffer_store_dwordx4 {v(D+8,4)}, v{vu+1}, {s(sWS,4)}, s{sOx} offen""")
    if cfg.get("xb", 1) == 2: st("s_barrier")
    if f5 == 2: st(fl5)
    if f5 >= 0 and cfg.get("p5", 2) == 1: st(fld, "F")
    stamp(a, 26)
    for i in range(3*lt): st(f"""v_add_u32 v{t+1}, {64*i}, v0
    v_mul_u32_u24 v{t+1}, 6554, v{t+1}
    v_lshrrev_b32 v{t+1}, 16, v{t+1}
    v_mul_u32_u24 v{t+1}, {1280-160}, v{t+1}
    v_add_u32 v{vo_[i]}, v{t+1}, v{vA[0]}""")
    act = [12+20*i for i in range(4)]
    al1 = lambda i, ks: (f"buffer_load_dwordx4 {v(act[i]+4*ks,4)}, v{vA[ks>>2]}, {s(sWS,4)}, s{sAct[i]} offen offset:{1024*(ks&3)} {CQ[cfg.get('c6', 0)]}", f"o{i}_{ks}")
    def ald(st_, i):
        for ks in range(5): st_(*al1(i, ks))
    ny = cfg.get("ny", 0); oi = cfg.get("oi", 4)
    if (f5 < 0 or cfg.get("p5", 2) == 2) and not cfg.get("nw", 0): st("s_waitcnt vmcnt(0)")
    if f5 >= 0 and cfg.get("p5", 2) == 2: st(fld, "F")
    if cfg.get("y0", 2) == 0 or cfg.get("xs", 70): st("s_barrier")
    assert cfg.get("y0", 2) or not cfg.get("xs", 70)
    if f5 >= 0: poll(st, "q", 29)
    st.w("wof")
    assert cfg.get("y0", 2) <= oi
    for i in range(oi):
        ald(st, i)
        if cfg.get("y0", 2) == i+1 and not ny: st("s_barrier")
    ac2 = [208, 228]; tc = 250; nq = cfg.get("nq", 1)
    ck = lambda i, ks: [f"v_max3_u32 v{tc+e}, v{act[i]+4*ks+2*e}, v{act[i]+4*ks+2*e+1}, v{tc+e}" if ks else f"v_max_u32 v{tc+e}, v{act[i]+2*e}, v{act[i]+2*e+1}" for e in range(2)]
    cke = f"v_max_u32 v{tc}, v{tc}, v{tc+1}\n v_cmp_eq_u32 vcc, -1, v{tc}"
    padd = lambda x, y: [f"v_pk_add_f32 {v(x+h2,2)}, {v(x+h2,2)}, {v(y+h2,2)}" for h2 in (0, 2)]
    for i in range(4):
        st(f"{name}_o{i}:")
        ex = [[] for m in range(25)]; br = f"s_cbranch_vccnz {name}_o{i}_retry\n {name}_o{i}_ok:"
        rdp = lambda d, q, c: (f"ds_read_b128 {v(q+4*c,4)}, v{aP[d+1]} offset:{(d*5120 if d < 3 else 0)+c*1024}", f"pr{d}{c}")
        ws_ = cfg.get("tw", 4) if i < 3 else cfg.get("tv", 2); yb = cfg.get("ty", 14)
        for c in range(5):
            if i: ex[ws_*c+1].append((f"ds_write_b128 v{aP[0]}, {v(ac2[(i-1)&1]+4*c,4)} offset:{(i-1)*5120+c*1024}", "pw"))
            if i == 2 and nq: ex[ws_*c].append(rdp(3, act[0], c))
            if i > nq: ex[ws_*c if i < 3 else c+yb-6].append(rdp((i+2) & 3, act[i-1], c))
            if i == 2: ex[min(ws_*c+8, 24)] += [("@", f"pr0{c}")] + unpk(padd(act[1]+4*c, act[0]+4*c), NP & 2)
            if i == 3: ex[yb+c].append(rdp(2, act[0], c)); ex[20+c] += [("@", f"pr2{c}")] + unpk(padd(act[0]+4*c, act[2]+4*c), NP & 2)
            ex[5*c+1 if i < 3 else c] += [("@", f"o{i}_{c}")] + ck(i, c)
        for m in range(5*oi, 20*(i == 0)): ex[(m-5*oi)*cfg.get("oj", 20)//(20-5*oi)].insert(0, al1(*divmod(m, 5)))
        ex[22 if i < 3 else 4].append(cke)
        if i == 3: ex[5].insert(0, br); ex[yb] = [("@", "pw"), "s_barrier"] + ex[yb]
        for ks in range(5):
            st.w(f"o{i}_{ks}")
            if ks == 0 and i in (0, 3): stamp(a, 27 if i == 0 else 28)
            for c in range(5):
                q = ac2[i & 1]+4*c
                st(f"{MF16} {v(q,4)}, {v(WO(ks,c),4)}, {v(act[i]+4*ks,4)}, {v(q,4) if ks else v(act[1]+4*c,4) if i == 3 else '0'}")
                st.run(ex[5*ks+c])
        if i < 3: st(br)
        if nq-ny <= i < 3: st.w("pw"); st("s_barrier")
    for c in range(5):
        q = ac2[1]+4*c; st.run(padd(q, act[0]+4*c))
        st(f"v_cvt_pk_bf16_f32 v{q}, v{q}, v{q+1}\n v_cvt_pk_bf16_f32 v{q+1}, v{q+2}, v{q+3}")
        st(f"ds_write_b64 v{vs}, {v(q,2)} offset:{15360+32*c}" if lt else f"buffer_store_dwordx2 {v(q,2)}, v{vs}, {s(sSP,4)}, s{sO} offen offset:{32*c}")
    for i in range(3*lt): st(f"ds_read_b128 {v(act[1]+4*i,4)}, v{aP[0]} offset:{15360+1024*i}", f"fo{i}")
    for i in range(3*lt):
        if i == 2: st("s_mov_b32 exec_hi, 0")
        st.w(f"fo{i}"); st(f"""buffer_store_dwordx4 {v(act[1]+4*i,4)}, v{vo_[i]}, {s(sSP,4)}, s{sO} offen offset:{1024*i} {["", "sc1", "nt", "sc0 sc1"][cfg.get("os", 0)]}""")
    if TS[0]: st("s_mov_b64 exec, -1")
    if TS[0] == 1: st(f"v_writelane_b32 v255, s{sCnt}, 5")
    wend(a, name)
    x = St(a)
    for p in "pq"[:1 + (f5 >= 0)]: x(f"""{name}_{p}retry:
    s_cmp_eq_u32 s{sCnt}, 0
    s_cbranch_scc1 {name}_{p}ok
    s_sub_u32 s{sCnt}, s{sCnt}, 1
    {fld}
    s_waitcnt vmcnt(0)
    s_branch {name}_{p}oll""")
    for i in range(4):
        x(f"{name}_o{i}_retry:\n s_cmp_eq_u32 s{sCnt}, 0\n s_cbranch_scc1 {name}_o{i}_ok\n s_sub_u32 s{sCnt}, s{sCnt}, 1")
        ald(x, i)
        for m in range(i+1, 4 if i else oi):
            x(f"s_waitcnt vmcnt({5*(4-m)})")
            for ks in range(5): x.run(ck(m, ks))
            x(f"{cke}\n s_cbranch_vccz {name}_o{i}_r{m}"); ald(x, m); x(f"{name}_o{i}_r{m}:")
        x(f"s_waitcnt vmcnt(0) lgkmcnt(0)\n s_branch {name}_o{i}")
    slow_path(a, name, sWS, sT, sN, [sWb[0], sWb[1], sB, sZb], mx, t, 254 if cfg.get("sa", 1) else 0)
    assert bool(cfg.get("sa", 1)) == bool(cfg.get("sb", 4))
```

```python
from kf import *
from kfA1 import span, gelu, unpk
Z2 = 104; Z1 = 136; ssr = [128, 132, 160, 164]; tg_ = 168; z1p = 176; sm = 188; vK1 = 192; raw = 196
aLw, aLr, vZn, aPark, aS, vSp, vF1, aTX, aPk = range(208, 217); vPk = [217, 218]; pkd = 224; kvd = 232; gr = 244
fl_ = fl
def waveB(E, st):
    a = E["a"]; name = E["name"]; cfg = E["cfg"]; S_ = E["S_"]; gS = E["gS"]; cR = E["cR"]
    sWS, sW, sT, sT2, sO, sN, sK, sTH, sHP, sE, sAct, sTag = [E[k] for k in "sWS sW sT sT2 sO sN sK sTH sHP sE sAct sTag".split()]
    sX = S_(4); sKW = S_(4); sKVo = S_(); sKVb = S_(); sCnt = S_(); sPk = S_(); sCw = S_(); sXo = S_(); sMx = S_(); sMz = S_(); sMq = S_(); sMk = S_(); sFl = S_()
    sMK = S_(2); sStr = S_(); sEx = S_(); sZs = S_(); sSt = S_(); sF2 = S_(); sF3 = S_(); sF4 = S_(); sPs = [S_(), S_()]; C = lambda k, d: cfg.get(k, d)/10; FS = cfg.get('fs', 7)
    TB = cfg.get("tsb", 0); stamp_ = globals()["stamp"]; stamp = (lambda a, k: None) if TB else stamp_
    def tb(b, odd):
        if TB and b != 4: a(f"s_bitcmp1_b32 s{sK}, 0\n s_cbranch_scc{1-odd} {name}_tb{b}_{odd}"); stamp_(a, b+1); a(f"{name}_tb{b}_{odd}:")
    vz = 4; vA = [11, 252]; t0, t1 = 253, 254
    vx = [12, 13]; vw = [14, 15, 16]; vq = [17, 18, 19]; vk = 20; vg = 21; aQx = 30; t = 22
    st(f"""{name}_B:
    s_setprio {cfg.get("p2", 0)}
    v_lshrrev_b32 v{t}, 3, v0
    s_lshl_b32 s{sT}, s{sK}, 4
    v_bfe_u32 v{t+1}, v0, 4, 2
    v_and_b32 v{t+2}, 7, v0
    s_lshl_b32 s{sT2}, s{S_TG}, 6
    v_xor_b32 v{t+1}, v{t+1}, v{t+2}
    s_add_u32 s{sT2}, s{sT2}, s{sT}
    v_add_u32 v{t}, s{sT2}, v{t}
    v_mul_u32_u24 v{t}, 0x500, v{t}
    v_lshl_add_u32 v{vx[0]}, v{t+1}, 4, v{t}
    s_mul_i32 s{sMz}, s{sK}, 3072
    v_xor_b32 v{vx[1]}, 64, v{vx[0]}
    s_lshl_b32 s{sT2}, s{sMz}, 4
    v_add_u32 v{vx[1]}, {8*1280-1024}, v{vx[1]}
    v_lshlrev_b32 v{vA[0]}, 4, v0
    """)
    for i in range(3):
        st(f"""v_add_u32 v{t}, {64*i}, v0
        v_mul_u32_u24 v{t}, 5462, v{t}
        v_lshrrev_b32 v{t}, 16, v{t}
        v_mul_u32_u24 v{t}, {3072-192}, v{t}
        v_add3_u32 v{vw[i]}, v{t}, v{vA[0]}, s{sT2}""")
    if cfg.get("stag", 1): st(f"""
    s_and_b32 s{sT}, s{S_J if E["JB"] < 3 else S_TG}, 3
    s_mul_i32 s{sT}, s{sT}, {cfg.get("sj", 3)}
    s_add_u32 s{sCw}, s{sT}, s{S_TG if E["JB"] < 3 else S_J}
    s_mul_i32 s{sT}, s{sCw}, 26
    s_lshr_b32 s{sT}, s{sT}, 8
    s_mul_i32 s{sT}, s{sT}, 10
    s_sub_u32 s{sCw}, s{sCw}, s{sT}""")
    else: st(f"s_mov_b32 s{sCw}, 0")
    st(f"""
    s_lshl_b32 s{sXo}, s{sCw}, 7
    s_lshl_b32 s{sMx}, s{sK}, 11
    s_add_u32 s{sMx}, s{sMx}, {X0}
    s_mul_i32 s{sMk}, s{sK}, 640
    v_add_u32 v{vk}, s{sMk}, v{vA[0]}
    s_mul_i32 s{sT}, s{S_J}, 192
    s_add_u32 s{sT}, s{sT}, 1536
    s_sub_u32 s{sW+2}, {640*3072}, s{sT}
    s_mov_b32 s{sW+3}, 0x20000
    s_mov_b32 s{sX+2}, {2048*1280}
    s_mov_b32 s{sX+3}, 0x20000
    s_cmp_lt_u32 s{S_J}, 2
    s_cselect_b32 s{sMK}, -1, 0
    s_cselect_b32 s{sMK+1}, 0xff, 0
    s_mov_b32 s{sKW+2}, 25600
    s_mov_b32 s{sKW+3}, 0x20000
    s_waitcnt lgkmcnt(0)
    s_mov_b32 s{sX}, s{P_X}
    s_mov_b32 s{sX+1}, s{P_X+1}
    s_add_u32 s{sW}, s{P_WIN}, s{sT}
    s_addc_u32 s{sW+1}, s{P_WIN+1}, 0
    s_bitcmp1_b32 s{S_J}, 0
    s_cselect_b32 s{sKW}, s{P_WV}, s{P_WK}
    s_cselect_b32 s{sKW+1}, s{P_WV+1}, s{P_WK+1}
    """)
    def dX(i):
        return [(f"""s_add_u32 m0, s{sMx}, {xblk(i)}
        s_add_u32 s{sT}, s{sXo}, 128
        buffer_load_dwordx4 v{vx[0]}, {s(sX,4)}, s{sXo} offen {CP[cfg.get('c2', 0)]} lds
        buffer_load_dwordx4 v{vx[1]}, {s(sX,4)}, s{sXo} offen offset:1024 {CP[cfg.get('c2', 0)]} lds
        s_cmp_eq_u32 s{sT}, 1280
        s_cselect_b32 s{sXo}, 0, s{sT}""", f"x{i}")]
    def dW(q):
        L = []; Q = q >= 10; x = ""
        if q < 10: L.append((f"""s_add_u32 m0, s{sMk}, {POS[q]+12288}
            s_mul_i32 s{sO}, s{sCw}, 2560
            s_mov_b64 exec, {s(sMK,2)}
            buffer_load_dwordx4 v{vk}, {s(sKW,4)}, s{sO} offen lds
            s_mov_b64 exec, -1""", f"w{q}"))
        if q == 10: x = f"""s_mul_i32 s{sT}, s{S_J}, 160
            s_add_u32 s{sE}, s{P_WQ}, s{sT}
            s_addc_u32 s{sE+1}, s{P_WQ+1}, 0
            s_sub_u32 s{sT}, {640*1280}, s{sT}
            s_sub_u32 s{sW}, s{sW}, 1536
            s_subb_u32 s{sW+1}, s{sW+1}, 0
            s_mul_i32 s{sCw}, s{sCw}, s{sStr}
            s_lshl_b32 s{sCw}, s{sCw}, 1
            s_cmp_lt_u32 s{sK}, 2
            s_cselect_b64 {s(sW,2)}, {s(sW,2)}, {s(sE,2)}
            s_cselect_b32 s{sW+2}, s{sW+2}, s{sT}\n"""
        x += f"s_add_u32 m0, s{sMq}, {POS[q]}\n s_add_u32 s{sO}, s{sCw}, s{sStr}\n" if Q else f"s_add_u32 m0, s{sMz}, {POS[q]}\n s_mul_i32 s{sO}, s{sCw}, {64*3072}\n"
        for i in range(3):
            x += f"buffer_load_dwordx4 v{(vq if Q else vw)[i]}, {s(sW,4)}, s{sCw if Q else sO} offen offset:{1024*i} {CP[cfg.get('c3', 0)]} lds\n"
            if i == 0 and not Q: x += f"s_add_u32 s{sCw}, s{sCw}, 1\n s_cmp_eq_u32 s{sCw}, 10\n s_cselect_b32 s{sCw}, 0, s{sCw}"
            if i == 2 and Q: x += f"s_cmp_eq_u32 s{sO}, s{sEx}\n s_cselect_b32 s{sCw}, 0, s{sO}"
            L.append((x, f"w{q}")); x = ""
        return L
    st(f"s_mov_b32 s{sN}, s{sXo}")
    n0 = cfg.get("n0", 3); nb = cfg.get("nb", 2); xq = list(range(10)); wq = list(range(30))
    def issue(b, n):
        L = []
        for i in range(n):
            if xq: L += dX(xq.pop(0))
            if wq and FREE[wq[0]] <= b: L += dW(wq.pop(0))
        return L
    st.run(issue(-1, n0))
    srd(a, sWS, P_WS, WS_END)
    st(f"s_mov_b32 s{sT}, {hx(WS_EP)}\n s_load_dword s{sTag}, {s(P_WS,2)}, s{sT}")
    st(f"""
    s_mul_i32 s{sT}, s{sK}, 320
    s_add_u32 s{sT}, s{sT}, s{sN}
    v_add_u32 v{vg}, s{sT}, v{vA[0]}
    v_subrev_u32 v{t}, 1280, v{vg}
    v_min_u32 v{vg}, v{vg}, v{t}
    s_and_b32 s{sT}, s{sK}, 1
    s_mul_i32 s{sMq}, s{sT}, 6144
    s_mul_i32 s{sT2}, s{sT}, {16*1280}
    s_cmp_lt_u32 s{sK}, 2
    s_cselect_b32 s{sStr}, {32*3072}, {0}
    s_cselect_b64 vcc, -1, 0
    s_cselect_b32 s{sT}, 0, 3072
    s_add_u32 s{sMq}, s{sMq}, s{sT}
    s_max_u32 s{sStr}, s{sStr}, {32*1280}
    s_mul_i32 s{sEx}, s{sStr}, 20
    """)
    for i in range(3):
        st(f"""v_add_u32 v{t}, {64*i}, v0
        v_mul_u32_u24 v{t}, 6554, v{t}
        v_lshrrev_b32 v{t}, 16, v{t}
        v_mul_u32_u24 v{t+1}, 160, v{t}
        v_sub_u32 v{t+1}, v{vA[0]}, v{t+1}
        v_and_b32 v{t+2}, 8, v{t}
        v_bfe_u32 v{t+3}, v{t}, 1, 2
        v_and_b32 v{t}, 1, v{t}
        v_lshl_add_u32 v{t}, v{t}, 2, v{t+3}
        v_add_u32 v{t}, v{t}, v{t+2}
        v_mul_u32_u24 v{t}, 0x500, v{t}
        v_add3_u32 v{vq[i]}, v{t}, v{t+1}, s{sT2}
        {f"s_mov_b32 exec_lo, 0{chr(10)} v_mov_b32 v{vq[i]}, -4.0{chr(10)} s_mov_b32 exec_lo, -1" if i == 2 else ""}
        v_cndmask_b32 v{vq[i]}, v{vq[i]}, v{vw[i]}, vcc""")
    E["common"](st)
    kv_addr(st, t)
    st(f"""
    s_add_u32 s{sKVb}, s{sMz}, {KV0}
    v_add_u32 v{vz}, s{sMz}, v{vA[0]}
    v_add_u32 v{aQx}, {QX}, v{vz}
    s_lshr_b32 s{sKVo}, s{S_TG}, 1
    s_mul_i32 s{sKVo}, s{sKVo}, {KVS}
    s_add_u32 s{sKVo}, s{sKVo}, {hx(WS_KV)}
    v_add_u32 v{vA[1]}, 0x1000, v{vA[0]}
    s_mov_b32 s{sCnt}, 0x8000
    s_mov_b32 s{sFl}, {hx(FL1)}
    s_and_b32 s{sT}, s{S_TG}, 30
    v_min_u32 v{t0}, {cfg.get("nf", 12)-1}, v0
    v_lshl_add_u32 v{t0}, s{sT}, 1, v{t0}
    v_and_b32 v{t0}, 63, v{t0}
    v_lshlrev_b32 v{t0}, {FS}, v{t0}
    s_lshl_b32 s{sT}, s{S_J}, 2
    s_add_u32 s{sT}, s{sT}, s{sK}
    s_lshl_b32 s{sF4}, s{sT}, {FS+5}
    s_add_u32 s{sF4}, s{sF4}, {hx(FL4)}
    s_mul_i32 s{sPk}, s{sT}, {11*5120}
    s_add_u32 s{sPk}, s{sPk}, {hx(WS_PK)}
    s_mul_i32 s{sT}, s{sK}, 6144
    s_add_u32 s{sT}, s{sT}, {hx(WS_ACT+20*1024)}
    """)
    for i in range(4): st(f"s_add_u32 s{sAct[i]}, s{sAct[i]}, s{sT}")
    def kv(c):
        L = [(f"s_add_u32 m0, s{sKVb}, {slot(c)}\n s_nop 0\n" if i == 0 else "") + f"buffer_load_dwordx4 v{vz}, {s(sWS,4)}, s{sKVo} offen offset:{1024*i} {CQ[cfg.get('c7', 0)]} lds" for i in range(3)]
        L[2] += f"\n s_add_u32 s{sKVo}, s{sKVo}, {KVS}\n s_cmp_eq_u32 s{sKVo}, {hx(WS_KV+16*KVS)}\n s_cselect_b32 s{sKVo}, {hx(WS_KV)}, s{sKVo}"
        return [(x, f"kv{c}") for x in L]
    fl = lambda sF: f"buffer_load_dword v{t1}, v{t0}, {s(sWS,4)}, s{sF} offen sc1"
    polls = []
    def poll(nm, sF, k):
        def f(st_):
            st_(f"{name}_{nm}poll:"); st_.w("F")
            st_(f"v_cmp_ne_u32 vcc, s{sTag}, v{t1}\n s_cbranch_vccnz {name}_{nm}retry\n {name}_{nm}ok:"); polls.append((nm, sF))
            if k: stamp(a, k)
        return f
    flag = lambda tag, sF, o=0: ["s_mov_b64 exec, 1", ("@", tag), f"buffer_store_dword v{gr+1}, off, {s(sWS,4)}, s{sF} sc1\n s_mov_b64 exec, -1"]
    ex = [[] for b in range(47)]
    def put(items, w0, w1):
        for i, it in enumerate(items): x = w0 + (w1-w0)*(i+0.5)/len(items); ex[int(x)].append((x, it))
    h, e, tok = t+1, t+2, t+3; T = kvd+4
    put([f"""
    v_lshrrev_b32 v{h}, 5, v0
    v_bfe_u32 v{e}, v0, 2, 2
    v_and_b32 v{tok}, 31, v0
    v_and_b32 v{t+5}, 3, v0
    s_lshl_b32 s{sT}, s{sTH}, 1
    s_add_u32 s{sT}, s{sT}, s{sHP}
    s_lshl_b32 s{sT}, s{sT}, 9
    s_add_u32 s{sT}, s{sT}, {STX}
    v_lshl_add_u32 v{aS}, v0, 3, s{sT}""", f"""
    s_lshl_b32 s{sT}, s{sK}, 10
    s_add_u32 s{sT}, s{sT}, {LNS}
    v_lshl_add_u32 v{aLw}, v{tok}, 5, s{sT}
    v_lshl_add_u32 v{aLw}, v{h}, 3, v{aLw}
    v_lshrrev_b32 v{t+6}, 4, v0
    v_lshl_add_u32 v{aLr}, v{t+6}, 3, v{e}
    v_lshl_add_u32 v{aLr}, v{aLr}, 5, s{sT}
    v_lshl_add_u32 v{aLr}, v{t+5}, 3, v{aLr}""", f"""
    v_mul_u32_u24 v{vZn}, 3072, v{h}
    v_and_b32 v{t+6}, 1, v{t+6}
    v_lshl_add_u32 v{vZn}, v{t+6}, 9, v{vZn}
    v_and_b32 v{t+6}, 7, v0
    v_lshl_add_u32 v{vZn}, v{t+6}, 4, v{vZn}
    v_bfe_u32 v{t+6}, v0, 3, 1
    v_lshl_add_u32 v{vZn}, v{t+6}, 8, v{vZn}
    v_add_u32 v{aTX}, {TX}, v{vz}""", f"""
    s_lshl_b32 s{sT}, s{S_TG}, 1
    s_add_u32 s{sT}, s{sT}, s{sTH}
    s_lshl_b32 s{sSt}, s{sT}, 12
    s_add_u32 s{sSt}, s{sSt}, {hx(WS_ST2)}
    s_mul_i32 s{sZs}, s{sT}, 6144
    s_mul_i32 s{sT}, s{S_J}, {128*3072}
    s_add_u32 s{sZs}, s{sZs}, s{sT}
    s_lshl_b32 s{sT}, s{sHP}, 7
    s_add_u32 s{sZs}, s{sZs}, s{sT}
    s_add_u32 s{sZs}, s{sZs}, {hx(WS_Z2N)}""", f"""
    s_lshl_b32 s{sT}, s{S_J}, 5
    s_add_u32 s{sT}, s{sT}, s{S_TG}
    s_lshl_b32 s{sT}, s{sT}, 2
    s_add_u32 s{sT}, s{sT}, s{sK}
    s_lshl_b32 s{sF2}, s{sT}, {FS}
    s_lshl_b32 s{sT}, s{S_TG}, 2
    s_add_u32 s{sT}, s{sT}, s{sK}
    s_lshl_b32 s{sT}, s{sT}, {FS+3}
    s_add_u32 s{sF3}, s{sT}, {hx(FL3)}""", f"""
    s_lshl_b32 s{sT2}, s{sHP}, 5
    s_sub_u32 s{sT2}, 32, s{sT2}
    v_cmp_gt_u32 vcc, s{sT2}, v0
    s_lshl_b32 s{sT}, s{S_J}, 9
    v_add_u32 v{t+6}, s{sT}, v{vA[0]}
    v_cndmask_b32 v{vSp}, -4.0, v{t+6}, vcc
    v_mov_b32 v{vK1}, {fl_(-GK1)}
    v_mov_b64 {v(sm,2)}, 0
    v_mov_b64 {v(sm+2,2)}, 0""",
    f"""s_lshr_b32 s{sT}, s{S_TG}, 1
    s_mul_i32 s{sN}, s{sT}, {KVS}
    s_and_b32 s{sT}, s{S_TG}, 1
    s_lshl_b32 s{sT2}, s{sT}, 1
    s_add_u32 s{sT2}, s{sT2}, s{sTH}
    s_mul_i32 s{sKW+2}, s{sT2}, 1536
    s_add_u32 s{sKW+2}, s{sKW+2}, 5120
    s_lshl_b32 s{sT2}, s{sT2}, 10
    s_lshl_b32 s{sT}, s{sT}, 9
    s_add_u32 s{sT}, s{sT}, 0x1000
    s_cmp_eq_u32 s{sHP}, 0
    s_cselect_b32 s{sT}, s{sT2}, s{sT}
    s_cselect_b32 s{sT2}, 16, 0x400
    v_add_u32 v{T}, s{sT2}, v{aLw}
    s_cmp_eq_u32 s{S_J}, 0
    s_cselect_b32 s{sT}, s{sT}, s{sKW+2}
    s_cselect_b64 {s(sMK,2)}, -1, 0
    s_add_u32 s{sN}, s{sN}, s{sT}
    s_add_u32 s{sN}, s{sN}, {hx(WS_KV)}
    s_cmp_lt_u32 s{S_J}, 2
    s_cselect_b32 s{sKW+2}, s{sN}, {hx(WS_END)}""", (not cfg.get("sb", 4))*f"""
    v_bfe_u32 v{T+1}, v0, 4, 1
    v_lshlrev_b32 v{T+1}, 7, v{T+1}
    v_sub_u32 v{T+1}, v{aLr}, v{T+1}""" + f"""
    s_lshl_b32 s{sT}, s{sHP}, 4
    v_and_b32 v{t+4}, 15, v0
    v_add_u32 v{t+4}, s{sT}, v{t+4}
    v_lshrrev_b32 v{T+2}, 4, v0
    v_mul_u32_u24 v{T+2}, 0x180, v{T+2}
    v_lshl_add_u32 v{T+2}, v{t+4}, 4, v{T+2}
    v_mov_b32 v{T+3}, 0x3f803f80
    v_cmp_eq_u32 vcc, 20, v{t+4}
    v_cmp_gt_u32 {s(sKW,2)}, 24, v{t+4}
    s_lshl_b32 s{sT}, s{sK}, 5
    s_sub_u32 s{sT}, 96, s{sT}
    v_cndmask_b32 v{T+3}, 0, v{T+3}, vcc
    v_cmp_gt_u32 vcc, s{sT}, v0
    v_cndmask_b32 v{T+2}, -4.0, v{T+2}, {s(sKW,2)}
    v_cmp_gt_u32 {s(sKW,2)}, 20, v{t+4}
    v_cndmask_b32 v{t+4}, -4.0, v{vA[0]}, vcc
    v_cndmask_b32 v{T+2}, v{T+2}, v{t+4}, {s(sMK,2)}
    s_or_b64 {s(sKW,2)}, {s(sKW,2)}, {s(sMK,2)}""",
    f"""s_and_b32 s{sT}, s{S_TG}, 7
    s_lshl_b32 s{sT}, s{sT}, 2
    s_add_u32 s{sT}, s{sT}, s{sK}
    s_lshr_b32 s{sT2}, s{S_TG}, 3
    s_lshl_b32 s{sN}, s{S_J}, 2
    s_add_u32 s{sN}, s{sN}, s{sT2}
    s_mul_i32 s{sN}, s{sN}, 55
    s_add_u32 s{sN}, s{sN}, s{sT}
    s_lshl_b32 s{sN}, s{sN}, 10
    s_add_u32 s{sPs[0]}, s{sN}, {hx(WS_PK)}
    s_add_u32 s{sPs[1]}, s{sN}, {hx(WS_PK+30*1024)}
    s_cmp_lt_u32 s{sT}, 30
    s_cselect_b32 s{sPs[0]}, s{sPs[0]}, {hx(WS_END)}
    s_cmp_lt_u32 s{sT}, 25
    s_cselect_b32 s{sPs[1]}, s{sPs[1]}, {hx(WS_END)}
    s_mul_i32 s{sE}, s{sT}, 52
    s_lshr_b32 s{sE}, s{sE}, 8
    s_sub_u32 s{sN}, s{S_J}, s{sE}
    s_mul_i32 s{sN}, s{sN}, 5
    s_add_u32 s{sN}, s{sN}, s{sT}
    s_lshl_b32 s{sN}, s{sN}, 5
    v_and_b32 v{t}, 1, v0
    v_lshl_add_u32 v{t}, v{t}, 4, s{sN}
    v_bfe_u32 v{t+4}, v0, 1, 2
    v_bfe_u32 v{t+5}, v0, 3, 1
    v_bfe_u32 v{t+6}, v0, 4, 1""", f"""
    s_lshr_b32 s{sT2}, s{S_TG}, 3
    s_mul_i32 s{sN}, s{sT2}, 12
    s_add_u32 s{sN}, s{sN}, s{sE}
    s_cmp_ge_u32 s{sE}, 3
    s_cselect_b32 s{sT}, 3, 0
    s_add_u32 s{sN}, s{sN}, s{sT}
    s_lshl_b32 s{sN}, s{sN}, 4
    v_lshl_add_u32 v{vPk[0]}, v{t+5}, 2, v{t+4}
    v_mad_u32_u24 v{vPk[0]}, v{t+6}, 48, v{vPk[0]}
    v_lshl_add_u32 v{vPk[0]}, v{h}, 3, v{vPk[0]}
    v_add_u32 v{vPk[0]}, s{sN}, v{vPk[0]}
    v_mul_u32_u24 v{vPk[0]}, 0x500, v{vPk[0]}
    v_add_u32 v{vPk[0]}, v{vPk[0]}, v{t}""", f"""
    s_and_b32 s{sT}, s{sE}, 1
    s_and_b32 s{sN}, s{sE}, 2
    s_lshl_b32 s{sN}, s{sN}, 1
    s_add_u32 s{sN}, s{sN}, s{sT}
    s_mul_i32 s{sN}, s{sN}, 20
    s_cmp_eq_u32 s{sE}, 4
    s_cselect_b32 s{sN}, 16, s{sN}
    s_cselect_b32 s{sT}, 20, 4
    v_mad_u32_u24 v{vPk[1]}, v{t+5}, s{sT}, v{t+4}
    s_cselect_b32 s{sT}, 80, 40
    v_mad_u32_u24 v{vPk[1]}, v{t+6}, s{sT}, v{vPk[1]}
    s_cselect_b32 s{sT}, 40, 8
    v_mad_u32_u24 v{vPk[1]}, v{h}, s{sT}, v{vPk[1]}
    s_lshr_b32 s{sT2}, s{S_TG}, 3
    s_mul_i32 s{sT2}, s{sT2}, 160
    s_add_u32 s{sN}, s{sN}, s{sT2}
    v_add_u32 v{vPk[1]}, s{sN}, v{vPk[1]}
    v_mul_u32_u24 v{vPk[1]}, 0x500, v{vPk[1]}
    v_add_u32 v{vPk[1]}, v{vPk[1]}, v{t}
    s_lshl_b32 s{sT}, s{sK}, 11
    s_add_u32 s{sMk}, s{sT}, {PKS}
    v_lshl_add_u32 v{aPk}, v0, 3, s{sMk}""", f"""
    s_waitcnt lgkmcnt(0)
    s_add_u32 s{sTag}, s{sTag}, {hx(TAGC)}
    v_mov_b32 v{gr+1}, s{sTag}
    v_mov_b32 v{gr+3}, s{sTag}
    s_lshl_b32 s{sT}, s{S_TG}, 1
    s_add_u32 s{sT}, s{sT}, s{S_J}
    s_lshl_b32 s{sT}, s{sT}, {FS}
    s_add_u32 s{sXo}, s{sT}, {hx(FL1)}
    s_lshl_b32 s{sT}, s{sK}, 1
    s_or_b32 s{sT}, s{sT}, s{S_J}
    s_cmp_lt_u32 s{sT}, 2
    s_cselect_b32 s{sXo}, s{sXo}, {hx(WS_END)}"""], 6, 12)
    gate = (f"""s_mul_i32 s{sT}, s{sK}, 320
    s_add_u32 m0, s{sT}, {GATE}
    s_mov_b32 s{sX}, s{P_GW}
    s_mov_b32 s{sX+1}, s{P_GW+1}
    s_mov_b32 s{sX+2}, 1280
    s_mov_b64 exec, 0xfffff
    buffer_load_dwordx4 v{vg}, {s(sX,4)}, 0 offen lds
    s_mov_b64 exec, -1""", "x10")
    kvs = [(f"""ds_read_b64_tr_b16 {v(kvd,2)}, v{aLr if cfg.get("sb", 4) else T+1}
    ds_read_b64_tr_b16 {v(kvd+2,2)}, {f"v{aLr} offset:128" if cfg.get("sb", 4) else f"v{T+1} offset:256"}
    s_mov_b64 exec, {s(sMK,2)}
    ds_read_b64 {v(kvd,2)}, v{aLw}
    ds_read_b64 {v(kvd+2,2)}, v{T}
    s_mov_b64 exec, -1""", "kr"), [("@", "kr")] + [f"v_cndmask_b32 v{kvd+i}, v{T+3}, v{kvd+i}, {s(sKW,2)}" for i in range(4)] +
    [(f"buffer_store_dwordx4 {v(kvd,4)}, v{T+2}, {s(sWS,4)}, s{sKW+2} offen sc1", "kvs")]]
    g2 = C("g2", 219); hl = 1
    for n in range(3): put([(f"ds_read_b128 {v(raw+4*n,4)}, v{aTX} offset:{1024*n}", f"tx{n}")] , 11+n+hl, 11+n+hl)
    put(kvs[:1], 12, 12); put(kvs[1:], C("kp", 128), C("kp", 128))
    def gz(g):
        X = range(Z2+8*g, Z2+8*g+8); L = [f"v_lshlrev_b32 v{x}, 16, v{raw+4*g+i}\n v_and_b32 v{x+1}, 0xffff0000, v{raw+4*g+i}" for i, x in enumerate(X[::2])]
        return [[("@", f"tx{g}"), L[0]]] + L[1:] + gelu(X, tg_, vK1, ("v_add_f32 {s1}, {s1}, {x}", "v_fmac_f32 {s2}, {x}, {x}"), s1=sm, s2=sm+2)
    assert g2 >= 14.2+hl
    put(gz(0) + gz(1) + gz(2) +
        [f"v_add_f32 v{sm}, v{sm}, v{sm+1}\n v_add_f32 v{sm+1}, v{sm+2}, v{sm+3}\n v_mov_b64 {v(tg_,2)}, {v(sm,2)}\n s_nop 1\n v_permlane32_swap_b32 v{sm}, v{tg_}\n v_permlane32_swap_b32 v{sm+1}, v{tg_+1}",
         (f"v_add_f32 v{sm}, v{sm}, v{tg_}\n v_add_f32 v{sm+1}, v{sm+1}, v{tg_+1}\n ds_write_b64 v{aS}, {v(sm,2)}", "stx")], 11.1+hl, g2)
    put([(f"ds_read_b64 {v(tg_,2)}, v{aS} offset:512", "sty"),
         [("@", "sty"), f"""v_add_f32 v{gr}, v{sm}, v{tg_}
         v_add_f32 v{gr+2}, v{sm+1}, v{tg_+1}
         buffer_store_dwordx4 {v(gr,4)}, v{vSp}, {s(sWS,4)}, s{sSt} offen sc1"""]], int(g2)+1, int(g2)+1)
    f1b = cfg.get("f1b", 16)
    put([flag("kvs", sXo)], f1b, f1b)
    sld = [(f"buffer_load_dwordx4 {v(ssr[i],4)}, v{vA[0]}, {s(sWS,4)}, s{sSt} offen offset:{1024*i} sc1", "ss") for i in range(4)]
    m, n_ = tg_+2, tg_+3; mu = sm
    def schk(st_):
        st_(f"{name}_schk:"); st_.w("ss")
        G_ = [x+o for x in ssr for o in (1, 3)]
        for op, d in (("max", m), ("min", n_)):
            st_(f"v_{op}3_u32 v{d}, v{G_[0]}, v{G_[1]}, s{sTag}")
            for i in (2, 4, 6): st_(f"v_{op}3_u32 v{d}, v{G_[i]}, v{G_[i+1]}, v{d}")
        st_(f"v_cmp_ne_u32 vcc, v{m}, v{n_}\n s_cbranch_vccnz {name}_sretry\n {name}_sok:")
        stamp(a, 4)
    LN = [schk]
    for o in (0, 2): LN += [f"v_add_f32 v{m}, v{ssr[0]+o}, v{ssr[1]+o}\n v_add_f32 v{n_}, v{ssr[2]+o}, v{ssr[3]+o}\n v_add_f32 v{mu+o//2}, v{m}, v{n_}"]
    LN += [f"v_mov_b64 {v(m,2)}, {v(mu,2)}\n s_nop 1\n v_permlane32_swap_b32 v{mu}, v{m}\n v_permlane32_swap_b32 v{mu+1}, v{m+1}",
           f"v_add_f32 v{mu}, v{mu}, v{m}\n v_add_f32 v{mu+1}, v{mu+1}, v{m+1}\n v_mul_f32 v{mu}, {fl_(1/768)}, v{mu}\n v_mul_f32 v{mu+1}, {fl_(1/768)}, v{mu+1}",
           f"v_fma_f32 v{mu+1}, -v{mu}, v{mu}, v{mu+1}\n v_max_f32 v{mu+1}, 0, v{mu+1}\n v_add_f32 v{mu+1}, {fl_(1e-5)}, v{mu+1}\n v_rsq_f32 v{mu+1}, v{mu+1}\n s_nop 0\n v_mul_f32 v{mu}, v{mu}, v{mu+1}"]
    zst = lambda n: [("@", "tr"), (f"buffer_store_dwordx4 {v(Z2+8*n,4)}, v{vZn}, {s(sWS,4)}, s{sZs} offen offset:{1024*n} sc1", "zn")]
    for n in range(3):
        for a_ in range(2):
            q = Z2+8*n+4*a_
            LN += [f"v_fma_f32 v{q+i}, v{q+i}, v{mu+1}, -v{mu}\n v_fma_f32 v{q+i+1}, v{q+i+1}, v{mu+1}, -v{mu}" for i in (0, 2)]
            LN += [f"v_cvt_pk_bf16_f32 v{q}, v{q}, v{q+1}\n v_cvt_pk_bf16_f32 v{q+1}, v{q+2}, v{q+3}\n ds_write_b64 v{aLw}, {v(q,2)} offset:{16*a_}"]
            if a_ == 0 and n: LN.append(zst(n-1))
        LN += [(f"ds_read_b64_tr_b16 {v(Z2+8*n,2)}, v{aLr}\n ds_read_b64_tr_b16 {v(Z2+8*n+2,2)}, v{aLr} offset:128", "tr")]
    LN.append(zst(2))
    sl, l0, l1 = C("sl", 285), C("l0", 293), C("l1", 299)
    put(sld, sl, sl+0.5); put(LN, l0, l1)
    if C("pl", 280): put(["s_setprio 2"], C("pl", 280), C("pl", 280)); put([f"s_setprio {cfg.get('p2', 0)}"], 29.99, 29.99)
    b1 = C("b1", 258); b2 = C("b2", 280); kd = C("kd", 5); assert b2 >= 21
    put([(fl(sFl), "F")], b1, b1)
    put([poll("k", sFl, 3)], b2, b2)
    for c in range(3): put([kv(c)], b2+0.01+c*kd, b2+0.01+c*kd)
    put([(f"v_lshlrev_b32 v{t0}, {FS}, v0\n" + fl(sFl), "F")], C("b3", 290), C("b3", 290))
    put([poll("l", sFl, 0)], 30.99, 30.99)
    for b in range(30):
        lstamp(a, 2*b); st.w(f"w{b}", f"x{b}", "stx", *(["kvs"] if b == f1b else []), *(["tx2"] if b == TXF else []))
        tb(b, 1); st("s_barrier"); tb(b, 0); lstamp(a, 2*b+1)
        if b in (0, 10, 20): stamp(a, {0: 1, 10: 2, 20: 6}[b])
        D = issue(b, nb if b >= cfg.get("nc", 0) else 1) + ([gate] if b == cfg.get("gb", 5) else []); assert b < cfg.get("gb", 5) or not xq
        L = [(b + 0.01 + C("dsp", 7)*i/len(D), x) for i, x in enumerate(D)] + ex[b]
        for x in sorted(L, key=lambda y: y[0]): st.run(x[1])
    assert not xq and not wq
    lstamp(a, 60); st.w("kv0", "stx")
    st("s_barrier"); stamp(a, 7); lstamp(a, 61); lstamp(a, None)
    if TS[0] == 2: a("s_memrealtime s[98:99]")
    for i in range(3): st(f"ds_read_b128 {v(r.Q16[0]+4*i,4)}, v{aQx} offset:{1024*i}", "Q")
    pb = cfg.get("pb", 0)
    sc = attention(1, [[0]*4]*16, None, lambda c: [f"kv{c+1}"], lambda c: [(lambda st_, c=c: stamp(a, 8+c))], lambda c, i: pb if (c, i) == (0, 0) and pb != cfg.get("p2", 0) else 2 if 4*c+i == cfg.get("pc", -1) else None, cfg.get("sb", 4), 251)
    for c in range(13): sc.place(kv(c+3), c+1, 0.02, 0.15)
    for x, it in sorted(sum(ex[30:], []), key=lambda y: y[0]): span(sc, [it], x, x, 30)
    WU = lambda ks, c: BIG+4*(5*ks+c)
    w0 = cfg.get("w0", 11); w1 = cfg.get("w1", 16); L = pkloads(BIG, 30, 249 if cfg.get("xp", 0) & 1 else vA[0], sWS, sPk, "wu", cfg)
    if cfg.get("xp", 0) & 1: st("v_mov_b32 v249, 0")
    span(sc, [flag("zn", sF2)], C("f2", 10), C("f2", 10), 0)
    pkl = lambda i, ptr, n: (f"""s_mov_b32 s{sX}, s{ptr}
    s_mov_b32 s{sX+1}, s{ptr+1}
    s_add_u32 m0, s{sMk}, {1024*i}
    s_mov_b32 s{sX+2}, {n*1280}
    buffer_load_dwordx4 v{vPk[i]}, {s(sX,4)}, 0 offen lds""", "pk")
    span(sc, [pkl(0, P_WOUT, 768), pkl(1, P_WO, 640)], C("k0", 42), C("k0", 42)+0.3, 0)
    span(sc, [[("@", "pk")] + [(f"ds_read_b64_tr_b16 {v(pkd+2*i,2)}, v{aPk} offset:{512*i}", "pr") for i in range(4)]] +
         [[("@", "pr"), (f"buffer_store_dwordx4 {v(pkd+4*i,4)}, v{vA[0]}, {s(sWS,4)}, s{sPs[i]} offen sc1", "ps")] for i in range(2)], C("k1", 55), C("k1", 55)+0.3, 0)
    span(sc, [[f"s_add_u32 s{sF2}, s{sF2}, {hx(FL4)}"] + flag("ps", sF2)], C("k2", 62), C("k2", 62), 0)
    span(sc, [(f"v_and_b32 v{t0}, {hx((32 << FS)-1)}, v{t0}\n" + fl(sF4), "F")], w0-0.7, w0-0.7, 0)
    span(sc, [poll("w", sF4, 0)], w0+0.18, w0+0.18, 0)
    assert l1-30 < C("f2", 10) < C("k2", 62) < w0-0.7 and (C("k0", 42) < .71 or 1 < cfg.get("k0", 42) % 10 < 8)
    wd = cfg.get("wd", 0); cn = [30*(w+1-w0)//(w1-w0) - 30*(w-w0)//(w1-w0) for w in range(w0, w1)]
    if wd: cn = [wd // 100**(w1-1-w) % 100 for w in range(w0, w1)]
    assert sum(cn) == 30
    for w in range(w0, w1):
        if cn[w-w0]: sc.place(L[sum(cn[:w-w0]):sum(cn[:w+1-w0])], w, 0.2 if w < 14 else cfg.get("wf", 20)/100, 0.9 if w != 14 else cfg.get("wg", 90)/100)
    act = [224, 12, 36, 60]
    def ald(i): return [(f"buffer_load_dwordx4 {v(act[i]+4*ks,4)}, v{vA[ks>>2]}, {s(sWS,4)}, s{sAct[i]} offen offset:{1024*(ks&3)} {CQ[cfg.get('c8', 0)]}", f"{name}_u{i}") for ks in range(6)]
    aP = [5, 6, 7, 8, 9]; aO = 10
    sc.place([f"""s_mul_i32 s{sT}, s{sK}, 6144
    v_add_u32 v{aO}, s{sT}, v{r.aK}
    s_mul_i32 s{sT}, s{sK}, 5120
    v_add_u32 v{aP[4]}, s{sT}, v{r.aK}"""] + [f"""s_xor_b32 s{sT}, s{sK}, {d}
    s_mul_i32 s{sT}, s{sT}, 15360
    s_add_u32 s{sT}, s{sT}, {PB0}
    v_add_u32 v{aP[d]}, s{sT}, v{vA[0]}""" for d in range(4)] + [f"""s_lshl_b32 s{sT}, s{S_TG}, 3
    s_add_u32 s{sT}, s{sT}, s{S_J}
    s_lshl_b32 s{sT}, s{sT}, {FS}
    s_add_u32 s{sT}, s{sT}, {hx(FL5)}
    s_cmp_eq_u32 s{sK}, 0
    s_cselect_b32 s{sF4}, s{sT}, {hx(WS_END)}"""]*(cfg.get("f5", -1) > 2), 15, 0.3, 0.8)
    span(sc, [(f"v_and_b32 v{t0}, {hx((8 << FS)-1)}, v{t0}\n" + fl(sF3), "F")], C("u3", 157), C("u3", 157), 0)
    u0 = cfg.get("u0", 50); assert u0 < 100 or 0 <= cfg.get("f5", -1) < 3 or cfg.get("y0", 2) == 0 or cfg.get("xb", 1) or cfg.get("xs", 70)
    ud = C("ud", 0); aU = 248
    dld = lambda i: [((f"s_add_u32 m0, s{sMk}, {6144*(i-1)+1024*ks}\n s_nop 0\n" if ks & 3 == 0 else "") +
        f"buffer_load_dwordx4 v{vA[ks>>2]}, {s(sWS,4)}, s{sAct[i]} offen offset:{1024*(ks&3)} sc1 lds", f"ud{i}") for ks in range(6)]
    if ud:
        assert C("u3", 157) < ud >= cR+2; u0 = -1
        sc.place([f"s_mul_i32 s{sMk}, s{sK}, {AA}\n v_add_u32 v{aU}, s{sMk}, v{vA[0]}"], 13, 0.5, 0.5)
        span(sc, [poll("u", sF3, 0)] + ald(0) + dld(1) + dld(2) + dld(3), ud, C("ue", 163), 0)
    elif u0 < 100: sc.place([poll("u", sF3, 0)] + ald(0), 16, u0/100, 0.95)
    sc.emit(st)
    f5 = cfg.get("f5", -1); fl5 = f"s_mov_b64 exec, 1\n buffer_store_dword v{t1}, off, {s(sWS,4)}, s{sF4} sc1\n s_mov_b64 exec, -1"
    if f5 == 4: st(fl5)
    for th in range(2):
        if th: st("s_nop 8")
        for i in range(3): st(f"ds_write_b128 v{aO}, {v(r.O[th]+4*i,4)} offset:{(3*th+i)*1024}", "po")
    ua = cfg.get("ua", 1)
    if 0 <= u0 < 100 and not ua: st.run(ald(1))
    if cfg.get("pc", -1) >= 0: st("s_setprio 0")
    st.w("po")
    stamp(a, 24); st("s_barrier"); stamp(a, 25)
    if TS[0] == 2: a("s_memrealtime s[96:97]")
    if u0 >= 100: st.run([poll("u", sF3, 0)] + ald(0) + ald(1))
    if 0 <= u0 < 100 and ua == 1: st.run(ald(1))
    if f5 == 3: st(fl5)
    ub = divmod(cfg.get("ub", 2045), 100)
    ac = [84, 224, 84, 224]; tc = 250; pr = [12, 36, 84]
    if ud: ub = (-1, -1)
    ny = cfg.get("ny", 0); assert not ny or (68 <= cfg.get("xs", 70) <= 90 and cfg.get("nq", 1) == 1)
    for e in range(2):
        if ub[e] == 0: st.run(ald(2+e))
    if cfg.get("xb", 1): st("s_barrier")
    for i in range(4):
        st.w(f"{name}_u{i}")
        stamp(a, 26+i)
        ex = {}
        if i > 0:
            for c in range(5): ex[c+2] = (f"ds_write_b128 v{aP[0]}, {v(ac[i-1]+4*c,4)} offset:{(i-1)*5120+c*1024}", "pw")
        if ud and i < 3:
            for ks in range(6): ex[cfg.get("ur", 10)+2*ks] = [("@", f"ud{i+1}"), (f"ds_read_b128 {v(act[i+1]+4*ks,4)}, v{aU} offset:{6144*i+1024*ks}", f"{name}_u{i+1}")]
        rp = lambda d, c: (f"ds_read_b128 {v(pr[d]+4*c,4)}, v{aP[d+1]} offset:{d*5120+c*1024}", f"pr{c}")
        padd = lambda x, y: unpk([f"v_pk_add_f32 {v(x+h2,2)}, {v(x+h2,2)}, {v(y+h2,2)}" for h2 in (0, 2)], cfg.get("np", 7) & 4)
        if i == 3 and ny:
            for c in range(5): ex[8+2*c] = rp(0, c); ex[9+2*c] = rp(1, c); ex[20+2*c] = [("@", f"pr{c}")] + padd(pr[0]+4*c, pr[1]+4*c)
        elif i == 3:
            ex[9] = [("@", "pw"), "s_barrier"]
            for c in range(5):
                for d in range(3): ex[10+3*c+d] = rp(d, c)
        for ks in range(6):
            for c in range(5):
                q = ac[i]+4*c
                if f5 == 10+30*i+5*ks+c: st(fl5)
                if cfg.get("xs", 70) == 30*i+5*ks+c > 0: st.run([("@", "pw")]*ny + ["s_barrier"])
                for e in range(2):
                    if ub[e] == 30*i+5*ks+c > 0: st.run(ald(2+e))
                st(f"{MF16} {v(q,4)}, {v(WU(ks,c),4)}, {v(act[i]+4*ks,4)}, {'0' if ks == 0 else v(q,4)}")
                if 5*ks+c in ex: st.run(ex[5*ks+c])
    if ny:
        st("s_nop 3")
        for c in range(5): st.run(padd(ac[3]+4*c, pr[0]+4*c))
        st.w("pw"); st("s_barrier")
        if cfg.get("pz", 0): st("s_setprio 2")
        for c in range(5): st.run(rp(2, c))
    for c in range(5):
        st.w(f"pr{c}"); q = ac[3]+4*c
        if ny: st.run(padd(q, pr[2]+4*c))
        else: st.run(padd(pr[0]+4*c, pr[1]+4*c) + padd(pr[0]+4*c, pr[2]+4*c) + padd(q, pr[0]+4*c))
        st(f"ds_write_b128 v{aP[4]}, {v(q,4)} offset:{c*1024}")
    st("s_waitcnt lgkmcnt(0)")
    stamp(a, 30)
    if TS[0] == 2: a("v_writelane_b32 v255, s96, 25\n v_writelane_b32 v255, s98, 7")
    st("s_barrier\n"*(4-cfg.get("nq", 1)))
    if TS[0] == 1: st(f"v_writelane_b32 v255, s{sCnt}, 5")
    wend(a, name)
    x = St(a)
    for nm, sF in polls: x(f"""{name}_{nm}retry:
    s_cmp_eq_u32 s{sCnt}, 0
    s_cbranch_scc1 {name}_{nm}ok
    s_sub_u32 s{sCnt}, s{sCnt}, 1
    {fl(sF)}
    s_waitcnt vmcnt(0)
    s_branch {name}_{nm}poll""")
    x(f"{name}_sretry:\n s_cmp_eq_u32 s{sCnt}, 0\n s_cbranch_scc1 {name}_sok\n s_sub_u32 s{sCnt}, s{sCnt}, 1")
    x.run(sld); x(f"s_waitcnt vmcnt(0)\n s_branch {name}_schk")
```

```python
from common import *
from stream import *
KVS = 12288; AA = 18432; KV0 = 74240; SG0 = 111104; SG = 12800; PB0 = KV0 + 2*KVS
slot = lambda c: ((c + 2) % 3) * KVS
SEQ = {0: "e e C e e P c e e c Q e e c e q e c e e p c e e c e e c",
       1: "e e C e e P c e e c Q e e c e q e c e e p c e e g c e e c",
       2: "e g e C e e P c e e c Q e e c e q e c e e p c e e c g e e c",
       3: "e g e C e e P c e g e c Q e e c e q e c e e p c e e c g e e c",
       4: "e g e C e e P c e g e c Q e e c e q e c g e e p c e e c g e e c",
       5: "g e e g C e e P c e g e c Q e e c e q e c g e e p c e e c g e e c",
       6: "g e e g C e e P c e g e c Q e e g c e q e c g e e p c e e c g e e c"}
SQS = [{0: "e e P e e Q e q e e e e e p e e e e e e",
        5: "g e e P e e Q e g e q e e g e e p e e g e e g e e",
        6: "g e e P e g e Q e g e q e e g e e p e e g e e g e e"},
       {0: "e e P e Q e e q e e e e e p e e e e e e",
        5: "e g e P e e Q e e q e e g e e p e g e e g e e g e",
        6: "e g e P e e Q e g e q e e g e e p e g e e g e e g e"},
       {0: "e e P e Q e q e e e e e e e p e e e e e",
        5: "g e e P e e g e Q e e q e g e e p e e g e e g e e",
        6: "g e e P e g e Q e e q e g e e g e p e e g e e g e e"},
       {0: "e e P Q e e e q e e e e e p e e e e e e",
        5: "e e P e e Q e e q e e g e e p e g e e g e e g e g",
        6: "e e P e g e Q e e q e g e e g e p e e g e e g e e g"},
       {0: "e e e P e Q e q e e e e e p e e e e e e",
        5: "g e e P e Q e e g e q e e g e e p e e g e e g e e",
        6: "g e e P e Q e e g e q e g e e g e p e e g e e g e e"},
       {0: "e e P e Q e e q e e e e e e e e p e e e",
        5: "e g e e P e e Q e e q e g e e p e g e e g e e g e",
        6: "e g e e P e g e Q e q e e g e e p e g e e g e g e e"}]
SQS += [dict(SQS[0]) for i_ in range(4)]
SQS[6][0] = "e e P Q e q e e e e e e e p e e e e e e"; SQS[7][0] = "e e P Q e e e q e e e e e e e e p e e e"
SQS[8][0] = "e e P Q q e e e e e e e e e e e e p e e"; SQS[9][0] = "e e P Q e q e e e e e e e e e e p e e e"
for d_ in SQS: d_.update({3: "e e P e e Q e e q e e g e e p e e g e e g e e", 4: "g e e P e e Q e e q e e g e e p e e g e e g e e",
                          7: "g e e P e g e Q e g e q e g e e g e p e e g e e g e e"})
SMF = "v_smfmac_f32_32x32x32_bf16"
MF32 = "v_mfma_f32_32x32x16_bf16"; MF8 = "v_mfma_f32_32x32x8bf16_1k"; MF16 = "v_mfma_f32_16x16x32_bf16"
class R: pass
r = R()
r.aK, r.aK8, r.aV = 1, 2, 3
r.S = [12, 28]; r.O = [44, 60]; r.Q16 = [76, 80]; r.Q8 = 84; r.K16 = 88; r.K8 = 92; r.V0 = 96; r.V1 = 100
BIG = 104
def kv_addr(st, t):
    st(f"""
    v_lshlrev_b32 v{r.aK}, 4, v0
    v_and_b32 v{t}, 31, v0
    v_lshrrev_b32 v{t+1}, 5, v0
    v_lshlrev_b32 v{r.aK8}, 4, v{t}
    v_min_u32 v{r.aV}, 23, v{t}
    v_mul_u32_u24 v{t+1}, 0x180, v{t+1}
    v_lshl_add_u32 v{r.aV}, v{r.aV}, 4, v{t+1}
    v_add_u32 v{r.aK}, {KV0}, v{r.aK}
    v_add_u32 v{r.aK8}, {KV0}, v{r.aK8}
    v_add_u32 v{r.aV}, {KV0}, v{r.aV}
    """)
def attention(role, dens, gop, bar, post, prio, sm=0, ix=0, bp=0, sq={}):
    sc = Sched(); bp0 = bp
    rK = lambda c, t: (f"ds_read_b128 {v(r.K16,4)}, v{r.aK} offset:{slot(c)+(2*role+t)*1024}", "K")
    rK8 = lambda c: (f"ds_read_b128 {v(r.K8,4)}, v{r.aK8} offset:{slot(c)+4096+role*512}", "K8")
    rV = lambda c, t, f: (f"ds_read_b128 {v(r.V1 if f else r.V0,4)}, v{r.aV} offset:{slot(c)+5120+(2*(2*role+t)+f)*768}", f"V{f}")
    zo = lambda b: "\n".join(f"v_mov_b32 v{r.O[b]+i}, 0" for i in range(16))
    pv = lambda o, a_, p_, h: f"{SMF} {v(o,16)}, {v(a_,4)}, {v(p_+8*h,8)}, v{ix}" if sm else f"{MF32} {v(o,16)}, {v(a_,4)}, {v(p_+4*h,4)}, {v(o,16)}"
    sc.op([rK(0, 0), rK8(0), rV(0, 0, 0)] + ([f"v_mov_b32 v{ix}, 0xdddddddd", zo(0)] if sm else []) + [("@", "K", "K8", "Q"),
           f"{MF32} {v(r.S[0],16)}, {v(r.K16,4)}, {v(r.Q16[0],4)}, 0", f"{MF8} {v(r.S[0],16)}, {v(r.K8,2)}, {v(r.Q8,2)}, {v(r.S[0],16)}", zo(1) if sm else "s_nop 11"])
    for c in range(16):
        for i in range(4):
            b = i & 1; kt = i >> 1; cur = r.S[b]; nx = r.S[b ^ 1]; ne = nc = 0
            first = (c, i) == (0, 0); last = (c, i) == (15, 3)
            if prio(c, i) is not None: sc.op(f"s_setprio {prio(c, i)}")
            Q_ = sq.get(dens[c][i]) or (SQS[sm-1] if sm else SEQ)[dens[c][i]].replace(" ", ""); bp = -1 if "B" in Q_ else bp0; pend = []
            assert [Q_.count(x) for x in "ePQqpg"] == [16, 1, 1, 1, 1, dens[c][i]] and Q_[:Q_.index("p")].count("e") >= 8 and Q_.index("P") < Q_.index("Q") < Q_.index("q")
            for n_, op in enumerate(Q_):
                if op == "B" and i == 2:
                    assert n_ > Q_.index("P")
                    sc.op([("@", "V0", "V1") + tuple(bar(c)), "s_barrier"]); sc.next(); sc.op(post(c)); pend = [(Q_.index("Q"), rK(c+1, 0)), (Q_.index("q"), rK8(c+1))]*(c < 15)
                while pend and pend[0][0] < n_: sc.op([pend.pop(0)[1]])
                if op == "e": sc.op(f"v_exp_f32 v{cur+ne}, v{cur+ne}"); ne += 1
                if op == "e" and i == 2 and ne == bp:
                    sc.op([("@", "V0", "V1") + tuple(bar(c)), "s_barrier"]); sc.next(); G_ = ([rK(c+1, 0), rK8(c+1)] if c < 15 else []) + post(c)
                    sc.op(G_)
                if op == "e": pass
                elif op == "c": sc.op(f"v_cvt_pk_bf16_f32 v{cur+nc}, v{cur+2*nc}, v{cur+2*nc+1}"); nc += 1
                elif op == "C":
                    if not first: sc.op(f"v_cvt_pk_bf16_f32 v{nx+7}, v{nx+14}, v{nx+15}")
                elif op == "P":
                    it = [] if first else [("@", "V1"), pv(r.O[b^1], r.V1, nx, 1)]
                    if not b: it.append(rV(c, kt, 1))
                    sc.op(it)
                elif op == "Q":
                    if last: continue
                    sc.op([("@", "K"), f"{MF32} {v(nx,16)}, {v(r.K16,4)}, {v(r.Q16[b^1],4)}, 0"] + ([rK(c, 1)] if i == 0 else []))
                elif op == "q":
                    if last: continue
                    sc.op([("@", "K8"), f"{MF8} {v(nx,16)}, {v(r.K8+2*(((i+1)>>1)&1),2)}, {v(r.Q8+2*(b^1),2)}, {v(nx,16)}"])
                elif op == "p":
                    it = []
                    if i == 2 and not bp:
                        sc.op([("@", "V0", "V1") + tuple(bar(c)), "s_barrier"]); sc.next()
                        if c < 15: it += [rK(c+1, 0), rK8(c+1)]
                    it += [("@", "V0"), pv(r.O[b], r.V0, cur, 0) if sm else f"{MF32} {v(r.O[b],16)}, {v(r.V0,4)}, {v(cur,4)}, {'0' if c == 0 and i < 2 else v(r.O[b],16)}"]
                    if i == 1: it.append(rV(c, 1, 0))
                    if i == 3 and c < 15: it.append(rV(c+1, 0, 0))
                    if i == 2 and not bp: it += post(c)
                    sc.op(it)
                elif op == "g": sc.op(gop())
    sc.op([f"v_cvt_pk_bf16_f32 v{r.S[1]+7}, v{r.S[1]+14}, v{r.S[1]+15}"]*(not sm) + ["s_nop 1", pv(r.O[1], r.V1, r.S[1], 1)])
    return sc
def vo160(vo, t):
    L = []
    for i in range(5):
        L.append(f"""v_add_u32 v{t}, {64*i}, v0
        v_mul_u32_u24 v{t+1}, 6554, v{t}
        v_lshrrev_b32 v{t+1}, 16, v{t+1}
        v_mul_u32_u24 v{t+1}, {1280-160}, v{t+1}
        v_lshl_add_u32 v{vo+i}, v{t if i == 4 else 0}, 4, v{t+1}""")
    return L
def dma160(vo, srd_, sO, sM, n, tag, half_last=False):
    L = []
    for i in range(n):
        x = ""
        if i % 5 in (0, 4): x += f"s_add_u32 m0, s{sM}, {1024*i}\n s_nop 0\n"
        if half_last and i == n-1: x += "s_mov_b32 exec_hi, 0\n"
        x += f"buffer_load_dwordx4 v{vo+i%5}, {s(srd_,4)}, s{sO} offen offset:{1024*((i%5)&3)} lds\n"
        if half_last and i == n-1: x += "s_mov_b32 exec_hi, -1\n"
        if i % 5 == 4: x += f"s_add_u32 s{sO}, s{sO}, {32*1280}\n"
        L.append((x, tag))
    return L
def chk_tile(st, name, regs, n, t, sCnt):
    st(f"{name}_chk:")
    st.w(name)
    st(f"v_max3_u32 v{t}, v{regs}, v{regs+1}, v{regs+2}\n v_max3_u32 v{t+1}, v{regs+3}, v{regs+4}, v{regs+5}")
    for i in range(6, n, 2): st(f"v_max3_u32 v{t+(i>>1&1)}, v{regs+i}, v{regs+i+1}, v{t+(i>>1&1)}")
    st(f"""v_max_u32 v{t}, v{t}, v{t+1}
    v_cmp_eq_u32 vcc, -1, v{t}
    s_cbranch_vccnz {name}_retry
    {name}_ok:""")

def kb(name, JB=2, cfg={}):
    a = Asm(); header(a, name, JB)
    S_ = Regs(36, 88)
    sWS = S_(4); sW = S_(4); sT = S_(); sT2 = S_(); sO = S_(); sN = S_(); sK = S_(); sTH = S_(); sHP = S_(); sE = S_(2); sAct = [S_() for i in range(4)]; sOwn = S_()
    gS = cfg.get("gs", 2); cR = cfg.get("cr", 14)
    st = St(a)
    T = 208
    st(f"""
    s_and_b32 s{sK}, s{S_W}, 3
    s_and_b32 s{sTH}, s{S_W}, 1
    s_bfe_u32 s{sHP}, s{S_W}, 0x10001
    s_lshl_b32 s{sT}, s{S_TG}, 3
    s_add_u32 s{sT}, s{sT}, s{S_J}
    s_lshl_b32 s{sT}, s{sT}, 2
    s_add_u32 s{sT}, s{sT}, s{sHP}
    s_mul_i32 s{sO}, s{sT}, {QF_HEAD}
    s_lshl_b32 s{sT}, s{sTH}, 10
    s_lshl_b32 s{sT2}, s{sTH}, 3
    v_lshlrev_b32 v{T}, 4, v0
    v_cmp_gt_u32 vcc, 32, v0
    v_add_u32 v{T+1}, s{sT}, v{T}
    v_add_u32 v{T+2}, s{sT2}, v{T}
    s_add_u32 s{sN}, s{sO}, {2*QF_HEAD}
    v_cndmask_b32 v{T+2}, -4.0, v{T+2}, vcc
    s_waitcnt lgkmcnt(0)
    """)
    srd(a, sWS, P_WS, WS_END)
    st(f"s_xor_b32 s{sOwn}, s{sK}, s{S_J}\n s_and_b32 s{sOwn}, s{sOwn}, 3" if cfg.get("rot", 1) else f"s_mov_b32 s{sOwn}, s{sK}")
    for i in range(4):
        st(f"""s_xor_b32 s{sT}, s{sOwn}, {(i+1)&3}
        s_lshl_b32 s{sT2}, s{S_TG}, 2
        s_add_u32 s{sT}, s{sT}, s{sT2}
        s_mul_i32 s{sAct[i]}, s{sT}, {44*1024}""")
    qld = f"""buffer_load_dwordx4 {v(r.Q16[0],4)}, v{T+1}, {s(sWS,4)}, s{sO} offen
    buffer_load_dwordx2 {v(r.Q8,2)}, v{T+2}, {s(sWS,4)}, s{sO} offen offset:2048
    buffer_load_dwordx4 {v(r.Q16[1],4)}, v{T+1}, {s(sWS,4)}, s{sN} offen
    buffer_load_dwordx2 {v(r.Q8+2,2)}, v{T+2}, {s(sWS,4)}, s{sN} offen offset:2048"""
    st(f"""
    s_cmp_ge_u32 s{S_W}, 4
    s_cbranch_scc1 {name}_B
    """)
    nsC = S_.n
    from kbA import waveA
    from kbB import waveB
    env = dict(locals())
    waveA(env, st.fork())
    S_.n = nsC
    waveB(env, st.fork())
    footer(a, name, 1)
    return a, 256, 163840, 512
```

```python
from kfA1 import *
from kbA import slow_path
def waveA(E, st):
    a = E["a"]; name = E["name"]; cfg = E["cfg"]; S_ = E["S_"]; gS = E["gS"]; cR = E["cR"]; JB = E["JB"]
    sWS, sW, sT, sT2, sO, sN, sK, sTH, sHP, sE, sAct, sTag = [E[k] for k in "sWS sW sT sT2 sO sN sK sTH sHP sE sAct sTag".split()]
    sSP = S_(4); sBS = S_(4); sAr = S_(); sWb = [S_(), S_()]; sB = S_(); sWo = S_(); sZb = S_(); sZn = S_(); sZo = S_(); sFl = S_(); sCnt = S_(); sU = S_(); sOa = S_(); sOx = S_()
    sGm = S_(2); sF3 = S_(); sPk = S_(); sSc = S_(); C = lambda k, d: cfg.get(k, d)/10; FS = cfg.get('fs', 7)
    aW = [4, 5, 6, 7]; vl = 8; vo = [9, 10, 11, 252]; acc = BIG; W = [200, 204]; NZ = 11; Z = [208+4*z for z in range(NZ)]; t0, t1 = 253, 204 if cfg.get("sa", 1) else 254
    T = 12; vE = 162; vu = 250
    st(f"{name}_A:")
    st(f"v_lshlrev_b32 v{vSt}, 4, v0\n s_setprio {cfg.get('p1', 1)}")
    E["common"](st)
    kv_addr(st, T+4)
    st(f"v_mov_b32 v{T}, v{vSt}")
    st(f"""
    s_mul_i32 s{sAr}, s{sK}, {AA}
    s_lshl_b32 s{sT}, s{S_TG}, 1
    s_add_u32 s{sT}, s{sT}, s{sTH}
    s_lshl_b32 s{sT2}, s{sK}, 10
    s_lshl_b32 s{sWb[0]}, s{sT}, 17
    s_add_u32 s{sWb[0]}, s{sWb[0]}, s{sT2}
    s_xor_b32 s{sWb[1]}, s{sWb[0]}, 0x20000
    s_mul_i32 s{sB}, s{S_J if JB < 3 else S_TG}, {cfg.get("wj", 2)}
    s_add_u32 s{sB}, s{sB}, s{S_TG if JB < 3 else S_J}
    s_and_b32 s{sB}, s{sB}, 7
    s_lshl_b32 s{sB}, s{sB}, 7
    s_mov_b32 s{sZn}, s{sB}
    s_mul_i32 s{sU}, s{sT}, {88*1024}
    s_add_u32 s{sU}, s{sU}, {hx(WS_ACT)}
    s_lshl_b32 s{sT}, s{S_J}, 2
    s_add_u32 s{sT}, s{sT}, s{sK}
    s_mul_i32 s{sZb}, s{sT}, {8*12288}
    s_add_u32 s{sZb}, s{sZb}, {hx(WS_Z2N)}
    s_lshl_b32 s{sFl}, s{sT}, {FS+5}
    v_lshrrev_b32 v{T+4}, 3, v0
    v_lshlrev_b32 v{T+4}, 12, v{T+4}
    v_lshrrev_b32 v{T+5}, 4, v0
    v_and_b32 v{T+6}, 7, v0
    v_xor_b32 v{T+5}, v{T+5}, v{T+6}
    v_lshl_add_u32 v{vo[0]}, v{T+5}, 4, v{T+4}
    v_xor_b32 v{T+5}, 64, v{vo[0]}
    v_add_u32 v{vo[1]}, {32768-1024}, v{T+5}
    v_add_u32 v{vo[2]}, {2*(32768-1024)}, v{vo[0]}
    v_add_u32 v{vo[3]}, {3*(32768-1024)}, v{T+5}
    v_lshrrev_b32 v{T+4}, 5, v0
    v_bfe_u32 v{T+5}, v0, 1, 3
    v_xor_b32 v{T+5}, v{T+5}, v{T+4}
    v_lshlrev_b32 v{T+5}, 4, v{T+5}
    v_and_b32 v{T+6}, 31, v0
    v_lshl_add_u32 v{T+5}, v{T+6}, 7, v{T+5}
    v_lshlrev_b32 v{t0}, {FS}, v{T+6}
    s_lshl_b32 s{sT}, s{sHP}, 7
    v_xor_b32 v{vl}, s{sT}, v{T}
    s_mov_b32 s{sCnt}, 0x8000
    """)
    for i in range(4): st(f"v_xor_b32 v{aW[i]}, {hx(32*i)}, v{T+5}\n v_add_u32 v{aW[i]}, s{sAr}, v{aW[i]}")
    st(f"""
    s_lshr_b32 s{sT}, s{S_J}, 1
    s_mul_i32 s{sT}, s{sT}, 5120
    s_add_u32 s{sOa}, s{sU}, s{sT}
    s_and_b32 s{sT}, s{S_J}, 1
    s_lshl_b32 s{sT}, s{sT}, 1
    s_add_u32 s{sT}, s{sT}, s{sHP}
    s_lshl_b32 s{sT2}, s{sT}, 8
    s_add_u32 s{sOx}, s{sOa}, s{sT2}
    s_add_u32 s{sOx}, s{sOx}, 4096
    s_lshl_b32 s{sT}, s{sT}, 10
    s_add_u32 s{sOa}, s{sOa}, s{sT}
    s_mul_i32 s{sT}, s{S_J}, 3072
    s_add_u32 s{sU}, s{sU}, s{sT}
    s_lshl_b32 s{sT}, s{sHP}, 9
    s_add_u32 s{sU}, s{sU}, s{sT}
    s_add_u32 s{sU}, s{sU}, {20*1024}
    s_mul_i32 s{sT}, s{sK}, 5120
    s_add_u32 s{sT}, s{sT}, {hx(WS_ACT)}
    """)
    for i in range(4): st(f"s_add_u32 s{sAct[i]}, s{sAct[i]}, s{sT}")
    uaddr = lambda vu, tp: [f"""v_bfe_u32 v{tp}, v0, 4, 1
    v_mul_u32_u24 v{vu}, {44*1024}, v{tp}
    v_and_b32 v{tp}, 15, v0""", f"""v_cmp_gt_u32 vcc, 32, v0
    v_lshl_add_u32 v{vu}, v{tp}, 4, v{vu}
    v_lshrrev_b32 v{tp}, 5, v0
    v_cndmask_b32 v{vu+1}, -4.0, v{vu}, vcc
    v_lshl_add_u32 v{vu}, v{tp}, 8, v{vu}"""]
    h, e, cb, tok = T+1, T+2, T+3, T+4
    st(f"""
    v_lshrrev_b32 v{h}, 5, v0
    v_bfe_u32 v{e}, v0, 2, 2
    v_and_b32 v{tok}, 31, v0
    v_bfe_u32 v{cb}, v0, 4, 1
    v_and_b32 v{T+5}, 3, v0
    v_lshlrev_b32 v{T+5}, 3, v{T+5}
    v_lshl_add_u32 v{cb}, v{cb}, 5, v{T+5}
    v_lshl_add_u32 v{T+6}, v{h}, 3, v{e}
    s_mul_i32 s{sT}, s{sHP}, 96
    v_mul_u32_u24 v{aZ[0]}, 192, v{T+6}
    v_add3_u32 v{aZ[0]}, v{aZ[0]}, v{cb}, s{sT}
    v_mad_u32_u24 v{T+7}, v{T+6}, 40, v{T+5}
    v_add_u32 v{T+6}, v{T+6}, v{e}
    s_mul_i32 s{sT}, s{sHP}, 40
    v_mul_u32_u24 v{aQ}, 160, v{T+6}
    v_add3_u32 v{aQ}, v{aQ}, v{cb}, s{sT}
    v_add_u32 v{aZ[1]}, 0x8000, v{aZ[0]}
    v_lshlrev_b32 v{aG}, 4, v{h}
    v_add_u32 v{aG}, {GATE}, v{aG}
    s_lshl_b32 s{sT}, s{sTH}, 12
    s_add_u32 s{sT}, s{sT}, {X0}
    s_sub_u32 s{sT}, s{sT}, s{sAr}
    s_mov_b32 s{sGm}, 0x100000
    s_mov_b32 s{sGm+1}, 0x100000
    v_mov_b64 {v(r.Q8,2)}, 0
    v_mov_b64 {v(r.Q8+2,2)}, 0
    """)
    for i in range(4): st(f"v_add_u32 v{aX[0][i]}, s{sT}, v{aW[i]}\n v_add_u32 v{aX[1][i]}, 0x10000, v{aX[0][i]}")
    st(f"""
    s_cmp_lt_u32 s{S_J}, 2
    s_cselect_b32 vcc_lo, 0xffff0000, 0
    s_mov_b32 vcc_hi, vcc_lo
    s_lshl_b32 s{sT}, s{sHP}, 5
    v_add_u32 v{T+7}, s{sT}, v{T+7}""")
    for i in range(8): st(f"""v_add_u32 v{T+8}, {768*(i&1)+3072*(i>>1)+64}, v{aZ[0]}
    v_add_u32 v{T+9}, {12288+160*(i&1)+640*(i>>1)}, v{T+7}
    v_cndmask_b32 v{aKV+i}, v{T+8}, v{T+9}, vcc""")
    st(f"""
    s_lshl_b32 s{sT}, s{sK}, 10
    s_add_u32 s{sT}, s{sT}, {LNS}
    v_lshl_add_u32 v{aLw}, v{tok}, 5, s{sT}
    v_lshl_add_u32 v{aLw}, v{h}, {4 if cfg.get("hm", 3) else 3}, v{aLw}
    s_lshl_b32 s{sT}, s{sK}, 12
    s_add_u32 s{sT}, s{sT}, {Z1P}
    v_add_u32 v{aPark}, s{sT}, v{vSt}
    s_mul_i32 s{sT}, s{sK}, 3072
    v_add_u32 v{aS}, s{sT}, v{vSt}
    v_add_u32 v{aTX}, {TX}, v{aS}
    v_add_u32 v{aS}, {QX}, v{aS}
    s_lshl_b32 s{sT}, s{S_TG}, 3
    s_add_u32 s{sT}, s{sT}, s{S_J}
    s_lshl_b32 s{sT}, s{sT}, 2
    s_add_u32 s{sT}, s{sT}, s{sK}
    s_lshl_b32 s{sT}, s{sT}, {FS}
    s_add_u32 s{sF3}, s{sT}, {hx(FL3)}
    s_cmp_eq_u32 s{S_J}, 0
    s_cselect_b32 s{sSc}, {fl(QSCALE)}, 1.0
    s_waitcnt lgkmcnt(0)""")
    srd(a, sWS, P_WS, WS_END); srd(a, sSP, P_WSP, 2048*4096); srd(a, sBS, P_BSP, 4096)
    st(f"s_mov_b32 s{sT}, {hx(WS_EP)}\n buffer_load_dword v{vE}, off, {s(sWS,4)}, s{sT}\n s_barrier", "ep")
    stamp(a, 1); lstamp(a, 1)
    sc = Sched()
    for x in reads(0, sGm) + reads(1, sGm): sc.op(x)
    gemm(sc, sGm)
    sc.place(["s_mov_b32 vcc_lo, 0xcccc0000\n s_mov_b32 vcc_hi, 0xcccc0000"] + [f"""v_add_u32 v{T+8}, {768*(i&1)+16*(i>>1)+16}, v{aZ[0]}
    v_add_u32 v{T+9}, {3072+160*(i&1)+80*(i>>1)}, v{aQ}
    v_cndmask_b32 v{aM+i}, v{T+9}, v{T+8}, vcc
    v_add_u32 v{aM+4+i}, 0x8000, v{aM+i}""" for i in range(4)], 1, 0.1, 0.9)
    sc.place([[("@", "ep"), f"v_readfirstlane_b32 s{sTag}, v{vE}"], f"s_add_u32 s{sTag}, s{sTag}, {hx(TAGC)}"], 8, 0.2, 0.8)
    if not cfg.get("tsb"): sc.place([lambda st_: stamp(a, 2)], 10, 0, 0); sc.place([lambda st_: stamp(a, 6)], 20, 0, 0)
    q = Z2+24
    kvx = sum([[f"v_mul_f32 v{q+2*i}, s{sSc}, v{q+2*i}\n v_mul_f32 v{q+2*i+1}, s{sSc}, v{q+2*i+1}", f"v_cvt_pk_bf16_f32 v{q+i}, v{q+2*i}, v{q+2*i+1}"] +
               [(f"ds_write_b64 v{aLw}, {v(q+i-1,2)} offset:{8*i-8}", "tx")]*(i & 1) for i in range(4)], [])
    hx_ = lambda n: [f"v_cvt_pk_bf16_f32 v{Z2+8*n+i}, v{Z2+8*n+2*i}, v{Z2+8*n+2*i+1}" for i in range(4)] + [(f"ds_write_b128 v{aTX}, {v(Z2+8*n,4)} offset:{1024*n}", "tx")]
    hm = cfg.get("hm", 3); H = [hx_(n) for n in range(3)]
    if hm: kvx = [x for x in kvx if isinstance(x, str)] + [f"s_nop 0\n v_permlane32_swap_b32 v{q}, v{q+2}\n v_permlane32_swap_b32 v{q+1}, v{q+3}", (f"ds_write_b128 v{aLw}, {v(q,4)}", "tx")]
    cat = lambda *L: sum([x[:-1] for x in L], []) + [[x[-1] for x in L]]
    H = [[H[0] + kvx, H[1], H[2]], [H[0] + kvx, H[1], H[2]], [cat(*H, kvx)], [cat(H[0], kvx), cat(H[1], H[2])], [cat(H[0], kvx), H[1], H[2]]][hm]
    span(sc, H[0], 11+cfg.get("h0", 10)/100, 11+cfg.get("h1", 50)/100, 0)
    for n in range(1, len(H)): span(sc, H[n], 11+n+cfg.get("h2", 2)/100, 11+n+cfg.get("h3", 35)/100, 0)
    mark = lambda vu, d: [f"v_mov_b64 {v(d,2)}, -1\n v_mov_b64 {v(d+2,2)}, -1", f"buffer_store_dwordx4 {v(d,4)}, v{vu}, {s(sWS,4)}, s{sOa} offen sc1",
         f"buffer_store_dwordx4 {v(d,4)}, v{vu}, {s(sWS,4)}, s{sOa} offen offset:512 sc1", f"buffer_store_dwordx4 {v(d,4)}, v{vu+1}, {s(sWS,4)}, s{sOx} offen sc1"]
    if C("s0", 400) < 30: span(sc, uaddr(vu, 244) + mark(vu, 244), C("s0", 400), C("s1", 309), 0)
    sc.emit(st)
    st("s_nop 8")
    for ab in range(2):
        for i in range(4): st(f"v_cvt_pk_bf16_f32 v{r.Q16[ab]+i}, v{QA+16*ab+2*i}, v{QA+16*ab+2*i+1}")
        st(f"ds_write_b128 v{aS}, {v(r.Q16[ab],4)} offset:{1024*ab}", "qx")
    st("s_mov_b32 exec_hi, 0")
    for i in range(4): st(f"v_cvt_pk_bf16_f32 v{r.Q8+i}, v{QA+16*(i>>1)+8+2*(i&1)}, v{QA+16*(i>>1)+9+2*(i&1)}")
    st(f"s_mov_b32 exec_hi, -1\n ds_write_b128 v{aS}, {v(r.Q8,4)} offset:2048\n v_mul_f32 v{gl}, {fl(-LOG2E)}, v{QA+8}", "qx")
    ZR = [Z1+i for i in range(16)] + [QA+12+i for i in range(4)] + [QA+28+i for i in range(4)]; zp = 112; k1 = 186; ag = cfg.get("ag", 3)
    g1 = lambda g, pk: (gelu(ZR[8*g:8*g+8], Z2, k1, pk=pk) + [f"v_cvt_pk_bf16_f32 v{zp+4*g+i}, v{ZR[8*g+2*i]}, v{ZR[8*g+2*i+1]}" for i in range(4)] +
                        [f"ds_write_b128 v{aPark}, {v(zp+4*g,4)} offset:{1024*g}"])
    st(f"v_mov_b32 v{k1}, {fl(-GK1)}\n s_mov_b32 s{sGm}, {fl(-GK2)}\n s_mov_b32 s{sGm+1}, s{sGm}")
    for g in range(ag): st.run(g1(g, sGm))
    lstamp(a, 60); st.w("qx"); st("s_barrier"); stamp(a, 7); lstamp(a, 61); lstamp(a, None)
    if cfg.get("xp", 0) & 2: st(f"v_mov_b32 v{vl}, 0")
    if cfg.get("xp", 0) & 4: st(f"v_mov_b32 v{vo[0]}, 0\n v_mov_b32 v{vo[1]}, 0")
    def wsp(blk):
        L = []
        for b in range(8):
            x = ""
            if b & 3 == 0: x = f"s_add_u32 m0, s{sAr}, {(blk&1)*8192+b*1024}\n s_add_u32 s{sWo}, s{sWb[b>>2]}, s{sB}\n"
            x += f"buffer_load_dwordx4 v{vo[b&3]}, {s(sSP,4)}, s{sWo} offen offset:{(b&3)*1024} {CP[cfg.get('c1', 0)]} lds\n"
            if b == 7: x += f"s_add_u32 s{sB}, s{sB}, 128\n s_and_b32 s{sB}, s{sB}, 0x3ff"
            L.append((x, f"wsp{blk}_{b>>2 if cfg.get('dt', 1) else 1}"))
        return L
    def zld(f):
        ks, n = divmod(f, 3); x = ""
        if f % 12 == 0: x = f"s_mul_i32 s{sZo}, s{sZn}, 96\n s_add_u32 s{sZn}, s{sZn}, 128\n s_add_u32 s{sZo}, s{sZo}, s{sZb}\n s_and_b32 s{sZn}, s{sZn}, 0x3ff\n"
        elif n == 0: x = f"s_add_u32 s{sZo}, s{sZo}, 3072\n"
        return (x + f"buffer_load_dwordx4 {v(Z[f%NZ],4)}, v{vl}, {s(sWS,4)}, s{sZo} offen offset:{1024*n} {CQ[cfg.get('c4', 0)]}", f"z{f}")
    rW = lambda ks, th: [("@", f"wsp{ks>>2}_{th if cfg.get('dt', 1) else 1}"), (f"ds_read_b128 {v(W[th],4)}, v{aW[ks&3]} offset:{((ks>>2)&1)*8192+th*4096}", f"W{th}")]
    G = dict(m=0, q=[])
    DPG = cfg.get("dpg", 1)
    def gop():
        m = G["m"]; G["m"] += 1
        ks, th, n = m//6, (m % 6)//3, m % 3; f = 3*ks+n; ac = acc+48*th+16*n
        it = [("@", f"z{f}", f"W{th}"), f"{MF32} {v(ac,16)}, {v(Z[f%NZ],4)}, {v(W[th],4)}, {'0' if ks == 0 else v(ac,16)}"]
        if n == 2 and ks < 31: it += rW(ks+1, th)
        if th == 1 and f+NZ < 96: it.append(zld(f+NZ))
        DS = [[21, 22, 23, 24, 25, 26, 27, 28], [18, 19, 20, 21, 24, 25, 26, 27], [18, 19, 20, 24, 25, 26, 30, 31], [18, 19, 20, 20, 24, 25, 26, 26], [18, 19, 20, 21, 22, 23, 24, 25],
              [18, 20, 22, 24, 26, 28, 30, 32]][cfg.get("ds", 5)]
        if m % 24 == 18 and m//24 + 2 < 8: assert not G["q"]; G["q"] = [(m-18+d, x) for d, x in zip(DS, wsp(m//24 + 2))]
        while G["q"] and G["q"][0][0] == m: it.append(G["q"].pop(0)[1])
        if m == 191: it.append("; end of G")
        return it
    np_ = (cR-gS)*4
    dens = [[0]*4 for c in range(16)]
    for p in range(np_): dens[gS+p//4][p % 4] = 192*(p+1)//np_ - 192*p//np_
    pa = cfg.get("pa", 1)
    sc = attention(0, dens, gop, lambda c: ["rsw"], lambda c: [(lambda st_, c=c: stamp(a, 8+c))], lambda c, i: pa if (c, i) == (0, 0) and pa != cfg.get("p1", 1) else None, cfg.get("sa", 1), 254, cfg.get("ba", 16), {d: cfg.get(f"A{d}", {5: "geePQeeeegqeeeegpeeeeggee", 6: "geePQeeegqeeeegeegpeeeggee"}.get(d) if cfg.get("sa", 1) else None) for d in range(8)})
    span(sc, sum([g1(g, 0) for g in range(ag, 3)], []), C("a0", 2), C("a1", 10*gS-1), 0)
    sc.place([f"v_mov_b32 v{gl-1}, v{gl}", f"s_nop 0\n v_permlane32_swap_b32 v{gl-1}, v{gl}", f"v_exp_f32 v{gl}, v{gl}", f"v_add_f32 v{gl}, 1.0, v{gl}", f"v_rcp_f32 v{gl}, v{gl}", f"ds_write_b32 v{aPark}, v{gl} offset:3072"], 0, 0.02, 0.22)
    ff = C("ff", 302)
    if cfg.get("tp0"):
        for i in range(2): span(sc, [f"""s_add_u32 s{sT}, s{sB}, {128*i}
        s_and_b32 s{sT}, s{sT}, 0x3ff
        s_andn2_b32 s{sT2}, s{sWb[0]}, 0x20000
        v_lshlrev_b32 v{Z[0]}, 12, v0
        s_add_u32 s{sT}, s{sT}, s{sT2}
        buffer_load_dword v{Z[0]+1}, v{Z[0]}, {s(sSP,4)}, s{sT} offen"""], C(f"tp{i}", 0), C(f"tp{i}", 0), 30)
        assert C("tp1", 0) < ff
    span(sc, wsp(0) + wsp(1), ff, ff+C("fl", 30), 30)
    if 30 <= C("s0", 400) < 40: span(sc, uaddr(vu, tg_) + mark(vu, tg_), C("s0", 400), C("s1", 309), 30)
    fld = f"buffer_load_dword v{t1}, v{t0}, {s(sWS,4)}, s{sFl} offen sc1"
    def poll(st_, p="p", k=3):
        st_(f"{name}_{p}oll:"); st_.w("F")
        st_(f"v_cmp_ne_u32 vcc, s{sTag}, v{t1}\n s_cbranch_vccnz {name}_{p}retry\n {name}_{p}ok:")
        stamp(a, k)
    sc.place([(fld, "F")], gS-1, cfg.get("f0", 10)/100, cfg.get("f0", 10)/100)
    sc.place([poll] + [zld(f) for f in range(NZ)], gS-1, cfg.get("f1", 50)/100, 1.0)
    sc.place([rW(0, 0), rW(0, 1)], gS, 0.1, 0.2)
    z1 = 208; og = 220; gt = 222; tp = 224; aR = [228, 229, 230, 231]; vu = 232; aF = 240; vt = 242
    quads = lambda d, n: [acc+48*(d & 1)+16*n+4*(d >> 1), acc+48*(d & 1)+16*n+4*(d >> 1)+8]
    wl = sc.win[cR]; e = max(i for i, o in enumerate(wl) if isinstance(o, list) and "; end of G" in o)
    it = [f"""v_lshlrev_b32 v{aF}, 4, v0
    v_add_u32 v{aR[0]}, s{sAr}, v{aF}
    s_lshl_b32 s{sT}, s{sK}, 12
    s_add_u32 s{sT}, s{sT}, {Z1P}
    v_add_u32 v{tp}, s{sT}, v{aF}"""]
    it += [(f"ds_read_b128 {v(z1+4*n,4)}, v{tp} offset:{1024*n}", "zp") for n in range(3)]
    it += [(f"""s_lshl_b32 s{sT}, s{S_TG}, 1
    s_add_u32 s{sT}, s{sT}, s{sTH}
    s_lshl_b32 s{sT2}, s{sT}, 6
    v_lshrrev_b32 v{vt}, {FS-1}, v{t0}
    ds_read_b32 v{gt}, v{tp} offset:3072
    buffer_load_ushort v{og+1}, v{vt}, {s(sBS,4)}, s{sT2} offen""", "zp")]
    for d in (2, 1, 3):
        for n in range(3):
            for e2, q in enumerate(quads(d, n)): it.append((f"ds_write_b128 v{aR[0]}, {v(q,4)} offset:{((d-1)*6+2*n+e2)*1024}", "rsw"))
        it.append(f"s_xor_b32 s{sT}, s{sK}, {d}\n s_mul_i32 s{sT}, s{sT}, {AA}\n v_add_u32 v{aR[d]}, s{sT}, v{aF}")
    sc.place(it, cR, (e+3)/len(wl), 0.9)
    it = []
    rd = lambda n: [(f"ds_read_b128 {v(q,4)}, v{aR[d]} offset:{((d-1)*6+2*n+e2)*1024}", f"rs{n}{e2}") for e2 in range(2) for d in (1, 2, 3) for q in [quads(d, n)[e2]]]
    it += rd(0)
    it += [[("@", "zp"), f"""v_sub_f32 v{og}, 1.0, v{gt}
    v_lshlrev_b32 v{og+1}, 16, v{og+1}
    v_mul_f32 v{og+1}, v{og}, v{og+1}"""]] + uaddr(vu, tp) + (mark(vu, 244) if C("s0", 400) >= 40 else [])
    for n in range(3):
        nr = rd(n+1) if n < 2 else []
        for e2 in range(2):
            for h2 in (0, 2):
                o_, p1, p2, p3 = [quads(d, n)[e2]+h2 for d in range(4)]; zi = z1+4*n+2*e2+h2//2
                it.append([("@", f"rs{n}{e2}"), f"""v_pk_add_f32 {v(o_,2)}, {v(o_,2)}, {v(p1,2)}
                v_pk_add_f32 {v(p2,2)}, {v(p2,2)}, {v(p3,2)}
                v_lshlrev_b32 v{tp}, 16, v{zi}
                v_pk_add_f32 {v(o_,2)}, {v(o_,2)}, {v(p2,2)}"""])
                it.append(f"""v_and_b32 v{tp+1}, 0xffff0000, v{zi}
                v_pk_fma_f32 {v(o_,2)}, {v(o_,2)}, {v(og,2)}, {v(og,2)} op_sel:[0,0,1] op_sel_hi:[1,0,1]
                v_pk_mul_f32 {v(o_,2)}, {v(o_,2)}, {v(tp,2)}
                v_cvt_pk_bf16_f32 v{zi}, v{o_}, v{o_+1}""")
                it += nr[:2]; nr = nr[2:]
        it.append((f"buffer_store_dwordx4 {v(z1+4*n,4)}, v{vu}, {s(sWS,4)}, s{sU} offen offset:{1024*n} sc1", "us"))
        if cfg.get("od", 0) & 2: it.append(f"buffer_store_dwordx4 {v(z1+4*n,4)}, v{vu}, {s(sWS,4)}, s{sU} offen offset:{1024*n}")
    it.append(lambda st_: stamp(a, 4))
    it.append(f"""s_lshl_b32 s{sT}, s{S_J}, 2
    s_add_u32 s{sT}, s{sT}, s{sK}
    s_mul_i32 s{sPk}, s{sT}, {11*5120}
    s_add_u32 s{sPk}, s{sPk}, {hx(WS_PK+6*5120)}
    s_or_b32 s{sT}, s2, s{sK}
    s_cmp_eq_u32 s{sT}, 0
    s_cselect_b32 s{sE}, 1, 0
    s_mov_b32 s{sE+1}, 0
    v_mov_b32 v{tp+1}, s{sTag}
    v_cndmask_b32 v{tp}, -4.0, v0, {s(sE,2)}
    s_mov_b32 s{sT}, {hx(WS_EP)}
    buffer_store_dword v{tp+1}, v{tp}, {s(sWS,4)}, s{sT} offen sc1""")
    wu = cfg.get("wu", 50)/100
    NP = cfg.get("np", 7)
    if NP & 1: it = sum([[y] if not isinstance(y, str) or "v_fma" not in y else ["\n".join(y.split("\n")[:3]), "\n".join(y.split("\n")[3:])] for y in
                   sum([[[y[0], "\n".join(y[1].split("\n")[:4])], "\n".join(y[1].split("\n")[4:])] if isinstance(y, list) and y[0][1][:2] == "rs" else [y] for y in unpk(it)], [])], [])
    sc.place(it, cR+1, 0.0, wu)
    WO = lambda ks, c: BIG+4*(5*ks+c)
    f3 = cR+1+wu+C("f3", 4)
    span(sc, [[f"s_mov_b64 exec, 1", ("@", "us"), f"buffer_store_dword v{tp+1}, off, {s(sWS,4)}, s{sF3} sc1\n s_mov_b64 exec, -1", lambda st_: stamp(a, 30)]], f3, f3, 0)
    span(sc, pkloads(BIG, 25, aF, sWS, sPk, "wof", cfg), cR+1+wu+0.02, C('we', 164), 0)
    sc.emit(st)
    O = r.O; S = r.S; D = 208; t = 244; mx = 226; vA = [4, 5]; aP = [6, 7, 8, 9, 10]; vs = 11
    st(f"""s_mul_i32 s{sT}, s{sK}, 6144
    v_add_u32 v{t}, s{sT}, v{r.aK}
    s_mov_b32 s{sN}, 0""")
    f5 = cfg.get("f5", -1); fl5 = f"s_mov_b64 exec, 1\n buffer_store_dword v{tp+1}, off, {s(sWS,4)}, s{sF3} sc1\n s_mov_b64 exec, -1"
    if f5 >= 0: st(f"""s_lshl_b32 s{sT}, s{S_TG}, 3
    s_lshl_b32 s{sFl}, s{sK}, 1
    s_add_u32 s{sFl}, s{sFl}, s{sT}
    s_add_u32 s{sT}, s{sT}, s{S_J}
    s_lshl_b32 s{sFl}, s{sFl}, {FS}
    s_lshl_b32 s{sT}, s{sT}, {FS}
    s_add_u32 s{sFl}, s{sFl}, {hx(FL5)}
    s_add_u32 s{sT}, s{sT}, {hx(FL5)}
    s_cmp_eq_u32 s{sK}, 0
    s_cselect_b32 s{sF3}, s{sT}, {hx(WS_END)}
    v_and_b32 v{t0}, {1 << FS}, v{t0}""")
    if f5 == 0: st(fl5)
    st(f"v_lshlrev_b32 v{vA[0]}, 4, v0\n v_add_u32 v{vA[1]}, 0x1000, v{vA[0]}")
    srd(a, sSP, P_OUT, 2048*1280)
    st(f"""
    v_add_u32 v{aP[0]}, s{sAr}, v{vA[0]}
    s_mul_i32 s{sT}, s{sK}, 5120
    s_add_u32 s{sT}, s{sT}, {KV0}
    v_add_u32 v{aP[4]}, s{sT}, v{vA[0]}
    v_and_b32 v{t+1}, 15, v0
    v_mul_u32_u24 v{vs}, 0x500, v{t+1}
    v_lshrrev_b32 v{t+1}, 4, v0
    v_lshl_add_u32 v{vs}, v{t+1}, 3, v{vs}
    v_mov_b32 v{aP[1]}, v{aR[1]}
    v_mov_b32 v{aP[2]}, v{aR[2]}
    v_mov_b32 v{aP[3]}, v{aR[3]}
    s_lshl_b32 s{sT}, s{S_TG}, 2
    s_add_u32 s{sT}, s{sT}, s{E["sOwn"]}
    s_mul_i32 s{sO}, s{sT}, {16*1280}
    s_mul_i32 s{sT2}, s{S_J}, 160
    s_add_u32 s{sO}, s{sO}, s{sT2}
    """)
    lt = cfg.get("lt", 1); vo_ = [248, 249, 252]
    if lt:
        st(f"""v_and_b32 v{t+1}, 15, v0
        v_mul_u32_u24 v{t+1}, {1280-160}, v{t+1}
        v_sub_u32 v{vs}, v{vs}, v{t+1}
        v_add_u32 v{vs}, s{sAr}, v{vs}""")
    stamp(a, 24); st("s_barrier"); stamp(a, 25)
    if f5 == 1: st(fl5)
    for th in range(2):
        for i in range(3): st(f"ds_read_b128 {v(S[th]+4*i,4)}, v{t} offset:{(3*th+i)*1024}", f"po{th}{i}")
    su = lambda x: st(unpk(x, NP & 8))
    for i in (2, 0, 1):
        for th in range(2):
            st.w(f"po{th}{i}")
            for h2 in (0, 2): su(f"v_pk_add_f32 {v(O[th]+4*i+h2,2)}, {v(O[th]+4*i+h2,2)}, {v(S[th]+4*i+h2,2)}")
    su(f"{name}_fin:")
    for i in range(4): su(f"v_permlane32_swap_b32 v{O[0]+8+i}, v{O[1]+8+i}")
    L = O[1]+8
    su(f"""
    v_rcp_f32 v{t}, v{L}
    v_cmp_ngt_f32 vcc, 0x5f800000, v{L}
    s_mov_b32 s{sT}, 0x1f800000
    v_mul_f32 v{t}, v{t}, v{gt}
    v_cmp_nlt_f32 {s(sE,2)}, s{sT}, v{L}
    v_mov_b32 v{t+2}, v{t}
    v_mov_b32 v{t+4}, v{t}
    s_or_b64 {s(sE,2)}, {s(sE,2)}, vcc
    v_pk_mul_f32 {v(O[0]+8,2)}, {v(O[0]+8,2)}, {v(t,2)} op_sel_hi:[1,0]
    v_permlane32_swap_b32 v{t+2}, v{t+4}
    v_pk_mul_f32 {v(O[0]+10,2)}, {v(O[0]+10,2)}, {v(t,2)} op_sel_hi:[1,0]
    """)
    for th in range(2):
        for i in range(0, 8, 2): su(f"v_pk_mul_f32 {v(O[th]+i,2)}, {v(O[th]+i,2)}, {v(t+2+2*th,2)} op_sel_hi:[1,0]")
    su(f"v_pk_mul_f32 {v(t+6,2)}, {v(O[0]+8,2)}, 0 op_sel_hi:[1,0]")
    for k_, q in enumerate([O[0]+10] + [O[th]+i for th in range(2) for i in range(0, 8, 2)]):
        su(f"v_pk_fma_f32 {v(t+6,2)}, {v(q,2)}, 0, {v(t+6,2)} op_sel_hi:[1,0,1]")
        if k_ > 0: su(f"v_cvt_pk_bf16_f32 v{D+k_-1}, v{q}, v{q+1}")
    su(f"""
    v_cmp_u_f32 vcc, v{t+6}, v{t+7}
    v_cvt_pk_bf16_f32 v{D+8}, v{O[0]+8}, v{O[0]+9}
    v_cvt_pk_bf16_f32 v{D+9}, v{O[0]+10}, v{O[0]+11}
    s_or_b64 vcc, {s(sE,2)}, vcc
    s_cbranch_vccnz {name}_slow
    {name}_pub:""")
    if cfg.get("xb", 1) == 1: st("s_barrier")
    if f5 >= 0 and cfg.get("p5", 2) == 0: st(fld, "F")
    st(f"""
    buffer_store_dwordx4 {v(D,4)}, v{vu}, {s(sWS,4)}, s{sOa} offen sc1
    v_permlane32_swap_b32 v{D+8}, v{D+10}
    v_permlane32_swap_b32 v{D+9}, v{D+11}
    buffer_store_dwordx4 {v(D+4,4)}, v{vu}, {s(sWS,4)}, s{sOa} offen offset:512 sc1
    buffer_store_dwordx4 {v(D+8,4)}, v{vu+1}, {s(sWS,4)}, s{sOx} offen sc1
    """)
    if cfg.get("od", 0) & 1: st(f"""
    buffer_store_dwordx4 {v(D,4)}, v{vu}, {s(sWS,4)}, s{sOa} offen
    buffer_store_dwordx4 {v(D+4,4)}, v{vu}, {s(sWS,4)}, s{sOa} offen offset:512
    buffer_store_dwordx4 {v(D+8,4)}, v{vu+1}, {s(sWS,4)}, s{sOx} offen""")
    if cfg.get("xb", 1) == 2: st("s_barrier")
    if f5 == 2: st(fl5)
    if f5 >= 0 and cfg.get("p5", 2) == 1: st(fld, "F")
    stamp(a, 26)
    for i in range(3*lt): st(f"""v_add_u32 v{t+1}, {64*i}, v0
    v_mul_u32_u24 v{t+1}, 6554, v{t+1}
    v_lshrrev_b32 v{t+1}, 16, v{t+1}
    v_mul_u32_u24 v{t+1}, {1280-160}, v{t+1}
    v_add_u32 v{vo_[i]}, v{t+1}, v{vA[0]}""")
    act = [12+20*i for i in range(4)]
    al1 = lambda i, ks: (f"buffer_load_dwordx4 {v(act[i]+4*ks,4)}, v{vA[ks>>2]}, {s(sWS,4)}, s{sAct[i]} offen offset:{1024*(ks&3)} {CQ[cfg.get('c6', 0)]}", f"o{i}_{ks}")
    def ald(st_, i):
        for ks in range(5): st_(*al1(i, ks))
    ny = cfg.get("ny", 0); oi = cfg.get("oi", 4)
    if (f5 < 0 or cfg.get("p5", 2) == 2) and not cfg.get("nw", 0): st("s_waitcnt vmcnt(0)")
    if f5 >= 0 and cfg.get("p5", 2) == 2: st(fld, "F")
    if cfg.get("y0", 2) == 0 or cfg.get("xs", 70): st("s_barrier")
    assert cfg.get("y0", 2) or not cfg.get("xs", 70)
    if f5 >= 0: poll(st, "q", 29)
    st.w("wof")
    assert cfg.get("y0", 2) <= oi
    for i in range(oi):
        ald(st, i)
        if cfg.get("y0", 2) == i+1 and not ny: st("s_barrier")
    ac2 = [208, 228]; tc = 250; nq = cfg.get("nq", 1)
    ck = lambda i, ks: [f"v_max3_u32 v{tc+e}, v{act[i]+4*ks+2*e}, v{act[i]+4*ks+2*e+1}, v{tc+e}" if ks else f"v_max_u32 v{tc+e}, v{act[i]+2*e}, v{act[i]+2*e+1}" for e in range(2)]
    cke = f"v_max_u32 v{tc}, v{tc}, v{tc+1}\n v_cmp_eq_u32 vcc, -1, v{tc}"
    padd = lambda x, y: [f"v_pk_add_f32 {v(x+h2,2)}, {v(x+h2,2)}, {v(y+h2,2)}" for h2 in (0, 2)]
    for i in range(4):
        st(f"{name}_o{i}:")
        ex = [[] for m in range(25)]; br = f"s_cbranch_vccnz {name}_o{i}_retry\n {name}_o{i}_ok:"
        rdp = lambda d, q, c: (f"ds_read_b128 {v(q+4*c,4)}, v{aP[d+1]} offset:{(d*5120 if d < 3 else 0)+c*1024}", f"pr{d}{c}")
        ws_ = cfg.get("tw", 4) if i < 3 else cfg.get("tv", 2); yb = cfg.get("ty", 14)
        for c in range(5):
            if i: ex[ws_*c+1].append((f"ds_write_b128 v{aP[0]}, {v(ac2[(i-1)&1]+4*c,4)} offset:{(i-1)*5120+c*1024}", "pw"))
            if i == 2 and nq: ex[ws_*c].append(rdp(3, act[0], c))
            if i > nq: ex[ws_*c if i < 3 else c+yb-6].append(rdp((i+2) & 3, act[i-1], c))
            if i == 2: ex[min(ws_*c+8, 24)] += [("@", f"pr0{c}")] + unpk(padd(act[1]+4*c, act[0]+4*c), NP & 2)
            if i == 3: ex[yb+c].append(rdp(2, act[0], c)); ex[20+c] += [("@", f"pr2{c}")] + unpk(padd(act[0]+4*c, act[2]+4*c), NP & 2)
            ex[5*c+1 if i < 3 else c] += [("@", f"o{i}_{c}")] + ck(i, c)
        for m in range(5*oi, 20*(i == 0)): ex[(m-5*oi)*cfg.get("oj", 20)//(20-5*oi)].insert(0, al1(*divmod(m, 5)))
        ex[22 if i < 3 else 4].append(cke)
        if i == 3: ex[5].insert(0, br); ex[yb] = [("@", "pw"), "s_barrier"] + ex[yb]
        for ks in range(5):
            st.w(f"o{i}_{ks}")
            if ks == 0 and i in (0, 3): stamp(a, 27 if i == 0 else 28)
            for c in range(5):
                q = ac2[i & 1]+4*c
                st(f"{MF16} {v(q,4)}, {v(WO(ks,c),4)}, {v(act[i]+4*ks,4)}, {v(q,4) if ks else v(act[1]+4*c,4) if i == 3 else '0'}")
                st.run(ex[5*ks+c])
        if i < 3: st(br)
        if nq-ny <= i < 3: st.w("pw"); st("s_barrier")
    for c in range(5):
        q = ac2[1]+4*c; st.run(padd(q, act[0]+4*c))
        st(f"v_cvt_pk_bf16_f32 v{q}, v{q}, v{q+1}\n v_cvt_pk_bf16_f32 v{q+1}, v{q+2}, v{q+3}")
        st(f"ds_write_b64 v{vs}, {v(q,2)} offset:{15360+32*c}" if lt else f"buffer_store_dwordx2 {v(q,2)}, v{vs}, {s(sSP,4)}, s{sO} offen offset:{32*c}")
    for i in range(3*lt): st(f"ds_read_b128 {v(act[1]+4*i,4)}, v{aP[0]} offset:{15360+1024*i}", f"fo{i}")
    for i in range(3*lt):
        if i == 2: st("s_mov_b32 exec_hi, 0")
        st.w(f"fo{i}"); st(f"""buffer_store_dwordx4 {v(act[1]+4*i,4)}, v{vo_[i]}, {s(sSP,4)}, s{sO} offen offset:{1024*i} {["", "sc1", "nt", "sc0 sc1"][cfg.get("os", 0)]}""")
    if TS[0]: st("s_mov_b64 exec, -1")
    if TS[0] == 1: st(f"v_writelane_b32 v255, s{sCnt}, 5")
    wend(a, name)
    x = St(a)
    for p in "pq"[:1 + (f5 >= 0)]: x(f"""{name}_{p}retry:
    s_cmp_eq_u32 s{sCnt}, 0
    s_cbranch_scc1 {name}_{p}ok
    s_sub_u32 s{sCnt}, s{sCnt}, 1
    {fld}
    s_waitcnt vmcnt(0)
    s_branch {name}_{p}oll""")
    for i in range(4):
        x(f"{name}_o{i}_retry:\n s_cmp_eq_u32 s{sCnt}, 0\n s_cbranch_scc1 {name}_o{i}_ok\n s_sub_u32 s{sCnt}, s{sCnt}, 1")
        ald(x, i)
        for m in range(i+1, 4 if i else oi):
            x(f"s_waitcnt vmcnt({5*(4-m)})")
            for ks in range(5): x.run(ck(m, ks))
            x(f"{cke}\n s_cbranch_vccz {name}_o{i}_r{m}"); ald(x, m); x(f"{name}_o{i}_r{m}:")
        x(f"s_waitcnt vmcnt(0) lgkmcnt(0)\n s_branch {name}_o{i}")
    slow_path(a, name, sWS, sT, sN, [sWb[0], sWb[1], sB, sZb], mx, t, 254 if cfg.get("sa", 1) else 0)
    assert bool(cfg.get("sa", 1)) == bool(cfg.get("sb", 8))
```

```python
from kf import *
from kfA1 import span, gelu, unpk
Z2 = 104; Z1 = 136; ssr = [128, 132, 160, 164]; tg_ = 168; z1p = 176; sm = 188; vK1 = 192; raw = 196
aLw, aLr, vZn, aPark, aS, vSp, vF1, aTX, aPk = range(208, 217); vPk = [217, 218]; pkd = 224; kvd = 232; gr = 244
fl_ = fl
def waveB(E, st):
    a = E["a"]; name = E["name"]; cfg = E["cfg"]; S_ = E["S_"]; gS = E["gS"]; cR = E["cR"]
    sWS, sW, sT, sT2, sO, sN, sK, sTH, sHP, sE, sAct, sTag = [E[k] for k in "sWS sW sT sT2 sO sN sK sTH sHP sE sAct sTag".split()]
    sX = S_(4); sKW = S_(4); sKVo = S_(); sKVb = S_(); sCnt = S_(); sPk = S_(); sCw = S_(); sXo = S_(); sMx = S_(); sMz = S_(); sMq = S_(); sMk = S_(); sFl = S_()
    sMK = S_(2); sStr = S_(); sEx = S_(); sZs = S_(); sSt = S_(); sF2 = S_(); sF3 = S_(); sF4 = S_(); sPs = [S_(), S_()]; C = lambda k, d: cfg.get(k, d)/10; FS = cfg.get('fs', 7)
    TB = cfg.get("tsb", 0); stamp_ = globals()["stamp"]; stamp = (lambda a, k: None) if TB else stamp_
    def tb(b, odd):
        if TB and b != 4: a(f"s_bitcmp1_b32 s{sK}, 0\n s_cbranch_scc{1-odd} {name}_tb{b}_{odd}"); stamp_(a, b+1); a(f"{name}_tb{b}_{odd}:")
    vz = 4; vA = [11, 252]; t0, t1 = 253, 254
    vx = [12, 13]; vw = [14, 15, 16]; vq = [17, 18, 19]; vk = 20; vg = 21; aQx = 30; t = 22
    st(f"""{name}_B:
    s_setprio {cfg.get("p2", 0)}
    v_lshrrev_b32 v{t}, 3, v0
    s_lshl_b32 s{sT}, s{sK}, 4
    v_bfe_u32 v{t+1}, v0, 4, 2
    v_and_b32 v{t+2}, 7, v0
    s_lshl_b32 s{sT2}, s{S_TG}, 6
    v_xor_b32 v{t+1}, v{t+1}, v{t+2}
    s_add_u32 s{sT2}, s{sT2}, s{sT}
    v_add_u32 v{t}, s{sT2}, v{t}
    v_mul_u32_u24 v{t}, 0x500, v{t}
    v_lshl_add_u32 v{vx[0]}, v{t+1}, 4, v{t}
    s_mul_i32 s{sMz}, s{sK}, 3072
    v_xor_b32 v{vx[1]}, 64, v{vx[0]}
    s_lshl_b32 s{sT2}, s{sMz}, 4
    v_add_u32 v{vx[1]}, {8*1280-1024}, v{vx[1]}
    v_lshlrev_b32 v{vA[0]}, 4, v0
    """)
    for i in range(3):
        st(f"""v_add_u32 v{t}, {64*i}, v0
        v_mul_u32_u24 v{t}, 5462, v{t}
        v_lshrrev_b32 v{t}, 16, v{t}
        v_mul_u32_u24 v{t}, {3072-192}, v{t}
        v_add3_u32 v{vw[i]}, v{t}, v{vA[0]}, s{sT2}""")
    if cfg.get("stag", 1): st(f"""
    s_and_b32 s{sT}, s{S_J if E["JB"] < 3 else S_TG}, 3
    s_mul_i32 s{sT}, s{sT}, {cfg.get("sj", 3)}
    s_add_u32 s{sCw}, s{sT}, s{S_TG if E["JB"] < 3 else S_J}
    s_mul_i32 s{sT}, s{sCw}, 26
    s_lshr_b32 s{sT}, s{sT}, 8
    s_mul_i32 s{sT}, s{sT}, 10
    s_sub_u32 s{sCw}, s{sCw}, s{sT}""")
    else: st(f"s_mov_b32 s{sCw}, 0")
    st(f"""
    s_lshl_b32 s{sXo}, s{sCw}, 7
    s_lshl_b32 s{sMx}, s{sK}, 11
    s_add_u32 s{sMx}, s{sMx}, {X0}
    s_mul_i32 s{sMk}, s{sK}, 640
    v_add_u32 v{vk}, s{sMk}, v{vA[0]}
    s_mul_i32 s{sT}, s{S_J}, 192
    s_add_u32 s{sT}, s{sT}, 1536
    s_sub_u32 s{sW+2}, {640*3072}, s{sT}
    s_mov_b32 s{sW+3}, 0x20000
    s_mov_b32 s{sX+2}, {2048*1280}
    s_mov_b32 s{sX+3}, 0x20000
    s_cmp_lt_u32 s{S_J}, 2
    s_cselect_b32 s{sMK}, -1, 0
    s_cselect_b32 s{sMK+1}, 0xff, 0
    s_mov_b32 s{sKW+2}, 25600
    s_mov_b32 s{sKW+3}, 0x20000
    s_waitcnt lgkmcnt(0)
    s_mov_b32 s{sX}, s{P_X}
    s_mov_b32 s{sX+1}, s{P_X+1}
    s_add_u32 s{sW}, s{P_WIN}, s{sT}
    s_addc_u32 s{sW+1}, s{P_WIN+1}, 0
    s_bitcmp1_b32 s{S_J}, 0
    s_cselect_b32 s{sKW}, s{P_WV}, s{P_WK}
    s_cselect_b32 s{sKW+1}, s{P_WV+1}, s{P_WK+1}
    """)
    def dX(i):
        return [(f"""s_add_u32 m0, s{sMx}, {xblk(i)}
        s_add_u32 s{sT}, s{sXo}, 128
        buffer_load_dwordx4 v{vx[0]}, {s(sX,4)}, s{sXo} offen {CP[cfg.get('c2', 0)]} lds
        buffer_load_dwordx4 v{vx[1]}, {s(sX,4)}, s{sXo} offen offset:1024 {CP[cfg.get('c2', 0)]} lds
        s_cmp_eq_u32 s{sT}, 1280
        s_cselect_b32 s{sXo}, 0, s{sT}""", f"x{i}")]
    def dW(q):
        L = []; Q = q >= 10; x = ""
        if q < 10: L.append((f"""s_add_u32 m0, s{sMk}, {POS[q]+12288}
            s_mul_i32 s{sO}, s{sCw}, 2560
            s_mov_b64 exec, {s(sMK,2)}
            buffer_load_dwordx4 v{vk}, {s(sKW,4)}, s{sO} offen lds
            s_mov_b64 exec, -1""", f"w{q}"))
        if q == 10: x = f"""s_mul_i32 s{sT}, s{S_J}, 160
            s_add_u32 s{sE}, s{P_WQ}, s{sT}
            s_addc_u32 s{sE+1}, s{P_WQ+1}, 0
            s_sub_u32 s{sT}, {640*1280}, s{sT}
            s_sub_u32 s{sW}, s{sW}, 1536
            s_subb_u32 s{sW+1}, s{sW+1}, 0
            s_mul_i32 s{sCw}, s{sCw}, s{sStr}
            s_lshl_b32 s{sCw}, s{sCw}, 1
            s_cmp_lt_u32 s{sK}, 2
            s_cselect_b64 {s(sW,2)}, {s(sW,2)}, {s(sE,2)}
            s_cselect_b32 s{sW+2}, s{sW+2}, s{sT}\n"""
        x += f"s_add_u32 m0, s{sMq}, {POS[q]}\n s_add_u32 s{sO}, s{sCw}, s{sStr}\n" if Q else f"s_add_u32 m0, s{sMz}, {POS[q]}\n s_mul_i32 s{sO}, s{sCw}, {64*3072}\n"
        for i in range(3):
            x += f"buffer_load_dwordx4 v{(vq if Q else vw)[i]}, {s(sW,4)}, s{sCw if Q else sO} offen offset:{1024*i} {CP[cfg.get('c3', 0)]} lds\n"
            if i == 0 and not Q: x += f"s_add_u32 s{sCw}, s{sCw}, 1\n s_cmp_eq_u32 s{sCw}, 10\n s_cselect_b32 s{sCw}, 0, s{sCw}"
            if i == 2 and Q: x += f"s_cmp_eq_u32 s{sO}, s{sEx}\n s_cselect_b32 s{sCw}, 0, s{sO}"
            L.append((x, f"w{q}")); x = ""
        return L
    st(f"s_mov_b32 s{sN}, s{sXo}")
    n0 = cfg.get("n0", 3); nb = cfg.get("nb", 2); xq = list(range(10)); wq = list(range(30))
    def issue(b, n):
        L = []
        for i in range(n):
            if xq: L += dX(xq.pop(0))
            if wq and FREE[wq[0]] <= b: L += dW(wq.pop(0))
        return L
    st.run(issue(-1, n0))
    srd(a, sWS, P_WS, WS_END)
    st(f"s_mov_b32 s{sT}, {hx(WS_EP)}\n s_load_dword s{sTag}, {s(P_WS,2)}, s{sT}")
    st(f"""
    s_mul_i32 s{sT}, s{sK}, 320
    s_add_u32 s{sT}, s{sT}, s{sN}
    v_add_u32 v{vg}, s{sT}, v{vA[0]}
    v_subrev_u32 v{t}, 1280, v{vg}
    v_min_u32 v{vg}, v{vg}, v{t}
    s_and_b32 s{sT}, s{sK}, 1
    s_mul_i32 s{sMq}, s{sT}, 6144
    s_mul_i32 s{sT2}, s{sT}, {16*1280}
    s_cmp_lt_u32 s{sK}, 2
    s_cselect_b32 s{sStr}, {32*3072}, {0}
    s_cselect_b64 vcc, -1, 0
    s_cselect_b32 s{sT}, 0, 3072
    s_add_u32 s{sMq}, s{sMq}, s{sT}
    s_max_u32 s{sStr}, s{sStr}, {32*1280}
    s_mul_i32 s{sEx}, s{sStr}, 20
    """)
    for i in range(3):
        st(f"""v_add_u32 v{t}, {64*i}, v0
        v_mul_u32_u24 v{t}, 6554, v{t}
        v_lshrrev_b32 v{t}, 16, v{t}
        v_mul_u32_u24 v{t+1}, 160, v{t}
        v_sub_u32 v{t+1}, v{vA[0]}, v{t+1}
        v_and_b32 v{t+2}, 8, v{t}
        v_bfe_u32 v{t+3}, v{t}, 1, 2
        v_and_b32 v{t}, 1, v{t}
        v_lshl_add_u32 v{t}, v{t}, 2, v{t+3}
        v_add_u32 v{t}, v{t}, v{t+2}
        v_mul_u32_u24 v{t}, 0x500, v{t}
        v_add3_u32 v{vq[i]}, v{t}, v{t+1}, s{sT2}
        {f"s_mov_b32 exec_lo, 0{chr(10)} v_mov_b32 v{vq[i]}, -4.0{chr(10)} s_mov_b32 exec_lo, -1" if i == 2 else ""}
        v_cndmask_b32 v{vq[i]}, v{vq[i]}, v{vw[i]}, vcc""")
    E["common"](st)
    kv_addr(st, t)
    st(f"""
    s_add_u32 s{sKVb}, s{sMz}, {KV0}
    v_add_u32 v{vz}, s{sMz}, v{vA[0]}
    v_add_u32 v{aQx}, {QX}, v{vz}
    s_lshr_b32 s{sKVo}, s{S_TG}, 1
    s_mul_i32 s{sKVo}, s{sKVo}, {KVS}
    s_add_u32 s{sKVo}, s{sKVo}, {hx(WS_KV)}
    v_add_u32 v{vA[1]}, 0x1000, v{vA[0]}
    s_mov_b32 s{sCnt}, 0x8000
    s_mov_b32 s{sFl}, {hx(FL1)}
    s_and_b32 s{sT}, s{S_TG}, 30
    v_min_u32 v{t0}, {cfg.get("nf", 12)-1}, v0
    v_lshl_add_u32 v{t0}, s{sT}, 1, v{t0}
    v_and_b32 v{t0}, 63, v{t0}
    v_lshlrev_b32 v{t0}, {FS}, v{t0}
    s_lshl_b32 s{sT}, s{S_J}, 2
    s_add_u32 s{sT}, s{sT}, s{sK}
    s_lshl_b32 s{sF4}, s{sT}, {FS+5}
    s_add_u32 s{sF4}, s{sF4}, {hx(FL4)}
    s_mul_i32 s{sPk}, s{sT}, {11*5120}
    s_add_u32 s{sPk}, s{sPk}, {hx(WS_PK)}
    s_mul_i32 s{sT}, s{sK}, 6144
    s_add_u32 s{sT}, s{sT}, {hx(WS_ACT+20*1024)}
    """)
    for i in range(4): st(f"s_add_u32 s{sAct[i]}, s{sAct[i]}, s{sT}")
    def kv(c):
        L = [(f"s_add_u32 m0, s{sKVb}, {slot(c)}\n s_nop 0\n" if i == 0 else "") + f"buffer_load_dwordx4 v{vz}, {s(sWS,4)}, s{sKVo} offen offset:{1024*i} {CQ[cfg.get('c7', 0)]} lds" for i in range(3)]
        L[2] += f"\n s_add_u32 s{sKVo}, s{sKVo}, {KVS}\n s_cmp_eq_u32 s{sKVo}, {hx(WS_KV+16*KVS)}\n s_cselect_b32 s{sKVo}, {hx(WS_KV)}, s{sKVo}"
        return [(x, f"kv{c}") for x in L]
    fl = lambda sF: f"buffer_load_dword v{t1}, v{t0}, {s(sWS,4)}, s{sF} offen sc1"
    polls = []
    def poll(nm, sF, k):
        def f(st_):
            st_(f"{name}_{nm}poll:"); st_.w("F")
            st_(f"v_cmp_ne_u32 vcc, s{sTag}, v{t1}\n s_cbranch_vccnz {name}_{nm}retry\n {name}_{nm}ok:"); polls.append((nm, sF))
            if k: stamp(a, k)
        return f
    flag = lambda tag, sF, o=0: ["s_mov_b64 exec, 1", ("@", tag), f"buffer_store_dword v{gr+1}, off, {s(sWS,4)}, s{sF} sc1\n s_mov_b64 exec, -1"]
    ex = [[] for b in range(47)]
    def put(items, w0, w1):
        for i, it in enumerate(items): x = w0 + (w1-w0)*(i+0.5)/len(items); ex[int(x)].append((x, it))
    h, e, tok = t+1, t+2, t+3; T = kvd+4
    put([f"""
    v_lshrrev_b32 v{h}, 5, v0
    v_bfe_u32 v{e}, v0, 2, 2
    v_and_b32 v{tok}, 31, v0
    v_and_b32 v{t+5}, 3, v0
    s_lshl_b32 s{sT}, s{sTH}, 1
    s_add_u32 s{sT}, s{sT}, s{sHP}
    s_lshl_b32 s{sT}, s{sT}, 9
    s_add_u32 s{sT}, s{sT}, {STX}
    v_lshl_add_u32 v{aS}, v0, 3, s{sT}""", f"""
    s_lshl_b32 s{sT}, s{sK}, 10
    s_add_u32 s{sT}, s{sT}, {LNS}
    v_lshl_add_u32 v{aLw}, v{tok}, 5, s{sT}
    v_lshl_add_u32 v{aLw}, v{h}, 3, v{aLw}
    v_lshrrev_b32 v{t+6}, 4, v0
    v_lshl_add_u32 v{aLr}, v{t+6}, 3, v{e}
    v_lshl_add_u32 v{aLr}, v{aLr}, 5, s{sT}
    v_lshl_add_u32 v{aLr}, v{t+5}, 3, v{aLr}""", f"""
    v_mul_u32_u24 v{vZn}, 3072, v{h}
    v_and_b32 v{t+6}, 1, v{t+6}
    v_lshl_add_u32 v{vZn}, v{t+6}, 9, v{vZn}
    v_and_b32 v{t+6}, 7, v0
    v_lshl_add_u32 v{vZn}, v{t+6}, 4, v{vZn}
    v_bfe_u32 v{t+6}, v0, 3, 1
    v_lshl_add_u32 v{vZn}, v{t+6}, 8, v{vZn}
    v_add_u32 v{aTX}, {TX}, v{vz}""", f"""
    s_lshl_b32 s{sT}, s{S_TG}, 1
    s_add_u32 s{sT}, s{sT}, s{sTH}
    s_lshl_b32 s{sSt}, s{sT}, 12
    s_add_u32 s{sSt}, s{sSt}, {hx(WS_ST2)}
    s_mul_i32 s{sZs}, s{sT}, 6144
    s_mul_i32 s{sT}, s{S_J}, {128*3072}
    s_add_u32 s{sZs}, s{sZs}, s{sT}
    s_lshl_b32 s{sT}, s{sHP}, 7
    s_add_u32 s{sZs}, s{sZs}, s{sT}
    s_add_u32 s{sZs}, s{sZs}, {hx(WS_Z2N)}""", f"""
    s_lshl_b32 s{sT}, s{S_J}, 5
    s_add_u32 s{sT}, s{sT}, s{S_TG}
    s_lshl_b32 s{sT}, s{sT}, 2
    s_add_u32 s{sT}, s{sT}, s{sK}
    s_lshl_b32 s{sF2}, s{sT}, {FS}
    s_lshl_b32 s{sT}, s{S_TG}, 2
    s_add_u32 s{sT}, s{sT}, s{sK}
    s_lshl_b32 s{sT}, s{sT}, {FS+3}
    s_add_u32 s{sF3}, s{sT}, {hx(FL3)}""", f"""
    s_lshl_b32 s{sT2}, s{sHP}, 5
    s_sub_u32 s{sT2}, 32, s{sT2}
    v_cmp_gt_u32 vcc, s{sT2}, v0
    s_lshl_b32 s{sT}, s{S_J}, 9
    v_add_u32 v{t+6}, s{sT}, v{vA[0]}
    v_cndmask_b32 v{vSp}, -4.0, v{t+6}, vcc
    v_mov_b32 v{vK1}, {fl_(-GK1)}
    v_mov_b64 {v(sm,2)}, 0
    v_mov_b64 {v(sm+2,2)}, 0""",
    f"""s_lshr_b32 s{sT}, s{S_TG}, 1
    s_mul_i32 s{sN}, s{sT}, {KVS}
    s_and_b32 s{sT}, s{S_TG}, 1
    s_lshl_b32 s{sT2}, s{sT}, 1
    s_add_u32 s{sT2}, s{sT2}, s{sTH}
    s_mul_i32 s{sKW+2}, s{sT2}, 1536
    s_add_u32 s{sKW+2}, s{sKW+2}, 5120
    s_lshl_b32 s{sT2}, s{sT2}, 10
    s_lshl_b32 s{sT}, s{sT}, 9
    s_add_u32 s{sT}, s{sT}, 0x1000
    s_cmp_eq_u32 s{sHP}, 0
    s_cselect_b32 s{sT}, s{sT2}, s{sT}
    s_cselect_b32 s{sT2}, 16, 0x400
    v_add_u32 v{T}, s{sT2}, v{aLw}
    s_cmp_eq_u32 s{S_J}, 0
    s_cselect_b32 s{sT}, s{sT}, s{sKW+2}
    s_cselect_b64 {s(sMK,2)}, -1, 0
    s_add_u32 s{sN}, s{sN}, s{sT}
    s_add_u32 s{sN}, s{sN}, {hx(WS_KV)}
    s_cmp_lt_u32 s{S_J}, 2
    s_cselect_b32 s{sKW+2}, s{sN}, {hx(WS_END)}""", (not cfg.get("sb", 8))*f"""
    v_bfe_u32 v{T+1}, v0, 4, 1
    v_lshlrev_b32 v{T+1}, 7, v{T+1}
    v_sub_u32 v{T+1}, v{aLr}, v{T+1}""" + f"""
    s_lshl_b32 s{sT}, s{sHP}, 4
    v_and_b32 v{t+4}, 15, v0
    v_add_u32 v{t+4}, s{sT}, v{t+4}
    v_lshrrev_b32 v{T+2}, 4, v0
    v_mul_u32_u24 v{T+2}, 0x180, v{T+2}
    v_lshl_add_u32 v{T+2}, v{t+4}, 4, v{T+2}
    v_mov_b32 v{T+3}, 0x3f803f80
    v_cmp_eq_u32 vcc, 20, v{t+4}
    v_cmp_gt_u32 {s(sKW,2)}, 24, v{t+4}
    s_lshl_b32 s{sT}, s{sK}, 5
    s_sub_u32 s{sT}, 96, s{sT}
    v_cndmask_b32 v{T+3}, 0, v{T+3}, vcc
    v_cmp_gt_u32 vcc, s{sT}, v0
    v_cndmask_b32 v{T+2}, -4.0, v{T+2}, {s(sKW,2)}
    v_cmp_gt_u32 {s(sKW,2)}, 20, v{t+4}
    v_cndmask_b32 v{t+4}, -4.0, v{vA[0]}, vcc
    v_cndmask_b32 v{T+2}, v{T+2}, v{t+4}, {s(sMK,2)}
    s_or_b64 {s(sKW,2)}, {s(sKW,2)}, {s(sMK,2)}""",
    f"""s_and_b32 s{sT}, s{S_TG}, 7
    s_lshl_b32 s{sT}, s{sT}, 2
    s_add_u32 s{sT}, s{sT}, s{sK}
    s_lshr_b32 s{sT2}, s{S_TG}, 3
    s_lshl_b32 s{sN}, s{S_J}, 2
    s_add_u32 s{sN}, s{sN}, s{sT2}
    s_mul_i32 s{sN}, s{sN}, 55
    s_add_u32 s{sN}, s{sN}, s{sT}
    s_lshl_b32 s{sN}, s{sN}, 10
    s_add_u32 s{sPs[0]}, s{sN}, {hx(WS_PK)}
    s_add_u32 s{sPs[1]}, s{sN}, {hx(WS_PK+30*1024)}
    s_cmp_lt_u32 s{sT}, 30
    s_cselect_b32 s{sPs[0]}, s{sPs[0]}, {hx(WS_END)}
    s_cmp_lt_u32 s{sT}, 25
    s_cselect_b32 s{sPs[1]}, s{sPs[1]}, {hx(WS_END)}
    s_mul_i32 s{sE}, s{sT}, 52
    s_lshr_b32 s{sE}, s{sE}, 8
    s_sub_u32 s{sN}, s{S_J}, s{sE}
    s_mul_i32 s{sN}, s{sN}, 5
    s_add_u32 s{sN}, s{sN}, s{sT}
    s_lshl_b32 s{sN}, s{sN}, 5
    v_and_b32 v{t}, 1, v0
    v_lshl_add_u32 v{t}, v{t}, 4, s{sN}
    v_bfe_u32 v{t+4}, v0, 1, 2
    v_bfe_u32 v{t+5}, v0, 3, 1
    v_bfe_u32 v{t+6}, v0, 4, 1""", f"""
    s_lshr_b32 s{sT2}, s{S_TG}, 3
    s_mul_i32 s{sN}, s{sT2}, 12
    s_add_u32 s{sN}, s{sN}, s{sE}
    s_cmp_ge_u32 s{sE}, 3
    s_cselect_b32 s{sT}, 3, 0
    s_add_u32 s{sN}, s{sN}, s{sT}
    s_lshl_b32 s{sN}, s{sN}, 4
    v_lshl_add_u32 v{vPk[0]}, v{t+5}, 2, v{t+4}
    v_mad_u32_u24 v{vPk[0]}, v{t+6}, 48, v{vPk[0]}
    v_lshl_add_u32 v{vPk[0]}, v{h}, 3, v{vPk[0]}
    v_add_u32 v{vPk[0]}, s{sN}, v{vPk[0]}
    v_mul_u32_u24 v{vPk[0]}, 0x500, v{vPk[0]}
    v_add_u32 v{vPk[0]}, v{vPk[0]}, v{t}""", f"""
    s_and_b32 s{sT}, s{sE}, 1
    s_and_b32 s{sN}, s{sE}, 2
    s_lshl_b32 s{sN}, s{sN}, 1
    s_add_u32 s{sN}, s{sN}, s{sT}
    s_mul_i32 s{sN}, s{sN}, 20
    s_cmp_eq_u32 s{sE}, 4
    s_cselect_b32 s{sN}, 16, s{sN}
    s_cselect_b32 s{sT}, 20, 4
    v_mad_u32_u24 v{vPk[1]}, v{t+5}, s{sT}, v{t+4}
    s_cselect_b32 s{sT}, 80, 40
    v_mad_u32_u24 v{vPk[1]}, v{t+6}, s{sT}, v{vPk[1]}
    s_cselect_b32 s{sT}, 40, 8
    v_mad_u32_u24 v{vPk[1]}, v{h}, s{sT}, v{vPk[1]}
    s_lshr_b32 s{sT2}, s{S_TG}, 3
    s_mul_i32 s{sT2}, s{sT2}, 160
    s_add_u32 s{sN}, s{sN}, s{sT2}
    v_add_u32 v{vPk[1]}, s{sN}, v{vPk[1]}
    v_mul_u32_u24 v{vPk[1]}, 0x500, v{vPk[1]}
    v_add_u32 v{vPk[1]}, v{vPk[1]}, v{t}
    s_lshl_b32 s{sT}, s{sK}, 11
    s_add_u32 s{sMk}, s{sT}, {PKS}
    v_lshl_add_u32 v{aPk}, v0, 3, s{sMk}""", f"""
    s_waitcnt lgkmcnt(0)
    s_add_u32 s{sTag}, s{sTag}, {hx(TAGC)}
    v_mov_b32 v{gr+1}, s{sTag}
    v_mov_b32 v{gr+3}, s{sTag}
    s_lshl_b32 s{sT}, s{S_TG}, 1
    s_add_u32 s{sT}, s{sT}, s{S_J}
    s_lshl_b32 s{sT}, s{sT}, {FS}
    s_add_u32 s{sXo}, s{sT}, {hx(FL1)}
    s_lshl_b32 s{sT}, s{sK}, 1
    s_or_b32 s{sT}, s{sT}, s{S_J}
    s_cmp_lt_u32 s{sT}, 2
    s_cselect_b32 s{sXo}, s{sXo}, {hx(WS_END)}"""], 6, 12)
    gate = (f"""s_mul_i32 s{sT}, s{sK}, 320
    s_add_u32 m0, s{sT}, {GATE}
    s_mov_b32 s{sX}, s{P_GW}
    s_mov_b32 s{sX+1}, s{P_GW+1}
    s_mov_b32 s{sX+2}, 1280
    s_mov_b64 exec, 0xfffff
    buffer_load_dwordx4 v{vg}, {s(sX,4)}, 0 offen lds
    s_mov_b64 exec, -1""", "x10")
    kvs = [(f"""ds_read_b64_tr_b16 {v(kvd,2)}, v{aLr if cfg.get("sb", 8) else T+1}
    ds_read_b64_tr_b16 {v(kvd+2,2)}, {f"v{aLr} offset:128" if cfg.get("sb", 8) else f"v{T+1} offset:256"}
    s_mov_b64 exec, {s(sMK,2)}
    ds_read_b64 {v(kvd,2)}, v{aLw}
    ds_read_b64 {v(kvd+2,2)}, v{T}
    s_mov_b64 exec, -1""", "kr"), [("@", "kr")] + [f"v_cndmask_b32 v{kvd+i}, v{T+3}, v{kvd+i}, {s(sKW,2)}" for i in range(4)] +
    [(f"buffer_store_dwordx4 {v(kvd,4)}, v{T+2}, {s(sWS,4)}, s{sKW+2} offen sc1", "kvs")]]
    g2 = C("g2", 219); hl = 1
    for n in range(3): put([(f"ds_read_b128 {v(raw+4*n,4)}, v{aTX} offset:{1024*n}", f"tx{n}")] , 11+n+hl, 11+n+hl)
    put(kvs[:1], 12, 12); put(kvs[1:], C("kp", 128), C("kp", 128))
    def gz(g):
        X = range(Z2+8*g, Z2+8*g+8); L = [f"v_lshlrev_b32 v{x}, 16, v{raw+4*g+i}\n v_and_b32 v{x+1}, 0xffff0000, v{raw+4*g+i}" for i, x in enumerate(X[::2])]
        return [[("@", f"tx{g}"), L[0]]] + L[1:] + gelu(X, tg_, vK1, ("v_add_f32 {s1}, {s1}, {x}", "v_fmac_f32 {s2}, {x}, {x}"), s1=sm, s2=sm+2)
    assert g2 >= 14.2+hl
    put(gz(0) + gz(1) + gz(2) +
        [f"v_add_f32 v{sm}, v{sm}, v{sm+1}\n v_add_f32 v{sm+1}, v{sm+2}, v{sm+3}\n v_mov_b64 {v(tg_,2)}, {v(sm,2)}\n s_nop 1\n v_permlane32_swap_b32 v{sm}, v{tg_}\n v_permlane32_swap_b32 v{sm+1}, v{tg_+1}",
         (f"v_add_f32 v{sm}, v{sm}, v{tg_}\n v_add_f32 v{sm+1}, v{sm+1}, v{tg_+1}\n ds_write_b64 v{aS}, {v(sm,2)}", "stx")], 11.1+hl, g2)
    put([(f"ds_read_b64 {v(tg_,2)}, v{aS} offset:512", "sty"),
         [("@", "sty"), f"""v_add_f32 v{gr}, v{sm}, v{tg_}
         v_add_f32 v{gr+2}, v{sm+1}, v{tg_+1}
         buffer_store_dwordx4 {v(gr,4)}, v{vSp}, {s(sWS,4)}, s{sSt} offen sc1"""]], int(g2)+1, int(g2)+1)
    f1b = cfg.get("f1b", 16)
    put([flag("kvs", sXo)], f1b, f1b)
    sld = [(f"buffer_load_dwordx4 {v(ssr[i],4)}, v{vA[0]}, {s(sWS,4)}, s{sSt} offen offset:{1024*i} sc1", "ss") for i in range(4)]
    m, n_ = tg_+2, tg_+3; mu = sm
    def schk(st_):
        st_(f"{name}_schk:"); st_.w("ss")
        G_ = [x+o for x in ssr for o in (1, 3)]
        for op, d in (("max", m), ("min", n_)):
            st_(f"v_{op}3_u32 v{d}, v{G_[0]}, v{G_[1]}, s{sTag}")
            for i in (2, 4, 6): st_(f"v_{op}3_u32 v{d}, v{G_[i]}, v{G_[i+1]}, v{d}")
        st_(f"v_cmp_ne_u32 vcc, v{m}, v{n_}\n s_cbranch_vccnz {name}_sretry\n {name}_sok:")
        stamp(a, 4)
    LN = [schk]
    for o in (0, 2): LN += [f"v_add_f32 v{m}, v{ssr[0]+o}, v{ssr[1]+o}\n v_add_f32 v{n_}, v{ssr[2]+o}, v{ssr[3]+o}\n v_add_f32 v{mu+o//2}, v{m}, v{n_}"]
    LN += [f"v_mov_b64 {v(m,2)}, {v(mu,2)}\n s_nop 1\n v_permlane32_swap_b32 v{mu}, v{m}\n v_permlane32_swap_b32 v{mu+1}, v{m+1}",
           f"v_add_f32 v{mu}, v{mu}, v{m}\n v_add_f32 v{mu+1}, v{mu+1}, v{m+1}\n v_mul_f32 v{mu}, {fl_(1/768)}, v{mu}\n v_mul_f32 v{mu+1}, {fl_(1/768)}, v{mu+1}",
           f"v_fma_f32 v{mu+1}, -v{mu}, v{mu}, v{mu+1}\n v_max_f32 v{mu+1}, 0, v{mu+1}\n v_add_f32 v{mu+1}, {fl_(1e-5)}, v{mu+1}\n v_rsq_f32 v{mu+1}, v{mu+1}\n s_nop 0\n v_mul_f32 v{mu}, v{mu}, v{mu+1}"]
    zst = lambda n: [("@", "tr"), (f"buffer_store_dwordx4 {v(Z2+8*n,4)}, v{vZn}, {s(sWS,4)}, s{sZs} offen offset:{1024*n} sc1", "zn")]
    for n in range(3):
        for a_ in range(2):
            q = Z2+8*n+4*a_
            LN += [f"v_fma_f32 v{q+i}, v{q+i}, v{mu+1}, -v{mu}\n v_fma_f32 v{q+i+1}, v{q+i+1}, v{mu+1}, -v{mu}" for i in (0, 2)]
            LN += [f"v_cvt_pk_bf16_f32 v{q}, v{q}, v{q+1}\n v_cvt_pk_bf16_f32 v{q+1}, v{q+2}, v{q+3}\n ds_write_b64 v{aLw}, {v(q,2)} offset:{16*a_}"]
            if a_ == 0 and n: LN.append(zst(n-1))
        LN += [(f"ds_read_b64_tr_b16 {v(Z2+8*n,2)}, v{aLr}\n ds_read_b64_tr_b16 {v(Z2+8*n+2,2)}, v{aLr} offset:128", "tr")]
    LN.append(zst(2))
    sl, l0, l1 = C("sl", 285), C("l0", 293), C("l1", 299)
    put(sld, sl, sl+0.5); put(LN, l0, l1)
    if C("pl", 280): put(["s_setprio 2"], C("pl", 280), C("pl", 280)); put([f"s_setprio {cfg.get('p2', 0)}"], 29.99, 29.99)
    b1 = C("b1", 258); b2 = C("b2", 280); kd = C("kd", 5); assert b2 >= 21
    put([(fl(sFl), "F")], b1, b1)
    put([poll("k", sFl, 3)], b2, b2)
    for c in range(3): put([kv(c)], b2+0.01+c*kd, b2+0.01+c*kd)
    put([(f"v_lshlrev_b32 v{t0}, {FS}, v0\n" + fl(sFl), "F")], C("b3", 290), C("b3", 290))
    put([poll("l", sFl, 0)], 30.99, 30.99)
    for b in range(30):
        lstamp(a, 2*b); st.w(f"w{b}", f"x{b}", "stx", *(["kvs"] if b == f1b else []), *(["tx2"] if b == TXF else []))
        tb(b, 1); st("s_barrier"); tb(b, 0); lstamp(a, 2*b+1)
        if b in (0, 10, 20): stamp(a, {0: 1, 10: 2, 20: 6}[b])
        D = issue(b, nb if b >= cfg.get("nc", 0) else 1) + ([gate] if b == cfg.get("gb", 5) else []); assert b < cfg.get("gb", 5) or not xq
        L = [(b + 0.01 + C("dsp", 7)*i/len(D), x) for i, x in enumerate(D)] + ex[b]
        for x in sorted(L, key=lambda y: y[0]): st.run(x[1])
    assert not xq and not wq
    lstamp(a, 60); st.w("kv0", "stx")
    st("s_barrier"); stamp(a, 7); lstamp(a, 61); lstamp(a, None)
    if TS[0] == 2: a("s_memrealtime s[98:99]")
    for i in range(3): st(f"ds_read_b128 {v(r.Q16[0]+4*i,4)}, v{aQx} offset:{1024*i}", "Q")
    pb = cfg.get("pb", 0)
    sc = attention(1, [[0]*4]*16, None, lambda c: [f"kv{c+1}"], lambda c: [(lambda st_, c=c: stamp(a, 8+c))], lambda c, i: pb if (c, i) == (0, 0) and pb != cfg.get("p2", 0) else 2 if 4*c+i == cfg.get("pc", -1) else None, cfg.get("sb", 8), 251, cfg.get("bb", 6), {0: cfg.get("B0")})
    for c in range(13): sc.place(kv(c+3), c+1, 0.02, 0.15)
    for x, it in sorted(sum(ex[30:], []), key=lambda y: y[0]): span(sc, [it], x, x, 30)
    WU = lambda ks, c: BIG+4*(5*ks+c)
    w0 = cfg.get("w0", 11); w1 = cfg.get("w1", 16); L = pkloads(BIG, 30, 249 if cfg.get("xp", 0) & 1 else vA[0], sWS, sPk, "wu", cfg)
    if cfg.get("xp", 0) & 1: st("v_mov_b32 v249, 0")
    span(sc, [flag("zn", sF2)], C("f2", 10), C("f2", 10), 0)
    pkl = lambda i, ptr, n: (f"""s_mov_b32 s{sX}, s{ptr}
    s_mov_b32 s{sX+1}, s{ptr+1}
    s_add_u32 m0, s{sMk}, {1024*i}
    s_mov_b32 s{sX+2}, {n*1280}
    buffer_load_dwordx4 v{vPk[i]}, {s(sX,4)}, 0 offen lds""", "pk")
    span(sc, [pkl(0, P_WOUT, 768), pkl(1, P_WO, 640)], C("k0", 42), C("k0", 42)+0.3, 0)
    span(sc, [[("@", "pk")] + [(f"ds_read_b64_tr_b16 {v(pkd+2*i,2)}, v{aPk} offset:{512*i}", "pr") for i in range(4)]] +
         [[("@", "pr"), (f"buffer_store_dwordx4 {v(pkd+4*i,4)}, v{vA[0]}, {s(sWS,4)}, s{sPs[i]} offen sc1", "ps")] for i in range(2)], C("k1", 55), C("k1", 55)+0.3, 0)
    span(sc, [[f"s_add_u32 s{sF2}, s{sF2}, {hx(FL4)}"] + flag("ps", sF2)], C("k2", 62), C("k2", 62), 0)
    span(sc, [(f"v_and_b32 v{t0}, {hx((32 << FS)-1)}, v{t0}\n" + fl(sF4), "F")], w0-0.7, w0-0.7, 0)
    span(sc, [poll("w", sF4, 0)], w0+0.18, w0+0.18, 0)
    assert l1-30 < C("f2", 10) < C("k2", 62) < w0-0.7 and (C("k0", 42) < .71 or 1 < cfg.get("k0", 42) % 10 < 8)
    wd = cfg.get("wd", 0); cn = [30*(w+1-w0)//(w1-w0) - 30*(w-w0)//(w1-w0) for w in range(w0, w1)]
    if wd: cn = [wd // 100**(w1-1-w) % 100 for w in range(w0, w1)]
    assert sum(cn) == 30
    for w in range(w0, w1):
        if cn[w-w0]: sc.place(L[sum(cn[:w-w0]):sum(cn[:w+1-w0])], w, 0.2 if w < 14 else cfg.get("wf", 20)/100, 0.9 if w != 14 else cfg.get("wg", 90)/100)
    act = [224, 12, 36, 60]
    def ald(i): return [(f"buffer_load_dwordx4 {v(act[i]+4*ks,4)}, v{vA[ks>>2]}, {s(sWS,4)}, s{sAct[i]} offen offset:{1024*(ks&3)} {CQ[cfg.get('c8', 0)]}", f"{name}_u{i}") for ks in range(6)]
    aP = [5, 6, 7, 8, 9]; aO = 10
    sc.place([f"""s_mul_i32 s{sT}, s{sK}, 6144
    v_add_u32 v{aO}, s{sT}, v{r.aK}
    s_mul_i32 s{sT}, s{sK}, 5120
    v_add_u32 v{aP[4]}, s{sT}, v{r.aK}"""] + [f"""s_xor_b32 s{sT}, s{sK}, {d}
    s_mul_i32 s{sT}, s{sT}, 15360
    s_add_u32 s{sT}, s{sT}, {PB0}
    v_add_u32 v{aP[d]}, s{sT}, v{vA[0]}""" for d in range(4)] + [f"""s_lshl_b32 s{sT}, s{S_TG}, 3
    s_add_u32 s{sT}, s{sT}, s{S_J}
    s_lshl_b32 s{sT}, s{sT}, {FS}
    s_add_u32 s{sT}, s{sT}, {hx(FL5)}
    s_cmp_eq_u32 s{sK}, 0
    s_cselect_b32 s{sF4}, s{sT}, {hx(WS_END)}"""]*(cfg.get("f5", -1) > 2), 15, 0.3, 0.8)
    span(sc, [(f"v_and_b32 v{t0}, {hx((8 << FS)-1)}, v{t0}\n" + fl(sF3), "F")], C("u3", 157), C("u3", 157), 0)
    u0 = cfg.get("u0", 50); assert u0 < 100 or 0 <= cfg.get("f5", -1) < 3 or cfg.get("y0", 2) == 0 or cfg.get("xb", 1) or cfg.get("xs", 70)
    ud = C("ud", 0); aU = 248
    dld = lambda i: [((f"s_add_u32 m0, s{sMk}, {6144*(i-1)+1024*ks}\n s_nop 0\n" if ks & 3 == 0 else "") +
        f"buffer_load_dwordx4 v{vA[ks>>2]}, {s(sWS,4)}, s{sAct[i]} offen offset:{1024*(ks&3)} sc1 lds", f"ud{i}") for ks in range(6)]
    if ud:
        assert C("u3", 157) < ud >= cR+2; u0 = -1
        sc.place([f"s_mul_i32 s{sMk}, s{sK}, {AA}\n v_add_u32 v{aU}, s{sMk}, v{vA[0]}"], 13, 0.5, 0.5)
        span(sc, [poll("u", sF3, 0)] + ald(0) + dld(1) + dld(2) + dld(3), ud, C("ue", 163), 0)
    elif u0 < 100: sc.place([poll("u", sF3, 0)] + ald(0), 16, u0/100, 0.95)
    sc.emit(st)
    f5 = cfg.get("f5", -1); fl5 = f"s_mov_b64 exec, 1\n buffer_store_dword v{t1}, off, {s(sWS,4)}, s{sF4} sc1\n s_mov_b64 exec, -1"
    if f5 == 4: st(fl5)
    for th in range(2):
        if th: st("s_nop 8")
        for i in range(3): st(f"ds_write_b128 v{aO}, {v(r.O[th]+4*i,4)} offset:{(3*th+i)*1024}", "po")
    ua = cfg.get("ua", 1)
    if 0 <= u0 < 100 and not ua: st.run(ald(1))
    if cfg.get("pc", -1) >= 0: st("s_setprio 0")
    st.w("po")
    stamp(a, 24); st("s_barrier"); stamp(a, 25)
    if TS[0] == 2: a("s_memrealtime s[96:97]")
    if u0 >= 100: st.run([poll("u", sF3, 0)] + ald(0) + ald(1))
    if 0 <= u0 < 100 and ua == 1: st.run(ald(1))
    if f5 == 3: st(fl5)
    ub = divmod(cfg.get("ub", 2045), 100)
    ac = [84, 224, 84, 224]; tc = 250; pr = [12, 36, 84]
    if ud: ub = (-1, -1)
    ny = cfg.get("ny", 0); assert not ny or (68 <= cfg.get("xs", 70) <= 90 and cfg.get("nq", 1) == 1)
    for e in range(2):
        if ub[e] == 0: st.run(ald(2+e))
    if cfg.get("xb", 1): st("s_barrier")
    for i in range(4):
        st.w(f"{name}_u{i}")
        stamp(a, 26+i)
        ex = {}
        if i > 0:
            for c in range(5): ex[c+2] = (f"ds_write_b128 v{aP[0]}, {v(ac[i-1]+4*c,4)} offset:{(i-1)*5120+c*1024}", "pw")
        if ud and i < 3:
            for ks in range(6): ex[cfg.get("ur", 10)+2*ks] = [("@", f"ud{i+1}"), (f"ds_read_b128 {v(act[i+1]+4*ks,4)}, v{aU} offset:{6144*i+1024*ks}", f"{name}_u{i+1}")]
        rp = lambda d, c: (f"ds_read_b128 {v(pr[d]+4*c,4)}, v{aP[d+1]} offset:{d*5120+c*1024}", f"pr{c}")
        padd = lambda x, y: unpk([f"v_pk_add_f32 {v(x+h2,2)}, {v(x+h2,2)}, {v(y+h2,2)}" for h2 in (0, 2)], cfg.get("np", 7) & 4)
        if i == 3 and ny:
            for c in range(5): ex[8+2*c] = rp(0, c); ex[9+2*c] = rp(1, c); ex[20+2*c] = [("@", f"pr{c}")] + padd(pr[0]+4*c, pr[1]+4*c)
        elif i == 3:
            ex[9] = [("@", "pw"), "s_barrier"]
            for c in range(5):
                for d in range(3): ex[10+3*c+d] = rp(d, c)
        for ks in range(6):
            for c in range(5):
                q = ac[i]+4*c
                if f5 == 10+30*i+5*ks+c: st(fl5)
                if cfg.get("xs", 70) == 30*i+5*ks+c > 0: st.run([("@", "pw")]*ny + ["s_barrier"])
                for e in range(2):
                    if ub[e] == 30*i+5*ks+c > 0: st.run(ald(2+e))
                st(f"{MF16} {v(q,4)}, {v(WU(ks,c),4)}, {v(act[i]+4*ks,4)}, {'0' if ks == 0 else v(q,4)}")
                if 5*ks+c in ex: st.run(ex[5*ks+c])
    if ny:
        st("s_nop 3")
        for c in range(5): st.run(padd(ac[3]+4*c, pr[0]+4*c))
        st.w("pw"); st("s_barrier")
        if cfg.get("pz", 0): st("s_setprio 2")
        for c in range(5): st.run(rp(2, c))
    for c in range(5):
        st.w(f"pr{c}"); q = ac[3]+4*c
        if ny: st.run(padd(q, pr[2]+4*c))
        else: st.run(padd(pr[0]+4*c, pr[1]+4*c) + padd(pr[0]+4*c, pr[2]+4*c) + padd(q, pr[0]+4*c))
        st(f"ds_write_b128 v{aP[4]}, {v(q,4)} offset:{c*1024}")
    st("s_waitcnt lgkmcnt(0)")
    stamp(a, 30)
    if TS[0] == 2: a("v_writelane_b32 v255, s96, 25\n v_writelane_b32 v255, s98, 7")
    st("s_barrier\n"*(4-cfg.get("nq", 1)))
    if TS[0] == 1: st(f"v_writelane_b32 v255, s{sCnt}, 5")
    wend(a, name)
    x = St(a)
    for nm, sF in polls: x(f"""{name}_{nm}retry:
    s_cmp_eq_u32 s{sCnt}, 0
    s_cbranch_scc1 {name}_{nm}ok
    s_sub_u32 s{sCnt}, s{sCnt}, 1
    {fl(sF)}
    s_waitcnt vmcnt(0)
    s_branch {name}_{nm}poll""")
    x(f"{name}_sretry:\n s_cmp_eq_u32 s{sCnt}, 0\n s_cbranch_scc1 {name}_sok\n s_sub_u32 s{sCnt}, s{sCnt}, 1")
    x.run(sld); x(f"s_waitcnt vmcnt(0)\n s_branch {name}_schk")
```

```python
from kfA1 import *
from kbA import slow_path
def waveA(E, st):
    a = E["a"]; name = E["name"]; cfg = E["cfg"]; S_ = E["S_"]; gS = E["gS"]; cR = E["cR"]; JB = E["JB"]
    sWS, sW, sT, sT2, sO, sN, sK, sTH, sHP, sE, sAct, sTag = [E[k] for k in "sWS sW sT sT2 sO sN sK sTH sHP sE sAct sTag".split()]
    sSP = S_(4); sBS = S_(4); sAr = S_(); sWb = [S_(), S_()]; sB = S_(); sWo = S_(); sZb = S_(); sZn = S_(); sZo = S_(); sFl = S_(); sCnt = S_(); sU = S_(); sOa = S_(); sOx = S_()
    sGm = S_(2); sF3 = S_(); sPk = S_(); sSc = S_(); C = lambda k, d: cfg.get(k, d)/10; FS = cfg.get('fs', 7)
    aW = [4, 5, 6, 7]; vl = 8; vo = [9, 10, 11, 252]; acc = BIG; g16 = cfg.get("g16", 1); W = [200, 204, 244, 248]; NZ = 9 if g16 else 11; Z = [208+4*z for z in range(NZ)]; t0, t1 = 253, 204 if cfg.get("sa", 1) else 254
    T = 12; vE = 162; vu = 250
    st(f"{name}_A:")
    st(f"v_lshlrev_b32 v{vSt}, 4, v0\n s_setprio {cfg.get('p1', 1)}")
    E["common"](st)
    kv_addr(st, T+4)
    st(f"v_mov_b32 v{T}, v{vSt}")
    st(f"""
    s_mul_i32 s{sAr}, s{sK}, {AA}
    s_lshl_b32 s{sT}, s{S_TG}, 1
    s_add_u32 s{sT}, s{sT}, s{sTH}
    s_lshl_b32 s{sT2}, s{sK}, 10
    s_lshl_b32 s{sWb[0]}, s{sT}, 17
    s_add_u32 s{sWb[0]}, s{sWb[0]}, s{sT2}
    s_xor_b32 s{sWb[1]}, s{sWb[0]}, 0x20000
    s_mul_i32 s{sB}, s{S_J if JB < 3 else S_TG}, {cfg.get("wj", 2)}
    s_add_u32 s{sB}, s{sB}, s{S_TG if JB < 3 else S_J}
    s_and_b32 s{sB}, s{sB}, 7
    s_lshl_b32 s{sB}, s{sB}, 7
    s_mov_b32 s{sZn}, s{sB}
    s_mul_i32 s{sU}, s{sT}, {88*1024}
    s_add_u32 s{sU}, s{sU}, {hx(WS_ACT)}
    s_lshl_b32 s{sT}, s{S_J}, 2
    s_add_u32 s{sT}, s{sT}, s{sK}
    s_mul_i32 s{sZb}, s{sT}, {8*12288}
    s_add_u32 s{sZb}, s{sZb}, {hx(WS_Z2N)}
    s_lshl_b32 s{sFl}, s{sT}, {FS+5}
    v_lshrrev_b32 v{T+4}, 3, v0
    v_lshlrev_b32 v{T+4}, 12, v{T+4}
    v_lshrrev_b32 v{T+5}, 4, v0
    v_and_b32 v{T+6}, 7, v0
    v_xor_b32 v{T+5}, v{T+5}, v{T+6}
    v_lshl_add_u32 v{vo[0]}, v{T+5}, 4, v{T+4}
    v_xor_b32 v{T+5}, 64, v{vo[0]}
    v_add_u32 v{vo[1]}, {32768-1024}, v{T+5}
    v_add_u32 v{vo[2]}, {2*(32768-1024)}, v{vo[0]}
    v_add_u32 v{vo[3]}, {3*(32768-1024)}, v{T+5}
    v_lshrrev_b32 v{T+4}, 5, v0
    v_bfe_u32 v{T+5}, v0, 1, 3
    v_xor_b32 v{T+5}, v{T+5}, v{T+4}
    v_lshlrev_b32 v{T+5}, 4, v{T+5}
    v_and_b32 v{T+6}, 31, v0
    v_lshl_add_u32 v{T+5}, v{T+6}, 7, v{T+5}
    v_lshlrev_b32 v{t0}, {FS}, v{T+6}
    s_lshl_b32 s{sT}, s{sHP}, 7
    v_xor_b32 v{vl}, s{sT}, v{T}
    s_mov_b32 s{sCnt}, 0x8000
    """)
    for i in range(4): st(f"v_xor_b32 v{aW[i]}, {hx(32*i)}, v{T+5}\n v_add_u32 v{aW[i]}, s{sAr}, v{aW[i]}")
    st(f"""
    s_lshr_b32 s{sT}, s{S_J}, 1
    s_mul_i32 s{sT}, s{sT}, 5120
    s_add_u32 s{sOa}, s{sU}, s{sT}
    s_and_b32 s{sT}, s{S_J}, 1
    s_lshl_b32 s{sT}, s{sT}, 1
    s_add_u32 s{sT}, s{sT}, s{sHP}
    s_lshl_b32 s{sT2}, s{sT}, 8
    s_add_u32 s{sOx}, s{sOa}, s{sT2}
    s_add_u32 s{sOx}, s{sOx}, 4096
    s_lshl_b32 s{sT}, s{sT}, 10
    s_add_u32 s{sOa}, s{sOa}, s{sT}
    s_mul_i32 s{sT}, s{S_J}, 3072
    s_add_u32 s{sU}, s{sU}, s{sT}
    s_lshl_b32 s{sT}, s{sHP}, 9
    s_add_u32 s{sU}, s{sU}, s{sT}
    s_add_u32 s{sU}, s{sU}, {20*1024}""" + g16*f"""
    s_lshl_b32 s{sT}, s{S_TG}, 2
    s_add_u32 s{sT}, s{sT}, s{sK}
    s_mul_i32 s{sU}, s{sT}, {44*1024}
    s_mul_i32 s{sT}, s{S_J}, 3072
    s_add_u32 s{sU}, s{sU}, s{sT}
    s_add_u32 s{sU}, s{sU}, {hx(WS_ACT+20*1024)}""" + f"""
    s_mul_i32 s{sT}, s{sK}, 5120
    s_add_u32 s{sT}, s{sT}, {hx(WS_ACT)}
    """)
    for i in range(4): st(f"s_add_u32 s{sAct[i]}, s{sAct[i]}, s{sT}")
    uaddr = lambda vu, tp: [f"""v_bfe_u32 v{tp}, v0, 4, 1
    v_mul_u32_u24 v{vu}, {44*1024}, v{tp}
    v_and_b32 v{tp}, 15, v0""", f"""v_cmp_gt_u32 vcc, 32, v0
    v_lshl_add_u32 v{vu}, v{tp}, 4, v{vu}
    v_lshrrev_b32 v{tp}, 5, v0
    v_cndmask_b32 v{vu+1}, -4.0, v{vu}, vcc
    v_lshl_add_u32 v{vu}, v{tp}, 8, v{vu}"""]
    h, e, cb, tok = T+1, T+2, T+3, T+4
    st(f"""
    v_lshrrev_b32 v{h}, 5, v0
    v_bfe_u32 v{e}, v0, 2, 2
    v_and_b32 v{tok}, 31, v0
    v_bfe_u32 v{cb}, v0, 4, 1
    v_and_b32 v{T+5}, 3, v0
    v_lshlrev_b32 v{T+5}, 3, v{T+5}
    v_lshl_add_u32 v{cb}, v{cb}, 5, v{T+5}
    v_lshl_add_u32 v{T+6}, v{h}, 3, v{e}
    s_mul_i32 s{sT}, s{sHP}, 96
    v_mul_u32_u24 v{aZ[0]}, 192, v{T+6}
    v_add3_u32 v{aZ[0]}, v{aZ[0]}, v{cb}, s{sT}
    v_mad_u32_u24 v{T+7}, v{T+6}, 40, v{T+5}
    v_add_u32 v{T+6}, v{T+6}, v{e}
    s_mul_i32 s{sT}, s{sHP}, 40
    v_mul_u32_u24 v{aQ}, 160, v{T+6}
    v_add3_u32 v{aQ}, v{aQ}, v{cb}, s{sT}
    v_add_u32 v{aZ[1]}, 0x8000, v{aZ[0]}
    v_lshlrev_b32 v{aG}, 4, v{h}
    v_add_u32 v{aG}, {GATE}, v{aG}
    s_lshl_b32 s{sT}, s{sTH}, 12
    s_add_u32 s{sT}, s{sT}, {X0}
    s_sub_u32 s{sT}, s{sT}, s{sAr}
    s_mov_b32 s{sGm}, 0x100000
    s_mov_b32 s{sGm+1}, 0x100000
    v_mov_b64 {v(r.Q8,2)}, 0
    v_mov_b64 {v(r.Q8+2,2)}, 0
    """)
    for i in range(4): st(f"v_add_u32 v{aX[0][i]}, s{sT}, v{aW[i]}\n v_add_u32 v{aX[1][i]}, 0x10000, v{aX[0][i]}")
    st(f"""
    s_cmp_lt_u32 s{S_J}, 2
    s_cselect_b32 vcc_lo, 0xffff0000, 0
    s_mov_b32 vcc_hi, vcc_lo
    s_lshl_b32 s{sT}, s{sHP}, 5
    v_add_u32 v{T+7}, s{sT}, v{T+7}""")
    for i in range(8): st(f"""v_add_u32 v{T+8}, {768*(i&1)+3072*(i>>1)+64}, v{aZ[0]}
    v_add_u32 v{T+9}, {12288+160*(i&1)+640*(i>>1)}, v{T+7}
    v_cndmask_b32 v{aKV+i}, v{T+8}, v{T+9}, vcc""")
    st(f"""
    s_lshl_b32 s{sT}, s{sK}, 10
    s_add_u32 s{sT}, s{sT}, {LNS}
    v_lshl_add_u32 v{aLw}, v{tok}, 5, s{sT}
    v_lshl_add_u32 v{aLw}, v{h}, {4 if cfg.get("hm", 3) else 3}, v{aLw}
    s_lshl_b32 s{sT}, s{sK}, 12
    s_add_u32 s{sT}, s{sT}, {Z1P}
    v_add_u32 v{aPark}, s{sT}, v{vSt}
    s_mul_i32 s{sT}, s{sK}, 3072
    v_add_u32 v{aS}, s{sT}, v{vSt}
    v_add_u32 v{aTX}, {TX}, v{aS}
    v_add_u32 v{aS}, {QX}, v{aS}
    s_lshl_b32 s{sT}, s{S_TG}, 3
    s_add_u32 s{sT}, s{sT}, s{S_J}
    s_lshl_b32 s{sT}, s{sT}, 2
    s_add_u32 s{sT}, s{sT}, s{sK}
    s_lshl_b32 s{sT}, s{sT}, {FS}
    s_add_u32 s{sF3}, s{sT}, {hx(FL3)}
    s_cmp_eq_u32 s{S_J}, 0
    s_cselect_b32 s{sSc}, {fl(QSCALE)}, 1.0
    s_waitcnt lgkmcnt(0)""")
    if g16: st(f"""v_lshrrev_b32 v{T+18}, 5, v0
    s_lshl_b32 s{sT2}, s{sK}, 10
    s_lshl_b32 s{sT}, s{S_TG}, 1
    s_add_u32 s{sT}, s{sT}, s{sHP}
    s_lshl_b32 s{sT}, s{sT}, 17
    s_add_u32 s{sWb[0]}, s{sT}, s{sT2}
    s_xor_b32 s{sWb[1]}, s{sWb[0]}, 0x20000
    s_lshl_b32 s{sT}, s{sTH}, 11
    v_mul_u32_u24 v{vl}, 0xc00, v{T+18}
    v_lshrrev_b32 v{T+18}, 4, v0
    v_bfe_u32 v{T+19}, v0, 1, 3
    v_and_b32 v{T+20}, 15, v0
    v_xor_b32 v{T+19}, v{T+19}, v{T+18}
    v_and_b32 v{T+18}, 1, v{T+18}
    v_lshl_add_u32 v{T+19}, v{T+19}, 4, s{sT}
    v_lshl_add_u32 v{vl}, v{T+18}, 9, v{vl}
    v_lshl_add_u32 v{T+19}, v{T+20}, 7, v{T+19}
    v_lshl_add_u32 v{vl}, v{T+20}, 4, v{vl}""")
    for i in range(4*g16): st(f"v_xor_b32 v{aW[i]}, {hx(2048*(i >> 1) + 64*(i & 1))}, v{T+19}\n v_add_u32 v{aW[i]}, s{sAr}, v{aW[i]}")
    srd(a, sWS, P_WS, WS_END); srd(a, sSP, P_WSP, 2048*4096); srd(a, sBS, P_BSP, 4096)
    st(f"s_mov_b32 s{sT}, {hx(WS_EP)}\n buffer_load_dword v{vE}, off, {s(sWS,4)}, s{sT}\n s_barrier", "ep")
    stamp(a, 1); lstamp(a, 1)
    sc = Sched()
    for x in reads(0, sGm) + reads(1, sGm): sc.op(x)
    gemm(sc, sGm)
    sc.place(["s_mov_b32 vcc_lo, 0xcccc0000\n s_mov_b32 vcc_hi, 0xcccc0000"] + [f"""v_add_u32 v{T+8}, {768*(i&1)+16*(i>>1)+16}, v{aZ[0]}
    v_add_u32 v{T+9}, {3072+160*(i&1)+80*(i>>1)}, v{aQ}
    v_cndmask_b32 v{aM+i}, v{T+9}, v{T+8}, vcc
    v_add_u32 v{aM+4+i}, 0x8000, v{aM+i}""" for i in range(4)], 1, 0.1, 0.9)
    sc.place([[("@", "ep"), f"v_readfirstlane_b32 s{sTag}, v{vE}"], f"s_add_u32 s{sTag}, s{sTag}, {hx(TAGC)}"], 8, 0.2, 0.8)
    if not cfg.get("tsb"): sc.place([lambda st_: stamp(a, 2)], 10, 0, 0); sc.place([lambda st_: stamp(a, 6)], 20, 0, 0)
    q = Z2+24
    kvx = sum([[f"v_mul_f32 v{q+2*i}, s{sSc}, v{q+2*i}\n v_mul_f32 v{q+2*i+1}, s{sSc}, v{q+2*i+1}", f"v_cvt_pk_bf16_f32 v{q+i}, v{q+2*i}, v{q+2*i+1}"] +
               [(f"ds_write_b64 v{aLw}, {v(q+i-1,2)} offset:{8*i-8}", "tx")]*(i & 1) for i in range(4)], [])
    hx_ = lambda n: [f"v_cvt_pk_bf16_f32 v{Z2+8*n+i}, v{Z2+8*n+2*i}, v{Z2+8*n+2*i+1}" for i in range(4)] + [(f"ds_write_b128 v{aTX}, {v(Z2+8*n,4)} offset:{1024*n}", "tx")]
    hm = cfg.get("hm", 3); H = [hx_(n) for n in range(3)]
    if hm: kvx = [x for x in kvx if isinstance(x, str)] + [f"s_nop 0\n v_permlane32_swap_b32 v{q}, v{q+2}\n v_permlane32_swap_b32 v{q+1}, v{q+3}", (f"ds_write_b128 v{aLw}, {v(q,4)}", "tx")]
    cat = lambda *L: sum([x[:-1] for x in L], []) + [[x[-1] for x in L]]
    H = [[H[0] + kvx, H[1], H[2]], [H[0] + kvx, H[1], H[2]], [cat(*H, kvx)], [cat(H[0], kvx), cat(H[1], H[2])], [cat(H[0], kvx), H[1], H[2]]][hm]
    span(sc, H[0], 11+cfg.get("h0", 10)/100, 11+cfg.get("h1", 50)/100, 0)
    for n in range(1, len(H)): span(sc, H[n], 11+n+cfg.get("h2", 2)/100, 11+n+cfg.get("h3", 35)/100, 0)
    mark = lambda vu, d: [f"v_mov_b64 {v(d,2)}, -1\n v_mov_b64 {v(d+2,2)}, -1", f"buffer_store_dwordx4 {v(d,4)}, v{vu}, {s(sWS,4)}, s{sOa} offen sc1",
         f"buffer_store_dwordx4 {v(d,4)}, v{vu}, {s(sWS,4)}, s{sOa} offen offset:512 sc1", f"buffer_store_dwordx4 {v(d,4)}, v{vu+1}, {s(sWS,4)}, s{sOx} offen sc1"]
    if C("s0", 400) < 30: span(sc, uaddr(vu, 244) + mark(vu, 244), C("s0", 400), C("s1", 309), 0)
    sc.emit(st)
    st("s_nop 8")
    for ab in range(2):
        for i in range(4): st(f"v_cvt_pk_bf16_f32 v{r.Q16[ab]+i}, v{QA+16*ab+2*i}, v{QA+16*ab+2*i+1}")
        st(f"ds_write_b128 v{aS}, {v(r.Q16[ab],4)} offset:{1024*ab}", "qx")
    st("s_mov_b32 exec_hi, 0")
    for i in range(4): st(f"v_cvt_pk_bf16_f32 v{r.Q8+i}, v{QA+16*(i>>1)+8+2*(i&1)}, v{QA+16*(i>>1)+9+2*(i&1)}")
    st(f"s_mov_b32 exec_hi, -1\n ds_write_b128 v{aS}, {v(r.Q8,4)} offset:2048\n v_mul_f32 v{gl}, {fl(-LOG2E)}, v{QA+8}", "qx")
    ZR = [Z1+i for i in range(16)] + [QA+12+i for i in range(4)] + [QA+28+i for i in range(4)]; zp = 112; k1 = 186; ag = cfg.get("ag", 3)
    g1 = lambda g, pk: (gelu(ZR[8*g:8*g+8], Z2, k1, pk=pk) + [f"v_cvt_pk_bf16_f32 v{zp+4*g+i}, v{ZR[8*g+2*i]}, v{ZR[8*g+2*i+1]}" for i in range(4)] +
                        [f"ds_write_b128 v{aPark}, {v(zp+4*g,4)} offset:{1024*g}"])
    st(f"v_mov_b32 v{k1}, {fl(-GK1)}\n s_mov_b32 s{sGm}, {fl(-GK2)}\n s_mov_b32 s{sGm+1}, s{sGm}")
    for g in range(ag): st.run(g1(g, sGm))
    lstamp(a, 60); st.w("qx"); st("s_barrier"); stamp(a, 7); lstamp(a, 61); lstamp(a, None)
    if cfg.get("xp", 0) & 2: st(f"v_mov_b32 v{vl}, 0")
    if cfg.get("xp", 0) & 4: st(f"v_mov_b32 v{vo[0]}, 0\n v_mov_b32 v{vo[1]}, 0")
    def wsp(blk):
        L = []
        for b in range(8):
            x = ""
            if b & 3 == 0: x = f"s_add_u32 m0, s{sAr}, {(blk&1)*8192+b*1024}\n s_add_u32 s{sWo}, s{sWb[b>>2]}, s{sB}\n"
            x += f"buffer_load_dwordx4 v{vo[b&3]}, {s(sSP,4)}, s{sWo} offen offset:{(b&3)*1024} {CP[cfg.get('c1', 0)]} lds\n"
            if b == 7: x += f"s_add_u32 s{sB}, s{sB}, 128\n s_and_b32 s{sB}, s{sB}, 0x3ff"
            L.append((x, f"wsp{blk}_{b>>2 if cfg.get('dt', 1) else 1}"))
        return L
    def zld(f):
        ks, n = divmod(f, 3); x = ""
        if f % 12 == 0: x = f"s_mul_i32 s{sZo}, s{sZn}, 96\n s_add_u32 s{sZn}, s{sZn}, 128\n s_add_u32 s{sZo}, s{sZo}, s{sZb}\n s_and_b32 s{sZn}, s{sZn}, 0x3ff\n"
        elif g16: x = f"s_add_u32 s{sZo}, s{sZo}, 6144\n"*(f % 6 == 0)
        elif n == 0: x = f"s_add_u32 s{sZo}, s{sZo}, 3072\n"
        return (x + f"buffer_load_dwordx4 {v(Z[f%NZ],4)}, v{vl}, {s(sWS,4)}, s{sZo} offen offset:{1024*(f % 6 >> 1) + 256*(f & 1) if g16 else 1024*n} {CQ[cfg.get('c4', 0)]}", f"z{f}")
    rW = lambda ks, th: [("@", f"wsp{ks>>2}_{th if cfg.get('dt', 1) else 1}"), (f"ds_read_b128 {v(W[th],4)}, v{aW[ks&3]} offset:{((ks>>2)&1)*8192+th*4096}", f"W{th}")]
    if g16: rW = lambda s_, d: [("@", f"wsp{s_>>1}_{d>>1}"), (f"ds_read_b128 {v(W[d],4)}, v{aW[2*(d&1)+(s_&1)]} offset:{((s_>>1)&1)*8192+(d>>1)*4096}", f"W{d}")]
    def gop16():
        m = G["m"]; G["m"] += 1
        s_, p_, d = m//12, m % 12 // 4, m % 4; f = 6*s_+2*p_; it = []
        for e2 in range(2):
            q_ = acc+24*d+8*p_+4*e2
            it += [("@", f"z{f+e2}", f"W{d}"), f"{MF16} {v(q_,4)}, {v(Z[(f+e2)%NZ],4)}, {v(W[d],4)}, {v(q_,4) if s_ else 0}"]
        if p_ == 2 and s_ < 15: it += rW(s_+1, d)
        zd = cfg.get("zd", 1)
        if d == 3: it += [zld(x) for x in range(f+NZ, min(f+NZ+2-zd, 96))]
        if d == 0 and zd and m and f-1+NZ < 96: it.append(zld(f-1+NZ))
        DS = [[13, 14, 17, 18, 21, 22, 25, 26], [13, 14, 15, 16, 17, 18, 19, 20], [17, 18, 21, 22, 25, 26, 29, 30], [13, 17, 18, 21, 25, 26, 29, 33], [13, 16, 19, 22, 25, 28, 31, 34], [14, 17, 21, 22, 26, 29, 33, 34]][cfg.get("d6", 5)]
        if m % 24 == 13 and m//24 + 2 < 8: assert not G["q"]; G["q"] = [(m-13+y, x) for y, x in zip(DS, wsp(m//24 + 2))]
        while G["q"] and G["q"][0][0] == m: it.append(G["q"].pop(0)[1])
        if m == 191: it.append("; end of G")
        return it
    G = dict(m=0, q=[])
    DPG = cfg.get("dpg", 1)
    def gop():
        m = G["m"]; G["m"] += 1
        ks, th, n = m//6, (m % 6)//3, m % 3; f = 3*ks+n; ac = acc+48*th+16*n
        it = [("@", f"z{f}", f"W{th}"), f"{MF32} {v(ac,16)}, {v(Z[f%NZ],4)}, {v(W[th],4)}, {'0' if ks == 0 else v(ac,16)}"]
        if cfg.get("xp", 0) & 8: it[1] = "\n".join(f"{MF16} {v(q_,4)}, {v(Z[f%NZ],4)}, {v(W[th],4)}, {'0' if ks < 2 else v(q_,4)}" for q_ in (ac+8*(ks&1), ac+8*(ks&1)+4))
        if n == 2 and ks < 31: it += rW(ks+1, th)
        if th == 1 and f+NZ < 96: it.append(zld(f+NZ))
        DS = [[21, 22, 23, 24, 25, 26, 27, 28], [18, 19, 20, 21, 24, 25, 26, 27], [18, 19, 20, 24, 25, 26, 30, 31], [18, 19, 20, 20, 24, 25, 26, 26], [18, 19, 20, 21, 22, 23, 24, 25],
              [18, 20, 22, 24, 26, 28, 30, 32]][cfg.get("ds", 5)]
        if m % 24 == 18 and m//24 + 2 < 8: assert not G["q"]; G["q"] = [(m-18+d, x) for d, x in zip(DS, wsp(m//24 + 2))]
        while G["q"] and G["q"][0][0] == m: it.append(G["q"].pop(0)[1])
        if m == 191: it.append("; end of G")
        return it
    np_ = (cR-gS)*4
    dens = [[0]*4 for c in range(16)]
    for p in range(np_): dens[gS+p//4][p % 4] = 192*(p+1)//np_ - 192*p//np_
    pa = cfg.get("pa", 1)
    sc = attention(0, dens, gop16 if g16 else gop, lambda c: ["rsw"], lambda c: [(lambda st_, c=c: stamp(a, 8+c))], lambda c, i: pa if (c, i) == (0, 0) and pa != cfg.get("p1", 1) else None, cfg.get("sa", 1), 254, cfg.get("ba", 16), {d: cfg.get(f"A{d}", {5: "geePQeeeegqeeeegpeeeeggee", 6: "geePQeeegqeeeegeegpeeeggee"}.get(d) if cfg.get("sa", 1) else None) for d in range(8)})
    span(sc, sum([g1(g, 0) for g in range(ag, 3)], []), C("a0", 2), C("a1", 10*gS-1), 0)
    sc.place([f"v_mov_b32 v{gl-1}, v{gl}", f"s_nop 0\n v_permlane32_swap_b32 v{gl-1}, v{gl}", f"v_exp_f32 v{gl}, v{gl}", f"v_add_f32 v{gl}, 1.0, v{gl}", f"v_rcp_f32 v{gl}, v{gl}", f"ds_write_b32 v{aPark}, v{gl} offset:3072"], 0, 0.02, 0.22)
    ff = C("ff", 300)
    if cfg.get("tp0"):
        for i in range(2): span(sc, [f"""s_add_u32 s{sT}, s{sB}, {128*i}
        s_and_b32 s{sT}, s{sT}, 0x3ff
        s_andn2_b32 s{sT2}, s{sWb[0]}, 0x20000
        v_lshlrev_b32 v{Z[0]}, 12, v0
        s_add_u32 s{sT}, s{sT}, s{sT2}
        buffer_load_dword v{Z[0]+1}, v{Z[0]}, {s(sSP,4)}, s{sT} offen"""], C(f"tp{i}", 0), C(f"tp{i}", 0), 30)
        assert C("tp1", 0) < ff
    span(sc, wsp(0) + wsp(1), ff, ff+C("fl", 27), 30)
    if 30 <= C("s0", 400) < 40: span(sc, uaddr(vu, tg_) + mark(vu, tg_), C("s0", 400), C("s1", 309), 30)
    fld = f"buffer_load_dword v{t1}, v{t0}, {s(sWS,4)}, s{sFl} offen sc1"
    def poll(st_, p="p", k=3):
        st_(f"{name}_{p}oll:"); st_.w("F")
        st_(f"v_cmp_ne_u32 vcc, s{sTag}, v{t1}\n s_cbranch_vccnz {name}_{p}retry\n {name}_{p}ok:")
        stamp(a, k)
    sc.place([(fld, "F")], gS-1, cfg.get("f0", 10)/100, cfg.get("f0", 10)/100)
    sc.place([poll] + [zld(f) for f in range(NZ)], gS-1, cfg.get("f1", 50)/100, 1.0)
    sc.place([rW(0, d) for d in range(4 if g16 else 2)], gS, 0.1, 0.2)
    z1 = 208; og = 220; gt = 222; tp = 224; aR = [228, 229, 230, 231]; vu = 232; aF = 240; vt = 242
    quads = lambda d, n: [acc+48*(d & 1)+16*n+4*(d >> 1), acc+48*(d & 1)+16*n+4*(d >> 1)+8]
    az = 223 if g16 else tp
    if g16: quads = lambda d, n: [acc+24*d+8*n, acc+24*d+8*n+4]
    wl = sc.win[cR]; e = max(i for i, o in enumerate(wl) if isinstance(o, list) and "; end of G" in o)
    it = [f"""v_lshlrev_b32 v{aF}, 4, v0
    v_add_u32 v{aR[0]}, s{sAr}, v{aF}
    s_lshl_b32 s{sT}, s{sK}, 12
    s_add_u32 s{sT}, s{sT}, {Z1P}
    v_add_u32 v{tp}, s{sT}, v{aF}"""]
    if g16: it += [f"""s_lshl_b32 s{sT}, s{sHP}, 12
    s_lshl_b32 s{sT2}, s{sTH}, 8
    s_add_u32 s{sT}, s{sT}, s{sT2}
    s_add_u32 s{sT}, s{sT}, {Z1P}
    v_lshrrev_b32 v{vt}, 5, v0
    v_mul_u32_u24 v{vt}, {8192-3072}, v{vt}
    v_add3_u32 v{az}, v{vt}, v{vl}, s{sT}""", (f"ds_read_b32 v{og}, v{az} offset:3072", "zp")]
    it += [(f"ds_read_b128 {v(z1+4*n,4)}, v{az} offset:{1024*n}", "zp") for n in range(3)]
    it += [(f"""s_lshl_b32 s{sT}, s{S_TG}, {1+g16}
    s_add_u32 s{sT}, s{sT}, s{sK if g16 else sTH}
    s_lshl_b32 s{sT2}, s{sT}, {6-g16}
    v_bfe_u32 v{vt}, v{t0}, {FS-1}, {6-g16}
    ds_read_b32 v{gt}, v{tp} offset:3072
    buffer_load_ushort v{og+1}, v{vt}, {s(sBS,4)}, s{sT2} offen""", "zp")]
    for d in (2, 1, 3):
        for n in range(3):
            for e2, q in enumerate(quads(d, n)): it.append((f"ds_write_b128 v{aR[0]}, {v(q,4)} offset:{((d-1)*6+2*n+e2)*1024}", "rsw"))
        it.append(f"s_xor_b32 s{sT}, s{sK}, {d}\n s_mul_i32 s{sT}, s{sT}, {AA}\n v_add_u32 v{aR[d]}, s{sT}, v{aF}")
    sc.place(it, cR, (e+3)/len(wl), 0.9)
    it = []
    rd = lambda n: [(f"ds_read_b128 {v(q,4)}, v{aR[d]} offset:{((d-1)*6+2*n+e2)*1024}", f"rs{n}{e2}") for e2 in range(2) for d in (1, 2, 3) for q in [quads(d, n)[e2]]]
    it += rd(0)
    it += [[("@", "zp"), f"""v_sub_f32 v{og}, 1.0, v{og if g16 else gt}
    v_lshlrev_b32 v{og+1}, 16, v{og+1}
    v_mul_f32 v{og+1}, v{og}, v{og+1}"""]] + uaddr(vu, tp) + (mark(vu, 244) if C("s0", 400) >= 40 else [])
    for n in range(3):
        nr = rd(n+1) if n < 2 else []
        for e2 in range(2):
            for h2 in (0, 2):
                o_, p1, p2, p3 = [quads(d, n)[e2]+h2 for d in range(4)]; zi = z1+4*n+2*e2+h2//2
                it.append([("@", f"rs{n}{e2}"), f"""v_pk_add_f32 {v(o_,2)}, {v(o_,2)}, {v(p1,2)}
                v_pk_add_f32 {v(p2,2)}, {v(p2,2)}, {v(p3,2)}
                v_lshlrev_b32 v{tp}, 16, v{zi}
                v_pk_add_f32 {v(o_,2)}, {v(o_,2)}, {v(p2,2)}"""])
                it.append(f"""v_and_b32 v{tp+1}, 0xffff0000, v{zi}
                v_pk_fma_f32 {v(o_,2)}, {v(o_,2)}, {v(og,2)}, {v(og,2)} op_sel:[0,0,1] op_sel_hi:[1,0,1]
                v_pk_mul_f32 {v(o_,2)}, {v(o_,2)}, {v(tp,2)}
                v_cvt_pk_bf16_f32 v{zi}, v{o_}, v{o_+1}""")
                it += nr[:2]; nr = nr[2:]
        it.append((f"buffer_store_dwordx4 {v(z1+4*n,4)}, v{aF if g16 else vu}, {s(sWS,4)}, s{sU} offen offset:{1024*n} sc1", "us"))
        if cfg.get("od", 0) & 2: it.append(f"buffer_store_dwordx4 {v(z1+4*n,4)}, v{vu}, {s(sWS,4)}, s{sU} offen offset:{1024*n}")
    it.append(lambda st_: stamp(a, 4))
    it.append(f"""s_lshl_b32 s{sT}, s{S_J}, 2
    s_add_u32 s{sT}, s{sT}, s{sK}
    s_mul_i32 s{sPk}, s{sT}, {11*5120}
    s_add_u32 s{sPk}, s{sPk}, {hx(WS_PK+6*5120)}
    s_or_b32 s{sT}, s2, s{sK}
    s_cmp_eq_u32 s{sT}, 0
    s_cselect_b32 s{sE}, 1, 0
    s_mov_b32 s{sE+1}, 0
    v_mov_b32 v{tp+1}, s{sTag}
    v_cndmask_b32 v{tp}, -4.0, v0, {s(sE,2)}
    s_mov_b32 s{sT}, {hx(WS_EP)}
    buffer_store_dword v{tp+1}, v{tp}, {s(sWS,4)}, s{sT} offen sc1""")
    wu = cfg.get("wu", 50)/100
    NP = cfg.get("np", 7)
    if NP & 1: it = sum([[y] if not isinstance(y, str) or "v_fma" not in y else ["\n".join(y.split("\n")[:3]), "\n".join(y.split("\n")[3:])] for y in
                   sum([[[y[0], "\n".join(y[1].split("\n")[:4])], "\n".join(y[1].split("\n")[4:])] if isinstance(y, list) and y[0][1][:2] == "rs" else [y] for y in unpk(it)], [])], [])
    sc.place(it, cR+1, 0.0, wu)
    WO = lambda ks, c: BIG+4*(5*ks+c)
    f3 = cR+1+wu+C("f3", 4)
    span(sc, [[f"s_mov_b64 exec, 1", ("@", "us"), f"buffer_store_dword v{tp+1}, off, {s(sWS,4)}, s{sF3} sc1\n s_mov_b64 exec, -1", lambda st_: stamp(a, 30)]], f3, f3, 0)
    span(sc, pkloads(BIG, 25, aF, sWS, sPk, "wof", cfg), cR+1+wu+0.02, C('we', 164), 0)
    sc.emit(st)
    O = r.O; S = r.S; D = 208; t = 244; mx = 226; vA = [4, 5]; aP = [6, 7, 8, 9, 10]; vs = 11
    st(f"""s_mul_i32 s{sT}, s{sK}, 6144
    v_add_u32 v{t}, s{sT}, v{r.aK}
    s_mov_b32 s{sN}, 0""")
    f5 = cfg.get("f5", -1); fl5 = f"s_mov_b64 exec, 1\n buffer_store_dword v{tp+1}, off, {s(sWS,4)}, s{sF3} sc1\n s_mov_b64 exec, -1"
    if f5 >= 0: st(f"""s_lshl_b32 s{sT}, s{S_TG}, 3
    s_lshl_b32 s{sFl}, s{sK}, 1
    s_add_u32 s{sFl}, s{sFl}, s{sT}
    s_add_u32 s{sT}, s{sT}, s{S_J}
    s_lshl_b32 s{sFl}, s{sFl}, {FS}
    s_lshl_b32 s{sT}, s{sT}, {FS}
    s_add_u32 s{sFl}, s{sFl}, {hx(FL5)}
    s_add_u32 s{sT}, s{sT}, {hx(FL5)}
    s_cmp_eq_u32 s{sK}, 0
    s_cselect_b32 s{sF3}, s{sT}, {hx(WS_END)}
    v_and_b32 v{t0}, {1 << FS}, v{t0}""")
    if f5 == 0: st(fl5)
    st(f"v_lshlrev_b32 v{vA[0]}, 4, v0\n v_add_u32 v{vA[1]}, 0x1000, v{vA[0]}")
    srd(a, sSP, P_OUT, 2048*1280)
    st(f"""
    v_add_u32 v{aP[0]}, s{sAr}, v{vA[0]}
    s_mul_i32 s{sT}, s{sK}, 5120
    s_add_u32 s{sT}, s{sT}, {KV0}
    v_add_u32 v{aP[4]}, s{sT}, v{vA[0]}
    v_and_b32 v{t+1}, 15, v0
    v_mul_u32_u24 v{vs}, 0x500, v{t+1}
    v_lshrrev_b32 v{t+1}, 4, v0
    v_lshl_add_u32 v{vs}, v{t+1}, 3, v{vs}
    v_mov_b32 v{aP[1]}, v{aR[1]}
    v_mov_b32 v{aP[2]}, v{aR[2]}
    v_mov_b32 v{aP[3]}, v{aR[3]}
    s_lshl_b32 s{sT}, s{S_TG}, 2
    s_add_u32 s{sT}, s{sT}, s{E["sOwn"]}
    s_mul_i32 s{sO}, s{sT}, {16*1280}
    s_mul_i32 s{sT2}, s{S_J}, 160
    s_add_u32 s{sO}, s{sO}, s{sT2}
    """)
    lt = cfg.get("lt", 1); vo_ = [248, 249, 252]
    if lt:
        st(f"""v_and_b32 v{t+1}, 15, v0
        v_mul_u32_u24 v{t+1}, {1280-160}, v{t+1}
        v_sub_u32 v{vs}, v{vs}, v{t+1}
        v_add_u32 v{vs}, s{sAr}, v{vs}""")
    stamp(a, 24); st("s_barrier"); stamp(a, 25)
    if f5 == 1: st(fl5)
    for th in range(2):
        for i in range(3): st(f"ds_read_b128 {v(S[th]+4*i,4)}, v{t} offset:{(3*th+i)*1024}", f"po{th}{i}")
    su = lambda x: st(unpk(x, NP & 8))
    for i in (2, 0, 1):
        for th in range(2):
            st.w(f"po{th}{i}")
            for h2 in (0, 2): su(f"v_pk_add_f32 {v(O[th]+4*i+h2,2)}, {v(O[th]+4*i+h2,2)}, {v(S[th]+4*i+h2,2)}")
    su(f"{name}_fin:")
    for i in range(4): su(f"v_permlane32_swap_b32 v{O[0]+8+i}, v{O[1]+8+i}")
    L = O[1]+8
    su(f"""
    v_rcp_f32 v{t}, v{L}
    v_cmp_ngt_f32 vcc, 0x5f800000, v{L}
    s_mov_b32 s{sT}, 0x1f800000
    v_mul_f32 v{t}, v{t}, v{gt}
    v_cmp_nlt_f32 {s(sE,2)}, s{sT}, v{L}
    v_mov_b32 v{t+2}, v{t}
    v_mov_b32 v{t+4}, v{t}
    s_or_b64 {s(sE,2)}, {s(sE,2)}, vcc
    v_pk_mul_f32 {v(O[0]+8,2)}, {v(O[0]+8,2)}, {v(t,2)} op_sel_hi:[1,0]
    v_permlane32_swap_b32 v{t+2}, v{t+4}
    v_pk_mul_f32 {v(O[0]+10,2)}, {v(O[0]+10,2)}, {v(t,2)} op_sel_hi:[1,0]
    """)
    for th in range(2):
        for i in range(0, 8, 2): su(f"v_pk_mul_f32 {v(O[th]+i,2)}, {v(O[th]+i,2)}, {v(t+2+2*th,2)} op_sel_hi:[1,0]")
    su(f"v_pk_mul_f32 {v(t+6,2)}, {v(O[0]+8,2)}, 0 op_sel_hi:[1,0]")
    for k_, q in enumerate([O[0]+10] + [O[th]+i for th in range(2) for i in range(0, 8, 2)]):
        su(f"v_pk_fma_f32 {v(t+6,2)}, {v(q,2)}, 0, {v(t+6,2)} op_sel_hi:[1,0,1]")
        if k_ > 0: su(f"v_cvt_pk_bf16_f32 v{D+k_-1}, v{q}, v{q+1}")
    su(f"""
    v_cmp_u_f32 vcc, v{t+6}, v{t+7}
    v_cvt_pk_bf16_f32 v{D+8}, v{O[0]+8}, v{O[0]+9}
    v_cvt_pk_bf16_f32 v{D+9}, v{O[0]+10}, v{O[0]+11}
    s_or_b64 vcc, {s(sE,2)}, vcc
    s_cbranch_vccnz {name}_slow
    {name}_pub:""")
    if cfg.get("xb", 1) == 1: st("s_barrier")
    if f5 >= 0 and cfg.get("p5", 2) == 0: st(fld, "F")
    st(f"""
    buffer_store_dwordx4 {v(D,4)}, v{vu}, {s(sWS,4)}, s{sOa} offen sc1
    v_permlane32_swap_b32 v{D+8}, v{D+10}
    v_permlane32_swap_b32 v{D+9}, v{D+11}
    buffer_store_dwordx4 {v(D+4,4)}, v{vu}, {s(sWS,4)}, s{sOa} offen offset:512 sc1
    buffer_store_dwordx4 {v(D+8,4)}, v{vu+1}, {s(sWS,4)}, s{sOx} offen sc1
    """)
    if cfg.get("od", 0) & 1: st(f"""
    buffer_store_dwordx4 {v(D,4)}, v{vu}, {s(sWS,4)}, s{sOa} offen
    buffer_store_dwordx4 {v(D+4,4)}, v{vu}, {s(sWS,4)}, s{sOa} offen offset:512
    buffer_store_dwordx4 {v(D+8,4)}, v{vu+1}, {s(sWS,4)}, s{sOx} offen""")
    if cfg.get("xb", 1) == 2: st("s_barrier")
    if f5 == 2: st(fl5)
    if f5 >= 0 and cfg.get("p5", 2) == 1: st(fld, "F")
    stamp(a, 26)
    for i in range(3*lt): st(f"""v_add_u32 v{t+1}, {64*i}, v0
    v_mul_u32_u24 v{t+1}, 6554, v{t+1}
    v_lshrrev_b32 v{t+1}, 16, v{t+1}
    v_mul_u32_u24 v{t+1}, {1280-160}, v{t+1}
    v_add_u32 v{vo_[i]}, v{t+1}, v{vA[0]}""")
    act = [12+20*i for i in range(4)]
    al1 = lambda i, ks: (f"buffer_load_dwordx4 {v(act[i]+4*ks,4)}, v{vA[ks>>2]}, {s(sWS,4)}, s{sAct[i]} offen offset:{1024*(ks&3)} {CQ[cfg.get('c6', 0)]}", f"o{i}_{ks}")
    def ald(st_, i):
        for ks in range(5): st_(*al1(i, ks))
    ny = cfg.get("ny", 0); oi = cfg.get("oi", 4)
    if (f5 < 0 or cfg.get("p5", 2) == 2) and not cfg.get("nw", 0): st("s_waitcnt vmcnt(0)")
    if f5 >= 0 and cfg.get("p5", 2) == 2: st(fld, "F")
    if cfg.get("y0", 2) == 0 or cfg.get("xs", 70): st("s_barrier")
    assert cfg.get("y0", 2) or not cfg.get("xs", 70)
    if f5 >= 0: poll(st, "q", 29)
    st.w("wof")
    assert cfg.get("y0", 2) <= oi
    for i in range(oi):
        ald(st, i)
        if cfg.get("y0", 2) == i+1 and not ny: st("s_barrier")
    ac2 = [208, 228]; tc = 250; nq = cfg.get("nq", 1)
    ck = lambda i, ks: [f"v_max3_u32 v{tc+e}, v{act[i]+4*ks+2*e}, v{act[i]+4*ks+2*e+1}, v{tc+e}" if ks else f"v_max_u32 v{tc+e}, v{act[i]+2*e}, v{act[i]+2*e+1}" for e in range(2)]
    cke = f"v_max_u32 v{tc}, v{tc}, v{tc+1}\n v_cmp_eq_u32 vcc, -1, v{tc}"
    padd = lambda x, y: [f"v_pk_add_f32 {v(x+h2,2)}, {v(x+h2,2)}, {v(y+h2,2)}" for h2 in (0, 2)]
    for i in range(4):
        st(f"{name}_o{i}:")
        ex = [[] for m in range(25)]; br = f"s_cbranch_vccnz {name}_o{i}_retry\n {name}_o{i}_ok:"
        rdp = lambda d, q, c: (f"ds_read_b128 {v(q+4*c,4)}, v{aP[d+1]} offset:{(d*5120 if d < 3 else 0)+c*1024}", f"pr{d}{c}")
        ws_ = cfg.get("tw", 4) if i < 3 else cfg.get("tv", 2); yb = cfg.get("ty", 14)
        for c in range(5):
            if i: ex[ws_*c+1].append((f"ds_write_b128 v{aP[0]}, {v(ac2[(i-1)&1]+4*c,4)} offset:{(i-1)*5120+c*1024}", "pw"))
            if i == 2 and nq: ex[ws_*c].append(rdp(3, act[0], c))
            if i > nq: ex[ws_*c if i < 3 else c+yb-6].append(rdp((i+2) & 3, act[i-1], c))
            if i == 2: ex[min(ws_*c+8, 24)] += [("@", f"pr0{c}")] + unpk(padd(act[1]+4*c, act[0]+4*c), NP & 2)
            if i == 3: ex[yb+c].append(rdp(2, act[0], c)); ex[20+c] += [("@", f"pr2{c}")] + unpk(padd(act[0]+4*c, act[2]+4*c), NP & 2)
            ex[5*c+1 if i < 3 else c] += [("@", f"o{i}_{c}")] + ck(i, c)
        for m in range(5*oi, 20*(i == 0)): ex[(m-5*oi)*cfg.get("oj", 20)//(20-5*oi)].insert(0, al1(*divmod(m, 5)))
        ex[22 if i < 3 else 4].append(cke)
        if i == 3: ex[5].insert(0, br); ex[yb] = [("@", "pw"), "s_barrier"] + ex[yb]
        for ks in range(5):
            st.w(f"o{i}_{ks}")
            if ks == 0 and i in (0, 3): stamp(a, 27 if i == 0 else 28)
            for c in range(5):
                q = ac2[i & 1]+4*c
                st(f"{MF16} {v(q,4)}, {v(WO(ks,c),4)}, {v(act[i]+4*ks,4)}, {v(q,4) if ks else v(act[1]+4*c,4) if i == 3 else '0'}")
                st.run(ex[5*ks+c])
        if i < 3: st(br)
        if nq-ny <= i < 3: st.w("pw"); st("s_barrier")
    for c in range(5):
        q = ac2[1]+4*c; st.run(padd(q, act[0]+4*c))
        st(f"v_cvt_pk_bf16_f32 v{q}, v{q}, v{q+1}\n v_cvt_pk_bf16_f32 v{q+1}, v{q+2}, v{q+3}")
        st(f"ds_write_b64 v{vs}, {v(q,2)} offset:{15360+32*c}" if lt else f"buffer_store_dwordx2 {v(q,2)}, v{vs}, {s(sSP,4)}, s{sO} offen offset:{32*c}")
    for i in range(3*lt): st(f"ds_read_b128 {v(act[1]+4*i,4)}, v{aP[0]} offset:{15360+1024*i}", f"fo{i}")
    for i in range(3*lt):
        if i == 2: st("s_mov_b32 exec_hi, 0")
        st.w(f"fo{i}"); st(f"""buffer_store_dwordx4 {v(act[1]+4*i,4)}, v{vo_[i]}, {s(sSP,4)}, s{sO} offen offset:{1024*i} {["", "sc1", "nt", "sc0 sc1"][cfg.get("os", 0)]}""")
    if TS[0]: st("s_mov_b64 exec, -1")
    if TS[0] == 1: st(f"v_writelane_b32 v255, s{sCnt}, 5")
    wend(a, name)
    x = St(a)
    for p in "pq"[:1 + (f5 >= 0)]: x(f"""{name}_{p}retry:
    s_cmp_eq_u32 s{sCnt}, 0
    s_cbranch_scc1 {name}_{p}ok
    s_sub_u32 s{sCnt}, s{sCnt}, 1
    {fld}
    s_waitcnt vmcnt(0)
    s_branch {name}_{p}oll""")
    for i in range(4):
        x(f"{name}_o{i}_retry:\n s_cmp_eq_u32 s{sCnt}, 0\n s_cbranch_scc1 {name}_o{i}_ok\n s_sub_u32 s{sCnt}, s{sCnt}, 1")
        ald(x, i)
        for m in range(i+1, 4 if i else oi):
            x(f"s_waitcnt vmcnt({5*(4-m)})")
            for ks in range(5): x.run(ck(m, ks))
            x(f"{cke}\n s_cbranch_vccz {name}_o{i}_r{m}"); ald(x, m); x(f"{name}_o{i}_r{m}:")
        x(f"s_waitcnt vmcnt(0) lgkmcnt(0)\n s_branch {name}_o{i}")
    slow_path(a, name, sWS, sT, sN, [sWb[0], sWb[1], sB, sZb], mx, t, 254 if cfg.get("sa", 1) else 0)
    assert bool(cfg.get("sa", 1)) == bool(cfg.get("sb", 8))
```

```python
from kf import *
from kfA1 import span, gelu, unpk
Z2 = 104; Z1 = 136; ssr = [128, 132, 160, 164]; tg_ = 168; z1p = 176; sm = 188; vK1 = 192; raw = 196
aLw, aLr, vZn, aPark, aS, vSp, vF1, aTX, aPk = range(208, 217); vPk = [217, 218]; pkd = 224; kvd = 232; gr = 244
fl_ = fl
def waveB(E, st):
    a = E["a"]; name = E["name"]; cfg = E["cfg"]; S_ = E["S_"]; gS = E["gS"]; cR = E["cR"]
    sWS, sW, sT, sT2, sO, sN, sK, sTH, sHP, sE, sAct, sTag = [E[k] for k in "sWS sW sT sT2 sO sN sK sTH sHP sE sAct sTag".split()]
    sX = S_(4); sKW = S_(4); sKVo = S_(); sKVb = S_(); sCnt = S_(); sPk = S_(); sCw = S_(); sXo = S_(); sMx = S_(); sMz = S_(); sMq = S_(); sMk = S_(); sFl = S_()
    sMK = S_(2); sStr = S_(); sEx = S_(); sZs = S_(); sSt = S_(); sF2 = S_(); sF3 = S_(); sF4 = S_(); sPs = [S_(), S_()]; C = lambda k, d: cfg.get(k, d)/10; FS = cfg.get('fs', 7)
    TB = cfg.get("tsb", 0); stamp_ = globals()["stamp"]; stamp = (lambda a, k: None) if TB else stamp_
    def tb(b, odd):
        if TB and b != 4: a(f"s_bitcmp1_b32 s{sK}, 0\n s_cbranch_scc{1-odd} {name}_tb{b}_{odd}"); stamp_(a, b+1); a(f"{name}_tb{b}_{odd}:")
    vz = 4; vA = [11, 252]; t0, t1 = 253, 254
    vx = [12, 13]; vw = [14, 15, 16]; vq = [17, 18, 19]; vk = 20; vg = 21; aQx = 30; t = 22
    st(f"""{name}_B:
    s_setprio {cfg.get("p2", 0)}
    v_lshrrev_b32 v{t}, 3, v0
    s_lshl_b32 s{sT}, s{sK}, 4
    v_bfe_u32 v{t+1}, v0, 4, 2
    v_and_b32 v{t+2}, 7, v0
    s_lshl_b32 s{sT2}, s{S_TG}, 6
    v_xor_b32 v{t+1}, v{t+1}, v{t+2}
    s_add_u32 s{sT2}, s{sT2}, s{sT}
    v_add_u32 v{t}, s{sT2}, v{t}
    v_mul_u32_u24 v{t}, 0x500, v{t}
    v_lshl_add_u32 v{vx[0]}, v{t+1}, 4, v{t}
    s_mul_i32 s{sMz}, s{sK}, 3072
    v_xor_b32 v{vx[1]}, 64, v{vx[0]}
    s_lshl_b32 s{sT2}, s{sMz}, 4
    v_add_u32 v{vx[1]}, {8*1280-1024}, v{vx[1]}
    v_lshlrev_b32 v{vA[0]}, 4, v0
    """)
    for i in range(3):
        st(f"""v_add_u32 v{t}, {64*i}, v0
        v_mul_u32_u24 v{t}, 5462, v{t}
        v_lshrrev_b32 v{t}, 16, v{t}
        v_mul_u32_u24 v{t}, {3072-192}, v{t}
        v_add3_u32 v{vw[i]}, v{t}, v{vA[0]}, s{sT2}""")
    if cfg.get("stag", 1): st(f"""
    s_and_b32 s{sT}, s{S_J if E["JB"] < 3 else S_TG}, 3
    s_mul_i32 s{sT}, s{sT}, {cfg.get("sj", 3)}
    s_add_u32 s{sCw}, s{sT}, s{S_TG if E["JB"] < 3 else S_J}
    s_mul_i32 s{sT}, s{sCw}, 26
    s_lshr_b32 s{sT}, s{sT}, 8
    s_mul_i32 s{sT}, s{sT}, 10
    s_sub_u32 s{sCw}, s{sCw}, s{sT}""")
    else: st(f"s_mov_b32 s{sCw}, 0")
    st(f"""
    s_lshl_b32 s{sXo}, s{sCw}, 7
    s_lshl_b32 s{sMx}, s{sK}, 11
    s_add_u32 s{sMx}, s{sMx}, {X0}
    s_mul_i32 s{sMk}, s{sK}, 640
    v_add_u32 v{vk}, s{sMk}, v{vA[0]}
    s_mul_i32 s{sT}, s{S_J}, 192
    s_add_u32 s{sT}, s{sT}, 1536
    s_sub_u32 s{sW+2}, {640*3072}, s{sT}
    s_mov_b32 s{sW+3}, 0x20000
    s_mov_b32 s{sX+2}, {2048*1280}
    s_mov_b32 s{sX+3}, 0x20000
    s_cmp_lt_u32 s{S_J}, 2
    s_cselect_b32 s{sMK}, -1, 0
    s_cselect_b32 s{sMK+1}, 0xff, 0
    s_mov_b32 s{sKW+2}, 25600
    s_mov_b32 s{sKW+3}, 0x20000
    s_waitcnt lgkmcnt(0)
    s_mov_b32 s{sX}, s{P_X}
    s_mov_b32 s{sX+1}, s{P_X+1}
    s_add_u32 s{sW}, s{P_WIN}, s{sT}
    s_addc_u32 s{sW+1}, s{P_WIN+1}, 0
    s_bitcmp1_b32 s{S_J}, 0
    s_cselect_b32 s{sKW}, s{P_WV}, s{P_WK}
    s_cselect_b32 s{sKW+1}, s{P_WV+1}, s{P_WK+1}
    """)
    def dX(i):
        return [(f"""s_add_u32 m0, s{sMx}, {xblk(i)}
        s_add_u32 s{sT}, s{sXo}, 128
        buffer_load_dwordx4 v{vx[0]}, {s(sX,4)}, s{sXo} offen {CP[cfg.get('c2', 0)]} lds
        buffer_load_dwordx4 v{vx[1]}, {s(sX,4)}, s{sXo} offen offset:1024 {CP[cfg.get('c2', 0)]} lds
        s_cmp_eq_u32 s{sT}, 1280
        s_cselect_b32 s{sXo}, 0, s{sT}""", f"x{i}")]
    def dW(q):
        L = []; Q = q >= 10; x = ""
        if q < 10: L.append((f"""s_add_u32 m0, s{sMk}, {POS[q]+12288}
            s_mul_i32 s{sO}, s{sCw}, 2560
            s_mov_b64 exec, {s(sMK,2)}
            buffer_load_dwordx4 v{vk}, {s(sKW,4)}, s{sO} offen lds
            s_mov_b64 exec, -1""", f"w{q}"))
        if q == 10: x = f"""s_mul_i32 s{sT}, s{S_J}, 160
            s_add_u32 s{sE}, s{P_WQ}, s{sT}
            s_addc_u32 s{sE+1}, s{P_WQ+1}, 0
            s_sub_u32 s{sT}, {640*1280}, s{sT}
            s_sub_u32 s{sW}, s{sW}, 1536
            s_subb_u32 s{sW+1}, s{sW+1}, 0
            s_mul_i32 s{sCw}, s{sCw}, s{sStr}
            s_lshl_b32 s{sCw}, s{sCw}, 1
            s_cmp_lt_u32 s{sK}, 2
            s_cselect_b64 {s(sW,2)}, {s(sW,2)}, {s(sE,2)}
            s_cselect_b32 s{sW+2}, s{sW+2}, s{sT}\n"""
        x += f"s_add_u32 m0, s{sMq}, {POS[q]}\n s_add_u32 s{sO}, s{sCw}, s{sStr}\n" if Q else f"s_add_u32 m0, s{sMz}, {POS[q]}\n s_mul_i32 s{sO}, s{sCw}, {64*3072}\n"
        for i in range(3):
            x += f"buffer_load_dwordx4 v{(vq if Q else vw)[i]}, {s(sW,4)}, s{sCw if Q else sO} offen offset:{1024*i} {CP[cfg.get('c3', 0)]} lds\n"
            if i == 0 and not Q: x += f"s_add_u32 s{sCw}, s{sCw}, 1\n s_cmp_eq_u32 s{sCw}, 10\n s_cselect_b32 s{sCw}, 0, s{sCw}"
            if i == 2 and Q: x += f"s_cmp_eq_u32 s{sO}, s{sEx}\n s_cselect_b32 s{sCw}, 0, s{sO}"
            L.append((x, f"w{q}")); x = ""
        return L
    st(f"s_mov_b32 s{sN}, s{sXo}")
    n0 = cfg.get("n0", 3); nb = cfg.get("nb", 2); xq = list(range(10)); wq = list(range(30))
    def issue(b, n):
        L = []
        for i in range(n):
            if xq: L += dX(xq.pop(0))
            if wq and FREE[wq[0]] <= b: L += dW(wq.pop(0))
        return L
    st.run(issue(-1, n0))
    srd(a, sWS, P_WS, WS_END)
    st(f"s_mov_b32 s{sT}, {hx(WS_EP)}\n s_load_dword s{sTag}, {s(P_WS,2)}, s{sT}")
    st(f"""
    s_mul_i32 s{sT}, s{sK}, 320
    s_add_u32 s{sT}, s{sT}, s{sN}
    v_add_u32 v{vg}, s{sT}, v{vA[0]}
    v_subrev_u32 v{t}, 1280, v{vg}
    v_min_u32 v{vg}, v{vg}, v{t}
    s_and_b32 s{sT}, s{sK}, 1
    s_mul_i32 s{sMq}, s{sT}, 6144
    s_mul_i32 s{sT2}, s{sT}, {16*1280}
    s_cmp_lt_u32 s{sK}, 2
    s_cselect_b32 s{sStr}, {32*3072}, {0}
    s_cselect_b64 vcc, -1, 0
    s_cselect_b32 s{sT}, 0, 3072
    s_add_u32 s{sMq}, s{sMq}, s{sT}
    s_max_u32 s{sStr}, s{sStr}, {32*1280}
    s_mul_i32 s{sEx}, s{sStr}, 20
    """)
    for i in range(3):
        st(f"""v_add_u32 v{t}, {64*i}, v0
        v_mul_u32_u24 v{t}, 6554, v{t}
        v_lshrrev_b32 v{t}, 16, v{t}
        v_mul_u32_u24 v{t+1}, 160, v{t}
        v_sub_u32 v{t+1}, v{vA[0]}, v{t+1}
        v_and_b32 v{t+2}, 8, v{t}
        v_bfe_u32 v{t+3}, v{t}, 1, 2
        v_and_b32 v{t}, 1, v{t}
        v_lshl_add_u32 v{t}, v{t}, 2, v{t+3}
        v_add_u32 v{t}, v{t}, v{t+2}
        v_mul_u32_u24 v{t}, 0x500, v{t}
        v_add3_u32 v{vq[i]}, v{t}, v{t+1}, s{sT2}
        {f"s_mov_b32 exec_lo, 0{chr(10)} v_mov_b32 v{vq[i]}, -4.0{chr(10)} s_mov_b32 exec_lo, -1" if i == 2 else ""}
        v_cndmask_b32 v{vq[i]}, v{vq[i]}, v{vw[i]}, vcc""")
    E["common"](st)
    kv_addr(st, t)
    st(f"""
    s_add_u32 s{sKVb}, s{sMz}, {KV0}
    v_add_u32 v{vz}, s{sMz}, v{vA[0]}
    v_add_u32 v{aQx}, {QX}, v{vz}
    s_lshr_b32 s{sKVo}, s{S_TG}, 1
    s_mul_i32 s{sKVo}, s{sKVo}, {KVS}
    s_add_u32 s{sKVo}, s{sKVo}, {hx(WS_KV)}
    v_add_u32 v{vA[1]}, 0x1000, v{vA[0]}
    s_mov_b32 s{sCnt}, 0x8000
    s_mov_b32 s{sFl}, {hx(FL1)}
    s_and_b32 s{sT}, s{S_TG}, 30
    v_min_u32 v{t0}, {cfg.get("nf", 12)-1}, v0
    v_lshl_add_u32 v{t0}, s{sT}, 1, v{t0}
    v_and_b32 v{t0}, 63, v{t0}
    v_lshlrev_b32 v{t0}, {FS}, v{t0}
    s_lshl_b32 s{sT}, s{S_J}, 2
    s_add_u32 s{sT}, s{sT}, s{sK}
    s_lshl_b32 s{sF4}, s{sT}, {FS+5}
    s_add_u32 s{sF4}, s{sF4}, {hx(FL4)}
    s_mul_i32 s{sPk}, s{sT}, {11*5120}
    s_add_u32 s{sPk}, s{sPk}, {hx(WS_PK)}
    s_mul_i32 s{sT}, s{sK}, 6144
    s_add_u32 s{sT}, s{sT}, {hx(WS_ACT+20*1024)}
    """)
    for i in range(4): st(f"s_add_u32 s{sAct[i]}, s{sAct[i]}, s{sT}")
    def kv(c):
        L = [(f"s_add_u32 m0, s{sKVb}, {slot(c)}\n s_nop 0\n" if i == 0 else "") + f"buffer_load_dwordx4 v{vz}, {s(sWS,4)}, s{sKVo} offen offset:{1024*i} {CQ[cfg.get('c7', 0)]} lds" for i in range(3)]
        L[2] += f"\n s_add_u32 s{sKVo}, s{sKVo}, {KVS}\n s_cmp_eq_u32 s{sKVo}, {hx(WS_KV+16*KVS)}\n s_cselect_b32 s{sKVo}, {hx(WS_KV)}, s{sKVo}"
        return [(x, f"kv{c}") for x in L]
    fl = lambda sF: f"buffer_load_dword v{t1}, v{t0}, {s(sWS,4)}, s{sF} offen sc1"
    polls = []
    def poll(nm, sF, k):
        def f(st_):
            st_(f"{name}_{nm}poll:"); st_.w("F")
            st_(f"v_cmp_ne_u32 vcc, s{sTag}, v{t1}\n s_cbranch_vccnz {name}_{nm}retry\n {name}_{nm}ok:"); polls.append((nm, sF))
            if k: stamp(a, k)
        return f
    flag = lambda tag, sF, o=0: ["s_mov_b64 exec, 1", ("@", tag), f"buffer_store_dword v{gr+1}, off, {s(sWS,4)}, s{sF} sc1\n s_mov_b64 exec, -1"]
    ex = [[] for b in range(47)]
    def put(items, w0, w1):
        for i, it in enumerate(items): x = w0 + (w1-w0)*(i+0.5)/len(items); ex[int(x)].append((x, it))
    h, e, tok = t+1, t+2, t+3; T = kvd+4
    put([f"""
    v_lshrrev_b32 v{h}, 5, v0
    v_bfe_u32 v{e}, v0, 2, 2
    v_and_b32 v{tok}, 31, v0
    v_and_b32 v{t+5}, 3, v0
    s_lshl_b32 s{sT}, s{sTH}, 1
    s_add_u32 s{sT}, s{sT}, s{sHP}
    s_lshl_b32 s{sT}, s{sT}, 9
    s_add_u32 s{sT}, s{sT}, {STX}
    v_lshl_add_u32 v{aS}, v0, 3, s{sT}""", f"""
    s_lshl_b32 s{sT}, s{sK}, 10
    s_add_u32 s{sT}, s{sT}, {LNS}
    v_lshl_add_u32 v{aLw}, v{tok}, 5, s{sT}
    v_lshl_add_u32 v{aLw}, v{h}, 3, v{aLw}
    v_lshrrev_b32 v{t+6}, 4, v0
    v_lshl_add_u32 v{aLr}, v{t+6}, 3, v{e}
    v_lshl_add_u32 v{aLr}, v{aLr}, 5, s{sT}
    v_lshl_add_u32 v{aLr}, v{t+5}, 3, v{aLr}""", f"""
    v_mul_u32_u24 v{vZn}, 3072, v{h}
    v_and_b32 v{t+6}, 1, v{t+6}
    v_lshl_add_u32 v{vZn}, v{t+6}, 9, v{vZn}
    v_and_b32 v{t+6}, 7, v0
    v_lshl_add_u32 v{vZn}, v{t+6}, 4, v{vZn}
    v_bfe_u32 v{t+6}, v0, 3, 1
    v_lshl_add_u32 v{vZn}, v{t+6}, 8, v{vZn}
    v_add_u32 v{aTX}, {TX}, v{vz}""", f"""
    s_lshl_b32 s{sT}, s{S_TG}, 1
    s_add_u32 s{sT}, s{sT}, s{sTH}
    s_lshl_b32 s{sSt}, s{sT}, 12
    s_add_u32 s{sSt}, s{sSt}, {hx(WS_ST2)}
    s_mul_i32 s{sZs}, s{sT}, 6144
    s_mul_i32 s{sT}, s{S_J}, {128*3072}
    s_add_u32 s{sZs}, s{sZs}, s{sT}
    s_lshl_b32 s{sT}, s{sHP}, 7
    s_add_u32 s{sZs}, s{sZs}, s{sT}
    s_add_u32 s{sZs}, s{sZs}, {hx(WS_Z2N)}""", f"""
    s_lshl_b32 s{sT}, s{S_J}, 5
    s_add_u32 s{sT}, s{sT}, s{S_TG}
    s_lshl_b32 s{sT}, s{sT}, 2
    s_add_u32 s{sT}, s{sT}, s{sK}
    s_lshl_b32 s{sF2}, s{sT}, {FS}
    s_lshl_b32 s{sT}, s{S_TG}, 2
    s_add_u32 s{sT}, s{sT}, s{sK}
    s_lshl_b32 s{sT}, s{sT}, {FS+3}
    s_add_u32 s{sF3}, s{sT}, {hx(FL3)}""", f"""
    s_lshl_b32 s{sT2}, s{sHP}, 5
    s_sub_u32 s{sT2}, 32, s{sT2}
    v_cmp_gt_u32 vcc, s{sT2}, v0
    s_lshl_b32 s{sT}, s{S_J}, 9
    v_add_u32 v{t+6}, s{sT}, v{vA[0]}
    v_cndmask_b32 v{vSp}, -4.0, v{t+6}, vcc
    v_mov_b32 v{vK1}, {fl_(-GK1)}
    v_mov_b64 {v(sm,2)}, 0
    v_mov_b64 {v(sm+2,2)}, 0""",
    f"""s_lshr_b32 s{sT}, s{S_TG}, 1
    s_mul_i32 s{sN}, s{sT}, {KVS}
    s_and_b32 s{sT}, s{S_TG}, 1
    s_lshl_b32 s{sT2}, s{sT}, 1
    s_add_u32 s{sT2}, s{sT2}, s{sTH}
    s_mul_i32 s{sKW+2}, s{sT2}, 1536
    s_add_u32 s{sKW+2}, s{sKW+2}, 5120
    s_lshl_b32 s{sT2}, s{sT2}, 10
    s_lshl_b32 s{sT}, s{sT}, 9
    s_add_u32 s{sT}, s{sT}, 0x1000
    s_cmp_eq_u32 s{sHP}, 0
    s_cselect_b32 s{sT}, s{sT2}, s{sT}
    s_cselect_b32 s{sT2}, 16, 0x400
    v_add_u32 v{T}, s{sT2}, v{aLw}
    s_cmp_eq_u32 s{S_J}, 0
    s_cselect_b32 s{sT}, s{sT}, s{sKW+2}
    s_cselect_b64 {s(sMK,2)}, -1, 0
    s_add_u32 s{sN}, s{sN}, s{sT}
    s_add_u32 s{sN}, s{sN}, {hx(WS_KV)}
    s_cmp_lt_u32 s{S_J}, 2
    s_cselect_b32 s{sKW+2}, s{sN}, {hx(WS_END)}""", (not cfg.get("sb", 8))*f"""
    v_bfe_u32 v{T+1}, v0, 4, 1
    v_lshlrev_b32 v{T+1}, 7, v{T+1}
    v_sub_u32 v{T+1}, v{aLr}, v{T+1}""" + f"""
    s_lshl_b32 s{sT}, s{sHP}, 4
    v_and_b32 v{t+4}, 15, v0
    v_add_u32 v{t+4}, s{sT}, v{t+4}
    v_lshrrev_b32 v{T+2}, 4, v0
    v_mul_u32_u24 v{T+2}, 0x180, v{T+2}
    v_lshl_add_u32 v{T+2}, v{t+4}, 4, v{T+2}
    v_mov_b32 v{T+3}, 0x3f803f80
    v_cmp_eq_u32 vcc, 20, v{t+4}
    v_cmp_gt_u32 {s(sKW,2)}, 24, v{t+4}
    s_lshl_b32 s{sT}, s{sK}, 5
    s_sub_u32 s{sT}, 96, s{sT}
    v_cndmask_b32 v{T+3}, 0, v{T+3}, vcc
    v_cmp_gt_u32 vcc, s{sT}, v0
    v_cndmask_b32 v{T+2}, -4.0, v{T+2}, {s(sKW,2)}
    v_cmp_gt_u32 {s(sKW,2)}, 20, v{t+4}
    v_cndmask_b32 v{t+4}, -4.0, v{vA[0]}, vcc
    v_cndmask_b32 v{T+2}, v{T+2}, v{t+4}, {s(sMK,2)}
    s_or_b64 {s(sKW,2)}, {s(sKW,2)}, {s(sMK,2)}""",
    f"""s_and_b32 s{sT}, s{S_TG}, 7
    s_lshl_b32 s{sT}, s{sT}, 2
    s_add_u32 s{sT}, s{sT}, s{sK}
    s_lshr_b32 s{sT2}, s{S_TG}, 3
    s_lshl_b32 s{sN}, s{S_J}, 2
    s_add_u32 s{sN}, s{sN}, s{sT2}
    s_mul_i32 s{sN}, s{sN}, 55
    s_add_u32 s{sN}, s{sN}, s{sT}
    s_lshl_b32 s{sN}, s{sN}, 10
    s_add_u32 s{sPs[0]}, s{sN}, {hx(WS_PK)}
    s_add_u32 s{sPs[1]}, s{sN}, {hx(WS_PK+30*1024)}
    s_cmp_lt_u32 s{sT}, 30
    s_cselect_b32 s{sPs[0]}, s{sPs[0]}, {hx(WS_END)}
    s_cmp_lt_u32 s{sT}, 25
    s_cselect_b32 s{sPs[1]}, s{sPs[1]}, {hx(WS_END)}
    s_mul_i32 s{sE}, s{sT}, 52
    s_lshr_b32 s{sE}, s{sE}, 8
    s_sub_u32 s{sN}, s{S_J}, s{sE}
    s_mul_i32 s{sN}, s{sN}, 5
    s_add_u32 s{sN}, s{sN}, s{sT}
    s_lshl_b32 s{sN}, s{sN}, 5
    v_and_b32 v{t}, 1, v0
    v_lshl_add_u32 v{t}, v{t}, 4, s{sN}
    v_bfe_u32 v{t+4}, v0, 1, 2
    v_bfe_u32 v{t+5}, v0, 3, 1
    v_bfe_u32 v{t+6}, v0, 4, 1""", f"""
    s_lshr_b32 s{sT2}, s{S_TG}, 3
    s_mul_i32 s{sN}, s{sT2}, 12
    s_add_u32 s{sN}, s{sN}, s{sE}
    s_cmp_ge_u32 s{sE}, 3
    s_cselect_b32 s{sT}, 3, 0
    s_add_u32 s{sN}, s{sN}, s{sT}
    s_lshl_b32 s{sN}, s{sN}, 4
    v_lshl_add_u32 v{vPk[0]}, v{t+5}, 2, v{t+4}
    v_mad_u32_u24 v{vPk[0]}, v{t+6}, 48, v{vPk[0]}
    v_lshl_add_u32 v{vPk[0]}, v{h}, 3, v{vPk[0]}
    v_add_u32 v{vPk[0]}, s{sN}, v{vPk[0]}
    v_mul_u32_u24 v{vPk[0]}, 0x500, v{vPk[0]}
    v_add_u32 v{vPk[0]}, v{vPk[0]}, v{t}""", f"""
    s_and_b32 s{sT}, s{sE}, 1
    s_and_b32 s{sN}, s{sE}, 2
    s_lshl_b32 s{sN}, s{sN}, 1
    s_add_u32 s{sN}, s{sN}, s{sT}
    s_mul_i32 s{sN}, s{sN}, 20
    s_cmp_eq_u32 s{sE}, 4
    s_cselect_b32 s{sN}, 16, s{sN}
    s_cselect_b32 s{sT}, 20, 4
    v_mad_u32_u24 v{vPk[1]}, v{t+5}, s{sT}, v{t+4}
    s_cselect_b32 s{sT}, 80, 40
    v_mad_u32_u24 v{vPk[1]}, v{t+6}, s{sT}, v{vPk[1]}
    s_cselect_b32 s{sT}, 40, 8
    v_mad_u32_u24 v{vPk[1]}, v{h}, s{sT}, v{vPk[1]}
    s_lshr_b32 s{sT2}, s{S_TG}, 3
    s_mul_i32 s{sT2}, s{sT2}, 160
    s_add_u32 s{sN}, s{sN}, s{sT2}
    v_add_u32 v{vPk[1]}, s{sN}, v{vPk[1]}
    v_mul_u32_u24 v{vPk[1]}, 0x500, v{vPk[1]}
    v_add_u32 v{vPk[1]}, v{vPk[1]}, v{t}
    s_lshl_b32 s{sT}, s{sK}, 11
    s_add_u32 s{sMk}, s{sT}, {PKS}
    v_lshl_add_u32 v{aPk}, v0, 3, s{sMk}""", f"""
    s_waitcnt lgkmcnt(0)
    s_add_u32 s{sTag}, s{sTag}, {hx(TAGC)}
    v_mov_b32 v{gr+1}, s{sTag}
    v_mov_b32 v{gr+3}, s{sTag}
    s_lshl_b32 s{sT}, s{S_TG}, 1
    s_add_u32 s{sT}, s{sT}, s{S_J}
    s_lshl_b32 s{sT}, s{sT}, {FS}
    s_add_u32 s{sXo}, s{sT}, {hx(FL1)}
    s_lshl_b32 s{sT}, s{sK}, 1
    s_or_b32 s{sT}, s{sT}, s{S_J}
    s_cmp_lt_u32 s{sT}, 2
    s_cselect_b32 s{sXo}, s{sXo}, {hx(WS_END)}"""], 6, 12)
    gate = (f"""s_mul_i32 s{sT}, s{sK}, 320
    s_add_u32 m0, s{sT}, {GATE}
    s_mov_b32 s{sX}, s{P_GW}
    s_mov_b32 s{sX+1}, s{P_GW+1}
    s_mov_b32 s{sX+2}, 1280
    s_mov_b64 exec, 0xfffff
    buffer_load_dwordx4 v{vg}, {s(sX,4)}, 0 offen lds
    s_mov_b64 exec, -1""", "x10")
    kvs = [(f"""ds_read_b64_tr_b16 {v(kvd,2)}, v{aLr if cfg.get("sb", 8) else T+1}
    ds_read_b64_tr_b16 {v(kvd+2,2)}, {f"v{aLr} offset:128" if cfg.get("sb", 8) else f"v{T+1} offset:256"}
    s_mov_b64 exec, {s(sMK,2)}
    ds_read_b64 {v(kvd,2)}, v{aLw}
    ds_read_b64 {v(kvd+2,2)}, v{T}
    s_mov_b64 exec, -1""", "kr"), [("@", "kr")] + [f"v_cndmask_b32 v{kvd+i}, v{T+3}, v{kvd+i}, {s(sKW,2)}" for i in range(4)] +
    [(f"buffer_store_dwordx4 {v(kvd,4)}, v{T+2}, {s(sWS,4)}, s{sKW+2} offen sc1", "kvs")]]
    g2 = C("g2", 219); hl = 1
    for n in range(3): put([(f"ds_read_b128 {v(raw+4*n,4)}, v{aTX} offset:{1024*n}", f"tx{n}")] , 11+n+hl, 11+n+hl)
    put(kvs[:1], 12, 12); put(kvs[1:], C("kp", 128), C("kp", 128))
    def gz(g):
        X = range(Z2+8*g, Z2+8*g+8); L = [f"v_lshlrev_b32 v{x}, 16, v{raw+4*g+i}\n v_and_b32 v{x+1}, 0xffff0000, v{raw+4*g+i}" for i, x in enumerate(X[::2])]
        return [[("@", f"tx{g}"), L[0]]] + L[1:] + gelu(X, tg_, vK1, ("v_add_f32 {s1}, {s1}, {x}", "v_fmac_f32 {s2}, {x}, {x}"), s1=sm, s2=sm+2)
    assert g2 >= 14.2+hl
    put(gz(0) + gz(1) + gz(2) +
        [f"v_add_f32 v{sm}, v{sm}, v{sm+1}\n v_add_f32 v{sm+1}, v{sm+2}, v{sm+3}\n v_mov_b64 {v(tg_,2)}, {v(sm,2)}\n s_nop 1\n v_permlane32_swap_b32 v{sm}, v{tg_}\n v_permlane32_swap_b32 v{sm+1}, v{tg_+1}",
         (f"v_add_f32 v{sm}, v{sm}, v{tg_}\n v_add_f32 v{sm+1}, v{sm+1}, v{tg_+1}\n ds_write_b64 v{aS}, {v(sm,2)}", "stx")], 11.1+hl, g2)
    put([(f"ds_read_b64 {v(tg_,2)}, v{aS} offset:512", "sty"),
         [("@", "sty"), f"""v_add_f32 v{gr}, v{sm}, v{tg_}
         v_add_f32 v{gr+2}, v{sm+1}, v{tg_+1}
         buffer_store_dwordx4 {v(gr,4)}, v{vSp}, {s(sWS,4)}, s{sSt} offen sc1"""]], int(g2)+1, int(g2)+1)
    f1b = cfg.get("f1b", 16)
    put([flag("kvs", sXo)], f1b, f1b)
    sld = [(f"buffer_load_dwordx4 {v(ssr[i],4)}, v{vA[0]}, {s(sWS,4)}, s{sSt} offen offset:{1024*i} sc1", "ss") for i in range(4)]
    m, n_ = tg_+2, tg_+3; mu = sm
    def schk(st_):
        st_(f"{name}_schk:"); st_.w("ss")
        G_ = [x+o for x in ssr for o in (1, 3)]
        for op, d in (("max", m), ("min", n_)):
            st_(f"v_{op}3_u32 v{d}, v{G_[0]}, v{G_[1]}, s{sTag}")
            for i in (2, 4, 6): st_(f"v_{op}3_u32 v{d}, v{G_[i]}, v{G_[i+1]}, v{d}")
        st_(f"v_cmp_ne_u32 vcc, v{m}, v{n_}\n s_cbranch_vccnz {name}_sretry\n {name}_sok:")
        stamp(a, 4)
    LN = [schk]
    for o in (0, 2): LN += [f"v_add_f32 v{m}, v{ssr[0]+o}, v{ssr[1]+o}\n v_add_f32 v{n_}, v{ssr[2]+o}, v{ssr[3]+o}\n v_add_f32 v{mu+o//2}, v{m}, v{n_}"]
    LN += [f"v_mov_b64 {v(m,2)}, {v(mu,2)}\n s_nop 1\n v_permlane32_swap_b32 v{mu}, v{m}\n v_permlane32_swap_b32 v{mu+1}, v{m+1}",
           f"v_add_f32 v{mu}, v{mu}, v{m}\n v_add_f32 v{mu+1}, v{mu+1}, v{m+1}\n v_mul_f32 v{mu}, {fl_(1/768)}, v{mu}\n v_mul_f32 v{mu+1}, {fl_(1/768)}, v{mu+1}",
           f"v_fma_f32 v{mu+1}, -v{mu}, v{mu}, v{mu+1}\n v_max_f32 v{mu+1}, 0, v{mu+1}\n v_add_f32 v{mu+1}, {fl_(1e-5)}, v{mu+1}\n v_rsq_f32 v{mu+1}, v{mu+1}\n s_nop 0\n v_mul_f32 v{mu}, v{mu}, v{mu+1}"]
    zst = lambda n: [("@", "tr"), (f"buffer_store_dwordx4 {v(Z2+8*n,4)}, v{vZn}, {s(sWS,4)}, s{sZs} offen offset:{1024*n} sc1", "zn")]
    for n in range(3):
        for a_ in range(2):
            q = Z2+8*n+4*a_
            LN += [f"v_fma_f32 v{q+i}, v{q+i}, v{mu+1}, -v{mu}\n v_fma_f32 v{q+i+1}, v{q+i+1}, v{mu+1}, -v{mu}" for i in (0, 2)]
            LN += [f"v_cvt_pk_bf16_f32 v{q}, v{q}, v{q+1}\n v_cvt_pk_bf16_f32 v{q+1}, v{q+2}, v{q+3}\n ds_write_b64 v{aLw}, {v(q,2)} offset:{16*a_}"]
            if a_ == 0 and n: LN.append(zst(n-1))
        LN += [(f"ds_read_b64_tr_b16 {v(Z2+8*n,2)}, v{aLr}\n ds_read_b64_tr_b16 {v(Z2+8*n+2,2)}, v{aLr} offset:128", "tr")]
    LN.append(zst(2))
    sl, l0, l1 = C("sl", 285), C("l0", 293), C("l1", 299)
    put(sld, sl, sl+0.5); put(LN, l0, l1)
    if C("pl", 280): put(["s_setprio 2"], C("pl", 280), C("pl", 280)); put([f"s_setprio {cfg.get('p2', 0)}"], 29.99, 29.99)
    b1 = C("b1", 258); b2 = C("b2", 280); kd = C("kd", 5); assert b2 >= 21
    put([(fl(sFl), "F")], b1, b1)
    put([poll("k", sFl, 3)], b2, b2)
    for c in range(3): put([kv(c)], b2+0.01+c*kd, b2+0.01+c*kd)
    put([(f"v_lshlrev_b32 v{t0}, {FS}, v0\n" + fl(sFl), "F")], C("b3", 290), C("b3", 290))
    put([poll("l", sFl, 0)], 30.99, 30.99)
    for b in range(30):
        lstamp(a, 2*b); st.w(f"w{b}", f"x{b}", "stx", *(["kvs"] if b == f1b else []), *(["tx2"] if b == TXF else []))
        tb(b, 1); st("s_barrier"); tb(b, 0); lstamp(a, 2*b+1)
        if b in (0, 10, 20): stamp(a, {0: 1, 10: 2, 20: 6}[b])
        D = issue(b, nb if b >= cfg.get("nc", 0) else 1) + ([gate] if b == cfg.get("gb", 5) else []); assert b < cfg.get("gb", 5) or not xq
        L = [(b + 0.01 + C("dsp", 7)*i/len(D), x) for i, x in enumerate(D)] + ex[b]
        for x in sorted(L, key=lambda y: y[0]): st.run(x[1])
    assert not xq and not wq
    lstamp(a, 60); st.w("kv0", "stx")
    st("s_barrier"); stamp(a, 7); lstamp(a, 61); lstamp(a, None)
    if TS[0] == 2: a("s_memrealtime s[98:99]")
    for i in range(3): st(f"ds_read_b128 {v(r.Q16[0]+4*i,4)}, v{aQx} offset:{1024*i}", "Q")
    pb = cfg.get("pb", 0)
    sc = attention(1, [[0]*4]*16, None, lambda c: [f"kv{c+1}"], lambda c: [(lambda st_, c=c: stamp(a, 8+c))], lambda c, i: pb if (c, i) == (0, 0) and pb != cfg.get("p2", 0) else 2 if 4*c+i == cfg.get("pc", -1) else None, cfg.get("sb", 8), 251, cfg.get("bb", 6), {0: cfg.get("B0")})
    for c in range(13): sc.place(kv(c+3), c+1, cfg.get("q0", 2)/100, cfg.get("q1", 15)/100)
    assert cfg.get("q1", 15) < 19 or cfg.get("q0", 2) > cfg.get("k0", 52) % 10 * 10 + 35
    for x, it in sorted(sum(ex[30:], []), key=lambda y: y[0]): span(sc, [it], x, x, 30)
    WU = lambda ks, c: BIG+4*(5*ks+c)
    w0 = cfg.get("w0", 11); w1 = cfg.get("w1", 16); L = pkloads(BIG, 30, 249 if cfg.get("xp", 0) & 1 else vA[0], sWS, sPk, "wu", cfg)
    if cfg.get("xp", 0) & 1: st("v_mov_b32 v249, 0")
    span(sc, [flag("zn", sF2)], C("f2", 10), C("f2", 10), 0)
    pkl = lambda i, ptr, n: (f"""s_mov_b32 s{sX}, s{ptr}
    s_mov_b32 s{sX+1}, s{ptr+1}
    s_add_u32 m0, s{sMk}, {1024*i}
    s_mov_b32 s{sX+2}, {n*1280}
    buffer_load_dwordx4 v{vPk[i]}, {s(sX,4)}, 0 offen lds""", "pk")
    span(sc, [pkl(0, P_WOUT, 768), pkl(1, P_WO, 640)], C("k0", 52), C("k0", 52)+0.3, 0)
    span(sc, [[("@", "pk")] + [(f"ds_read_b64_tr_b16 {v(pkd+2*i,2)}, v{aPk} offset:{512*i}", "pr") for i in range(4)]] +
         [[("@", "pr"), (f"buffer_store_dwordx4 {v(pkd+4*i,4)}, v{vA[0]}, {s(sWS,4)}, s{sPs[i]} offen sc1", "ps")] for i in range(2)], C("k1", 65), C("k1", 65)+0.3, 0)
    span(sc, [[f"s_add_u32 s{sF2}, s{sF2}, {hx(FL4)}"] + flag("ps", sF2)], C("k2", 72), C("k2", 72), 0)
    span(sc, [(f"v_and_b32 v{t0}, {hx((32 << FS)-1)}, v{t0}\n" + fl(sF4), "F")], w0-0.7, w0-0.7, 0)
    span(sc, [poll("w", sF4, 0)], w0+0.18, w0+0.18, 0)
    assert l1-30 < C("f2", 10) < C("k2", 72) < w0-0.7 and (C("k0", 52) < .71 or 1 < cfg.get("k0", 52) % 10 < 8)
    wd = cfg.get("wd", 0); cn = [30*(w+1-w0)//(w1-w0) - 30*(w-w0)//(w1-w0) for w in range(w0, w1)]
    if wd: cn = [wd // 100**(w1-1-w) % 100 for w in range(w0, w1)]
    assert sum(cn) == 30
    for w in range(w0, w1):
        if cn[w-w0]: sc.place(L[sum(cn[:w-w0]):sum(cn[:w+1-w0])], w, 0.2 if w < 14 else cfg.get("wf", 20)/100, 0.9 if w != 14 else cfg.get("wg", 90)/100)
    act = [224, 12, 36, 60]
    def ald(i): return [(f"buffer_load_dwordx4 {v(act[i]+4*ks,4)}, v{vA[ks>>2]}, {s(sWS,4)}, s{sAct[i]} offen offset:{1024*(ks&3)} {CQ[cfg.get('c8', 0)]}", f"{name}_u{i}") for ks in range(6)]
    aP = [5, 6, 7, 8, 9]; aO = 10
    sc.place([f"""s_mul_i32 s{sT}, s{sK}, 6144
    v_add_u32 v{aO}, s{sT}, v{r.aK}
    s_mul_i32 s{sT}, s{sK}, 5120
    v_add_u32 v{aP[4]}, s{sT}, v{r.aK}"""] + [f"""s_xor_b32 s{sT}, s{sK}, {d}
    s_mul_i32 s{sT}, s{sT}, 15360
    s_add_u32 s{sT}, s{sT}, {PB0}
    v_add_u32 v{aP[d]}, s{sT}, v{vA[0]}""" for d in range(4)] + [f"""s_lshl_b32 s{sT}, s{S_TG}, 3
    s_add_u32 s{sT}, s{sT}, s{S_J}
    s_lshl_b32 s{sT}, s{sT}, {FS}
    s_add_u32 s{sT}, s{sT}, {hx(FL5)}
    s_cmp_eq_u32 s{sK}, 0
    s_cselect_b32 s{sF4}, s{sT}, {hx(WS_END)}"""]*(cfg.get("f5", -1) > 2), 15, 0.3, 0.8)
    span(sc, [(f"v_and_b32 v{t0}, {hx((8 << FS)-1)}, v{t0}\n" + fl(sF3), "F")], C("u3", 157), C("u3", 157), 0)
    u0 = cfg.get("u0", 50); assert u0 < 100 or 0 <= cfg.get("f5", -1) < 3 or cfg.get("y0", 2) == 0 or cfg.get("xb", 1) or cfg.get("xs", 70)
    ud = C("ud", 0); aU = 248
    dld = lambda i: [((f"s_add_u32 m0, s{sMk}, {6144*(i-1)+1024*ks}\n s_nop 0\n" if ks & 3 == 0 else "") +
        f"buffer_load_dwordx4 v{vA[ks>>2]}, {s(sWS,4)}, s{sAct[i]} offen offset:{1024*(ks&3)} sc1 lds", f"ud{i}") for ks in range(6)]
    if ud:
        assert C("u3", 157) < ud >= cR+2; u0 = -1
        sc.place([f"s_mul_i32 s{sMk}, s{sK}, {AA}\n v_add_u32 v{aU}, s{sMk}, v{vA[0]}"], 13, 0.5, 0.5)
        span(sc, [poll("u", sF3, 0)] + ald(0) + dld(1) + dld(2) + dld(3), ud, C("ue", 163), 0)
    elif u0 < 100: sc.place([poll("u", sF3, 0)] + ald(0), 16, u0/100, 0.95)
    sc.emit(st)
    f5 = cfg.get("f5", -1); fl5 = f"s_mov_b64 exec, 1\n buffer_store_dword v{t1}, off, {s(sWS,4)}, s{sF4} sc1\n s_mov_b64 exec, -1"
    if f5 == 4: st(fl5)
    for th in range(2):
        if th: st("s_nop 8")
        for i in range(3): st(f"ds_write_b128 v{aO}, {v(r.O[th]+4*i,4)} offset:{(3*th+i)*1024}", "po")
    ua = cfg.get("ua", 1)
    if 0 <= u0 < 100 and not ua: st.run(ald(1))
    if cfg.get("pc", -1) >= 0: st("s_setprio 0")
    st.w("po")
    stamp(a, 24); st("s_barrier"); stamp(a, 25)
    if TS[0] == 2: a("s_memrealtime s[96:97]")
    if u0 >= 100: st.run([poll("u", sF3, 0)] + ald(0) + ald(1))
    if 0 <= u0 < 100 and ua == 1: st.run(ald(1))
    if f5 == 3: st(fl5)
    ub = divmod(cfg.get("ub", 2045), 100)
    ac = [84, 224, 84, 224]; tc = 250; pr = [12, 36, 84]
    if ud: ub = (-1, -1)
    ny = cfg.get("ny", 0); assert not ny or (68 <= cfg.get("xs", 70) <= 90 and cfg.get("nq", 1) == 1)
    for e in range(2):
        if ub[e] == 0: st.run(ald(2+e))
    if cfg.get("xb", 1): st("s_barrier")
    for i in range(4):
        st.w(f"{name}_u{i}")
        stamp(a, 26+i)
        ex = {}
        if i > 0:
            for c in range(5): ex[c+2] = (f"ds_write_b128 v{aP[0]}, {v(ac[i-1]+4*c,4)} offset:{(i-1)*5120+c*1024}", "pw")
        if ud and i < 3:
            for ks in range(6): ex[cfg.get("ur", 10)+2*ks] = [("@", f"ud{i+1}"), (f"ds_read_b128 {v(act[i+1]+4*ks,4)}, v{aU} offset:{6144*i+1024*ks}", f"{name}_u{i+1}")]
        rp = lambda d, c: (f"ds_read_b128 {v(pr[d]+4*c,4)}, v{aP[d+1]} offset:{d*5120+c*1024}", f"pr{c}")
        padd = lambda x, y: unpk([f"v_pk_add_f32 {v(x+h2,2)}, {v(x+h2,2)}, {v(y+h2,2)}" for h2 in (0, 2)], cfg.get("np", 7) & 4)
        if i == 3 and ny:
            for c in range(5): ex[8+2*c] = rp(0, c); ex[9+2*c] = rp(1, c); ex[20+2*c] = [("@", f"pr{c}")] + padd(pr[0]+4*c, pr[1]+4*c)
        elif i == 3:
            ex[9] = [("@", "pw"), "s_barrier"]
            for c in range(5):
                for d in range(3): ex[10+3*c+d] = rp(d, c)
        for ks in range(6):
            for c in range(5):
                q = ac[i]+4*c
                if f5 == 10+30*i+5*ks+c: st(fl5)
                if cfg.get("xs", 70) == 30*i+5*ks+c > 0: st.run([("@", "pw")]*ny + ["s_barrier"])
                for e in range(2):
                    if ub[e] == 30*i+5*ks+c > 0: st.run(ald(2+e))
                st(f"{MF16} {v(q,4)}, {v(WU(ks,c),4)}, {v(act[i]+4*ks,4)}, {'0' if ks == 0 else v(q,4)}")
                if 5*ks+c in ex: st.run(ex[5*ks+c])
    if ny:
        st("s_nop 3")
        for c in range(5): st.run(padd(ac[3]+4*c, pr[0]+4*c))
        st.w("pw"); st("s_barrier")
        if cfg.get("pz", 0): st("s_setprio 2")
        for c in range(5): st.run(rp(2, c))
    for c in range(5):
        st.w(f"pr{c}"); q = ac[3]+4*c
        if ny: st.run(padd(q, pr[2]+4*c))
        else: st.run(padd(pr[0]+4*c, pr[1]+4*c) + padd(pr[0]+4*c, pr[2]+4*c) + padd(q, pr[0]+4*c))
        st(f"ds_write_b128 v{aP[4]}, {v(q,4)} offset:{c*1024}")
    st("s_waitcnt lgkmcnt(0)")
    stamp(a, 30)
    if TS[0] == 2: a("v_writelane_b32 v255, s96, 25\n v_writelane_b32 v255, s98, 7")
    st("s_barrier\n"*(4-cfg.get("nq", 1)))
    if TS[0] == 1: st(f"v_writelane_b32 v255, s{sCnt}, 5")
    wend(a, name)
    x = St(a)
    for nm, sF in polls: x(f"""{name}_{nm}retry:
    s_cmp_eq_u32 s{sCnt}, 0
    s_cbranch_scc1 {name}_{nm}ok
    s_sub_u32 s{sCnt}, s{sCnt}, 1
    {fl(sF)}
    s_waitcnt vmcnt(0)
    s_branch {name}_{nm}poll""")
    x(f"{name}_sretry:\n s_cmp_eq_u32 s{sCnt}, 0\n s_cbranch_scc1 {name}_sok\n s_sub_u32 s{sCnt}, s{sCnt}, 1")
    x.run(sld); x(f"s_waitcnt vmcnt(0)\n s_branch {name}_schk")
```

```python
from kfA1 import *
from kbA import slow_path
def waveA(E, st):
    a = E["a"]; name = E["name"]; cfg = E["cfg"]; S_ = E["S_"]; gS = E["gS"]; cR = E["cR"]; JB = E["JB"]
    sWS, sW, sT, sT2, sO, sN, sK, sTH, sHP, sE, sAct, sTag = [E[k] for k in "sWS sW sT sT2 sO sN sK sTH sHP sE sAct sTag".split()]
    sSP = S_(4); sBS = S_(4); sAr = S_(); sWb = [S_(), S_()]; sB = S_(); sWo = S_(); sZb = S_(); sZn = S_(); sZo = S_(); sFl = S_(); sCnt = S_(); sU = S_(); sOa = S_(); sOx = S_()
    sGm = S_(2); sF3 = S_(); sPk = S_(); sSc = S_(); C = lambda k, d: cfg.get(k, d)/10; FS = cfg.get('fs', 7)
    aW = [4, 5, 6, 7]; vl = 8; vo = [9, 10, 11, 252]; acc = BIG; g16 = cfg.get("g16", 1); W = [200, 204, 244, 248]; NZ = 9 if g16 else 11; Z = [208+4*z for z in range(NZ)]; t0, t1 = 253, 204 if cfg.get("sa", 1) else 254
    T = 12; vE = 162; vu = 250
    st(f"{name}_A:")
    st(f"v_lshlrev_b32 v{vSt}, 4, v0\n s_setprio {cfg.get('p1', 1)}")
    E["common"](st)
    kv_addr(st, T+4)
    st(f"v_mov_b32 v{T}, v{vSt}")
    st(f"""
    s_mul_i32 s{sAr}, s{sK}, {AA}
    s_lshl_b32 s{sT}, s{S_TG}, 1
    s_add_u32 s{sT}, s{sT}, s{sTH}
    s_lshl_b32 s{sT2}, s{sK}, 10
    s_lshl_b32 s{sWb[0]}, s{sT}, 17
    s_add_u32 s{sWb[0]}, s{sWb[0]}, s{sT2}
    s_xor_b32 s{sWb[1]}, s{sWb[0]}, 0x20000
    s_mul_i32 s{sB}, s{S_J if JB < 3 else S_TG}, {cfg.get("wj", 2)}
    s_add_u32 s{sB}, s{sB}, s{S_TG if JB < 3 else S_J}
    s_and_b32 s{sB}, s{sB}, 7
    s_lshl_b32 s{sB}, s{sB}, 7
    s_mov_b32 s{sZn}, s{sB}
    s_mul_i32 s{sU}, s{sT}, {88*1024}
    s_add_u32 s{sU}, s{sU}, {hx(WS_ACT)}
    s_lshl_b32 s{sT}, s{S_J}, 2
    s_add_u32 s{sT}, s{sT}, s{sK}
    s_mul_i32 s{sZb}, s{sT}, {8*12288}
    s_add_u32 s{sZb}, s{sZb}, {hx(WS_Z2N)}
    s_lshl_b32 s{sFl}, s{sT}, {FS+5}
    v_lshrrev_b32 v{T+4}, 3, v0
    v_lshlrev_b32 v{T+4}, 12, v{T+4}
    v_lshrrev_b32 v{T+5}, 4, v0
    v_and_b32 v{T+6}, 7, v0
    v_xor_b32 v{T+5}, v{T+5}, v{T+6}
    v_lshl_add_u32 v{vo[0]}, v{T+5}, 4, v{T+4}
    v_xor_b32 v{T+5}, 64, v{vo[0]}
    v_add_u32 v{vo[1]}, {32768-1024}, v{T+5}
    v_add_u32 v{vo[2]}, {2*(32768-1024)}, v{vo[0]}
    v_add_u32 v{vo[3]}, {3*(32768-1024)}, v{T+5}
    v_lshrrev_b32 v{T+4}, 5, v0
    v_bfe_u32 v{T+5}, v0, 1, 3
    v_xor_b32 v{T+5}, v{T+5}, v{T+4}
    v_lshlrev_b32 v{T+5}, 4, v{T+5}
    v_and_b32 v{T+6}, 31, v0
    v_lshl_add_u32 v{T+5}, v{T+6}, 7, v{T+5}
    v_lshlrev_b32 v{t0}, {FS}, v{T+6}
    s_lshl_b32 s{sT}, s{sHP}, 7
    v_xor_b32 v{vl}, s{sT}, v{T}
    s_mov_b32 s{sCnt}, 0x8000
    """)
    for i in range(4): st(f"v_xor_b32 v{aW[i]}, {hx(32*i)}, v{T+5}\n v_add_u32 v{aW[i]}, s{sAr}, v{aW[i]}")
    st(f"""
    s_lshr_b32 s{sT}, s{S_J}, 1
    s_mul_i32 s{sT}, s{sT}, 5120
    s_add_u32 s{sOa}, s{sU}, s{sT}
    s_and_b32 s{sT}, s{S_J}, 1
    s_lshl_b32 s{sT}, s{sT}, 1
    s_add_u32 s{sT}, s{sT}, s{sHP}
    s_lshl_b32 s{sT2}, s{sT}, 8
    s_add_u32 s{sOx}, s{sOa}, s{sT2}
    s_add_u32 s{sOx}, s{sOx}, 4096
    s_lshl_b32 s{sT}, s{sT}, 10
    s_add_u32 s{sOa}, s{sOa}, s{sT}
    s_mul_i32 s{sT}, s{S_J}, 3072
    s_add_u32 s{sU}, s{sU}, s{sT}
    s_lshl_b32 s{sT}, s{sHP}, 9
    s_add_u32 s{sU}, s{sU}, s{sT}
    s_add_u32 s{sU}, s{sU}, {20*1024}""" + g16*f"""
    s_lshl_b32 s{sT}, s{S_TG}, 2
    s_add_u32 s{sT}, s{sT}, s{sK}
    s_mul_i32 s{sU}, s{sT}, {44*1024}
    s_mul_i32 s{sT}, s{S_J}, 3072
    s_add_u32 s{sU}, s{sU}, s{sT}
    s_add_u32 s{sU}, s{sU}, {hx(WS_ACT+20*1024)}""" + f"""
    s_mul_i32 s{sT}, s{sK}, 5120
    s_add_u32 s{sT}, s{sT}, {hx(WS_ACT)}
    """)
    for i in range(4): st(f"s_add_u32 s{sAct[i]}, s{sAct[i]}, s{sT}")
    uaddr = lambda vu, tp: [f"""v_bfe_u32 v{tp}, v0, 4, 1
    v_mul_u32_u24 v{vu}, {44*1024}, v{tp}
    v_and_b32 v{tp}, 15, v0""", f"""v_cmp_gt_u32 vcc, 32, v0
    v_lshl_add_u32 v{vu}, v{tp}, 4, v{vu}
    v_lshrrev_b32 v{tp}, 5, v0
    v_cndmask_b32 v{vu+1}, -4.0, v{vu}, vcc
    v_lshl_add_u32 v{vu}, v{tp}, 8, v{vu}"""]
    h, e, cb, tok = T+1, T+2, T+3, T+4
    st(f"""
    v_lshrrev_b32 v{h}, 5, v0
    v_bfe_u32 v{e}, v0, 2, 2
    v_and_b32 v{tok}, 31, v0
    v_bfe_u32 v{cb}, v0, 4, 1
    v_and_b32 v{T+5}, 3, v0
    v_lshlrev_b32 v{T+5}, 3, v{T+5}
    v_lshl_add_u32 v{cb}, v{cb}, 5, v{T+5}
    v_lshl_add_u32 v{T+6}, v{h}, 3, v{e}
    s_mul_i32 s{sT}, s{sHP}, 96
    v_mul_u32_u24 v{aZ[0]}, 192, v{T+6}
    v_add3_u32 v{aZ[0]}, v{aZ[0]}, v{cb}, s{sT}
    v_mad_u32_u24 v{T+7}, v{T+6}, 40, v{T+5}
    v_add_u32 v{T+6}, v{T+6}, v{e}
    s_mul_i32 s{sT}, s{sHP}, 40
    v_mul_u32_u24 v{aQ}, 160, v{T+6}
    v_add3_u32 v{aQ}, v{aQ}, v{cb}, s{sT}
    v_add_u32 v{aZ[1]}, 0x8000, v{aZ[0]}
    v_lshlrev_b32 v{aG}, 4, v{h}
    v_add_u32 v{aG}, {GATE}, v{aG}
    s_lshl_b32 s{sT}, s{sTH}, 12
    s_add_u32 s{sT}, s{sT}, {X0}
    s_sub_u32 s{sT}, s{sT}, s{sAr}
    s_mov_b32 s{sGm}, 0x100000
    s_mov_b32 s{sGm+1}, 0x100000
    v_mov_b64 {v(r.Q8,2)}, 0
    v_mov_b64 {v(r.Q8+2,2)}, 0
    """)
    for i in range(4): st(f"v_add_u32 v{aX[0][i]}, s{sT}, v{aW[i]}\n v_add_u32 v{aX[1][i]}, 0x10000, v{aX[0][i]}")
    st(f"""
    s_cmp_lt_u32 s{S_J}, 2
    s_cselect_b32 vcc_lo, 0xffff0000, 0
    s_mov_b32 vcc_hi, vcc_lo
    s_lshl_b32 s{sT}, s{sHP}, 5
    v_add_u32 v{T+7}, s{sT}, v{T+7}""")
    for i in range(8): st(f"""v_add_u32 v{T+8}, {768*(i&1)+3072*(i>>1)+64}, v{aZ[0]}
    v_add_u32 v{T+9}, {12288+160*(i&1)+640*(i>>1)}, v{T+7}
    v_cndmask_b32 v{aKV+i}, v{T+8}, v{T+9}, vcc""")
    st(f"""
    s_lshl_b32 s{sT}, s{sK}, 10
    s_add_u32 s{sT}, s{sT}, {LNS}
    v_lshl_add_u32 v{aLw}, v{tok}, 5, s{sT}
    v_lshl_add_u32 v{aLw}, v{h}, {4 if cfg.get("hm", 3) else 3}, v{aLw}
    s_lshl_b32 s{sT}, s{sK}, 12
    s_add_u32 s{sT}, s{sT}, {Z1P}
    v_add_u32 v{aPark}, s{sT}, v{vSt}
    s_mul_i32 s{sT}, s{sK}, 3072
    v_add_u32 v{aS}, s{sT}, v{vSt}
    v_add_u32 v{aTX}, {TX}, v{aS}
    v_add_u32 v{aS}, {QX}, v{aS}
    s_lshl_b32 s{sT}, s{S_TG}, 3
    s_add_u32 s{sT}, s{sT}, s{S_J}
    s_lshl_b32 s{sT}, s{sT}, 2
    s_add_u32 s{sT}, s{sT}, s{sK}
    s_lshl_b32 s{sT}, s{sT}, {FS}
    s_add_u32 s{sF3}, s{sT}, {hx(FL3)}
    s_cmp_eq_u32 s{S_J}, 0
    s_cselect_b32 s{sSc}, {fl(QSCALE)}, 1.0
    s_waitcnt lgkmcnt(0)""")
    if g16: st(f"""v_lshrrev_b32 v{T+18}, 5, v0
    s_lshl_b32 s{sT2}, s{sK}, 10
    s_lshl_b32 s{sT}, s{S_TG}, 1
    s_add_u32 s{sT}, s{sT}, s{sHP}
    s_lshl_b32 s{sT}, s{sT}, 17
    s_add_u32 s{sWb[0]}, s{sT}, s{sT2}
    s_xor_b32 s{sWb[1]}, s{sWb[0]}, 0x20000
    s_lshl_b32 s{sT}, s{sTH}, 11
    v_mul_u32_u24 v{vl}, 0xc00, v{T+18}
    v_lshrrev_b32 v{T+18}, 4, v0
    v_bfe_u32 v{T+19}, v0, 1, 3
    v_and_b32 v{T+20}, 15, v0
    v_xor_b32 v{T+19}, v{T+19}, v{T+18}
    v_and_b32 v{T+18}, 1, v{T+18}
    v_lshl_add_u32 v{T+19}, v{T+19}, 4, s{sT}
    v_lshl_add_u32 v{vl}, v{T+18}, 9, v{vl}
    v_lshl_add_u32 v{T+19}, v{T+20}, 7, v{T+19}
    v_lshl_add_u32 v{vl}, v{T+20}, 4, v{vl}""")
    for i in range(4*g16): st(f"v_xor_b32 v{aW[i]}, {hx(2048*(i >> 1) + 64*(i & 1))}, v{T+19}\n v_add_u32 v{aW[i]}, s{sAr}, v{aW[i]}")
    srd(a, sWS, P_WS, WS_END); srd(a, sSP, P_WSP, 2048*4096); srd(a, sBS, P_BSP, 4096)
    st(f"s_mov_b32 s{sT}, {hx(WS_EP)}\n buffer_load_dword v{vE}, off, {s(sWS,4)}, s{sT}\n s_barrier", "ep")
    stamp(a, 1); lstamp(a, 1)
    sc = Sched()
    for x in reads(0, sGm) + reads(1, sGm): sc.op(x)
    gemm(sc, sGm)
    sc.place(["s_mov_b32 vcc_lo, 0xcccc0000\n s_mov_b32 vcc_hi, 0xcccc0000"] + [f"""v_add_u32 v{T+8}, {768*(i&1)+16*(i>>1)+16}, v{aZ[0]}
    v_add_u32 v{T+9}, {3072+160*(i&1)+80*(i>>1)}, v{aQ}
    v_cndmask_b32 v{aM+i}, v{T+9}, v{T+8}, vcc
    v_add_u32 v{aM+4+i}, 0x8000, v{aM+i}""" for i in range(4)], 1, 0.1, 0.9)
    sc.place([[("@", "ep"), f"v_readfirstlane_b32 s{sTag}, v{vE}"], f"s_add_u32 s{sTag}, s{sTag}, {hx(TAGC)}"], 8, 0.2, 0.8)
    if not cfg.get("tsb"): sc.place([lambda st_: stamp(a, 2)], 10, 0, 0); sc.place([lambda st_: stamp(a, 6)], 20, 0, 0)
    q = Z2+24
    kvx = sum([[f"v_mul_f32 v{q+2*i}, s{sSc}, v{q+2*i}\n v_mul_f32 v{q+2*i+1}, s{sSc}, v{q+2*i+1}", f"v_cvt_pk_bf16_f32 v{q+i}, v{q+2*i}, v{q+2*i+1}"] +
               [(f"ds_write_b64 v{aLw}, {v(q+i-1,2)} offset:{8*i-8}", "tx")]*(i & 1) for i in range(4)], [])
    hx_ = lambda n: [f"v_cvt_pk_bf16_f32 v{Z2+8*n+i}, v{Z2+8*n+2*i}, v{Z2+8*n+2*i+1}" for i in range(4)] + [(f"ds_write_b128 v{aTX}, {v(Z2+8*n,4)} offset:{1024*n}", "tx")]
    hm = cfg.get("hm", 3); H = [hx_(n) for n in range(3)]
    if hm: kvx = [x for x in kvx if isinstance(x, str)] + [f"s_nop 0\n v_permlane32_swap_b32 v{q}, v{q+2}\n v_permlane32_swap_b32 v{q+1}, v{q+3}", (f"ds_write_b128 v{aLw}, {v(q,4)}", "tx")]
    cat = lambda *L: sum([x[:-1] for x in L], []) + [[x[-1] for x in L]]
    H = [[H[0] + kvx, H[1], H[2]], [H[0] + kvx, H[1], H[2]], [cat(*H, kvx)], [cat(H[0], kvx), cat(H[1], H[2])], [cat(H[0], kvx), H[1], H[2]]][hm]
    span(sc, H[0], 11+cfg.get("h0", 10)/100, 11+cfg.get("h1", 50)/100, 0)
    for n in range(1, len(H)): span(sc, H[n], 11+n+cfg.get("h2", 2)/100, 11+n+cfg.get("h3", 35)/100, 0)
    mark = lambda vu, d: [f"v_mov_b64 {v(d,2)}, -1\n v_mov_b64 {v(d+2,2)}, -1", f"buffer_store_dwordx4 {v(d,4)}, v{vu}, {s(sWS,4)}, s{sOa} offen sc1",
         f"buffer_store_dwordx4 {v(d,4)}, v{vu}, {s(sWS,4)}, s{sOa} offen offset:512 sc1", f"buffer_store_dwordx4 {v(d,4)}, v{vu+1}, {s(sWS,4)}, s{sOx} offen sc1"]
    if C("s0", 400) < 30: span(sc, uaddr(vu, 244) + mark(vu, 244), C("s0", 400), C("s1", 309), 0)
    sc.emit(st)
    st("s_nop 8")
    for ab in range(2):
        for i in range(4): st(f"v_cvt_pk_bf16_f32 v{r.Q16[ab]+i}, v{QA+16*ab+2*i}, v{QA+16*ab+2*i+1}")
        st(f"ds_write_b128 v{aS}, {v(r.Q16[ab],4)} offset:{1024*ab}", "qx")
    st("s_mov_b32 exec_hi, 0")
    for i in range(4): st(f"v_cvt_pk_bf16_f32 v{r.Q8+i}, v{QA+16*(i>>1)+8+2*(i&1)}, v{QA+16*(i>>1)+9+2*(i&1)}")
    st(f"s_mov_b32 exec_hi, -1\n ds_write_b128 v{aS}, {v(r.Q8,4)} offset:2048\n v_mul_f32 v{gl}, {fl(-LOG2E)}, v{QA+8}", "qx")
    ZR = [Z1+i for i in range(16)] + [QA+12+i for i in range(4)] + [QA+28+i for i in range(4)]; zp = 112; k1 = 186; ag = cfg.get("ag", 3)
    g1 = lambda g, pk: (gelu(ZR[8*g:8*g+8], Z2, k1, pk=pk) + [f"v_cvt_pk_bf16_f32 v{zp+4*g+i}, v{ZR[8*g+2*i]}, v{ZR[8*g+2*i+1]}" for i in range(4)] +
                        [f"ds_write_b128 v{aPark}, {v(zp+4*g,4)} offset:{1024*g}"])
    st(f"v_mov_b32 v{k1}, {fl(-GK1)}\n s_mov_b32 s{sGm}, {fl(-GK2)}\n s_mov_b32 s{sGm+1}, s{sGm}")
    for g in range(ag): st.run(g1(g, sGm))
    lstamp(a, 60); st.w("qx"); st("s_barrier"); stamp(a, 7); lstamp(a, 61); lstamp(a, None)
    if cfg.get("xp", 0) & 2: st(f"v_mov_b32 v{vl}, 0")
    if cfg.get("xp", 0) & 4: st(f"v_mov_b32 v{vo[0]}, 0\n v_mov_b32 v{vo[1]}, 0")
    def wsp(blk):
        L = []
        for b in range(8):
            x = ""
            if b & 3 == 0: x = f"s_add_u32 m0, s{sAr}, {(blk&1)*8192+b*1024}\n s_add_u32 s{sWo}, s{sWb[b>>2]}, s{sB}\n"
            x += f"buffer_load_dwordx4 v{vo[b&3]}, {s(sSP,4)}, s{sWo} offen offset:{(b&3)*1024} {CP[cfg.get('c1', 0)]} lds\n"
            if b == 7: x += f"s_add_u32 s{sB}, s{sB}, 128\n s_and_b32 s{sB}, s{sB}, 0x3ff"
            L.append((x, f"wsp{blk}_{b>>2 if cfg.get('dt', 1) else 1}"))
        return L
    def zld(f):
        ks, n = divmod(f, 3); x = ""
        if f % 12 == 0: x = f"s_mul_i32 s{sZo}, s{sZn}, 96\n s_add_u32 s{sZn}, s{sZn}, 128\n s_add_u32 s{sZo}, s{sZo}, s{sZb}\n s_and_b32 s{sZn}, s{sZn}, 0x3ff\n"
        elif g16: x = f"s_add_u32 s{sZo}, s{sZo}, 6144\n"*(f % 6 == 0)
        elif n == 0: x = f"s_add_u32 s{sZo}, s{sZo}, 3072\n"
        return (x + f"buffer_load_dwordx4 {v(Z[f%NZ],4)}, v{vl}, {s(sWS,4)}, s{sZo} offen offset:{1024*(f % 6 >> 1) + 256*(f & 1) if g16 else 1024*n} {CQ[cfg.get('c4', 0)]}", f"z{f}")
    rW = lambda ks, th: [("@", f"wsp{ks>>2}_{th if cfg.get('dt', 1) else 1}"), (f"ds_read_b128 {v(W[th],4)}, v{aW[ks&3]} offset:{((ks>>2)&1)*8192+th*4096}", f"W{th}")]
    if g16: rW = lambda s_, d: [("@", f"wsp{s_>>1}_{d>>1}"), (f"ds_read_b128 {v(W[d],4)}, v{aW[2*(d&1)+(s_&1)]} offset:{((s_>>1)&1)*8192+(d>>1)*4096}", f"W{d}")]
    def gop16():
        m = G["m"]; G["m"] += 1
        s_, p_, d = m//12, m % 12 // 4, m % 4; f = 6*s_+2*p_; it = []
        for e2 in range(2):
            q_ = acc+24*d+8*p_+4*e2
            it += [("@", f"z{f+e2}", f"W{d}"), f"{MF16} {v(q_,4)}, {v(Z[(f+e2)%NZ],4)}, {v(W[d],4)}, {v(q_,4) if s_ else 0}"]
        if p_ == 2 and s_ < 15: it += rW(s_+1, d)
        zd = cfg.get("zd", 1)
        if d == 3: it += [zld(x) for x in range(f+NZ, min(f+NZ+2-zd, 96))]
        if d == 0 and zd and m and f-1+NZ < 96: it.append(zld(f-1+NZ))
        DS = [[13, 14, 17, 18, 21, 22, 25, 26], [13, 14, 15, 16, 17, 18, 19, 20], [17, 18, 21, 22, 25, 26, 29, 30], [13, 17, 18, 21, 25, 26, 29, 33], [13, 16, 19, 22, 25, 28, 31, 34], [14, 17, 21, 22, 26, 29, 33, 34]][cfg.get("d6", 3)]
        if m % 24 == 13 and m//24 + 2 < 8: assert not G["q"]; G["q"] = [(m-13+y, x) for y, x in zip(DS, wsp(m//24 + 2))]
        while G["q"] and G["q"][0][0] == m: it.append(G["q"].pop(0)[1])
        if m == 191: it.append("; end of G")
        return it
    G = dict(m=0, q=[])
    DPG = cfg.get("dpg", 1)
    def gop():
        m = G["m"]; G["m"] += 1
        ks, th, n = m//6, (m % 6)//3, m % 3; f = 3*ks+n; ac = acc+48*th+16*n
        it = [("@", f"z{f}", f"W{th}"), f"{MF32} {v(ac,16)}, {v(Z[f%NZ],4)}, {v(W[th],4)}, {'0' if ks == 0 else v(ac,16)}"]
        if cfg.get("xp", 0) & 8: it[1] = "\n".join(f"{MF16} {v(q_,4)}, {v(Z[f%NZ],4)}, {v(W[th],4)}, {'0' if ks < 2 else v(q_,4)}" for q_ in (ac+8*(ks&1), ac+8*(ks&1)+4))
        if n == 2 and ks < 31: it += rW(ks+1, th)
        if th == 1 and f+NZ < 96: it.append(zld(f+NZ))
        DS = [[21, 22, 23, 24, 25, 26, 27, 28], [18, 19, 20, 21, 24, 25, 26, 27], [18, 19, 20, 24, 25, 26, 30, 31], [18, 19, 20, 20, 24, 25, 26, 26], [18, 19, 20, 21, 22, 23, 24, 25],
              [18, 20, 22, 24, 26, 28, 30, 32]][cfg.get("ds", 5)]
        if m % 24 == 18 and m//24 + 2 < 8: assert not G["q"]; G["q"] = [(m-18+d, x) for d, x in zip(DS, wsp(m//24 + 2))]
        while G["q"] and G["q"][0][0] == m: it.append(G["q"].pop(0)[1])
        if m == 191: it.append("; end of G")
        return it
    np_ = (cR-gS)*4
    dens = [[0]*4 for c in range(16)]
    for p in range(np_): dens[gS+p//4][p % 4] = 192*(p+1)//np_ - 192*p//np_
    pa = cfg.get("pa", 1)
    sc = attention(0, dens, gop16 if g16 else gop, lambda c: ["rsw"], lambda c: [(lambda st_, c=c: stamp(a, 8+c))], lambda c, i: pa if (c, i) == (0, 0) and pa != cfg.get("p1", 1) else None, cfg.get("sa", 1), 254, cfg.get("ba", 16), {d: cfg.get(f"A{d}", {5: "geePQeeeegqeeeegpeeeeggee", 6: "geePQeeegqeeeegeegpeeeggee"}.get(d) if cfg.get("sa", 1) else None) for d in range(8)})
    span(sc, sum([g1(g, 0) for g in range(ag, 3)], []), C("a0", 2), C("a1", 10*gS-1), 0)
    sc.place([f"v_mov_b32 v{gl-1}, v{gl}", f"s_nop 0\n v_permlane32_swap_b32 v{gl-1}, v{gl}", f"v_exp_f32 v{gl}, v{gl}", f"v_add_f32 v{gl}, 1.0, v{gl}", f"v_rcp_f32 v{gl}, v{gl}", f"ds_write_b32 v{aPark}, v{gl} offset:3072"], 0, 0.02, 0.22)
    ff = C("ff", 302)
    if cfg.get("tp0"):
        for i in range(2): span(sc, [f"""s_add_u32 s{sT}, s{sB}, {128*i}
        s_and_b32 s{sT}, s{sT}, 0x3ff
        s_andn2_b32 s{sT2}, s{sWb[0]}, 0x20000
        v_lshlrev_b32 v{Z[0]}, 12, v0
        s_add_u32 s{sT}, s{sT}, s{sT2}
        buffer_load_dword v{Z[0]+1}, v{Z[0]}, {s(sSP,4)}, s{sT} offen"""], C(f"tp{i}", 0), C(f"tp{i}", 0), 30)
        assert C("tp1", 0) < ff
    span(sc, wsp(0) + wsp(1), ff, ff+C("fl", 30), 30)
    if 30 <= C("s0", 400) < 40: span(sc, uaddr(vu, tg_) + mark(vu, tg_), C("s0", 400), C("s1", 309), 30)
    fld = f"buffer_load_dword v{t1}, v{t0}, {s(sWS,4)}, s{sFl} offen sc1"
    def poll(st_, p="p", k=3):
        st_(f"{name}_{p}oll:"); st_.w("F")
        st_(f"v_cmp_ne_u32 vcc, s{sTag}, v{t1}\n s_cbranch_vccnz {name}_{p}retry\n {name}_{p}ok:")
        stamp(a, k)
    sc.place([(fld, "F")], gS-1, cfg.get("f0", 10)/100, cfg.get("f0", 10)/100)
    sc.place([poll] + [zld(f) for f in range(NZ)], gS-1, cfg.get("f1", 50)/100, 1.0)
    sc.place([rW(0, d) for d in range(4 if g16 else 2)], gS, 0.1, 0.2)
    z1 = 208; og = 220; gt = 222; tp = 224; aR = [228, 229, 230, 231]; vu = 232; aF = 240; vt = 242
    quads = lambda d, n: [acc+48*(d & 1)+16*n+4*(d >> 1), acc+48*(d & 1)+16*n+4*(d >> 1)+8]
    az = 223 if g16 else tp
    if g16: quads = lambda d, n: [acc+24*d+8*n, acc+24*d+8*n+4]
    wl = sc.win[cR]; e = max(i for i, o in enumerate(wl) if isinstance(o, list) and "; end of G" in o)
    it = [f"""v_lshlrev_b32 v{aF}, 4, v0
    v_add_u32 v{aR[0]}, s{sAr}, v{aF}
    s_lshl_b32 s{sT}, s{sK}, 12
    s_add_u32 s{sT}, s{sT}, {Z1P}
    v_add_u32 v{tp}, s{sT}, v{aF}"""]
    if g16: it += [f"""s_lshl_b32 s{sT}, s{sHP}, 12
    s_lshl_b32 s{sT2}, s{sTH}, 8
    s_add_u32 s{sT}, s{sT}, s{sT2}
    s_add_u32 s{sT}, s{sT}, {Z1P}
    v_lshrrev_b32 v{vt}, 5, v0
    v_mul_u32_u24 v{vt}, {8192-3072}, v{vt}
    v_add3_u32 v{az}, v{vt}, v{vl}, s{sT}""", (f"ds_read_b32 v{og}, v{az} offset:3072", "zp")]
    it += [(f"ds_read_b128 {v(z1+4*n,4)}, v{az} offset:{1024*n}", "zp") for n in range(3)]
    it += [(f"""s_lshl_b32 s{sT}, s{S_TG}, {1+g16}
    s_add_u32 s{sT}, s{sT}, s{sK if g16 else sTH}
    s_lshl_b32 s{sT2}, s{sT}, {6-g16}
    v_bfe_u32 v{vt}, v{t0}, {FS-1}, {6-g16}
    ds_read_b32 v{gt}, v{tp} offset:3072
    buffer_load_ushort v{og+1}, v{vt}, {s(sBS,4)}, s{sT2} offen""", "zp")]
    for d in (2, 1, 3):
        for n in range(3):
            for e2, q in enumerate(quads(d, n)): it.append((f"ds_write_b128 v{aR[0]}, {v(q,4)} offset:{((d-1)*6+2*n+e2)*1024}", "rsw"))
        it.append(f"s_xor_b32 s{sT}, s{sK}, {d}\n s_mul_i32 s{sT}, s{sT}, {AA}\n v_add_u32 v{aR[d]}, s{sT}, v{aF}")
    sc.place(it, cR, (e+3)/len(wl), 0.9)
    it = []
    rd = lambda n: [(f"ds_read_b128 {v(q,4)}, v{aR[d]} offset:{((d-1)*6+2*n+e2)*1024}", f"rs{n}{e2}") for e2 in range(2) for d in (1, 2, 3) for q in [quads(d, n)[e2]]]
    it += rd(0)
    it += [[("@", "zp"), f"""v_sub_f32 v{og}, 1.0, v{og if g16 else gt}
    v_lshlrev_b32 v{og+1}, 16, v{og+1}
    v_mul_f32 v{og+1}, v{og}, v{og+1}"""]] + uaddr(vu, tp) + (mark(vu, 244) if C("s0", 400) >= 40 else [])
    for n in range(3):
        nr = rd(n+1) if n < 2 else []
        for e2 in range(2):
            for h2 in (0, 2):
                o_, p1, p2, p3 = [quads(d, n)[e2]+h2 for d in range(4)]; zi = z1+4*n+2*e2+h2//2
                it.append([("@", f"rs{n}{e2}"), f"""v_pk_add_f32 {v(o_,2)}, {v(o_,2)}, {v(p1,2)}
                v_pk_add_f32 {v(p2,2)}, {v(p2,2)}, {v(p3,2)}
                v_lshlrev_b32 v{tp}, 16, v{zi}
                v_pk_add_f32 {v(o_,2)}, {v(o_,2)}, {v(p2,2)}"""])
                it.append(f"""v_and_b32 v{tp+1}, 0xffff0000, v{zi}
                v_pk_fma_f32 {v(o_,2)}, {v(o_,2)}, {v(og,2)}, {v(og,2)} op_sel:[0,0,1] op_sel_hi:[1,0,1]
                v_pk_mul_f32 {v(o_,2)}, {v(o_,2)}, {v(tp,2)}
                v_cvt_pk_bf16_f32 v{zi}, v{o_}, v{o_+1}""")
                it += nr[:2]; nr = nr[2:]
        it.append((f"buffer_store_dwordx4 {v(z1+4*n,4)}, v{aF if g16 else vu}, {s(sWS,4)}, s{sU} offen offset:{1024*n} sc1", "us"))
        if cfg.get("od", 0) & 2: it.append(f"buffer_store_dwordx4 {v(z1+4*n,4)}, v{vu}, {s(sWS,4)}, s{sU} offen offset:{1024*n}")
    it.append(lambda st_: stamp(a, 4))
    it.append(f"""s_lshl_b32 s{sT}, s{S_J}, 2
    s_add_u32 s{sT}, s{sT}, s{sK}
    s_mul_i32 s{sPk}, s{sT}, {11*5120}
    s_add_u32 s{sPk}, s{sPk}, {hx(WS_PK+6*5120)}
    s_or_b32 s{sT}, s2, s{sK}
    s_cmp_eq_u32 s{sT}, 0
    s_cselect_b32 s{sE}, 1, 0
    s_mov_b32 s{sE+1}, 0
    v_mov_b32 v{tp+1}, s{sTag}
    v_cndmask_b32 v{tp}, -4.0, v0, {s(sE,2)}
    s_mov_b32 s{sT}, {hx(WS_EP)}
    buffer_store_dword v{tp+1}, v{tp}, {s(sWS,4)}, s{sT} offen sc1""")
    wu = cfg.get("wu", 50)/100
    NP = cfg.get("np", 7)
    if NP & 1: it = sum([[y] if not isinstance(y, str) or "v_fma" not in y else ["\n".join(y.split("\n")[:3]), "\n".join(y.split("\n")[3:])] for y in
                   sum([[[y[0], "\n".join(y[1].split("\n")[:4])], "\n".join(y[1].split("\n")[4:])] if isinstance(y, list) and y[0][1][:2] == "rs" else [y] for y in unpk(it)], [])], [])
    sc.place(it, cR+1, 0.0, wu)
    WO = lambda ks, c: BIG+4*(5*ks+c)
    f3 = cR+1+wu+C("f3", 4)
    span(sc, [[f"s_mov_b64 exec, 1", ("@", "us"), f"buffer_store_dword v{tp+1}, off, {s(sWS,4)}, s{sF3} sc1\n s_mov_b64 exec, -1", lambda st_: stamp(a, 30)]], f3, f3, 0)
    span(sc, pkloads(BIG, 25, aF, sWS, sPk, "wof", cfg), cR+1+wu+0.02, C('we', 164), 0)
    sc.emit(st)
    O = r.O; S = r.S; D = 208; t = 244; mx = 226; vA = [4, 5]; aP = [6, 7, 8, 9, 10]; vs = 11
    st(f"""s_mul_i32 s{sT}, s{sK}, 6144
    v_add_u32 v{t}, s{sT}, v{r.aK}
    s_mov_b32 s{sN}, 0""")
    f5 = cfg.get("f5", -1); fl5 = f"s_mov_b64 exec, 1\n buffer_store_dword v{tp+1}, off, {s(sWS,4)}, s{sF3} sc1\n s_mov_b64 exec, -1"
    if f5 >= 0: st(f"""s_lshl_b32 s{sT}, s{S_TG}, 3
    s_lshl_b32 s{sFl}, s{sK}, 1
    s_add_u32 s{sFl}, s{sFl}, s{sT}
    s_add_u32 s{sT}, s{sT}, s{S_J}
    s_lshl_b32 s{sFl}, s{sFl}, {FS}
    s_lshl_b32 s{sT}, s{sT}, {FS}
    s_add_u32 s{sFl}, s{sFl}, {hx(FL5)}
    s_add_u32 s{sT}, s{sT}, {hx(FL5)}
    s_cmp_eq_u32 s{sK}, 0
    s_cselect_b32 s{sF3}, s{sT}, {hx(WS_END)}
    v_and_b32 v{t0}, {1 << FS}, v{t0}""")
    if f5 == 0: st(fl5)
    st(f"v_lshlrev_b32 v{vA[0]}, 4, v0\n v_add_u32 v{vA[1]}, 0x1000, v{vA[0]}")
    srd(a, sSP, P_OUT, 2048*1280)
    st(f"""
    v_add_u32 v{aP[0]}, s{sAr}, v{vA[0]}
    s_mul_i32 s{sT}, s{sK}, 5120
    s_add_u32 s{sT}, s{sT}, {KV0}
    v_add_u32 v{aP[4]}, s{sT}, v{vA[0]}
    v_and_b32 v{t+1}, 15, v0
    v_mul_u32_u24 v{vs}, 0x500, v{t+1}
    v_lshrrev_b32 v{t+1}, 4, v0
    v_lshl_add_u32 v{vs}, v{t+1}, 3, v{vs}
    v_mov_b32 v{aP[1]}, v{aR[1]}
    v_mov_b32 v{aP[2]}, v{aR[2]}
    v_mov_b32 v{aP[3]}, v{aR[3]}
    s_lshl_b32 s{sT}, s{S_TG}, 2
    s_add_u32 s{sT}, s{sT}, s{E["sOwn"]}
    s_mul_i32 s{sO}, s{sT}, {16*1280}
    s_mul_i32 s{sT2}, s{S_J}, 160
    s_add_u32 s{sO}, s{sO}, s{sT2}
    """)
    lt = cfg.get("lt", 1); vo_ = [248, 249, 252]
    if lt:
        st(f"""v_and_b32 v{t+1}, 15, v0
        v_mul_u32_u24 v{t+1}, {1280-160}, v{t+1}
        v_sub_u32 v{vs}, v{vs}, v{t+1}
        v_add_u32 v{vs}, s{sAr}, v{vs}""")
    stamp(a, 24); st("s_barrier"); stamp(a, 25)
    if f5 == 1: st(fl5)
    for th in range(2):
        for i in range(3): st(f"ds_read_b128 {v(S[th]+4*i,4)}, v{t} offset:{(3*th+i)*1024}", f"po{th}{i}")
    su = lambda x: st(unpk(x, NP & 8))
    for i in (2, 0, 1):
        for th in range(2):
            st.w(f"po{th}{i}")
            for h2 in (0, 2): su(f"v_pk_add_f32 {v(O[th]+4*i+h2,2)}, {v(O[th]+4*i+h2,2)}, {v(S[th]+4*i+h2,2)}")
    su(f"{name}_fin:")
    for i in range(4): su(f"v_permlane32_swap_b32 v{O[0]+8+i}, v{O[1]+8+i}")
    L = O[1]+8
    su(f"""
    v_rcp_f32 v{t}, v{L}
    v_cmp_ngt_f32 vcc, 0x5f800000, v{L}
    s_mov_b32 s{sT}, 0x1f800000
    v_mul_f32 v{t}, v{t}, v{gt}
    v_cmp_nlt_f32 {s(sE,2)}, s{sT}, v{L}
    v_mov_b32 v{t+2}, v{t}
    v_mov_b32 v{t+4}, v{t}
    s_or_b64 {s(sE,2)}, {s(sE,2)}, vcc
    v_pk_mul_f32 {v(O[0]+8,2)}, {v(O[0]+8,2)}, {v(t,2)} op_sel_hi:[1,0]
    v_permlane32_swap_b32 v{t+2}, v{t+4}
    v_pk_mul_f32 {v(O[0]+10,2)}, {v(O[0]+10,2)}, {v(t,2)} op_sel_hi:[1,0]
    """)
    for th in range(2):
        for i in range(0, 8, 2): su(f"v_pk_mul_f32 {v(O[th]+i,2)}, {v(O[th]+i,2)}, {v(t+2+2*th,2)} op_sel_hi:[1,0]")
    su(f"v_pk_mul_f32 {v(t+6,2)}, {v(O[0]+8,2)}, 0 op_sel_hi:[1,0]")
    for k_, q in enumerate([O[0]+10] + [O[th]+i for th in range(2) for i in range(0, 8, 2)]):
        su(f"v_pk_fma_f32 {v(t+6,2)}, {v(q,2)}, 0, {v(t+6,2)} op_sel_hi:[1,0,1]")
        if k_ > 0: su(f"v_cvt_pk_bf16_f32 v{D+k_-1}, v{q}, v{q+1}")
    su(f"""
    v_cmp_u_f32 vcc, v{t+6}, v{t+7}
    v_cvt_pk_bf16_f32 v{D+8}, v{O[0]+8}, v{O[0]+9}
    v_cvt_pk_bf16_f32 v{D+9}, v{O[0]+10}, v{O[0]+11}
    s_or_b64 vcc, {s(sE,2)}, vcc
    s_cbranch_vccnz {name}_slow
    {name}_pub:""")
    if cfg.get("xb", 1) == 1: st("s_barrier")
    if f5 >= 0 and cfg.get("p5", 2) == 0: st(fld, "F")
    st(f"""
    buffer_store_dwordx4 {v(D,4)}, v{vu}, {s(sWS,4)}, s{sOa} offen sc1
    v_permlane32_swap_b32 v{D+8}, v{D+10}
    v_permlane32_swap_b32 v{D+9}, v{D+11}
    buffer_store_dwordx4 {v(D+4,4)}, v{vu}, {s(sWS,4)}, s{sOa} offen offset:512 sc1
    buffer_store_dwordx4 {v(D+8,4)}, v{vu+1}, {s(sWS,4)}, s{sOx} offen sc1
    """)
    if cfg.get("od", 0) & 1: st(f"""
    buffer_store_dwordx4 {v(D,4)}, v{vu}, {s(sWS,4)}, s{sOa} offen
    buffer_store_dwordx4 {v(D+4,4)}, v{vu}, {s(sWS,4)}, s{sOa} offen offset:512
    buffer_store_dwordx4 {v(D+8,4)}, v{vu+1}, {s(sWS,4)}, s{sOx} offen""")
    if cfg.get("xb", 1) == 2: st("s_barrier")
    if f5 == 2: st(fl5)
    if f5 >= 0 and cfg.get("p5", 2) == 1: st(fld, "F")
    stamp(a, 26)
    for i in range(3*lt): st(f"""v_add_u32 v{t+1}, {64*i}, v0
    v_mul_u32_u24 v{t+1}, 6554, v{t+1}
    v_lshrrev_b32 v{t+1}, 16, v{t+1}
    v_mul_u32_u24 v{t+1}, {1280-160}, v{t+1}
    v_add_u32 v{vo_[i]}, v{t+1}, v{vA[0]}""")
    act = [12+20*i for i in range(4)]
    al1 = lambda i, ks: (f"buffer_load_dwordx4 {v(act[i]+4*ks,4)}, v{vA[ks>>2]}, {s(sWS,4)}, s{sAct[i]} offen offset:{1024*(ks&3)} {CQ[cfg.get('c6', 0)]}", f"o{i}_{ks}")
    def ald(st_, i):
        for ks in range(5): st_(*al1(i, ks))
    ny = cfg.get("ny", 0); oi = cfg.get("oi", 4)
    if (f5 < 0 or cfg.get("p5", 2) == 2) and not cfg.get("nw", 0): st("s_waitcnt vmcnt(0)")
    if f5 >= 0 and cfg.get("p5", 2) == 2: st(fld, "F")
    if cfg.get("y0", 2) == 0 or cfg.get("xs", 70): st("s_barrier")
    assert cfg.get("y0", 2) or not cfg.get("xs", 70)
    if f5 >= 0: poll(st, "q", 29)
    st.w("wof")
    assert cfg.get("y0", 2) <= oi
    for i in range(oi):
        ald(st, i)
        if cfg.get("y0", 2) == i+1 and not ny: st("s_barrier")
    ac2 = [208, 228]; tc = 250; nq = cfg.get("nq", 1)
    ck = lambda i, ks: [f"v_max3_u32 v{tc+e}, v{act[i]+4*ks+2*e}, v{act[i]+4*ks+2*e+1}, v{tc+e}" if ks else f"v_max_u32 v{tc+e}, v{act[i]+2*e}, v{act[i]+2*e+1}" for e in range(2)]
    cke = f"v_max_u32 v{tc}, v{tc}, v{tc+1}\n v_cmp_eq_u32 vcc, -1, v{tc}"
    padd = lambda x, y: [f"v_pk_add_f32 {v(x+h2,2)}, {v(x+h2,2)}, {v(y+h2,2)}" for h2 in (0, 2)]
    for i in range(4):
        st(f"{name}_o{i}:")
        ex = [[] for m in range(25)]; br = f"s_cbranch_vccnz {name}_o{i}_retry\n {name}_o{i}_ok:"
        rdp = lambda d, q, c: (f"ds_read_b128 {v(q+4*c,4)}, v{aP[d+1]} offset:{(d*5120 if d < 3 else 0)+c*1024}", f"pr{d}{c}")
        ws_ = cfg.get("tw", 4) if i < 3 else cfg.get("tv", 2); yb = cfg.get("ty", 14)
        for c in range(5):
            if i: ex[ws_*c+1].append((f"ds_write_b128 v{aP[0]}, {v(ac2[(i-1)&1]+4*c,4)} offset:{(i-1)*5120+c*1024}", "pw"))
            if i == 2 and nq: ex[ws_*c].append(rdp(3, act[0], c))
            if i > nq: ex[ws_*c if i < 3 else c+yb-6].append(rdp((i+2) & 3, act[i-1], c))
            if i == 2: ex[min(ws_*c+8, 24)] += [("@", f"pr0{c}")] + unpk(padd(act[1]+4*c, act[0]+4*c), NP & 2)
            if i == 3: ex[yb+c].append(rdp(2, act[0], c)); ex[20+c] += [("@", f"pr2{c}")] + unpk(padd(act[0]+4*c, act[2]+4*c), NP & 2)
            ex[5*c+1 if i < 3 else c] += [("@", f"o{i}_{c}")] + ck(i, c)
        for m in range(5*oi, 20*(i == 0)): ex[(m-5*oi)*cfg.get("oj", 20)//(20-5*oi)].insert(0, al1(*divmod(m, 5)))
        ex[22 if i < 3 else 4].append(cke)
        if i == 3: ex[5].insert(0, br); ex[yb] = [("@", "pw"), "s_barrier"] + ex[yb]
        for ks in range(5):
            st.w(f"o{i}_{ks}")
            if ks == 0 and i in (0, 3): stamp(a, 27 if i == 0 else 28)
            for c in range(5):
                q = ac2[i & 1]+4*c
                st(f"{MF16} {v(q,4)}, {v(WO(ks,c),4)}, {v(act[i]+4*ks,4)}, {v(q,4) if ks else v(act[1]+4*c,4) if i == 3 else '0'}")
                st.run(ex[5*ks+c])
        if i < 3: st(br)
        if nq-ny <= i < 3: st.w("pw"); st("s_barrier")
    for c in range(5):
        q = ac2[1]+4*c; st.run(padd(q, act[0]+4*c))
        st(f"v_cvt_pk_bf16_f32 v{q}, v{q}, v{q+1}\n v_cvt_pk_bf16_f32 v{q+1}, v{q+2}, v{q+3}")
        st(f"ds_write_b64 v{vs}, {v(q,2)} offset:{15360+32*c}" if lt else f"buffer_store_dwordx2 {v(q,2)}, v{vs}, {s(sSP,4)}, s{sO} offen offset:{32*c}")
    for i in range(3*lt): st(f"ds_read_b128 {v(act[1]+4*i,4)}, v{aP[0]} offset:{15360+1024*i}", f"fo{i}")
    for i in range(3*lt):
        if i == 2: st("s_mov_b32 exec_hi, 0")
        st.w(f"fo{i}"); st(f"""buffer_store_dwordx4 {v(act[1]+4*i,4)}, v{vo_[i]}, {s(sSP,4)}, s{sO} offen offset:{1024*i} {["", "sc1", "nt", "sc0 sc1"][cfg.get("os", 0)]}""")
    if TS[0]: st("s_mov_b64 exec, -1")
    if TS[0] == 1: st(f"v_writelane_b32 v255, s{sCnt}, 5")
    wend(a, name)
    x = St(a)
    for p in "pq"[:1 + (f5 >= 0)]: x(f"""{name}_{p}retry:
    s_cmp_eq_u32 s{sCnt}, 0
    s_cbranch_scc1 {name}_{p}ok
    s_sub_u32 s{sCnt}, s{sCnt}, 1
    {fld}
    s_waitcnt vmcnt(0)
    s_branch {name}_{p}oll""")
    for i in range(4):
        x(f"{name}_o{i}_retry:\n s_cmp_eq_u32 s{sCnt}, 0\n s_cbranch_scc1 {name}_o{i}_ok\n s_sub_u32 s{sCnt}, s{sCnt}, 1")
        ald(x, i)
        for m in range(i+1, 4 if i else oi):
            x(f"s_waitcnt vmcnt({5*(4-m)})")
            for ks in range(5): x.run(ck(m, ks))
            x(f"{cke}\n s_cbranch_vccz {name}_o{i}_r{m}"); ald(x, m); x(f"{name}_o{i}_r{m}:")
        x(f"s_waitcnt vmcnt(0) lgkmcnt(0)\n s_branch {name}_o{i}")
    slow_path(a, name, sWS, sT, sN, [sWb[0], sWb[1], sB, sZb], mx, t, 254 if cfg.get("sa", 1) else 0)
    assert bool(cfg.get("sa", 1)) == bool(cfg.get("sb", 8))
```
